```python
import torch

def _softmax(x, axis=-1):
    return torch.softmax(x, dim=axis)
def _gelu(x):
    return torch.nn.functional.gelu(x, approximate="tanh")
def _silu(x):
    return torch.nn.functional.silu(x)
def _sigmoid(x):
    return torch.sigmoid(x)
def _layernorm(x, axis=-1, eps=1e-5):
    m = x.mean(dim=axis, keepdim=True)
    v = x.var(dim=axis, keepdim=True, unbiased=False)
    return (x - m) / torch.sqrt(v + eps)
def _scatter_add(tgt, idx, src, axis=0):
    return tgt.clone().index_add_(axis, idx, src)
def _segment_sum(src, seg, n):
    out = torch.zeros((n,) + src.shape[1:], dtype=src.dtype)
    return out.index_add_(0, seg, src)
def _pad(x, pw):
    flat = tuple(v for pair in reversed(pw) for v in pair)
    return torch.nn.functional.pad(x, flat)

kernel_name = 'concat_heads__ssm_conv_s4d__mha_block__prompt'

def setup_inputs():

    _w = (lambda a: (lambda t: t.to(torch.bfloat16) if t.is_floating_point() else t)(torch.as_tensor(a)))
    def _A_setup():
        Bsz, L, D, N = 1, 2048, 640, 128
        return {
            "u": _w((lambda *s: torch.randn(*s, dtype=torch.bfloat16) * 0.05)(Bsz, L, D)),
            "log_A_real": _w((lambda *s: torch.randn(*s, dtype=torch.bfloat16) * 3.2)(D, N) * 0.5),
            "A_imag": _w((lambda *s: torch.randn(*s, dtype=torch.bfloat16) * 0.1)(D, N) * 3.14),
            "C_real": _w((lambda *s: torch.randn(*s, dtype=torch.bfloat16) * 1.6)(D, N) / N ** 0.5),
            "C_imag": _w((lambda *s: torch.randn(*s, dtype=torch.bfloat16) * 1.6)(D, N) / N ** 0.5),
            "log_dt": _w((lambda *s: torch.randn(*s, dtype=torch.bfloat16) * 0.1)(D) * 0.5 - 4.0),
            "D_skip": _w((lambda *s: torch.randn(*s, dtype=torch.bfloat16) * 0.1)(D)),
        }
    _A_in = _A_setup()

    def _B_setup():
        B, S, D, H = 1, 2048, 640, 32
        return {
            "x": _w((lambda *s: torch.randn(*s, dtype=torch.bfloat16) * 0.2)(B, S, D)),
            "wqkv": _w((lambda *s: torch.randn(*s, dtype=torch.bfloat16) * 0.2)(D, 3 * D)),
            "wo": _w((lambda *s: torch.randn(*s, dtype=torch.bfloat16) * 0.05)(D, D)),
        }
    _B_in = _B_setup()

    return {
        "A_u": _A_in["u"],
        "A_log_A_real": _A_in["log_A_real"],
        "A_A_imag": _A_in["A_imag"],
        "A_C_real": _A_in["C_real"],
        "A_C_imag": _A_in["C_imag"],
        "A_log_dt": _A_in["log_dt"],
        "A_D_skip": _A_in["D_skip"],
        "B_x": _B_in["x"],
        "B_wqkv": _B_in["wqkv"],
        "B_wo": _B_in["wo"],
    }

def reference(A_u, A_log_A_real, A_A_imag, A_C_real, A_C_imag, A_log_dt, A_D_skip, B_x, B_wqkv, B_wo):
    def _A_ref(u, log_A_real, A_imag, C_real, C_imag, log_dt, D_skip):
        L = u.shape[1]
        dt = torch.exp(log_dt)
        A = -torch.exp(log_A_real) + 1j * A_imag
        C = (C_real + 1j * C_imag) * dt[:, None]
        pos = (lambda x, dt: x.to(dt))(torch.arange(L), log_dt.dtype)
        P = torch.exp((A * dt[:, None])[:, :, None] * pos[None, None, :])
        K = 2.0 * torch.einsum("dn,dnl->dl", C, P).real
        L2 = 2 * L
        u_t = (lambda x, *d: x.permute(*d))(u, 0, 2, 1)
        Kf = (lambda x, *a, **k: torch.fft.rfft(x.float(), *a, **k))(K, L2)
        Uf = (lambda x, *a, **k: torch.fft.rfft(x.float(), *a, **k))(u_t, L2)
        y = (lambda x, *a, **k: torch.fft.irfft(x, *a, **k).to(torch.bfloat16))(Uf * Kf[None, :, :], L2)[:, :, :L]
        y = (lambda x, *d: x.permute(*d))(y, 0, 2, 1)
        return y + u * D_skip[None, None, :]

    def _B_ref(x, wqkv, wo):
        B, S, D = x.shape
        H = 32
        Dh = D // H
        qkv = (lambda x, *d: x.permute(*d))((x @ wqkv).reshape(B, S, 3, H, Dh), 2, 0, 3, 1, 4)
        q, k, v = qkv[0], qkv[1], qkv[2]
        scores = torch.einsum("bhqd,bhkd->bhqk", q, k) * (Dh ** -0.5)
        p = _softmax(scores, axis=-1)
        o = torch.einsum("bhqk,bhkd->bhqd", p, v)
        return (lambda x, *d: x.permute(*d))(o, 0, 2, 1, 3).reshape(B, S, D) @ wo

    a = _A_ref(A_u, A_log_A_real, A_A_imag, A_C_real, A_C_imag, A_log_dt, A_D_skip)
    b = _B_ref(B_x, B_wqkv, B_wo)
    return torch.concatenate([a, b], axis=-1)
```

```python
import re, struct

def f32hex(x):
    return "0x%08x" % struct.unpack("<I", struct.pack("<f", x))[0]

class Asm:
    def __init__(self):
        self.lines = []
        self.uid = 0
    def __call__(self, s):
        for l in s.split("\n"):
            l = l.strip()
            if l:
                self.lines.append(l if l.endswith(":") or l.startswith(".") else "    " + l)
    def label(self, name):
        self.lines.append(name + ":")
    def newlabel(self, base="L"):
        self.uid += 1
        return f"{base}_{self.uid}"
    def text(self):
        return "\n".join(self.lines) + "\n"

def v(r, n=1):
    return f"v{r}" if n == 1 else f"v[{r}:{r+n-1}]"
def s(r, n=1):
    return f"s{r}" if n == 1 else f"s[{r}:{r+n-1}]"

_REG = re.compile(r"\b([vsa])(?:(\d+)|\[(\d+):(\d+)\])")
TRANS = ("v_exp_f32", "v_log_f32", "v_rcp_f32", "v_rsq_f32", "v_sqrt_f32", "v_sin_f32", "v_cos_f32", "v_rcp_iflag_f32", "v_exp_f16")

def regs_of(op):
    out = set()
    for m in _REG.finditer(op):
        k = m.group(1)
        if m.group(2) is not None:
            out.add((k, int(m.group(2))))
        else:
            for i in range(int(m.group(3)), int(m.group(4)) + 1):
                out.add((k, i))
    if re.search(r"\bvcc\b", op): out |= {("s", "vcc")}
    if re.search(r"\bm0\b", op): out |= {("s", "m0")}
    if re.search(r"\bexec\b", op): out |= {("s", "exec")}
    return out

class Ins:
    def __init__(self, text, lineno):
        self.text = text; self.lineno = lineno
        t = text.split(";")[0].strip()
        parts = t.split(None, 1)
        self.op = parts[0]
        rest = parts[1] if len(parts) > 1 else ""
        ops = []; depth = 0; cur = ""
        for ch in rest:
            if ch == "[": depth += 1
            if ch == "]": depth -= 1
            if ch == "," and depth == 0:
                ops.append(cur.strip()); cur = ""
            else: cur += ch
        if cur.strip(): ops.append(cur.strip())
        self.ops = ops
        op = self.op
        self.is_mfma = op.startswith("v_mfma")
        self.is_valu = op.startswith("v_") and not self.is_mfma
        self.is_trans = any(op.startswith(x) for x in TRANS)
        self.is_vmem = op.startswith(("buffer_", "global_", "flat_"))
        self.is_ds = op.startswith("ds_")
        self.is_salu = op.startswith("s_")
        self.w = set(); self.r = set()
        self.states = 1
        if op == "s_nop": self.states = int(ops[0], 0) + 1
        if self.is_mfma:
            self.w = regs_of(ops[0]); self.A = regs_of(ops[1]); self.B = regs_of(ops[2]); self.C = regs_of(ops[3])
            self.r = self.A | self.B | self.C
            self.passes = 8 if "32x32" in op else 4
            if op.endswith("_f32") and ("x2_f32" in op or "x4_f32" in op): raise Exception("sgemm not modelled")
        elif self.is_valu:
            if op.startswith("v_cmp"):
                self.w = regs_of(ops[0]);
                if op.startswith("v_cmpx"): self.w |= {("s", "exec")}
                for o in ops[1:]: self.r |= regs_of(o)
            elif op.startswith(("v_permlane32_swap", "v_permlane16_swap", "v_swap")):
                self.w = regs_of(ops[0]) | regs_of(ops[1]); self.r = set(self.w)
            elif op.startswith(("v_add_co", "v_sub_co", "v_addc_co", "v_subb_co", "v_div_scale", "v_mad_u64")):
                self.w = regs_of(ops[0]) | regs_of(ops[1])
                for o in ops[2:]: self.r |= regs_of(o)
            else:
                self.w = regs_of(ops[0])
                for o in ops[1:]: self.r |= regs_of(o.split(" ")[0] if not o.startswith(("-", "abs", "|")) else o)
                if op.startswith(("v_fmac", "v_pk_fmac", "v_writelane", "v_dot")) or "UNUSED_PRESERVE" in text or "dpp" in text or "row_" in text or "quad_perm" in text:
                    self.r |= self.w
        elif self.is_vmem:
            lds = re.search(r"\blds\b", text.split(";")[0]) is not None
            if "store" in op or ("atomic" in op):
                for o in ops: self.r |= regs_of(o.split(" ")[0])
                self.data = regs_of(ops[0]) if op.startswith("buffer_") else regs_of(ops[1])
                if "atomic" in op and "sc0" in text: self.w = regs_of(ops[0])
            elif lds:
                for o in ops: self.r |= regs_of(o.split(" ")[0])
                self.r |= {("s", "m0")}
            elif op.startswith(("buffer_inv", "buffer_wbl2")):
                pass
            else:
                self.w = regs_of(ops[0])
                for o in ops[1:]: self.r |= regs_of(o.split(" ")[0])
            self.lds = lds
        elif self.is_ds:
            if op.startswith(("ds_read", "ds_bpermute", "ds_permute", "ds_swizzle")) or "_rtn" in op:
                self.w = regs_of(ops[0])
                for o in ops[1:]: self.r |= regs_of(o.split(" ")[0])
            else:
                for o in ops: self.r |= regs_of(o.split(" ")[0])
        elif self.is_salu:
            if op.startswith(("s_cmp", "s_cbranch", "s_branch", "s_waitcnt", "s_barrier", "s_nop", "s_endpgm", "s_setprio", "s_sleep", "s_setpc", "s_bitcmp")):
                for o in ops: self.r |= regs_of(o)
            else:
                if ops:
                    self.w = regs_of(ops[0])
                    for o in ops[1:]: self.r |= regs_of(o)
                if "saveexec" in op: self.w |= {("s", "exec")}

def vonly(x): return {r for r in x if r[0] in "va"}
def sonly(x): return {r for r in x if r[0] == "s"}

def need(p, c):
    n = 0
    if p.is_valu:
        if c.is_mfma and vonly(p.w) & c.r: n = max(n, 2)
        if c.is_mfma and ("s", "exec") in p.w: n = max(n, 4)
        if p.is_trans and c.is_valu and not c.is_trans and vonly(p.w) & c.r: n = max(n, 1)
        if p.is_trans and c.is_valu and c.is_trans and vonly(p.w) & c.r: n = max(n, 1)
        if c.op.startswith("v_permlane") and vonly(p.w) & c.r: n = max(n, 2)
        if c.is_valu and ("dpp" in c.text or "row_" in c.text or "quad_perm" in c.text) and vonly(p.w) & c.r: n = max(n, 2)
        if c.op.startswith(("v_readlane", "v_readfirstlane")) and vonly(p.w) & c.r: n = max(n, 1)
        if sonly(p.w):
            if c.is_vmem and sonly(p.w) & c.r: n = max(n, 5)
            if c.is_valu and sonly(p.w) & c.r:
                n = max(n, 4 if c.op.startswith(("v_readlane", "v_writelane")) else 2)
            if c.op.startswith("v_div_fmas") and ("s", "vcc") in p.w: n = max(n, 4)
        if ("sdwa" in p.text or "op_sel" in p.text and not p.op.startswith("v_pk")) and c.is_valu and vonly(p.w) & (c.r | c.w): n = max(n, 1)
    if p.is_salu and ("s", "m0") in p.w and c.is_vmem and getattr(c, "lds", False): n = max(n, 1)
    if p.is_mfma:
        ps = p.passes
        if c.is_mfma:
            if p.w & (c.A | c.B): n = max(n, {4: 8, 8: 12}[ps])
            if p.w & c.C:
                if not (p.w == c.C and p.passes == c.passes): n = max(n, {4: 6, 8: 10}[ps])
            if (p.w & c.w) and not (p.w & c.C): n = max(n, 0)
        elif (c.is_valu or c.is_vmem or c.is_ds) and (p.w & (c.r | c.w)):
            n = max(n, {4: 8, 8: 12}[ps])
        if c.is_valu and (p.C & c.w): n = max(n, {4: 3, 8: 7}[ps])
    if p.is_vmem and ("store" in p.op) and ("x3" in p.op or "x4" in p.op):
        if p.data & c.w: n = max(n, 2 if c.is_valu else 1)
    return n

def check_hazards(text):
    lines = text.split("\n")
    ins = []; labels = {}
    for i, l in enumerate(lines):
        t = l.split(";")[0].strip()
        if not t or t.startswith("."): continue
        if t.endswith(":"):
            labels[t[:-1]] = len(ins); continue
        ins.append(Ins(t, i + 1))
    def succ(i):
        x = ins[i]
        if x.op == "s_endpgm": return []
        if x.op == "s_branch": return [labels[x.ops[0]]]
        if x.op == "s_cbranch_execz": return [i + 1]
        if x.op.startswith("s_cbranch"): return [labels[x.ops[0]], i + 1]
        if x.op.startswith(("s_setpc", "s_swappc")): return []
        return [i + 1] if i + 1 < len(ins) else []
    errs = []
    for i, p in enumerate(ins):
        if not (p.is_valu or p.is_mfma or p.is_vmem or (p.is_salu and ("s", "m0") in p.w)): continue
        stack = [(j, 0) for j in succ(i)]
        seen = {}
        while stack:
            j, d = stack.pop()
            if j >= len(ins) or d >= 12: continue
            if seen.get(j, 99) <= d: continue
            seen[j] = d
            c = ins[j]
            n = need(p, c)
            if n > d:
                errs.append(f"line {p.lineno}: {p.text}  ->  line {c.lineno}: {c.text}  needs {n} has {d}")
            for k in succ(j): stack.append((k, d + c.states))
    return errs
```

```python
import math, sys
from asmlib import *

NAME = "concat_heads__ssm_conv_s4d__mha_block__prompt"
WS_QKV = 0
WS_O = 0x800000
WS_UT = 0xB00000
WS_YT = 0xE00000
WS_KR = 0x1100000
WS_SIZE = 0x1400000
PLANE = 16384
QSCALE = math.log2(math.e) / math.sqrt(20.0)

def srd(a, d, lo, size):
    a(f"s_mov_b32 s{d}, s{lo}\ns_and_b32 s{d+1}, s{lo+1}, 0xffff\ns_mov_b32 s{d+2}, {size}\ns_mov_b32 s{d+3}, 0x20000")

def kstart(a, name):
    a(f".globl {name}\n.p2align 8\n.type {name},@function")
    a.label(name)

def kdesc(name, vgpr, sgpr=96):
    return f""".p2align 6
.amdhsa_kernel {name}
  .amdhsa_next_free_vgpr {vgpr}
  .amdhsa_next_free_sgpr {sgpr}
  .amdhsa_accum_offset {(vgpr+3)//4*4}
  .amdhsa_group_segment_fixed_size 0
  .amdhsa_kernarg_size 104
  .amdhsa_user_sgpr_count 2
  .amdhsa_user_sgpr_kernarg_segment_ptr 1
  .amdhsa_system_sgpr_workgroup_id_x 1
.end_amdhsa_kernel
"""

PROF = "--prof" in sys.argv
PRIO = "--prio" in sys.argv
ZERO = "--zero" in sys.argv
WS_PROF = 0x1300000
def stamp(a, i):
    if PROF: a(f"s_memtime s[{60+2*i}:{61+2*i}]\ns_waitcnt lgkmcnt(0)")
def rstamp(a, i):
    if PROF: a(f"s_memrealtime s[{60+2*i}:{61+2*i}]\ns_waitcnt lgkmcnt(0)")
def stamp_out(a, n, kidx, wsrd=12):
    if not PROF: return
    a(f"s_mov_b64 exec, -1\ns_lshl_b32 s58, s2, 3\ns_add_u32 s58, s58, s16\ns_lshl_b32 s58, s58, 6\ns_add_u32 s58, s58, {WS_PROF + kidx*0x40000}")
    a("v_mov_b32 v0, 0\ns_mov_b64 exec, 1")
    for i in range(n):
        a(f"v_mov_b32 v1, s{60+2*i}\nbuffer_store_dword v1, v0, s[{wsrd}:{wsrd+3}], s58 offen offset:{4*i}")

def mfma32(a, d, x, y, c=None):
    a(f"v_mfma_f32_32x32x16_bf16 {v(d,16)}, {v(x,4)}, {v(y,4)}, {v(c,16) if c is not None else 0}")
def mfma16(a, d, x, y, c=None):
    a(f"v_mfma_f32_16x16x32_bf16 {v(d,4)}, {v(x,4)}, {v(y,4)}, {v(c,4) if c is not None else 0}")

def k_gemm(a):
    nm = "qkv_kernel"
    kstart(a, nm)
    NS = 4
    a(f"""s_cmp_ge_u32 s2, 240
    s_cbranch_scc1 L_qkv_end
    s_load_dwordx4 s[20:23], s[0:1], 56
    s_load_dwordx2 s[24:25], s[0:1], 96
    v_lshrrev_b32 v1, 6, v0
    v_and_b32 v2, 63, v0
    v_readfirstlane_b32 s16, v1
    s_and_b32 s17, s2, 7
    s_lshl_b32 s17, s17, 1
    s_bfe_u32 s18, s2, 0x10003
    s_add_u32 s17, s17, s18
    s_lshr_b32 s18, s2, 4
    s_waitcnt lgkmcnt(0)""")
    rstamp(a, 0); stamp(a, 1)
    srd(a, 4, 20, 2048*1280)
    srd(a, 8, 22, 640*3840)
    srd(a, 12, 24, WS_SIZE)
    a("s_cmp_lt_u32 s16, 4\ns_cbranch_scc1 L_qkv_comp")
    a(f"""s_sub_u32 s19, s16, 4
    v_lshrrev_b32 v3, 3, v2
    v_and_b32 v4, 7, v2
    v_lshrrev_b32 v5, 1, v3
    s_and_b32 s26, s19, 1
    s_lshl_b32 s26, s26, 2
    v_add_u32 v5, s26, v5
    v_xor_b32 v4, v4, v5
    v_lshlrev_b32 v4, 4, v4
    v_mul_u32_u24 v3, 1280, v3
    v_add_u32 v10, v3, v4
    s_mul_i32 s26, s17, {128*1280}
    s_mul_i32 s27, s19, {8*1280}
    s_add_u32 s26, s26, s27
    v_lshrrev_b32 v3, 4, v2
    v_bfe_u32 v4, v2, 2, 2
    v_xor_b32 v4, v4, v3
    v_lshlrev_b32 v4, 6, v4
    v_and_b32 v5, 3, v2
    v_lshlrev_b32 v5, 4, v5
    v_mul_u32_u24 v3, 3840, v3
    v_add3_u32 v11, v3, v4, v5
    s_lshl_b32 s27, s18, 8
    s_mul_i32 s28, s19, {4*3840}
    s_add_u32 s27, s27, s28
    s_lshl_b32 s28, s19, 10""")
    def issue():
        for i in range(4):
            a(f"s_add_u32 m0, s28, {i*4096}\ns_add_u32 s29, s26, {i*32*1280}\nbuffer_load_dwordx4 v10, s[4:7], s29 offen lds")
        for i in range(4):
            a(f"s_add_u32 m0, s28, {16384+i*4096}\ns_add_u32 s29, s27, {i*16*3840}\nbuffer_load_dwordx4 v11, s[8:11], s29 offen lds")
        a(f"s_add_u32 s26, s26, 128\ns_add_u32 s27, s27, {64*3840}\ns_add_u32 s28, s28, 32768\ns_and_b32 s28, s28, {NS*32768-1}")
    a("s_mov_b32 s30, 0")
    a.label("L_qkv_pro")
    issue()
    a(f"s_add_u32 s30, s30, 1\ns_cmp_lt_u32 s30, {NS}\ns_cbranch_scc1 L_qkv_pro")
    a(f"s_waitcnt vmcnt({8*(NS-1)})\ns_barrier")
    a("s_mov_b32 s30, 1")
    a.label("L_qkv_ld")
    a(f"s_waitcnt vmcnt({8*(NS-2)})\ns_barrier")
    issue()
    a(f"s_add_u32 s30, s30, 1\ns_cmp_lt_u32 s30, {10-NS+1}\ns_cbranch_scc1 L_qkv_ld")
    for k in range(NS-2, -1, -1):
        a(f"s_waitcnt vmcnt({8*k})\ns_barrier")
    a("s_endpgm")
    a.label("L_qkv_comp")
    XA = [10, 11, 12, 13]; WA = [14, 15]
    FX = [[16, 20], [32, 36]]; FW = [[24, 28], [40, 44]]
    ACC = 48
    a(f"""s_and_b32 s19, s16, 1
    s_lshr_b32 s26, s16, 1
    v_and_b32 v3, 31, v2
    v_lshrrev_b32 v4, 5, v2
    v_bfe_u32 v5, v3, 1, 3
    v_xor_b32 v5, v5, v4
    v_lshlrev_b32 v5, 4, v5
    v_lshlrev_b32 v6, 7, v3
    s_lshl_b32 s27, s19, 13
    v_add3_u32 v{XA[0]}, v5, v6, s27
    v_xor_b32 v{XA[1]}, 32, v{XA[0]}
    v_xor_b32 v{XA[2]}, 64, v{XA[0]}
    v_xor_b32 v{XA[3]}, 96, v{XA[0]}
    v_bfe_u32 v5, v2, 2, 2
    s_lshl_b32 s27, s26, 1
    v_xor_b32 v6, s27, v5
    v_lshlrev_b32 v6, 6, v6
    v_lshlrev_b32 v7, 3, v4
    v_add_u32 v7, v7, v5
    v_lshlrev_b32 v7, 8, v7
    v_bfe_u32 v8, v2, 4, 1
    v_lshlrev_b32 v8, 5, v8
    v_and_b32 v9, 3, v2
    v_lshlrev_b32 v9, 3, v9
    v_add3_u32 v6, v6, v7, v8
    v_add_u32 v6, v6, v9
    v_add_u32 v{WA[0]}, 16384, v6
    v_xor_b32 v{WA[1]}, 64, v{WA[0]}""")
    for i in range(64): a(f"v_mov_b32 v{ACC+i}, 0")
    def reads(ks, buf):
        for t in range(2): a(f"ds_read_b128 {v(FX[buf][t],4)}, v{XA[ks]} offset:{t*4096}")
        for m in range(2):
            for rd in range(2): a(f"ds_read_b64_tr_b16 {v(FW[buf][m]+2*rd,2)}, v{WA[m]} offset:{(16*ks+4*rd)*256}")
    def mm(buf):
        for m in range(2):
            for t in range(2): mfma32(a, ACC+(m*2+t)*16, FW[buf][m], FX[buf][t], ACC+(m*2+t)*16)
    a("s_mov_b32 s30, 0\ns_mov_b32 s31, 0\ns_barrier")
    stamp(a, 2)
    reads(0, 0)
    a.label("L_qkv_mm")
    for ks in range(3):
        reads(ks+1, (ks+1) & 1)
        a("s_waitcnt lgkmcnt(6)")
        mm(ks & 1)
    a(f"""s_add_u32 s30, s30, 1
    s_add_u32 s28, s31, 32768
    s_and_b32 s28, s28, {NS*32768-1}
    s_sub_u32 s29, s28, s31
    s_mov_b32 s31, s28
    s_waitcnt lgkmcnt(0)""")
    for r in XA + WA: a(f"v_add_u32 v{r}, s29, v{r}")
    a("s_cmp_eq_u32 s30, 10\ns_cbranch_scc1 L_qkv_last\ns_barrier")
    reads(0, 0)
    mm(1)
    a("s_branch L_qkv_mm")
    a.label("L_qkv_last")
    mm(1)
    stamp(a, 3)
    a(f"""s_cmp_lt_u32 s18, 5
    s_cselect_b32 s29, {f32hex(QSCALE)}, 1.0
    v_lshlrev_b32 v5, 14, v4
    v_lshlrev_b32 v6, 3, v3
    v_add_u32 v5, v5, v6
    s_lshl_b32 s27, s18, 5
    s_lshl_b32 s28, s26, 4
    s_add_u32 s27, s27, s28
    s_lshl_b32 s27, s27, 14
    s_lshl_b32 s28, s17, 10
    s_add_u32 s27, s27, s28
    s_lshl_b32 s28, s19, 9
    s_add_u32 s27, s27, s28
    s_nop 2""")
    k = 0
    for m in range(2):
        for g in range(4):
            for t in range(2):
                r = ACC + (m*2+t)*16 + 4*g
                d = 16 + 2*(k % 16); k += 1
                for i in range(4): a(f"v_mul_f32 v{r+i}, s29, v{r+i}")
                a(f"v_cvt_pk_bf16_f32 v{d}, v{r}, v{r+1}\nv_cvt_pk_bf16_f32 v{d+1}, v{r+2}, v{r+3}")
                if t == 0: a(f"s_add_u32 s28, s27, {WS_QKV + (m*8+2*g)*PLANE}")
                a(f"buffer_store_dwordx2 {v(d,2)}, v5, s[12:15], s28 offen offset:{t*256}")
    stamp(a, 4)
    if PROF: a("s_waitcnt vmcnt(0)")
    stamp(a, 5); rstamp(a, 6)
    stamp_out(a, 7, 0)
    a.label("L_qkv_end")
    a("s_endpgm")
    return nm, kdesc(nm, 112), f"; @launch kernel={nm} grid=(240,1,1) block=(512,1,1) lds={NS*32768}"

CH = 256
PST = CH*8 + 32
SLOT = 12*PST
SLOT = (SLOT + 255)//256*256
def k_attn(a):
    nm = "attn_kernel"
    kstart(a, nm)
    a(f"""s_cmp_ge_u32 s2, 256
    s_cbranch_scc1 L_at_end
    s_load_dwordx2 s[24:25], s[0:1], 96
    v_lshrrev_b32 v1, 6, v0
    v_and_b32 v2, 63, v0
    v_readfirstlane_b32 s16, v1
    s_and_b32 s17, s2, 7
    s_lshl_b32 s17, s17, 2
    s_lshr_b32 s18, s2, 6
    s_add_u32 s17, s17, s18
    s_bfe_u32 s18, s2, 0x30003
    s_waitcnt lgkmcnt(0)""")
    rstamp(a, 0); stamp(a, 1)
    srd(a, 12, 24, WS_SIZE)
    Q0, Q1 = 4, 8
    KA, VA, DM = 12, 13, 14
    KF = [16, 24]; VF = [32, 40]; P = [48, 56]; S = [64, 80]; O = 96
    a(f"""v_lshlrev_b32 v{DM}, 4, v2
    s_mul_i32 s19, s17, 5
    s_lshr_b32 s20, s16, 1
    s_and_b32 s21, s16, 1""")
    for j in range(3):
        a(f"""s_add_u32 s22, s20, {4*j}
        s_mul_i32 s{44+j}, s22, {PST}
        s_lshl_b32 s23, s21, 10
        s_add_u32 s{44+j}, s{44+j}, s23
        s_cmp_ge_u32 s22, 5
        s_cselect_b32 s26, 155, 0
        s_add_u32 s22, s22, s26
        s_add_u32 s22, s22, 160
        s_add_u32 s22, s22, s19
        s_lshl_b32 s22, s22, 14
        s_add_u32 s{40+j}, s22, s23""")
    def dma(slotreg):
        l = a.newlabel("L_at_d")
        for j in range(3):
            if j == 2: a(f"s_cmp_ge_u32 s16, 4\ns_cbranch_scc1 {l}")
            a(f"s_add_u32 m0, s{44+j}, {slotreg}\ns_nop 0\nbuffer_load_dwordx4 v{DM}, s[12:15], s{40+j} offen lds")
        a.label(l)
        for j in range(3): a(f"s_add_u32 s{40+j}, s{40+j}, {CH*8}")
    a(f"""v_and_b32 v3, 31, v2
    v_lshrrev_b32 v1, 5, v2
    v_lshlrev_b32 v15, 3, v3
    v_lshl_add_u32 v{KA}, v1, 15, v15
    s_lshl_b32 s22, s19, 14
    s_lshl_b32 s23, s18, 11
    s_add_u32 s22, s22, s23
    s_lshl_b32 s23, s16, 8
    s_add_u32 s47, s22, s23
    s_add_u32 s22, s47, {PLANE}
    s_add_u32 s23, s47, {4*PLANE}
    buffer_load_dwordx2 {v(Q0,2)}, v{KA}, s[12:15], s47 offen
    buffer_load_dwordx2 {v(Q0+2,2)}, v{KA}, s[12:15], s22 offen
    buffer_load_dwordx2 {v(Q1,2)}, v15, s[12:15], s23 offen""")
    a.label("L_at_restart")
    dma(0)
    dma(SLOT)
    a(f"""v_lshlrev_b32 v{P[0]}, 2, v0
    v_add_u32 v{P[0]}, {10*PST}, v{P[0]}
    v_mov_b32 v{P[0]+1}, 0x3f803f80""")
    if ZERO:
        a(f"""v_and_b32 v{P[0]+2}, 1, v0
        v_cmp_eq_u32 vcc, 0, v{P[0]+2}
        v_mov_b32 v{P[0]+2}, 0x3f80
        v_mov_b32 v{P[0]+3}, 0
        v_cndmask_b32 v{P[0]+1}, 0, v{P[0]+2}, vcc""")
        for sl in range(3): a(f"ds_write_b32 v{P[0]}, v{P[0]+3} offset:{sl*SLOT+PST}")
    for sl in range(3): a(f"ds_write_b32 v{P[0]}, v{P[0]+1} offset:{sl*SLOT}")
    a(f"""v_mul_u32_u24 v{KA}, {2*PST}, v1
    v_add_u32 v{KA}, v{KA}, v15
    v_and_b32 v{P[0]}, 3, v2
    v_bfe_u32 v{P[0]+1}, v2, 4, 1
    v_lshl_add_u32 v{P[0]}, v{P[0]+1}, 2, v{P[0]}
    v_min_u32 v{P[0]}, {6 if ZERO else 5}, v{P[0]}
    v_add_u32 v{P[0]}, 5, v{P[0]}
    v_mul_u32_u24 v{VA}, {PST}, v{P[0]}
    v_bfe_u32 v{P[0]}, v2, 2, 2
    v_lshl_add_u32 v{P[0]}, v1, 2, v{P[0]}
    v_lshl_add_u32 v{VA}, v{P[0]}, 3, v{VA}""")
    for b in range(2):
        a(f"v_mov_b32 v{KF[b]+6}, 0x3f803f80\nv_mov_b32 v{KF[b]+7}, 0x00003f80")
    if ZERO:
        a(f"v_mul_u32_u24 v{P[0]}, {7*PST}, v1\nv_add_u32 v15, v15, v{P[0]}\nv_cmp_gt_u32 vcc, 32, v2\ns_nop 1")
        for b in range(2):
            a(f"v_cndmask_b32 v{KF[b]+6}, 0, v{KF[b]+6}, vcc\nv_cndmask_b32 v{KF[b]+7}, 0, v{KF[b]+7}, vcc")
    for i in range(16): a(f"v_mov_b32 v{O+i}, 0")
    def kread(t, b):
        a(f"ds_read_b64 {v(KF[b],2)}, v{KA} offset:{t*256}")
        a(f"ds_read_b64 {v(KF[b]+2,2)}, v{KA} offset:{t*256+PST}")
        a(f"ds_read_b64 {v(KF[b]+4,2)}, v15 offset:{t*256+4*PST}")
    def vread(t, b):
        for j in range(4): a(f"ds_read_b64_tr_b16 {v(VF[b]+2*j,2)}, v{VA} offset:{t*256+j*64}")
    def qk(b):
        mfma32(a, S[b], KF[b], Q0); mfma32(a, S[b], KF[b]+4, Q1, S[b])
    a("s_waitcnt vmcnt(0) lgkmcnt(0)\ns_barrier")
    stamp(a, 2)
    a(f"""v_cmp_gt_u32 vcc, 32, v2
    v_mov_b32 v{Q1+2}, 0
    v_mov_b32 v{Q1+3}, 0
    v_cndmask_b32 v{Q1}, 0, v{Q1}, vcc
    v_cndmask_b32 v{Q1+1}, 0, v{Q1+1}, vcc""")
    kread(0, 0)
    a("s_waitcnt lgkmcnt(0)")
    qk(0)
    a("s_nop 7\ns_nop 3")
    M = P[0]
    a(f"v_max3_f32 v{M}, v{S[0]}, v{S[0]+1}, v{S[0]+2}")
    for i in range(3, 15, 2): a(f"v_max3_f32 v{M}, v{M}, v{S[0]+i}, v{S[0]+i+1}")
    a(f"""v_max_f32 v{M}, v{M}, v{S[0]+15}
    v_mov_b32 v{M+1}, v{M}
    s_nop 1
    v_permlane32_swap_b32 v{M}, v{M+1}
    v_max_f32 v{M}, v{M}, v{M+1}""")
    a(f"""v_sub_f32 v{M}, 0, v{M}
    v_and_b32 v{M+1}, 0xffff0000, v{M}
    v_sub_f32 v{M+2}, v{M}, v{M+1}
    v_and_b32 v{M+3}, 0xffff0000, v{M+2}
    v_sub_f32 v{M+2}, v{M+2}, v{M+3}
    v_lshrrev_b32 v{M+1}, 16, v{M+1}
    v_or_b32 v{M+1}, v{M+1}, v{M+3}
    v_lshrrev_b32 v{M+2}, 16, v{M+2}
    v_cndmask_b32 v{Q1+2}, 0, v{M+1}, vcc
    v_cndmask_b32 v{Q1+3}, 0, v{M+2}, vcc""")
    stamp(a, 3)
    kread(1, 1)
    qk(0)
    a(f"s_mov_b32 s30, 0\ns_mov_b32 s31, 0\ns_mov_b32 s32, {2*SLOT}")
    a(f"v_mov_b32 v{P[1]}, 0\nv_mov_b32 v{P[1]+1}, 0\nv_mov_b32 v{P[1]+2}, 0\nv_mov_b32 v{P[1]+3}, 0")
    a(f"v_mov_b32 v{P[1]+4}, 0\nv_mov_b32 v{P[1]+5}, 0\nv_mov_b32 v{P[1]+6}, 0\nv_mov_b32 v{P[1]+7}, 0")
    for i in range(8): a(f"v_mov_b32 v{VF[1]+i}, 0")
    a("s_nop 0\n.p2align 3")
    a.label("L_at_loop")
    for t in range(8):
        b = t & 1; o = b ^ 1
        ex = [f"v_exp_f32 v{S[b]+i}, v{S[b]+i}" for i in range(16)]
        cv = [f"v_cvt_pk_bf16_f32 v{P[b]+i}, v{S[b]+2*i}, v{S[b]+2*i+1}" for i in range(8)]
        J = "\n".join
        kr = [f"ds_read_b64 {v(KF[b],2)}, v{KA} offset:{((t+2)&7)*256}", f"ds_read_b64 {v(KF[b]+2,2)}, v{KA} offset:{((t+2)&7)*256+PST}", f"ds_read_b64 {v(KF[b]+4,2)}, v15 offset:{((t+2)&7)*256+4*PST}"]
        vr = [f"ds_read_b64_tr_b16 {v(VF[b]+2*j,2)}, v{VA} offset:{t*256+j*64}" for j in range(4)]
        if PRIO and (t & 1) == 0: a(f"s_setprio {3 - ((t+2)&7)//2}")
        if t == 6:
            a(f"""s_add_u32 s33, s31, {SLOT}
            s_cmp_eq_u32 s33, {3*SLOT}
            s_cselect_b32 s33, 0, s33
            s_sub_u32 s34, s33, s31
            s_mov_b32 s31, s33
            v_add_u32 v{KA}, s34, v{KA}
            v_add_u32 v15, s34, v15
            s_waitcnt vmcnt(0) lgkmcnt(0)
            s_barrier""")
        else:
            a("s_waitcnt lgkmcnt(0)")
        mfma32(a, S[o], KF[o], Q0)
        a(J(kr + ex[0:4] + cv[0:1]))
        mfma32(a, S[o], KF[o]+4, Q1, S[o])
        a(J(vr[0:2] + ex[4:6] + cv[1:2] + ex[6:8] + cv[2:3]))
        mfma32(a, O, VF[o], P[o], O)
        a(J(vr[2:4] + ex[8:10] + cv[3:4] + ex[10:12] + cv[4:5]))
        mfma32(a, O, VF[o]+4, P[o]+4, O)
        if t == 6:
            l = a.newlabel("L_at_nd")
            a(f"s_cmp_ge_u32 s30, 6\ns_cbranch_scc1 {l}")
            dma("s32")
            a(f"""s_add_u32 s32, s32, {SLOT}
            s_cmp_eq_u32 s32, {3*SLOT}
            s_cselect_b32 s32, 0, s32""")
            a.label(l)
        a(J(ex[12:14] + cv[5:6] + ex[14:16]))
        if t == 7: a(f"v_add_u32 v{VA}, s34, v{VA}")
        a(J(cv[6:8]))
    a("s_add_u32 s30, s30, 1\ns_cmp_lt_u32 s30, 8\ns_cbranch_scc1 L_at_loop")
    a("s_waitcnt lgkmcnt(0)")
    mfma32(a, O, VF[1], P[1], O)
    mfma32(a, O, VF[1]+4, P[1]+4, O)
    stamp(a, 4)
    a(f"""v_lshlrev_b32 v3, 3, v3
    v_lshl_add_u32 v3, v1, 14, v3
    s_add_u32 s22, s47, {WS_O}
    s_add_u32 s23, s47, {WS_O + 2*PLANE}
    s_add_u32 s26, s47, {WS_O + 4*PLANE}
    s_nop 7""")
    if ZERO:
        a(f"""v_mov_b32 v{S[0]+1}, v{O+8}
        v_mov_b32 v{O+12}, v{O+8}
        s_nop 1
        v_permlane32_swap_b32 v{S[0]+1}, v{O+12}""")
    a(f"""v_rcp_f32 v{S[0]}, v{O+12}
    s_nop 0""")
    for i in range(12): a(f"v_mul_f32 v{O+i}, v{O+i}, v{S[0]}")
    for i in range(6): a(f"v_cvt_pk_bf16_f32 v{P[0]+i}, v{O+2*i}, v{O+2*i+1}")
    a(f"""buffer_store_dwordx2 {v(P[0],2)}, v3, s[12:15], s22 offen
    buffer_store_dwordx2 {v(P[0]+2,2)}, v3, s[12:15], s23 offen
    s_mov_b64 exec, 0xffffffff
    buffer_store_dwordx2 {v(P[0]+4,2)}, v3, s[12:15], s26 offen""")
    if PROF: a("s_waitcnt vmcnt(0)")
    stamp(a, 5); rstamp(a, 6)
    stamp_out(a, 7, 1)
    a.label("L_at_end")
    a("s_endpgm")
    return nm, kdesc(nm, 112), f"; @launch kernel={nm} grid=(256,1,1) block=(512,1,1) lds={3*SLOT}"

def build(kernels, path):
    a = Asm()
    infos = [k(a) for k in kernels]
    hdr = open("cdna_kernels/" + NAME + ".s.ref").read().split("\n")
    head = [l for l in hdr[:15] if l.startswith(";") and "@launch" not in l and "Override" not in l and "grid=ceil" not in l]
    txt = "\n".join(head) + "\n" + "\n".join(i[2] for i in infos) + "\n"
    txt += '.amdgcn_target "amdgcn-amd-amdhsa--gfx950"\n.text\n' + a.text()
    txt += '.section .rodata,"a"\n' + "".join(i[1] for i in infos)
    open(path, "w").write(txt)
    errs = check_hazards(a.text())
    for e in errs[:30]: print("HAZARD", e)
    print(f"{path}: {len(a.lines)} lines, {len(errs)} hazards")

if __name__ == "__main__":
    build([k_gemm, k_attn], [x for x in sys.argv[1:] if x.endswith(".s")][0])
```

```python
from gen1 import *

LOG2E = math.log2(math.e)

def k_oproj(a):
    nm = "oproj_kernel"
    kstart(a, nm)
    a(f"""s_cmp_ge_u32 s2, 256
    s_cbranch_scc1 L_op_end
    s_load_dwordx4 s[20:23], s[0:1], 72
    s_load_dwordx2 s[24:25], s[0:1], 96
    v_lshrrev_b32 v1, 6, v0
    v_and_b32 v2, 63, v0
    v_readfirstlane_b32 s16, v1
    s_and_b32 s18, s2, 7
    s_lshr_b32 s17, s2, 3
    s_waitcnt lgkmcnt(0)""")
    rstamp(a, 0); stamp(a, 1)
    srd(a, 4, 20, 640*1280)
    srd(a, 8, 22, 2048*2560)
    srd(a, 12, 24, WS_SIZE)
    OF = 32
    ACC = 8
    WF = 72
    a(f"""v_and_b32 v3, 15, v2
    v_lshrrev_b32 v4, 4, v2
    v_lshlrev_b32 v5, 3, v3
    v_lshl_add_u32 v5, v4, 14, v5
    s_and_b32 s19, s16, 3
    s_lshr_b32 s26, s16, 2
    s_lshl_b32 s27, s17, 9
    s_lshl_b32 s28, s19, 7
    s_add_u32 s27, s27, s28
    s_mul_i32 s28, s26, {80*PLANE}
    s_add_u32 s27, s27, s28
    s_add_u32 s27, s27, {WS_O}""")
    for i in range(10):
        for hf in range(2):
            a(f"buffer_load_dwordx2 {v(OF+4*i+2*hf,2)}, v5, s[12:15], s27 offen\ns_add_u32 s27, s27, {4*PLANE}")
    a(f"""v_mul_u32_u24 v6, 205, v2
    v_lshrrev_b32 v6, 11, v6
    v_mul_u32_u24 v7, 10, v6
    v_sub_u32 v7, v2, v7
    v_lshlrev_b32 v7, 4, v7
    v_mul_u32_u24 v6, 1280, v6
    v_add_u32 v6, v6, v7
    s_mul_i32 s27, s18, 160
    s_mul_i32 s28, s16, {6*1280}
    s_add_u32 s27, s27, s28
    s_mul_i32 s28, s16, 960
    s_mov_b32 s30, s16
    s_mov_b32 exec_hi, 0x0fffffff""")
    a.label("L_op_dma")
    a(f"""s_mov_b32 m0, s28
    s_add_u32 s28, s28, {8*960}
    buffer_load_dwordx4 v6, s[4:7], s27 offen lds
    s_add_u32 s27, s27, {8*6*1280}
    s_add_u32 s30, s30, 8
    s_cmp_lt_u32 s30, 107
    s_cbranch_scc1 L_op_dma
    s_mov_b64 exec, -1""")
    for i in range(20): a(f"v_mov_b32 v{ACC+i}, 0")
    a(f"""v_lshrrev_b32 v6, 2, v2
    v_mul_u32_u24 v6, 160, v6
    v_and_b32 v7, 3, v2
    v_lshl_add_u32 v6, v7, 3, v6
    s_mul_i32 s27, s26, {320*160}
    v_add_u32 v6, s27, v6
    s_waitcnt vmcnt(0)
    s_barrier""")
    stamp(a, 2)
    def wr(i, b):
        for m in range(5):
            for hf in range(2): a(f"ds_read_b64_tr_b16 {v(WF+b*20+4*m+2*hf,2)}, v6 offset:{(32*i+16*hf)*160+32*m}")
    wr(0, 0)
    for i in range(10):
        if i < 9:
            wr(i+1, (i+1) & 1); a("s_waitcnt lgkmcnt(10)")
        else: a("s_waitcnt lgkmcnt(0)")
        for m in range(5): mfma16(a, ACC+4*m, WF+(i&1)*20+4*m, OF+4*i, ACC+4*m)
    stamp(a, 3)
    a(f"""s_barrier
    v_lshlrev_b32 v7, 4, v2
    s_mul_i32 s27, s19, 5120
    v_add_u32 v7, s27, v7
    s_cmp_eq_u32 s26, 0
    s_cbranch_scc1 L_op_r0
    s_nop 4""")
    for m in range(5): a(f"ds_write_b128 v7, {v(ACC+4*m,4)} offset:{m*1024}")
    a("s_waitcnt lgkmcnt(0)\ns_barrier\ns_barrier\ns_branch L_op_st")
    a.label("L_op_r0")
    a("s_barrier")
    for m in range(5): a(f"ds_read_b128 {v(OF+4*m,4)}, v7 offset:{m*1024}")
    a(f"""s_lshl_b32 s27, s19, 4
    v_add_u32 v3, s27, v3
    v_mul_u32_u24 v3, 160, v3
    v_lshl_add_u32 v3, v4, 3, v3
    s_waitcnt lgkmcnt(0)""")
    for m in range(5):
        for i in range(4): a(f"v_add_f32 v{ACC+4*m+i}, v{ACC+4*m+i}, v{OF+4*m+i}")
        a(f"v_cvt_pk_bf16_f32 v{ACC+4*m}, v{ACC+4*m}, v{ACC+4*m+1}\nv_cvt_pk_bf16_f32 v{ACC+4*m+1}, v{ACC+4*m+2}, v{ACC+4*m+3}")
        a(f"ds_write_b64 v3, {v(ACC+4*m,2)} offset:{32768+32*m}")
    a("s_waitcnt lgkmcnt(0)\ns_barrier")
    a.label("L_op_st")
    for rnd in range(2):
        a(f"""v_add_u32 v3, {512*rnd}, v0
        v_lshlrev_b32 v4, 4, v3
        v_mul_u32_u24 v5, 6554, v3
        v_lshrrev_b32 v5, 16, v5
        v_mul_u32_u24 v6, 10, v5
        v_sub_u32 v6, v3, v6
        v_mul_u32_u24 v5, 2560, v5
        v_lshl_add_u32 v5, v6, 4, v5
        s_mul_i32 s27, s17, {64*2560}
        s_mul_i32 s28, s18, 160
        s_add_u32 s27, s27, s28
        s_add_u32 s27, s27, 1280""")
        if rnd == 1: a("s_cmp_ge_u32 s16, 2\ns_cbranch_scc1 L_op_fin")
        a(f"""ds_read_b128 v[8:11], v4 offset:32768
        s_waitcnt lgkmcnt(0)
        buffer_store_dwordx4 v[8:11], v5, s[8:11], s27 offen
        s_nop 1""")
    a.label("L_op_fin")
    stamp(a, 4)
    if PROF: a("s_waitcnt vmcnt(0)")
    stamp(a, 5); rstamp(a, 6)
    stamp_out(a, 7, 2)
    a.label("L_op_end")
    a("s_endpgm")
    return nm, kdesc(nm, 112), f"; @launch kernel={nm} grid=(256,1,1) block=(512,1,1) lds={107*960}"

def transpose_tile(a, ssrd, soff, sstride, dsrd, doff, dstride, ldsbase, vt=8):
    A0, A1, A2, A3 = vt, vt+1, vt+2, vt+3
    D = vt + 4
    a(f"""v_lshrrev_b32 v{A0}, 3, v2
    v_and_b32 v{A1}, 7, v2
    v_lshlrev_b32 v{A1}, 4, v{A1}
    v_mul_u32_u24 v{A2}, {sstride}, v{A0}
    v_add_u32 v{A2}, v{A2}, v{A1}
    s_mov_b32 m0, s{ldsbase}
    s_mov_b32 s50, s{soff}""")
    for i in range(8):
        a(f"buffer_load_dwordx4 v{A2}, s[{ssrd}:{ssrd+3}], s50 offen lds\ns_add_u32 m0, m0, 1024\ns_add_u32 s50, s50, {8*sstride}")
    a(f"""v_mul_u32_u24 v{A3}, {dstride}, v{A0}
    v_add_u32 v{A3}, v{A3}, v{A1}
    v_mul_u32_u24 v{A0}, 144, v{A0}
    v_add3_u32 v{A0}, v{A0}, v{A1}, s{ldsbase}""")
    a(f"""v_bfe_u32 v{A1}, v2, 2, 2
    v_lshlrev_b32 v{A1}, 7, v{A1}
    v_lshrrev_b32 v{A2}, 4, v2
    v_lshl_add_u32 v{A1}, v{A2}, 5, v{A1}
    v_and_b32 v{A2}, 3, v2
    v_lshl_add_u32 v{A1}, v{A2}, 3, v{A1}
    v_add_u32 v{A1}, s{ldsbase}, v{A1}
    v_mul_u32_u24 v{A2}, 144, v2
    v_add_u32 v{A2}, s{ldsbase}, v{A2}
    s_waitcnt vmcnt(0)""")
    for i in range(16): a(f"ds_read_b64_tr_b16 {v(D+2*i,2)}, v{A1} offset:{i*512}")
    a("s_waitcnt lgkmcnt(0)")
    for i in range(8): a(f"ds_write_b128 v{A2}, {v(D+4*i,4)} offset:{i*16}")
    a("s_waitcnt lgkmcnt(0)")
    for i in range(8): a(f"ds_read_b128 {v(D+4*i,4)}, v{A0} offset:{i*8*144}")
    a(f"s_mov_b32 s50, s{doff}")
    for i in range(8):
        a(f"s_waitcnt lgkmcnt({7-i})\nbuffer_store_dwordx4 {v(D+4*i,4)}, v{A3}, s[{dsrd}:{dsrd+3}], s50 offen\ns_add_u32 s50, s50, {8*dstride}")

def k_tr(a, which):
    nm = f"tr{which}_kernel"
    kstart(a, nm)
    a(f"""s_cmp_ge_u32 s2, 320
    s_cbranch_scc1 L_tr{which}_end
    s_load_dwordx2 s[20:21], s[0:1], {0 if which == 'u' else 80}
    s_load_dwordx2 s[24:25], s[0:1], 96
    v_mov_b32 v2, v0
    s_lshr_b32 s17, s2, 5
    s_and_b32 s18, s2, 31
    s_mov_b32 s30, 0
    s_waitcnt lgkmcnt(0)""")
    srd(a, 4, 20, 2048*1280 if which == 'u' else 2048*2560)
    srd(a, 12, 24, WS_SIZE)
    rs = 1280 if which == 'u' else 2560
    a(f"""s_mul_i32 s26, s18, {64*rs}
    s_lshl_b32 s27, s17, 7
    s_add_u32 s26, s26, s27
    s_lshl_b32 s27, s17, 18
    s_lshl_b32 s28, s18, 7
    s_add_u32 s27, s27, s28
    s_add_u32 s27, s27, {WS_UT if which == 'u' else WS_YT}""")
    if which == 'u': transpose_tile(a, 4, 26, 1280, 12, 27, 4096, 30)
    else: transpose_tile(a, 12, 27, 4096, 4, 26, 2560, 30)
    a.label(f"L_tr{which}_end")
    a("s_endpgm")
    return nm, kdesc(nm, 64), f"; @launch kernel={nm} grid=(320,1,1) block=(64,1,1) lds=9216"

UST = 4640
KOFF = 4*UST
CHA = KOFF + 4224
XST = 272
def cmul(a, d, x, z, t):
    a(f"v_pk_mul_f32 {v(t,2)}, {v(x,2)}, {v(z,2)} op_sel:[0,0] op_sel_hi:[1,0]")
    a(f"v_pk_fma_f32 {v(d,2)}, {v(x,2)}, {v(z,2)}, {v(t,2)} op_sel:[1,1,0] op_sel_hi:[0,1,1] neg_lo:[0,1,0]")

def kgen(a, scr, kdst):
    DT, ER, TH = 16, 17, 18
    Z1, Z8, ZW = 20, 22, 24
    X0 = 26
    Y = 44; T = 46; T2 = 48; XA = 50; XB = 52; PK = 54; PK2 = 55
    WA = 56; RA = 57
    FA = 60; FB = 68
    ACC = 80
    a(f"""v_lshlrev_b32 v{DT}, 16, v14
    v_mul_f32 v{DT}, {f32hex(LOG2E)}, v{DT}
    v_exp_f32 v{DT}, v{DT}
    v_lshlrev_b32 v{WA}, 2, v2
    v_add_u32 v{WA}, s{scr}, v{WA}
    v_cvt_pk_bf16_f32 v{DT}, v{DT}, v{DT}
    v_and_b32 v{DT}, 0xffff0000, v{DT}
    v_and_b32 v{RA}, 31, v2
    v_mul_u32_u24 v{RA}, {XST}, v{RA}
    v_lshrrev_b32 v{T}, 5, v2
    v_lshl_add_u32 v{RA}, v{T}, 4, v{RA}
    v_add_u32 v{RA}, s{scr}, v{RA}""")
    for i in range(16): a(f"v_mov_b32 v{ACC+i}, 0")
    a("s_mov_b32 s53, 0")
    lp = a.newlabel("L_kg")
    a.label(lp)
    a(f"""v_and_b32 v{ER}, 0xffff0000, v10
    v_mul_f32 v{ER}, {f32hex(LOG2E)}, v{ER}
    v_exp_f32 v{ER}, v{ER}
    v_and_b32 v{TH}, 0xffff0000, v11
    v_and_b32 v{X0}, 0xffff0000, v12
    v_cvt_pk_bf16_f32 v{ER}, v{ER}, v{ER}
    v_and_b32 v{X0+1}, 0xffff0000, v13
    v_and_b32 v{ER}, 0xffff0000, v{ER}
    v_mul_f32 v{ER}, v{ER}, v{DT}
    v_mul_f32 v{TH}, v{TH}, v{DT}
    v_mul_f32 v{ER}, {f32hex(-LOG2E)}, v{ER}
    v_mul_f32 v{TH}, 0.15915494, v{TH}
    v_mul_f32 v{X0}, v{X0}, v{DT}
    v_mul_f32 v{X0+1}, v{X0+1}, v{DT}
    v_add_f32 v{X0}, v{X0}, v{X0}
    v_add_f32 v{X0+1}, v{X0+1}, v{X0+1}
    v_lshlrev_b32 v10, 16, v10
    v_lshlrev_b32 v11, 16, v11
    v_lshlrev_b32 v12, 16, v12
    v_lshlrev_b32 v13, 16, v13""")
    for (z, p) in ((Z1, 1.0), (Z8, 8.0), (ZW, 256.0)):
        a(f"""v_mul_f32 v{T}, {f32hex(p)}, v{ER}
        v_mul_f32 v{T+1}, {f32hex(p)}, v{TH}
        v_exp_f32 v{T}, v{T}
        v_fract_f32 v{T+1}, v{T+1}
        v_cos_f32 v{z}, v{T+1}
        v_sin_f32 v{z+1}, v{T+1}
        s_nop 0
        v_mul_f32 v{z}, v{z}, v{T}
        v_mul_f32 v{z+1}, v{z+1}, v{T}""")
    def row(h, reg): return 8*(reg >> 2) + 4*h + (reg & 3)
    rows = {}
    for p in range(4): rows.setdefault(p, []).append(row(0, p)); rows.setdefault(p+4, []).append(row(1, p))
    for i, (p0, p1) in enumerate(((256, 260), (258, 262), (260, 264), (512, 768), (516, 772), (520, 776), (1024, 1536), (1032, 1544), (1280, 1792), (1288, 1800))):
        rows.setdefault(p0, []).append(row(0, 4+i)); rows.setdefault(p1, []).append(row(1, 4+i))
    xs = []
    def putx(p, r):
        a(f"v_cvt_pk_bf16_f32 v{PK}, v{r}, -v{r+1}")
        for rw in rows[p]: a(f"ds_write_b32 v{WA}, v{PK} offset:{rw*XST}")
    xs.append(lambda: putx(0, X0))
    for p in range(1, 8):
        xs.append(lambda p=p: (cmul(a, X0+2*p, X0+2*p-2, Z1, T), putx(p, X0+2*p)))
    xs.append(lambda: cmul(a, X0+16, X0, Z8, T))
    for (b, n) in ((0, 7), (8, 7), (2, 1), (4, 3), (6, 1)):
        for m in range(1, n+1):
            xs.append(lambda b=b, m=m: (cmul(a, X0+2*b, X0+2*b, ZW, T), putx(b+256*m, X0+2*b)))
    ys = []
    def puty(j, r):
        a(f"v_cvt_pk_bf16_f32 v{PK2}, v{r}, v{r+1}\nds_write_b32 v{WA}, v{PK2} offset:{(32+j)*XST}")
    ys.append(lambda: a(f"v_mov_b32 v{PK2}, 0x3f80\nds_write_b32 v{WA}, v{PK2} offset:{32*XST}"))
    ys.append(lambda: puty(1, Z8))
    ys.append(lambda: (cmul(a, Y, Z8, Z8, T2), puty(2, Y)))
    for j in range(3, 32): ys.append(lambda j=j: (cmul(a, Y, Y, Z8, T2), puty(j, Y)))
    for i in range(max(len(xs), len(ys))):
        if i < len(ys): ys[i]()
        if i < len(xs): xs[i]()
    a("s_waitcnt lgkmcnt(0)")
    def fr(ks, b):
        a(f"ds_read_b128 {v(FA+4*b,4)}, v{RA} offset:{ks*32}\nds_read_b128 {v(FB+4*b,4)}, v{RA} offset:{32*XST+ks*32}")
    fr(0, 0)
    for ks in range(8):
        if ks < 7: fr(ks+1, (ks+1) & 1); a("s_waitcnt lgkmcnt(2)")
        else: a("s_waitcnt lgkmcnt(0)")
        mfma32(a, ACC, FA+4*(ks&1), FB+4*(ks&1), ACC)
    a(f"s_add_u32 s53, s53, 1\ns_cmp_lt_u32 s53, 2\ns_cbranch_scc1 {lp}")
    J, H, AD = 10, 11, 12
    a(f"""v_and_b32 v{J}, 31, v2
    v_lshrrev_b32 v{H}, 5, v2
    v_lshlrev_b32 v{AD}, 4, v{J}
    v_sub_u32 v{AD}, s{kdst}, v{AD}
    v_lshlrev_b32 v13, 3, v{H}
    v_sub_u32 v13, v{AD}, v13
    v_lshlrev_b32 v14, 9, v{H}
    v_sub_u32 v14, v{AD}, v14
    v_lshlrev_b32 v15, 10, v{H}
    v_sub_u32 v15, v{AD}, v15
    v_and_b32 v{J}, 1, v{J}
    v_cmp_eq_u32 vcc, 0, v{J}
    s_nop 4""")
    R = ACC; P0 = 20
    cv = lambda d, lo, hi: a(f"v_cvt_pk_bf16_f32 v{d}, v{lo}, v{hi}")
    cv(P0, R+3, R+2); cv(P0+1, R+1, R+0)
    a(f"ds_write_b64 v13, {v(P0,2)} offset:{4080+8}")
    cv(P0+2, R+6, R+5); cv(P0+3, R+4, R+4)
    a(f"ds_write_b64 v13, {v(P0+2,2)} offset:{4080-512+8}")
    cv(P0+4, R+9, R+9); cv(P0+5, R+8, R+8); cv(P0+6, R+8, R+7); cv(P0+7, R+7, R+7)
    a(f"ds_write_b128 v14, {v(P0+4,4)} offset:{4080-1024}")
    for sidx in range(2):
        ra, rb = R+10+2*sidx, R+11+2*sidx
        d = P0 + 8 + 4*sidx
        a(f"v_cndmask_b32 v{P0+16}, v{rb}, v{ra}, vcc")
        cv(d, rb, rb); cv(d+1, rb, P0+16); cv(d+2, ra, ra); cv(d+3, ra, ra)
        a(f"ds_write_b128 v15, {v(d,4)} offset:{4080-2048-512*sidx}")
    a(f"""v_and_b32 v{J}, 31, v2
    v_lshlrev_b32 v{J}, 2, v{J}
    v_add_u32 v{J}, s{kdst}, v{J}
    v_mov_b32 v{H}, 0
    ds_write_b32 v{J}, v{H} offset:4096""")

def conv(a, cbase, sets_reg, dsk, ydst):
    AA, BA = 10, 11
    FA = 16; FB = 48; ACC = 80
    a(f"""v_and_b32 v3, 3, v2
    v_mul_u32_u24 v{AA}, {UST}, v3
    v_bfe_u32 v3, v2, 2, 2
    v_lshl_add_u32 v{AA}, v3, 7, v{AA}
    v_lshrrev_b32 v4, 4, v2
    v_lshl_add_u32 v{AA}, v4, 4, v{AA}
    v_add_u32 v{AA}, s{cbase}, v{AA}
    v_and_b32 v3, 15, v2
    v_lshlrev_b32 v3, 3, v3
    v_lshlrev_b32 v{BA}, 4, v4
    v_sub_u32 v{BA}, v{BA}, v3
    v_add_u32 v{BA}, {KOFF+120}, v{BA}
    v_add_u32 v{BA}, s{cbase}, v{BA}""")
    for i in range(16): a(f"v_mov_b32 v{ACC+i}, 0")
    l1 = a.newlabel("L_cv1"); le = a.newlabel("L_cve")
    a(f"s_mov_b32 s53, 0\ns_cmp_eq_u32 s{sets_reg}, 1\ns_cbranch_scc1 {l1}")
    for si, bs in enumerate(((7, 4, 3, 0), (6, 5, 2, 1))):
        if si == 1: a.label(l1)
        lp = a.newlabel("L_cvl")
        a.label(lp)
        n = max(bs) + 1
        done = set()
        for k in range(n):
            a(f"ds_read_b64 {v(FB+4*k,2)}, v{BA} offset:{512*(7-k)}\nds_read_b64 {v(FB+4*k+2,2)}, v{BA} offset:{512*(7-k)+8}")
            a(f"ds_read_b128 {v(FA+4*k,4)}, v{AA} offset:{512*k}")
        a(f"v_add_u32 v{AA}, 64, v{AA}\nv_add_u32 v{BA}, 64, v{BA}")
        for k in range(n):
            todo = [(i, j) for i in range(k+1) for j in range(k+1) if (i+j) in bs and (i, j) not in done]
            if not todo: continue
            a(f"s_waitcnt lgkmcnt({min(15, 3*(n-1-k))})")
            for (i, j) in todo:
                done.add((i, j))
                ac = ACC + 4*bs.index(i+j)
                mfma16(a, ac, FA+4*i, FB+4*j, ac)
        a(f"s_add_u32 s53, s53, 1\ns_cmp_lt_u32 s53, 8\ns_cbranch_scc1 {lp}")
        a(f"""v_lshlrev_b32 v3, 3, v2
        v_add_u32 v4, s{cbase}, v3""")
        for q, b in enumerate(bs): a(f"ds_read_b64 {v(FA+2*q,2)}, v4 offset:{3*UST + 384 + 512*b}")
        a("s_waitcnt lgkmcnt(0)\ns_nop 2")
        for q, b in enumerate(bs):
            ac = ACC + 4*q; u = FA + 2*q; t = FB
            a(f"""v_cvt_pk_bf16_f32 v{ac}, v{ac}, v{ac+1}
            v_cvt_pk_bf16_f32 v{ac+2}, v{ac+2}, v{ac+3}
            v_lshlrev_b32 v{t}, 16, v{u}
            v_and_b32 v{t+1}, 0xffff0000, v{u}
            v_lshlrev_b32 v{t+2}, 16, v{u+1}
            v_and_b32 v{t+3}, 0xffff0000, v{u+1}""")
            for i in range(4): a(f"v_mul_f32 v{t+i}, v{t+i}, v{dsk}")
            a(f"""v_cvt_pk_bf16_f32 v{t}, v{t}, v{t+1}
            v_cvt_pk_bf16_f32 v{t+2}, v{t+2}, v{t+3}
            v_and_b32 v{ac+1}, 0xffff0000, v{ac}
            v_lshlrev_b32 v{ac}, 16, v{ac}
            v_and_b32 v{ac+3}, 0xffff0000, v{ac+2}
            v_lshlrev_b32 v{ac+2}, 16, v{ac+2}
            v_and_b32 v{t+1}, 0xffff0000, v{t}
            v_lshlrev_b32 v{t}, 16, v{t}
            v_and_b32 v{t+3}, 0xffff0000, v{t+2}
            v_lshlrev_b32 v{t+2}, 16, v{t+2}""")
            for i in range(4): a(f"v_add_f32 v{ac+i}, v{ac+i}, v{t+i}")
            a(f"""v_cvt_pk_bf16_f32 v{ac}, v{ac}, v{ac+1}
            v_cvt_pk_bf16_f32 v{ac+1}, v{ac+2}, v{ac+3}
            buffer_store_dwordx2 {v(ac,2)}, v3, s[12:15], s{ydst} offen offset:{512*b}""")
        if si == 0: a(f"s_branch {le}")
    a.label(le)

def k_ssm(a):
    nm = "ssm_kernel"
    kstart(a, nm)
    SCR = 4*CHA
    a(f"""s_cmp_ge_u32 s2, 160
    s_cbranch_scc1 L_ss_end
    s_load_dwordx8 s[36:43], s[0:1], 8
    s_load_dwordx4 s[44:47], s[0:1], 40
    s_load_dwordx2 s[24:25], s[0:1], 96
    v_lshrrev_b32 v1, 6, v0
    v_and_b32 v2, 63, v0
    v_readfirstlane_b32 s16, v1
    s_waitcnt lgkmcnt(0)""")
    rstamp(a, 0); stamp(a, 1)
    srd(a, 12, 24, WS_SIZE)
    a(f"""s_and_b32 s17, s16, 3
    s_lshr_b32 s18, s16, 2
    s_lshl_b32 s19, s2, 2
    s_add_u32 s19, s19, s17
    s_mul_i32 s26, s17, {CHA}
    s_lshl_b32 s27, s19, 1
    v_mov_b32 v3, s27""")
    srd(a, 4, 46, 1280)
    a("buffer_load_ushort v9, v3, s[4:7], 0 offen")
    a("s_cmp_eq_u32 s18, 1\ns_cbranch_scc1 L_ss_kg")
    a(f"""v_lshlrev_b32 v4, 4, v2
    s_lshl_b32 s27, s19, 12
    s_add_u32 s27, s27, {WS_UT - 6}
    s_add_u32 s28, s26, 384""")
    for r in range(4):
        a(f"s_add_u32 m0, s28, {r*UST}\ns_add_u32 s29, s27, {2*r}")
        for i in range(4): a(f"buffer_load_dwordx4 v4, s[12:15], s29 offen offset:{1024*i} lds")
    a(f"""v_lshlrev_b32 v5, 3, v2
    v_min_u32 v5, 376, v5
    v_add_u32 v5, s26, v5
    v_mov_b32 v6, 0
    v_mov_b32 v7, 0""")
    for r in range(4): a(f"ds_write_b64 v5, v[6:7] offset:{r*UST}")
    a(f"""v_lshrrev_b32 v5, 2, v2
    v_and_b32 v8, 3, v2
    v_add_u32 v10, v5, v8
    v_cmp_gt_u32 vcc, 3, v10
    v_mul_u32_u24 v5, {UST}, v5
    v_lshl_add_u32 v5, v8, 1, v5
    v_add_u32 v5, s28, v5
    s_waitcnt vmcnt(0)
    s_and_saveexec_b64 s[30:31], vcc
    ds_write_b16 v5, v6
    s_mov_b64 exec, s[30:31]
    s_branch L_ss_cv""")
    a.label("L_ss_kg")
    a(f"""s_lshl_b32 s27, s19, 8
    v_lshl_add_u32 v4, v2, 2, s27""")
    for i in range(4):
        srd(a, 4, 36+2*i, 640*256)
        a(f"buffer_load_dword v{10+i}, v4, s[4:7], 0 offen")
    srd(a, 4, 44, 1280)
    a(f"""buffer_load_ushort v14, v3, s[4:7], 0 offen
    s_mul_i32 s28, s17, {64*XST}
    s_add_u32 s28, s28, {SCR}
    s_add_u32 s29, s26, {KOFF}
    s_waitcnt vmcnt(0)""")
    stamp(a, 2)
    kgen(a, 28, 29)
    a.label("L_ss_cv")
    a(f"""s_waitcnt vmcnt(0) lgkmcnt(0)
    s_barrier""")
    stamp(a, 3)
    a(f"""v_lshlrev_b32 v9, 16, v9
    s_lshl_b32 s27, s19, 12
    s_add_u32 s27, s27, {WS_YT}""")
    conv(a, 26, 18, 9, 27)
    stamp(a, 4)
    if PROF: a("s_waitcnt vmcnt(0)")
    stamp(a, 5); rstamp(a, 6)
    stamp_out(a, 7, 3)
    a.label("L_ss_end")
    a("s_endpgm")
    return nm, kdesc(nm, 112), f"; @launch kernel={nm} grid=(160,1,1) block=(512,1,1) lds={SCR + 4*64*XST}"

if __name__ == "__main__":
    build([k_gemm, k_attn, k_oproj, lambda a: k_tr(a, 'u'), k_ssm, lambda a: k_tr(a, 'y')], [x for x in sys.argv[1:] if x.endswith(".s")][0])
```

```python
import math, sys
from asmlib import *

NAME = "concat_heads__ssm_conv_s4d__mha_block__prompt"
WS_QKV = 0
WS_O = 0x800000
WS_UT = 0xB00000
WS_YT = 0xE00000
WS_FA = 0x1100000
WS_FB = 0x1110000
WS_FC = 0x1120000
WS_PROF = 0x1300000
WS_SIZE = 0x1400000
PLANE = 16384
LOG2E = math.log2(math.e)
QSCALE = LOG2E / math.sqrt(20.0)
PROF = "--prof" in sys.argv
SPIN = 0x40000

WV, XCD, IDX, NONCE = 16, 17, 18, 19
P_U, P_LA, P_AI, P_CR, P_CI, P_DT, P_D, P_X, P_W, P_WO, P_OUT, P_DBG, P_WS = range(64, 90, 2)
PV = 255

RING = 32768
SCR = 3*RING
UST = 4640
KOFF = 4*UST
CHA = KOFF + 4224
PST = 2048 + 32
SLOT = 10*PST
ARING = 163840 - 3*SLOT - 1280
CONSTP = ARING + 3*SLOT + 192
QLDS = ARING
CNT = ARING + 3*SLOT
assert ARING >= 96*960 and ARING >= 4*CHA and CONSTP + 1024 <= 163840
assert SCR + 3*16384 + 8192 + 26*256 <= CNT and CNT + 192 <= SCR + 3*16384 + 8192 + 28*256
WS_OT = WS_O + 0x200000
M0 = "--m0" in sys.argv

def lds_signal(a, va, vone):
    a(f"s_mov_b64 exec, 1\nds_add_u32 v{va}, v{vone}\ns_mov_b64 exec, -1")
def lds_wait(a, va, vt, n=4):
    l = a.newlabel("L_lw")
    a.label(l)
    a(f"""ds_read_b32 v{vt}, v{va}
    s_waitcnt lgkmcnt(0)
    v_readfirstlane_b32 s22, v{vt}
    s_cmp_lt_u32 s22, {n}
    s_cbranch_scc1 {l}""")

def srd(a, d, lo, size):
    a(f"s_mov_b32 s{d}, s{lo}\ns_and_b32 s{d+1}, s{lo+1}, 0xffff\ns_mov_b32 s{d+2}, {size}\ns_mov_b32 s{d+3}, 0x20000")
def mfma32(a, d, x, y, c=None):
    a(f"v_mfma_f32_32x32x16_bf16 {v(d,16)}, {v(x,4)}, {v(y,4)}, {v(c,16) if c is not None else 0}")
def mfma32x8(a, d, x, y, c):
    a(f"v_mfma_f32_32x32x8_bf16 {v(d,16)}, {v(x,2)}, {v(y,2)}, {v(c,16)}")
def mfma16(a, d, x, y, c=None):
    a(f"v_mfma_f32_16x16x32_bf16 {v(d,4)}, {v(x,4)}, {v(y,4)}, {v(c,4) if c is not None else 0}")
def stamp(a, i, real=False):
    if PROF: a(f"s_mem{'real' if real else ''}time s[92:93]\ns_waitcnt lgkmcnt(0)\nv_writelane_b32 v{PV}, s92, {i}")

def get_nonce(a, vt):
    srd(a, 4, P_DBG, 256)
    l = a.newlabel("L_nonce"); e = a.newlabel("L_nonce_e")
    a(f"v_mov_b32 v{vt}, 0\ns_mov_b32 s50, 0")
    a.label(l)
    a(f"""buffer_load_dword v{vt+1}, v{vt}, s[4:7], 0 offen sc1
    s_add_u32 s50, s50, 1
    s_waitcnt vmcnt(0)
    v_readfirstlane_b32 s{NONCE}, v{vt+1}
    s_cmp_gt_u32 s50, {SPIN}
    s_cbranch_scc1 {e}
    s_cmp_eq_u32 s{NONCE}, 0
    s_cbranch_scc1 {l}""")
    a.label(e)

def poll(a, addrs, width, vt, preloaded=False):
    l = a.newlabel("L_poll"); e = a.newlabel("L_poll_e")
    sfx = {1: "dword", 4: "dwordx4"}[width]
    a("s_mov_b32 s50, 0")
    if preloaded: a(f"s_branch {l}_c")
    a.label(l)
    for k, ad in enumerate(addrs): a(f"buffer_load_{sfx} {v(vt+4*k,width)}, v{ad}, s[12:15], 0 offen sc1")
    a("s_add_u32 s50, s50, 1\ns_waitcnt vmcnt(0)")
    a.label(l + "_c")
    regs = [vt+4*k+j for k in range(len(addrs)) for j in range(width)]
    for r in regs: a(f"v_xor_b32 v{r}, s{NONCE}, v{r}")
    for r in regs[1:]: a(f"v_or_b32 v{regs[0]}, v{regs[0]}, v{r}")
    a(f"""v_cmp_ne_u32 vcc, 0, v{regs[0]}
    s_cmp_gt_u32 s50, {SPIN}
    s_cbranch_scc1 {e}
    s_cbranch_vccnz {l}""")
    a.label(e)

def set_flag(a, soff, vt):
    a(f"""v_mov_b32 v{vt}, 0
    v_mov_b32 v{vt+1}, s{NONCE}
    s_mov_b64 exec, 1
    buffer_store_dword v{vt+1}, v{vt}, s[12:15], s{soff} offen sc1
    s_mov_b64 exec, -1""")

def transpose_tile(a, ssrd, soff, sstride, dsrd, doff, dstride, ldsbase, vt=8, lsc="", ssc="", after_issue=""):
    A0, A1, A2, A3 = vt, vt+1, vt+2, vt+3
    D = vt + 4
    a(f"""v_lshrrev_b32 v{A0}, 3, v2
    v_and_b32 v{A1}, 7, v2
    v_lshlrev_b32 v{A1}, 4, v{A1}
    v_mul_u32_u24 v{A2}, {sstride}, v{A0}
    v_add_u32 v{A2}, v{A2}, v{A1}
    s_mov_b32 m0, s{ldsbase}
    s_mov_b32 s50, s{soff}""")
    for i in range(8):
        a(f"buffer_load_dwordx4 v{A2}, s[{ssrd}:{ssrd+3}], s50 offen {lsc} lds\ns_add_u32 m0, m0, 1024\ns_add_u32 s50, s50, {8*sstride}")
    a(after_issue)
    a(f"""v_mul_u32_u24 v{A3}, {dstride}, v{A0}
    v_add_u32 v{A3}, v{A3}, v{A1}
    v_mul_u32_u24 v{A0}, 144, v{A0}
    v_add3_u32 v{A0}, v{A0}, v{A1}, s{ldsbase}
    v_bfe_u32 v{A1}, v2, 2, 2
    v_lshlrev_b32 v{A1}, 7, v{A1}
    v_lshrrev_b32 v{A2}, 4, v2
    v_lshl_add_u32 v{A1}, v{A2}, 5, v{A1}
    v_and_b32 v{A2}, 3, v2
    v_lshl_add_u32 v{A1}, v{A2}, 3, v{A1}
    v_add_u32 v{A1}, s{ldsbase}, v{A1}
    v_mul_u32_u24 v{A2}, 144, v2
    v_add_u32 v{A2}, s{ldsbase}, v{A2}
    s_waitcnt vmcnt(0)""")
    for i in range(16): a(f"ds_read_b64_tr_b16 {v(D+2*i,2)}, v{A1} offset:{i*512}")
    a("s_waitcnt lgkmcnt(0)")
    for i in range(8): a(f"ds_write_b128 v{A2}, {v(D+4*i,4)} offset:{i*16}")
    a("s_waitcnt lgkmcnt(0)")
    for i in range(8): a(f"ds_read_b128 {v(D+4*i,4)}, v{A0} offset:{i*8*144}")
    a(f"s_mov_b32 s50, s{doff}")
    for i in range(8):
        a(f"s_waitcnt lgkmcnt({7-i})\nbuffer_store_dwordx4 {v(D+4*i,4)}, v{A3}, s[{dsrd}:{dsrd+3}], s50 offen {ssc}\ns_add_u32 s50, s50, {8*dstride}")

def gemm(a):
    TT, CT = 20, 21
    XS, WSO, LB, CI = 26, 27, 28, 29
    srd(a, 4, P_X, 2048*1280)
    srd(a, 8, P_W, 640*3840)
    a(f"""s_lshr_b32 s{TT}, s{XCD}, 1
    s_lshl_b32 s{TT}, s{TT}, 2
    s_and_b32 s22, s{IDX}, 3
    s_add_u32 s{TT}, s{TT}, s22
    s_and_b32 s{CT}, s{XCD}, 1
    s_lshl_b32 s{CT}, s{CT}, 3
    s_lshr_b32 s23, s{IDX}, 2
    s_add_u32 s{CT}, s{CT}, s23
    s_cmp_eq_u32 s{CT}, 15
    s_cbranch_scc1 L_g_skip""")
    a(f"""s_mul_i32 s22, s22, 5
    s_add_u32 s22, s22, 1
    s_lshr_b32 s22, s22, 1
    s_mul_i32 s23, s23, 3
    s_add_u32 s{CI}, s22, s23
    s_cmp_ge_u32 s{CI}, 20
    s_cselect_b32 s22, 20, 0
    s_sub_u32 s{CI}, s{CI}, s22
    s_cmp_ge_u32 s{CI}, 10
    s_cselect_b32 s22, 10, 0
    s_sub_u32 s{CI}, s{CI}, s22""")
    DX, DW = 8, 9
    a(f"""v_lshrrev_b32 v3, 3, v2
    v_and_b32 v4, 7, v2
    v_lshrrev_b32 v5, 1, v3
    s_and_b32 s22, s{WV}, 1
    s_lshl_b32 s22, s22, 2
    v_add_u32 v5, s22, v5
    v_xor_b32 v4, v4, v5
    v_lshlrev_b32 v4, 4, v4
    v_mul_u32_u24 v3, 2560, v3
    v_add_u32 v{DX}, v3, v4
    s_mul_i32 s{XS}, s{TT}, {128*1280}
    s_mul_i32 s22, s{WV}, {16*1280}
    s_add_u32 s{XS}, s{XS}, s22
    v_lshrrev_b32 v3, 4, v2
    v_bfe_u32 v4, v2, 2, 2
    v_xor_b32 v4, v4, v3
    v_lshlrev_b32 v4, 6, v4
    v_and_b32 v5, 3, v2
    v_lshlrev_b32 v5, 4, v5
    v_mul_u32_u24 v3, 3840, v3
    v_add3_u32 v{DW}, v3, v4, v5
    s_lshl_b32 s{WSO}, s{CT}, 8
    s_mul_i32 s22, s{WV}, {4*3840}
    s_add_u32 s{WSO}, s{WSO}, s22
    s_lshl_b32 s{LB}, s{WV}, 10""")
    def issue():
        a(f"""s_lshl_b32 s22, s{CI}, 7
        s_add_u32 s22, s22, s{XS}
        s_mul_i32 s23, s{CI}, {64*3840}
        s_add_u32 s23, s23, s{WSO}""")
        for i in range(4):
            a(f"s_add_u32 m0, s{LB}, {i*4096}\ns_add_u32 s24, s22, {(64*(i>>1) + (i&1))*1280}\nbuffer_load_dwordx4 v{DX}, s[4:7], s24 offen lds")
            a(f"s_add_u32 m0, s{LB}, {16384+i*4096}\ns_add_u32 s24, s23, {i*16*3840}\nbuffer_load_dwordx4 v{DW}, s[8:11], s24 offen lds")
        a(f"""s_add_u32 s{CI}, s{CI}, 1
        s_cmp_eq_u32 s{CI}, 10
        s_cselect_b32 s{CI}, 0, s{CI}
        s_add_u32 s{LB}, s{LB}, {RING}
        s_cmp_ge_u32 s{LB}, {3*RING}
        s_cselect_b32 s22, {3*RING}, 0
        s_sub_u32 s{LB}, s{LB}, s22""")
    a("s_mov_b32 s30, 0\ns_waitcnt lgkmcnt(0)\ns_barrier")
    a.label("L_g_pro")
    issue()
    a("s_add_u32 s30, s30, 1\ns_cmp_lt_u32 s30, 3\ns_cbranch_scc1 L_g_pro")
    XA = [10, 11, 12, 13]; WA = [14, 15]
    FX = [[16, 20], [32, 36]]; FW = [[24, 28], [40, 44]]
    ACC = 48; CA, ONE, CV = 112, 113, 114
    a(f"""s_and_b32 s34, s{WV}, 1
    s_lshr_b32 s35, s{WV}, 1
    v_and_b32 v3, 31, v2
    v_lshrrev_b32 v4, 5, v2
    v_bfe_u32 v5, v3, 1, 3
    v_xor_b32 v5, v5, v4
    v_lshlrev_b32 v5, 4, v5
    v_lshlrev_b32 v6, 7, v3
    s_lshl_b32 s22, s34, 13
    v_add3_u32 v{XA[0]}, v5, v6, s22
    v_xor_b32 v{XA[1]}, 32, v{XA[0]}
    v_xor_b32 v{XA[2]}, 64, v{XA[0]}
    v_xor_b32 v{XA[3]}, 96, v{XA[0]}
    v_bfe_u32 v5, v2, 2, 2
    s_lshl_b32 s22, s35, 1
    v_xor_b32 v6, s22, v5
    v_lshlrev_b32 v6, 6, v6
    v_lshlrev_b32 v7, 3, v4
    v_add_u32 v7, v7, v5
    v_lshlrev_b32 v7, 8, v7
    v_bfe_u32 v5, v2, 4, 1
    v_lshlrev_b32 v5, 5, v5
    v_add3_u32 v6, v6, v7, v5
    v_and_b32 v5, 3, v2
    v_lshl_add_u32 v6, v5, 3, v6
    v_add_u32 v{WA[0]}, 16384, v6
    v_xor_b32 v{WA[1]}, 64, v{WA[0]}
    v_mov_b32 v{CA}, {CNT}
    v_mov_b32 v{ONE}, 1""")
    for i in range(64): a(f"v_mov_b32 v{ACC+i}, 0")
    def reads(ks, buf):
        for t in range(2): a(f"ds_read_b128 {v(FX[buf][t],4)}, v{XA[ks]} offset:{t*4096}")
        for m in range(2):
            for rd in range(2): a(f"ds_read_b64_tr_b16 {v(FW[buf][m]+2*rd,2)}, v{WA[m]} offset:{(16*ks+4*rd)*256}")
    def mm(buf):
        for m in range(2):
            for t in range(2): mfma32(a, ACC+(m*2+t)*16, FW[buf][m], FX[buf][t], ACC+(m*2+t)*16)
    def signal():
        a(f"s_mov_b64 exec, 1\nds_add_u32 v{CA}, v{ONE}\ns_mov_b64 exec, -1")
    def waitcnt4():
        l = a.newlabel("L_g_w")
        a.label(l)
        a(f"""ds_read_b32 v{CV}, v{CA}
        s_waitcnt lgkmcnt(0)
        v_readfirstlane_b32 s22, v{CV}
        s_cmp_lt_u32 s22, 4
        s_cbranch_scc1 {l}
        v_add_u32 v{CA}, 4, v{CA}""")
    a("s_mov_b32 s30, 0\ns_mov_b32 s31, 0\ns_waitcnt vmcnt(16)")
    signal(); waitcnt4()
    stamp(a, 2)
    reads(0, 0)
    a.label("L_g_mm")
    for ks in range(3):
        reads(ks+1, (ks+1) & 1)
        a("s_waitcnt lgkmcnt(6)")
        mm(ks & 1)
    a(f"""s_add_u32 s30, s30, 1
    s_add_u32 s32, s31, {RING}
    s_cmp_eq_u32 s32, {3*RING}
    s_cselect_b32 s32, 0, s32
    s_sub_u32 s33, s32, s31
    s_mov_b32 s31, s32
    s_cmp_eq_u32 s30, 10
    s_cbranch_scc1 L_g_last
    s_cmp_eq_u32 s30, 9
    s_cbranch_scc1 L_g_w0
    s_waitcnt vmcnt(8) lgkmcnt(0)
    s_branch L_g_w1""")
    a.label("L_g_w0")
    a("s_waitcnt vmcnt(0) lgkmcnt(0)")
    a.label("L_g_w1")
    signal()
    for r in XA + WA: a(f"v_add_u32 v{r}, s33, v{r}")
    mm(1)
    waitcnt4()
    reads(0, 0)
    a("s_cmp_ge_u32 s30, 8\ns_cbranch_scc1 L_g_mm")
    issue()
    a("s_branch L_g_mm")
    a.label("L_g_last")
    a("s_waitcnt lgkmcnt(0)")
    signal()
    mm(1)
    stamp(a, 3)
    a(f"""s_cmp_lt_u32 s{CT}, 5
    s_cselect_b32 s33, {f32hex(QSCALE)}, 1.0
    v_lshlrev_b32 v5, 14, v4
    v_lshl_add_u32 v5, v3, 4, v5
    s_lshl_b32 s22, s{CT}, 5
    s_lshl_b32 s23, s35, 4
    s_add_u32 s22, s22, s23
    s_lshl_b32 s22, s22, 14
    s_lshl_b32 s23, s{TT}, 10
    s_add_u32 s22, s22, s23
    s_lshl_b32 s23, s34, 9
    s_add_u32 s22, s22, s23
    s_nop 2""")
    k = 0
    for m in range(2):
        for g in range(4):
            d = 16 + 4*k; k += 1
            for t in range(2):
                r = ACC + (m*2+t)*16 + 4*g
                for i in range(4): a(f"v_mul_f32 v{r+i}, s33, v{r+i}")
                a(f"v_cvt_pk_bf16_f32 v{d+2*t}, v{r}, v{r+1}\nv_cvt_pk_bf16_f32 v{d+2*t+1}, v{r+2}, v{r+3}")
            a(f"s_add_u32 s23, s22, {WS_QKV + (m*8+2*g)*PLANE}")
            a(f"buffer_store_dwordx4 {v(d,4)}, v5, s[12:15], s23 offen sc1")
    a("s_branch L_g_done")
    a.label("L_g_skip")
    a("s_waitcnt lgkmcnt(0)\ns_barrier")
    a.label("L_g_done")

def cmul(a, d, x, z, t):
    a(f"v_pk_mul_f32 {v(t,2)}, {v(x,2)}, {v(z,2)} op_sel:[0,0] op_sel_hi:[1,0]")
    a(f"v_pk_fma_f32 {v(d,2)}, {v(x,2)}, {v(z,2)}, {v(t,2)} op_sel:[1,1,0] op_sel_hi:[0,1,1] neg_lo:[0,1,0]")
KACC = 96
def kgen(a, scr):
    DT, ER, TH = 16, 17, 18
    Z1, Z8, ZW = 20, 22, 24
    X0 = 26
    Y = 44; T = 46; T2 = 48; PK = 50; PK2 = 52
    RA = 54; FA = 56; FB = 64; WA = 72
    ACC = KACC
    a(f"""v_lshlrev_b32 v{DT}, 16, v14
    v_mul_f32 v{DT}, {f32hex(LOG2E)}, v{DT}
    v_exp_f32 v{DT}, v{DT}
    v_lshlrev_b32 v{WA}, 2, v2
    v_add_u32 v{WA}, s{scr}, v{WA}
    v_cvt_pk_bf16_f32 v{DT}, v{DT}, v{DT}
    v_and_b32 v{DT}, 0xffff0000, v{DT}
    v_and_b32 v{RA}, 31, v2
    v_lshrrev_b32 v{T}, 5, v2
    v_and_b32 v{T+1}, 15, v2
    v_xor_b32 v{T}, v{T}, v{T+1}
    v_lshlrev_b32 v{T}, 4, v{T}
    v_lshl_add_u32 v{RA}, v{RA}, 8, v{T}
    v_add_u32 v{RA}, s{scr}, v{RA}""")
    for i in range(1, 16): a(f"v_xor_b32 v{WA+i}, {16*i}, v{WA}")
    for i in range(16): a(f"v_mov_b32 v{ACC+i}, 0")
    a("s_mov_b32 s53, 0")
    lp = a.newlabel("L_kg")
    a.label(lp)
    a(f"""v_and_b32 v{ER}, 0xffff0000, v10
    v_mul_f32 v{ER}, {f32hex(LOG2E)}, v{ER}
    v_exp_f32 v{ER}, v{ER}
    v_and_b32 v{TH}, 0xffff0000, v11
    v_and_b32 v{X0}, 0xffff0000, v12
    v_cvt_pk_bf16_f32 v{ER}, v{ER}, v{ER}
    v_and_b32 v{X0+1}, 0xffff0000, v13
    v_and_b32 v{ER}, 0xffff0000, v{ER}
    v_mul_f32 v{ER}, v{ER}, v{DT}
    v_mul_f32 v{TH}, v{TH}, v{DT}
    v_mul_f32 v{ER}, {f32hex(-LOG2E)}, v{ER}
    v_mul_f32 v{TH}, 0.15915494, v{TH}
    v_mul_f32 v{X0}, v{X0}, v{DT}
    v_mul_f32 v{X0+1}, v{X0+1}, v{DT}
    v_add_f32 v{X0}, v{X0}, v{X0}
    v_add_f32 v{X0+1}, v{X0+1}, v{X0+1}
    v_lshlrev_b32 v10, 16, v10
    v_lshlrev_b32 v11, 16, v11
    v_lshlrev_b32 v12, 16, v12
    v_lshlrev_b32 v13, 16, v13""")
    for (z, p) in ((Z8, 8.0), (Z1, 1.0), (ZW, 256.0)):
        a(f"""v_mul_f32 v{T}, {f32hex(p)}, v{ER}
        v_mul_f32 v{T+1}, {f32hex(p)}, v{TH}
        v_exp_f32 v{T}, v{T}
        v_fract_f32 v{T+1}, v{T+1}
        v_cos_f32 v{z}, v{T+1}
        v_sin_f32 v{z+1}, v{T+1}
        s_nop 0
        v_mul_f32 v{z}, v{z}, v{T}
        v_mul_f32 v{z+1}, v{z+1}, v{T}""")
    def row(h, reg): return 8*(reg >> 2) + 4*h + (reg & 3)
    rows = {}
    for p in range(4): rows.setdefault(p, []).append(row(0, p)); rows.setdefault(p+4, []).append(row(1, p))
    for i, (p0, p1) in enumerate(((256, 260), (258, 262), (260, 264), (512, 768), (516, 772), (520, 776), (1024, 1536), (1032, 1544), (1280, 1792), (1288, 1800))):
        rows.setdefault(p0, []).append(row(0, 4+i)); rows.setdefault(p1, []).append(row(1, 4+i))
    def cm(d, x, z, t):
        return [f"v_pk_mul_f32 {v(t,2)}, {v(x,2)}, {v(z,2)} op_sel:[0,0] op_sel_hi:[1,0]",
                f"v_pk_fma_f32 {v(d,2)}, {v(x,2)}, {v(z,2)}, {v(t,2)} op_sel:[1,1,0] op_sel_hi:[0,1,1] neg_lo:[0,1,0]"]
    cnt = [0, 0]
    def putx(p, r):
        pk = PK + (cnt[0] & 1); cnt[0] += 1
        return [f"v_cvt_pk_bf16_f32 v{pk}, v{r}, -v{r+1}"] + [f"ds_write_b32 v{WA+(rw&15)}, v{pk} offset:{(32+rw)*256}" for rw in rows[p]]
    def puty(j, r):
        pk = PK2 + (cnt[1] & 1); cnt[1] += 1
        return [f"v_cvt_pk_bf16_f32 v{pk}, v{r}, v{r+1}", f"ds_write_b32 v{WA+(j&15)}, v{pk} offset:{j*256}"]
    xs = putx(0, X0)
    for p in range(1, 8): xs += cm(X0+2*p, X0+2*p-2, Z1, T) + putx(p, X0+2*p)
    xs += cm(X0+16, X0, Z8, T)
    for (b, n) in ((0, 7), (8, 7), (2, 1), (4, 3), (6, 1)):
        for m in range(1, n+1): xs += cm(X0+2*b, X0+2*b, ZW, T) + putx(b+256*m, X0+2*b)
    ys = [f"v_mov_b32 v{PK2+1}, 0x3f80", f"ds_write_b32 v{WA}, v{PK2+1}"] + puty(1, Z8) + cm(Y, Z8, Z8, T2) + puty(2, Y)
    for j in range(3, 32): ys += cm(Y, Y, Z8, T2) + puty(j, Y)
    for i in range(max(len(xs), len(ys))):
        if i < len(ys): a(ys[i])
        if i < len(xs): a(xs[i])
    a("s_waitcnt lgkmcnt(0)")
    def fr(ks, b):
        a(f"v_xor_b32 v{RA+1}, {32*ks}, v{RA}\nds_read_b128 {v(FA+4*b,4)}, v{RA+1} offset:{32*256}\nds_read_b128 {v(FB+4*b,4)}, v{RA+1}")
    fr(0, 0)
    for ks in range(8):
        if ks < 7: fr(ks+1, (ks+1) & 1); a("s_waitcnt lgkmcnt(2)")
        else: a("s_waitcnt lgkmcnt(0)")
        mfma32(a, ACC, FA+4*(ks&1), FB+4*(ks&1), ACC)
    a(f"s_add_u32 s53, s53, 1\ns_cmp_lt_u32 s53, 2\ns_cbranch_scc1 {lp}")

def kexpand(a, kdst):
    J, H, AD = 10, 11, 12
    a(f"""v_and_b32 v{J}, 31, v2
    v_lshrrev_b32 v{H}, 5, v2
    v_lshlrev_b32 v{AD}, 4, v{J}
    v_sub_u32 v{AD}, s{kdst}, v{AD}
    v_lshlrev_b32 v13, 3, v{H}
    v_sub_u32 v13, v{AD}, v13
    v_lshlrev_b32 v14, 9, v{H}
    v_sub_u32 v14, v{AD}, v14
    v_lshlrev_b32 v15, 10, v{H}
    v_sub_u32 v15, v{AD}, v15
    v_and_b32 v{H}, 1, v{J}
    v_cmp_eq_u32 vcc, 0, v{H}""")
    R = KACC; P0 = 20
    cv = lambda d, lo, hi: a(f"v_cvt_pk_bf16_f32 v{d}, v{lo}, v{hi}")
    cv(P0, R+3, R+2); cv(P0+1, R+1, R+0)
    a(f"ds_write_b64 v13, {v(P0,2)} offset:{4080+8}")
    cv(P0+2, R+6, R+5); cv(P0+3, R+4, R+4)
    a(f"ds_write_b64 v13, {v(P0+2,2)} offset:{4080-512+8}")
    cv(P0+4, R+9, R+9); cv(P0+5, R+8, R+8); cv(P0+6, R+8, R+7); cv(P0+7, R+7, R+7)
    a(f"ds_write_b128 v14, {v(P0+4,4)} offset:{4080-1024}")
    for sidx in range(2):
        ra, rb = R+10+2*sidx, R+11+2*sidx
        d = P0 + 8 + 4*sidx
        a(f"v_cndmask_b32 v{P0+16}, v{rb}, v{ra}, vcc")
        cv(d, rb, rb); cv(d+1, rb, P0+16); cv(d+2, ra, ra); cv(d+3, ra, ra)
        a(f"ds_write_b128 v15, {v(d,4)} offset:{4080-2048-512*sidx}")
    a(f"""v_lshlrev_b32 v{J}, 2, v{J}
    v_add_u32 v{J}, s{kdst}, v{J}
    v_mov_b32 v{H}, 0
    ds_write_b32 v{J}, v{H} offset:4096""")

def conv(a, cbase, dsk, ydst):
    AA, BA = 10, 11
    FA = [16, 80]; FB = [48, 112]; ACC = 144
    a(f"""v_and_b32 v3, 3, v2
    v_mul_u32_u24 v{AA}, {UST}, v3
    v_bfe_u32 v3, v2, 2, 2
    v_lshl_add_u32 v{AA}, v3, 7, v{AA}
    v_lshrrev_b32 v4, 4, v2
    v_lshl_add_u32 v{AA}, v4, 4, v{AA}
    v_add_u32 v{AA}, s{cbase}, v{AA}
    v_and_b32 v3, 15, v2
    v_lshlrev_b32 v3, 3, v3
    v_lshlrev_b32 v{BA}, 4, v4
    v_sub_u32 v{BA}, v{BA}, v3
    v_add_u32 v{BA}, {KOFF+120}, v{BA}
    v_add_u32 v{BA}, s{cbase}, v{BA}""")
    for i in range(32): a(f"v_mov_b32 v{ACC+i}, 0")
    def loads(b, extra):
        out = []
        for k in range(8):
            out += [f"ds_read_b64 {v(FB[b]+4*k,2)}, v{BA} offset:{512*(7-k)+extra}", f"ds_read_b64 {v(FB[b]+4*k+2,2)}, v{BA} offset:{512*(7-k)+8+extra}",
                    f"ds_read_b128 {v(FA[b]+4*k,4)}, v{AA} offset:{512*k+extra}"]
        return out
    a("s_waitcnt lgkmcnt(0)")
    a("\n".join(loads(0, 0)))
    a("s_mov_b32 s53, 0")
    lp = a.newlabel("L_cv")
    a.label(lp)
    pairs = sorted([(i, j) for i in range(8) for j in range(8) if i + j < 8], key=lambda p: (max(p), p))
    for b in range(2):
        ld = loads(b ^ 1, 64*(b+1))
        a("s_waitcnt lgkmcnt(0)")
        for n, (i, j) in enumerate(pairs):
            mfma16(a, ACC+4*(i+j), FA[b]+4*i, FB[b]+4*j, ACC+4*(i+j))
            if n < 24: a(ld[n])
    a(f"v_add_u32 v{AA}, 128, v{AA}\nv_add_u32 v{BA}, 128, v{BA}")
    a(f"s_add_u32 s53, s53, 1\ns_cmp_lt_u32 s53, 4\ns_cbranch_scc1 {lp}")
    a(f"""v_lshlrev_b32 v3, 3, v2
    v_add_u32 v4, s{cbase}, v3
    s_waitcnt lgkmcnt(0)""")
    U = FA[0]; t = FB[0]
    for b in range(8): a(f"ds_read_b64 {v(U+2*b,2)}, v4 offset:{3*UST + 384 + 512*b}")
    a("s_waitcnt lgkmcnt(0)")
    for b in range(8):
        ac = ACC + 4*b; u = U + 2*b
        a(f"""v_cvt_pk_bf16_f32 v{ac}, v{ac}, v{ac+1}
        v_cvt_pk_bf16_f32 v{ac+2}, v{ac+2}, v{ac+3}
        v_lshlrev_b32 v{t}, 16, v{u}
        v_and_b32 v{t+1}, 0xffff0000, v{u}
        v_lshlrev_b32 v{t+2}, 16, v{u+1}
        v_and_b32 v{t+3}, 0xffff0000, v{u+1}""")
        for i in range(4): a(f"v_mul_f32 v{t+i}, v{t+i}, v{dsk}")
        a(f"""v_cvt_pk_bf16_f32 v{t}, v{t}, v{t+1}
        v_cvt_pk_bf16_f32 v{t+2}, v{t+2}, v{t+3}
        v_and_b32 v{ac+1}, 0xffff0000, v{ac}
        v_lshlrev_b32 v{ac}, 16, v{ac}
        v_and_b32 v{ac+3}, 0xffff0000, v{ac+2}
        v_lshlrev_b32 v{ac+2}, 16, v{ac+2}
        v_and_b32 v{t+1}, 0xffff0000, v{t}
        v_lshlrev_b32 v{t}, 16, v{t}
        v_and_b32 v{t+3}, 0xffff0000, v{t+2}
        v_lshlrev_b32 v{t+2}, 16, v{t+2}""")
        for i in range(4): a(f"v_add_f32 v{ac+i}, v{ac+i}, v{t+i}")
        a(f"""v_cvt_pk_bf16_f32 v{ac}, v{ac}, v{ac+1}
        v_cvt_pk_bf16_f32 v{ac+1}, v{ac+2}, v{ac+3}
        buffer_store_dwordx2 {v(ac,2)}, v3, s[12:15], s{ydst} offen offset:{512*b} sc1""")

FCOFF = 36
def helper(a):
    HW, CHN, CB = 20, 21, 26
    a(f"""s_sub_u32 s{HW}, s{WV}, 4
    s_mov_b32 s{FCOFF}, 0
    s_or_b32 s22, s2, s{HW}
    s_cmp_lg_u32 s22, 0
    s_cbranch_scc1 L_h_nn""")
    srd(a, 4, P_DBG, 256)
    a(f"""s_memrealtime s[22:23]
    v_mov_b32 v3, 0
    s_waitcnt lgkmcnt(0)
    s_or_b32 s22, s22, 1
    v_mov_b32 v4, s22
    s_mov_b64 exec, 1
    buffer_store_dword v4, v3, s[4:7], 0 offen sc1
    s_mov_b64 exec, -1""")
    a.label("L_h_nn")
    a(f"""s_lshl_b32 s28, s{HW}, 14
    s_add_u32 s28, s28, {SCR}
    v_mov_b32 v6, {CNT + 44}
    v_mov_b32 v7, 1
    s_cmp_lt_u32 s{IDX}, 20
    s_cbranch_scc1 L_h_kg
    s_cmp_lt_u32 s{IDX}, 30
    s_cbranch_scc1 L_h_tr
    s_barrier""")
    lds_signal(a, 6, 7)
    get_nonce(a, 4)
    a("s_branch L_h_done")
    a.label("L_h_tr")
    a(f"""s_mul_i32 s22, s{XCD}, 10
    s_add_u32 s22, s22, s{IDX}
    s_sub_u32 s22, s22, 20
    s_lshl_b32 s22, s22, 2
    s_add_u32 s22, s22, s{HW}
    s_lshr_b32 s23, s22, 5
    s_and_b32 s24, s22, 31
    s_lshl_b32 s29, s22, 7
    s_add_u32 s29, s29, {WS_FA}
    s_mul_i32 s26, s24, {64*1280}
    s_lshl_b32 s27, s23, 7
    s_add_u32 s26, s26, s27
    s_lshl_b32 s27, s23, 18
    s_lshl_b32 s24, s24, 7
    s_add_u32 s27, s27, s24
    s_add_u32 s27, s27, {WS_UT}""")
    srd(a, 8, P_U, 2048*1280)
    transpose_tile(a, 8, 26, 1280, 12, 27, 4096, 28, ssc="sc1", after_issue="s_barrier")
    lds_signal(a, 6, 7)
    stamp(a, 2)
    get_nonce(a, 4)
    set_flag(a, 29, 4)
    stamp(a, 3)
    a("s_branch L_h_done")
    a.label("L_h_kg")
    a(f"""s_mul_i32 s{CHN}, s{XCD}, 20
    s_add_u32 s{CHN}, s{CHN}, s{IDX}
    s_lshl_b32 s{FCOFF}, s{CHN}, 7
    s_lshl_b32 s22, s{HW}, 2
    s_add_u32 s{FCOFF}, s{FCOFF}, s22
    s_add_u32 s{FCOFF}, s{FCOFF}, {WS_FC}
    s_lshl_b32 s{CHN}, s{CHN}, 2
    s_add_u32 s{CHN}, s{CHN}, s{HW}
    s_lshl_b32 s22, s{CHN}, 8
    v_lshl_add_u32 v4, v2, 2, s22
    s_lshl_b32 s22, s{CHN}, 1
    v_mov_b32 v3, s22""")
    for i in range(4):
        srd(a, 4, P_LA+2*i, 640*256)
        a(f"buffer_load_dword v{10+i}, v4, s[4:7], 0 offen")
    srd(a, 4, P_DT, 1280)
    a("buffer_load_ushort v14, v3, s[4:7], 0 offen")
    srd(a, 4, P_D, 1280)
    a("buffer_load_ushort v9, v3, s[4:7], 0 offen\ns_barrier\ns_waitcnt vmcnt(0)")
    stamp(a, 2)
    kgen(a, 28)
    stamp(a, 3)
    get_nonce(a, 4)
    a(f"""s_lshr_b32 s22, s{CHN}, 6
    s_lshl_b32 s22, s22, 12
    s_add_u32 s22, s22, {WS_FA}
    v_and_b32 v4, 31, v2
    v_lshl_add_u32 v4, v4, 7, s22""")
    lds_signal(a, 6, 7)
    poll(a, [4], 1, 5)
    stamp(a, 4)
    UE, UP, UO = 40, 56, 60
    a(f"""s_mul_i32 s{CB}, s{HW}, {CHA}
    v_lshlrev_b32 v4, 4, v2
    s_lshl_b32 s27, s{CHN}, 12
    s_add_u32 s27, s27, {WS_UT}
    s_sub_u32 s28, s27, 4""")
    for i in range(4):
        a(f"buffer_load_dwordx4 {v(UE+4*i,4)}, v4, s[12:15], s27 offen offset:{1024*i} sc1")
        a(f"buffer_load_dword v{UP+i}, v4, s[12:15], s28 offen offset:{1024*i} sc1")
    a(f"""v_lshlrev_b32 v5, 3, v2
    v_min_u32 v5, 384, v5
    v_add_u32 v5, s{CB}, v5
    v_add_u32 v4, s{CB}, v4
    v_add_u32 v8, {UST + 388}, v4
    v_add_u32 v3, 388, v4
    v_mov_b32 v6, {CNT + 40}
    v_lshlrev_b32 v9, 16, v9
    s_lshl_b32 s27, s{CHN}, 12
    s_add_u32 s27, s27, {WS_YT}
    s_add_u32 s29, s{CB}, {KOFF}
    s_waitcnt vmcnt(0)
    v_writelane_b32 v{UP}, 0, 0""")
    for i in range(4):
        a(f"v_alignbit_b32 v{UO+4*i}, v{UE+4*i}, v{UP+i}, 16")
        for j in range(1, 4): a(f"v_alignbit_b32 v{UO+4*i+j}, v{UE+4*i+j}, v{UE+4*i+j-1}, 16")
    stamp(a, 5)
    lds_wait(a, 6, 7)
    stamp(a, 8)
    a("v_mov_b32 v6, 0\nv_mov_b32 v7, 0")
    for r in range(4): a(f"ds_write_b64 v5, v[6:7] offset:{r*UST}")
    for i in range(4):
        a(f"ds_write_b128 v4, {v(UE+4*i,4)} offset:{3*UST + 384 + 1024*i}")
        a(f"ds_write_b128 v4, {v(UO+4*i,4)} offset:{2*UST + 384 + 1024*i}")
        for j in range(2):
            a(f"ds_write2_b32 v8, v{UE+4*i+2*j}, v{UE+4*i+2*j+1} offset0:{2*j} offset1:{2*j+1}")
            a(f"ds_write2_b32 v3, v{UO+4*i+2*j}, v{UO+4*i+2*j+1} offset0:{2*j} offset1:{2*j+1}")
        if i < 3: a("v_add_u32 v8, 1024, v8\nv_add_u32 v3, 1024, v3")
    kexpand(a, 29)
    stamp(a, 6)
    conv(a, CB, 9, 27)
    stamp(a, 7)
    a.label("L_h_done")

HEAD5, QB, OOFF = 37, 38, 39
OOCT, OTAIL = 54, 55
KS = [40, 41, 42]; KL = [44, 45, 46]
MODE = 47
DMV = 14
def attn_ids(a):
    a(f"""s_lshl_b32 s{HEAD5}, s{XCD}, 2
    s_lshr_b32 s22, s{IDX}, 3
    s_add_u32 s{HEAD5}, s{HEAD5}, s22
    s_and_b32 s{QB}, s{IDX}, 7
    s_lshl_b32 s{OOCT}, s{HEAD5}, 16
    s_lshl_b32 s22, s{QB}, 12
    s_add_u32 s{OOCT}, s{OOCT}, s22
    s_add_u32 s{OOCT}, s{OOCT}, {WS_O}
    s_lshl_b32 s{OTAIL}, s{HEAD5}, 14
    s_lshl_b32 s22, s{QB}, 11
    s_add_u32 s{OTAIL}, s{OTAIL}, s22
    s_add_u32 s{OTAIL}, s{OTAIL}, {WS_OT}
    s_mul_i32 s{HEAD5}, s{HEAD5}, 5
    s_lshl_b32 s{OOFF}, s{HEAD5}, 14
    s_lshl_b32 s22, s{QB}, 11
    s_add_u32 s{OOFF}, s{OOFF}, s22""")

def unit_src(a, unit, src, lds):
    a(f"""s_lshr_b32 s22, s{unit}, 1
    s_and_b32 s23, s{unit}, 1
    s_mul_i32 s{lds}, s22, {PST}
    s_lshl_b32 s24, s23, 10
    s_add_u32 s{lds}, s{lds}, s24
    s_add_u32 s{lds}, s{lds}, {ARING}
    s_cmp_ge_u32 s22, 5
    s_cselect_b32 s24, 155, 0
    s_add_u32 s22, s22, s24
    s_add_u32 s22, s22, 160
    s_add_u32 s22, s22, s{HEAD5}
    s_lshl_b32 s22, s22, 14
    s_lshl_b32 s23, s23, 13
    s_add_u32 s{src}, s22, s23""")

def window1_main(a):
    attn_ids(a)
    a(f"""v_lshlrev_b32 v{DMV}, 4, v2
    v_lshlrev_b32 v3, 3, v2
    v_mov_b32 v4, -1
    v_mov_b32 v5, -1
    v_mov_b32 v6, -1
    v_mov_b32 v7, -1
    s_lshl_b32 s22, s{WV}, 10
    s_add_u32 s22, s22, s{OOCT}
    s_add_u32 s23, s22, 32768
    s_lshl_b32 s24, s{WV}, 9
    s_add_u32 s24, s24, s{OTAIL}
    buffer_store_dwordx4 v[4:7], v{DMV}, s[12:15], s22 offen sc1
    buffer_store_dwordx4 v[4:7], v{DMV}, s[12:15], s23 offen sc1
    buffer_store_dwordx2 v[4:5], v3, s[12:15], s24 offen sc1
    s_nop 0""")
    stamp(a, 4)
    get_nonce(a, 6)
    stamp(a, 5)
    a(f"""s_lshl_b32 s22, s20, 4
    s_add_u32 s22, s22, s21
    s_lshl_b32 s22, s22, 7
    s_lshl_b32 s23, s{WV}, 2
    s_add_u32 s22, s22, s23
    s_add_u32 s26, s22, {WS_FB}""")
    set_flag(a, 26, 6)
    a(f"""v_and_b32 v3, 15, v2
    v_lshrrev_b32 v4, 5, v2
    v_mul_u32_u24 v4, 160, v4
    v_bfe_u32 v5, v2, 4, 1
    v_lshl_add_u32 v4, v5, 2, v4
    s_add_u32 s22, s{HEAD5}, 160
    v_add_u32 v4, s22, v4
    v_lshrrev_b32 v4, 5, v4
    v_lshl_add_u32 v4, v3, 4, v4
    v_lshlrev_b32 v4, 7, v4
    v_add_u32 v8, {WS_FB}, v4""")
    a(f"""v_bfe_u32 v3, v2, 1, 2
    v_lshlrev_b32 v3, 2, v3
    s_and_b32 s22, s{XCD}, 3
    v_add_u32 v3, s22, v3
    v_and_b32 v4, 1, v2
    v_lshlrev_b32 v5, 3, v4
    v_bfe_u32 v6, v2, 3, 2
    v_lshl_add_u32 v5, v6, 1, v5
    s_lshr_b32 s22, s{XCD}, 2
    v_add_u32 v5, s22, v5
    v_lshl_add_u32 v3, v3, 4, v5
    s_lshl_b32 s22, s{QB}, 1
    v_add_u32 v4, s22, v4
    v_bfe_u32 v5, v2, 1, 1
    v_lshlrev_b32 v5, 2, v5
    v_add_u32 v5, s{HEAD5}, v5
    v_lshrrev_b32 v5, 5, v5
    v_lshl_add_u32 v4, v4, 4, v5
    v_cmp_gt_u32 vcc, 32, v2
    v_mov_b32 v6, {CNT + 44}
    s_nop 0
    v_cndmask_b32 v3, v4, v3, vcc
    v_lshlrev_b32 v3, 7, v3
    v_add_u32 v9, {WS_FB}, v3""")
    lds_wait(a, 6, 7)
    poll(a, [8, 9], 4, 16)
    stamp(a, 6)
    a(f"s_mov_b32 s30, s{WV}")
    a.label("L_w1_q")
    a(f"""s_lshr_b32 s22, s30, 1
    s_and_b32 s23, s30, 1
    s_lshl_b32 s22, s22, 14
    s_lshl_b32 s23, s23, 10
    s_add_u32 s22, s22, s23
    s_add_u32 s22, s22, s{OOFF}
    s_lshl_b32 s23, s30, 10
    s_add_u32 m0, s23, {QLDS}
    s_add_u32 s30, s30, 4
    buffer_load_dwordx4 v{DMV}, s[12:15], s22 offen sc1 lds
    s_cmp_lt_u32 s30, 10
    s_cbranch_scc1 L_w1_q""")

def first_chunks(a, nwaves, lab):
    a(f"s_mov_b32 s30, s{WV}")
    a.label(lab)
    unit_src(a, 30, 26, 27)
    a(f"""s_add_u32 m0, s27, {SLOT}
    s_add_u32 s30, s30, {nwaves}
    buffer_load_dwordx4 v{DMV}, s[12:15], s26 offen sc1 lds
    s_add_u32 m0, s27, {2*SLOT}
    s_add_u32 s26, s26, 1024
    buffer_load_dwordx4 v{DMV}, s[12:15], s26 offen sc1 lds
    s_cmp_lt_u32 s30, 20
    s_cbranch_scc1 {lab}""")

Q0 = [16, 22]; Q1 = [20, 26]
KF = [28, 34]; VF = [40, 48]; P = [56, 64]; S = [72, 88]; O = [104, 120]
KA, K4, VA, MSK, MS4, WOV = 8, 9, 10, 11, 12, 13
def set_m(a, q, M):
    a(f"""v_sub_f32 v{M}, 0, v{M}
    v_and_b32 v{M+1}, 0xffff0000, v{M}
    v_sub_f32 v{M+2}, v{M}, v{M+1}
    v_and_b32 v{M+3}, 0xffff0000, v{M+2}
    v_sub_f32 v{M+2}, v{M+2}, v{M+3}
    v_lshrrev_b32 v{M+1}, 16, v{M+1}
    v_or_b32 v{M+1}, v{M+1}, v{M+3}
    v_lshrrev_b32 v{M+2}, 16, v{M+2}
    v_cndmask_b32 v{Q1[q]}, v{M+1}, v{Q1[q]}, vcc
    v_cndmask_b32 v{Q1[q]+1}, v{M+2}, v{Q1[q]+1}, vcc""")
def tilemax(a, M, s, first):
    if first: a(f"v_max3_f32 v{M}, v{s}, v{s+1}, v{s+2}")
    else: a(f"v_max3_f32 v{M}, v{M}, v{s}, v{s+1}\nv_max_f32 v{M}, v{M}, v{s+2}")
    for i in range(3, 15, 2): a(f"v_max3_f32 v{M}, v{M}, v{s+i}, v{s+i+1}")
    a(f"v_max_f32 v{M}, v{M}, v{s+15}")
def halfmax(a, M):
    a(f"v_mov_b32 v{M+1}, v{M}\ns_nop 1\nv_permlane32_swap_b32 v{M}, v{M+1}\nv_max_f32 v{M}, v{M}, v{M+1}")

EXC = 107520
YSRC = EXC + 24576
def attention(a):
    J = "\n".join
    KH = 48
    srd(a, 8, P_WO, 640*1280)
    def restart_setup():
        for j in range(3):
            a(f"s_add_u32 s30, s{WV}, {8*j}")
            unit_src(a, 30, KS[j], KL[j])
            a(f"s_add_u32 s{KS[j]}, s{KS[j]}, 2048")
        a(f"""v_mul_u32_u24 v{KA}, {2*PST}, v1
        v_add_u32 v{KA}, v{KA}, v15
        v_add_u32 v{KA}, {ARING + SLOT}, v{KA}
        v_mul_u32_u24 v{K4}, {CONSTP - ARING - SLOT - 4*PST}, v1
        v_add_u32 v{K4}, v{K4}, v15
        v_add_u32 v{K4}, {ARING + SLOT + 4*PST}, v{K4}
        v_xor_b32 v{MS4}, 1, v1
        v_and_b32 v4, 3, v2
        v_bfe_u32 v5, v2, 4, 1
        v_lshl_add_u32 v4, v5, 2, v4
        v_cmp_gt_u32 vcc, 5, v4
        v_mul_u32_u24 v4, {PST}, v4
        v_add_u32 v4, {ARING + SLOT + 5*PST}, v4
        v_mov_b32 v5, {CONSTP}
        v_cndmask_b32 v{VA}, v5, v4, vcc
        v_cndmask_b32 v{MSK}, 0, 1, vcc
        v_bfe_u32 v4, v2, 2, 2
        v_lshl_add_u32 v4, v1, 2, v4
        v_lshl_add_u32 v{VA}, v4, 3, v{VA}
        s_lshl_b32 s49, s{KH}, 10
        v_mad_i32_i24 v{VA}, v{MSK}, s49, v{VA}
        s_mov_b32 s30, 0
        s_mov_b32 s31, {SLOT}
        s_mov_b32 s32, 0
        s_lshr_b32 s22, s{IDX}, 2
        s_mul_i32 s34, s22, 160
        s_mul_i32 s22, s{WV}, {2*6*1280}
        s_add_u32 s34, s34, s22
        s_mul_i32 s35, s{WV}, {2*960}""")
        for i in range(32): a(f"v_mov_b32 v{O[0]+i}, 0")
        for i in range(8): a(f"v_mov_b32 v{P[1]+i}, 0\nv_mov_b32 v{VF[1]+i}, 0")
    def kr(t, b): return [f"ds_read_b64 {v(KF[b],2)}, v{KA} offset:{t*256}", f"ds_read_b64 {v(KF[b]+2,2)}, v{KA} offset:{t*256+PST}", f"ds_read_b64 {v(KF[b]+4,2)}, v{K4} offset:{t*256}"]
    def vr(t, b): return [f"ds_read_b64_tr_b16 {v(VF[b]+2*j,2)}, v{VA} offset:{t*256+j*64}" for j in range(4)]
    def shift(sreg):
        a(f"v_add_u32 v{KA}, s{sreg}, v{KA}\nv_mad_i32_i24 v{K4}, v{MS4}, s{sreg}, v{K4}")
    a(f"""s_lshr_b32 s{KH}, s{WV}, 2
    v_lshlrev_b32 v{DMV}, 4, v2
    v_mul_u32_u24 v6, 205, v2
    v_lshrrev_b32 v6, 11, v6
    v_mul_u32_u24 v7, 10, v6
    v_sub_u32 v7, v2, v7
    v_lshlrev_b32 v7, 4, v7
    v_mul_u32_u24 v6, 1280, v6
    v_add_u32 v{WOV}, v6, v7
    s_mov_b32 s{MODE}, 0
    v_and_b32 v3, 31, v2
    v_lshrrev_b32 v1, 5, v2
    v_lshlrev_b32 v15, 3, v3""")
    a.label("L_at_restart")
    restart_setup()
    if M0: shift(49)
    a(f"""s_and_b32 s22, s{WV}, 3
    s_lshl_b32 s22, s22, 9
    s_add_u32 s22, s22, {QLDS}
    v_add_u32 v4, s22, v15
    v_lshl_add_u32 v5, v1, 12, v4
    v_cmp_gt_u32 vcc, 32, v2
    s_waitcnt vmcnt(0) lgkmcnt(0)
    s_barrier""")
    stamp(a, 9)
    a(J(kr(0, 0)))
    a(f"s_cmp_lg_u32 s{MODE}, 0\ns_cbranch_scc1 L_at_havem")
    for q in range(2):
        a(f"""ds_read_b64 {v(Q0[q],2)}, v5 offset:{q*256}
        ds_read_b64 {v(Q0[q]+2,2)}, v5 offset:{q*256+2048}
        ds_read_b64 {v(Q1[q],2)}, v4 offset:{q*256+8192}""")
    a(f"s_cmp_eq_u32 s{FCOFF}, 0\ns_cbranch_scc1 L_at_nfc")
    set_flag(a, FCOFF, 6)
    a.label("L_at_nfc")
    a("s_waitcnt lgkmcnt(0)")
    for q in range(2): a(f"v_cndmask_b32 v{Q1[q]}, 0, v{Q1[q]}, vcc\nv_cndmask_b32 v{Q1[q]+1}, 0, v{Q1[q]+1}, vcc")
    if not M0:
        for q in range(2):
            mfma32(a, S[q], KF[0], Q0[q]); mfma32x8(a, S[q], KF[0]+4, Q1[q], S[q])
        a("s_nop 7\ns_nop 1")
        for q in range(2):
            tilemax(a, P[0], S[q], True); halfmax(a, P[0]); set_m(a, q, P[0])
    isave = len(a.lines)
    a.label("L_at_havem")
    if not M0:
        shift(49)
        a(J(kr(0, 0)))
    a(f"s_cmp_eq_u32 s{MODE}, 1\ns_cbranch_scc1 L_at_maxpass")
    a("s_waitcnt lgkmcnt(0)")
    mfma32(a, S[0], KF[0], Q0[0]); mfma32x8(a, S[0], KF[0]+4, Q1[0], S[0])
    a("s_nop 7\n.p2align 3")
    stamp(a, 10)
    a.label("L_at_loop")
    for T in range(4):
        kb = T & 1
        for q in range(2):
            o = q ^ 1
            ex = [f"v_exp_f32 v{S[q]+i}, v{S[q]+i}" for i in range(16)]
            cv = [f"v_cvt_pk_bf16_f32 v{P[q]+i}, v{S[q]+2*i}, v{S[q]+2*i+1}" for i in range(8)]
            kq = kb if q == 0 else kb ^ 1
            vq = kb ^ 1 if q == 0 else kb
            rd = (kr((T+1) & 3, kb ^ 1) + vr(T, kb)) if q == 0 else []
            if q == 0: a(f"s_setprio {3 - ((T+1) & 3)}")
            if q == 0 and T == 3:
                a(f"""s_add_u32 s33, s31, {SLOT}
                s_cmp_eq_u32 s33, {3*SLOT}
                s_cselect_b32 s33, 0, s33
                s_sub_u32 s29, s33, s31
                s_mov_b32 s31, s33""")
                shift(29)
                a("s_waitcnt vmcnt(0)\ns_barrier")
            if q == 1: a("s_waitcnt lgkmcnt(0)")
            mfma32(a, S[o], KF[kq], Q0[o])
            a(J(rd[0:3] + ex[0:4] + cv[0:1]))
            mfma32x8(a, S[o], KF[kq]+4, Q1[o], S[o])
            a(J(rd[3:5] + ex[4:6] + cv[1:2] + ex[6:8] + cv[2:3]))
            mfma32(a, O[o], VF[vq], P[o], O[o])
            a(J(rd[5:7] + ex[8:10] + cv[3:4] + ex[10:12] + cv[4:5]))
            mfma32(a, O[o], VF[vq]+4, P[o]+4, O[o])
            if q == 0 and T == 3:
                a(f"s_cmp_ge_u32 s30, 6\ns_cbranch_scc1 L_at_late")
                for j in range(3):
                    if j == 2: a(f"s_cmp_ge_u32 s{WV}, 4\ns_cbranch_scc1 L_at_n3")
                    a(f"s_add_u32 m0, s{KL[j]}, s32\ns_nop 0\nbuffer_load_dwordx4 v{DMV}, s[12:15], s{KS[j]} offen sc1 lds\ns_add_u32 s{KS[j]}, s{KS[j]}, 1024")
                a.label("L_at_n3")
                a(f"s_add_u32 s32, s32, {SLOT}\ns_cmp_eq_u32 s32, {3*SLOT}\ns_cselect_b32 s32, 0, s32")
                a.label("L_at_wo")
                a(f"""s_mov_b32 exec_hi, 0x0fffffff
                s_mov_b32 m0, s35
                s_add_u32 s22, s34, {6*1280}
                buffer_load_dwordx4 v{WOV}, s[8:11], s34 offen lds
                s_add_u32 m0, s35, 960
                s_add_u32 s34, s34, {16*6*1280}
                buffer_load_dwordx4 v{WOV}, s[8:11], s22 offen lds
                s_mov_b32 exec_hi, -1
                s_add_u32 s35, s35, {16*960}""")
                a.label("L_at_back")
            a(J(ex[12:14] + cv[5:6] + ex[14:16]))
            if q == 1 and T == 3: a(f"v_mad_i32_i24 v{VA}, v{MSK}, s29, v{VA}")
            a(J(cv[6:8]))
    a("s_add_u32 s30, s30, 1\ns_cmp_lt_u32 s30, 8\ns_cbranch_scc1 L_at_loop")
    mfma32(a, O[1], VF[1], P[1], O[1])
    mfma32(a, O[1], VF[1]+4, P[1]+4, O[1])
    stamp(a, 11)
    a(f"""s_setprio 0
    s_mul_i32 s22, s{WV}, 3072
    s_add_u32 s22, s22, {EXC}
    v_add_u32 v4, s22, v{DMV}
    s_xor_b32 s22, s{WV}, 4
    s_mul_i32 s22, s22, 3072
    s_add_u32 s22, s22, {EXC}
    v_add_u32 v5, s22, v{DMV}
    v_mov_b32 v6, {CNT + 48}
    v_mov_b32 v7, 1
    v_mov_b32 v{S[1]+2}, {f32hex(2.0**110)}""")
    a(f"v_add_f32 v{S[1]}, abs(v{O[0]}), abs(v{O[0]+1})")
    for i in range(2, 13): a(f"v_add_f32 v{S[1]}, v{S[1]}, abs(v{O[0]+i})")
    a(f"s_cmp_eq_u32 s{KH}, 0\ns_cbranch_scc1 L_at_c0")
    for i in range(3): a(f"ds_write_b128 v4, {v(O[0]+4*i,4)} offset:{i*1024}")
    if M0: a(f"v_mov_b32 v{S[1]+3}, v{O[0]+12}")
    for i in range(12): a(f"v_mov_b32 v{O[0]+i}, v{O[1]+i}")
    a("s_branch L_at_c1")
    a.label("L_at_c0")
    for i in range(3): a(f"ds_write_b128 v4, {v(O[1]+4*i,4)} offset:{i*1024}")
    if M0: a(f"v_mov_b32 v{S[1]+3}, v{O[0]+12}")
    a.label("L_at_c1")
    for i in range(13): a(f"v_add_f32 v{S[1]}, v{S[1]}, abs(v{O[1]+i})")
    a(f"v_cmp_nlt_f32 vcc, v{S[1]}, v{S[1]+2}")
    if M0:
        a(f"""v_min_f32 v{S[1]+3}, v{S[1]+3}, v{O[1]+12}
        v_mov_b32 v{S[1]+2}, {f32hex(2.0**-60)}
        v_cmp_lt_f32 s[26:27], v{S[1]+3}, v{S[1]+2}
        s_nop 0
        s_or_b64 vcc, vcc, s[26:27]""")
    a(f"""s_cbranch_vccz L_at_nf
    ds_write_b32 v6, v7""")
    a.label("L_at_nf")
    a(f"""s_waitcnt vmcnt(0) lgkmcnt(0)
    s_barrier
    ds_read_b32 v7, v6""")
    for i in range(3): a(f"ds_read_b128 {v(S[0]+4*i,4)}, v5 offset:{i*1024}")
    a(f"""v_lshlrev_b32 v3, 1, v15
    v_lshl_add_u32 v3, v1, 15, v3
    s_and_b32 s22, s{WV}, 3
    s_lshl_b32 s22, s22, 1
    s_add_u32 s22, s22, s{KH}
    s_lshl_b32 s23, s22, 8
    s_add_u32 s23, s23, s{OTAIL}
    s_lshl_b32 s22, s22, 9
    s_add_u32 s22, s22, s{OOCT}
    s_waitcnt lgkmcnt(3)
    v_readfirstlane_b32 s26, v7
    s_cmp_gt_u32 s26, s{MODE}
    s_cbranch_scc1 L_at_fallback
    s_waitcnt lgkmcnt(0)""")
    for i in range(12): a(f"v_add_f32 v{O[0]+i}, v{O[0]+i}, v{S[0]+i}")
    a(f"""v_mov_b32 v{S[0]}, v{O[0]+8}
    v_mov_b32 v{S[0]+1}, v{O[0]+8}
    s_nop 1
    v_permlane32_swap_b32 v{S[0]}, v{S[0]+1}
    v_rcp_f32 v{S[0]}, v{S[0]+1}
    s_nop 0""")
    for i in range(12): a(f"v_mul_f32 v{O[0]+i}, v{O[0]+i}, v{S[0]}")
    for i in range(6): a(f"v_cvt_pk_bf16_f32 v{P[0]+i}, v{O[0]+2*i}, v{O[0]+2*i+1}")
    a(f"""buffer_store_dwordx4 {v(P[0],4)}, v3, s[12:15], s22 offen sc1
    s_mov_b32 exec_hi, 0
    buffer_store_dwordx2 {v(P[0]+4,2)}, v15, s[12:15], s23 offen sc1
    s_mov_b32 exec_hi, -1""")
    stamp(a, 12)

    def cold():
        a.label("L_at_late")
        a(f"""s_cmp_eq_u32 s30, 7
        s_cbranch_scc1 L_at_l7
        s_mul_i32 s22, s{XCD}, {20*128}
        s_add_u32 s22, s22, {WS_FC}
        v_min_u32 v6, 19, v2
        v_lshl_add_u32 v6, v6, 7, s22
        buffer_load_dwordx4 v[136:139], v6, s[12:15], 0 offen sc1
        s_branch L_at_wo""")
        a.label("L_at_l7")
        poll(a, [6], 4, 136, preloaded=True)
        a(f"""v_lshrrev_b32 v4, 3, v2
        v_and_b32 v5, 7, v2
        v_lshlrev_b32 v5, 4, v5
        v_lshl_add_u32 v4, v4, 12, v5
        s_mul_i32 s22, s{XCD}, {80*4096}
        s_lshl_b32 s23, s{IDX}, 7
        s_add_u32 s22, s22, s23
        s_lshl_b32 s23, s{WV}, 15
        s_add_u32 s22, s22, s23
        s_add_u32 s22, s22, {WS_YT}
        s_lshl_b32 s23, s{WV}, 10
        s_add_u32 m0, s23, {YSRC}
        s_cmp_ge_u32 s{WV}, 2
        buffer_load_dwordx4 v4, s[12:15], s22 offen sc1 lds
        s_cbranch_scc1 L_at_back
        s_add_u32 m0, m0, 8192
        s_add_u32 s22, s22, {64*4096}
        buffer_load_dwordx4 v4, s[12:15], s22 offen sc1 lds
        s_branch L_at_back""")
        a.label("L_at_fallback")
        a(f"s_mov_b32 s{MODE}, 1")
        a.label("L_at_refill")
        a("s_waitcnt vmcnt(0) lgkmcnt(0)\ns_barrier")
        first_chunks(a, 8, "L_at_fc2")
        a("s_branch L_at_restart")
        a.label("L_at_maxpass")
        MX = [P[0], P[1]]
        for q in range(2):
            a(f"v_cndmask_b32 v{Q1[q]}, 0, v{Q1[q]}, vcc\nv_cndmask_b32 v{Q1[q]+1}, 0, v{Q1[q]+1}, vcc\nv_mov_b32 v{MX[q]}, 0xff800000")
        for j in range(3): a(f"s_sub_u32 s{KS[j]}, s{KS[j]}, 1024")
        a.label("L_at_mloop")
        for T in range(4):
            a(J(kr(T, 0)) + "\ns_waitcnt lgkmcnt(0)")
            for q in range(2):
                mfma32(a, S[q], KF[0], Q0[q]); mfma32x8(a, S[q], KF[0]+4, Q1[q], S[q])
            a("s_nop 7\ns_nop 3")
            for q in range(2): tilemax(a, MX[q], S[q], False)
        a("s_add_u32 s30, s30, 1\ns_cmp_eq_u32 s30, 8\ns_cbranch_scc1 L_at_mdone\ns_barrier")
        for j in range(3):
            if j == 2: a(f"s_cmp_ge_u32 s{WV}, 4\ns_cbranch_scc1 L_at_m3")
            a(f"s_add_u32 m0, s{KL[j]}, {SLOT}\ns_nop 0\nbuffer_load_dwordx4 v{DMV}, s[12:15], s{KS[j]} offen sc1 lds\ns_add_u32 s{KS[j]}, s{KS[j]}, 1024")
        a.label("L_at_m3")
        a("s_waitcnt vmcnt(0)\ns_barrier\ns_branch L_at_mloop")
        a.label("L_at_mdone")
        a(f"""s_lshl_b32 s22, s{WV}, 10
        s_add_u32 s22, s22, {ARING + 2*SLOT}
        v_add_u32 v4, s22, v{DMV}
        s_xor_b32 s22, s{WV}, 4
        s_lshl_b32 s22, s22, 10
        s_add_u32 s22, s22, {ARING + 2*SLOT}
        v_add_u32 v5, s22, v{DMV}""")
        for q in range(2): halfmax(a, MX[q]); a(f"ds_write_b32 v4, v{MX[q]} offset:{4*q}")
        a("s_waitcnt lgkmcnt(0)\ns_barrier")
        for q in range(2): a(f"ds_read_b32 v{S[0]+q}, v5 offset:{4*q}")
        a("s_waitcnt lgkmcnt(0)")
        for q in range(2):
            a(f"v_max_f32 v{MX[q]}, v{MX[q]}, v{S[0]+q}"); set_m(a, q, MX[q])
        a(f"s_mov_b32 s{MODE}, 2\ns_branch L_at_refill")
    return cold

def tail(a):
    YIMG = ARING + 2*SLOT + 1024
    OIMG = YIMG + 10240 - 1024
    PART = EXC
    OIMG = PART + 20480
    assert OIMG + 10240 <= YIMG and YIMG + 10240 <= CNT
    srd(a, 8, P_OUT, 2048*2560)
    OF = 28; ACC = 8; WF = 68
    TW, KH = 20, 21
    a(f"""v_bfe_u32 v3, v2, 2, 2
    v_lshlrev_b32 v3, 7, v3
    v_lshrrev_b32 v4, 4, v2
    v_lshl_add_u32 v3, v4, 5, v3
    v_and_b32 v5, 3, v2
    v_lshl_add_u32 v3, v5, 3, v3
    s_lshl_b32 s22, s{WV}, 9
    s_add_u32 s22, s22, {YSRC}
    v_add_u32 v3, s22, v3
    ds_read_b64_tr_b16 v[8:9], v3
    ds_read_b64_tr_b16 v[10:11], v3 offset:4096
    ds_read_b64_tr_b16 v[12:13], v3 offset:8192
    v_mul_u32_u24 v6, 160, v2
    s_lshl_b32 s22, s{WV}, 3
    s_add_u32 s22, s22, {YIMG}
    v_add_u32 v6, s22, v6
    s_and_b32 s{TW}, s{WV}, 3
    s_lshr_b32 s{KH}, s{WV}, 2
    s_waitcnt lgkmcnt(0)
    ds_write_b64 v6, v[8:9]
    ds_write_b64 v6, v[10:11] offset:64
    s_cmp_ge_u32 s{WV}, 4
    s_cbranch_scc1 L_t_y3
    ds_write_b64 v6, v[12:13] offset:128""")
    a.label("L_t_y3")
    a(f"""v_mul_u32_u24 v6, 6554, v0
    v_lshrrev_b32 v6, 16, v6
    v_mul_u32_u24 v7, 10, v6
    v_sub_u32 v7, v0, v7
    v_mul_u32_u24 v6, 2560, v6
    v_lshl_add_u32 v6, v7, 4, v6
    v_add_u32 v12, 512, v0
    v_mul_u32_u24 v7, 6554, v12
    v_lshrrev_b32 v7, 16, v7
    v_mul_u32_u24 v13, 10, v7
    v_sub_u32 v13, v12, v13
    v_mul_u32_u24 v7, 2560, v7
    v_lshl_add_u32 v7, v13, 4, v7
    v_lshlrev_b32 v12, 4, v0
    v_add_u32 v12, {YIMG}, v12
    s_mul_i32 s26, s{IDX}, {64*2560}
    s_mul_i32 s27, s{XCD}, 160
    s_add_u32 s26, s26, s27
    s_waitcnt lgkmcnt(0)
    s_barrier
    ds_read_b128 v[16:19], v12
    ds_read_b128 v[20:23], v12 offset:8192""")
    a(f"""v_and_b32 v3, 15, v2
    v_lshlrev_b32 v5, 4, v3
    v_lshl_add_u32 v5, v4, 15, v5
    v_lshlrev_b32 v24, 3, v3
    v_lshl_add_u32 v24, v4, 14, v24
    v_lshlrev_b32 v25, 14, v3
    s_lshl_b32 s29, s{XCD}, 2
    s_and_b32 s22, s{IDX}, 3
    s_add_u32 s29, s29, s22
    s_lshl_b32 s22, s29, 2
    s_add_u32 s22, s22, s{TW}
    s_lshl_b32 s27, s22, 8
    s_lshl_b32 s23, s{KH}, 20
    s_add_u32 s27, s27, s23
    s_add_u32 s27, s27, {WS_O}
    s_lshl_b32 s28, s22, 7
    s_lshl_b32 s23, s{KH}, 18
    s_add_u32 s28, s28, s23
    s_add_u32 s28, s28, {WS_OT}
    v_bfe_u32 v26, v2, 2, 2
    v_lshrrev_b32 v27, 5, v2
    v_mul_u32_u24 v27, 20, v27
    v_bfe_u32 v14, v2, 4, 1
    v_lshl_add_u32 v27, v14, 2, v27
    v_add_u32 v27, v27, v26
    v_mul_u32_u24 v14, 20, v4
    v_add3_u32 v26, v14, v26, 16
    v_and_b32 v14, 3, v2
    v_lshlrev_b32 v14, 3, v14
    s_mul_i32 s22, s{KH}, {320*160}
    v_add_u32 v14, s22, v14
    v_mul_u32_u24 v27, 160, v27
    v_mul_u32_u24 v26, 160, v26
    v_add_u32 v15, v27, v14
    v_add_u32 v14, v26, v14
    s_waitcnt lgkmcnt(0)
    buffer_store_dwordx4 v[16:19], v6, s[8:11], s26 offen
    s_cmp_ge_u32 s{WV}, 2
    s_cbranch_scc1 L_t_y4
    buffer_store_dwordx4 v[20:23], v7, s[8:11], s26 offen""")
    a.label("L_t_y4")
    WA_, WT_ = 6, 7
    a(f"v_mov_b32 v{WA_}, v15\nv_mov_b32 v{WT_}, v14\nv_mov_b32 v1, v24\nv_mov_b32 v248, v25\ns_mov_b32 s50, 0")
    def wr(i, slot):
        for m in range(5):
            for hf in range(2):
                if i < 8: a(f"ds_read_b64_tr_b16 {v(WF+slot*20+4*m+2*hf,2)}, v{WA_} offset:{(40*i+8*hf)*160+32*m}")
                else: a(f"ds_read_b64_tr_b16 {v(WF+slot*20+4*m+2*hf,2)}, v{WT_} offset:{(160*(i-8)+80*hf)*160+32*m}")
    for i in range(1, 9): wr(i, i)
    stamp(a, 13)
    a.label("L_t_p1")
    a(f"""buffer_load_dword v249, v248, s[12:15], s28 offen sc1
    s_add_u32 s50, s50, 1
    s_waitcnt vmcnt(0)
    v_cmp_eq_u32 vcc, -1, v249
    s_cmp_gt_u32 s50, {SPIN}
    s_cbranch_scc1 L_t_p2
    s_cbranch_vccnz L_t_p1""")
    a.label("L_t_p2")
    stamp(a, 14)
    wr(0, 0)
    a("s_mov_b32 s22, s27")
    for i in range(8): a(f"buffer_load_dwordx4 {v(OF+4*i,4)}, v5, s[12:15], s22 offen sc1\ns_add_u32 s22, s22, {4*32768}")
    a("s_mov_b32 s22, s28")
    for i in range(4): a(f"buffer_load_dwordx2 {v(OF+32+2*i,2)}, v1, s[12:15], s22 offen sc1\ns_add_u32 s22, s22, {4*PLANE}")
    a("s_add_u32 s50, s50, 1\ns_waitcnt lgkmcnt(0)")
    for i in range(10):
        a(f"s_waitcnt vmcnt({11-i if i < 8 else (2 if i == 8 else 0)})" + (" lgkmcnt(0)" if i == 9 else ""))
        slot = i if i < 9 else 0
        for m in range(5): mfma16(a, ACC+4*m, WF+slot*20+4*m, OF+4*i, ACC+4*m if i else None)
        r = OF + 4*i
        if i == 0: a(f"v_max3_u32 v249, v{r}, v{r+1}, v{r+2}\nv_max_u32 v249, v249, v{r+3}"); wr(9, 0)
        else: a(f"v_max3_u32 v249, v249, v{r}, v{r+1}\nv_max3_u32 v249, v249, v{r+2}, v{r+3}")
    a(f"""v_cmp_eq_u32 vcc, -1, v249
    s_cmp_gt_u32 s50, {SPIN}
    s_cbranch_scc1 L_t_go
    s_cbranch_vccnz L_t_p2""")
    a.label("L_t_go")
    stamp(a, 15)
    a(f"""v_lshlrev_b32 v7, 4, v2
    s_mul_i32 s27, s{TW}, 5120
    s_add_u32 s27, s27, {PART}
    v_add_u32 v6, s27, v7
    s_cmp_eq_u32 s{KH}, 0
    s_cbranch_scc1 L_t_r0
    s_nop 1""")
    for m in range(5): a(f"ds_write_b128 v6, {v(ACC+4*m,4)} offset:{m*1024}")
    a("s_waitcnt lgkmcnt(0)\ns_barrier\ns_branch L_t_fin")
    a.label("L_t_r0")
    a(f"""s_mul_i32 s27, s{TW}, 2560
    s_add_u32 s27, s27, {OIMG}
    v_mul_u32_u24 v3, 160, v3
    v_lshl_add_u32 v3, v4, 3, v3
    v_add_u32 v3, s27, v3
    v_add_u32 v7, s27, v7""")
    for j in range(3):
        a(f"""v_add_u32 v{WF+8}, {64*j}, v2
        v_mul_u32_u24 v{WF+9}, 205, v{WF+8}
        v_lshrrev_b32 v{WF+9}, 11, v{WF+9}
        v_mul_u32_u24 v{WF+10}, 10, v{WF+9}
        v_sub_u32 v{WF+10}, v{WF+8}, v{WF+10}
        v_mul_u32_u24 v{WF+9}, 2560, v{WF+9}
        v_lshl_add_u32 v{WF+j}, v{WF+10}, 4, v{WF+9}""")
    a(f"""s_lshl_b32 s27, s29, 2
    s_add_u32 s27, s27, s{TW}
    s_mul_i32 s27, s27, {16*2560}
    s_lshr_b32 s28, s{IDX}, 2
    s_mul_i32 s28, s28, 160
    s_add_u32 s27, s27, s28
    s_add_u32 s27, s27, 1280
    s_barrier""")
    for m in range(5): a(f"ds_read_b128 {v(OF+4*m,4)}, v6 offset:{m*1024}")
    for m in range(5):
        a(f"s_waitcnt lgkmcnt(4)")
        for i in range(4): a(f"v_add_f32 v{ACC+4*m+i}, v{ACC+4*m+i}, v{OF+4*m+i}")
        a(f"v_cvt_pk_bf16_f32 v{ACC+4*m}, v{ACC+4*m}, v{ACC+4*m+1}\nv_cvt_pk_bf16_f32 v{ACC+4*m+1}, v{ACC+4*m+2}, v{ACC+4*m+3}")
        a(f"ds_write_b64 v3, {v(ACC+4*m,2)} offset:{32*m}")
    for j in range(3): a(f"ds_read_b128 {v(OF+24+4*j,4)}, v7 offset:{1024*j}")
    for j in range(3):
        if j == 2: a("s_mov_b32 exec_hi, 0")
        a(f"s_waitcnt lgkmcnt({2-j})\nbuffer_store_dwordx4 {v(OF+24+4*j,4)}, v{WF+j}, s[8:11], s27 offen")
    a("s_mov_b32 exec_hi, -1")
    a.label("L_t_fin")

def main(path):
    a = Asm()
    nm = NAME + "_kernel"
    a(f".globl {nm}\n.p2align 8\n.type {nm},@function")
    a.label(nm)
    a(f"""s_cmp_ge_u32 s2, 256
    s_cbranch_scc1 L_end
    s_load_dwordx16 s[64:79], s[0:1], 0
    s_load_dwordx8 s[80:87], s[0:1], 64
    s_load_dwordx2 s[88:89], s[0:1], 96
    v_lshrrev_b32 v1, 6, v0
    v_and_b32 v2, 63, v0
    v_readfirstlane_b32 s{WV}, v1
    s_and_b32 s{XCD}, s2, 7
    s_lshr_b32 s{IDX}, s2, 3
    v_min_u32 v3, 47, v2
    v_lshlrev_b32 v3, 2, v3
    v_add_u32 v3, {CNT}, v3
    v_mov_b32 v4, 0
    s_waitcnt lgkmcnt(0)""")
    if PROF: a(f"v_mov_b32 v{PV}, 0")
    stamp(a, 0, True); stamp(a, 1)
    srd(a, 12, P_WS, WS_SIZE)
    a(f"s_cmp_ge_u32 s{WV}, 4\ns_cbranch_scc1 L_helper")
    a(f"ds_write_b32 v3, v4\ns_mov_b32 s{FCOFF}, 0\ns_setprio 1")
    gemm(a)
    a("s_setprio 0")
    window1_main(a)
    first_chunks(a, 4, "L_w1_fc")
    a(f"""v_lshlrev_b32 v3, 2, v0
    v_add_u32 v3, {CONSTP}, v3
    v_and_b32 v4, 1, v0
    v_cmp_eq_u32 vcc, 0, v4
    v_mov_b32 v4, 0x3f803f80
    v_mov_b32 v5, 0x00003f80
    v_cndmask_b32 v4, v5, v4, vcc
    ds_write_b32 v3, v4""")
    stamp(a, 7)
    a("s_branch L_attn")
    a.label("L_helper")
    helper(a)
    attn_ids(a)
    a.label("L_attn")
    cold = attention(a)
    tail(a)
    if PROF:
        a("s_waitcnt vmcnt(0)")
        stamp(a, 16); stamp(a, 17, True)
        a(f"""s_lshl_b32 s22, s2, 3
        s_add_u32 s22, s22, s{WV}
        s_lshl_b32 s22, s22, 8
        s_add_u32 s22, s22, {WS_PROF}
        v_lshlrev_b32 v3, 2, v2
        buffer_store_dword v{PV}, v3, s[12:15], s22 offen""")
    a.label("L_end")
    a("s_endpgm")
    cold()
    hdr = open("cdna_kernels/" + NAME + ".s.ref").read().split("\n")
    head = [l for l in hdr[:15] if l.startswith(";") and "@launch" not in l and "Override" not in l and "grid=ceil" not in l]
    txt = "\n".join(head) + "\n; @launch grid=(256,1,1) block=(512,1,1) lds=163840\n"
    txt += '.amdgcn_target "amdgcn-amd-amdhsa--gfx950"\n.text\n' + a.text()
    txt += f""".section .rodata,"a"
.p2align 6
.amdhsa_kernel {nm}
  .amdhsa_next_free_vgpr 256
  .amdhsa_next_free_sgpr 102
  .amdhsa_accum_offset 256
  .amdhsa_group_segment_fixed_size 0
  .amdhsa_kernarg_size 104
  .amdhsa_user_sgpr_count 2
  .amdhsa_user_sgpr_kernarg_segment_ptr 1
  .amdhsa_system_sgpr_workgroup_id_x 1
.end_amdhsa_kernel
"""
    open(path, "w").write(txt)
    errs = check_hazards(a.text())
    for e in errs[:30]: print("HAZARD", e)
    print(f"{path}: {len(a.lines)} lines, {len(errs)} hazards; ARING={ARING} CONSTP={CONSTP} QLDS={QLDS}")

if __name__ == "__main__":
    main([x for x in sys.argv[1:] if x.endswith(".s")][0])
```

```python
import math, sys
from asmlib import *

NAME = "concat_heads__ssm_conv_s4d__mha_block__prompt"
WS_QKV = 0
WS_O = 0x800000
WS_UT = 0xB00000
WS_YT = 0xE00000
WS_FA = 0x1100000
WS_FB = 0x1110000
WS_FC = 0x1120000
WS_PROF = 0x1300000
WS_SIZE = 0x1400000
PLANE = 16384
LOG2E = math.log2(math.e)
QSCALE = LOG2E / math.sqrt(20.0)
PROF = "--prof" in sys.argv
SPIN = 0x40000

WV, XCD, IDX, NONCE = 16, 17, 18, 19
P_U, P_LA, P_AI, P_CR, P_CI, P_DT, P_D, P_X, P_W, P_WO, P_OUT, P_DBG, P_WS = range(64, 90, 2)
PV = 255

RING = 32768
SCR = 3*RING
UST = 4640
KOFF = 4*UST
CHA = KOFF + 4224
PST = 2048 + 32
SLOT = 10*PST
ARING = 163840 - 3*SLOT - 1280
CONSTP = ARING + 3*SLOT + 192
QLDS = ARING
CNT = ARING + 3*SLOT
assert ARING >= 96*960 and ARING >= 4*CHA and CONSTP + 1024 <= 163840
assert SCR + 3*16384 + 8192 + 26*256 <= CNT and CNT + 192 <= SCR + 3*16384 + 8192 + 28*256
WS_OT = WS_O + 0x200000
M0 = "--m0" in sys.argv

def lds_signal(a, va, vone):
    a(f"s_mov_b64 exec, 1\nds_add_u32 v{va}, v{vone}\ns_mov_b64 exec, -1")
def lds_wait(a, va, vt, n=4):
    l = a.newlabel("L_lw")
    a.label(l)
    a(f"""ds_read_b32 v{vt}, v{va}
    s_waitcnt lgkmcnt(0)
    v_readfirstlane_b32 s22, v{vt}
    s_cmp_lt_u32 s22, {n}
    s_cbranch_scc1 {l}""")

def srd(a, d, lo, size):
    a(f"s_mov_b32 s{d}, s{lo}\ns_and_b32 s{d+1}, s{lo+1}, 0xffff\ns_mov_b32 s{d+2}, {size}\ns_mov_b32 s{d+3}, 0x20000")
def mfma32(a, d, x, y, c=None):
    a(f"v_mfma_f32_32x32x16_bf16 {v(d,16)}, {v(x,4)}, {v(y,4)}, {v(c,16) if c is not None else 0}")
def mfma32x8(a, d, x, y, c):
    a(f"v_mfma_f32_32x32x8_bf16 {v(d,16)}, {v(x,2)}, {v(y,2)}, {v(c,16)}")
def mfma16(a, d, x, y, c=None):
    a(f"v_mfma_f32_16x16x32_bf16 {v(d,4)}, {v(x,4)}, {v(y,4)}, {v(c,4) if c is not None else 0}")
def stamp(a, i, real=False):
    if PROF: a(f"s_mem{'real' if real else ''}time s[92:93]\ns_waitcnt lgkmcnt(0)\nv_writelane_b32 v{PV}, s92, {i}")

def get_nonce(a, vt):
    srd(a, 4, P_DBG, 256)
    l = a.newlabel("L_nonce"); e = a.newlabel("L_nonce_e")
    a(f"v_mov_b32 v{vt}, 0\ns_mov_b32 s50, 0")
    a.label(l)
    a(f"""buffer_load_dword v{vt+1}, v{vt}, s[4:7], 0 offen sc1
    s_add_u32 s50, s50, 1
    s_waitcnt vmcnt(0)
    v_readfirstlane_b32 s{NONCE}, v{vt+1}
    s_cmp_gt_u32 s50, {SPIN}
    s_cbranch_scc1 {e}
    s_cmp_eq_u32 s{NONCE}, 0
    s_cbranch_scc1 {l}""")
    a.label(e)

def poll(a, addrs, width, vt, preloaded=False):
    l = a.newlabel("L_poll"); e = a.newlabel("L_poll_e")
    sfx = {1: "dword", 4: "dwordx4"}[width]
    a("s_mov_b32 s50, 0")
    if preloaded: a(f"s_branch {l}_c")
    a.label(l)
    for k, ad in enumerate(addrs): a(f"buffer_load_{sfx} {v(vt+4*k,width)}, v{ad}, s[12:15], 0 offen sc1")
    a("s_add_u32 s50, s50, 1\ns_waitcnt vmcnt(0)")
    a.label(l + "_c")
    regs = [vt+4*k+j for k in range(len(addrs)) for j in range(width)]
    for r in regs: a(f"v_xor_b32 v{r}, s{NONCE}, v{r}")
    for r in regs[1:]: a(f"v_or_b32 v{regs[0]}, v{regs[0]}, v{r}")
    a(f"""v_cmp_ne_u32 vcc, 0, v{regs[0]}
    s_cmp_gt_u32 s50, {SPIN}
    s_cbranch_scc1 {e}
    s_cbranch_vccnz {l}""")
    a.label(e)

def set_flag(a, soff, vt):
    a(f"""v_mov_b32 v{vt}, 0
    v_mov_b32 v{vt+1}, s{NONCE}
    s_mov_b64 exec, 1
    buffer_store_dword v{vt+1}, v{vt}, s[12:15], s{soff} offen sc1
    s_mov_b64 exec, -1""")

def transpose_tile(a, ssrd, soff, sstride, dsrd, doff, dstride, ldsbase, vt=8, lsc="", ssc="", after_issue=""):
    A0, A1, A2, A3 = vt, vt+1, vt+2, vt+3
    D = vt + 4
    a(f"""v_lshrrev_b32 v{A0}, 3, v2
    v_and_b32 v{A1}, 7, v2
    v_lshlrev_b32 v{A1}, 4, v{A1}
    v_mul_u32_u24 v{A2}, {sstride}, v{A0}
    v_add_u32 v{A2}, v{A2}, v{A1}
    s_mov_b32 m0, s{ldsbase}
    s_mov_b32 s50, s{soff}""")
    for i in range(8):
        a(f"buffer_load_dwordx4 v{A2}, s[{ssrd}:{ssrd+3}], s50 offen {lsc} lds\ns_add_u32 m0, m0, 1024\ns_add_u32 s50, s50, {8*sstride}")
    a(after_issue)
    a(f"""v_mul_u32_u24 v{A3}, {dstride}, v{A0}
    v_add_u32 v{A3}, v{A3}, v{A1}
    v_mul_u32_u24 v{A0}, 144, v{A0}
    v_add3_u32 v{A0}, v{A0}, v{A1}, s{ldsbase}
    v_bfe_u32 v{A1}, v2, 2, 2
    v_lshlrev_b32 v{A1}, 7, v{A1}
    v_lshrrev_b32 v{A2}, 4, v2
    v_lshl_add_u32 v{A1}, v{A2}, 5, v{A1}
    v_and_b32 v{A2}, 3, v2
    v_lshl_add_u32 v{A1}, v{A2}, 3, v{A1}
    v_add_u32 v{A1}, s{ldsbase}, v{A1}
    v_mul_u32_u24 v{A2}, 144, v2
    v_add_u32 v{A2}, s{ldsbase}, v{A2}
    s_waitcnt vmcnt(0)""")
    for i in range(16): a(f"ds_read_b64_tr_b16 {v(D+2*i,2)}, v{A1} offset:{i*512}")
    a("s_waitcnt lgkmcnt(0)")
    for i in range(8): a(f"ds_write_b128 v{A2}, {v(D+4*i,4)} offset:{i*16}")
    a("s_waitcnt lgkmcnt(0)")
    for i in range(8): a(f"ds_read_b128 {v(D+4*i,4)}, v{A0} offset:{i*8*144}")
    a(f"s_mov_b32 s50, s{doff}")
    for i in range(8):
        a(f"s_waitcnt lgkmcnt({7-i})\nbuffer_store_dwordx4 {v(D+4*i,4)}, v{A3}, s[{dsrd}:{dsrd+3}], s50 offen {ssc}\ns_add_u32 s50, s50, {8*dstride}")

def gemm(a):
    TT, CT = 20, 21
    XS, WSO, LB, CI = 26, 27, 28, 29
    srd(a, 4, P_X, 2048*1280)
    srd(a, 8, P_W, 640*3840)
    a(f"""s_lshr_b32 s{TT}, s{XCD}, 1
    s_lshl_b32 s{TT}, s{TT}, 2
    s_and_b32 s22, s{IDX}, 3
    s_add_u32 s{TT}, s{TT}, s22
    s_and_b32 s{CT}, s{XCD}, 1
    s_lshl_b32 s{CT}, s{CT}, 3
    s_lshr_b32 s23, s{IDX}, 2
    s_add_u32 s{CT}, s{CT}, s23
    s_cmp_eq_u32 s{CT}, 15
    s_cbranch_scc1 L_g_skip""")
    a(f"""s_mul_i32 s22, s22, 5
    s_add_u32 s22, s22, 1
    s_lshr_b32 s22, s22, 1
    s_mul_i32 s23, s23, 3
    s_add_u32 s{CI}, s22, s23
    s_cmp_ge_u32 s{CI}, 20
    s_cselect_b32 s22, 20, 0
    s_sub_u32 s{CI}, s{CI}, s22
    s_cmp_ge_u32 s{CI}, 10
    s_cselect_b32 s22, 10, 0
    s_sub_u32 s{CI}, s{CI}, s22""")
    if '--nostagger' in sys.argv: a(f"s_mov_b32 s{CI}, 0")
    DX, DW = 8, 9
    a(f"""v_lshrrev_b32 v3, 3, v2
    v_and_b32 v4, 7, v2
    v_lshrrev_b32 v5, 1, v3
    s_and_b32 s22, s{WV}, 1
    s_lshl_b32 s22, s22, 2
    v_add_u32 v5, s22, v5
    v_xor_b32 v4, v4, v5
    v_lshlrev_b32 v4, 4, v4
    v_mul_u32_u24 v3, 2560, v3
    v_add_u32 v{DX}, v3, v4
    s_mul_i32 s{XS}, s{TT}, {128*1280}
    s_mul_i32 s22, s{WV}, {16*1280}
    s_add_u32 s{XS}, s{XS}, s22
    v_lshrrev_b32 v3, 4, v2
    v_bfe_u32 v4, v2, 2, 2
    v_xor_b32 v4, v4, v3
    v_lshlrev_b32 v4, 6, v4
    v_and_b32 v5, 3, v2
    v_lshlrev_b32 v5, 4, v5
    v_mul_u32_u24 v3, 3840, v3
    v_add3_u32 v{DW}, v3, v4, v5
    s_lshl_b32 s{WSO}, s{CT}, 8
    s_mul_i32 s22, s{WV}, {4*3840}
    s_add_u32 s{WSO}, s{WSO}, s22
    s_lshl_b32 s{LB}, s{WV}, 10""")
    def issue():
        a(f"""s_lshl_b32 s22, s{CI}, 7
        s_add_u32 s22, s22, s{XS}
        s_mul_i32 s23, s{CI}, {64*3840}
        s_add_u32 s23, s23, s{WSO}""")
        for i in range(4):
            a(f"s_add_u32 m0, s{LB}, {i*4096}\ns_add_u32 s24, s22, {(64*(i>>1) + (i&1))*1280}\nbuffer_load_dwordx4 v{DX}, s[4:7], s24 offen lds")
            a(f"s_add_u32 m0, s{LB}, {16384+i*4096}\ns_add_u32 s24, s23, {i*16*3840}\nbuffer_load_dwordx4 v{DW}, s[8:11], s24 offen lds")
        a(f"""s_add_u32 s{CI}, s{CI}, 1
        s_cmp_eq_u32 s{CI}, 10
        s_cselect_b32 s{CI}, 0, s{CI}
        s_add_u32 s{LB}, s{LB}, {RING}
        s_cmp_ge_u32 s{LB}, {3*RING}
        s_cselect_b32 s22, {3*RING}, 0
        s_sub_u32 s{LB}, s{LB}, s22""")
    a("s_mov_b32 s30, 0\ns_waitcnt lgkmcnt(0)\ns_barrier")
    a.label("L_g_pro")
    issue()
    a("s_add_u32 s30, s30, 1\ns_cmp_lt_u32 s30, 3\ns_cbranch_scc1 L_g_pro")
    XA = [10, 11, 12, 13]; WA = [14, 15]
    FX = [[16, 20], [32, 36]]; FW = [[24, 28], [40, 44]]
    ACC = 48; CA, ONE, CV = 112, 113, 114
    a(f"""s_and_b32 s34, s{WV}, 1
    s_lshr_b32 s35, s{WV}, 1
    v_and_b32 v3, 31, v2
    v_lshrrev_b32 v4, 5, v2
    v_bfe_u32 v5, v3, 1, 3
    v_xor_b32 v5, v5, v4
    v_lshlrev_b32 v5, 4, v5
    v_lshlrev_b32 v6, 7, v3
    s_lshl_b32 s22, s34, 13
    v_add3_u32 v{XA[0]}, v5, v6, s22
    v_xor_b32 v{XA[1]}, 32, v{XA[0]}
    v_xor_b32 v{XA[2]}, 64, v{XA[0]}
    v_xor_b32 v{XA[3]}, 96, v{XA[0]}
    v_bfe_u32 v5, v2, 2, 2
    s_lshl_b32 s22, s35, 1
    v_xor_b32 v6, s22, v5
    v_lshlrev_b32 v6, 6, v6
    v_lshlrev_b32 v7, 3, v4
    v_add_u32 v7, v7, v5
    v_lshlrev_b32 v7, 8, v7
    v_bfe_u32 v5, v2, 4, 1
    v_lshlrev_b32 v5, 5, v5
    v_add3_u32 v6, v6, v7, v5
    v_and_b32 v5, 3, v2
    v_lshl_add_u32 v6, v5, 3, v6
    v_add_u32 v{WA[0]}, 16384, v6
    v_xor_b32 v{WA[1]}, 64, v{WA[0]}
    v_mov_b32 v{CA}, {CNT}
    v_mov_b32 v{ONE}, 1""")
    for i in range(64): a(f"v_mov_b32 v{ACC+i}, 0")
    def reads(ks, buf):
        if '--noreads' in sys.argv: return
        for t in range(2): a(f"ds_read_b128 {v(FX[buf][t],4)}, v{XA[ks]} offset:{t*4096}")
        for m in range(2):
            for rd in range(2): a(f"ds_read_b64_tr_b16 {v(FW[buf][m]+2*rd,2)}, v{WA[m]} offset:{(16*ks+4*rd)*256}")
    def mm(buf):
        if '--nomm' in sys.argv: return
        for m in range(2):
            for t in range(2): mfma32(a, ACC+(m*2+t)*16, FW[buf][m], FX[buf][t], ACC+(m*2+t)*16)
    def signal():
        a(f"s_mov_b64 exec, 1\nds_add_u32 v{CA}, v{ONE}\ns_mov_b64 exec, -1")
    def waitcnt4():
        l = a.newlabel("L_g_w")
        a.label(l)
        a(f"""ds_read_b32 v{CV}, v{CA}
        s_waitcnt lgkmcnt(0)
        v_readfirstlane_b32 s22, v{CV}
        s_cmp_lt_u32 s22, 4
        s_cbranch_scc1 {l}
        v_add_u32 v{CA}, 4, v{CA}""")
    a("s_mov_b32 s30, 0\ns_mov_b32 s31, 0\ns_waitcnt vmcnt(16)")
    signal(); waitcnt4()
    stamp(a, 2)
    reads(0, 0)
    a.label("L_g_mm")
    for ks in range(3):
        reads(ks+1, (ks+1) & 1)
        a("s_waitcnt lgkmcnt(6)")
        mm(ks & 1)
    a(f"""s_add_u32 s30, s30, 1
    s_add_u32 s32, s31, {RING}
    s_cmp_eq_u32 s32, {3*RING}
    s_cselect_b32 s32, 0, s32
    s_sub_u32 s33, s32, s31
    s_mov_b32 s31, s32
    s_cmp_eq_u32 s30, 10
    s_cbranch_scc1 L_g_last
    s_cmp_eq_u32 s30, 9
    s_cbranch_scc1 L_g_w0
    s_waitcnt vmcnt(8) lgkmcnt(0)
    s_branch L_g_w1""")
    a.label("L_g_w0")
    a("s_waitcnt vmcnt(0) lgkmcnt(0)")
    a.label("L_g_w1")
    if PROF: a(f"s_memtime s[92:93]\ns_add_u32 m0, s30, 20\ns_waitcnt lgkmcnt(0)\nv_writelane_b32 v{PV}, s92, m0")
    signal()
    for r in XA + WA: a(f"v_add_u32 v{r}, s33, v{r}")
    mm(1)
    waitcnt4()
    if PROF: a(f"s_memtime s[92:93]\ns_add_u32 m0, s30, 32\ns_waitcnt lgkmcnt(0)\nv_writelane_b32 v{PV}, s92, m0")
    reads(0, 0)
    a("s_cmp_ge_u32 s30, 8\ns_cbranch_scc1 L_g_mm")
    issue()
    a("s_branch L_g_mm")
    a.label("L_g_last")
    a("s_waitcnt lgkmcnt(0)")
    signal()
    mm(1)
    stamp(a, 3)
    a(f"""s_cmp_lt_u32 s{CT}, 5
    s_cselect_b32 s33, {f32hex(QSCALE)}, 1.0
    v_lshlrev_b32 v5, 14, v4
    v_lshl_add_u32 v5, v3, 4, v5
    s_lshl_b32 s22, s{CT}, 5
    s_lshl_b32 s23, s35, 4
    s_add_u32 s22, s22, s23
    s_lshl_b32 s22, s22, 14
    s_lshl_b32 s23, s{TT}, 10
    s_add_u32 s22, s22, s23
    s_lshl_b32 s23, s34, 9
    s_add_u32 s22, s22, s23
    s_nop 2""")
    k = 0
    for m in range(2):
        for g in range(4):
            d = 16 + 4*k; k += 1
            for t in range(2):
                r = ACC + (m*2+t)*16 + 4*g
                for i in range(4): a(f"v_mul_f32 v{r+i}, s33, v{r+i}")
                a(f"v_cvt_pk_bf16_f32 v{d+2*t}, v{r}, v{r+1}\nv_cvt_pk_bf16_f32 v{d+2*t+1}, v{r+2}, v{r+3}")
            a(f"s_add_u32 s23, s22, {WS_QKV + (m*8+2*g)*PLANE}")
            a(f"buffer_store_dwordx4 {v(d,4)}, v5, s[12:15], s23 offen sc1")
    a("s_branch L_g_done")
    a.label("L_g_skip")
    a("s_waitcnt lgkmcnt(0)\ns_barrier")
    a.label("L_g_done")

def cmul(a, d, x, z, t):
    a(f"v_pk_mul_f32 {v(t,2)}, {v(x,2)}, {v(z,2)} op_sel:[0,0] op_sel_hi:[1,0]")
    a(f"v_pk_fma_f32 {v(d,2)}, {v(x,2)}, {v(z,2)}, {v(t,2)} op_sel:[1,1,0] op_sel_hi:[0,1,1] neg_lo:[0,1,0]")
KACC = 96
def kgen(a, scr):
    DT, ER, TH = 16, 17, 18
    Z1, Z8, ZW = 20, 22, 24
    X0 = 26
    Y = 44; T = 46; T2 = 48; PK = 50; PK2 = 52
    RA = 54; FA = 56; FB = 64; WA = 72
    ACC = KACC
    a(f"""v_lshlrev_b32 v{DT}, 16, v14
    v_mul_f32 v{DT}, {f32hex(LOG2E)}, v{DT}
    v_exp_f32 v{DT}, v{DT}
    v_lshlrev_b32 v{WA}, 2, v2
    v_add_u32 v{WA}, s{scr}, v{WA}
    v_cvt_pk_bf16_f32 v{DT}, v{DT}, v{DT}
    v_and_b32 v{DT}, 0xffff0000, v{DT}
    v_and_b32 v{RA}, 31, v2
    v_lshrrev_b32 v{T}, 5, v2
    v_and_b32 v{T+1}, 15, v2
    v_xor_b32 v{T}, v{T}, v{T+1}
    v_lshlrev_b32 v{T}, 4, v{T}
    v_lshl_add_u32 v{RA}, v{RA}, 8, v{T}
    v_add_u32 v{RA}, s{scr}, v{RA}""")
    for i in range(1, 16): a(f"v_xor_b32 v{WA+i}, {16*i}, v{WA}")
    for i in range(16): a(f"v_mov_b32 v{ACC+i}, 0")
    a("s_mov_b32 s53, 0")
    lp = a.newlabel("L_kg")
    a.label(lp)
    a(f"""v_and_b32 v{ER}, 0xffff0000, v10
    v_mul_f32 v{ER}, {f32hex(LOG2E)}, v{ER}
    v_exp_f32 v{ER}, v{ER}
    v_and_b32 v{TH}, 0xffff0000, v11
    v_and_b32 v{X0}, 0xffff0000, v12
    v_cvt_pk_bf16_f32 v{ER}, v{ER}, v{ER}
    v_and_b32 v{X0+1}, 0xffff0000, v13
    v_and_b32 v{ER}, 0xffff0000, v{ER}
    v_mul_f32 v{ER}, v{ER}, v{DT}
    v_mul_f32 v{TH}, v{TH}, v{DT}
    v_mul_f32 v{ER}, {f32hex(-LOG2E)}, v{ER}
    v_mul_f32 v{TH}, 0.15915494, v{TH}
    v_mul_f32 v{X0}, v{X0}, v{DT}
    v_mul_f32 v{X0+1}, v{X0+1}, v{DT}
    v_add_f32 v{X0}, v{X0}, v{X0}
    v_add_f32 v{X0+1}, v{X0+1}, v{X0+1}
    v_lshlrev_b32 v10, 16, v10
    v_lshlrev_b32 v11, 16, v11
    v_lshlrev_b32 v12, 16, v12
    v_lshlrev_b32 v13, 16, v13""")
    for (z, p) in ((Z8, 8.0), (Z1, 1.0), (ZW, 256.0)):
        a(f"""v_mul_f32 v{T}, {f32hex(p)}, v{ER}
        v_mul_f32 v{T+1}, {f32hex(p)}, v{TH}
        v_exp_f32 v{T}, v{T}
        v_fract_f32 v{T+1}, v{T+1}
        v_cos_f32 v{z}, v{T+1}
        v_sin_f32 v{z+1}, v{T+1}
        s_nop 0
        v_mul_f32 v{z}, v{z}, v{T}
        v_mul_f32 v{z+1}, v{z+1}, v{T}""")
    def row(h, reg): return 8*(reg >> 2) + 4*h + (reg & 3)
    rows = {}
    for p in range(4): rows.setdefault(p, []).append(row(0, p)); rows.setdefault(p+4, []).append(row(1, p))
    for i, (p0, p1) in enumerate(((256, 260), (258, 262), (260, 264), (512, 768), (516, 772), (520, 776), (1024, 1536), (1032, 1544), (1280, 1792), (1288, 1800))):
        rows.setdefault(p0, []).append(row(0, 4+i)); rows.setdefault(p1, []).append(row(1, 4+i))
    def cm(d, x, z, t):
        return [f"v_pk_mul_f32 {v(t,2)}, {v(x,2)}, {v(z,2)} op_sel:[0,0] op_sel_hi:[1,0]",
                f"v_pk_fma_f32 {v(d,2)}, {v(x,2)}, {v(z,2)}, {v(t,2)} op_sel:[1,1,0] op_sel_hi:[0,1,1] neg_lo:[0,1,0]"]
    cnt = [0, 0]
    def putx(p, r):
        pk = PK + (cnt[0] & 1); cnt[0] += 1
        return [f"v_cvt_pk_bf16_f32 v{pk}, v{r}, -v{r+1}"] + [f"ds_write_b32 v{WA+(rw&15)}, v{pk} offset:{(32+rw)*256}" for rw in rows[p]]
    def puty(j, r):
        pk = PK2 + (cnt[1] & 1); cnt[1] += 1
        return [f"v_cvt_pk_bf16_f32 v{pk}, v{r}, v{r+1}", f"ds_write_b32 v{WA+(j&15)}, v{pk} offset:{j*256}"]
    xs = putx(0, X0)
    for p in range(1, 8): xs += cm(X0+2*p, X0+2*p-2, Z1, T) + putx(p, X0+2*p)
    xs += cm(X0+16, X0, Z8, T)
    for (b, n) in ((0, 7), (8, 7), (2, 1), (4, 3), (6, 1)):
        for m in range(1, n+1): xs += cm(X0+2*b, X0+2*b, ZW, T) + putx(b+256*m, X0+2*b)
    ys = [f"v_mov_b32 v{PK2+1}, 0x3f80", f"ds_write_b32 v{WA}, v{PK2+1}"] + puty(1, Z8) + cm(Y, Z8, Z8, T2) + puty(2, Y)
    for j in range(3, 32): ys += cm(Y, Y, Z8, T2) + puty(j, Y)
    for i in range(max(len(xs), len(ys))):
        if i < len(ys): a(ys[i])
        if i < len(xs): a(xs[i])
    a("s_waitcnt lgkmcnt(0)")
    def fr(ks, b):
        a(f"v_xor_b32 v{RA+1}, {32*ks}, v{RA}\nds_read_b128 {v(FA+4*b,4)}, v{RA+1} offset:{32*256}\nds_read_b128 {v(FB+4*b,4)}, v{RA+1}")
    fr(0, 0)
    for ks in range(8):
        if ks < 7: fr(ks+1, (ks+1) & 1); a("s_waitcnt lgkmcnt(2)")
        else: a("s_waitcnt lgkmcnt(0)")
        mfma32(a, ACC, FA+4*(ks&1), FB+4*(ks&1), ACC)
    a(f"s_add_u32 s53, s53, 1\ns_cmp_lt_u32 s53, 2\ns_cbranch_scc1 {lp}")

def kexpand(a, kdst):
    J, H, AD = 10, 11, 12
    a(f"""v_and_b32 v{J}, 31, v2
    v_lshrrev_b32 v{H}, 5, v2
    v_lshlrev_b32 v{AD}, 4, v{J}
    v_sub_u32 v{AD}, s{kdst}, v{AD}
    v_lshlrev_b32 v13, 3, v{H}
    v_sub_u32 v13, v{AD}, v13
    v_lshlrev_b32 v14, 9, v{H}
    v_sub_u32 v14, v{AD}, v14
    v_lshlrev_b32 v15, 10, v{H}
    v_sub_u32 v15, v{AD}, v15
    v_and_b32 v{H}, 1, v{J}
    v_cmp_eq_u32 vcc, 0, v{H}""")
    R = KACC; P0 = 20
    cv = lambda d, lo, hi: a(f"v_cvt_pk_bf16_f32 v{d}, v{lo}, v{hi}")
    cv(P0, R+3, R+2); cv(P0+1, R+1, R+0)
    a(f"ds_write_b64 v13, {v(P0,2)} offset:{4080+8}")
    cv(P0+2, R+6, R+5); cv(P0+3, R+4, R+4)
    a(f"ds_write_b64 v13, {v(P0+2,2)} offset:{4080-512+8}")
    cv(P0+4, R+9, R+9); cv(P0+5, R+8, R+8); cv(P0+6, R+8, R+7); cv(P0+7, R+7, R+7)
    a(f"ds_write_b128 v14, {v(P0+4,4)} offset:{4080-1024}")
    for sidx in range(2):
        ra, rb = R+10+2*sidx, R+11+2*sidx
        d = P0 + 8 + 4*sidx
        a(f"v_cndmask_b32 v{P0+16}, v{rb}, v{ra}, vcc")
        cv(d, rb, rb); cv(d+1, rb, P0+16); cv(d+2, ra, ra); cv(d+3, ra, ra)
        a(f"ds_write_b128 v15, {v(d,4)} offset:{4080-2048-512*sidx}")
    a(f"""v_lshlrev_b32 v{J}, 2, v{J}
    v_add_u32 v{J}, s{kdst}, v{J}
    v_mov_b32 v{H}, 0
    ds_write_b32 v{J}, v{H} offset:4096""")

def conv(a, cbase, dsk, ydst):
    AA, BA = 10, 11
    FA = [16, 80]; FB = [48, 112]; ACC = 144
    a(f"""v_and_b32 v3, 3, v2
    v_mul_u32_u24 v{AA}, {UST}, v3
    v_bfe_u32 v3, v2, 2, 2
    v_lshl_add_u32 v{AA}, v3, 7, v{AA}
    v_lshrrev_b32 v4, 4, v2
    v_lshl_add_u32 v{AA}, v4, 4, v{AA}
    v_add_u32 v{AA}, s{cbase}, v{AA}
    v_and_b32 v3, 15, v2
    v_lshlrev_b32 v3, 3, v3
    v_lshlrev_b32 v{BA}, 4, v4
    v_sub_u32 v{BA}, v{BA}, v3
    v_add_u32 v{BA}, {KOFF+120}, v{BA}
    v_add_u32 v{BA}, s{cbase}, v{BA}""")
    for i in range(32): a(f"v_mov_b32 v{ACC+i}, 0")
    def loads(b, extra):
        out = []
        for k in range(8):
            out += [f"ds_read_b64 {v(FB[b]+4*k,2)}, v{BA} offset:{512*(7-k)+extra}", f"ds_read_b64 {v(FB[b]+4*k+2,2)}, v{BA} offset:{512*(7-k)+8+extra}",
                    f"ds_read_b128 {v(FA[b]+4*k,4)}, v{AA} offset:{512*k+extra}"]
        return out
    a("s_waitcnt lgkmcnt(0)")
    a("\n".join(loads(0, 0)))
    a("s_mov_b32 s53, 0")
    lp = a.newlabel("L_cv")
    a.label(lp)
    pairs = sorted([(i, j) for i in range(8) for j in range(8) if i + j < 8], key=lambda p: (max(p), p))
    for b in range(2):
        ld = loads(b ^ 1, 64*(b+1))
        a("s_waitcnt lgkmcnt(0)")
        for n, (i, j) in enumerate(pairs):
            mfma16(a, ACC+4*(i+j), FA[b]+4*i, FB[b]+4*j, ACC+4*(i+j))
            if n < 24: a(ld[n])
    a(f"v_add_u32 v{AA}, 128, v{AA}\nv_add_u32 v{BA}, 128, v{BA}")
    a(f"s_add_u32 s53, s53, 1\ns_cmp_lt_u32 s53, 4\ns_cbranch_scc1 {lp}")
    a(f"""v_lshlrev_b32 v3, 3, v2
    v_add_u32 v4, s{cbase}, v3
    s_waitcnt lgkmcnt(0)""")
    U = FA[0]; t = FB[0]
    for b in range(8): a(f"ds_read_b64 {v(U+2*b,2)}, v4 offset:{3*UST + 384 + 512*b}")
    a("s_waitcnt lgkmcnt(0)")
    for b in range(8):
        ac = ACC + 4*b; u = U + 2*b
        a(f"""v_cvt_pk_bf16_f32 v{ac}, v{ac}, v{ac+1}
        v_cvt_pk_bf16_f32 v{ac+2}, v{ac+2}, v{ac+3}
        v_lshlrev_b32 v{t}, 16, v{u}
        v_and_b32 v{t+1}, 0xffff0000, v{u}
        v_lshlrev_b32 v{t+2}, 16, v{u+1}
        v_and_b32 v{t+3}, 0xffff0000, v{u+1}""")
        for i in range(4): a(f"v_mul_f32 v{t+i}, v{t+i}, v{dsk}")
        a(f"""v_cvt_pk_bf16_f32 v{t}, v{t}, v{t+1}
        v_cvt_pk_bf16_f32 v{t+2}, v{t+2}, v{t+3}
        v_and_b32 v{ac+1}, 0xffff0000, v{ac}
        v_lshlrev_b32 v{ac}, 16, v{ac}
        v_and_b32 v{ac+3}, 0xffff0000, v{ac+2}
        v_lshlrev_b32 v{ac+2}, 16, v{ac+2}
        v_and_b32 v{t+1}, 0xffff0000, v{t}
        v_lshlrev_b32 v{t}, 16, v{t}
        v_and_b32 v{t+3}, 0xffff0000, v{t+2}
        v_lshlrev_b32 v{t+2}, 16, v{t+2}""")
        for i in range(4): a(f"v_add_f32 v{ac+i}, v{ac+i}, v{t+i}")
        a(f"""v_cvt_pk_bf16_f32 v{ac}, v{ac}, v{ac+1}
        v_cvt_pk_bf16_f32 v{ac+1}, v{ac+2}, v{ac+3}
        buffer_store_dwordx2 {v(ac,2)}, v3, s[12:15], s{ydst} offen offset:{512*b} sc1""")

FCOFF = 36
def helper(a):
    HW, CHN, CB = 20, 21, 26
    a(f"""s_sub_u32 s{HW}, s{WV}, 4
    s_mov_b32 s{FCOFF}, 0
    s_or_b32 s22, s2, s{HW}
    s_cmp_lg_u32 s22, 0
    s_cbranch_scc1 L_h_nn""")
    srd(a, 4, P_DBG, 256)
    a(f"""s_memrealtime s[22:23]
    v_mov_b32 v3, 0
    s_waitcnt lgkmcnt(0)
    s_or_b32 s22, s22, 1
    v_mov_b32 v4, s22
    s_mov_b64 exec, 1
    buffer_store_dword v4, v3, s[4:7], 0 offen sc1
    s_mov_b64 exec, -1""")
    a.label("L_h_nn")
    a(f"""s_lshl_b32 s28, s{HW}, 14
    s_add_u32 s28, s28, {SCR}
    v_mov_b32 v6, {CNT + 44}
    v_mov_b32 v7, 1
    s_cmp_lt_u32 s{IDX}, 20
    s_cbranch_scc1 L_h_kg
    s_cmp_lt_u32 s{IDX}, 30
    s_cbranch_scc1 L_h_tr
    s_barrier""")
    lds_signal(a, 6, 7)
    get_nonce(a, 4)
    a("s_branch L_h_done")
    a.label("L_h_tr")
    a(f"""s_mul_i32 s22, s{XCD}, 10
    s_add_u32 s22, s22, s{IDX}
    s_sub_u32 s22, s22, 20
    s_lshl_b32 s22, s22, 2
    s_add_u32 s22, s22, s{HW}
    s_lshr_b32 s23, s22, 5
    s_and_b32 s24, s22, 31
    s_lshl_b32 s29, s22, 7
    s_add_u32 s29, s29, {WS_FA}
    s_mul_i32 s26, s24, {64*1280}
    s_lshl_b32 s27, s23, 7
    s_add_u32 s26, s26, s27
    s_lshl_b32 s27, s23, 18
    s_lshl_b32 s24, s24, 7
    s_add_u32 s27, s27, s24
    s_add_u32 s27, s27, {WS_UT}""")
    srd(a, 8, P_U, 2048*1280)
    transpose_tile(a, 8, 26, 1280, 12, 27, 4096, 28, ssc="sc1", after_issue="s_barrier")
    lds_signal(a, 6, 7)
    stamp(a, 2)
    get_nonce(a, 4)
    set_flag(a, 29, 4)
    stamp(a, 3)
    a("s_branch L_h_done")
    a.label("L_h_kg")
    a(f"""s_mul_i32 s{CHN}, s{XCD}, 20
    s_add_u32 s{CHN}, s{CHN}, s{IDX}
    s_lshl_b32 s{FCOFF}, s{CHN}, 7
    s_lshl_b32 s22, s{HW}, 2
    s_add_u32 s{FCOFF}, s{FCOFF}, s22
    s_add_u32 s{FCOFF}, s{FCOFF}, {WS_FC}
    s_lshl_b32 s{CHN}, s{CHN}, 2
    s_add_u32 s{CHN}, s{CHN}, s{HW}
    s_lshl_b32 s22, s{CHN}, 8
    v_lshl_add_u32 v4, v2, 2, s22
    s_lshl_b32 s22, s{CHN}, 1
    v_mov_b32 v3, s22""")
    for i in range(4):
        srd(a, 4, P_LA+2*i, 640*256)
        a(f"buffer_load_dword v{10+i}, v4, s[4:7], 0 offen")
    srd(a, 4, P_DT, 1280)
    a("buffer_load_ushort v14, v3, s[4:7], 0 offen")
    srd(a, 4, P_D, 1280)
    a("buffer_load_ushort v9, v3, s[4:7], 0 offen\ns_barrier\ns_waitcnt vmcnt(0)")
    stamp(a, 2)
    if '--nokgen' not in sys.argv: kgen(a, 28)
    stamp(a, 3)
    get_nonce(a, 4)
    a(f"""s_lshr_b32 s22, s{CHN}, 6
    s_lshl_b32 s22, s22, 12
    s_add_u32 s22, s22, {WS_FA}
    v_and_b32 v4, 31, v2
    v_lshl_add_u32 v4, v4, 7, s22""")
    lds_signal(a, 6, 7)
    if '--nopollA' in sys.argv: a(f'v_mov_b32 v6, {CNT+40}'); lds_wait(a, 6, 7)
    poll(a, [4], 1, 5)
    stamp(a, 4)
    UE, UP, UO = 40, 56, 60
    a(f"""s_mul_i32 s{CB}, s{HW}, {CHA}
    v_lshlrev_b32 v4, 4, v2
    s_lshl_b32 s27, s{CHN}, 12
    s_add_u32 s27, s27, {WS_UT}
    s_sub_u32 s28, s27, 4""")
    for i in range(4):
        a(f"buffer_load_dwordx4 {v(UE+4*i,4)}, v4, s[12:15], s27 offen offset:{1024*i} sc1")
        a(f"buffer_load_dword v{UP+i}, v4, s[12:15], s28 offen offset:{1024*i} sc1")
    a(f"""v_lshlrev_b32 v5, 3, v2
    v_min_u32 v5, 384, v5
    v_add_u32 v5, s{CB}, v5
    v_add_u32 v4, s{CB}, v4
    v_add_u32 v8, {UST + 388}, v4
    v_add_u32 v3, 388, v4
    v_mov_b32 v6, {CNT + 40}
    v_lshlrev_b32 v9, 16, v9
    s_lshl_b32 s27, s{CHN}, 12
    s_add_u32 s27, s27, {WS_YT}
    s_add_u32 s29, s{CB}, {KOFF}
    s_waitcnt vmcnt(0)
    v_writelane_b32 v{UP}, 0, 0""")
    for i in range(4):
        a(f"v_alignbit_b32 v{UO+4*i}, v{UE+4*i}, v{UP+i}, 16")
        for j in range(1, 4): a(f"v_alignbit_b32 v{UO+4*i+j}, v{UE+4*i+j}, v{UE+4*i+j-1}, 16")
    stamp(a, 5)
    lds_wait(a, 6, 7)
    stamp(a, 8)
    a("v_mov_b32 v6, 0\nv_mov_b32 v7, 0")
    for r in range(4): a(f"ds_write_b64 v5, v[6:7] offset:{r*UST}")
    for i in range(4):
        a(f"ds_write_b128 v4, {v(UE+4*i,4)} offset:{3*UST + 384 + 1024*i}")
        a(f"ds_write_b128 v4, {v(UO+4*i,4)} offset:{2*UST + 384 + 1024*i}")
        for j in range(2):
            a(f"ds_write2_b32 v8, v{UE+4*i+2*j}, v{UE+4*i+2*j+1} offset0:{2*j} offset1:{2*j+1}")
            a(f"ds_write2_b32 v3, v{UO+4*i+2*j}, v{UO+4*i+2*j+1} offset0:{2*j} offset1:{2*j+1}")
        if i < 3: a("v_add_u32 v8, 1024, v8\nv_add_u32 v3, 1024, v3")
    kexpand(a, 29)
    stamp(a, 6)
    conv(a, CB, 9, 27)
    stamp(a, 7)
    a.label("L_h_done")

HEAD5, QB, OOFF = 37, 38, 39
OOCT, OTAIL = 54, 55
KS = [40, 41, 42]; KL = [44, 45, 46]
MODE = 47
DMV = 14
def attn_ids(a):
    a(f"""s_lshl_b32 s{HEAD5}, s{XCD}, 2
    s_lshr_b32 s22, s{IDX}, 3
    s_add_u32 s{HEAD5}, s{HEAD5}, s22
    s_and_b32 s{QB}, s{IDX}, 7
    s_lshl_b32 s{OOCT}, s{HEAD5}, 16
    s_lshl_b32 s22, s{QB}, 12
    s_add_u32 s{OOCT}, s{OOCT}, s22
    s_add_u32 s{OOCT}, s{OOCT}, {WS_O}
    s_lshl_b32 s{OTAIL}, s{HEAD5}, 14
    s_lshl_b32 s22, s{QB}, 11
    s_add_u32 s{OTAIL}, s{OTAIL}, s22
    s_add_u32 s{OTAIL}, s{OTAIL}, {WS_OT}
    s_mul_i32 s{HEAD5}, s{HEAD5}, 5
    s_lshl_b32 s{OOFF}, s{HEAD5}, 14
    s_lshl_b32 s22, s{QB}, 11
    s_add_u32 s{OOFF}, s{OOFF}, s22""")

def unit_src(a, unit, src, lds):
    a(f"""s_lshr_b32 s22, s{unit}, 1
    s_and_b32 s23, s{unit}, 1
    s_mul_i32 s{lds}, s22, {PST}
    s_lshl_b32 s24, s23, 10
    s_add_u32 s{lds}, s{lds}, s24
    s_add_u32 s{lds}, s{lds}, {ARING}
    s_cmp_ge_u32 s22, 5
    s_cselect_b32 s24, 155, 0
    s_add_u32 s22, s22, s24
    s_add_u32 s22, s22, 160
    s_add_u32 s22, s22, s{HEAD5}
    s_lshl_b32 s22, s22, 14
    s_lshl_b32 s23, s23, 13
    s_add_u32 s{src}, s22, s23""")

def window1_main(a):
    attn_ids(a)
    a(f"""v_lshlrev_b32 v{DMV}, 4, v2
    v_lshlrev_b32 v3, 3, v2
    v_mov_b32 v4, -1
    v_mov_b32 v5, -1
    v_mov_b32 v6, -1
    v_mov_b32 v7, -1
    s_lshl_b32 s22, s{WV}, 10
    s_add_u32 s22, s22, s{OOCT}
    s_add_u32 s23, s22, 32768
    s_lshl_b32 s24, s{WV}, 9
    s_add_u32 s24, s24, s{OTAIL}
    buffer_store_dwordx4 v[4:7], v{DMV}, s[12:15], s22 offen sc1
    buffer_store_dwordx4 v[4:7], v{DMV}, s[12:15], s23 offen sc1
    buffer_store_dwordx2 v[4:5], v3, s[12:15], s24 offen sc1
    s_nop 0""")
    stamp(a, 4)
    get_nonce(a, 6)
    stamp(a, 5)
    a(f"""s_lshl_b32 s22, s20, 4
    s_add_u32 s22, s22, s21
    s_lshl_b32 s22, s22, 7
    s_lshl_b32 s23, s{WV}, 2
    s_add_u32 s22, s22, s23
    s_add_u32 s26, s22, {WS_FB}""")
    set_flag(a, 26, 6)
    a(f"""v_and_b32 v3, 15, v2
    v_lshrrev_b32 v4, 5, v2
    v_mul_u32_u24 v4, 160, v4
    v_bfe_u32 v5, v2, 4, 1
    v_lshl_add_u32 v4, v5, 2, v4
    s_add_u32 s22, s{HEAD5}, 160
    v_add_u32 v4, s22, v4
    v_lshrrev_b32 v4, 5, v4
    v_lshl_add_u32 v4, v3, 4, v4
    v_lshlrev_b32 v4, 7, v4
    v_add_u32 v8, {WS_FB}, v4""")
    a(f"""v_bfe_u32 v3, v2, 1, 2
    v_lshlrev_b32 v3, 2, v3
    s_and_b32 s22, s{XCD}, 3
    v_add_u32 v3, s22, v3
    v_and_b32 v4, 1, v2
    v_lshlrev_b32 v5, 3, v4
    v_bfe_u32 v6, v2, 3, 2
    v_lshl_add_u32 v5, v6, 1, v5
    s_lshr_b32 s22, s{XCD}, 2
    v_add_u32 v5, s22, v5
    v_lshl_add_u32 v3, v3, 4, v5
    s_lshl_b32 s22, s{QB}, 1
    v_add_u32 v4, s22, v4
    v_bfe_u32 v5, v2, 1, 1
    v_lshlrev_b32 v5, 2, v5
    v_add_u32 v5, s{HEAD5}, v5
    v_lshrrev_b32 v5, 5, v5
    v_lshl_add_u32 v4, v4, 4, v5
    v_cmp_gt_u32 vcc, 32, v2
    v_mov_b32 v6, {CNT + 44}
    s_nop 0
    v_cndmask_b32 v3, v4, v3, vcc
    v_lshlrev_b32 v3, 7, v3
    v_add_u32 v9, {WS_FB}, v3""")
    lds_wait(a, 6, 7)
    poll(a, [8, 9], 4, 16)
    stamp(a, 6)
    a(f"s_mov_b32 s30, s{WV}")
    a.label("L_w1_q")
    a(f"""s_lshr_b32 s22, s30, 1
    s_and_b32 s23, s30, 1
    s_lshl_b32 s22, s22, 14
    s_lshl_b32 s23, s23, 10
    s_add_u32 s22, s22, s23
    s_add_u32 s22, s22, s{OOFF}
    s_lshl_b32 s23, s30, 10
    s_add_u32 m0, s23, {QLDS}
    s_add_u32 s30, s30, 4
    buffer_load_dwordx4 v{DMV}, s[12:15], s22 offen sc1 lds
    s_cmp_lt_u32 s30, 10
    s_cbranch_scc1 L_w1_q""")

def first_chunks(a, nwaves, lab):
    a(f"s_mov_b32 s30, s{WV}")
    a.label(lab)
    unit_src(a, 30, 26, 27)
    a(f"""s_add_u32 m0, s27, {SLOT}
    s_add_u32 s30, s30, {nwaves}
    buffer_load_dwordx4 v{DMV}, s[12:15], s26 offen sc1 lds
    s_add_u32 m0, s27, {2*SLOT}
    s_add_u32 s26, s26, 1024
    buffer_load_dwordx4 v{DMV}, s[12:15], s26 offen sc1 lds
    s_cmp_lt_u32 s30, 20
    s_cbranch_scc1 {lab}""")

Q0 = [16, 22]; Q1 = [20, 26]
KF = [28, 34]; VF = [40, 48]; P = [56, 64]; S = [72, 88]; O = [104, 120]
KA, K4, VA, MSK, MS4, WOV = 8, 9, 10, 11, 12, 13
def set_m(a, q, M):
    a(f"""v_sub_f32 v{M}, 0, v{M}
    v_and_b32 v{M+1}, 0xffff0000, v{M}
    v_sub_f32 v{M+2}, v{M}, v{M+1}
    v_and_b32 v{M+3}, 0xffff0000, v{M+2}
    v_sub_f32 v{M+2}, v{M+2}, v{M+3}
    v_lshrrev_b32 v{M+1}, 16, v{M+1}
    v_or_b32 v{M+1}, v{M+1}, v{M+3}
    v_lshrrev_b32 v{M+2}, 16, v{M+2}
    v_cndmask_b32 v{Q1[q]}, v{M+1}, v{Q1[q]}, vcc
    v_cndmask_b32 v{Q1[q]+1}, v{M+2}, v{Q1[q]+1}, vcc""")
def tilemax(a, M, s, first):
    if first: a(f"v_max3_f32 v{M}, v{s}, v{s+1}, v{s+2}")
    else: a(f"v_max3_f32 v{M}, v{M}, v{s}, v{s+1}\nv_max_f32 v{M}, v{M}, v{s+2}")
    for i in range(3, 15, 2): a(f"v_max3_f32 v{M}, v{M}, v{s+i}, v{s+i+1}")
    a(f"v_max_f32 v{M}, v{M}, v{s+15}")
def halfmax(a, M):
    a(f"v_mov_b32 v{M+1}, v{M}\ns_nop 1\nv_permlane32_swap_b32 v{M}, v{M+1}\nv_max_f32 v{M}, v{M}, v{M+1}")

EXC = 107520
YSRC = EXC + 24576
def attention(a):
    J = "\n".join
    KH = 48
    srd(a, 8, P_WO, 640*1280)
    def restart_setup():
        for j in range(3):
            a(f"s_add_u32 s30, s{WV}, {8*j}")
            unit_src(a, 30, KS[j], KL[j])
            a(f"s_add_u32 s{KS[j]}, s{KS[j]}, 2048")
        a(f"""v_mul_u32_u24 v{KA}, {2*PST}, v1
        v_add_u32 v{KA}, v{KA}, v15
        v_add_u32 v{KA}, {ARING + SLOT}, v{KA}
        v_mul_u32_u24 v{K4}, {CONSTP - ARING - SLOT - 4*PST}, v1
        v_add_u32 v{K4}, v{K4}, v15
        v_add_u32 v{K4}, {ARING + SLOT + 4*PST}, v{K4}
        v_xor_b32 v{MS4}, 1, v1
        v_and_b32 v4, 3, v2
        v_bfe_u32 v5, v2, 4, 1
        v_lshl_add_u32 v4, v5, 2, v4
        v_cmp_gt_u32 vcc, 5, v4
        v_mul_u32_u24 v4, {PST}, v4
        v_add_u32 v4, {ARING + SLOT + 5*PST}, v4
        v_mov_b32 v5, {CONSTP}
        v_cndmask_b32 v{VA}, v5, v4, vcc
        v_cndmask_b32 v{MSK}, 0, 1, vcc
        v_bfe_u32 v4, v2, 2, 2
        v_lshl_add_u32 v4, v1, 2, v4
        v_lshl_add_u32 v{VA}, v4, 3, v{VA}
        s_lshl_b32 s49, s{KH}, 10
        v_mad_i32_i24 v{VA}, v{MSK}, s49, v{VA}
        s_mov_b32 s30, 0
        s_mov_b32 s31, {SLOT}
        s_mov_b32 s32, 0
        s_lshr_b32 s22, s{IDX}, 2
        s_mul_i32 s34, s22, 160
        s_mul_i32 s22, s{WV}, {2*6*1280}
        s_add_u32 s34, s34, s22
        s_mul_i32 s35, s{WV}, {2*960}""")
        for i in range(32): a(f"v_mov_b32 v{O[0]+i}, 0")
        for i in range(8): a(f"v_mov_b32 v{P[1]+i}, 0\nv_mov_b32 v{VF[1]+i}, 0")
    def kr(t, b): return [f"ds_read_b64 {v(KF[b],2)}, v{KA} offset:{t*256}", f"ds_read_b64 {v(KF[b]+2,2)}, v{KA} offset:{t*256+PST}", f"ds_read_b64 {v(KF[b]+4,2)}, v{K4} offset:{t*256}"]
    def vr(t, b): return [f"ds_read_b64_tr_b16 {v(VF[b]+2*j,2)}, v{VA} offset:{t*256+j*64}" for j in range(4)]
    def shift(sreg):
        a(f"v_add_u32 v{KA}, s{sreg}, v{KA}\nv_mad_i32_i24 v{K4}, v{MS4}, s{sreg}, v{K4}")
    a(f"""s_lshr_b32 s{KH}, s{WV}, 2
    v_lshlrev_b32 v{DMV}, 4, v2
    v_mul_u32_u24 v6, 205, v2
    v_lshrrev_b32 v6, 11, v6
    v_mul_u32_u24 v7, 10, v6
    v_sub_u32 v7, v2, v7
    v_lshlrev_b32 v7, 4, v7
    v_mul_u32_u24 v6, 1280, v6
    v_add_u32 v{WOV}, v6, v7
    s_mov_b32 s{MODE}, 0
    v_and_b32 v3, 31, v2
    v_lshrrev_b32 v1, 5, v2
    v_lshlrev_b32 v15, 3, v3""")
    a.label("L_at_restart")
    restart_setup()
    if M0: shift(49)
    a(f"""s_and_b32 s22, s{WV}, 3
    s_lshl_b32 s22, s22, 9
    s_add_u32 s22, s22, {QLDS}
    v_add_u32 v4, s22, v15
    v_lshl_add_u32 v5, v1, 12, v4
    v_cmp_gt_u32 vcc, 32, v2
    s_waitcnt vmcnt(0) lgkmcnt(0)
    s_barrier""")
    stamp(a, 9)
    a(J(kr(0, 0)))
    a(f"s_cmp_lg_u32 s{MODE}, 0\ns_cbranch_scc1 L_at_havem")
    for q in range(2):
        a(f"""ds_read_b64 {v(Q0[q],2)}, v5 offset:{q*256}
        ds_read_b64 {v(Q0[q]+2,2)}, v5 offset:{q*256+2048}
        ds_read_b64 {v(Q1[q],2)}, v4 offset:{q*256+8192}""")
    a(f"s_cmp_eq_u32 s{FCOFF}, 0\ns_cbranch_scc1 L_at_nfc")
    set_flag(a, FCOFF, 6)
    a.label("L_at_nfc")
    a("s_waitcnt lgkmcnt(0)")
    for q in range(2): a(f"v_cndmask_b32 v{Q1[q]}, 0, v{Q1[q]}, vcc\nv_cndmask_b32 v{Q1[q]+1}, 0, v{Q1[q]+1}, vcc")
    if not M0:
        for q in range(2):
            mfma32(a, S[q], KF[0], Q0[q]); mfma32x8(a, S[q], KF[0]+4, Q1[q], S[q])
        a("s_nop 7\ns_nop 1")
        for q in range(2):
            tilemax(a, P[0], S[q], True); halfmax(a, P[0]); set_m(a, q, P[0])
    isave = len(a.lines)
    a.label("L_at_havem")
    if not M0:
        shift(49)
        a(J(kr(0, 0)))
    a(f"s_cmp_eq_u32 s{MODE}, 1\ns_cbranch_scc1 L_at_maxpass")
    a("s_waitcnt lgkmcnt(0)")
    mfma32(a, S[0], KF[0], Q0[0]); mfma32x8(a, S[0], KF[0]+4, Q1[0], S[0])
    a("s_nop 7\n.p2align 3")
    stamp(a, 10)
    a.label("L_at_loop")
    for T in range(4):
        kb = T & 1
        for q in range(2):
            o = q ^ 1
            ex = [f"v_exp_f32 v{S[q]+i}, v{S[q]+i}" for i in range(16)]
            cv = [f"v_cvt_pk_bf16_f32 v{P[q]+i}, v{S[q]+2*i}, v{S[q]+2*i+1}" for i in range(8)]
            kq = kb if q == 0 else kb ^ 1
            vq = kb ^ 1 if q == 0 else kb
            rd = (kr((T+1) & 3, kb ^ 1) + vr(T, kb)) if q == 0 else []
            if q == 0: a(f"s_setprio {3 - ((T+1) & 3)}")
            if q == 0 and T == 3:
                a(f"""s_add_u32 s33, s31, {SLOT}
                s_cmp_eq_u32 s33, {3*SLOT}
                s_cselect_b32 s33, 0, s33
                s_sub_u32 s29, s33, s31
                s_mov_b32 s31, s33""")
                shift(29)
                a("s_waitcnt vmcnt(0)\ns_barrier")
            if q == 1: a("s_waitcnt lgkmcnt(0)")
            mfma32(a, S[o], KF[kq], Q0[o])
            a(J(rd[0:3] + ex[0:4] + cv[0:1]))
            mfma32x8(a, S[o], KF[kq]+4, Q1[o], S[o])
            a(J(rd[3:5] + ex[4:6] + cv[1:2] + ex[6:8] + cv[2:3]))
            mfma32(a, O[o], VF[vq], P[o], O[o])
            a(J(rd[5:7] + ex[8:10] + cv[3:4] + ex[10:12] + cv[4:5]))
            mfma32(a, O[o], VF[vq]+4, P[o]+4, O[o])
            if q == 0 and T == 3:
                a(f"s_cmp_ge_u32 s30, 6\ns_cbranch_scc1 L_at_late")
                for j in range(3):
                    if j == 2: a(f"s_cmp_ge_u32 s{WV}, 4\ns_cbranch_scc1 L_at_n3")
                    a(f"s_add_u32 m0, s{KL[j]}, s32\ns_nop 0\nbuffer_load_dwordx4 v{DMV}, s[12:15], s{KS[j]} offen sc1 lds\ns_add_u32 s{KS[j]}, s{KS[j]}, 1024")
                a.label("L_at_n3")
                a(f"s_add_u32 s32, s32, {SLOT}\ns_cmp_eq_u32 s32, {3*SLOT}\ns_cselect_b32 s32, 0, s32")
                a.label("L_at_wo")
                a(f"""s_mov_b32 exec_hi, 0x0fffffff
                s_mov_b32 m0, s35
                s_add_u32 s22, s34, {6*1280}
                buffer_load_dwordx4 v{WOV}, s[8:11], s34 offen lds
                s_add_u32 m0, s35, 960
                s_add_u32 s34, s34, {16*6*1280}
                buffer_load_dwordx4 v{WOV}, s[8:11], s22 offen lds
                s_mov_b32 exec_hi, -1
                s_add_u32 s35, s35, {16*960}""")
                a.label("L_at_back")
            a(J(ex[12:14] + cv[5:6] + ex[14:16]))
            if q == 1 and T == 3: a(f"v_mad_i32_i24 v{VA}, v{MSK}, s29, v{VA}")
            a(J(cv[6:8]))
    a("s_add_u32 s30, s30, 1\ns_cmp_lt_u32 s30, 8\ns_cbranch_scc1 L_at_loop")
    mfma32(a, O[1], VF[1], P[1], O[1])
    mfma32(a, O[1], VF[1]+4, P[1]+4, O[1])
    stamp(a, 11)
    a(f"""s_setprio 0
    s_mul_i32 s22, s{WV}, 3072
    s_add_u32 s22, s22, {EXC}
    v_add_u32 v4, s22, v{DMV}
    s_xor_b32 s22, s{WV}, 4
    s_mul_i32 s22, s22, 3072
    s_add_u32 s22, s22, {EXC}
    v_add_u32 v5, s22, v{DMV}
    v_mov_b32 v6, {CNT + 48}
    v_mov_b32 v7, 1
    v_mov_b32 v{S[1]+2}, {f32hex(2.0**110)}""")
    a(f"v_add_f32 v{S[1]}, abs(v{O[0]}), abs(v{O[0]+1})")
    for i in range(2, 13): a(f"v_add_f32 v{S[1]}, v{S[1]}, abs(v{O[0]+i})")
    a(f"s_cmp_eq_u32 s{KH}, 0\ns_cbranch_scc1 L_at_c0")
    for i in range(3): a(f"ds_write_b128 v4, {v(O[0]+4*i,4)} offset:{i*1024}")
    if M0: a(f"v_mov_b32 v{S[1]+3}, v{O[0]+12}")
    for i in range(12): a(f"v_mov_b32 v{O[0]+i}, v{O[1]+i}")
    a("s_branch L_at_c1")
    a.label("L_at_c0")
    for i in range(3): a(f"ds_write_b128 v4, {v(O[1]+4*i,4)} offset:{i*1024}")
    if M0: a(f"v_mov_b32 v{S[1]+3}, v{O[0]+12}")
    a.label("L_at_c1")
    for i in range(13): a(f"v_add_f32 v{S[1]}, v{S[1]}, abs(v{O[1]+i})")
    a(f"v_cmp_nlt_f32 vcc, v{S[1]}, v{S[1]+2}")
    if M0:
        a(f"""v_min_f32 v{S[1]+3}, v{S[1]+3}, v{O[1]+12}
        v_mov_b32 v{S[1]+2}, {f32hex(2.0**-60)}
        v_cmp_lt_f32 s[26:27], v{S[1]+3}, v{S[1]+2}
        s_nop 0
        s_or_b64 vcc, vcc, s[26:27]""")
    a(f"""s_cbranch_vccz L_at_nf
    ds_write_b32 v6, v7""")
    a.label("L_at_nf")
    a(f"""s_waitcnt vmcnt(0) lgkmcnt(0)
    s_barrier
    ds_read_b32 v7, v6""")
    for i in range(3): a(f"ds_read_b128 {v(S[0]+4*i,4)}, v5 offset:{i*1024}")
    a(f"""v_lshlrev_b32 v3, 1, v15
    v_lshl_add_u32 v3, v1, 15, v3
    s_and_b32 s22, s{WV}, 3
    s_lshl_b32 s22, s22, 1
    s_add_u32 s22, s22, s{KH}
    s_lshl_b32 s23, s22, 8
    s_add_u32 s23, s23, s{OTAIL}
    s_lshl_b32 s22, s22, 9
    s_add_u32 s22, s22, s{OOCT}
    s_waitcnt lgkmcnt(3)
    v_readfirstlane_b32 s26, v7
    s_cmp_gt_u32 s26, s{MODE}
    s_cbranch_scc1 L_at_fallback
    s_waitcnt lgkmcnt(0)""")
    for i in range(12): a(f"v_add_f32 v{O[0]+i}, v{O[0]+i}, v{S[0]+i}")
    a(f"""v_mov_b32 v{S[0]}, v{O[0]+8}
    v_mov_b32 v{S[0]+1}, v{O[0]+8}
    s_nop 1
    v_permlane32_swap_b32 v{S[0]}, v{S[0]+1}
    v_rcp_f32 v{S[0]}, v{S[0]+1}
    s_nop 0""")
    for i in range(12): a(f"v_mul_f32 v{O[0]+i}, v{O[0]+i}, v{S[0]}")
    for i in range(6): a(f"v_cvt_pk_bf16_f32 v{P[0]+i}, v{O[0]+2*i}, v{O[0]+2*i+1}")
    a(f"""buffer_store_dwordx4 {v(P[0],4)}, v3, s[12:15], s22 offen sc1
    s_mov_b32 exec_hi, 0
    buffer_store_dwordx2 {v(P[0]+4,2)}, v15, s[12:15], s23 offen sc1
    s_mov_b32 exec_hi, -1""")
    stamp(a, 12)

    def cold():
        a.label("L_at_late")
        a(f"""s_cmp_eq_u32 s30, 7
        s_cbranch_scc1 L_at_l7
        s_mul_i32 s22, s{XCD}, {20*128}
        s_add_u32 s22, s22, {WS_FC}
        v_min_u32 v6, 19, v2
        v_lshl_add_u32 v6, v6, 7, s22
        buffer_load_dwordx4 v[136:139], v6, s[12:15], 0 offen sc1
        s_branch L_at_wo""")
        a.label("L_at_l7")
        poll(a, [6], 4, 136, preloaded=True)
        a(f"""v_lshrrev_b32 v4, 3, v2
        v_and_b32 v5, 7, v2
        v_lshlrev_b32 v5, 4, v5
        v_lshl_add_u32 v4, v4, 12, v5
        s_mul_i32 s22, s{XCD}, {80*4096}
        s_lshl_b32 s23, s{IDX}, 7
        s_add_u32 s22, s22, s23
        s_lshl_b32 s23, s{WV}, 15
        s_add_u32 s22, s22, s23
        s_add_u32 s22, s22, {WS_YT}
        s_lshl_b32 s23, s{WV}, 10
        s_add_u32 m0, s23, {YSRC}
        s_cmp_ge_u32 s{WV}, 2
        buffer_load_dwordx4 v4, s[12:15], s22 offen sc1 lds
        s_cbranch_scc1 L_at_back
        s_add_u32 m0, m0, 8192
        s_add_u32 s22, s22, {64*4096}
        buffer_load_dwordx4 v4, s[12:15], s22 offen sc1 lds
        s_branch L_at_back""")
        a.label("L_at_fallback")
        a(f"s_mov_b32 s{MODE}, 1")
        a.label("L_at_refill")
        a("s_waitcnt vmcnt(0) lgkmcnt(0)\ns_barrier")
        first_chunks(a, 8, "L_at_fc2")
        a("s_branch L_at_restart")
        a.label("L_at_maxpass")
        MX = [P[0], P[1]]
        for q in range(2):
            a(f"v_cndmask_b32 v{Q1[q]}, 0, v{Q1[q]}, vcc\nv_cndmask_b32 v{Q1[q]+1}, 0, v{Q1[q]+1}, vcc\nv_mov_b32 v{MX[q]}, 0xff800000")
        for j in range(3): a(f"s_sub_u32 s{KS[j]}, s{KS[j]}, 1024")
        a.label("L_at_mloop")
        for T in range(4):
            a(J(kr(T, 0)) + "\ns_waitcnt lgkmcnt(0)")
            for q in range(2):
                mfma32(a, S[q], KF[0], Q0[q]); mfma32x8(a, S[q], KF[0]+4, Q1[q], S[q])
            a("s_nop 7\ns_nop 3")
            for q in range(2): tilemax(a, MX[q], S[q], False)
        a("s_add_u32 s30, s30, 1\ns_cmp_eq_u32 s30, 8\ns_cbranch_scc1 L_at_mdone\ns_barrier")
        for j in range(3):
            if j == 2: a(f"s_cmp_ge_u32 s{WV}, 4\ns_cbranch_scc1 L_at_m3")
            a(f"s_add_u32 m0, s{KL[j]}, {SLOT}\ns_nop 0\nbuffer_load_dwordx4 v{DMV}, s[12:15], s{KS[j]} offen sc1 lds\ns_add_u32 s{KS[j]}, s{KS[j]}, 1024")
        a.label("L_at_m3")
        a("s_waitcnt vmcnt(0)\ns_barrier\ns_branch L_at_mloop")
        a.label("L_at_mdone")
        a(f"""s_lshl_b32 s22, s{WV}, 10
        s_add_u32 s22, s22, {ARING + 2*SLOT}
        v_add_u32 v4, s22, v{DMV}
        s_xor_b32 s22, s{WV}, 4
        s_lshl_b32 s22, s22, 10
        s_add_u32 s22, s22, {ARING + 2*SLOT}
        v_add_u32 v5, s22, v{DMV}""")
        for q in range(2): halfmax(a, MX[q]); a(f"ds_write_b32 v4, v{MX[q]} offset:{4*q}")
        a("s_waitcnt lgkmcnt(0)\ns_barrier")
        for q in range(2): a(f"ds_read_b32 v{S[0]+q}, v5 offset:{4*q}")
        a("s_waitcnt lgkmcnt(0)")
        for q in range(2):
            a(f"v_max_f32 v{MX[q]}, v{MX[q]}, v{S[0]+q}"); set_m(a, q, MX[q])
        a(f"s_mov_b32 s{MODE}, 2\ns_branch L_at_refill")
    return cold

def tail(a):
    YIMG = ARING + 2*SLOT + 1024
    OIMG = YIMG + 10240 - 1024
    PART = EXC
    OIMG = PART + 20480
    assert OIMG + 10240 <= YIMG and YIMG + 10240 <= CNT
    srd(a, 8, P_OUT, 2048*2560)
    OF = 28; ACC = 8; WF = 68
    TW, KH = 20, 21
    a(f"""v_bfe_u32 v3, v2, 2, 2
    v_lshlrev_b32 v3, 7, v3
    v_lshrrev_b32 v4, 4, v2
    v_lshl_add_u32 v3, v4, 5, v3
    v_and_b32 v5, 3, v2
    v_lshl_add_u32 v3, v5, 3, v3
    s_lshl_b32 s22, s{WV}, 9
    s_add_u32 s22, s22, {YSRC}
    v_add_u32 v3, s22, v3
    ds_read_b64_tr_b16 v[8:9], v3
    ds_read_b64_tr_b16 v[10:11], v3 offset:4096
    ds_read_b64_tr_b16 v[12:13], v3 offset:8192
    v_mul_u32_u24 v6, 160, v2
    s_lshl_b32 s22, s{WV}, 3
    s_add_u32 s22, s22, {YIMG}
    v_add_u32 v6, s22, v6
    s_and_b32 s{TW}, s{WV}, 3
    s_lshr_b32 s{KH}, s{WV}, 2
    s_waitcnt lgkmcnt(0)
    ds_write_b64 v6, v[8:9]
    ds_write_b64 v6, v[10:11] offset:64
    s_cmp_ge_u32 s{WV}, 4
    s_cbranch_scc1 L_t_y3
    ds_write_b64 v6, v[12:13] offset:128""")
    a.label("L_t_y3")
    a(f"""v_mul_u32_u24 v6, 6554, v0
    v_lshrrev_b32 v6, 16, v6
    v_mul_u32_u24 v7, 10, v6
    v_sub_u32 v7, v0, v7
    v_mul_u32_u24 v6, 2560, v6
    v_lshl_add_u32 v6, v7, 4, v6
    v_add_u32 v12, 512, v0
    v_mul_u32_u24 v7, 6554, v12
    v_lshrrev_b32 v7, 16, v7
    v_mul_u32_u24 v13, 10, v7
    v_sub_u32 v13, v12, v13
    v_mul_u32_u24 v7, 2560, v7
    v_lshl_add_u32 v7, v13, 4, v7
    v_lshlrev_b32 v12, 4, v0
    v_add_u32 v12, {YIMG}, v12
    s_mul_i32 s26, s{IDX}, {64*2560}
    s_mul_i32 s27, s{XCD}, 160
    s_add_u32 s26, s26, s27
    s_waitcnt lgkmcnt(0)
    s_barrier
    ds_read_b128 v[16:19], v12
    ds_read_b128 v[20:23], v12 offset:8192""")
    a(f"""v_and_b32 v3, 15, v2
    v_lshlrev_b32 v5, 4, v3
    v_lshl_add_u32 v5, v4, 15, v5
    v_lshlrev_b32 v24, 3, v3
    v_lshl_add_u32 v24, v4, 14, v24
    v_lshlrev_b32 v25, 14, v3
    s_lshl_b32 s29, s{XCD}, 2
    s_and_b32 s22, s{IDX}, 3
    s_add_u32 s29, s29, s22
    s_lshl_b32 s22, s29, 2
    s_add_u32 s22, s22, s{TW}
    s_lshl_b32 s27, s22, 8
    s_lshl_b32 s23, s{KH}, 20
    s_add_u32 s27, s27, s23
    s_add_u32 s27, s27, {WS_O}
    s_lshl_b32 s28, s22, 7
    s_lshl_b32 s23, s{KH}, 18
    s_add_u32 s28, s28, s23
    s_add_u32 s28, s28, {WS_OT}
    v_bfe_u32 v26, v2, 2, 2
    v_lshrrev_b32 v27, 5, v2
    v_mul_u32_u24 v27, 20, v27
    v_bfe_u32 v14, v2, 4, 1
    v_lshl_add_u32 v27, v14, 2, v27
    v_add_u32 v27, v27, v26
    v_mul_u32_u24 v14, 20, v4
    v_add3_u32 v26, v14, v26, 16
    v_and_b32 v14, 3, v2
    v_lshlrev_b32 v14, 3, v14
    s_mul_i32 s22, s{KH}, {320*160}
    v_add_u32 v14, s22, v14
    v_mul_u32_u24 v27, 160, v27
    v_mul_u32_u24 v26, 160, v26
    v_add_u32 v15, v27, v14
    v_add_u32 v14, v26, v14
    s_waitcnt lgkmcnt(0)
    buffer_store_dwordx4 v[16:19], v6, s[8:11], s26 offen
    s_cmp_ge_u32 s{WV}, 2
    s_cbranch_scc1 L_t_y4
    buffer_store_dwordx4 v[20:23], v7, s[8:11], s26 offen""")
    a.label("L_t_y4")
    WA_, WT_ = 6, 7
    a(f"v_mov_b32 v{WA_}, v15\nv_mov_b32 v{WT_}, v14\nv_mov_b32 v1, v24\nv_mov_b32 v248, v25\ns_mov_b32 s50, 0")
    def wr(i, slot):
        for m in range(5):
            for hf in range(2):
                if i < 8: a(f"ds_read_b64_tr_b16 {v(WF+slot*20+4*m+2*hf,2)}, v{WA_} offset:{(40*i+8*hf)*160+32*m}")
                else: a(f"ds_read_b64_tr_b16 {v(WF+slot*20+4*m+2*hf,2)}, v{WT_} offset:{(160*(i-8)+80*hf)*160+32*m}")
    for i in range(1, 9): wr(i, i)
    stamp(a, 13)
    a.label("L_t_p1")
    a(f"""buffer_load_dword v249, v248, s[12:15], s28 offen sc1
    s_add_u32 s50, s50, 1
    s_waitcnt vmcnt(0)
    v_cmp_eq_u32 vcc, -1, v249
    s_cmp_gt_u32 s50, {SPIN}
    s_cbranch_scc1 L_t_p2
    s_cbranch_vccnz L_t_p1""")
    a.label("L_t_p2")
    stamp(a, 14)
    wr(0, 0)
    a("s_mov_b32 s22, s27")
    for i in range(8): a(f"buffer_load_dwordx4 {v(OF+4*i,4)}, v5, s[12:15], s22 offen sc1\ns_add_u32 s22, s22, {4*32768}")
    a("s_mov_b32 s22, s28")
    for i in range(4): a(f"buffer_load_dwordx2 {v(OF+32+2*i,2)}, v1, s[12:15], s22 offen sc1\ns_add_u32 s22, s22, {4*PLANE}")
    a("s_add_u32 s50, s50, 1\ns_waitcnt lgkmcnt(0)")
    for i in range(10):
        a(f"s_waitcnt vmcnt({11-i if i < 8 else (2 if i == 8 else 0)})" + (" lgkmcnt(0)" if i == 9 else ""))
        slot = i if i < 9 else 0
        for m in range(5): mfma16(a, ACC+4*m, WF+slot*20+4*m, OF+4*i, ACC+4*m if i else None)
        r = OF + 4*i
        if i == 0: a(f"v_max3_u32 v249, v{r}, v{r+1}, v{r+2}\nv_max_u32 v249, v249, v{r+3}"); wr(9, 0)
        else: a(f"v_max3_u32 v249, v249, v{r}, v{r+1}\nv_max3_u32 v249, v249, v{r+2}, v{r+3}")
    a(f"""v_cmp_eq_u32 vcc, -1, v249
    s_cmp_gt_u32 s50, {SPIN}
    s_cbranch_scc1 L_t_go
    s_cbranch_vccnz L_t_p2""")
    a.label("L_t_go")
    stamp(a, 15)
    a(f"""v_lshlrev_b32 v7, 4, v2
    s_mul_i32 s27, s{TW}, 5120
    s_add_u32 s27, s27, {PART}
    v_add_u32 v6, s27, v7
    s_cmp_eq_u32 s{KH}, 0
    s_cbranch_scc1 L_t_r0
    s_nop 1""")
    for m in range(5): a(f"ds_write_b128 v6, {v(ACC+4*m,4)} offset:{m*1024}")
    a("s_waitcnt lgkmcnt(0)\ns_barrier\ns_branch L_t_fin")
    a.label("L_t_r0")
    a(f"""s_mul_i32 s27, s{TW}, 2560
    s_add_u32 s27, s27, {OIMG}
    v_mul_u32_u24 v3, 160, v3
    v_lshl_add_u32 v3, v4, 3, v3
    v_add_u32 v3, s27, v3
    v_add_u32 v7, s27, v7""")
    for j in range(3):
        a(f"""v_add_u32 v{WF+8}, {64*j}, v2
        v_mul_u32_u24 v{WF+9}, 205, v{WF+8}
        v_lshrrev_b32 v{WF+9}, 11, v{WF+9}
        v_mul_u32_u24 v{WF+10}, 10, v{WF+9}
        v_sub_u32 v{WF+10}, v{WF+8}, v{WF+10}
        v_mul_u32_u24 v{WF+9}, 2560, v{WF+9}
        v_lshl_add_u32 v{WF+j}, v{WF+10}, 4, v{WF+9}""")
    a(f"""s_lshl_b32 s27, s29, 2
    s_add_u32 s27, s27, s{TW}
    s_mul_i32 s27, s27, {16*2560}
    s_lshr_b32 s28, s{IDX}, 2
    s_mul_i32 s28, s28, 160
    s_add_u32 s27, s27, s28
    s_add_u32 s27, s27, 1280
    s_barrier""")
    for m in range(5): a(f"ds_read_b128 {v(OF+4*m,4)}, v6 offset:{m*1024}")
    for m in range(5):
        a(f"s_waitcnt lgkmcnt(4)")
        for i in range(4): a(f"v_add_f32 v{ACC+4*m+i}, v{ACC+4*m+i}, v{OF+4*m+i}")
        a(f"v_cvt_pk_bf16_f32 v{ACC+4*m}, v{ACC+4*m}, v{ACC+4*m+1}\nv_cvt_pk_bf16_f32 v{ACC+4*m+1}, v{ACC+4*m+2}, v{ACC+4*m+3}")
        a(f"ds_write_b64 v3, {v(ACC+4*m,2)} offset:{32*m}")
    for j in range(3): a(f"ds_read_b128 {v(OF+24+4*j,4)}, v7 offset:{1024*j}")
    for j in range(3):
        if j == 2: a("s_mov_b32 exec_hi, 0")
        a(f"s_waitcnt lgkmcnt({2-j})\nbuffer_store_dwordx4 {v(OF+24+4*j,4)}, v{WF+j}, s[8:11], s27 offen")
    a("s_mov_b32 exec_hi, -1")
    a.label("L_t_fin")

def main(path):
    a = Asm()
    nm = NAME + "_kernel"
    a(f".globl {nm}\n.p2align 8\n.type {nm},@function")
    a.label(nm)
    a(f"""s_cmp_ge_u32 s2, 256
    s_cbranch_scc1 L_end
    s_load_dwordx16 s[64:79], s[0:1], 0
    s_load_dwordx8 s[80:87], s[0:1], 64
    s_load_dwordx2 s[88:89], s[0:1], 96
    v_lshrrev_b32 v1, 6, v0
    v_and_b32 v2, 63, v0
    v_readfirstlane_b32 s{WV}, v1
    s_and_b32 s{XCD}, s2, 7
    s_lshr_b32 s{IDX}, s2, 3
    v_min_u32 v3, 47, v2
    v_lshlrev_b32 v3, 2, v3
    v_add_u32 v3, {CNT}, v3
    v_mov_b32 v4, 0
    s_waitcnt lgkmcnt(0)""")
    if PROF: a(f"v_mov_b32 v{PV}, 0")
    stamp(a, 0, True); stamp(a, 1)
    if PROF: a(f"s_getreg_b32 s92, hwreg(HW_REG_XCC_ID)\nv_writelane_b32 v{PV}, s92, 63")
    srd(a, 12, P_WS, WS_SIZE)
    a(f"s_cmp_ge_u32 s{WV}, 4\ns_cbranch_scc1 L_helper")
    a(f"ds_write_b32 v3, v4\ns_mov_b32 s{FCOFF}, 0\ns_setprio 1")
    gemm(a)
    a("s_setprio 0")
    window1_main(a)
    first_chunks(a, 4, "L_w1_fc")
    a(f"""v_lshlrev_b32 v3, 2, v0
    v_add_u32 v3, {CONSTP}, v3
    v_and_b32 v4, 1, v0
    v_cmp_eq_u32 vcc, 0, v4
    v_mov_b32 v4, 0x3f803f80
    v_mov_b32 v5, 0x00003f80
    v_cndmask_b32 v4, v5, v4, vcc
    ds_write_b32 v3, v4""")
    stamp(a, 7)
    a("s_branch L_attn")
    a.label("L_helper")
    helper(a)
    attn_ids(a)
    a.label("L_attn")
    cold = attention(a)
    tail(a)
    if PROF:
        a("s_waitcnt vmcnt(0)")
        stamp(a, 16); stamp(a, 17, True)
        a(f"""s_lshl_b32 s22, s2, 3
        s_add_u32 s22, s22, s{WV}
        s_lshl_b32 s22, s22, 8
        s_add_u32 s22, s22, {WS_PROF}
        v_lshlrev_b32 v3, 2, v2
        buffer_store_dword v{PV}, v3, s[12:15], s22 offen""")
        if "--dbg" in sys.argv:
            wsel = int(sys.argv[sys.argv.index("--dbg") + 1])
            a(f"s_lshl_b32 s22, s2, 3\ns_add_u32 s22, s22, s{WV}\ns_cmp_lg_u32 s22, {wsel}\ns_cbranch_scc1 L_end")
            srd(a, 4, P_DBG, 256)
            a(f"v_readlane_b32 s23, v{PV}, 1\nv_readlane_b32 s26, v{PV}, 0\nv_readlane_b32 s27, v{PV}, 17\ns_nop 3\ns_sub_u32 s27, s27, s26\nv_writelane_b32 v4, s27, 1")
            for k, st in enumerate((2, 3, 4, 5, 6, 7, 9, 10, 11, 12, 13, 14, 15, 16)):
                a(f"v_readlane_b32 s24, v{PV}, {st}\ns_nop 3\ns_sub_u32 s24, s24, s23\nv_writelane_b32 v4, s24, {k+2}")
            a("s_mov_b64 exec, 0xfffe\nbuffer_store_dword v4, v3, s[4:7], 0 offen")
    a.label("L_end")
    a("s_endpgm")
    cold()
    hdr = open("cdna_kernels/" + NAME + ".s.ref").read().split("\n")
    head = [l for l in hdr[:15] if l.startswith(";") and "@launch" not in l and "Override" not in l and "grid=ceil" not in l]
    txt = "\n".join(head) + "\n; @launch grid=(256,1,1) block=(512,1,1) lds=163840\n"
    txt += '.amdgcn_target "amdgcn-amd-amdhsa--gfx950"\n.text\n' + a.text()
    txt += f""".section .rodata,"a"
.p2align 6
.amdhsa_kernel {nm}
  .amdhsa_next_free_vgpr 256
  .amdhsa_next_free_sgpr 102
  .amdhsa_accum_offset 256
  .amdhsa_group_segment_fixed_size 0
  .amdhsa_kernarg_size 104
  .amdhsa_user_sgpr_count 2
  .amdhsa_user_sgpr_kernarg_segment_ptr 1
  .amdhsa_system_sgpr_workgroup_id_x 1
.end_amdhsa_kernel
"""
    open(path, "w").write(txt)
    errs = check_hazards(a.text())
    for e in errs[:30]: print("HAZARD", e)
    print(f"{path}: {len(a.lines)} lines, {len(errs)} hazards; ARING={ARING} CONSTP={CONSTP} QLDS={QLDS}")

if __name__ == "__main__":
    main([x for x in sys.argv[1:] if x.endswith(".s")][0])
```

```python
import math, sys
from asmlib import *

NAME = "concat_heads__ssm_conv_s4d__mha_block__prompt"
WS_QKV = 0
WS_O = 0x800000
WS_UT = 0xB00000
WS_YT = 0xE00000
WS_FA = 0x1100000
WS_FB = 0x1110000
WS_FC = 0x1120000
WS_PROF = 0x1300000
WS_SIZE = 0x1400000
TTS_ = 480*1024
OG = 20480
RS = 4352
LOG2E = math.log2(math.e)
QSCALE = LOG2E / math.sqrt(20.0)
PROF = "--prof" in sys.argv
M0 = "--m0" in sys.argv
SPIN = 0x40000
X16 = '--x16' in sys.argv
PRIO = [int(x) for x in sys.argv[sys.argv.index('--prio')+1].split(',')] if '--prio' in sys.argv else [0, 16, 26, 30]
LOC = '--loc' in sys.argv
OSC = '' if '--plainO' in sys.argv else 'sc1'
SPEC = int(sys.argv[sys.argv.index('--spec')+1]) if '--spec' in sys.argv else 1
XNT = "nt" if "--xnt" in sys.argv else ""
WNT = "nt" if "--wnt" in sys.argv else ""
J = "\n".join

WV, XCD, IDX, NONCE = 16, 17, 18, 19
TT, CT = 20, 21
FCOFF, HEAD5, QB, OOFF = 36, 37, 38, 39
KS = [40, 41, 42]; KL = [44, 45, 46]
MODE, KH, KHOFF = 47, 48, 49
HW, CHN = 51, 52
OOCT, OTAIL = 54, 55
XS, WSO, LB, CI = 56, 57, 58, 59
P_U, P_LA, P_AI, P_CR, P_CI, P_DT, P_D, P_X, P_W, P_WO, P_OUT, P_DBG, P_WS = range(64, 90, 2)
WOS, WOL = 94, 95
MK, MK2, MC = 33+1, 35, 100
MW = [101, 25]
PV = 255
DX, DW = 250, 251
PL1, PL2 = 252, 253
DMV, KA, K4, VA, MSK, MS4, WOV, L8, HH, QA4, QA0 = range(224, 235)

RING = 32768
SCR = 3*RING
UST = 4640
KOFF = 4*UST
CHA = KOFF + 4224
CVB = 65536
PST = 2048 + 32
SLOT = 20992
FLAGW = 0
CONSTP = 64
ARING = 1280
QLDS = ARING + 2*SLOT
WOB = 163840 - 107*960
EXC = ARING
YSRC = WOB - 10240
PART = 25856
ARRW = CVB + CHA + 2*UST + 4480
OIMG = ARING
assert CVB + 4*CHA <= 163840 and ARING + 3*SLOT <= 65536 and ARING + 3*SLOT <= WOB + 11*960
assert EXC + 24576 <= PART and PART + 20480 <= YSRC and YSRC >= ARING + 2*SLOT and EXC + 24576 <= ARING + SLOT + 5*PST and OIMG + 20480 <= PART

def srd(a, d, lo, size):
    a(f"s_mov_b32 s{d}, s{lo}\ns_and_b32 s{d+1}, s{lo+1}, 0xffff\ns_mov_b32 s{d+2}, {size}\ns_mov_b32 s{d+3}, 0x20000")
def m32(d, x, y, c=None):
    return f"v_mfma_f32_32x32x16_bf16 {v(d,16)}, {v(x,4)}, {v(y,4)}, {v(c,16) if c is not None else 0}"
def m32x8(d, x, y, c):
    if X16: return f"v_mfma_f32_32x32x16_bf16 {v(d,16)}, {v(x-2,4)}, {v(y-2,4)}, {v(c,16)}"
    return f"v_mfma_f32_32x32x8_bf16 {v(d,16)}, {v(x,2)}, {v(y,2)}, {v(c,16)}"
def m16(d, x, y, c=None):
    return f"v_mfma_f32_16x16x32_bf16 {v(d,4)}, {v(x,4)}, {v(y,4)}, {v(c,4) if c is not None else 0}"
def stamp(a, i, real=False):
    if PROF: a(f"s_mem{'real' if real else ''}time s[92:93]\ns_waitcnt lgkmcnt(0)\nv_writelane_b32 v{PV}, s92, {i}")

def get_nonce(a):
    l = a.newlabel("L_nonce"); e = a.newlabel("L_nonce_e")
    a(f"""s_load_dword s{NONCE}, s[{P_DBG}:{P_DBG+1}], 0
    s_mov_b32 s50, 0
    v_mov_b32 v222, 0
    s_waitcnt lgkmcnt(0)""")
    a.label(l)
    a(f"""s_cmp_lg_u32 s{NONCE}, 0
    s_cbranch_scc1 {e}
    global_load_dword v223, v222, s[{P_DBG}:{P_DBG+1}] sc1
    s_add_u32 s50, s50, 1
    s_waitcnt vmcnt(0)
    v_readfirstlane_b32 s{NONCE}, v223
    s_cmp_lt_u32 s50, {SPIN}
    s_cbranch_scc1 {l}""")
    a.label(e)

def poll(a, addrs, width, vt, preloaded=False):
    l = a.newlabel("L_poll"); e = a.newlabel("L_poll_e")
    sfx = {1: "dword", 4: "dwordx4"}[width]
    a("s_mov_b32 s50, 0")
    if preloaded: a(f"s_branch {l}_c")
    a.label(l)
    for k, ad in enumerate(addrs): a(f"buffer_load_{sfx} {v(vt+4*k,width)}, v{ad}, s[12:15], 0 offen sc1")
    a("s_add_u32 s50, s50, 1\ns_waitcnt vmcnt(0)")
    a.label(l + "_c")
    regs = [vt+4*k+j for k in range(len(addrs)) for j in range(width)]
    for r in regs: a(f"v_xor_b32 v{r}, s{NONCE}, v{r}")
    for r in regs[1:]: a(f"v_or_b32 v{regs[0]}, v{regs[0]}, v{r}")
    a(f"""v_cmp_ne_u32 vcc, 0, v{regs[0]}
    s_cmp_gt_u32 s50, {SPIN}
    s_cbranch_scc1 {e}
    s_cbranch_vccnz {l}""")
    a.label(e)

def set_flag(a, soff, vt):
    a(f"""v_mov_b32 v{vt}, 0
    v_mov_b32 v{vt+1}, s{NONCE}
    s_mov_b64 exec, 1
    buffer_store_dword v{vt+1}, v{vt}, s[12:15], s{soff} offen sc1
    s_mov_b64 exec, -1""")

def attn_ids(a):
    if LOC: a(f"s_mov_b32 s{HEAD5}, s{IDX}\ns_mov_b32 s{QB}, s{XCD}")
    else: a(f"""s_lshl_b32 s{HEAD5}, s{XCD}, 2
    s_lshr_b32 s22, s{IDX}, 3
    s_add_u32 s{HEAD5}, s{HEAD5}, s22
    s_and_b32 s{QB}, s{IDX}, 7""")
    a(f"""s_mul_i32 s22, s{QB}, {16*OG}
    s_add_u32 s22, s22, {WS_O}
    s_lshl_b32 s{OOCT}, s{HEAD5}, 9
    s_add_u32 s{OOCT}, s{OOCT}, s22
    s_lshl_b32 s{OTAIL}, s{HEAD5}, 7
    s_add_u32 s{OTAIL}, s{OTAIL}, s22
    s_add_u32 s{OTAIL}, s{OTAIL}, 16384
    s_mul_i32 s{HEAD5}, s{HEAD5}, 5
    s_lshl_b32 s{OOFF}, s{HEAD5}, 10
    s_mul_i32 s22, s{QB}, {2*TTS_}
    s_add_u32 s{OOFF}, s{OOFF}, s22""")

def clear_o(a):
    a(f"""v_lshrrev_b32 v20, 4, v2
    v_mul_u32_u24 v20, {OG}, v20
    v_and_b32 v21, 15, v2
    v_lshl_add_u32 v20, v21, 3, v20
    v_mov_b32 v16, -1
    v_mov_b32 v17, -1
    v_mov_b32 v18, -1
    v_mov_b32 v19, -1
    s_mul_i32 s24, s{HW}, {4*OG}
    s_add_u32 s22, s24, s{OOCT}
    s_add_u32 s23, s22, {2*OG}
    s_add_u32 s24, s24, s{OTAIL}
    buffer_store_dwordx4 v[16:19], v{OSA}, s[12:15], s22 offen sc1
    buffer_store_dwordx4 v[16:19], v{OSA}, s[12:15], s23 offen sc1
    buffer_store_dwordx2 v[16:17], v20, s[12:15], s24 offen sc1""")

def arr_init(a, c2=0):
    a(f"v_mov_b32 v219, {ARRW}\nv_mov_b32 v220, 0\nv_mov_b32 v221, {c2}\nds_write_b64 v219, v[220:221]")

def utile_issue(a):
    srd(a, 4, P_U, 2048*1280)
    a(f"""v_lshlrev_b32 v4, 4, v9
    v_mul_u32_u24 v3, 1280, v8
    v_add_u32 v3, v3, v4
    s_mov_b32 m0, s27
    s_lshr_b32 s23, s26, 5
    s_and_b32 s28, s26, 31
    s_mul_i32 s24, s28, {64*1280}
    s_lshl_b32 s22, s23, 7
    s_add_u32 s24, s24, s22
    s_mov_b32 s30, 0""")
    a.label("L_ut_i")
    a(f"""buffer_load_dwordx4 v3, s[4:7], s24 offen nt lds
    s_add_u32 m0, m0, 1024
    s_add_u32 s24, s24, {8*1280}
    s_add_u32 s30, s30, 1
    s_cmp_lt_u32 s30, 8
    s_cbranch_scc1 L_ut_i""")
def utile(a):
    A0, A1, A2, A3, D = 8, 9, 10, 11, 12
    a(f"""s_lshr_b32 s23, s26, 5
    v_xor_b32 v{A1}, v{A1}, v{A0}
    v_lshlrev_b32 v{A1}, 4, v{A1}
    v_mul_u32_u24 v{A3}, {RS}, v{A0}
    v_add_u32 v{A3}, v{A3}, v{A1}
    v_lshlrev_b32 v{A0}, 4, v2
    v_add_u32 v{A0}, s27, v{A0}
    v_bfe_u32 v{A1}, v2, 2, 2
    v_lshlrev_b32 v{A1}, 7, v{A1}
    v_lshrrev_b32 v{A2}, 4, v2
    v_lshl_add_u32 v{A1}, v{A2}, 5, v{A1}
    v_and_b32 v{A2}, 3, v2
    v_lshl_add_u32 v{A1}, v{A2}, 3, v{A1}
    v_add_u32 v{A1}, s27, v{A1}
    v_and_b32 v{A2}, 7, v2
    v_lshlrev_b32 v{A2}, 4, v{A2}
    v_lshl_add_u32 v{A2}, v2, 7, v{A2}
    v_add_u32 v{A2}, s27, v{A2}
    s_mul_i32 s23, s23, {64*RS}
    s_lshl_b32 s24, s28, 7
    s_add_u32 s24, s24, s23
    s_add_u32 s24, s24, {WS_UT}
    s_lshl_b32 s29, s26, 2
    s_add_u32 s29, s29, {WS_FA}""")
    stamp(a, 27)
    a("s_waitcnt vmcnt(0)")
    stamp(a, 28)
    for i in range(16): a(f"ds_read_b64_tr_b16 {v(D+2*i,2)}, v{A1} offset:{i*512}")
    a("s_waitcnt lgkmcnt(0)")
    for i in range(8): a(f"v_xor_b32 v4, {16*i}, v{A2}\nds_write_b128 v4, {v(D+4*i,4)}")
    a("s_waitcnt lgkmcnt(0)")
    for i in range(8): a(f"ds_read_b128 {v(D+4*i,4)}, v{A0} offset:{i*1024}")
    for i in range(8):
        a(f"s_waitcnt lgkmcnt({7-i})\nbuffer_store_dwordx4 {v(D+4*i,4)}, v{A3}, s[12:15], s24 offen sc1\ns_add_u32 s24, s24, {8*RS}")
    stamp(a, 2)
    a(f"s_mov_b32 s33, s29\ns_cmp_lt_u32 s{IDX}, 30\ns_cbranch_scc1 L_h_ld0")
    get_nonce(a)
    a("s_waitcnt vmcnt(0)")
    set_flag(a, 29, 4)
    stamp(a, 3)

def next_slot(a, cur, tmp):
    a(f"""s_add_u32 s{cur}, s{cur}, {RING}
    s_lshr_b32 s{tmp}, s{cur}, 15
    s_cmp_eq_u32 s{tmp}, 3
    s_cselect_b32 s{tmp}, {RING}, 0
    s_add_u32 s{cur}, s{cur}, s{tmp}
    s_cmp_ge_u32 s{cur}, {5*RING}
    s_cselect_b32 s{tmp}, {5*RING}, 0
    s_sub_u32 s{cur}, s{cur}, s{tmp}""")

def loader_math(a):
    a(f"""s_lshr_b32 s{TT}, s{XCD}, 1
    s_lshl_b32 s{TT}, s{TT}, 2
    s_and_b32 s24, s{XCD}, 1
    s_and_b32 s22, s{IDX}, 3
    s_lshr_b32 s23, s{IDX}, 2
    s_lshl_b32 s{CT}, s24, 3
    s_add_u32 s{CT}, s{CT}, s23
    s_lshl_b32 s24, s24, 1
    s_cmp_ge_u32 s{IDX}, 28
    s_cselect_b32 s{CT}, 7, s{CT}
    s_cselect_b32 s24, s24, 0
    s_add_u32 s22, s22, s24
    s_add_u32 s{TT}, s{TT}, s22
    s_mul_i32 s22, s22, 5
    s_add_u32 s22, s22, 1
    s_lshr_b32 s22, s22, 1
    s_add_u32 s23, s23, s{KH}
    s_mul_i32 s23, s23, 3
    s_add_u32 s{CI}, s22, s23
    s_cmp_ge_u32 s{CI}, 20
    s_cselect_b32 s22, 20, 0
    s_sub_u32 s{CI}, s{CI}, s22
    s_cmp_ge_u32 s{CI}, 10
    s_cselect_b32 s22, 10, 0
    s_sub_u32 s{CI}, s{CI}, s22
    v_lshrrev_b32 v8, 3, v2
    v_and_b32 v9, 7, v2
    v_lshrrev_b32 v5, 1, v8
    s_and_b32 s22, s{HW}, 1
    s_lshl_b32 s22, s22, 2
    v_add_u32 v5, s22, v5
    v_xor_b32 v4, v9, v5
    v_lshlrev_b32 v4, 4, v4
    v_mul_u32_u24 v3, 2560, v8
    v_add_u32 v{DX}, v3, v4
    s_lshl_b32 s{XS}, s{TT}, 3
    s_add_u32 s{XS}, s{XS}, s{HW}
    s_mul_i32 s{XS}, s{XS}, {16*1280}
    v_lshrrev_b32 v3, 4, v2
    v_bfe_u32 v4, v2, 2, 2
    v_xor_b32 v4, v4, v3
    v_lshlrev_b32 v4, 6, v4
    v_and_b32 v5, 3, v2
    v_lshlrev_b32 v5, 4, v5
    v_mul_u32_u24 v3, 3840, v3
    v_add3_u32 v{DW}, v3, v4, v5
    s_lshl_b32 s{WSO}, s{CT}, 8
    s_mul_i32 s22, s{HW}, {4*3840}
    s_add_u32 s{WSO}, s{WSO}, s22
    s_lshl_b32 s{LB}, s{HW}, 10
    s_lshl_b32 s22, s{KH}, 17
    s_add_u32 s{LB}, s{LB}, s22""")
def issue(a, part=3):
    a(f"""s_lshl_b32 s22, s{CI}, 7
    s_add_u32 s22, s22, s{XS}
    s_mul_i32 s23, s{CI}, {64*3840}
    s_add_u32 s23, s23, s{WSO}""")
    for i in range(4):
        if not part & (1 << (i >> 1)): continue
        a(f"s_add_u32 m0, s{LB}, {i*4096}\ns_add_u32 s24, s22, {(64*(i>>1) + (i&1))*1280}\nbuffer_load_dwordx4 v{DX}, s[60:63], s24 offen {XNT} lds")
        a(f"s_add_u32 m0, s{LB}, {16384+i*4096}\ns_add_u32 s24, s23, {i*16*3840}\nbuffer_load_dwordx4 v{DW}, s[8:11], s24 offen {WNT} lds")
    if part & 2:
        a(f"""s_add_u32 s{CI}, s{CI}, 1
        s_cmp_eq_u32 s{CI}, 10
        s_cselect_b32 s{CI}, 0, s{CI}""")
        next_slot(a, LB, 22)

def main_pre(a):
    def wg_of(tt, ct, dst):
        a(f"""v_cmp_eq_u32 vcc, 7, v{ct}
        v_bfe_u32 v10, v{tt}, 1, 1
        v_lshrrev_b32 v11, 3, v{ct}
        v_cndmask_b32 v10, v11, v10, vcc
        v_and_b32 v11, 3, v{tt}
        v_and_b32 v12, 1, v{tt}
        v_cndmask_b32 v11, v11, v12, vcc
        v_and_b32 v12, 7, v{ct}
        v_lshl_add_u32 v11, v12, 2, v11
        v_lshl_add_u32 v10, v11, 3, v10
        v_lshrrev_b32 v11, 2, v{tt}
        v_lshl_add_u32 v{dst}, v11, 1, v10""")
    a(f"""v_and_b32 v3, 15, v2
    v_lshrrev_b32 v4, 5, v2
    v_mul_u32_u24 v4, 160, v4
    v_bfe_u32 v5, v2, 4, 1
    v_lshl_add_u32 v4, v5, 2, v4
    s_add_u32 s22, s{HEAD5}, 160
    v_add_u32 v4, s22, v4
    v_lshrrev_b32 v4, 5, v4""")
    wg_of(3, 4, 8)
    a(f"""v_lshlrev_b32 v8, 7, v8
    v_add_u32 v{PL1}, {WS_FB}, v8
    v_and_b32 v3, 1, v2
    s_lshl_b32 s22, s{QB}, 1
    v_add_u32 v3, s22, v3
    v_bfe_u32 v4, v2, 1, 1
    v_lshlrev_b32 v4, 2, v4
    v_add_u32 v4, s{HEAD5}, v4
    v_lshrrev_b32 v4, 5, v4""")
    wg_of(3, 4, 9)
    if LOC: a(f"v_lshl_add_u32 v3, v2, 3, s{XCD}")
    else: a(f"""v_bfe_u32 v3, v2, 3, 2
    v_lshlrev_b32 v3, 6, v3
    v_and_b32 v4, 7, v2
    s_lshl_b32 s22, s{XCD}, 3
    v_add3_u32 v3, v3, v4, s22""")
    a(f"""v_cmp_gt_u32 vcc, 32, v2
    s_nop 1
    v_cndmask_b32 v9, v9, v3, vcc
    v_lshlrev_b32 v9, 7, v9
    v_add_u32 v{PL2}, {WS_FB}, v9""")

def gemm(a):
    XA = [10, 11, 12, 13]; WA = [14, 15]
    FX = [[16, 20], [32, 36]]; FW = [[24, 28], [40, 44]]
    ACC = 48
    a(f"""s_and_b32 s34, s{WV}, 1
    s_lshr_b32 s35, s{WV}, 1
    v_and_b32 v3, 31, v2
    v_lshrrev_b32 v4, 5, v2
    v_bfe_u32 v5, v3, 1, 3
    v_xor_b32 v5, v5, v4
    v_lshlrev_b32 v5, 4, v5
    v_lshlrev_b32 v6, 7, v3
    s_lshl_b32 s22, s34, 13
    v_add3_u32 v{XA[0]}, v5, v6, s22
    v_xor_b32 v{XA[1]}, 32, v{XA[0]}
    v_xor_b32 v{XA[2]}, 64, v{XA[0]}
    v_xor_b32 v{XA[3]}, 96, v{XA[0]}
    v_bfe_u32 v5, v2, 2, 2
    s_lshl_b32 s22, s35, 1
    v_xor_b32 v6, s22, v5
    v_lshlrev_b32 v6, 6, v6
    v_lshlrev_b32 v7, 3, v4
    v_add_u32 v7, v7, v5
    v_lshlrev_b32 v7, 8, v7
    v_bfe_u32 v5, v2, 4, 1
    v_lshlrev_b32 v5, 5, v5
    v_add3_u32 v6, v6, v7, v5
    v_and_b32 v5, 3, v2
    v_lshl_add_u32 v6, v5, 3, v6
    v_add_u32 v{WA[0]}, 16384, v6
    v_xor_b32 v{WA[1]}, 64, v{WA[0]}
    s_cmp_lt_u32 s{CT}, 5
    s_cselect_b32 s28, {f32hex(QSCALE)}, 1.0
    v_lshlrev_b32 v5, 10, v4
    v_lshl_add_u32 v5, v3, 4, v5
    s_lshl_b32 s26, s{CT}, 5
    s_lshl_b32 s23, s35, 4
    s_add_u32 s26, s26, s23
    s_lshl_b32 s26, s26, 10
    s_mul_i32 s23, s{TT}, {TTS_}
    s_add_u32 s26, s26, s23
    s_lshl_b32 s23, s34, 9
    s_add_u32 s26, s26, s23""")
    for i in range(64): a(f"v_mov_b32 v{ACC+i}, 0")
    def rx(ks, buf, t): return f"ds_read_b128 {v(FX[buf][t],4)}, v{XA[ks]} offset:{t*4096}"
    def rw(ks, buf, m, rd): return f"ds_read_b64_tr_b16 {v(FW[buf][m]+2*rd,2)}, v{WA[m]} offset:{(16*ks+4*rd)*256}"
    def rds(ks, buf): return [rx(ks,buf,0), rw(ks,buf,0,0), rw(ks,buf,0,1), rx(ks,buf,1), rw(ks,buf,1,0), rw(ks,buf,1,1)]
    def mf(buf, m, t): return m32(ACC+(m*2+t)*16, FW[buf][m], FX[buf][t], ACC+(m*2+t)*16)
    stamp(a, 24)
    a(f"s_cmp_ge_u32 s{IDX}, 20\ns_cbranch_scc1 L_g_ldr\ns_lshl_b32 s27, s{HW}, 14\ns_add_u32 s27, s27, {SCR}")
    def after():
        issue(a, 2)
        a("s_cmp_eq_u32 s53, 1\ns_cbranch_scc1 L_g_i3")
        issue(a, 1)
    xgen(a, after)
    a.label("L_g_ldr")
    issue(a, 2)
    a("s_waitcnt vmcnt(8)")
    issue(a)
    a.label("L_g_i3")
    stamp(a, 25)
    a("s_mov_b32 s30, 0\ns_mov_b32 s31, 0\ns_waitcnt vmcnt(16)\ns_setprio 2")
    stamp(a, 26)
    a("s_barrier")
    stamp(a, 2)
    a(J(rds(0, 0)))
    a(".p2align 3")
    a.label("L_g_mm")
    for ks in range(4):
        b = ks & 1
        r = rds((ks+1) & 3, b ^ 1)
        a("s_waitcnt lgkmcnt(3)")
        a(mf(b, 0, 0))
        if ks < 3:
            a(J(r[0:3]) + "\ns_waitcnt lgkmcnt(5)")
            a(mf(b, 0, 1))
            a(J(r[3:6]) + "\ns_waitcnt lgkmcnt(6)")
            a(mf(b, 1, 0))
            if ks == 0:
                a("s_mov_b32 s32, s31"); next_slot(a, 31, 33)
            if ks == 1: a(f"s_sub_u32 s33, s31, s32\ns_add_u32 s30, s30, 1\nv_add_u32 v{XA[0]}, s33, v{XA[0]}\nv_add_u32 v{XA[1]}, s33, v{XA[1]}\nv_add_u32 v{XA[2]}, s33, v{XA[2]}")
            if ks == 2: a(f"v_add_u32 v{XA[3]}, s33, v{XA[3]}\nv_add_u32 v{WA[0]}, s33, v{WA[0]}\nv_add_u32 v{WA[1]}, s33, v{WA[1]}\ns_cmp_eq_u32 s30, 1")
            a(mf(b, 1, 1))
        else:
            a("s_cbranch_scc1 L_g_w8\ns_waitcnt vmcnt(0)")
            a.label("L_g_w8")
            a("s_waitcnt vmcnt(8) lgkmcnt(0)\ns_cmp_gt_u32 s30, 8\ns_cbranch_scc1 L_g_nb\ns_barrier")
            a.label("L_g_nb")
            a(mf(b, 0, 1))
            a(J(r[0:3]) + "\ns_cmp_lt_u32 s30, 10")
            a(mf(b, 1, 0))
            a(J(r[3:6]))
            a(mf(b, 1, 1))
            a("s_cbranch_scc1 L_g_mm")
    stamp(a, 3)
    a("s_nop 4\ns_waitcnt lgkmcnt(0)")
    k = 0
    for m in range(2):
        for g in range(4):
            d = 16 + 4*k; k += 1
            for t in range(2):
                r = ACC + (m*2+t)*16 + 4*g
                for i in range(4): a(f"v_mul_f32 v{r+i}, s28, v{r+i}")
                a(f"v_cvt_pk_bf16_f32 v{d+2*t}, v{r}, v{r+1}\nv_cvt_pk_bf16_f32 v{d+2*t+1}, v{r+2}, v{r+3}")
            if k & 1: a(f"s_add_u32 s23, s26, {WS_QKV + (m*8+2*g)*1024}")
            a(f"buffer_store_dwordx4 {v(d,4)}, v5, s[12:15], s23 offen offset:{0 if k & 1 else 2048} sc1")

KACC = 96
PRM = 112
def cm(d, x, z, t):
    return [f"v_pk_mul_f32 {v(t,2)}, {v(x,2)}, {v(z,2)} op_sel:[0,0] op_sel_hi:[1,0]",
            f"v_pk_fma_f32 {v(d,2)}, {v(x,2)}, {v(z,2)}, {v(t,2)} op_sel:[1,1,0] op_sel_hi:[0,1,1] neg_lo:[0,1,0]"]
def ilv(*ls):
    out = []
    for i in range(max(len(x) for x in ls)):
        for x in ls:
            if i < len(x): out.append(x[i])
    return out
GDT, GER, GTH, GT, GWA = 118, 119, 120, 122, 126
def kg_common(a, scr):
    a(f"v_lshlrev_b32 v{GWA}, 2, v2\nv_add_u32 v{GWA}, s{scr}, v{GWA}")
    for i in range(1, 16): a(f"v_xor_b32 v{GWA+i}, {16*i}, v{GWA}")
def kg_dt(a):
    a(f"""v_lshlrev_b32 v{GDT}, 16, v{PRM+4}
    v_mul_f32 v{GDT}, {f32hex(LOG2E)}, v{GDT}
    v_exp_f32 v{GDT}, v{GDT}
    s_mov_b32 s53, 0
    v_cvt_pk_bf16_f32 v{GDT}, v{GDT}, v{GDT}
    v_and_b32 v{GDT}, 0xffff0000, v{GDT}""")
def kg_setup(anchors, X0=None):
    o = f"""v_and_b32 v{GER}, 0xffff0000, v{PRM}
    v_mul_f32 v{GER}, {f32hex(LOG2E)}, v{GER}
    v_exp_f32 v{GER}, v{GER}
    v_and_b32 v{GTH}, 0xffff0000, v{PRM+1}
    v_lshlrev_b32 v{PRM}, 16, v{PRM}
    v_cvt_pk_bf16_f32 v{GER}, v{GER}, v{GER}
    v_lshlrev_b32 v{PRM+1}, 16, v{PRM+1}
    v_and_b32 v{GER}, 0xffff0000, v{GER}
    v_mul_f32 v{GER}, v{GER}, v{GDT}
    v_mul_f32 v{GTH}, v{GTH}, v{GDT}
    v_mul_f32 v{GER}, {f32hex(-LOG2E)}, v{GER}
    v_mul_f32 v{GTH}, 0.15915494, v{GTH}""".split("\n")
    if X0 is not None:
        o += f"""v_and_b32 v{X0}, 0xffff0000, v{PRM+2}
        v_and_b32 v{X0+1}, 0xffff0000, v{PRM+3}
        v_mul_f32 v{X0}, v{X0}, v{GDT}
        v_mul_f32 v{X0+1}, v{X0+1}, v{GDT}
        v_add_f32 v{X0}, v{X0}, v{X0}
        v_add_f32 v{X0+1}, v{X0+1}, v{X0+1}
        v_lshlrev_b32 v{PRM+2}, 16, v{PRM+2}
        v_lshlrev_b32 v{PRM+3}, 16, v{PRM+3}""".split("\n")
    for (z, p) in anchors:
        o += f"""v_mul_f32 v{GT}, {f32hex(p)}, v{GER}
        v_mul_f32 v{GT+1}, {f32hex(p)}, v{GTH}
        v_exp_f32 v{GT}, v{GT}
        v_fract_f32 v{GT+1}, v{GT+1}
        v_cos_f32 v{z}, v{GT+1}
        v_sin_f32 v{z+1}, v{GT+1}
        v_mul_f32 v{z}, v{z}, v{GT}
        v_mul_f32 v{z+1}, v{z+1}, v{GT}""".split("\n")
    return o

def xgen(a, after_pass):
    Z1, Z8, ZW, X0, PX = 142, 144, 146, 148, 166
    kg_common(a, 27)
    a("s_waitcnt vmcnt(12)")
    stamp(a, 20)
    kg_dt(a)
    a.label("L_xg")
    a(J(kg_setup(((Z1, 1.0), (Z8, 8.0), (ZW, 256.0)), X0)))
    def row(h, reg): return 8*(reg >> 2) + 4*h + (reg & 3)
    rowp = {}
    for p in range(4): rowp[row(0, p)] = p; rowp[row(1, p)] = p + 4
    for i, (p0, p1) in enumerate(((256, 260), (258, 262), (260, 264), (512, 768), (516, 772), (520, 776), (1024, 1280), (1032, 1288), (1536, 1792), (1544, 1800))):
        rowp[row(0, 4+i)] = p0; rowp[row(1, 4+i)] = p1
    packed = {}
    def pack(p):
        packed[p] = PX + len(packed); r = X0 + 2*(p % 256)
        return [f"v_cvt_pk_bf16_f32 v{packed[p]}, v{r}, -v{r+1}"]
    def step(p, t):
        if p < 8: return cm(X0+2*p, X0+2*p-2, Z1, t) + pack(p)
        if p == 8: return cm(X0+16, X0, Z8, t) + pack(0)
        b = p % 256
        return cm(X0+2*b, X0+2*b, ZW, t) + pack(p)
    s1 = sum((step(p, GT) for p in (1, 2, 3, 4, 5, 6, 7, 258, 260, 262, 516, 772)), [])
    s2 = sum((step(p, GT+2) for p in (8, 256, 264, 512, 520, 768, 776, 1024, 1032, 1280, 1288, 1536)), [])
    s1 += step(1544, GT) + step(1800, GT); s2 += step(1792, GT+2)
    a(J(ilv(s1, s2)))
    a("s_cmp_eq_u32 s53, 0\ns_cbranch_scc1 L_xg_w\ns_barrier")
    a.label("L_xg_w")
    for r in range(16):
        if r + 16 in rowp: a(f"ds_write2st64_b32 v{GWA+r}, v{packed[rowp[r]]}, v{packed[rowp[r+16]]} offset0:{32+r} offset1:{48+r}")
        else: a(f"ds_write_b32 v{GWA+r}, v{packed[rowp[r]]} offset:{(32+r)*256}")
    a("s_waitcnt lgkmcnt(0)\ns_barrier")
    after_pass()
    a("s_add_u32 s53, s53, 1\ns_cmp_lt_u32 s53, 2\ns_cbranch_scc1 L_xg")

def ygen(a):
    Z8, ZB, YA, PK = 142, 144, 146, 148
    RA, FA, FB = 8, 16, 48
    ACC = KACC
    kg_common(a, 28)
    a(f"""v_and_b32 v{RA}, 31, v2
    v_lshrrev_b32 v3, 5, v2
    v_and_b32 v4, 15, v2
    v_xor_b32 v3, v3, v4
    v_lshlrev_b32 v3, 4, v3
    v_lshl_add_u32 v{RA}, v{RA}, 8, v3
    v_add_u32 v{RA}, s28, v{RA}""")
    for i in range(1, 8): a(f"v_xor_b32 v{RA+i}, {32*i}, v{RA}")
    for i in range(16): a(f"v_mov_b32 v{ACC+i}, 0")
    a("s_waitcnt vmcnt(0)")
    stamp(a, 2)
    kg_dt(a)
    setup = kg_setup(((Z8, 8.0), (ZB, 128.0)))
    a(J(setup))
    a.label("L_yg")
    for j in range(16):
        pk = PK + 2*(j & 1)
        if j == 0: ya = [f"v_mov_b32 v{pk}, 0x3f80"]
        elif j == 1: ya = [f"v_cvt_pk_bf16_f32 v{pk}, v{Z8}, v{Z8+1}"]
        else: ya = cm(YA, Z8 if j == 2 else YA, Z8, GT) + [f"v_cvt_pk_bf16_f32 v{pk}, v{YA}, v{YA+1}"]
        yb = (cm(ZB, ZB, Z8, GT+2) if j else []) + [f"v_cvt_pk_bf16_f32 v{pk+1}, v{ZB}, v{ZB+1}"]
        a(J(ilv(ya, yb)))
        a(f"ds_write2st64_b32 v{GWA+j}, v{pk}, v{pk+1} offset0:{j} offset1:{16+j}")
    a("s_waitcnt lgkmcnt(0)\ns_barrier")
    if PROF: a(f"s_memtime s[92:93]\ns_add_u32 m0, s53, 22\ns_waitcnt lgkmcnt(0)\nv_writelane_b32 v{PV}, s92, m0")
    for ks in range(8):
        a(f"ds_read_b128 {v(FA+4*ks,4)}, v{RA+ks} offset:{32*256}\nds_read_b128 {v(FB+4*ks,4)}, v{RA+ks}")
    a(J(setup[:12]))
    a("s_waitcnt lgkmcnt(0)\ns_barrier")
    for ks in range(8):
        a(m32(ACC, FA+4*ks, FB+4*ks, ACC))
        a(J(setup[12+2*ks:14+2*ks]))
    a(f"s_add_u32 s53, s53, 1\ns_cmp_lt_u32 s53, 2\ns_cbranch_scc1 L_yg")

KP = 200
def kpack(a, kdst):
    Jv, H, AD = 10, 11, 12
    R = KACC; P0 = KP
    a(f"""v_and_b32 v{Jv}, 31, v2
    v_lshrrev_b32 v{H}, 5, v2
    v_lshlrev_b32 v{AD}, 4, v{Jv}
    v_sub_u32 v{AD}, s{kdst}, v{AD}
    v_lshlrev_b32 v13, 3, v{H}
    v_sub_u32 v216, v{AD}, v13
    v_lshlrev_b32 v13, 9, v{H}
    v_sub_u32 v217, v{AD}, v13
    v_and_b32 v{H}, 1, v{Jv}
    v_cmp_eq_u32 vcc, 0, v{H}
    v_lshlrev_b32 v{Jv}, 2, v{Jv}
    v_add_u32 v218, s{kdst}, v{Jv}
    v_lshlrev_b32 v15, 16, v{PRM+5}
    s_mov_b64 exec, 1
    v_add_f32 v{R}, v{R}, v15
    s_mov_b64 exec, -1""")
    cv = lambda d, lo, hi: a(f"v_cvt_pk_bf16_f32 v{d}, v{lo}, v{hi}")
    cv(P0, R+3, R+2); cv(P0+1, R+1, R+0)
    cv(P0+2, R+6, R+5); cv(P0+3, R+4, R+4)
    cv(P0+4, R+9, R+9); cv(P0+5, R+8, R+8); cv(P0+6, R+8, R+7); cv(P0+7, R+7, R+7)
    for sidx in range(2):
        ra, rb = R+10+2*sidx, R+11+2*sidx
        d = P0 + 8 + 4*sidx
        a(f"v_cndmask_b32 v13, v{rb}, v{ra}, vcc")
        cv(d, rb, rb); cv(d+1, rb, 13); cv(d+2, ra, ra); cv(d+3, ra, ra)
def kwrite(a, vzero):
    P0 = KP
    a(f"""ds_write_b64 v216, {v(P0,2)} offset:{4080+8}
    ds_write_b64 v216, {v(P0+2,2)} offset:{4080-512+8}
    ds_write_b128 v217, {v(P0+4,4)} offset:{4080-1024}
    ds_write_b128 v217, {v(P0+8,4)} offset:{4080-2048}
    ds_write_b128 v217, {v(P0+12,4)} offset:{4080-3072}
    ds_write_b32 v218, v{vzero} offset:4096""")

CAA, CBA, CACC = 10, 11, 144
def conv_setup(a, cbase):
    a(f"""v_and_b32 v3, 3, v2
    v_mul_u32_u24 v{CAA}, {UST}, v3
    v_bfe_u32 v3, v2, 2, 2
    v_lshl_add_u32 v{CAA}, v3, 7, v{CAA}
    v_lshrrev_b32 v4, 4, v2
    v_lshl_add_u32 v{CAA}, v4, 4, v{CAA}
    v_add_u32 v{CAA}, s{cbase}, v{CAA}
    v_and_b32 v3, 15, v2
    v_lshlrev_b32 v3, 3, v3
    v_lshlrev_b32 v{CBA}, 4, v4
    v_sub_u32 v{CBA}, v{CBA}, v3
    v_add_u32 v{CBA}, {KOFF+120}, v{CBA}
    v_add_u32 v{CBA}, s{cbase}, v{CBA}""")
    for i in range(32): a(f"v_mov_b32 v{CACC+i}, 0")
def conv(a, ydst, mid):
    FA = [16, 80]; FB = [48, 112]; ACC = CACC
    def loads(b, extra):
        out = []
        for k in range(8):
            out += [f"ds_read_b64 {v(FB[b]+4*k,2)}, v{CBA} offset:{512*(7-k)+extra}", f"ds_read_b64 {v(FB[b]+4*k+2,2)}, v{CBA} offset:{512*(7-k)+8+extra}",
                    f"ds_read_b128 {v(FA[b]+4*k,4)}, v{CAA} offset:{512*k+extra}"]
        return out
    a("s_waitcnt lgkmcnt(0)")
    a(J(loads(0, 0)))
    a(mid)
    a("s_mov_b32 s53, 0\n.p2align 3")
    lp = a.newlabel("L_cv")
    a.label(lp)
    pairs = sorted([(i, j) for i in range(8) for j in range(8) if i + j < 8], key=lambda p: (max(p), p))
    for b in range(2):
        ld = loads(b ^ 1, 64*(b+1))
        a("s_waitcnt lgkmcnt(0)")
        for n, (i, j) in enumerate(pairs):
            a(m16(ACC+4*(i+j), FA[b]+4*i, FB[b]+4*j, ACC+4*(i+j)))
            if n < 24: a(ld[n])
            if b == 1 and n == 26: a(f"v_add_u32 v{CAA}, 128, v{CAA}")
            if b == 1 and n == 27: a(f"v_add_u32 v{CBA}, 128, v{CBA}")
            if b == 1 and n == 28: a("s_add_u32 s53, s53, 1\ns_cmp_lt_u32 s53, 4")
    a(f"s_cbranch_scc1 {lp}")
    a("v_lshlrev_b32 v3, 3, v2")
    for b in range(8):
        ac = ACC + 4*b
        a(f"""v_cvt_pk_bf16_f32 v{ac}, v{ac}, v{ac+1}
        v_cvt_pk_bf16_f32 v{ac+1}, v{ac+2}, v{ac+3}
        buffer_store_dwordx2 {v(ac,2)}, v3, s[12:15], s{ydst} offen offset:{512*b} sc1""")

def helper(a):
    CB = 26
    UE = 176
    def pre():
        a(f"""s_lshr_b32 s22, s{CHN}, 6
        s_lshl_b32 s22, s22, 7
        s_add_u32 s22, s22, {WS_FA}
        v_and_b32 v4, 31, v2
        v_lshl_add_u32 v6, v4, 2, s22
        s_mul_i32 s{CB}, s{HW}, {CHA}
        s_add_u32 s{CB}, s{CB}, {CVB}
        s_mul_i32 s27, s{CHN}, {RS}
        s_add_u32 s27, s27, {WS_UT}
        s_add_u32 s29, s{CB}, {KOFF}
        s_mov_b32 s30, 0""")
    a(f"""s_mov_b32 s33, 0
    s_cmp_ge_u32 s{IDX}, 20
    s_cbranch_scc1 L_h_tr
    s_lshr_b32 s{FCOFF}, s{CHN}, 2
    s_lshl_b32 s{FCOFF}, s{FCOFF}, 7
    s_lshl_b32 s22, s{HW}, 2
    s_add_u32 s{FCOFF}, s{FCOFF}, s22
    s_add_u32 s{FCOFF}, s{FCOFF}, {WS_FC}
    s_lshl_b32 s28, s{HW}, 14
    s_add_u32 s28, s28, {SCR}""")
    pre()
    ygen(a)
    stamp(a, 3)
    a("s_branch L_h_nb")
    a.label("L_h_tr")
    a(f"s_cmp_ge_u32 s26, 320\ns_cbranch_scc1 L_h_ld0")
    a.label("L_utile")
    utile(a)
    a("s_branch L_tr_back")
    a.label("L_h_ld0")
    a("s_mov_b32 s30, 0")
    a.label("L_h_ld")
    a("s_waitcnt vmcnt(16) lgkmcnt(0)\ns_barrier")
    a.label("L_h_nb")
    if PROF: a(f"s_memtime s[92:93]\ns_add_u32 m0, s30, 32\ns_waitcnt lgkmcnt(0)\nv_writelane_b32 v{PV}, s92, m0")
    issue(a)
    a(f"""s_add_u32 s30, s30, 1
    s_cmp_lg_u32 s30, 1
    s_cbranch_scc1 L_h_l1""")
    get_nonce(a)
    arr_init(a)
    a("s_cmp_eq_u32 s33, 0\ns_cbranch_scc1 L_h_l1\ns_waitcnt vmcnt(8)")
    set_flag(a, 33, 4)
    stamp(a, 3)
    a.label("L_h_l1")
    a("s_cmp_lt_u32 s30, 7\ns_cbranch_scc1 L_h_ld")
    a(f"""s_cmp_ge_u32 s{IDX}, 20
    s_cbranch_scc1 L_h_plain
    buffer_load_dword v7, v6, s[12:15], 0 offen sc1
    s_waitcnt vmcnt(17)
    s_barrier""")
    stamp(a, 39)
    clear_o(a)
    kpack(a, 29)
    conv_setup(a, CB)
    a(f"""v_lshlrev_b32 v5, 3, v2
    v_min_u32 v5, 376, v5
    v_add_u32 v5, s{CB}, v5
    v_add_u32 v4, s{CB}, v{DMV}
    s_waitcnt vmcnt(3)
    v_cmp_ne_u32 vcc, s{NONCE}, v7
    s_mov_b32 s31, 0
    s_cbranch_vccnz L_h_b8""")
    def uloads():
        for i in range(4): a(f"buffer_load_dwordx4 {v(UE+4*i,4)}, v{DMV}, s[12:15], s27 offen offset:{1024*i} sc1")
    uloads()
    a("s_mov_b32 s31, 1")
    a.label("L_h_b8")
    stamp(a, 46)
    a("s_barrier")
    stamp(a, 4)
    a("v_mov_b32 v8, 0\nv_mov_b32 v9, 0")
    kwrite(a, 8)
    for r in range(4): a(f"ds_write_b64 v5, v[8:9] offset:{r*UST}")
    a(f"""v_mov_b32 v12, {ARRW}
    v_mov_b32 v13, 1
    s_cmp_eq_u32 s31, 1
    s_cbranch_scc1 L_h_w4
    s_waitcnt vmcnt(0)""")
    a.label("L_h_w4")
    a("""s_waitcnt vmcnt(4)
    s_mov_b64 exec, 1
    ds_add_u32 v12, v13 offset:4
    s_mov_b64 exec, -1
    s_cbranch_scc1 L_h_hu""")
    poll(a, [6], 1, 7)
    uloads()
    a.label("L_h_hu")
    a(f"""s_mul_i32 s27, s{CHN}, {RS}
    s_add_u32 s27, s27, {WS_YT}
    s_waitcnt vmcnt(0)""")
    stamp(a, 5)
    for i in range(4):
        e = UE + 4*i
        C2, C1, C0, PP = 40 + 14*i, 44 + 14*i, 48 + 14*i, 52 + 14*i
        a(f"ds_write_b128 v4, {v(e,4)} offset:{3*UST + 384 + 1024*i}")
        if i == 0: a(f"v_mov_b32 v{PP}, 0\nv_mov_b32 v{C1}, 0\ns_nop 0")
        else: a(f"v_readlane_b32 s22, v{e-2}, 63\nv_readlane_b32 s23, v{e-1}, 63\ns_nop 0\nv_mov_b32 v{PP}, s22\nv_mov_b32 v{C1}, s23\ns_nop 0")
        a(f"v_mov_b32_dpp v{PP}, v{e+2} wave_shr:1 row_mask:0xf bank_mask:0xf")
        a(f"v_mov_b32_dpp v{C1}, v{e+3} wave_shr:1 row_mask:0xf bank_mask:0xf")
        for j in range(3): a(f"v_mov_b32 v{C1+1+j}, v{e+j}")
        a(f"ds_write_b128 v4, {v(C1,4)} offset:{UST + 384 + 1024*i}")
        a(f"v_alignbit_b32 v{C2}, v{e}, v{C1}, 16")
        for j in range(1, 4): a(f"v_alignbit_b32 v{C2+j}, v{e+j}, v{e+j-1}, 16")
        a(f"ds_write_b128 v4, {v(C2,4)} offset:{2*UST + 384 + 1024*i}")
        a(f"v_alignbit_b32 v{C0}, v{C1}, v{PP}, 16")
        for j in range(3): a(f"v_mov_b32 v{C0+1+j}, v{C2+j}")
        a(f"ds_write_b128 v4, {v(C0,4)} offset:{384 + 1024*i}")
    stamp(a, 6)
    conv(a, 27, "")
    stamp(a, 7)
    a("s_branch L_attn")
    a.label("L_h_plain")
    a("s_waitcnt vmcnt(16)\ns_barrier")
    clear_o(a)
    a(f"""s_waitcnt vmcnt(3)
    s_barrier
    v_mov_b32 v6, {ARRW}
    v_mov_b32 v7, 1
    s_waitcnt vmcnt(0)
    s_mov_b64 exec, 1
    ds_add_u32 v6, v7 offset:4
    s_mov_b64 exec, -1
    s_branch L_attn""")

def window1(a):
    zero_state(a)
    get_nonce(a)
    a(f"""s_setprio 0
    v_mov_b32 v3, {ARRW}
    v_mov_b32 v4, 1
    s_lshl_b32 s22, s2, 7
    s_add_u32 s26, s22, {WS_FB}""")
    stamp(a, 4)
    a(f"""s_waitcnt vmcnt(0)
    s_mov_b64 exec, 1
    ds_add_rtn_u32 v4, v3, v4
    s_mov_b64 exec, -1
    s_waitcnt lgkmcnt(0)
    v_readfirstlane_b32 s22, v4
    s_cmp_lg_u32 s22, 3
    s_cbranch_scc1 L_at_b2""")
    a.label("L_w1_s")
    a(f"""ds_read_b32 v4, v3 offset:4
    s_waitcnt lgkmcnt(0)
    v_readfirstlane_b32 s22, v4
    s_cmp_lt_u32 s22, 4
    s_cbranch_scc1 L_w1_s""")
    stamp(a, 5)
    stamp(a, 53, True)
    set_flag(a, 26, 6)
    a(f"""v_mov_b32 v16, 0x3f803f80
    v_mov_b32 v17, 0x00003f80
    v_mov_b32 v18, 0x3f803f80
    v_mov_b32 v19, 0x00003f80
    ds_write_b128 v{DMV}, v[16:19] offset:{CONSTP}
    ds_write_b32 v6, v6 offset:{FLAGW}""")
    poll(a, [PL1, PL2], 1, 20)
    stamp(a, 6)
    stamp(a, 54, True)
    a(f"s_add_u32 s23, s{HEAD5}, 160\ns_lshl_b32 s23, s23, 10")
    for u in range(10):
        a(f"""s_mov_b32 m0, {QLDS + 1024*u}
        s_add_u32 s24, s{OOFF}, {(u >> 1)*1024 + (u & 1)*TTS_}
        buffer_load_dwordx4 v{DMV}, s[12:15], s24 offen sc1 lds""")
    for c in range(1):
        for u in range(20):
            p = u >> 1
            off = ((p + (155 if p >= 5 else 0)) << 10) + ((u & 1)*8 + c)*TTS_
            a(f"""s_mov_b32 m0, {ARING + c*SLOT + p*PST + (u & 1)*1024}
            s_add_u32 s24, s23, {off}
            buffer_load_dwordx4 v{DMV}, s[12:15], s24 offen sc1 lds""")
    stamp(a, 7)
    a("s_waitcnt vmcnt(0)\ns_branch L_at_b2")

def unit_src(a, unit, src, lds):
    a(f"""s_lshr_b32 s22, s{unit}, 1
    s_and_b32 s23, s{unit}, 1
    s_mul_i32 s{lds}, s22, {PST}
    s_lshl_b32 s24, s23, 10
    s_add_u32 s{lds}, s{lds}, s24
    s_add_u32 s{lds}, s{lds}, {ARING}
    s_cmp_ge_u32 s22, 5
    s_cselect_b32 s24, 155, 0
    s_add_u32 s22, s22, s24
    s_add_u32 s22, s22, 160
    s_add_u32 s22, s22, s{HEAD5}
    s_lshl_b32 s22, s22, 10
    s_mul_i32 s23, s23, {8*TTS_}
    s_add_u32 s{src}, s22, s23""")

Q0 = [16, 22]; Q1 = [20, 26]
KF = [28, 34]; VF = [40, 48]; P = [56, 64]; S = [72, 88]; O = [104, 120]
def set_m(a, q, M):
    a(f"""v_sub_f32 v{M}, 0, v{M}
    v_and_b32 v{M+1}, 0xffff0000, v{M}
    v_sub_f32 v{M+2}, v{M}, v{M+1}
    v_and_b32 v{M+3}, 0xffff0000, v{M+2}
    v_sub_f32 v{M+2}, v{M+2}, v{M+3}
    v_lshrrev_b32 v{M+1}, 16, v{M+1}
    v_or_b32 v{M+1}, v{M+1}, v{M+3}
    v_lshrrev_b32 v{M+2}, 16, v{M+2}
    v_cndmask_b32 v{Q1[q]}, v{M+1}, v{Q1[q]}, vcc
    v_cndmask_b32 v{Q1[q]+1}, v{M+2}, v{Q1[q]+1}, vcc""")
def tilemax(a, M, s, first):
    if first: a(f"v_max3_f32 v{M}, v{s}, v{s+1}, v{s+2}")
    else: a(f"v_max3_f32 v{M}, v{M}, v{s}, v{s+1}\nv_max_f32 v{M}, v{M}, v{s+2}")
    for i in range(3, 15, 2): a(f"v_max3_f32 v{M}, v{M}, v{s+i}, v{s+i+1}")
    a(f"v_max_f32 v{M}, v{M}, v{s+15}")
def halfmax(a, M):
    a(f"v_mov_b32 v{M+1}, v{M}\ns_nop 1\nv_permlane32_swap_b32 v{M}, v{M+1}\nv_max_f32 v{M}, v{M}, v{M+1}")

def attn_setup(a):
    a(f"""v_lshlrev_b32 v{DMV}, 4, v2
    v_mul_u32_u24 v6, 205, v2
    v_lshrrev_b32 v6, 11, v6
    v_mul_u32_u24 v7, 10, v6
    v_sub_u32 v7, v2, v7
    v_lshlrev_b32 v7, 4, v7
    v_mul_u32_u24 v6, 1280, v6
    v_add_u32 v{WOV}, v6, v7
    v_and_b32 v3, 31, v2
    v_lshrrev_b32 v{HH}, 5, v2
    v_lshlrev_b32 v{L8}, 3, v3""")
    for j in range(3):
        a(f"s_add_u32 s30, s{WV}, {8*j}")
        unit_src(a, 30, KS[j], KL[j])
        a(f"s_add_u32 s{KS[j]}, s{KS[j]}, {TTS_}")
    a(f"""v_mul_u32_u24 v{KA}, {2*PST}, v{HH}
    v_add_u32 v{KA}, v{KA}, v{L8}
    v_add_u32 v{KA}, {ARING}, v{KA}
    v_xor_b32 v{MS4}, 1, v{HH}
    v_mul_u32_u24 v{K4}, {ARING + 4*PST - CONSTP}, v{MS4}
    v_add3_u32 v{K4}, v{K4}, v{L8}, {CONSTP}
    v_and_b32 v4, 3, v2
    v_bfe_u32 v5, v2, 4, 1
    v_lshl_add_u32 v4, v5, 2, v4
    v_cmp_gt_u32 vcc, 5, v4
    v_mul_u32_u24 v4, {PST}, v4
    v_add_u32 v4, {ARING + 5*PST}, v4
    v_cndmask_b32 v{VA}, {CONSTP}, v4, vcc
    v_cndmask_b32 v{MSK}, 0, 1, vcc
    v_bfe_u32 v4, v2, 2, 2
    v_lshl_add_u32 v4, v{HH}, 2, v4
    v_lshl_add_u32 v{VA}, v4, 3, v{VA}
    s_lshl_b32 s{KHOFF}, s{KH}, 10
    v_mad_i32_i24 v{VA}, v{MSK}, s{KHOFF}, v{VA}
    s_sub_u32 s43, 106, s{WV}
    s_mul_i32 s{WOS}, s43, {6*1280}
    s_lshr_b32 s22, s{IDX}, 2
    s_mul_i32 s22, s22, 160
    s_add_u32 s{WOS}, s{WOS}, s22
    s_mul_i32 s{WOL}, s43, 960
    s_add_u32 s{WOL}, s{WOL}, {WOB}
    s_lshl_b32 s22, s{HW}, 9
    s_add_u32 s22, s22, {QLDS}
    v_add_u32 v{QA4}, s22, v{L8}
    v_lshl_add_u32 v{QA0}, v{HH}, 12, v{QA4}""")
    if M0: a(f"v_add_u32 v{KA}, s{KHOFF}, v{KA}\nv_mad_i32_i24 v{K4}, v{MS4}, s{KHOFF}, v{K4}")
YT, OSA, OST, FPA, FIW, FIR, FS0, FS1, FS2 = range(235, 244)
WAO, WAT = 248, 249
TOS, TTS, TYS, TFS = 96, 97, 98, 99
def tail_setup(a):
    a(f"""v_bfe_u32 v3, v2, 2, 2
    v_lshrrev_b32 v4, 4, v2
    v_and_b32 v5, 3, v2
    v_lshrrev_b32 v6, 2, v2
    v_lshlrev_b32 v6, 7, v6
    v_lshl_add_u32 v6, v5, 3, v6
    s_lshl_b32 s22, s{HW}, 5
    v_add_u32 v{YT}, s22, v6
    v_lshrrev_b32 v6, 5, v2
    v_mul_u32_u24 v6, 20, v6
    v_bfe_u32 v7, v2, 4, 1
    v_lshl_add_u32 v6, v7, 2, v6
    v_add_u32 v6, v6, v3
    v_mul_u32_u24 v7, 20, v4
    v_add3_u32 v7, v7, v3, 16
    v_lshlrev_b32 v5, 3, v5
    s_mul_i32 s22, s{KH}, {320*160}
    s_add_u32 s22, s22, {WOB}
    v_add_u32 v5, s22, v5
    v_mul_u32_u24 v6, 160, v6
    v_mul_u32_u24 v7, 160, v7
    v_add_u32 v{WAO}, v6, v5
    v_add_u32 v{WAT}, v7, v5
    v_and_b32 v3, 15, v2
    v_and_b32 v5, 1, v4
    v_mul_u32_u24 v5, {OG}, v5
    v_lshl_add_u32 v{OST}, v3, 3, v5
    v_lshl_add_u32 v5, v3, 4, v5
    v_lshrrev_b32 v6, 5, v2
    v_lshl_add_u32 v{OSA}, v6, 8, v5
    v_lshlrev_b32 v7, 4, v2
    s_mul_i32 s22, s{HW}, 5120
    v_add_u32 v{FPA}, s22, v7
    s_mul_i32 s22, s{WV}, 2560
    v_mul_u32_u24 v3, 160, v3
    v_lshl_add_u32 v3, v4, 3, v3
    v_add_u32 v{FIW}, s22, v3
    v_add_u32 v{FIR}, s22, v7""")
    for (dst, src, add) in ((FS0, 2, 0), (FS1, 2, 64), (FS2, 2, 128)):
        a(f"""v_add_u32 v3, {add}, v{src}
        v_mul_u32_u24 v4, 6554, v3
        v_lshrrev_b32 v4, 16, v4
        v_mul_u32_u24 v5, 10, v4
        v_sub_u32 v5, v3, v5
        v_mul_u32_u24 v4, 2560, v4
        v_lshl_add_u32 v{dst}, v5, 4, v4""")
    a(f"""s_lshl_b32 s{TYS}, s{IDX}, 2
    s_add_u32 s{TYS}, s{TYS}, s{HW}
    s_mul_i32 s{TYS}, s{TYS}, {16*2560}
    s_mul_i32 s22, s{XCD}, 160
    s_add_u32 s{TYS}, s{TYS}, s22
    s_lshl_b32 s24, s{XCD}, 2
    s_and_b32 s22, s{IDX}, 3
    s_add_u32 s24, s24, s22
    s_lshl_b32 s24, s24, 2
    s_add_u32 s24, s24, s{HW}
    s_mul_i32 s{TOS}, s24, {OG}
    s_add_u32 s{TOS}, s{TOS}, {WS_O}
    s_lshl_b32 s23, s{KH}, 11
    s_add_u32 s{TTS}, s{TOS}, s23
    s_add_u32 s{TTS}, s{TTS}, 16384
    s_lshl_b32 s23, s{KH}, 13
    s_add_u32 s{TOS}, s{TOS}, s23
    s_mul_i32 s{TFS}, s24, {16*2560}
    s_lshr_b32 s22, s{IDX}, 2
    s_mul_i32 s22, s22, 160
    s_add_u32 s{TFS}, s{TFS}, s22
    s_add_u32 s{TFS}, s{TFS}, 1280
    s_cmp_eq_u32 s{KH}, 1
    s_cselect_b32 s{TFS}, s{TYS}, s{TFS}""")
WFR = [28, 48, 68, 88, 108, 144, 164, 184, 204]
OFR = [128, 132, 224, 228, 232, 236, 240, 244, 136, 140]
def wo_reads(a, i, slot):
    for m in range(5):
        for hf in range(2):
            if i < 8: a(f"ds_read_b64_tr_b16 {v(WFR[slot]+4*m+2*hf,2)}, v{WAO} offset:{(40*i+8*hf)*160+32*m}")
            else: a(f"ds_read_b64_tr_b16 {v(WFR[slot]+4*m+2*hf,2)}, v{WAT} offset:{(160*(i-8)+80*hf)*160+32*m}")
def zero_state(a):
    srd(a, 8, P_WO, 640*1280)
    a(f"""s_mov_b32 s30, 0
    s_mov_b32 s31, 0
    s_mov_b32 s32, {2*SLOT}
    s_mov_b32 s{MK}, 63
    s_cmp_lt_u32 s{WV}, 4
    s_cselect_b32 s{MK2}, 63, 0
    s_movk_i32 s{MC}, 0xe1
    s_movk_i32 s{MW[0]}, 0xfe
    s_movk_i32 s{MW[1]}, 0x7e
    s_cmp_lt_u32 s{WV}, 3
    s_cselect_b32 s{MW[1]}, s{MW[0]}, s{MW[1]}""")
    for i in range(32): a(f"v_mov_b32 v{O[0]+i}, 0")
    for i in range(8): a(f"v_mov_b32 v{P[1]+i}, 0\nv_mov_b32 v{VF[1]+i}, 0")

def attention(a):
    def kr(t, b): return [f"ds_read_b64 {v(KF[b],2)}, v{KA} offset:{t*256}", f"ds_read_b64 {v(KF[b]+2,2)}, v{KA} offset:{t*256+PST}", f"ds_read_b64 {v(KF[b]+4,2)}, v{K4} offset:{t*256}"]
    def vr(t, b): return [f"ds_read_b64_tr_b16 {v(VF[b]+2*j,2)}, v{VA} offset:{t*256+j*64}" for j in range(4)]
    def shift(sreg):
        a(f"v_add_u32 v{KA}, s{sreg}, v{KA}\nv_mad_i32_i24 v{K4}, v{MS4}, s{sreg}, v{K4}")
    def qk(q, kb): a(m32(S[q], KF[kb], Q0[q])); a(m32x8(S[q], KF[kb]+4, Q1[q], S[q]))
    a("s_waitcnt lgkmcnt(0)")
    zero_state(a)
    a.label("L_at_b2")
    stamp(a, 8)
    a("v_cmp_gt_u32 vcc, 32, v2\ns_waitcnt lgkmcnt(0)\ns_barrier")
    stamp(a, 9)
    stamp(a, 50, True)
    a(J(kr(0, 0)))
    a(f"s_cmp_lg_u32 s{MODE}, 0\ns_cbranch_scc1 L_at_havem")
    for q in range(2):
        a(f"""ds_read_b64 {v(Q0[q],2)}, v{QA0} offset:{q*256}
        ds_read_b64 {v(Q0[q]+2,2)}, v{QA0} offset:{q*256+2048}
        ds_read_b64 {v(Q1[q],2)}, v{QA4} offset:{q*256+8192}""")
    a("s_waitcnt lgkmcnt(0)")
    for q in range(2): a(f"v_cndmask_b32 v{Q1[q]}, 0, v{Q1[q]}, vcc\nv_cndmask_b32 v{Q1[q]+1}, 0, v{Q1[q]+1}, vcc")
    if not M0:
        qk(0, 0); qk(1, 0)
        a("s_nop 7\ns_nop 1")
        for q in range(2):
            tilemax(a, P[0], S[q], True); halfmax(a, P[0]); set_m(a, q, P[0])
    a.label("L_at_havem")
    if not M0:
        shift(KHOFF)
        a(J(kr(0, 0)))
    a(f"s_cmp_eq_u32 s{MODE}, 1\ns_cbranch_scc1 L_at_maxpass")
    for j in range(3):
        if j == 2: a(f"s_cmp_ge_u32 s{WV}, 4\ns_cbranch_scc1 L_at_p3")
        a(f"s_add_u32 m0, s{KL[j]}, {SLOT}\ns_nop 0\nbuffer_load_dwordx4 v{DMV}, s[12:15], s{KS[j]} offen sc1 lds\ns_add_u32 s{KS[j]}, s{KS[j]}, {TTS_}")
    a.label("L_at_p3")
    a("s_waitcnt lgkmcnt(0)")
    qk(0, 0)
    a("s_setprio 3\ns_nop 6")
    stamp(a, 10)
    a(".p2align 3")
    a.label("L_at_loop")
    for T in range(4):
        kb = T & 1
        for q in range(2):
            o = q ^ 1
            ex = [f"v_exp_f32 v{S[q]+i}, v{S[q]+i}" for i in range(16)]
            cv = [f"v_cvt_pk_bf16_f32 v{P[q]+i}, v{S[q]+2*i}, v{S[q]+2*i+1}" for i in range(8)]
            kq = kb if q == 0 else kb ^ 1
            vq = kb ^ 1 if q == 0 else kb
            rd = (kr((T+1) & 3, kb ^ 1) + vr(T, kb)) if q == 0 else []
            if '--nord' in sys.argv: rd = []
            if '--halfrd' in sys.argv and T & 1: rd = []
            if '--rdsplit' in sys.argv:
                pass
            st = (2*((T+1) & 3) + q)
            def pr(i):
                k = 4*st + i
                if k in PRIO: a(f"s_setprio {3 - PRIO.index(k)}")
            if q == 0 and T == 3:
                a(f"""s_add_u32 s33, s31, {SLOT}
                s_cmp_eq_u32 s33, {3*SLOT}
                s_cselect_b32 s33, 0, s33
                s_sub_u32 s29, s33, s31
                s_mov_b32 s31, s33""")
                shift(29)
                if PROF: a("s_memtime s[90:91]")
                a("s_waitcnt vmcnt(0)\ns_barrier")
                if PROF: a("s_memtime s[92:93]")
            if q == 1: a("s_waitcnt lgkmcnt(0)")
            if PROF and (T, q) == (3, 1): a(f"s_sub_u32 s90, s92, s90\ns_add_u32 m0, s30, 55\ns_lshl_b32 s90, s90, 20\ns_and_b32 s92, s92, 0xfffff\ns_or_b32 s92, s92, s90\nv_writelane_b32 v{PV}, s92, m0")
            def kv(j, mask):
                l = a.newlabel("L_at_s")
                a(f"""s_bitcmp0_b32 s{mask}, s30
                s_cbranch_scc1 {l}
                s_add_u32 m0, s{KL[j]}, s32
                s_nop 0
                buffer_load_dwordx4 v{DMV}, s[12:15], s{KS[j]} offen sc1 lds
                s_add_u32 s{KS[j]}, s{KS[j]}, {TTS_}""")
                a.label(l)
            def wo(e):
                l = a.newlabel("L_at_s")
                a(f"""s_bitcmp0_b32 s{MW[e]}, s30
                s_cbranch_scc1 {l}
                s_mov_b32 exec_hi, 0x0fffffff
                s_mov_b32 m0, s{WOL}
                s_sub_u32 s{WOL}, s{WOL}, {8*960}
                buffer_load_dwordx4 v{WOV}, s[8:11], s{WOS} offen lds
                s_mov_b32 exec_hi, -1
                s_sub_u32 s{WOS}, s{WOS}, {8*6*1280}""")
                a.label(l)
            a(m32(S[o], KF[kq], Q0[o])); pr(0)
            a(J(rd[0:3] + ex[0:4] + cv[0:1]))
            a(m32x8(S[o], KF[kq]+4, Q1[o], S[o])); pr(1)
            if (T, q) == (3, 1): kv(1, MK)
            if (T, q) == (0, 1): wo(1)
            a(J(rd[3:5] + ex[4:6] + cv[1:2] + ex[6:8] + cv[2:3]))
            a(m32(O[o], VF[vq], P[o], O[o])); pr(2)
            a(J(rd[5:7] + ex[8:10] + cv[3:4] + ex[10:12] + cv[4:5]))
            a(m32(O[o], VF[vq]+4, P[o]+4, O[o])); pr(3)
            if (T, q) == (3, 0): kv(0, MK)
            if (T, q) == (0, 0): wo(0)
            if (T, q) == (3, 1):
                kv(2, MK2)
                a(f"""s_add_u32 s32, s32, {SLOT}
                s_cmp_eq_u32 s32, {3*SLOT}
                s_cselect_b32 s32, 0, s32
                s_bitcmp1_b32 s{MC}, s30
                s_cbranch_scc1 L_at_late""")
                a.label("L_at_back")
            a(J(ex[12:14] + cv[5:6] + ex[14:16]))
            if q == 1 and T == 3: a(f"v_mad_i32_i24 v{VA}, v{MSK}, s29, v{VA}")
            a(J(cv[6:8]))
    a("s_add_u32 s30, s30, 1\ns_cmp_lt_u32 s30, 8\ns_cbranch_scc1 L_at_loop")
    a(m32(O[1], VF[1], P[1], O[1]))
    C = S[1]
    a(f"""s_setprio 0
    s_mul_i32 s22, s{WV}, 3072
    v_add_u32 v4, s22, v{DMV}
    s_xor_b32 s22, s{WV}, 4
    s_mul_i32 s22, s22, 3072
    v_add_u32 v5, s22, v{DMV}""")
    a(m32(O[1], VF[1]+4, P[1]+4, O[1]))
    stamp(a, 11)
    a(f"""v_mov_b32 v6, 0
    v_mov_b32 v7, 1
    v_mov_b32 v{C+2}, {f32hex(2.0**110)}
    v_pk_add_f32 {v(C,2)}, {v(O[0],2)}, {v(O[0]+2,2)}""")
    for i in range(4, 12, 2): a(f"v_pk_add_f32 {v(C,2)}, {v(C,2)}, {v(O[0]+i,2)}")
    a(f"s_cmp_eq_u32 s{KH}, 0\ns_cbranch_scc1 L_at_c0")
    for i in range(3): a(f"ds_write_b128 v4, {v(O[0]+4*i,4)} offset:{EXC + i*1024}")
    a("s_nop 0")
    for i in range(0, 12, 2): a(f"v_pk_mov_b32 {v(O[0]+i,2)}, {v(O[1]+i,2)}, {v(O[1]+i,2)} op_sel:[0,1]")
    a("s_branch L_at_c1")
    a.label("L_at_c0")
    a("s_nop 1")
    for i in range(3): a(f"ds_write_b128 v4, {v(O[1]+4*i,4)} offset:{EXC + i*1024}")
    a.label("L_at_c1")
    for i in range(0, 12, 2): a(f"v_pk_add_f32 {v(C,2)}, {v(C,2)}, {v(O[1]+i,2)}")
    a(f"""v_add_f32 v{C}, v{C}, v{C+1}
    v_mul_f32 v{C}, {f32hex(2.0**-17)}, v{C}
    v_add_f32 v{C}, abs(v{C}), v{O[0]+12}
    v_add_f32 v{C}, v{C}, v{O[1]+12}
    v_cmp_nlt_f32 vcc, v{C}, v{C+2}""")
    if M0:
        a(f"""v_min_f32 v{C+3}, v{O[0]+12}, v{O[1]+12}
        v_mov_b32 v{C+2}, {f32hex(2.0**-60)}
        v_cmp_lt_f32 s[26:27], v{C+3}, v{C+2}
        s_nop 0
        s_or_b64 vcc, vcc, s[26:27]""")
    a(f"""s_cbranch_vccz L_at_nf
    ds_write_b32 v6, v7 offset:{FLAGW}""")
    a.label("L_at_nf")
    a(f"""s_lshl_b32 s22, s{HW}, 1
    s_add_u32 s22, s22, s{KH}
    s_mul_i32 s22, s22, {2*OG}
    s_add_u32 s23, s22, s{OTAIL}
    s_add_u32 s22, s22, s{OOCT}
    s_waitcnt lgkmcnt(0)
    s_barrier
    ds_read_b32 v7, v6 offset:{FLAGW}""")
    for i in (2, 0, 1): a(f"ds_read_b128 {v(S[0]+4*i,4)}, v5 offset:{EXC + i*1024}")
    a(f"""s_waitcnt lgkmcnt(2)
    v_readfirstlane_b32 s26, v7""")
    for i in range(8, 12): a(f"v_add_f32 v{O[0]+i}, v{O[0]+i}, v{S[0]+i}")
    a(f"""v_mov_b32 v{S[1]}, v{O[0]+8}
    v_mov_b32 v{S[1]+1}, v{O[0]+8}
    s_cmp_gt_u32 s26, s{MODE}
    s_cbranch_scc1 L_at_fallback
    v_permlane32_swap_b32 v{S[1]}, v{S[1]+1}
    v_rcp_f32 v{S[1]}, v{S[1]+1}
    s_waitcnt lgkmcnt(0)""")
    for i in range(8): a(f"v_add_f32 v{O[0]+i}, v{O[0]+i}, v{S[0]+i}")
    for i in range(12): a(f"v_mul_f32 v{O[0]+i}, v{O[0]+i}, v{S[1]}")
    for i in range(6): a(f"v_cvt_pk_bf16_f32 v{P[0]+i}, v{O[0]+2*i}, v{O[0]+2*i+1}")
    a(f"""buffer_store_dwordx4 {v(P[0],4)}, v{OSA}, s[12:15], s22 offen {OSC}
    s_mov_b32 exec_hi, 0
    buffer_store_dwordx2 {v(P[0]+4,2)}, v{OST}, s[12:15], s23 offen {OSC}
    s_mov_b32 exec_hi, -1""")
    stamp(a, 12)
    stamp(a, 51, True)

    def cold():
        a.label("L_at_fc")
        a(f"s_cmp_eq_u32 s{FCOFF}, 0\ns_cbranch_scc1 L_at_back")
        set_flag(a, FCOFF, 6)
        a(f"s_mov_b32 s{FCOFF}, 0\ns_branch L_at_back")
        a.label("L_at_c5")
        a(f"""s_mul_i32 s22, s{XCD}, {20*128}
        s_add_u32 s22, s22, {WS_FC}
        v_min_u32 v6, 19, v2
        v_lshl_add_u32 v6, v6, 7, s22
        buffer_load_dwordx4 v[136:139], v6, s[12:15], 0 offen sc1
        s_branch L_at_back""")
        a.label("L_at_late")
        a(f"""s_cmp_eq_u32 s30, 0
        s_cbranch_scc1 L_at_fc
        s_cmp_eq_u32 s30, 5
        s_cbranch_scc1 L_at_c5
        s_cmp_eq_u32 s30, 7
        s_cbranch_scc1 L_at_l7""")
        poll(a, [6], 4, 136, preloaded=True)
        a(f"""v_lshrrev_b32 v4, 3, v2
        v_and_b32 v5, 7, v2
        v_lshlrev_b32 v5, 4, v5
        v_mul_u32_u24 v4, {RS}, v4
        v_add_u32 v4, v4, v5
        s_mul_i32 s22, s{XCD}, {80*RS}
        s_lshl_b32 s23, s{IDX}, 7
        s_add_u32 s22, s22, s23
        s_mul_i32 s23, s{WV}, {8*RS}
        s_add_u32 s22, s22, s23
        s_add_u32 s22, s22, {WS_YT}
        s_lshl_b32 s23, s{WV}, 10
        s_add_u32 m0, s23, {YSRC}
        s_cmp_ge_u32 s{WV}, 2
        buffer_load_dwordx4 v4, s[12:15], s22 offen sc1 lds
        s_cbranch_scc1 L_at_back
        s_add_u32 m0, m0, 8192
        s_add_u32 s22, s22, {64*RS}
        buffer_load_dwordx4 v4, s[12:15], s22 offen sc1 lds
        s_branch L_at_back""")
        a.label("L_at_l7")
        for i in range(5, 9): wo_reads(a, i, i)
        a("s_branch L_at_back")
        a.label("L_at_fallback")
        a(f"s_mov_b32 s{MODE}, 1")
        a.label("L_at_refill")
        a(f"s_waitcnt vmcnt(0) lgkmcnt(0)\ns_barrier\ns_mov_b32 s30, s{WV}")
        a.label("L_at_fc2")
        unit_src(a, 30, 26, 27)
        a(f"""s_mov_b32 m0, s27
        s_add_u32 s30, s30, 8
        buffer_load_dwordx4 v{DMV}, s[12:15], s26 offen sc1 lds
        s_cmp_lt_u32 s30, 20
        s_cbranch_scc1 L_at_fc2""")
        attn_setup(a)
        a("s_waitcnt vmcnt(0)\ns_branch L_attn")
        a.label("L_at_maxpass")
        MX = [P[0], P[1]]
        for q in range(2):
            a(f"v_cndmask_b32 v{Q1[q]}, 0, v{Q1[q]}, vcc\nv_cndmask_b32 v{Q1[q]+1}, 0, v{Q1[q]+1}, vcc\nv_mov_b32 v{MX[q]}, 0xff800000")
        a.label("L_at_mloop")
        for T in range(4):
            a(J(kr(T, 0)) + "\ns_waitcnt lgkmcnt(0)")
            qk(0, 0); qk(1, 0)
            a("s_nop 7\ns_nop 3")
            for q in range(2): tilemax(a, MX[q], S[q], False)
        a("s_add_u32 s30, s30, 1\ns_cmp_eq_u32 s30, 8\ns_cbranch_scc1 L_at_mdone\ns_barrier")
        for j in range(3):
            if j == 2: a(f"s_cmp_ge_u32 s{WV}, 4\ns_cbranch_scc1 L_at_m3")
            a(f"s_mov_b32 m0, s{KL[j]}\ns_nop 0\nbuffer_load_dwordx4 v{DMV}, s[12:15], s{KS[j]} offen sc1 lds\ns_add_u32 s{KS[j]}, s{KS[j]}, {TTS_}")
        a.label("L_at_m3")
        a("s_waitcnt vmcnt(0)\ns_barrier\ns_branch L_at_mloop")
        a.label("L_at_mdone")
        a(f"""s_lshl_b32 s22, s{WV}, 10
        v_add_u32 v4, s22, v{DMV}
        v_xor_b32 v5, 4096, v4""")
        for q in range(2): halfmax(a, MX[q]); a(f"ds_write_b32 v4, v{MX[q]} offset:{ARING + 2*SLOT + 4*q}")
        a("s_waitcnt lgkmcnt(0)\ns_barrier")
        for q in range(2): a(f"ds_read_b32 v{S[0]+q}, v5 offset:{ARING + 2*SLOT + 4*q}")
        a("s_waitcnt lgkmcnt(0)")
        for q in range(2):
            a(f"v_max_f32 v{MX[q]}, v{MX[q]}, v{S[0]+q}"); set_m(a, q, MX[q])
        a(f"s_mov_b32 s{MODE}, 2\ns_branch L_at_refill")
    return cold

def tail(a):
    ACC = 8
    order = [3, 2, 1, 0]
    a(f"""v_mov_b32 v5, v{DMV}
    v_lshlrev_b32 v1, 3, v2
    v_mov_b32 v6, v{FPA}
    v_mov_b32 v3, v{FIW}
    v_mov_b32 v7, v{FIR}
    v_mov_b32 v250, v{FS0}
    v_mov_b32 v251, v{FS1}
    v_mov_b32 v252, v{FS2}
    v_mov_b32 v253, v{YT}
    s_mov_b32 s50, 0
    s_mov_b32 s29, 15
    s_mov_b32 s30, s{KH}
    s_add_u32 s27, s{TOS}, 4096
    s_cmp_eq_u32 s{KH}, 1
    s_cbranch_scc1 L_t_wo""")
    a.label("L_t_loop")
    for x in order:
        a(f"s_bitcmp0_b32 s29, {x}\ns_cbranch_scc1 L_t_no{x}")
        for e in range(2): a(f"buffer_load_dwordx4 {v(OFR[2*x+e],4)}, v5, s[12:15], s{TOS if x < 2 else 27} offen offset:{((2*x+e)&3)*1024} sc1")
        a(f"buffer_load_dwordx2 {v(OFR[8]+2*x,2)}, v1, s[12:15], s{TTS} offen offset:{x*512} sc1")
        a.label(f"L_t_no{x}")
    a(f"""s_add_u32 s50, s50, 1
    s_cmp_gt_u32 s50, {SPIN}
    s_cselect_b32 s31, 0, -1
    s_mov_b32 s28, s29
    s_cmp_lg_u32 s30, 0
    s_cbranch_scc1 L_t_nf""")
    a.label("L_t_wo")
    stamp(a, 13)
    for i in (4, 2, 3, 0, 1): wo_reads(a, i, i)
    srd(a, 8, P_OUT, 2048*2560)
    for i in range(20): a(f"v_mov_b32 v{ACC+i}, 0")
    a("s_cmp_eq_u32 s50, 0\ns_mov_b32 s30, 1\ns_cbranch_scc1 L_t_loop")
    a.label("L_t_nf")
    stamp(a, 14)
    for n, x in enumerate(order):
        r0, r1, rt = OFR[2*x], OFR[2*x+1], OFR[8] + 2*x
        a(f"s_bitcmp0_b32 s28, {x}\ns_cbranch_scc1 L_t_co{x}")
        if x > 0:
            a(f"s_and_b32 s22, s28, {(1 << x) - 1}\ns_bcnt1_i32_b32 s22, s22")
            for k in range(x, 0, -1):
                a(f"s_waitcnt vmcnt({3*k})\ns_cmp_eq_u32 s22, {k}\ns_cbranch_scc1 L_t_w{x}")
        a("s_waitcnt vmcnt(0)")
        a.label(f"L_t_w{x}")
        a(f"""v_max3_u32 v4, v{r0}, v{r0+1}, v{r0+2}
        v_max3_u32 v4, v4, v{r0+3}, v{r1}
        v_max3_u32 v4, v4, v{r1+1}, v{r1+2}
        v_max3_u32 v4, v4, v{r1+3}, v{rt}
        v_max_u32 v4, v4, v{rt+1}
        v_and_b32 v4, s31, v4
        v_cmp_eq_u32 vcc, -1, v4
        s_cbranch_vccnz L_t_co{x}
        s_bitset0_b32 s29, {x}""")
        if x < 3: a("s_waitcnt lgkmcnt(0)")
        for m in range(5): a(m16(ACC+4*m, WFR[2*x+1]+4*m, r1, ACC+4*m))
        if x == 3: wo_reads(a, 9, 7)
        for m in range(5): a(m16(ACC+4*m, WFR[2*x]+4*m, r0, ACC+4*m))
        a.label(f"L_t_co{x}")
    a("s_cmp_lg_u32 s29, 0\ns_cbranch_scc1 L_t_loop")
    for m in range(5): a(m16(ACC+4*m, WFR[8]+4*m, OFR[8], ACC+4*m))
    a("s_waitcnt lgkmcnt(0)")
    for m in range(5): a(m16(ACC+4*m, WFR[7]+4*m, OFR[9], ACC+4*m))
    stamp(a, 15)
    stamp(a, 52, True)
    if PROF: a(f"v_writelane_b32 v{PV}, s50, 29")
    T = 128
    a(f"""s_cmp_eq_u32 s{KH}, 0
    s_cbranch_scc1 L_t_r0""")
    for m in range(5): a(f"ds_read_b64_tr_b16 {v(T+2*m,2)}, v253 offset:{YSRC + m*2048}")
    a("s_nop 0")
    for m in range(5): a(f"ds_write_b128 v6, {v(ACC+4*m,4)} offset:{PART + m*1024}")
    a("s_waitcnt lgkmcnt(0)\ns_barrier")
    for m in range(5): a(f"ds_write_b64 v3, {v(T+2*m,2)} offset:{OIMG + 32*m}")
    a("s_branch L_t_st")
    a.label("L_t_r0")
    a("s_barrier")
    for m in range(5): a(f"ds_read_b128 {v(T+4*m,4)}, v6 offset:{PART + m*1024}")
    for m in range(5):
        a(f"s_waitcnt lgkmcnt(4)")
        for i in range(0, 4, 2): a(f"v_pk_add_f32 {v(ACC+4*m+i,2)}, {v(ACC+4*m+i,2)}, {v(T+4*m+i,2)}")
        a(f"v_cvt_pk_bf16_f32 v{ACC+4*m}, v{ACC+4*m}, v{ACC+4*m+1}\nv_cvt_pk_bf16_f32 v{ACC+4*m+1}, v{ACC+4*m+2}, v{ACC+4*m+3}")
        a(f"ds_write_b64 v3, {v(ACC+4*m,2)} offset:{OIMG + 32*m}")
    a.label("L_t_st")
    for j in range(3): a(f"ds_read_b128 {v(T+24+4*j,4)}, v7 offset:{OIMG + 1024*j}")
    for j in range(3):
        if j == 2: a("s_mov_b32 exec_hi, 0")
        a(f"s_waitcnt lgkmcnt({2-j})\nbuffer_store_dwordx4 {v(T+24+4*j,4)}, v{250+j}, s[8:11], s{TFS} offen")
    a("s_mov_b32 exec_hi, -1")

def main(path):
    a = Asm()
    nm = NAME + "_kernel"
    a(f".globl {nm}\n.p2align 8\n.type {nm},@function")
    a.label(nm)
    a(f"""s_cmp_ge_u32 s2, 256
    s_cbranch_scc1 L_end
    s_load_dwordx16 s[64:79], s[0:1], 0
    s_load_dwordx8 s[80:87], s[0:1], 64
    s_load_dwordx2 s[88:89], s[0:1], 96
    v_lshrrev_b32 v1, 6, v0
    v_and_b32 v2, 63, v0
    v_readfirstlane_b32 s{WV}, v1
    s_and_b32 s{XCD}, s2, 7
    s_lshr_b32 s{IDX}, s2, 3
    s_cmp_lg_u32 s{WV}, 7
    s_cbranch_scc1 L_nopf
    s_cmp_ge_u32 s{IDX}, (L_code_end-{nm})/1024
    s_cbranch_scc1 L_nopf
    s_getpc_b64 s[22:23]""")
    a.label("L_pc")
    a(f"""s_lshl_b32 s24, s{IDX}, 10
    s_sub_u32 s22, s22, L_pc-{nm}
    s_subb_u32 s23, s23, 0
    v_lshl_add_u32 v4, v2, 4, s24
    v_mov_b32 v5, s23
    v_add_co_u32 v4, vcc, s22, v4
    s_nop 1
    v_addc_co_u32 v5, vcc, 0, v5, vcc
    global_load_dwordx4 v[220:223], v[4:5], off""")
    a.label("L_nopf")
    if PROF:
        a(f"v_mov_b32 v{PV}, 0\ns_memrealtime s[90:91]\ns_memtime s[92:93]")
    a(f"""s_and_b32 s{HW}, s{WV}, 3
    s_lshr_b32 s{KH}, s{WV}, 2
    s_mul_i32 s{CHN}, s{XCD}, 20
    s_add_u32 s{CHN}, s{CHN}, s{IDX}
    s_lshl_b32 s{CHN}, s{CHN}, 2
    s_add_u32 s{CHN}, s{CHN}, s{HW}
    s_lshl_b32 s22, s{CHN}, 8
    v_lshl_add_u32 v6, v2, 2, s22
    s_lshl_b32 s22, s{CHN}, 1
    v_mov_b32 v7, s22""")
    loader_math(a)
    a(f"""s_cmp_ge_u32 s{IDX}, 20
    s_waitcnt lgkmcnt(0)
    s_cbranch_scc1 L_e_np""")
    for i in range(4): a(f"global_load_dword v{PRM+i}, v6, s[{P_LA+2*i}:{P_LA+2*i+1}]")
    a(f"""global_load_ushort v{PRM+4}, v7, s[{P_DT}:{P_DT+1}]
    global_load_ushort v{PRM+5}, v7, s[{P_D}:{P_D+1}]""")
    a.label("L_e_np")
    if PROF: a(f"v_writelane_b32 v{PV}, s90, 0\nv_writelane_b32 v{PV}, s92, 1")
    srd(a, 60, P_X, 2048*1280)
    srd(a, 8, P_W, 640*3840)
    a(f"""s_cmp_ge_u32 s{IDX}, 30
    s_cbranch_scc1 L_e_tr
    s_cmp_eq_u32 s{KH}, 1
    s_cbranch_scc1 L_e_h
    s_cmp_lt_u32 s{IDX}, 20
    s_cbranch_scc1 L_g_pro
    s_barrier""")
    a.label("L_g_pro")
    stamp(a, 40)
    issue(a)
    stamp(a, 41)
    issue(a, 1)
    stamp(a, 42)
    a("s_branch L_e_common")
    a.label("L_e_tr")
    a(f"""s_lshl_b32 s26, s{XCD}, 1
    s_add_u32 s26, s26, s{IDX}
    s_sub_u32 s26, s26, 30
    s_lshl_b32 s26, s26, 3
    s_add_u32 s26, s26, s{WV}
    s_lshl_b32 s27, s{WV}, 13
    s_add_u32 s27, s27, 16384
    s_branch L_e_ut""")
    a.label("L_e_h")
    a(f"""s_or_b32 s22, s2, s{HW}
    s_cmp_lg_u32 s22, 0
    s_cbranch_scc1 L_nn
    s_memrealtime s[22:23]
    v_mov_b32 v3, 0
    s_waitcnt lgkmcnt(0)
    s_or_b32 s22, s22, 1
    v_mov_b32 v4, s22
    s_mov_b64 exec, 1
    global_store_dword v3, v4, s[{P_DBG}:{P_DBG+1}] sc1
    s_mov_b64 exec, -1""")
    a.label("L_nn")
    a(f"""s_mul_i32 s26, s{XCD}, 10
    s_add_u32 s26, s26, s{IDX}
    s_mul_i32 s22, s{HW}, 80
    s_add_u32 s26, s26, s22
    s_add_u32 s26, s26, {128 - 20}
    s_lshl_b32 s27, s{HW}, 13
    s_add_u32 s27, s27, {SCR}
    s_cmp_lt_u32 s{IDX}, 20
    s_cbranch_scc1 L_e_common
    s_cmp_ge_u32 s26, 320
    s_cbranch_scc1 L_e_eb""")
    a.label("L_e_ut")
    utile_issue(a)
    a.label("L_e_eb")
    a("s_barrier")
    a.label("L_e_common")
    srd(a, 12, P_WS, WS_SIZE)
    a(f"s_mov_b32 s{FCOFF}, 0\ns_mov_b32 s{MODE}, 0")
    attn_ids(a)
    attn_setup(a)
    tail_setup(a)
    a(f"""s_cmp_ge_u32 s{IDX}, 30
    s_cbranch_scc1 L_utile
    s_cmp_eq_u32 s{KH}, 1
    s_cbranch_scc1 L_helper""")
    a.label("L_mp")
    main_pre(a)
    a(f"s_cmp_ge_u32 s{IDX}, 30\ns_cbranch_scc1 L_w1")
    gemm(a)
    a.label("L_w1")
    window1(a)
    a.label("L_attn")
    cold = attention(a)
    tail(a)
    if PROF:
        a("s_waitcnt vmcnt(0)")
        stamp(a, 16); stamp(a, 17, True)
        a(f"""s_lshl_b32 s22, s2, 3
        s_add_u32 s22, s22, s{WV}
        s_lshl_b32 s22, s22, 8
        s_add_u32 s22, s22, {WS_PROF}
        v_lshlrev_b32 v3, 2, v2
        buffer_store_dword v{PV}, v3, s[12:15], s22 offen""")
    a.label("L_end")
    a("s_endpgm")
    a.label("L_tr_back")
    a(f"s_cmp_lt_u32 s{WV}, 4\ns_cbranch_scc1 L_tr_m")
    clear_o(a)
    arr_init(a, 4)
    a("s_waitcnt vmcnt(0) lgkmcnt(0)\ns_barrier\ns_branch L_attn")
    a.label("L_tr_m")
    a("s_barrier\ns_branch L_mp")
    a.label("L_helper")
    helper(a)
    cold()
    a(f".fill (1024 - ((. - {nm}) % 1024))/4, 4, 0xbf810000")
    a.label("L_code_end")
    hdr = open("cdna_kernels/" + NAME + ".s.ref").read().split("\n")
    head = [l for l in hdr[:15] if l.startswith(";") and "@launch" not in l and "Override" not in l and "grid=ceil" not in l]
    txt = "\n".join(head) + "\n; @launch grid=(256,1,1) block=(512,1,1) lds=163840\n"
    txt += '.amdgcn_target "amdgcn-amd-amdhsa--gfx950"\n.text\n' + a.text()
    txt += f""".section .rodata,"a"
.p2align 6
.amdhsa_kernel {nm}
  .amdhsa_next_free_vgpr 256
  .amdhsa_next_free_sgpr 102
  .amdhsa_accum_offset 256
  .amdhsa_group_segment_fixed_size 0
  .amdhsa_kernarg_size 104
  .amdhsa_user_sgpr_count 2
  .amdhsa_user_sgpr_kernarg_segment_ptr 1
  .amdhsa_system_sgpr_workgroup_id_x 1
.end_amdhsa_kernel
"""
    open(path, "w").write(txt)
    errs = check_hazards(a.text())
    for e in errs[:30]: print("HAZARD", e)
    print(f"{path}: {len(a.lines)} lines, {len(errs)} hazards")

if __name__ == "__main__":
    main([x for x in sys.argv[1:] if x.endswith(".s")][0])
```

```python
import math, sys
from asmlib import *

NAME = "concat_heads__ssm_conv_s4d__mha_block__prompt"
WS_QKV = 0
WS_O = 0x800000
WS_UT = 0xB00000
WS_YT = 0xE00000
WS_FA = 0x1100000
WS_FB = 0x1110000
WS_FC = 0x1120000
WS_PROF = 0x1300000
WS_SIZE = 0x1400000
TTS_ = 480*1024
OG = 20480
RS = 4352
LOG2E = math.log2(math.e)
QSCALE = LOG2E / math.sqrt(20.0)
PROF = "--prof" in sys.argv
M0 = "--m0" in sys.argv
SPIN = 0x40000
POLLC = 5
UP = int(sys.argv[sys.argv.index('--up')+1]) if '--up' in sys.argv else 1
UNT = 'nt' if '--unt' in sys.argv else ''
X16 = '--x16' in sys.argv
PRIO = [int(x) for x in sys.argv[sys.argv.index('--prio')+1].split(',')] if '--prio' in sys.argv else [0, 16, 26, 30]
LOC = '--loc' in sys.argv
OSC = '' if '--plainO' in sys.argv else 'sc1'
SPEC = int(sys.argv[sys.argv.index('--spec')+1]) if '--spec' in sys.argv else 1
XNT = "nt" if "--xnt" in sys.argv else ""
WNT = "nt" if "--wnt" in sys.argv else ""
J = "\n".join

WV, XCD, IDX, NONCE = 16, 17, 18, 19
TT, CT = 20, 21
FCOFF, HEAD5, QB, OOFF = 36, 37, 38, 39
KS = [40, 41, 42]; KL = [44, 45, 46]
MODE, KH, KHOFF = 47, 48, 49
HW, CHN = 51, 52
OOCT, OTAIL = 54, 55
XS, WSO, LB = 56, 57, 99
TB = 58
P_U, P_LA, P_AI, P_CR, P_CI, P_DT, P_D, P_X, P_W, P_WO, P_OUT, P_DBG, P_WS = range(64, 90, 2)
WOS, WOL = 94, 95
MK, MK2, MC = 33+1, 35, 100
MW = [101, 25]
PV = 255
DX, DW = 240, 244
PL1, PL2 = 252, 253
DMV, KA, K4, VA, MSK, MS4, WOV, QA4, QA0 = range(224, 233)

RING = 32768
SCR = 3*RING
UST = 4640
KOFF = 4*UST
CHA = KOFF + 4224
CVB = 65536
PST = 2048 + 32
SLOT = 20992
FLAGW = 0
CONSTP = 64
ARING = 1280
QLDS = ARING + 2*SLOT
WOB = 163840 - 107*960
EXC = ARING
YSRC = WOB - 10240
PART = 25856
KSC = SCR
CNT = 129536
ARRW = CNT
OIMG = ARING
assert CVB + 4*CHA <= 163840 and ARING + 3*SLOT <= 65536 and ARING + 3*SLOT <= WOB + 11*960
assert EXC + 24576 <= PART and PART + 20480 <= YSRC and YSRC >= ARING + 2*SLOT and EXC + 24576 <= ARING + SLOT + 5*PST and OIMG + 20480 <= PART

def srd(a, d, lo, size):
    a(f"s_mov_b32 s{d}, s{lo}\ns_and_b32 s{d+1}, s{lo+1}, 0xffff\ns_mov_b32 s{d+2}, {size}\ns_mov_b32 s{d+3}, 0x20000")
def m32(d, x, y, c=None):
    return f"v_mfma_f32_32x32x16_bf16 {v(d,16)}, {v(x,4)}, {v(y,4)}, {v(c,16) if c is not None else 0}"
def m32x8(d, x, y, c):
    if X16: return f"v_mfma_f32_32x32x16_bf16 {v(d,16)}, {v(x-2,4)}, {v(y-2,4)}, {v(c,16)}"
    return f"v_mfma_f32_32x32x8_bf16 {v(d,16)}, {v(x,2)}, {v(y,2)}, {v(c,16)}"
def m16(d, x, y, c=None):
    return f"v_mfma_f32_16x16x32_bf16 {v(d,4)}, {v(x,4)}, {v(y,4)}, {v(c,4) if c is not None else 0}"
def stamp(a, i, real=False):
    if PROF: a(f"s_mem{'real' if real else ''}time s[92:93]\ns_waitcnt lgkmcnt(0)\nv_writelane_b32 v{PV}, s92, {i}")

def get_nonce(a):
    l = a.newlabel("L_nonce"); e = a.newlabel("L_nonce_e")
    a(f"""s_load_dword s{NONCE}, s[{P_DBG}:{P_DBG+1}], 0
    s_mov_b32 s50, 0
    v_mov_b32 v222, 0
    s_waitcnt lgkmcnt(0)""")
    a.label(l)
    a(f"""s_cmp_lg_u32 s{NONCE}, 0
    s_cbranch_scc1 {e}
    global_load_dword v223, v222, s[{P_DBG}:{P_DBG+1}] sc1
    s_add_u32 s50, s50, 1
    s_waitcnt vmcnt(0)
    v_readfirstlane_b32 s{NONCE}, v223
    s_cmp_lt_u32 s50, {SPIN}
    s_cbranch_scc1 {l}""")
    a.label(e)

def poll(a, addrs, width, vt, preloaded=False):
    l = a.newlabel("L_poll"); e = a.newlabel("L_poll_e")
    sfx = {1: "dword", 4: "dwordx4"}[width]
    a("s_mov_b32 s50, 0")
    if preloaded: a(f"s_branch {l}_c")
    a.label(l)
    for k, ad in enumerate(addrs): a(f"buffer_load_{sfx} {v(vt+4*k,width)}, v{ad}, s[12:15], 0 offen sc1")
    a("s_add_u32 s50, s50, 1\ns_waitcnt vmcnt(0)")
    a.label(l + "_c")
    regs = [vt+4*k+j for k in range(len(addrs)) for j in range(width)]
    for r in regs: a(f"v_xor_b32 v{r}, s{NONCE}, v{r}")
    for r in regs[1:]: a(f"v_or_b32 v{regs[0]}, v{regs[0]}, v{r}")
    a(f"""v_cmp_ne_u32 vcc, 0, v{regs[0]}
    s_cmp_gt_u32 s50, {SPIN}
    s_cbranch_scc1 {e}
    s_cbranch_vccnz {l}""")
    a.label(e)

def set_flag(a, soff, vt):
    a(f"""v_mov_b32 v{vt}, 0
    v_mov_b32 v{vt+1}, s{NONCE}
    s_mov_b64 exec, 1
    buffer_store_dword v{vt+1}, v{vt}, s[12:15], s{soff} offen sc1
    s_mov_b64 exec, -1""")

def attn_ids(a):
    if LOC: a(f"s_mov_b32 s{HEAD5}, s{IDX}\ns_mov_b32 s{QB}, s{XCD}")
    else: a(f"""s_lshl_b32 s{HEAD5}, s{XCD}, 2
    s_lshr_b32 s22, s{IDX}, 3
    s_add_u32 s{HEAD5}, s{HEAD5}, s22
    s_and_b32 s{QB}, s{IDX}, 7""")
    a(f"""s_mul_i32 s22, s{QB}, {16*OG}
    s_add_u32 s22, s22, {WS_O}
    s_lshl_b32 s{OOCT}, s{HEAD5}, 9
    s_add_u32 s{OOCT}, s{OOCT}, s22
    s_lshl_b32 s{OTAIL}, s{HEAD5}, 7
    s_add_u32 s{OTAIL}, s{OTAIL}, s22
    s_add_u32 s{OTAIL}, s{OTAIL}, 16384
    s_mul_i32 s{HEAD5}, s{HEAD5}, 5
    s_lshl_b32 s{OOFF}, s{HEAD5}, 10
    s_mul_i32 s22, s{QB}, {2*TTS_}
    s_add_u32 s{OOFF}, s{OOFF}, s22""")

def clear_o(a):
    a(f"""v_lshrrev_b32 v140, 5, v2
    v_mul_u32_u24 v140, {2*OG}, v140
    v_add_u32 v140, v140, v{OST}
    v_mov_b32 v136, -1
    v_mov_b32 v137, -1
    v_mov_b32 v138, -1
    v_mov_b32 v139, -1
    s_mul_i32 s24, s{HW}, {4*OG}
    s_add_u32 s22, s24, s{OOCT}
    s_add_u32 s23, s22, {2*OG}
    s_add_u32 s24, s24, s{OTAIL}
    buffer_store_dwordx4 v[136:139], v{OSA}, s[12:15], s22 offen sc1
    buffer_store_dwordx4 v[136:139], v{OSA}, s[12:15], s23 offen sc1
    buffer_store_dwordx2 v[136:137], v140, s[12:15], s24 offen sc1""")

def arr_init(a):
    a(f"v_mov_b32 v220, {CNT}\nv_mov_b32 v222, 0\nv_mov_b32 v223, 0\nds_write_b64 v220, v[222:223]")

def utile_issue(a):
    srd(a, 4, P_U, 2048*1280)
    a(f"""v_lshlrev_b32 v4, 4, v9
    v_mul_u32_u24 v3, 1280, v8
    v_add_u32 v3, v3, v4
    s_mov_b32 m0, s27
    s_lshr_b32 s23, s26, 5
    s_and_b32 s28, s26, 31
    s_mul_i32 s24, s28, {64*1280}
    s_lshl_b32 s22, s23, 7
    s_add_u32 s24, s24, s22
    s_mov_b32 s30, 0""")
    a.label("L_ut_i")
    a(f"""buffer_load_dwordx4 v3, s[4:7], s24 offen {UNT} lds
    s_add_u32 m0, m0, 1024
    s_add_u32 s24, s24, {8*1280}
    s_add_u32 s30, s30, 1
    s_cmp_lt_u32 s30, 8
    s_cbranch_scc1 L_ut_i""")
def utile(a):
    A0, A1, A2, A3, D = 8, 9, 10, 11, 12
    a(f"""s_lshr_b32 s23, s26, 5
    v_xor_b32 v{A1}, v{A1}, v{A0}
    v_lshlrev_b32 v{A1}, 4, v{A1}
    v_mul_u32_u24 v{A3}, {RS}, v{A0}
    v_add_u32 v{A3}, v{A3}, v{A1}
    v_lshlrev_b32 v{A0}, 4, v2
    v_add_u32 v{A0}, s27, v{A0}
    v_bfe_u32 v{A1}, v2, 2, 2
    v_lshlrev_b32 v{A1}, 7, v{A1}
    v_lshrrev_b32 v{A2}, 4, v2
    v_lshl_add_u32 v{A1}, v{A2}, 5, v{A1}
    v_and_b32 v{A2}, 3, v2
    v_lshl_add_u32 v{A1}, v{A2}, 3, v{A1}
    v_add_u32 v{A1}, s27, v{A1}
    v_and_b32 v{A2}, 7, v2
    v_lshlrev_b32 v{A2}, 4, v{A2}
    v_lshl_add_u32 v{A2}, v2, 7, v{A2}
    v_add_u32 v{A2}, s27, v{A2}
    s_mul_i32 s23, s23, {64*RS}
    s_lshl_b32 s24, s28, 7
    s_add_u32 s24, s24, s23
    s_add_u32 s24, s24, {WS_UT}
    s_lshl_b32 s29, s26, 7
    s_add_u32 s29, s29, {WS_FA}""")
    stamp(a, 27)
    a("s_waitcnt vmcnt(0)")
    stamp(a, 28)
    for i in range(16): a(f"ds_read_b64_tr_b16 {v(D+2*i,2)}, v{A1} offset:{i*512}")
    a("s_waitcnt lgkmcnt(0)")
    for i in range(8): a(f"v_xor_b32 v4, {16*i}, v{A2}\nds_write_b128 v4, {v(D+4*i,4)}")
    a("s_waitcnt lgkmcnt(0)")
    for i in range(8): a(f"ds_read_b128 {v(D+4*i,4)}, v{A0} offset:{i*1024}")
    for i in range(8):
        a(f"s_waitcnt lgkmcnt({7-i})\nbuffer_store_dwordx4 {v(D+4*i,4)}, v{A3}, s[12:15], s24 offen sc1\ns_add_u32 s24, s24, {8*RS}")
    stamp(a, 2)
    a(f"s_mov_b32 s33, s29\ns_cmp_lt_u32 s{IDX}, 30\ns_cbranch_scc1 L_h_ld0")
    get_nonce(a)
    a("s_waitcnt vmcnt(0)")
    set_flag(a, 29, 4)
    stamp(a, 3)

def next_slot(a, cur, tmp):
    a(f"""s_add_u32 s{cur}, s{cur}, {RING}
    s_lshr_b32 s{tmp}, s{cur}, 15
    s_cmp_eq_u32 s{tmp}, 3
    s_cselect_b32 s{tmp}, {RING}, 0
    s_add_u32 s{cur}, s{cur}, s{tmp}
    s_cmp_ge_u32 s{cur}, {5*RING}
    s_cselect_b32 s{tmp}, {5*RING}, 0
    s_sub_u32 s{cur}, s{cur}, s{tmp}""")

ORD = sys.argv[sys.argv.index('--ord')+1] if '--ord' in sys.argv else 'pair'
def orders():
    if ORD == 'none': return [list(range(10))]*4
    if ORD == 'pair': return [[c ^ (t & 1) for c in range(10)] for t in range(4)]
    if ORD == 'quad': return [[(c ^ t) if c < 8 else (c ^ (t & 1)) for c in range(10)] for t in range(4)]
    if ORD == 'half': return [[(c + 5*(t & 1)) % 10 for c in range(10)] for t in range(4)]
    if ORD == 'rot': return [[(c + (0, 3, 5, 8)[t]) % 10 for c in range(10)] for t in range(4)]
    if ORD == 'tri': return [[(c//3*3 + (c + t) % 3) if c < 9 else 9 for c in range(10)] for t in (0, 1, 2, 1)]
def loader_math(a):
    a(f"""s_lshr_b32 s{TT}, s{XCD}, 1
    s_lshl_b32 s{TT}, s{TT}, 2
    s_and_b32 s24, s{XCD}, 1
    s_and_b32 s22, s{IDX}, 3
    s_lshr_b32 s23, s{IDX}, 2
    s_lshl_b32 s{CT}, s24, 3
    s_add_u32 s{CT}, s{CT}, s23
    s_lshl_b32 s24, s24, 1
    s_cmp_ge_u32 s{IDX}, 28
    s_cselect_b32 s{CT}, 7, s{CT}
    s_cselect_b32 s24, s24, 0
    s_add_u32 s22, s22, s24
    s_add_u32 s{TT}, s{TT}, s22
    s_add_u32 s22, s{TT}, s{CT}
    s_and_b32 s22, s22, 3""")
    tb = [sum(c << (4*i) for i, c in enumerate(o)) for o in orders()]
    a(f"s_mov_b32 s{TB}, {tb[0] & 0xffffffff}\ns_mov_b32 s{TB+1}, {tb[0] >> 32}")
    for t in range(1, 4):
        if tb[t] != tb[0]: a(f"s_cmp_eq_u32 s22, {t}\ns_cselect_b32 s{TB}, {tb[t] & 0xffffffff}, s{TB}\ns_cselect_b32 s{TB+1}, {tb[t] >> 32}, s{TB+1}")
    a(f"""v_lshrrev_b32 v8, 3, v2
    v_and_b32 v9, 7, v2
    v_lshrrev_b32 v5, 1, v8
    s_and_b32 s22, s{HW}, 1
    s_lshl_b32 s22, s22, 2
    v_add_u32 v5, s22, v5
    v_xor_b32 v4, v9, v5
    v_lshlrev_b32 v4, 4, v4
    v_mul_u32_u24 v3, 2560, v8
    v_add_u32 v{DX}, v3, v4
    s_lshl_b32 s{XS}, s{TT}, 3
    s_add_u32 s{XS}, s{XS}, s{HW}
    s_mul_i32 s{XS}, s{XS}, {16*1280}
    v_lshrrev_b32 v3, 4, v2
    v_bfe_u32 v4, v2, 2, 2
    v_xor_b32 v4, v4, v3
    v_lshlrev_b32 v4, 6, v4
    v_and_b32 v5, 3, v2
    v_lshlrev_b32 v5, 4, v5
    v_mul_u32_u24 v3, 3840, v3
    v_add3_u32 v{DW}, v3, v4, v5
    s_lshl_b32 s{WSO}, s{CT}, 8
    s_mul_i32 s22, s{HW}, {4*3840}
    s_add_u32 s{WSO}, s{WSO}, s22
    s_lshl_b32 s{LB}, s{HW}, 10
    s_lshl_b32 s22, s{KH}, 15
    s_add_u32 s{LB}, s{LB}, s22
    s_lshl_b32 s22, s{KH}, 2
    s_lshr_b64 s[{TB}:{TB+1}], s[{TB}:{TB+1}], s22""")
    for i in range(1, 4):
        a(f"v_add_u32 v{DX+i}, {(64*(i>>1) + (i&1))*1280}, v{DX}\nv_add_u32 v{DW+i}, {i*16*3840}, v{DW}")
def dma_prep():
    return f"""s_and_b32 s24, s{TB}, 15
    s_lshr_b64 s[{TB}:{TB+1}], s[{TB}:{TB+1}], 4
    s_lshl_b32 s22, s24, 7
    s_add_u32 s22, s22, s{XS}
    s_mul_i32 s23, s24, {64*3840}
    s_add_u32 s23, s23, s{WSO}"""
def dma(k):
    i = k >> 1
    if k & 1 == 0: return f"s_add_u32 m0, s{LB}, {i*4096}\ns_nop 0\nbuffer_load_dwordx4 v{DX+i}, s[60:63], s22 offen lds"
    return f"s_add_u32 m0, s{LB}, {16384+i*4096}\ns_nop 0\nbuffer_load_dwordx4 v{DW+i}, s[8:11], s23 offen lds"
def dma_adv():
    return f"""s_add_u32 s{LB}, s{LB}, {RING}
    s_cmp_ge_u32 s{LB}, {3*RING}
    s_cselect_b32 s24, {3*RING}, 0
    s_sub_u32 s{LB}, s{LB}, s24"""
def issue(a):
    a(dma_prep())
    for k in range(8): a(dma(k))
    next_slot(a, LB, 22)
def skip(a):
    a(f"s_lshr_b64 s[{TB}:{TB+1}], s[{TB}:{TB+1}], 4")
    next_slot(a, LB, 22)
def lds_wait(a, va, off, vt, sleep=True):
    l = a.newlabel("L_lw"); e = a.newlabel("L_le")
    a.label(l)
    a(f"""ds_read_b32 v{vt}, v{va} offset:{off}
    s_waitcnt lgkmcnt(0)
    v_readfirstlane_b32 s22, v{vt}
    s_cmp_ge_u32 s22, 4
    s_cbranch_scc1 {e}""")
    if sleep: a("s_sleep 2")
    a(f"s_branch {l}")
    a.label(e)

def main_pre(a):
    def wg_of(tt, ct, dst):
        a(f"""v_cmp_eq_u32 vcc, 7, v{ct}
        v_bfe_u32 v10, v{tt}, 1, 1
        v_lshrrev_b32 v11, 3, v{ct}
        v_cndmask_b32 v10, v11, v10, vcc
        v_and_b32 v11, 3, v{tt}
        v_and_b32 v12, 1, v{tt}
        v_cndmask_b32 v11, v11, v12, vcc
        v_and_b32 v12, 7, v{ct}
        v_lshl_add_u32 v11, v12, 2, v11
        v_lshl_add_u32 v10, v11, 3, v10
        v_lshrrev_b32 v11, 2, v{tt}
        v_lshl_add_u32 v{dst}, v11, 1, v10""")
    a(f"""v_and_b32 v3, 15, v2
    v_lshrrev_b32 v4, 5, v2
    v_mul_u32_u24 v4, 160, v4
    v_bfe_u32 v5, v2, 4, 1
    v_lshl_add_u32 v4, v5, 2, v4
    s_add_u32 s22, s{HEAD5}, 160
    v_add_u32 v4, s22, v4
    v_lshrrev_b32 v4, 5, v4""")
    wg_of(3, 4, 8)
    a(f"""v_lshlrev_b32 v8, 7, v8
    v_add_u32 v{PL1}, {WS_FB}, v8
    v_and_b32 v3, 1, v2
    s_lshl_b32 s22, s{QB}, 1
    v_add_u32 v3, s22, v3
    v_bfe_u32 v4, v2, 1, 1
    v_lshlrev_b32 v4, 2, v4
    v_add_u32 v4, s{HEAD5}, v4
    v_lshrrev_b32 v4, 5, v4""")
    wg_of(3, 4, 9)
    if LOC: a(f"v_lshl_add_u32 v3, v2, 3, s{XCD}")
    else: a(f"""v_bfe_u32 v3, v2, 3, 2
    v_lshlrev_b32 v3, 6, v3
    v_and_b32 v4, 7, v2
    s_lshl_b32 s22, s{XCD}, 3
    v_add3_u32 v3, v3, v4, s22""")
    a(f"""v_cmp_gt_u32 vcc, 32, v2
    s_nop 1
    v_cndmask_b32 v9, v9, v3, vcc
    v_lshlrev_b32 v9, 7, v9
    v_add_u32 v{PL2}, {WS_FB}, v9""")

def gemm(a):
    XA = [10, 11, 12, 13]; WA = [14, 15]
    FX = [[16, 20], [32, 36]]; FW = [[24, 28], [40, 44]]
    ACC = 48
    a(f"""s_and_b32 s34, s{WV}, 1
    s_lshr_b32 s35, s{WV}, 1
    v_and_b32 v3, 31, v2
    v_lshrrev_b32 v4, 5, v2
    v_bfe_u32 v5, v3, 1, 3
    v_xor_b32 v5, v5, v4
    v_lshlrev_b32 v5, 4, v5
    v_lshlrev_b32 v6, 7, v3
    s_lshl_b32 s22, s34, 13
    v_add3_u32 v{XA[0]}, v5, v6, s22
    v_xor_b32 v{XA[1]}, 32, v{XA[0]}
    v_xor_b32 v{XA[2]}, 64, v{XA[0]}
    v_xor_b32 v{XA[3]}, 96, v{XA[0]}
    v_bfe_u32 v5, v2, 2, 2
    s_lshl_b32 s22, s35, 1
    v_xor_b32 v6, s22, v5
    v_lshlrev_b32 v6, 6, v6
    v_lshlrev_b32 v7, 3, v4
    v_add_u32 v7, v7, v5
    v_lshlrev_b32 v7, 8, v7
    v_bfe_u32 v5, v2, 4, 1
    v_lshlrev_b32 v5, 5, v5
    v_add3_u32 v6, v6, v7, v5
    v_and_b32 v5, 3, v2
    v_lshl_add_u32 v6, v5, 3, v6
    v_add_u32 v{WA[0]}, 16384, v6
    v_xor_b32 v{WA[1]}, 64, v{WA[0]}
    v_lshlrev_b32 v5, 10, v4
    v_lshl_add_u32 v5, v3, 4, v5
    s_lshl_b32 s26, s{CT}, 5
    s_lshl_b32 s23, s35, 4
    s_add_u32 s26, s26, s23
    s_lshl_b32 s26, s26, 10
    s_mul_i32 s23, s{TT}, {TTS_}
    s_add_u32 s26, s26, s23
    s_lshl_b32 s23, s34, 9
    s_add_u32 s26, s26, s23""")
    for i in range(64): a(f"v_mov_b32 v{ACC+i}, 0")
    def rx(ks, buf, t): return f"ds_read_b128 {v(FX[buf][t],4)}, v{XA[ks]} offset:{t*4096}"
    def rw(ks, buf, m, rd): return f"ds_read_b64_tr_b16 {v(FW[buf][m]+2*rd,2)}, v{WA[m]} offset:{(16*ks+4*rd)*256}"
    def rds(ks, buf): return [rx(ks,buf,0), rw(ks,buf,0,0), rw(ks,buf,0,1), rx(ks,buf,1), rw(ks,buf,1,0), rw(ks,buf,1,1)]
    def mf(buf, m, t): return m32(ACC+(m*2+t)*16, FW[buf][m], FX[buf][t], ACC+(m*2+t)*16)
    stamp(a, 24)
    a(f"s_cmp_lt_u32 s{IDX}, 20\ns_cbranch_scc1 L_g_w")
    issue(a)
    a("s_waitcnt vmcnt(8)")
    issue(a)
    a("s_branch L_g_b0")
    a.label("L_g_w")
    a("s_waitcnt vmcnt(8) lgkmcnt(0)")
    a.label("L_g_b0")
    stamp(a, 25)
    a(f"s_cmp_lt_u32 s{CT}, 5\ns_cselect_b32 s28, {f32hex(QSCALE)}, 1.0")
    a("s_mov_b32 s30, 0\ns_mov_b32 s31, 0\ns_setprio 2")
    stamp(a, 26)
    a("s_barrier")
    stamp(a, 2)
    a(J(rds(0, 0)))
    a(".p2align 3")
    a.label("L_g_mm")
    for ks in range(4):
        b = ks & 1
        r = rds((ks+1) & 3, b ^ 1)
        a("s_waitcnt lgkmcnt(3)")
        a(mf(b, 0, 0))
        if ks < 3:
            a(J(r[0:3]) + "\ns_waitcnt lgkmcnt(5)")
            a(mf(b, 0, 1))
            a(J(r[3:6]) + "\ns_waitcnt lgkmcnt(6)")
            a(mf(b, 1, 0))
            if ks == 0:
                a("s_mov_b32 s32, s31"); next_slot(a, 31, 33)
            if ks == 1: a(f"s_sub_u32 s33, s31, s32\ns_add_u32 s30, s30, 1\nv_add_u32 v{XA[0]}, s33, v{XA[0]}\nv_add_u32 v{XA[1]}, s33, v{XA[1]}\nv_add_u32 v{XA[2]}, s33, v{XA[2]}")
            if ks == 2: a(f"v_add_u32 v{XA[3]}, s33, v{XA[3]}\nv_add_u32 v{WA[0]}, s33, v{WA[0]}\nv_add_u32 v{WA[1]}, s33, v{WA[1]}\ns_cmp_eq_u32 s30, 1")
            a(mf(b, 1, 1))
        else:
            a("s_cbranch_scc1 L_g_w8\ns_waitcnt vmcnt(0)")
            a.label("L_g_w8")
            a("s_waitcnt vmcnt(8) lgkmcnt(0)\ns_cmp_gt_u32 s30, 8\ns_cbranch_scc1 L_g_nb\ns_barrier")
            a.label("L_g_nb")
            a(mf(b, 0, 1))
            a(J(r[0:3]) + "\ns_cmp_lt_u32 s30, 10")
            a(mf(b, 1, 0))
            a(J(r[3:6]))
            a(mf(b, 1, 1))
            a("s_cbranch_scc1 L_g_mm")
    stamp(a, 3)
    a("s_nop 4\ns_waitcnt lgkmcnt(0)")
    k = 0
    for m in range(2):
        for g in range(4):
            d = 16 + 4*k; k += 1
            for t in range(2):
                r = ACC + (m*2+t)*16 + 4*g
                for i in range(4): a(f"v_mul_f32 v{r+i}, s28, v{r+i}")
                a(f"v_cvt_pk_bf16_f32 v{d+2*t}, v{r}, v{r+1}\nv_cvt_pk_bf16_f32 v{d+2*t+1}, v{r+2}, v{r+3}")
            if k & 1: a(f"s_add_u32 s23, s26, {WS_QKV + (m*8+2*g)*1024}")
            a(f"buffer_store_dwordx4 {v(d,4)}, v5, s[12:15], s23 offen offset:{0 if k & 1 else 2048} sc1")

PRM = 152
VD = 233
def cm(d, x, z, t):
    return [f"v_pk_mul_f32 {v(t,2)}, {v(x,2)}, {v(z,2)} op_sel:[0,0] op_sel_hi:[1,0]",
            f"v_pk_fma_f32 {v(d,2)}, {v(x,2)}, {v(z,2)}, {v(t,2)} op_sel:[1,1,0] op_sel_hi:[0,1,1] neg_lo:[0,1,0]"]
def ilv(*ls):
    out = []
    for i in range(max(len(x) for x in ls)):
        for x in ls:
            if i < len(x): out.append(x[i])
    return out
GDT, GER, GTH, GT = 112, 113, 114, 116
def kg_dt(a):
    a(f"""v_lshlrev_b32 v{GDT}, 16, v{PRM+4}
    v_mul_f32 v{GDT}, {f32hex(LOG2E)}, v{GDT}
    v_exp_f32 v{GDT}, v{GDT}
    s_lshl_b32 s22, s{KH}, 4
    v_cvt_pk_bf16_f32 v{GDT}, v{GDT}, v{GDT}
    v_and_b32 v{GDT}, 0xffff0000, v{GDT}""")
def kg_setup(anchors, X0):
    o = f"""v_lshlrev_b32 v{PRM}, s22, v{PRM}
    v_lshlrev_b32 v{PRM+1}, s22, v{PRM+1}
    v_and_b32 v{GER}, 0xffff0000, v{PRM}
    v_mul_f32 v{GER}, {f32hex(LOG2E)}, v{GER}
    v_exp_f32 v{GER}, v{GER}
    v_and_b32 v{GTH}, 0xffff0000, v{PRM+1}
    v_lshlrev_b32 v{PRM+2}, s22, v{PRM+2}
    v_cvt_pk_bf16_f32 v{GER}, v{GER}, v{GER}
    v_lshlrev_b32 v{PRM+3}, s22, v{PRM+3}
    v_and_b32 v{GER}, 0xffff0000, v{GER}
    v_mul_f32 v{GER}, v{GER}, v{GDT}
    v_mul_f32 v{GTH}, v{GTH}, v{GDT}
    v_mul_f32 v{GER}, {f32hex(-LOG2E)}, v{GER}
    v_mul_f32 v{GTH}, 0.15915494, v{GTH}
    v_and_b32 v{X0}, 0xffff0000, v{PRM+2}
    v_and_b32 v{X0+1}, 0xffff0000, v{PRM+3}
    v_mul_f32 v{X0}, v{X0}, v{GDT}
    v_mul_f32 v{X0+1}, v{X0+1}, v{GDT}
    v_add_f32 v{X0}, v{X0}, v{X0}
    v_add_f32 v{X0+1}, v{X0+1}, v{X0+1}""".split("\n")
    for (z, p) in anchors:
        o += f"""v_mul_f32 v{GT}, {f32hex(p)}, v{GER}
        v_mul_f32 v{GT+1}, {f32hex(p)}, v{GTH}
        v_exp_f32 v{GT}, v{GT}
        v_fract_f32 v{GT+1}, v{GT+1}
        v_cos_f32 v{z}, v{GT+1}
        v_sin_f32 v{z+1}, v{GT+1}
        v_mul_f32 v{z}, v{z}, v{GT}
        v_mul_f32 v{z+1}, v{z+1}, v{GT}""".split("\n")
    return o

def krow():
    def row(h, reg): return 8*(reg >> 2) + 4*h + (reg & 3)
    rowp = {}
    for p in range(4): rowp[row(0, p)] = p; rowp[row(1, p)] = p + 4
    for i, (p0, p1) in enumerate(((256, 260), (258, 262), (260, 264), (512, 768), (516, 772), (520, 776), (1024, 1280), (1032, 1288), (1536, 1792), (1544, 1800))):
        rowp[row(0, 4+i)] = p0; rowp[row(1, 4+i)] = p1
    return rowp
XORD = [1, 2, 3, 4, 5, 6, 7, 258, 260, 262, 516, 772, 1544, 1800, 0, 256, 264, 512, 520, 768, 776, 1024, 1032, 1280, 1288, 1536, 1792]
PKA = 160
KACC = 192
GWA, GRA, GFX = 16, 32, 112
def kgen(a, mid):
    Z1, Z8, ZW, ZB, YA, X0 = 124, 126, 128, 130, 132, 134
    rowp = krow()
    a(f"s_lshl_b32 s28, s{WV}, 13\ns_add_u32 s28, s28, {KSC}")
    kgen_addr(a)
    a(f"v_mov_b32 v{PKA}, 0x3f80\ns_waitcnt vmcnt(8)")
    stamp(a, 20)
    kg_dt(a)
    a(J(kg_setup(((Z8, 8.0), (ZB, 128.0), (Z1, 1.0), (ZW, 256.0)), X0)))
    def pack(p):
        r = X0 + 2*(p % 256)
        return [f"v_cvt_pk_bf16_f32 v{PKA+32+XORD.index(p)}, v{r}, -v{r+1}"]
    def step(p, t):
        if p < 8: return cm(X0+2*p, X0+2*p-2, Z1, t) + pack(p)
        if p == 8: return cm(X0+16, X0, Z8, t) + pack(0)
        b = p % 256
        return cm(X0+2*b, X0+2*b, ZW, t) + pack(p)
    s1 = sum((step(p, GT) for p in (1, 2, 3, 4, 5, 6, 7, 258, 260, 262, 516, 772, 1544, 1800)), [])
    s2 = sum((step(p, GT+2) for p in (8, 256, 264, 512, 520, 768, 776, 1024, 1032, 1280, 1288, 1536, 1792)), [])
    ya = [f"v_cvt_pk_bf16_f32 v{PKA+1}, v{Z8}, v{Z8+1}"]
    for j in range(2, 16): ya += cm(YA, Z8 if j == 2 else YA, Z8, GT+4) + [f"v_cvt_pk_bf16_f32 v{PKA+j}, v{YA}, v{YA+1}"]
    yb = [f"v_cvt_pk_bf16_f32 v{PKA+16}, v{ZB}, v{ZB+1}"]
    for j in range(17, 32): yb += cm(ZB, ZB, Z8, GT+6) + [f"v_cvt_pk_bf16_f32 v{PKA+j}, v{ZB}, v{ZB+1}"]
    a(J(ilv(ya, yb)))
    ly = [f"ds_write2st64_b32 v{GWA+j}, v{PKA+j}, v{PKA+16+j} offset0:{j} offset1:{16+j}" for j in range(16)]
    ly += [f"ds_read_b128 {v(PKA+4*ks,4)}, v{GRA+ks}" for ks in range(8)]
    xs = ilv(s1, s2)
    for i, x in enumerate(xs):
        a(x)
        if i % 3 == 0 and i // 3 < len(ly): a(ly[i // 3])
    assert len(xs) // 3 >= len(ly)
    stamp(a, 21)
    for j in range(16):
        if j + 16 in rowp: a(f"ds_write2st64_b32 v{GWA+j}, v{PKA+32+XORD.index(rowp[j])}, v{PKA+32+XORD.index(rowp[j+16])} offset0:{j} offset1:{16+j}")
        else: a(f"ds_write_b32 v{GWA+j}, v{PKA+32+XORD.index(rowp[j])} offset:{j*256}")
    for ks in range(8): a(f"ds_read_b128 {v(GFX+4*ks,4)}, v{GRA+ks}")
    for ks in range(8):
        a(f"s_waitcnt lgkmcnt({7-ks})")
        a(m32(KACC, GFX+4*ks, PKA+4*ks, KACC if ks else None))
    stamp(a, 22)
def kgen_addr(a):
    WA, RA = 16, 32
    a(f"""v_lshlrev_b32 v{WA}, 2, v2
    v_add_u32 v{WA}, s28, v{WA}
    v_and_b32 v{RA}, 31, v2
    v_lshrrev_b32 v3, 5, v2
    v_and_b32 v4, 15, v2
    v_xor_b32 v3, v3, v4
    v_lshlrev_b32 v3, 4, v3
    v_lshl_add_u32 v{RA}, v{RA}, 8, v3
    v_add_u32 v{RA}, s28, v{RA}""")
    for i in range(1, 16): a(f"v_xor_b32 v{WA+i}, {16*i}, v{WA}")
    for i in range(1, 8): a(f"v_xor_b32 v{RA+i}, {32*i}, v{RA}")

KP = 160
def kpack(a, kdst):
    Jv, H, AD = 10, 11, 12
    R = KACC; P0 = KP
    a(f"""v_and_b32 v{Jv}, 31, v2
    v_lshrrev_b32 v{H}, 5, v2
    v_lshlrev_b32 v{AD}, 4, v{Jv}
    v_sub_u32 v{AD}, s{kdst}, v{AD}
    v_lshlrev_b32 v13, 3, v{H}
    v_sub_u32 v216, v{AD}, v13
    v_lshlrev_b32 v13, 9, v{H}
    v_sub_u32 v217, v{AD}, v13
    v_and_b32 v{H}, 1, v{Jv}
    v_cmp_eq_u32 vcc, 0, v{H}
    v_lshlrev_b32 v{Jv}, 2, v{Jv}
    v_add_u32 v218, s{kdst}, v{Jv}
    v_lshlrev_b32 v15, 16, v{VD}
    s_mov_b64 exec, 1
    v_add_f32 v{R}, v{R}, v15
    s_mov_b64 exec, -1""")
    cv = lambda d, lo, hi: a(f"v_cvt_pk_bf16_f32 v{d}, v{lo}, v{hi}")
    cv(P0, R+3, R+2); cv(P0+1, R+1, R+0)
    cv(P0+2, R+6, R+5); cv(P0+3, R+4, R+4)
    cv(P0+4, R+9, R+9); cv(P0+5, R+8, R+8); cv(P0+6, R+8, R+7); cv(P0+7, R+7, R+7)
    for sidx in range(2):
        ra, rb = R+10+2*sidx, R+11+2*sidx
        d = P0 + 8 + 4*sidx
        a(f"v_cndmask_b32 v13, v{rb}, v{ra}, vcc")
        cv(d, rb, rb); cv(d+1, rb, 13); cv(d+2, ra, ra); cv(d+3, ra, ra)
def kwrite(a, vzero):
    P0 = KP
    a(f"""ds_write_b64 v216, {v(P0,2)} offset:{4080+8}
    ds_write_b64 v216, {v(P0+2,2)} offset:{4080-512+8}
    ds_write_b128 v217, {v(P0+4,4)} offset:{4080-1024}
    ds_write_b128 v217, {v(P0+8,4)} offset:{4080-2048}
    ds_write_b128 v217, {v(P0+12,4)} offset:{4080-3072}
    ds_write_b32 v218, v{vzero} offset:4096""")

CAA, CBA, CACC = 10, 11, 148
def conv_setup(a, cbase):
    a(f"""v_and_b32 v3, 3, v2
    v_mul_u32_u24 v{CAA}, {UST}, v3
    v_bfe_u32 v3, v2, 2, 2
    v_lshl_add_u32 v{CAA}, v3, 7, v{CAA}
    v_lshrrev_b32 v4, 4, v2
    v_lshl_add_u32 v{CAA}, v4, 4, v{CAA}
    v_add_u32 v{CAA}, s{cbase}, v{CAA}
    v_and_b32 v3, 15, v2
    v_lshlrev_b32 v3, 3, v3
    v_lshlrev_b32 v{CBA}, 4, v4
    v_sub_u32 v{CBA}, v{CBA}, v3
    v_add_u32 v{CBA}, {KOFF+120}, v{CBA}
    v_add_u32 v{CBA}, s{cbase}, v{CBA}""")
    for i in range(32): a(f"v_mov_b32 v{CACC+i}, 0")
def conv(a, ydst, mid):
    FA = [16, 80]; FB = [48, 112]; ACC = CACC
    def loads(b, extra):
        out = []
        for k in range(8):
            out += [f"ds_read_b64 {v(FB[b]+4*k,2)}, v{CBA} offset:{512*(7-k)+extra}", f"ds_read_b64 {v(FB[b]+4*k+2,2)}, v{CBA} offset:{512*(7-k)+8+extra}",
                    f"ds_read_b128 {v(FA[b]+4*k,4)}, v{CAA} offset:{512*k+extra}"]
        return out
    a("s_waitcnt lgkmcnt(0)")
    a(J(loads(0, 0)))
    a(mid)
    a("s_mov_b32 s53, 0\n.p2align 3")
    lp = a.newlabel("L_cv")
    a.label(lp)
    pairs = sorted([(i, j) for i in range(8) for j in range(8) if i + j < 8], key=lambda p: (max(p), p))
    for b in range(2):
        ld = loads(b ^ 1, 64*(b+1))
        a("s_waitcnt lgkmcnt(0)")
        for n, (i, j) in enumerate(pairs):
            a(m16(ACC+4*(i+j), FA[b]+4*i, FB[b]+4*j, ACC+4*(i+j)))
            if n < 24: a(ld[n])
            if b == 1 and n == 26: a(f"v_add_u32 v{CAA}, 128, v{CAA}")
            if b == 1 and n == 27: a(f"v_add_u32 v{CBA}, 128, v{CBA}")
            if b == 1 and n == 28: a("s_add_u32 s53, s53, 1\ns_cmp_lt_u32 s53, 4")
    a(f"s_cbranch_scc1 {lp}")
    a("v_lshlrev_b32 v3, 3, v2")
    for b in range(8):
        ac = ACC + 4*b
        a(f"""v_cvt_pk_bf16_f32 v{ac}, v{ac}, v{ac+1}
        v_cvt_pk_bf16_f32 v{ac+1}, v{ac+2}, v{ac+3}
        buffer_store_dwordx2 {v(ac,2)}, v3, s[12:15], s{ydst} offen offset:{512*b} sc1""")

def helper(a):
    CB = 26
    UE = 132
    a(f"""s_mov_b32 s33, 0
    s_cmp_ge_u32 s{IDX}, 20
    s_cbranch_scc1 L_h_tr
    s_lshr_b32 s{FCOFF}, s{CHN}, 2
    s_lshl_b32 s{FCOFF}, s{FCOFF}, 7
    s_lshl_b32 s22, s{HW}, 2
    s_add_u32 s{FCOFF}, s{FCOFF}, s22
    s_add_u32 s{FCOFF}, s{FCOFF}, {WS_FC}
    s_lshr_b32 s22, s{CHN}, 6
    s_lshl_b32 s22, s22, 12
    s_add_u32 s22, s22, {WS_FA}
    v_and_b32 v4, 31, v2
    v_lshl_add_u32 v8, v4, 7, s22
    s_mul_i32 s{CB}, s{HW}, {CHA}
    s_add_u32 s{CB}, s{CB}, {CVB}
    s_mul_i32 s27, s{CHN}, {RS}
    s_add_u32 s27, s27, {WS_UT}
    s_add_u32 s29, s{CB}, {KOFF}
""")
    issue(a)
    skip(a)
    a.label("L_kgen")
    kgen(a, None)
    a(f"s_cmp_eq_u32 s{KH}, 0\ns_cbranch_scc1 L_g_kb")
    stamp(a, 3)
    a("s_waitcnt vmcnt(0)\ns_branch L_h_ld1")
    a.label("L_h_tr")
    a(f"s_cmp_ge_u32 s26, 320\ns_cbranch_scc1 L_h_ld0")
    a.label("L_utile")
    utile(a)
    a("s_branch L_tr_back")
    a.label("L_h_ld0")
    a(f"v_mov_b32 v8, {WS_FA}")
    skip(a); skip(a)
    a.label("L_h_ld1")
    a("s_mov_b32 s30, 0")
    a.label("L_h_ld")
    a("s_waitcnt vmcnt(16) lgkmcnt(0)\ns_barrier")
    if PROF: a(f"s_memtime s[92:93]\ns_add_u32 m0, s30, 32\ns_waitcnt lgkmcnt(0)\nv_writelane_b32 v{PV}, s92, m0")
    issue(a)
    a(f"""s_add_u32 s30, s30, 1
    s_cmp_lg_u32 s30, 2
    s_cbranch_scc1 L_h_l1""")
    get_nonce(a)
    arr_init(a)
    a("s_cmp_eq_u32 s33, 0\ns_cbranch_scc1 L_h_l1\ns_waitcnt vmcnt(16)")
    set_flag(a, 33, 4)
    stamp(a, 3)
    a.label("L_h_l1")
    a(f"""s_cmp_lg_u32 s30, {POLLC}
    s_cbranch_scc1 L_h_l2
    buffer_load_dword v9, v8, s[12:15], 0 offen sc1""")
    a.label("L_h_l2")
    a(f"""s_cmp_lt_u32 s30, 7
    s_cbranch_scc1 L_h_ld
    s_cmp_lt_u32 s{IDX}, 20
    s_cbranch_scc1 L_h_k7
    s_waitcnt vmcnt(16)
    s_barrier
    s_waitcnt vmcnt(0)
    s_barrier""")
    a.label("L_h_ids")
    a("s_mov_b32 s33, 2")
    attn_ids(a)
    o_maps(a)
    a("s_branch L_setup")
    a.label("L_h_k7")
    def uloads():
        for i in range(4): a(f"buffer_load_dwordx4 {v(132+4*i,4)}, v{DMV}, s[12:15], s27 offen offset:{1024*i} sc1")
    a("s_waitcnt vmcnt(16)\ns_barrier")
    stamp(a, 39)
    a(f"""s_sub_u32 s28, s28, 32768
    v_add_u32 v6, s28, v{DMV}
    v_cmp_ne_u32 vcc, s{NONCE}, v9
    s_mov_b32 s31, 0""")
    for i in range(4): a(f"ds_read_b128 {v(16+4*i,4)}, v6 offset:{1024*i}")
    a("s_cbranch_vccnz L_h_nu")
    uloads()
    a("s_mov_b32 s31, 1\ns_branch L_h_n2")
    a.label("L_h_nu")
    a("s_waitcnt vmcnt(0)")
    a.label("L_h_n2")
    a("s_waitcnt lgkmcnt(0)")
    for i in range(0, 14, 2): a(f"v_pk_add_f32 {v(KACC+i,2)}, {v(KACC+i,2)}, {v(16+i,2)}")
    kpack(a, 29)
    stamp(a, 46)
    a("s_waitcnt vmcnt(4)\ns_barrier")
    stamp(a, 4)
    a("s_cmp_eq_u32 s31, 1\ns_cbranch_scc1 L_h_hu")
    poll(a, [8], 1, 9)
    uloads()
    a.label("L_h_hu")
    a(f"""v_lshlrev_b32 v5, 3, v2
    v_min_u32 v5, 376, v5
    v_add_u32 v5, s{CB}, v5
    v_mov_b32 v6, 0
    v_mov_b32 v7, 0""")
    kwrite(a, 6)
    for r in range(4): a(f"ds_write_b64 v5, v[6:7] offset:{r*UST}")
    conv_setup(a, CB)
    a(f"""s_mul_i32 s27, s{CHN}, {RS}
    s_add_u32 s27, s27, {WS_YT}
    v_add_u32 v4, s{CB}, v{DMV}
    s_waitcnt vmcnt(0)""")
    stamp(a, 5)
    for i in range(4):
        e = 132 + 4*i
        C2, C1, C0, PP = 16 + 14*i, 20 + 14*i, 24 + 14*i, 28 + 14*i
        a(f"ds_write_b128 v4, {v(e,4)} offset:{3*UST + 384 + 1024*i}")
        if i == 0: a(f"v_mov_b32 v{PP}, 0\nv_mov_b32 v{C1}, 0\ns_nop 0")
        else: a(f"v_readlane_b32 s22, v{e-2}, 63\nv_readlane_b32 s23, v{e-1}, 63\ns_nop 0\nv_mov_b32 v{PP}, s22\nv_mov_b32 v{C1}, s23\ns_nop 0")
        a(f"v_mov_b32_dpp v{PP}, v{e+2} wave_shr:1 row_mask:0xf bank_mask:0xf")
        a(f"v_mov_b32_dpp v{C1}, v{e+3} wave_shr:1 row_mask:0xf bank_mask:0xf")
        for j in range(3): a(f"v_mov_b32 v{C1+1+j}, v{e+j}")
        a(f"ds_write_b128 v4, {v(C1,4)} offset:{UST + 384 + 1024*i}")
        a(f"v_alignbit_b32 v{C2}, v{e}, v{C1}, 16")
        for j in range(1, 4): a(f"v_alignbit_b32 v{C2+j}, v{e+j}, v{e+j-1}, 16")
        a(f"ds_write_b128 v4, {v(C2,4)} offset:{2*UST + 384 + 1024*i}")
        a(f"v_alignbit_b32 v{C0}, v{C1}, v{PP}, 16")
        for j in range(3): a(f"v_mov_b32 v{C0+1+j}, v{C2+j}")
        a(f"ds_write_b128 v4, {v(C0,4)} offset:{384 + 1024*i}")
    stamp(a, 6)
    conv(a, 27, "")
    stamp(a, 7)
    a("s_branch L_h_ids")

def window1(a):
    attn_ids(a)
    o_maps(a)
    clear_o(a)
    main_pre(a)
    zero_state(a)
    get_nonce(a)
    a(f"""s_setprio 0
    v_mov_b32 v3, {ARRW}
    v_mov_b32 v4, 1
    s_lshl_b32 s22, s2, 7
    s_add_u32 s26, s22, {WS_FB}""")
    stamp(a, 4)
    a(f"""s_waitcnt vmcnt(0)
    s_mov_b64 exec, 1
    ds_add_rtn_u32 v4, v3, v4
    s_mov_b64 exec, -1
    s_waitcnt lgkmcnt(0)
    v_readfirstlane_b32 s22, v4
    s_cmp_lg_u32 s22, 3
    s_cbranch_scc1 L_w1_r""")
    stamp(a, 5)
    stamp(a, 53, True)
    set_flag(a, 26, 6)
    a(f"""v_mov_b32 v16, 0x3f803f80
    v_mov_b32 v17, 0x00003f80
    v_mov_b32 v18, 0x3f803f80
    v_mov_b32 v19, 0x00003f80
    ds_write_b128 v{DMV}, v[16:19] offset:{CONSTP}
    ds_write_b32 v6, v6 offset:{FLAGW}""")
    poll(a, [PL1, PL2], 1, 20)
    stamp(a, 6)
    stamp(a, 54, True)
    a(f"s_add_u32 s23, s{HEAD5}, 160\ns_lshl_b32 s23, s23, 10")
    for u in range(10):
        a(f"""s_mov_b32 m0, {QLDS + 1024*u}
        s_add_u32 s24, s{OOFF}, {(u >> 1)*1024 + (u & 1)*TTS_}
        buffer_load_dwordx4 v{DMV}, s[12:15], s24 offen sc1 lds""")
    for c in range(1):
        for u in range(20):
            p = u >> 1
            off = ((p + (155 if p >= 5 else 0)) << 10) + ((u & 1)*8 + c)*TTS_
            a(f"""s_mov_b32 m0, {ARING + c*SLOT + p*PST + (u & 1)*1024}
            s_add_u32 s24, s23, {off}
            buffer_load_dwordx4 v{DMV}, s[12:15], s24 offen sc1 lds""")
    stamp(a, 7)
    a.label("L_w1_r")
    a("s_mov_b32 s33, 0")
    a.label("L_setup")
    attn_reset(a)
    tail_setup(a)
    a("""s_cmp_eq_u32 s33, 2
    s_cbranch_scc1 L_attn
    s_waitcnt vmcnt(0)
    s_branch L_at_b2""")

Q0 = [16, 22]; Q1 = [20, 26]
KF = [28, 34]; VF = [40, 48]; P = [56, 64]; S = [72, 88]; O = [104, 120]
def set_m(a, q, M):
    a(f"""v_sub_f32 v{M}, 0, v{M}
    v_and_b32 v{M+1}, 0xffff0000, v{M}
    v_sub_f32 v{M+2}, v{M}, v{M+1}
    v_and_b32 v{M+3}, 0xffff0000, v{M+2}
    v_sub_f32 v{M+2}, v{M+2}, v{M+3}
    v_lshrrev_b32 v{M+1}, 16, v{M+1}
    v_or_b32 v{M+1}, v{M+1}, v{M+3}
    v_lshrrev_b32 v{M+2}, 16, v{M+2}
    v_cndmask_b32 v{Q1[q]}, v{M+1}, v{Q1[q]}, vcc
    v_cndmask_b32 v{Q1[q]+1}, v{M+2}, v{Q1[q]+1}, vcc""")
def tilemax(a, M, s, first):
    if first: a(f"v_max3_f32 v{M}, v{s}, v{s+1}, v{s+2}")
    else: a(f"v_max3_f32 v{M}, v{M}, v{s}, v{s+1}\nv_max_f32 v{M}, v{M}, v{s+2}")
    for i in range(3, 15, 2): a(f"v_max3_f32 v{M}, v{M}, v{s+i}, v{s+i+1}")
    a(f"v_max_f32 v{M}, v{M}, v{s+15}")
def halfmax(a, M):
    a(f"v_mov_b32 v{M+1}, v{M}\ns_nop 1\nv_permlane32_swap_b32 v{M}, v{M+1}\nv_max_f32 v{M}, v{M}, v{M+1}")

def kv_units(a):
    a(f"""s_lshr_b32 s22, s{WV}, 1
    s_and_b32 s23, s{WV}, 1
    s_mul_i32 s{KL[0]}, s22, {PST}
    s_lshl_b32 s24, s23, 10
    s_add_u32 s{KL[0]}, s{KL[0]}, s24
    s_add_u32 s{KL[0]}, s{KL[0]}, {ARING}
    s_add_u32 s{KL[1]}, s{KL[0]}, {4*PST}
    s_add_u32 s{KL[2]}, s{KL[0]}, {8*PST}
    s_add_u32 s24, s22, s{HEAD5}
    s_lshl_b32 s24, s24, 10
    s_mul_i32 s23, s23, {8*TTS_}
    s_add_u32 s24, s24, s23
    s_add_u32 s{KS[0]}, s24, {160*1024 + TTS_}
    s_add_u32 s{KS[2]}, s24, {(160+8+155)*1024 + TTS_}
    s_cmp_eq_u32 s22, 0
    s_cselect_b32 s23, 0, {155*1024}
    s_add_u32 s{KS[1]}, s{KS[0]}, s23
    s_add_u32 s{KS[1]}, s{KS[1]}, 4096""")
def attn_reset(a):
    kv_units(a)
    a(f"""v_and_b32 v3, 31, v2
    v_lshlrev_b32 v3, 3, v3
    v_lshrrev_b32 v5, 5, v2
    s_lshl_b32 s{KHOFF}, s{KH}, 10
    s_lshl_b32 s22, s{HW}, 9
    s_add_u32 s22, s22, {QLDS}
    v_add_u32 v{QA4}, s22, v3
    v_lshl_add_u32 v{QA0}, v5, 12, v{QA4}
    v_mul_u32_u24 v{KA}, {2*PST}, v5
    s_add_u32 s22, s{KHOFF if M0 else MODE+53-MODE}, {ARING}""".replace(f"s{MODE+53-MODE}", "0"))
    a(f"""v_add3_u32 v{KA}, v{KA}, v3, s22
    v_xor_b32 v{MS4}, 1, v5
    s_add_u32 s22, s22, {4*PST - CONSTP}
    v_mad_u32_u24 v{K4}, v{MS4}, s22, v3
    v_add_u32 v{K4}, {CONSTP}, v{K4}
    v_bfe_u32 v3, v2, 2, 2
    v_lshl_add_u32 v5, v5, 2, v3
    v_and_b32 v4, 3, v2
    v_bfe_u32 v3, v2, 4, 1
    v_lshl_add_u32 v4, v3, 2, v4
    v_cmp_gt_u32 vcc, 5, v4
    v_mul_u32_u24 v4, {PST}, v4
    s_add_u32 s22, s{KHOFF}, {ARING + 5*PST}
    v_add_u32 v4, s22, v4
    v_cndmask_b32 v{VA}, {CONSTP}, v4, vcc
    v_cndmask_b32 v{MSK}, 0, 1, vcc
    v_lshl_add_u32 v{VA}, v5, 3, v{VA}
    s_sub_u32 s24, 106, s{WV}
    s_mul_i32 s{WOS}, s24, {6*1280}
    s_lshr_b32 s22, s{IDX}, 2
    s_mul_i32 s22, s22, 160
    s_add_u32 s{WOS}, s{WOS}, s22
    s_mul_i32 s{WOL}, s24, 960
    s_add_u32 s{WOL}, s{WOL}, {WOB}""")
YT, OSA, OST, FIW, FS0 = range(235, 240)
WAO, WAT = 248, 249
TOS, TTS, TFS = 96, 97, 98
def o_maps(a):
    a(f"""v_and_b32 v3, 15, v2
    v_bfe_u32 v4, v2, 4, 1
    v_mul_u32_u24 v4, {OG}, v4
    v_lshl_add_u32 v{OST}, v3, 3, v4
    v_lshl_add_u32 v4, v3, 4, v4
    v_lshrrev_b32 v3, 5, v2
    v_lshl_add_u32 v{OSA}, v3, 8, v4""")
def tail_setup(a):
    a(f"""v_mul_u32_u24 v6, 205, v2
    v_lshrrev_b32 v6, 11, v6
    v_mul_u32_u24 v7, 10, v6
    v_sub_u32 v7, v2, v7
    v_lshlrev_b32 v7, 4, v7
    v_mul_u32_u24 v6, 1280, v6
    v_add_u32 v{WOV}, v6, v7
    v_add_u32 v{FS0}, v6, v{WOV}
    v_bfe_u32 v3, v2, 2, 2
    v_lshrrev_b32 v4, 4, v2
    v_and_b32 v5, 3, v2
    v_lshlrev_b32 v5, 3, v5
    v_lshrrev_b32 v6, 2, v2
    v_lshl_add_u32 v6, v6, 7, v5
    s_lshl_b32 s22, s{HW}, 5
    v_add_u32 v{YT}, s22, v6
    v_lshrrev_b32 v6, 5, v2
    v_mul_u32_u24 v6, 12, v6
    v_lshl_add_u32 v6, v4, 2, v6
    v_add_u32 v6, v6, v3
    v_mad_u32_u24 v7, v4, 20, v3
    s_mul_i32 s22, s{KH}, {320*160}
    s_add_u32 s22, s22, {WOB}
    v_add_u32 v5, s22, v5
    s_movk_i32 s23, 160
    v_mad_u32_u24 v{WAO}, v6, s23, v5
    v_mad_u32_u24 v{WAT}, v7, s23, v5
    v_and_b32 v3, 15, v2
    s_mul_i32 s22, s{WV}, 2560
    v_lshl_add_u32 v4, v4, 3, s22
    v_mad_u32_u24 v{FIW}, v3, s23, v4
    s_lshl_b32 s24, s{XCD}, 2
    s_and_b32 s22, s{IDX}, 3
    s_add_u32 s24, s24, s22
    s_lshl_b32 s24, s24, 2
    s_add_u32 s24, s24, s{HW}
    s_mul_i32 s{TOS}, s24, {OG}
    s_add_u32 s{TOS}, s{TOS}, {WS_O}
    s_lshl_b32 s23, s{KH}, 11
    s_add_u32 s{TTS}, s{TOS}, s23
    s_add_u32 s{TTS}, s{TTS}, 16384
    s_lshl_b32 s23, s{KH}, 13
    s_add_u32 s{TOS}, s{TOS}, s23
    s_lshr_b32 s22, s{IDX}, 2
    s_add_u32 s22, s22, 8
    s_lshl_b32 s23, s{IDX}, 2
    s_add_u32 s23, s23, s{HW}
    s_cmp_eq_u32 s{KH}, 1
    s_cselect_b32 s24, s23, s24
    s_cselect_b32 s22, s{XCD}, s22
    s_mul_i32 s{TFS}, s24, {16*2560}
    s_mul_i32 s22, s22, 160
    s_add_u32 s{TFS}, s{TFS}, s22""")
WFR = [28, 48, 68, 88, 108, 144, 164, 184, 204]
OFR = [128, 132, 224, 228, 232, 236, 240, 244, 136, 140]
def wo_reads(a, i, slot):
    for m in range(5):
        for hf in range(2):
            if i < 8: a(f"ds_read_b64_tr_b16 {v(WFR[slot]+4*m+2*hf,2)}, v{WAO} offset:{(40*i+8*hf)*160+32*m}")
            else: a(f"ds_read_b64_tr_b16 {v(WFR[slot]+4*m+2*hf,2)}, v{WAT} offset:{(160*(i-8)+80*hf+16)*160+32*m}")
def zero_state(a):
    srd(a, 8, P_WO, 640*1280)
    a(f"""s_mov_b32 s30, 0
    s_mov_b32 s31, 0
    s_mov_b32 s32, {2*SLOT}
    s_mov_b32 s{MK}, 63
    s_cmp_lt_u32 s{WV}, 4
    s_cselect_b32 s{MK2}, 63, 0
    s_movk_i32 s{MC}, 0xe1
    s_movk_i32 s{MW[0]}, 0xfe
    s_movk_i32 s{MW[1]}, 0x7e
    s_cmp_lt_u32 s{WV}, 3
    s_cselect_b32 s{MW[1]}, s{MW[0]}, s{MW[1]}""")
    for i in range(32): a(f"v_mov_b32 v{O[0]+i}, 0")
    for i in range(8): a(f"v_mov_b32 v{P[1]+i}, 0\nv_mov_b32 v{VF[1]+i}, 0")

def attention(a):
    def kr(t, b): return [f"ds_read_b64 {v(KF[b],2)}, v{KA} offset:{t*256}", f"ds_read_b64 {v(KF[b]+2,2)}, v{KA} offset:{t*256+PST}", f"ds_read_b64 {v(KF[b]+4,2)}, v{K4} offset:{t*256}"]
    def vr(t, b): return [f"ds_read_b64_tr_b16 {v(VF[b]+2*j,2)}, v{VA} offset:{t*256+j*64}" for j in range(4)]
    def shift(sreg):
        a(f"v_add_u32 v{KA}, s{sreg}, v{KA}\nv_mad_i32_i24 v{K4}, v{MS4}, s{sreg}, v{K4}")
    def qk(q, kb): a(m32(S[q], KF[kb], Q0[q])); a(m32x8(S[q], KF[kb]+4, Q1[q], S[q]))
    a("s_waitcnt lgkmcnt(0)")
    zero_state(a)
    a.label("L_at_b2")
    stamp(a, 8)
    a("v_cmp_gt_u32 vcc, 32, v2\ns_waitcnt lgkmcnt(0)\ns_barrier")
    stamp(a, 9)
    stamp(a, 50, True)
    a(J(kr(0, 0)))
    a(f"s_cmp_lg_u32 s{MODE}, 0\ns_cbranch_scc1 L_at_havem")
    for q in range(2):
        a(f"""ds_read_b64 {v(Q0[q],2)}, v{QA0} offset:{q*256}
        ds_read_b64 {v(Q0[q]+2,2)}, v{QA0} offset:{q*256+2048}
        ds_read_b64 {v(Q1[q],2)}, v{QA4} offset:{q*256+8192}""")
    a("s_waitcnt lgkmcnt(0)")
    for q in range(2): a(f"v_cndmask_b32 v{Q1[q]}, 0, v{Q1[q]}, vcc\nv_cndmask_b32 v{Q1[q]+1}, 0, v{Q1[q]+1}, vcc")
    if not M0:
        qk(0, 0); qk(1, 0)
        a("s_nop 7\ns_nop 1")
        for q in range(2):
            tilemax(a, P[0], S[q], True); halfmax(a, P[0]); set_m(a, q, P[0])
    a.label("L_at_havem")
    if not M0:
        shift(KHOFF)
        a(J(kr(0, 0)))
    a(f"s_cmp_eq_u32 s{MODE}, 1\ns_cbranch_scc1 L_at_maxpass")
    for j in range(3):
        if j == 2: a(f"s_cmp_ge_u32 s{WV}, 4\ns_cbranch_scc1 L_at_p3")
        a(f"s_add_u32 m0, s{KL[j]}, {SLOT}\ns_nop 0\nbuffer_load_dwordx4 v{DMV}, s[12:15], s{KS[j]} offen sc1 lds\ns_add_u32 s{KS[j]}, s{KS[j]}, {TTS_}")
    a.label("L_at_p3")
    a("s_waitcnt lgkmcnt(0)")
    qk(0, 0)
    a("s_setprio 3\ns_nop 6")
    stamp(a, 10)
    a(".p2align 3")
    a.label("L_at_loop")
    for T in range(4):
        kb = T & 1
        for q in range(2):
            o = q ^ 1
            ex = [f"v_exp_f32 v{S[q]+i}, v{S[q]+i}" for i in range(16)]
            cv = [f"v_cvt_pk_bf16_f32 v{P[q]+i}, v{S[q]+2*i}, v{S[q]+2*i+1}" for i in range(8)]
            kq = kb if q == 0 else kb ^ 1
            vq = kb ^ 1 if q == 0 else kb
            rd = (kr((T+1) & 3, kb ^ 1) + vr(T, kb)) if q == 0 else []
            if '--nord' in sys.argv: rd = []
            if '--halfrd' in sys.argv and T & 1: rd = []
            if '--rdsplit' in sys.argv:
                pass
            st = (2*((T+1) & 3) + q)
            def pr(i):
                k = 4*st + i
                if k in PRIO: a(f"s_setprio {3 - PRIO.index(k)}")
            if q == 0 and T == 3:
                a(f"""s_add_u32 s33, s31, {SLOT}
                s_cmp_eq_u32 s33, {3*SLOT}
                s_cselect_b32 s33, 0, s33
                s_sub_u32 s29, s33, s31
                s_mov_b32 s31, s33""")
                shift(29)
                if PROF: a("s_memtime s[90:91]")
                a("s_waitcnt vmcnt(0)\ns_barrier")
                if PROF: a("s_memtime s[92:93]")
            if q == 1: a("s_waitcnt lgkmcnt(0)")
            if PROF and (T, q) == (3, 1): a(f"s_sub_u32 s90, s92, s90\ns_add_u32 m0, s30, 55\ns_lshl_b32 s90, s90, 20\ns_and_b32 s92, s92, 0xfffff\ns_or_b32 s92, s92, s90\nv_writelane_b32 v{PV}, s92, m0")
            def kv(j, mask):
                l = a.newlabel("L_at_s")
                a(f"""s_bitcmp0_b32 s{mask}, s30
                s_cbranch_scc1 {l}
                s_add_u32 m0, s{KL[j]}, s32
                s_nop 0
                buffer_load_dwordx4 v{DMV}, s[12:15], s{KS[j]} offen sc1 lds
                s_add_u32 s{KS[j]}, s{KS[j]}, {TTS_}""")
                a.label(l)
            def wo(e):
                l = a.newlabel("L_at_s")
                a(f"""s_bitcmp0_b32 s{MW[e]}, s30
                s_cbranch_scc1 {l}
                s_mov_b32 exec_hi, 0x0fffffff
                s_mov_b32 m0, s{WOL}
                s_sub_u32 s{WOL}, s{WOL}, {8*960}
                buffer_load_dwordx4 v{WOV}, s[8:11], s{WOS} offen lds
                s_mov_b32 exec_hi, -1
                s_sub_u32 s{WOS}, s{WOS}, {8*6*1280}""")
                a.label(l)
            a(m32(S[o], KF[kq], Q0[o])); pr(0)
            a(J(rd[0:3] + ex[0:4] + cv[0:1]))
            a(m32x8(S[o], KF[kq]+4, Q1[o], S[o])); pr(1)
            if (T, q) == (3, 1): kv(1, MK)
            if (T, q) == (0, 1): wo(1)
            a(J(rd[3:5] + ex[4:6] + cv[1:2] + ex[6:8] + cv[2:3]))
            a(m32(O[o], VF[vq], P[o], O[o])); pr(2)
            a(J(rd[5:7] + ex[8:10] + cv[3:4] + ex[10:12] + cv[4:5]))
            a(m32(O[o], VF[vq]+4, P[o]+4, O[o])); pr(3)
            if (T, q) == (3, 0): kv(0, MK)
            if (T, q) == (0, 0): wo(0)
            if (T, q) == (3, 1):
                kv(2, MK2)
                a(f"""s_add_u32 s32, s32, {SLOT}
                s_cmp_eq_u32 s32, {3*SLOT}
                s_cselect_b32 s32, 0, s32
                s_bitcmp1_b32 s{MC}, s30
                s_cbranch_scc1 L_at_late""")
                a.label("L_at_back")
            a(J(ex[12:14] + cv[5:6] + ex[14:16]))
            if q == 1 and T == 3: a(f"v_mad_i32_i24 v{VA}, v{MSK}, s29, v{VA}")
            a(J(cv[6:8]))
    a("s_add_u32 s30, s30, 1\ns_cmp_lt_u32 s30, 8\ns_cbranch_scc1 L_at_loop")
    a(m32(O[1], VF[1], P[1], O[1]))
    C = S[1]
    a(f"""s_setprio 0
    s_mul_i32 s22, s{WV}, 3072
    v_add_u32 v4, s22, v{DMV}
    s_xor_b32 s22, s{WV}, 4
    s_mul_i32 s22, s22, 3072
    v_add_u32 v5, s22, v{DMV}""")
    a(m32(O[1], VF[1]+4, P[1]+4, O[1]))
    stamp(a, 11)
    a(f"""v_mov_b32 v6, 0
    v_mov_b32 v7, 1
    v_mov_b32 v{C+2}, {f32hex(2.0**110)}
    v_pk_add_f32 {v(C,2)}, {v(O[0],2)}, {v(O[0]+2,2)}""")
    for i in range(4, 12, 2): a(f"v_pk_add_f32 {v(C,2)}, {v(C,2)}, {v(O[0]+i,2)}")
    a(f"s_cmp_eq_u32 s{KH}, 0\ns_cbranch_scc1 L_at_c0")
    for i in range(3): a(f"ds_write_b128 v4, {v(O[0]+4*i,4)} offset:{EXC + i*1024}")
    a("s_nop 0")
    for i in range(0, 12, 2): a(f"v_pk_mov_b32 {v(O[0]+i,2)}, {v(O[1]+i,2)}, {v(O[1]+i,2)} op_sel:[0,1]")
    a("s_branch L_at_c1")
    a.label("L_at_c0")
    a("s_nop 1")
    for i in range(3): a(f"ds_write_b128 v4, {v(O[1]+4*i,4)} offset:{EXC + i*1024}")
    a.label("L_at_c1")
    for i in range(0, 12, 2): a(f"v_pk_add_f32 {v(C,2)}, {v(C,2)}, {v(O[1]+i,2)}")
    a(f"""v_add_f32 v{C}, v{C}, v{C+1}
    v_mul_f32 v{C}, {f32hex(2.0**-17)}, v{C}
    v_add_f32 v{C}, abs(v{C}), v{O[0]+12}
    v_add_f32 v{C}, v{C}, v{O[1]+12}
    v_cmp_nlt_f32 vcc, v{C}, v{C+2}""")
    if M0:
        a(f"""v_min_f32 v{C+3}, v{O[0]+12}, v{O[1]+12}
        v_mov_b32 v{C+2}, {f32hex(2.0**-60)}
        v_cmp_lt_f32 s[26:27], v{C+3}, v{C+2}
        s_nop 0
        s_or_b64 vcc, vcc, s[26:27]""")
    a(f"""s_cbranch_vccz L_at_nf
    ds_write_b32 v6, v7 offset:{FLAGW}""")
    a.label("L_at_nf")
    a(f"""s_lshl_b32 s22, s{HW}, 1
    s_add_u32 s22, s22, s{KH}
    s_mul_i32 s22, s22, {2*OG}
    s_add_u32 s23, s22, s{OTAIL}
    s_add_u32 s22, s22, s{OOCT}
    s_waitcnt lgkmcnt(0)
    s_barrier
    ds_read_b32 v7, v6 offset:{FLAGW}""")
    for i in (2, 0, 1): a(f"ds_read_b128 {v(S[0]+4*i,4)}, v5 offset:{EXC + i*1024}")
    a(f"""s_waitcnt lgkmcnt(2)
    v_readfirstlane_b32 s26, v7""")
    for i in range(8, 12): a(f"v_add_f32 v{O[0]+i}, v{O[0]+i}, v{S[0]+i}")
    a(f"""v_mov_b32 v{S[1]}, v{O[0]+8}
    v_mov_b32 v{S[1]+1}, v{O[0]+8}
    s_cmp_gt_u32 s26, s{MODE}
    s_cbranch_scc1 L_at_fallback
    v_permlane32_swap_b32 v{S[1]}, v{S[1]+1}
    v_rcp_f32 v{S[1]}, v{S[1]+1}
    s_waitcnt lgkmcnt(0)""")
    for i in range(8): a(f"v_add_f32 v{O[0]+i}, v{O[0]+i}, v{S[0]+i}")
    for i in range(12): a(f"v_mul_f32 v{O[0]+i}, v{O[0]+i}, v{S[1]}")
    for i in range(6): a(f"v_cvt_pk_bf16_f32 v{P[0]+i}, v{O[0]+2*i}, v{O[0]+2*i+1}")
    a(f"""buffer_store_dwordx4 {v(P[0],4)}, v{OSA}, s[12:15], s22 offen {OSC}
    s_mov_b32 exec_hi, 0
    buffer_store_dwordx2 {v(P[0]+4,2)}, v{OST}, s[12:15], s23 offen {OSC}
    s_mov_b32 exec_hi, -1""")
    stamp(a, 12)
    stamp(a, 51, True)

    def cold():
        a.label("L_at_fc")
        a(f"s_cmp_eq_u32 s{FCOFF}, 0\ns_cbranch_scc1 L_at_back")
        set_flag(a, FCOFF, 6)
        a(f"s_mov_b32 s{FCOFF}, 0\ns_branch L_at_back")
        a.label("L_at_c5")
        a(f"""s_mul_i32 s22, s{XCD}, {20*128}
        s_add_u32 s22, s22, {WS_FC}
        v_min_u32 v6, 19, v2
        v_lshl_add_u32 v6, v6, 7, s22
        buffer_load_dwordx4 v[136:139], v6, s[12:15], 0 offen sc1
        s_branch L_at_back""")
        a.label("L_at_late")
        a(f"""s_cmp_eq_u32 s30, 0
        s_cbranch_scc1 L_at_fc
        s_cmp_eq_u32 s30, 5
        s_cbranch_scc1 L_at_c5
        s_cmp_eq_u32 s30, 7
        s_cbranch_scc1 L_at_l7""")
        poll(a, [6], 4, 136, preloaded=True)
        a(f"""v_lshrrev_b32 v4, 3, v2
        v_and_b32 v5, 7, v2
        v_lshlrev_b32 v5, 4, v5
        v_mul_u32_u24 v4, {RS}, v4
        v_add_u32 v4, v4, v5
        s_mul_i32 s22, s{XCD}, {80*RS}
        s_lshl_b32 s23, s{IDX}, 7
        s_add_u32 s22, s22, s23
        s_mul_i32 s23, s{WV}, {8*RS}
        s_add_u32 s22, s22, s23
        s_add_u32 s22, s22, {WS_YT}
        s_lshl_b32 s23, s{WV}, 10
        s_add_u32 m0, s23, {YSRC}
        s_cmp_ge_u32 s{WV}, 2
        buffer_load_dwordx4 v4, s[12:15], s22 offen sc1 lds
        s_cbranch_scc1 L_at_back
        s_add_u32 m0, m0, 8192
        s_add_u32 s22, s22, {64*RS}
        buffer_load_dwordx4 v4, s[12:15], s22 offen sc1 lds
        s_branch L_at_back""")
        a.label("L_at_l7")
        for i in range(5, 9): wo_reads(a, i, i)
        a("s_branch L_at_back")
        a.label("L_at_fallback")
        a(f"s_mov_b32 s{MODE}, 1")
        a.label("L_at_refill")
        a("s_waitcnt vmcnt(0) lgkmcnt(0)\ns_barrier")
        attn_reset(a)
        for j in range(3):
            if j == 2: a(f"s_cmp_ge_u32 s{WV}, 4\ns_cbranch_scc1 L_at_f3")
            a(f"s_mov_b32 m0, s{KL[j]}\ns_sub_u32 s22, s{KS[j]}, {TTS_}\nbuffer_load_dwordx4 v{DMV}, s[12:15], s22 offen sc1 lds")
        a.label("L_at_f3")
        a("s_waitcnt vmcnt(0)\ns_branch L_attn")
        a.label("L_at_maxpass")
        MX = [P[0], P[1]]
        for q in range(2):
            a(f"v_cndmask_b32 v{Q1[q]}, 0, v{Q1[q]}, vcc\nv_cndmask_b32 v{Q1[q]+1}, 0, v{Q1[q]+1}, vcc\nv_mov_b32 v{MX[q]}, 0xff800000")
        a.label("L_at_mloop")
        for T in range(4):
            a(J(kr(T, 0)) + "\ns_waitcnt lgkmcnt(0)")
            qk(0, 0); qk(1, 0)
            a("s_nop 7\ns_nop 3")
            for q in range(2): tilemax(a, MX[q], S[q], False)
        a("s_add_u32 s30, s30, 1\ns_cmp_eq_u32 s30, 8\ns_cbranch_scc1 L_at_mdone\ns_barrier")
        for j in range(3):
            if j == 2: a(f"s_cmp_ge_u32 s{WV}, 4\ns_cbranch_scc1 L_at_m3")
            a(f"s_mov_b32 m0, s{KL[j]}\ns_nop 0\nbuffer_load_dwordx4 v{DMV}, s[12:15], s{KS[j]} offen sc1 lds\ns_add_u32 s{KS[j]}, s{KS[j]}, {TTS_}")
        a.label("L_at_m3")
        a("s_waitcnt vmcnt(0)\ns_barrier\ns_branch L_at_mloop")
        a.label("L_at_mdone")
        a(f"""s_lshl_b32 s22, s{WV}, 10
        v_add_u32 v4, s22, v{DMV}
        v_xor_b32 v5, 4096, v4""")
        for q in range(2): halfmax(a, MX[q]); a(f"ds_write_b32 v4, v{MX[q]} offset:{ARING + 2*SLOT + 4*q}")
        a("s_waitcnt lgkmcnt(0)\ns_barrier")
        for q in range(2): a(f"ds_read_b32 v{S[0]+q}, v5 offset:{ARING + 2*SLOT + 4*q}")
        a("s_waitcnt lgkmcnt(0)")
        for q in range(2):
            a(f"v_max_f32 v{MX[q]}, v{MX[q]}, v{S[0]+q}"); set_m(a, q, MX[q])
        a(f"s_mov_b32 s{MODE}, 2\ns_branch L_at_refill")
    return cold

def tail(a):
    ACC = 8
    order = [3, 2, 1, 0]
    a(f"""v_mov_b32 v5, v{DMV}
    v_lshlrev_b32 v1, 3, v2
    s_mul_i32 s22, s{HW}, 5120
    v_add_u32 v6, s22, v5
    v_mov_b32 v3, v{FIW}
    s_mul_i32 s22, s{WV}, 2560
    v_add_u32 v7, s22, v5
    v_mov_b32 v250, v{FS0}
    v_mov_b32 v253, v{YT}
    s_mov_b32 s50, 0
    s_mov_b32 s29, 15
    s_mov_b32 s30, s{KH}
    s_add_u32 s27, s{TOS}, 4096
    s_cmp_eq_u32 s{KH}, 1
    s_cbranch_scc1 L_t_wo""")
    a.label("L_t_loop")
    for x in order:
        a(f"s_bitcmp0_b32 s29, {x}\ns_cbranch_scc1 L_t_no{x}")
        for e in range(2): a(f"buffer_load_dwordx4 {v(OFR[2*x+e],4)}, v5, s[12:15], s{TOS if x < 2 else 27} offen offset:{((2*x+e)&3)*1024} sc1")
        a(f"buffer_load_dwordx2 {v(OFR[8]+2*x,2)}, v1, s[12:15], s{TTS} offen offset:{x*512} sc1")
        a.label(f"L_t_no{x}")
    a(f"""s_add_u32 s50, s50, 1
    s_cmp_gt_u32 s50, {SPIN}
    s_cselect_b32 s31, 0, -1
    s_mov_b32 s28, s29
    s_cmp_lg_u32 s30, 0
    s_cbranch_scc1 L_t_nf""")
    a.label("L_t_wo")
    stamp(a, 13)
    for i in (4, 2, 3, 0, 1): wo_reads(a, i, i)
    srd(a, 8, P_OUT, 2048*2560)
    for i in range(20): a(f"v_mov_b32 v{ACC+i}, 0")
    a("s_cmp_eq_u32 s50, 0\ns_mov_b32 s30, 1\ns_cbranch_scc1 L_t_loop")
    a.label("L_t_nf")
    stamp(a, 14)
    for n, x in enumerate(order):
        r0, r1, rt = OFR[2*x], OFR[2*x+1], OFR[8] + 2*x
        a(f"s_bitcmp0_b32 s28, {x}\ns_cbranch_scc1 L_t_co{x}")
        if x > 0:
            a(f"s_and_b32 s22, s28, {(1 << x) - 1}\ns_bcnt1_i32_b32 s22, s22")
            for k in range(x, 0, -1):
                a(f"s_waitcnt vmcnt({3*k})\ns_cmp_eq_u32 s22, {k}\ns_cbranch_scc1 L_t_w{x}")
        a("s_waitcnt vmcnt(0)")
        a.label(f"L_t_w{x}")
        a(f"""v_max3_u32 v4, v{r0}, v{r0+1}, v{r0+2}
        v_max3_u32 v4, v4, v{r0+3}, v{r1}
        v_max3_u32 v4, v4, v{r1+1}, v{r1+2}
        v_max3_u32 v4, v4, v{r1+3}, v{rt}
        v_max_u32 v4, v4, v{rt+1}
        v_and_b32 v4, s31, v4
        v_cmp_eq_u32 vcc, -1, v4
        s_cbranch_vccnz L_t_co{x}
        s_bitset0_b32 s29, {x}""")
        if x < 3: a("s_waitcnt lgkmcnt(0)")
        for m in range(5): a(m16(ACC+4*m, WFR[2*x+1]+4*m, r1, ACC+4*m))
        if x == 3: wo_reads(a, 9, 7)
        for m in range(5): a(m16(ACC+4*m, WFR[2*x]+4*m, r0, ACC+4*m))
        a.label(f"L_t_co{x}")
    a("s_cmp_lg_u32 s29, 0\ns_cbranch_scc1 L_t_loop")
    for m in range(5): a(m16(ACC+4*m, WFR[8]+4*m, OFR[8], ACC+4*m))
    a("s_waitcnt lgkmcnt(0)")
    for m in range(5): a(m16(ACC+4*m, WFR[7]+4*m, OFR[9], ACC+4*m))
    stamp(a, 15)
    stamp(a, 52, True)
    if PROF: a(f"v_writelane_b32 v{PV}, s50, 29")
    T = 128
    a(f"""s_cmp_eq_u32 s{KH}, 0
    s_cbranch_scc1 L_t_r0""")
    for m in range(5): a(f"ds_read_b64_tr_b16 {v(T+2*m,2)}, v253 offset:{YSRC + m*2048}")
    a("s_nop 0")
    for m in range(5): a(f"ds_write_b128 v6, {v(ACC+4*m,4)} offset:{PART + m*1024}")
    a("s_waitcnt lgkmcnt(0)\ns_barrier")
    for m in range(5): a(f"ds_write_b64 v3, {v(T+2*m,2)} offset:{OIMG + 32*m}")
    a("s_branch L_t_st")
    a.label("L_t_r0")
    a("s_barrier")
    for m in range(5): a(f"ds_read_b128 {v(T+4*m,4)}, v6 offset:{PART + m*1024}")
    for m in range(5):
        a(f"s_waitcnt lgkmcnt(4)")
        for i in range(0, 4, 2): a(f"v_pk_add_f32 {v(ACC+4*m+i,2)}, {v(ACC+4*m+i,2)}, {v(T+4*m+i,2)}")
        a(f"v_cvt_pk_bf16_f32 v{ACC+4*m}, v{ACC+4*m}, v{ACC+4*m+1}\nv_cvt_pk_bf16_f32 v{ACC+4*m+1}, v{ACC+4*m+2}, v{ACC+4*m+3}")
        a(f"ds_write_b64 v3, {v(ACC+4*m,2)} offset:{OIMG + 32*m}")
    a.label("L_t_st")
    for j in range(3): a(f"ds_read_b128 {v(T+24+4*j,4)}, v7 offset:{OIMG + 960*j}")
    a(f"s_mov_b32 exec_hi, 0x0fffffff\ns_add_u32 s22, s{TFS}, {6*2560}\ns_add_u32 s23, s{TFS}, {12*2560}")
    for j in range(3):
        if j == 2: a("s_mov_b32 exec_hi, 0xff")
        a(f"s_waitcnt lgkmcnt({2-j})\nbuffer_store_dwordx4 {v(T+24+4*j,4)}, v250, s[8:11], s{[TFS, 22, 23][j]} offen")
    a("s_mov_b32 exec_hi, -1")

def main(path):
    a = Asm()
    nm = NAME + "_kernel"
    a(f".globl {nm}\n.p2align 8\n.type {nm},@function")
    a.label(nm)
    a(f"""s_cmp_ge_u32 s2, 256
    s_cbranch_scc1 L_end
    s_load_dwordx16 s[64:79], s[0:1], 0
    s_load_dwordx8 s[80:87], s[0:1], 64
    s_load_dwordx2 s[88:89], s[0:1], 96
    v_lshrrev_b32 v1, 6, v0
    v_and_b32 v2, 63, v0
    v_readfirstlane_b32 s{WV}, v1
    s_and_b32 s{XCD}, s2, 7
    s_lshr_b32 s{IDX}, s2, 3
    s_cmp_lg_u32 s{WV}, 7
    s_cbranch_scc1 L_nopf
    s_cmp_ge_u32 s{IDX}, (L_code_end-{nm})/1024
    s_cbranch_scc1 L_nopf
    s_getpc_b64 s[22:23]""")
    a.label("L_pc")
    a(f"""s_lshl_b32 s24, s{IDX}, 10
    s_sub_u32 s22, s22, L_pc-{nm}
    s_subb_u32 s23, s23, 0
    v_lshl_add_u32 v4, v2, 4, s24
    v_mov_b32 v5, s23
    v_add_co_u32 v4, vcc, s22, v4
    s_nop 1
    v_addc_co_u32 v5, vcc, 0, v5, vcc
    global_load_dwordx4 v[220:223], v[4:5], off""")
    a.label("L_nopf")
    if PROF:
        a(f"v_mov_b32 v{PV}, 0\ns_memrealtime s[90:91]\ns_memtime s[92:93]")
    a(f"""s_and_b32 s{HW}, s{WV}, 3
    s_lshr_b32 s{KH}, s{WV}, 2
    s_mul_i32 s{CHN}, s{XCD}, 20
    s_add_u32 s{CHN}, s{CHN}, s{IDX}
    s_lshl_b32 s{CHN}, s{CHN}, 2
    s_add_u32 s{CHN}, s{CHN}, s{HW}
    s_lshl_b32 s22, s{CHN}, 8
    v_lshl_add_u32 v6, v2, 2, s22
    s_lshl_b32 s22, s{CHN}, 1
    v_mov_b32 v7, s22
    v_lshlrev_b32 v{DMV}, 4, v2
    s_mov_b32 s{FCOFF}, 0
    s_mov_b32 s{MODE}, 0""")
    a(f"""s_cmp_ge_u32 s{IDX}, 20
    s_cbranch_scc1 L_e_np
    s_waitcnt lgkmcnt(0)""")
    for i in range(4): a(f"global_load_dword v{PRM+i}, v6, s[{P_LA+2*i}:{P_LA+2*i+1}]")
    a(f"""global_load_ushort v{PRM+4}, v7, s[{P_DT}:{P_DT+1}]
    global_load_ushort v{VD}, v7, s[{P_D}:{P_D+1}]""")
    a.label("L_e_np")
    loader_math(a)
    a("s_waitcnt lgkmcnt(0)")
    if PROF: a(f"v_writelane_b32 v{PV}, s90, 0\nv_writelane_b32 v{PV}, s92, 1")
    srd(a, 60, P_X, 2048*1280)
    srd(a, 8, P_W, 640*3840)
    srd(a, 12, P_WS, WS_SIZE)
    a(f"""s_cmp_ge_u32 s{IDX}, 30
    s_cbranch_scc1 L_e_tr
    s_cmp_eq_u32 s{KH}, 1
    s_cbranch_scc1 L_e_h
    s_cmp_lt_u32 s{IDX}, 20
    s_cbranch_scc1 L_g_pro
    s_barrier""")
    a.label("L_g_pro")
    stamp(a, 40)
    issue(a)
    stamp(a, 41)
    a(f"s_cmp_lt_u32 s{IDX}, 20\ns_cbranch_scc1 L_kgen\ns_branch L_gemm")
    a.label("L_e_tr")
    a(f"""s_lshl_b32 s26, s{XCD}, 1
    s_add_u32 s26, s26, s{IDX}
    s_sub_u32 s26, s26, 30
    s_lshl_b32 s26, s26, 3
    s_add_u32 s26, s26, s{WV}
    s_lshl_b32 s27, s{WV}, 13
    s_add_u32 s27, s27, 16384
    s_branch L_e_ut""")
    a.label("L_e_h")
    a(f"""s_or_b32 s22, s2, s{HW}
    s_cmp_lg_u32 s22, 0
    s_cbranch_scc1 L_nn
    s_memrealtime s[22:23]
    v_mov_b32 v3, 0
    s_waitcnt lgkmcnt(0)
    s_or_b32 s22, s22, 1
    v_mov_b32 v4, s22
    s_mov_b64 exec, 1
    global_store_dword v3, v4, s[{P_DBG}:{P_DBG+1}] sc1
    s_mov_b64 exec, -1""")
    a.label("L_nn")
    a(f"""s_mul_i32 s26, s{XCD}, 10
    s_add_u32 s26, s26, s{IDX}
    s_mul_i32 s22, s{HW}, 80
    s_add_u32 s26, s26, s22
    s_add_u32 s26, s26, {128 - 20}
    s_lshl_b32 s27, s{HW}, 13
    s_add_u32 s27, s27, {SCR}
    s_cmp_lt_u32 s{IDX}, 20
    s_cbranch_scc1 L_helper
    s_cmp_ge_u32 s26, 320
    s_cbranch_scc1 L_e_eb""")
    a.label("L_e_ut")
    utile_issue(a)
    a.label("L_e_eb")
    a("s_barrier")
    a(f"s_cmp_ge_u32 s{IDX}, 30\ns_cbranch_scc1 L_utile")
    a.label("L_helper")
    helper(a)
    a.label("L_g_kb")
    skip(a)
    issue(a)
    a(f"v_add_u32 v6, s28, v{DMV}")
    for i in range(4): a(f"ds_write_b128 v6, {v(KACC+4*i,4)} offset:{1024*i}")
    a.label("L_gemm")
    gemm(a)
    a.label("L_w1")
    window1(a)
    a.label("L_attn")
    cold = attention(a)
    tail(a)
    if PROF:
        a("s_waitcnt vmcnt(0)")
        stamp(a, 16); stamp(a, 17, True)
        a(f"""s_lshl_b32 s22, s2, 3
        s_add_u32 s22, s22, s{WV}
        s_lshl_b32 s22, s22, 8
        s_add_u32 s22, s22, {WS_PROF}
        v_lshlrev_b32 v3, 2, v2
        buffer_store_dword v{PV}, v3, s[12:15], s22 offen""")
    a.label("L_end")
    a("s_endpgm")
    a.label("L_tr_back")
    arr_init(a)
    a(f"s_waitcnt lgkmcnt(0)\ns_barrier\ns_cmp_lt_u32 s{WV}, 4\ns_cbranch_scc1 L_w1\ns_branch L_h_ids")
    cold()
    a(f".fill (1024 - ((. - {nm}) % 1024))/4, 4, 0xbf810000")
    a.label("L_code_end")
    hdr = open("cdna_kernels/" + NAME + ".s.ref").read().split("\n")
    head = [l for l in hdr[:15] if l.startswith(";") and "@launch" not in l and "Override" not in l and "grid=ceil" not in l]
    txt = "\n".join(head) + "\n; @launch grid=(256,1,1) block=(512,1,1) lds=163840\n"
    txt += '.amdgcn_target "amdgcn-amd-amdhsa--gfx950"\n.text\n' + a.text()
    txt += f""".section .rodata,"a"
.p2align 6
.amdhsa_kernel {nm}
  .amdhsa_next_free_vgpr 256
  .amdhsa_next_free_sgpr 102
  .amdhsa_accum_offset 256
  .amdhsa_group_segment_fixed_size 0
  .amdhsa_kernarg_size 104
  .amdhsa_user_sgpr_count 2
  .amdhsa_user_sgpr_kernarg_segment_ptr 1
  .amdhsa_system_sgpr_workgroup_id_x 1
.end_amdhsa_kernel
"""
    open(path, "w").write(txt)
    errs = check_hazards(a.text())
    for e in errs[:30]: print("HAZARD", e)
    print(f"{path}: {len(a.lines)} lines, {len(errs)} hazards")

if __name__ == "__main__":
    main([x for x in sys.argv[1:] if x.endswith(".s")][0])
```

```python
import math, sys
from asmlib import *

NAME = "concat_heads__ssm_conv_s4d__mha_block__prompt"
WS_QKV = 0
WS_O = 0x800000
WS_UT = 0xB00000
WS_YT = 0xE00000
WS_FA = 0x1100000
WS_FB = 0x1110000
WS_FC = 0x1120000
WS_PROF = 0x1300000
WS_SIZE = 0x1400000
TTS_ = 480*1024
OG = 20480
RS = 4352
LOG2E = math.log2(math.e)
QSCALE = LOG2E / math.sqrt(20.0)
PROF = "--prof" in sys.argv
M0 = "--m0" in sys.argv
SPIN = 0x40000
OUTSC = sys.argv[sys.argv.index('--outsc')+1].replace('_', ' ') if '--outsc' in sys.argv else ''
TLB = int(sys.argv[sys.argv.index('--tlb')+1]) if '--tlb' in sys.argv else 0
POLLC = 5
UP = int(sys.argv[sys.argv.index('--up')+1]) if '--up' in sys.argv else 1
UNT = 'nt' if '--unt' in sys.argv else ''
X16 = '--x16' in sys.argv
PRIO = [int(x) for x in sys.argv[sys.argv.index('--prio')+1].split(',')] if '--prio' in sys.argv else [0, 16, 26, 30]
LOC = '--loc' in sys.argv
OSC = '' if '--plainO' in sys.argv else 'sc1'
SPEC = int(sys.argv[sys.argv.index('--spec')+1]) if '--spec' in sys.argv else 1
XNT = "nt" if "--xnt" in sys.argv else ""
WNT = "nt" if "--wnt" in sys.argv else ""
J = "\n".join

WV, XCD, IDX, NONCE = 16, 17, 18, 19
TT, CT = 20, 21
FCOFF, HEAD5, QB, OOFF = 36, 37, 38, 39
KS = [40, 41, 42]; KL = [44, 45, 46]
MODE, KH, KHOFF = 47, 48, 49
HW, CHN = 51, 52
OOCT, OTAIL = 54, 55
XS, WSO, LB = 56, 57, 99
TB = 58
P_U, P_LA, P_AI, P_CR, P_CI, P_DT, P_D, P_X, P_W, P_WO, P_OUT, P_DBG, P_WS = range(64, 90, 2)
WOS, WOL = 94, 95
MK, MK2, MC = 33+1, 35, 100
MW = [101, 25]
PV = 255
DX, DW = 240, 244
PL1, PL2 = 252, 253
DMV, KA, K4, VA, MSK, MS4, WOV, QA4, QA0 = range(224, 233)

RING = 32768
SCR = 3*RING
UST = 4640
KOFF = 4*UST
CHA = KOFF + 4224
CVB = 65536
PST = 2048 + 32
SLOT = 20992
FLAGW = 0
CONSTP = 64
ARING = 1280
QLDS = ARING + 2*SLOT
WOB = 163840 - 107*960
EXC = ARING
YSRC = WOB - 10240
PART = 25856
KSC = SCR
CNT = 129536
ARRW = CNT
OIMG = ARING
assert CVB + 4*CHA <= 163840 and ARING + 3*SLOT <= 65536 and ARING + 3*SLOT <= WOB + 11*960
assert EXC + 24576 <= PART and PART + 20480 <= YSRC and YSRC >= ARING + 2*SLOT and EXC + 24576 <= ARING + SLOT + 5*PST and OIMG + 20480 <= PART

def srd(a, d, lo, size):
    a(f"s_mov_b32 s{d}, s{lo}\ns_and_b32 s{d+1}, s{lo+1}, 0xffff\ns_mov_b32 s{d+2}, {size}\ns_mov_b32 s{d+3}, 0x20000")
def m32(d, x, y, c=None):
    return f"v_mfma_f32_32x32x16_bf16 {v(d,16)}, {v(x,4)}, {v(y,4)}, {v(c,16) if c is not None else 0}"
def m32x8(d, x, y, c):
    if X16: return f"v_mfma_f32_32x32x16_bf16 {v(d,16)}, {v(x-2,4)}, {v(y-2,4)}, {v(c,16)}"
    return f"v_mfma_f32_32x32x8_bf16 {v(d,16)}, {v(x,2)}, {v(y,2)}, {v(c,16)}"
def m16(d, x, y, c=None):
    return f"v_mfma_f32_16x16x32_bf16 {v(d,4)}, {v(x,4)}, {v(y,4)}, {v(c,4) if c is not None else 0}"
def stamp(a, i, real=False):
    if PROF: a(f"s_mem{'real' if real else ''}time s[92:93]\ns_waitcnt lgkmcnt(0)\nv_writelane_b32 v{PV}, s92, {i}")

def get_nonce(a):
    l = a.newlabel("L_nonce"); e = a.newlabel("L_nonce_e")
    a(f"""s_load_dword s{NONCE}, s[{P_DBG}:{P_DBG+1}], 0
    s_mov_b32 s50, 0
    v_mov_b32 v222, 0
    s_waitcnt lgkmcnt(0)""")
    a.label(l)
    a(f"""s_cmp_lg_u32 s{NONCE}, 0
    s_cbranch_scc1 {e}
    global_load_dword v223, v222, s[{P_DBG}:{P_DBG+1}] sc1
    s_add_u32 s50, s50, 1
    s_waitcnt vmcnt(0)
    v_readfirstlane_b32 s{NONCE}, v223
    s_cmp_lt_u32 s50, {SPIN}
    s_cbranch_scc1 {l}""")
    a.label(e)

def poll(a, addrs, width, vt, preloaded=False):
    l = a.newlabel("L_poll"); e = a.newlabel("L_poll_e")
    sfx = {1: "dword", 4: "dwordx4"}[width]
    a("s_mov_b32 s50, 0")
    if preloaded: a(f"s_branch {l}_c")
    a.label(l)
    for k, ad in enumerate(addrs): a(f"buffer_load_{sfx} {v(vt+4*k,width)}, v{ad}, s[12:15], 0 offen sc1")
    a("s_add_u32 s50, s50, 1\ns_waitcnt vmcnt(0)")
    a.label(l + "_c")
    regs = [vt+4*k+j for k in range(len(addrs)) for j in range(width)]
    for r in regs: a(f"v_xor_b32 v{r}, s{NONCE}, v{r}")
    for r in regs[1:]: a(f"v_or_b32 v{regs[0]}, v{regs[0]}, v{r}")
    a(f"""v_cmp_ne_u32 vcc, 0, v{regs[0]}
    s_cmp_gt_u32 s50, {SPIN}
    s_cbranch_scc1 {e}
    s_cbranch_vccnz {l}""")
    a.label(e)

def set_flag(a, soff, vt):
    a(f"""v_mov_b32 v{vt}, 0
    v_mov_b32 v{vt+1}, s{NONCE}
    s_mov_b64 exec, 1
    buffer_store_dword v{vt+1}, v{vt}, s[12:15], s{soff} offen sc1
    s_mov_b64 exec, -1""")

def attn_ids(a):
    if LOC: a(f"s_mov_b32 s{HEAD5}, s{IDX}\ns_mov_b32 s{QB}, s{XCD}")
    else: a(f"""s_lshl_b32 s{HEAD5}, s{XCD}, 2
    s_lshr_b32 s22, s{IDX}, 3
    s_add_u32 s{HEAD5}, s{HEAD5}, s22
    s_and_b32 s{QB}, s{IDX}, 7""")
    a(f"""s_mul_i32 s22, s{QB}, {16*OG}
    s_add_u32 s22, s22, {WS_O}
    s_lshl_b32 s{OOCT}, s{HEAD5}, 9
    s_add_u32 s{OOCT}, s{OOCT}, s22
    s_lshl_b32 s{OTAIL}, s{HEAD5}, 7
    s_add_u32 s{OTAIL}, s{OTAIL}, s22
    s_add_u32 s{OTAIL}, s{OTAIL}, 16384
    s_mul_i32 s{HEAD5}, s{HEAD5}, 5
    s_lshl_b32 s{OOFF}, s{HEAD5}, 10
    s_mul_i32 s22, s{QB}, {2*TTS_}
    s_add_u32 s{OOFF}, s{OOFF}, s22""")

def clear_o(a):
    a(f"""v_lshrrev_b32 v140, 5, v2
    v_mul_u32_u24 v140, {2*OG}, v140
    v_add_u32 v140, v140, v{OST}
    v_mov_b32 v136, -1
    v_mov_b32 v137, -1
    v_mov_b32 v138, -1
    v_mov_b32 v139, -1
    s_mul_i32 s24, s{HW}, {4*OG}
    s_add_u32 s22, s24, s{OOCT}
    s_add_u32 s23, s22, {2*OG}
    s_add_u32 s24, s24, s{OTAIL}
    buffer_store_dwordx4 v[136:139], v{OSA}, s[12:15], s22 offen sc1
    buffer_store_dwordx4 v[136:139], v{OSA}, s[12:15], s23 offen sc1
    buffer_store_dwordx2 v[136:137], v140, s[12:15], s24 offen sc1""")

def arr_init(a):
    a(f"v_mov_b32 v220, {CNT}\nv_mov_b32 v222, 0\nv_mov_b32 v223, 0\nds_write_b64 v220, v[222:223]")

def utile_issue(a):
    srd(a, 4, P_U, 2048*1280)
    a(f"""v_lshlrev_b32 v4, 4, v9
    v_mul_u32_u24 v3, 1280, v8
    v_add_u32 v3, v3, v4
    s_mov_b32 m0, s27
    s_lshr_b32 s23, s26, 5
    s_and_b32 s28, s26, 31
    s_mul_i32 s24, s28, {64*1280}
    s_lshl_b32 s22, s23, 7
    s_add_u32 s24, s24, s22
    s_mov_b32 s30, 0""")
    a.label("L_ut_i")
    a(f"""buffer_load_dwordx4 v3, s[4:7], s24 offen {UNT} lds
    s_add_u32 m0, m0, 1024
    s_add_u32 s24, s24, {8*1280}
    s_add_u32 s30, s30, 1
    s_cmp_lt_u32 s30, 8
    s_cbranch_scc1 L_ut_i""")
def utile(a):
    A0, A1, A2, A3, D = 8, 9, 10, 11, 12
    a(f"""s_lshr_b32 s23, s26, 5
    v_xor_b32 v{A1}, v{A1}, v{A0}
    v_lshlrev_b32 v{A1}, 4, v{A1}
    v_mul_u32_u24 v{A3}, {RS}, v{A0}
    v_add_u32 v{A3}, v{A3}, v{A1}
    v_lshlrev_b32 v{A0}, 4, v2
    v_add_u32 v{A0}, s27, v{A0}
    v_bfe_u32 v{A1}, v2, 2, 2
    v_lshlrev_b32 v{A1}, 7, v{A1}
    v_lshrrev_b32 v{A2}, 4, v2
    v_lshl_add_u32 v{A1}, v{A2}, 5, v{A1}
    v_and_b32 v{A2}, 3, v2
    v_lshl_add_u32 v{A1}, v{A2}, 3, v{A1}
    v_add_u32 v{A1}, s27, v{A1}
    v_and_b32 v{A2}, 7, v2
    v_lshlrev_b32 v{A2}, 4, v{A2}
    v_lshl_add_u32 v{A2}, v2, 7, v{A2}
    v_add_u32 v{A2}, s27, v{A2}
    s_mul_i32 s23, s23, {64*RS}
    s_lshl_b32 s24, s28, 7
    s_add_u32 s24, s24, s23
    s_add_u32 s24, s24, {WS_UT}
    s_lshl_b32 s29, s26, 7
    s_add_u32 s29, s29, {WS_FA}""")
    stamp(a, 27)
    a("s_waitcnt vmcnt(0)")
    stamp(a, 28)
    for i in range(16): a(f"ds_read_b64_tr_b16 {v(D+2*i,2)}, v{A1} offset:{i*512}")
    a("s_waitcnt lgkmcnt(0)")
    for i in range(8): a(f"v_xor_b32 v4, {16*i}, v{A2}\nds_write_b128 v4, {v(D+4*i,4)}")
    a("s_waitcnt lgkmcnt(0)")
    for i in range(8): a(f"ds_read_b128 {v(D+4*i,4)}, v{A0} offset:{i*1024}")
    for i in range(8):
        a(f"s_waitcnt lgkmcnt({7-i})\nbuffer_store_dwordx4 {v(D+4*i,4)}, v{A3}, s[12:15], s24 offen sc1\ns_add_u32 s24, s24, {8*RS}")
    stamp(a, 2)
    a(f"s_mov_b32 s33, s29\ns_cmp_lt_u32 s{IDX}, 30\ns_cbranch_scc1 L_h_ld0")
    get_nonce(a)
    a("s_waitcnt vmcnt(0)")
    set_flag(a, 29, 4)
    stamp(a, 3)

def next_slot(a, cur, tmp):
    a(f"""s_add_u32 s{cur}, s{cur}, {RING}
    s_lshr_b32 s{tmp}, s{cur}, 15
    s_cmp_eq_u32 s{tmp}, 3
    s_cselect_b32 s{tmp}, {RING}, 0
    s_add_u32 s{cur}, s{cur}, s{tmp}
    s_cmp_ge_u32 s{cur}, {5*RING}
    s_cselect_b32 s{tmp}, {5*RING}, 0
    s_sub_u32 s{cur}, s{cur}, s{tmp}""")

ORD = sys.argv[sys.argv.index('--ord')+1] if '--ord' in sys.argv else 'rot'
def orders():
    if ORD == 'none': return [list(range(10))]*4
    if ORD == 'pair': return [[c ^ (t & 1) for c in range(10)] for t in range(4)]
    if ORD == 'quad': return [[(c ^ t) if c < 8 else (c ^ (t & 1)) for c in range(10)] for t in range(4)]
    if ORD == 'half': return [[(c + 5*(t & 1)) % 10 for c in range(10)] for t in range(4)]
    if ORD == 'rot': return [[(c + (0, 3, 5, 8)[t]) % 10 for c in range(10)] for t in range(4)]
    if ORD == 'tri': return [[(c//3*3 + (c + t) % 3) if c < 9 else 9 for c in range(10)] for t in (0, 1, 2, 1)]
def loader_math(a):
    a(f"""s_lshr_b32 s{TT}, s{XCD}, 1
    s_lshl_b32 s{TT}, s{TT}, 2
    s_and_b32 s24, s{XCD}, 1
    s_and_b32 s22, s{IDX}, 3
    s_lshr_b32 s23, s{IDX}, 2
    s_lshl_b32 s{CT}, s24, 3
    s_add_u32 s{CT}, s{CT}, s23
    s_lshl_b32 s24, s24, 1
    s_cmp_ge_u32 s{IDX}, 28
    s_cselect_b32 s{CT}, 7, s{CT}
    s_cselect_b32 s24, s24, 0
    s_add_u32 s22, s22, s24
    s_add_u32 s{TT}, s{TT}, s22
    s_add_u32 s22, s{TT}, s{CT}
    s_and_b32 s22, s22, 3""")
    tb = [sum(c << (4*i) for i, c in enumerate(o)) for o in orders()]
    a(f"s_mov_b32 s{TB}, {tb[0] & 0xffffffff}\ns_mov_b32 s{TB+1}, {tb[0] >> 32}")
    for t in range(1, 4):
        if tb[t] != tb[0]: a(f"s_cmp_eq_u32 s22, {t}\ns_cselect_b32 s{TB}, {tb[t] & 0xffffffff}, s{TB}\ns_cselect_b32 s{TB+1}, {tb[t] >> 32}, s{TB+1}")
    a(f"""v_lshrrev_b32 v8, 3, v2
    v_and_b32 v9, 7, v2
    v_lshrrev_b32 v5, 1, v8
    s_and_b32 s22, s{HW}, 1
    s_lshl_b32 s22, s22, 2
    v_add_u32 v5, s22, v5
    v_xor_b32 v4, v9, v5
    v_lshlrev_b32 v4, 4, v4
    v_mul_u32_u24 v3, 2560, v8
    v_add_u32 v{DX}, v3, v4
    s_lshl_b32 s{XS}, s{TT}, 3
    s_add_u32 s{XS}, s{XS}, s{HW}
    s_mul_i32 s{XS}, s{XS}, {16*1280}
    v_lshrrev_b32 v3, 4, v2
    v_bfe_u32 v4, v2, 2, 2
    v_xor_b32 v4, v4, v3
    v_lshlrev_b32 v4, 6, v4
    v_and_b32 v5, 3, v2
    v_lshlrev_b32 v5, 4, v5
    v_mul_u32_u24 v3, 3840, v3
    v_add3_u32 v{DW}, v3, v4, v5
    s_lshl_b32 s{WSO}, s{CT}, 8
    s_mul_i32 s22, s{HW}, {4*3840}
    s_add_u32 s{WSO}, s{WSO}, s22
    s_lshl_b32 s{LB}, s{HW}, 10
    s_lshl_b32 s22, s{KH}, 15
    s_add_u32 s{LB}, s{LB}, s22
    s_lshl_b32 s22, s{KH}, 2
    s_lshr_b64 s[{TB}:{TB+1}], s[{TB}:{TB+1}], s22""")
    for i in range(1, 4):
        a(f"v_add_u32 v{DX+i}, {(64*(i>>1) + (i&1))*1280}, v{DX}\nv_add_u32 v{DW+i}, {i*16*3840}, v{DW}")
def dma_prep():
    return f"""s_and_b32 s24, s{TB}, 15
    s_lshr_b64 s[{TB}:{TB+1}], s[{TB}:{TB+1}], 4
    s_lshl_b32 s22, s24, 7
    s_add_u32 s22, s22, s{XS}
    s_mul_i32 s23, s24, {64*3840}
    s_add_u32 s23, s23, s{WSO}"""
def dma(k):
    i = k >> 1
    if k & 1 == 0: return f"s_add_u32 m0, s{LB}, {i*4096}\ns_nop 0\nbuffer_load_dwordx4 v{DX+i}, s[60:63], s22 offen lds"
    return f"s_add_u32 m0, s{LB}, {16384+i*4096}\ns_nop 0\nbuffer_load_dwordx4 v{DW+i}, s[8:11], s23 offen lds"
def dma_adv():
    return f"""s_add_u32 s{LB}, s{LB}, {RING}
    s_cmp_ge_u32 s{LB}, {3*RING}
    s_cselect_b32 s24, {3*RING}, 0
    s_sub_u32 s{LB}, s{LB}, s24"""
def issue(a):
    a(dma_prep())
    for k in range(8): a(dma(k))
    next_slot(a, LB, 22)
def skip(a):
    a(f"s_lshr_b64 s[{TB}:{TB+1}], s[{TB}:{TB+1}], 4")
    next_slot(a, LB, 22)
def lds_wait(a, va, off, vt, sleep=True):
    l = a.newlabel("L_lw"); e = a.newlabel("L_le")
    a.label(l)
    a(f"""ds_read_b32 v{vt}, v{va} offset:{off}
    s_waitcnt lgkmcnt(0)
    v_readfirstlane_b32 s22, v{vt}
    s_cmp_ge_u32 s22, 4
    s_cbranch_scc1 {e}""")
    if sleep: a("s_sleep 2")
    a(f"s_branch {l}")
    a.label(e)

def main_pre(a):
    def wg_of(tt, ct, dst):
        a(f"""v_cmp_eq_u32 vcc, 7, v{ct}
        v_bfe_u32 v10, v{tt}, 1, 1
        v_lshrrev_b32 v11, 3, v{ct}
        v_cndmask_b32 v10, v11, v10, vcc
        v_and_b32 v11, 3, v{tt}
        v_and_b32 v12, 1, v{tt}
        v_cndmask_b32 v11, v11, v12, vcc
        v_and_b32 v12, 7, v{ct}
        v_lshl_add_u32 v11, v12, 2, v11
        v_lshl_add_u32 v10, v11, 3, v10
        v_lshrrev_b32 v11, 2, v{tt}
        v_lshl_add_u32 v{dst}, v11, 1, v10""")
    a(f"""v_and_b32 v3, 15, v2
    v_lshrrev_b32 v4, 5, v2
    v_mul_u32_u24 v4, 160, v4
    v_bfe_u32 v5, v2, 4, 1
    v_lshl_add_u32 v4, v5, 2, v4
    s_add_u32 s22, s{HEAD5}, 160
    v_add_u32 v4, s22, v4
    v_lshrrev_b32 v4, 5, v4""")
    wg_of(3, 4, 8)
    a(f"""v_lshlrev_b32 v8, 7, v8
    v_add_u32 v{PL1}, {WS_FB}, v8
    v_and_b32 v3, 1, v2
    s_lshl_b32 s22, s{QB}, 1
    v_add_u32 v3, s22, v3
    v_bfe_u32 v4, v2, 1, 1
    v_lshlrev_b32 v4, 2, v4
    v_add_u32 v4, s{HEAD5}, v4
    v_lshrrev_b32 v4, 5, v4""")
    wg_of(3, 4, 9)
    if LOC: a(f"v_lshl_add_u32 v3, v2, 3, s{XCD}")
    else: a(f"""v_bfe_u32 v3, v2, 3, 2
    v_lshlrev_b32 v3, 6, v3
    v_and_b32 v4, 7, v2
    s_lshl_b32 s22, s{XCD}, 3
    v_add3_u32 v3, v3, v4, s22""")
    a(f"""v_cmp_gt_u32 vcc, 32, v2
    s_nop 1
    v_cndmask_b32 v9, v9, v3, vcc
    v_lshlrev_b32 v9, 7, v9
    v_add_u32 v{PL2}, {WS_FB}, v9""")

def gemm(a):
    XA = [10, 11, 12, 13]; WA = [14, 15]
    FX = [[16, 20], [32, 36]]; FW = [[24, 28], [40, 44]]
    ACC = 48
    a(f"""s_and_b32 s34, s{WV}, 1
    s_lshr_b32 s35, s{WV}, 1
    v_and_b32 v3, 31, v2
    v_lshrrev_b32 v4, 5, v2
    v_bfe_u32 v5, v3, 1, 3
    v_xor_b32 v5, v5, v4
    v_lshlrev_b32 v5, 4, v5
    v_lshlrev_b32 v6, 7, v3
    s_lshl_b32 s22, s34, 13
    v_add3_u32 v{XA[0]}, v5, v6, s22
    v_xor_b32 v{XA[1]}, 32, v{XA[0]}
    v_xor_b32 v{XA[2]}, 64, v{XA[0]}
    v_xor_b32 v{XA[3]}, 96, v{XA[0]}
    v_bfe_u32 v5, v2, 2, 2
    s_lshl_b32 s22, s35, 1
    v_xor_b32 v6, s22, v5
    v_lshlrev_b32 v6, 6, v6
    v_lshlrev_b32 v7, 3, v4
    v_add_u32 v7, v7, v5
    v_lshlrev_b32 v7, 8, v7
    v_bfe_u32 v5, v2, 4, 1
    v_lshlrev_b32 v5, 5, v5
    v_add3_u32 v6, v6, v7, v5
    v_and_b32 v5, 3, v2
    v_lshl_add_u32 v6, v5, 3, v6
    v_add_u32 v{WA[0]}, 16384, v6
    v_xor_b32 v{WA[1]}, 64, v{WA[0]}
    v_lshlrev_b32 v5, 10, v4
    v_lshl_add_u32 v5, v3, 4, v5
    s_lshl_b32 s26, s{CT}, 5
    s_lshl_b32 s23, s35, 4
    s_add_u32 s26, s26, s23
    s_lshl_b32 s26, s26, 10
    s_mul_i32 s23, s{TT}, {TTS_}
    s_add_u32 s26, s26, s23
    s_lshl_b32 s23, s34, 9
    s_add_u32 s26, s26, s23""")
    for i in range(64): a(f"v_mov_b32 v{ACC+i}, 0")
    def rx(ks, buf, t): return f"ds_read_b128 {v(FX[buf][t],4)}, v{XA[ks]} offset:{t*4096}"
    def rw(ks, buf, m, rd): return f"ds_read_b64_tr_b16 {v(FW[buf][m]+2*rd,2)}, v{WA[m]} offset:{(16*ks+4*rd)*256}"
    def rds(ks, buf): return [rx(ks,buf,0), rw(ks,buf,0,0), rw(ks,buf,0,1), rx(ks,buf,1), rw(ks,buf,1,0), rw(ks,buf,1,1)]
    def mf(buf, m, t): return m32(ACC+(m*2+t)*16, FW[buf][m], FX[buf][t], ACC+(m*2+t)*16)
    stamp(a, 24)
    a(f"s_cmp_lt_u32 s{IDX}, 20\ns_cbranch_scc1 L_g_w")
    issue(a)
    a("s_waitcnt vmcnt(8)")
    issue(a)
    a("s_branch L_g_b0")
    a.label("L_g_w")
    a("s_waitcnt vmcnt(8) lgkmcnt(0)")
    a.label("L_g_b0")
    stamp(a, 25)
    a(f"s_cmp_lt_u32 s{CT}, 5\ns_cselect_b32 s28, {f32hex(QSCALE)}, 1.0")
    a("s_mov_b32 s30, 0\ns_mov_b32 s31, 0\ns_setprio 2")
    stamp(a, 26)
    a("s_barrier")
    stamp(a, 2)
    a(J(rds(0, 0)))
    a(".p2align 3")
    a.label("L_g_mm")
    for ks in range(4):
        b = ks & 1
        r = rds((ks+1) & 3, b ^ 1)
        a("s_waitcnt lgkmcnt(3)")
        a(mf(b, 0, 0))
        if ks < 3:
            a(J(r[0:3]) + "\ns_waitcnt lgkmcnt(5)")
            a(mf(b, 0, 1))
            a(J(r[3:6]) + "\ns_waitcnt lgkmcnt(6)")
            a(mf(b, 1, 0))
            if ks == 0:
                a("s_mov_b32 s32, s31"); next_slot(a, 31, 33)
            if ks == 1: a(f"s_sub_u32 s33, s31, s32\ns_add_u32 s30, s30, 1\nv_add_u32 v{XA[0]}, s33, v{XA[0]}\nv_add_u32 v{XA[1]}, s33, v{XA[1]}\nv_add_u32 v{XA[2]}, s33, v{XA[2]}")
            if ks == 2: a(f"v_add_u32 v{XA[3]}, s33, v{XA[3]}\nv_add_u32 v{WA[0]}, s33, v{WA[0]}\nv_add_u32 v{WA[1]}, s33, v{WA[1]}\ns_cmp_eq_u32 s30, 1")
            a(mf(b, 1, 1))
        else:
            a("s_cbranch_scc1 L_g_w8\ns_waitcnt vmcnt(0)")
            a.label("L_g_w8")
            a("s_waitcnt vmcnt(8) lgkmcnt(0)\ns_cmp_gt_u32 s30, 8\ns_cbranch_scc1 L_g_nb\ns_barrier")
            a.label("L_g_nb")
            a(mf(b, 0, 1))
            a(J(r[0:3]) + "\ns_cmp_lt_u32 s30, 10")
            a(mf(b, 1, 0))
            a(J(r[3:6]))
            a(mf(b, 1, 1))
            a("s_cbranch_scc1 L_g_mm")
    stamp(a, 3)
    a("s_nop 4\ns_waitcnt lgkmcnt(0)")
    k = 0
    for m in range(2):
        for g in range(4):
            d = 16 + 4*k; k += 1
            for t in range(2):
                r = ACC + (m*2+t)*16 + 4*g
                for i in range(4): a(f"v_mul_f32 v{r+i}, s28, v{r+i}")
                a(f"v_cvt_pk_bf16_f32 v{d+2*t}, v{r}, v{r+1}\nv_cvt_pk_bf16_f32 v{d+2*t+1}, v{r+2}, v{r+3}")
            if k & 1: a(f"s_add_u32 s23, s26, {WS_QKV + (m*8+2*g)*1024}")
            a(f"buffer_store_dwordx4 {v(d,4)}, v5, s[12:15], s23 offen offset:{0 if k & 1 else 2048} sc1")

PRM = 152
VD = 233
def cm(d, x, z, t):
    return [f"v_pk_mul_f32 {v(t,2)}, {v(x,2)}, {v(z,2)} op_sel:[0,0] op_sel_hi:[1,0]",
            f"v_pk_fma_f32 {v(d,2)}, {v(x,2)}, {v(z,2)}, {v(t,2)} op_sel:[1,1,0] op_sel_hi:[0,1,1] neg_lo:[0,1,0]"]
def ilv(*ls):
    out = []
    for i in range(max(len(x) for x in ls)):
        for x in ls:
            if i < len(x): out.append(x[i])
    return out
GDT, GER, GTH, GT = 112, 113, 114, 116
def kg_dt(a):
    a(f"""v_lshlrev_b32 v{GDT}, 16, v{PRM+4}
    v_mul_f32 v{GDT}, {f32hex(LOG2E)}, v{GDT}
    v_exp_f32 v{GDT}, v{GDT}
    s_lshl_b32 s22, s{KH}, 4
    v_cvt_pk_bf16_f32 v{GDT}, v{GDT}, v{GDT}
    v_and_b32 v{GDT}, 0xffff0000, v{GDT}""")
def kg_setup(anchors, X0):
    o = f"""v_lshlrev_b32 v{PRM}, s22, v{PRM}
    v_lshlrev_b32 v{PRM+1}, s22, v{PRM+1}
    v_and_b32 v{GER}, 0xffff0000, v{PRM}
    v_mul_f32 v{GER}, {f32hex(LOG2E)}, v{GER}
    v_exp_f32 v{GER}, v{GER}
    v_and_b32 v{GTH}, 0xffff0000, v{PRM+1}
    v_lshlrev_b32 v{PRM+2}, s22, v{PRM+2}
    v_cvt_pk_bf16_f32 v{GER}, v{GER}, v{GER}
    v_lshlrev_b32 v{PRM+3}, s22, v{PRM+3}
    v_and_b32 v{GER}, 0xffff0000, v{GER}
    v_mul_f32 v{GER}, v{GER}, v{GDT}
    v_mul_f32 v{GTH}, v{GTH}, v{GDT}
    v_mul_f32 v{GER}, {f32hex(-LOG2E)}, v{GER}
    v_mul_f32 v{GTH}, 0.15915494, v{GTH}
    v_and_b32 v{X0}, 0xffff0000, v{PRM+2}
    v_and_b32 v{X0+1}, 0xffff0000, v{PRM+3}
    v_mul_f32 v{X0}, v{X0}, v{GDT}
    v_mul_f32 v{X0+1}, v{X0+1}, v{GDT}
    v_add_f32 v{X0}, v{X0}, v{X0}
    v_add_f32 v{X0+1}, v{X0+1}, v{X0+1}""".split("\n")
    for (z, p) in anchors:
        o += f"""v_mul_f32 v{GT}, {f32hex(p)}, v{GER}
        v_mul_f32 v{GT+1}, {f32hex(p)}, v{GTH}
        v_exp_f32 v{GT}, v{GT}
        v_fract_f32 v{GT+1}, v{GT+1}
        v_cos_f32 v{z}, v{GT+1}
        v_sin_f32 v{z+1}, v{GT+1}
        v_mul_f32 v{z}, v{z}, v{GT}
        v_mul_f32 v{z+1}, v{z+1}, v{GT}""".split("\n")
    return o

def krow():
    def row(h, reg): return 8*(reg >> 2) + 4*h + (reg & 3)
    rowp = {}
    for p in range(4): rowp[row(0, p)] = p; rowp[row(1, p)] = p + 4
    for i, (p0, p1) in enumerate(((256, 260), (258, 262), (260, 264), (512, 768), (516, 772), (520, 776), (1024, 1280), (1032, 1288), (1536, 1792), (1544, 1800))):
        rowp[row(0, 4+i)] = p0; rowp[row(1, 4+i)] = p1
    return rowp
XORD = [1, 2, 3, 4, 5, 6, 7, 258, 260, 262, 516, 772, 1544, 1800, 0, 256, 264, 512, 520, 768, 776, 1024, 1032, 1280, 1288, 1536, 1792]
PKA = 160
KACC = 192
GWA, GRA, GFX = 16, 32, 112
def kgen(a, mid):
    Z1, Z8, ZW, ZB, YA, X0 = 124, 126, 128, 130, 132, 134
    rowp = krow()
    a(f"s_lshl_b32 s28, s{WV}, 13\ns_add_u32 s28, s28, {KSC}")
    kgen_addr(a)
    a(f"v_mov_b32 v{PKA}, 0x3f80\ns_waitcnt vmcnt(8)")
    stamp(a, 20)
    kg_dt(a)
    a(J(kg_setup(((Z8, 8.0), (ZB, 128.0), (Z1, 1.0), (ZW, 256.0)), X0)))
    def pack(p):
        r = X0 + 2*(p % 256)
        return [f"v_cvt_pk_bf16_f32 v{PKA+32+XORD.index(p)}, v{r}, -v{r+1}"]
    def step(p, t):
        if p < 8: return cm(X0+2*p, X0+2*p-2, Z1, t) + pack(p)
        if p == 8: return cm(X0+16, X0, Z8, t) + pack(0)
        b = p % 256
        return cm(X0+2*b, X0+2*b, ZW, t) + pack(p)
    s1 = sum((step(p, GT) for p in (1, 2, 3, 4, 5, 6, 7, 258, 260, 262, 516, 772, 1544, 1800)), [])
    s2 = sum((step(p, GT+2) for p in (8, 256, 264, 512, 520, 768, 776, 1024, 1032, 1280, 1288, 1536, 1792)), [])
    ya = [f"v_cvt_pk_bf16_f32 v{PKA+1}, v{Z8}, v{Z8+1}"]
    for j in range(2, 16): ya += cm(YA, Z8 if j == 2 else YA, Z8, GT+4) + [f"v_cvt_pk_bf16_f32 v{PKA+j}, v{YA}, v{YA+1}"]
    yb = [f"v_cvt_pk_bf16_f32 v{PKA+16}, v{ZB}, v{ZB+1}"]
    for j in range(17, 32): yb += cm(ZB, ZB, Z8, GT+6) + [f"v_cvt_pk_bf16_f32 v{PKA+j}, v{ZB}, v{ZB+1}"]
    a(J(ilv(ya, yb)))
    ly = [f"ds_write2st64_b32 v{GWA+j}, v{PKA+j}, v{PKA+16+j} offset0:{j} offset1:{16+j}" for j in range(16)]
    ly += [f"ds_read_b128 {v(PKA+4*ks,4)}, v{GRA+ks}" for ks in range(8)]
    xs = ilv(s1, s2)
    for i, x in enumerate(xs):
        a(x)
        if i % 3 == 0 and i // 3 < len(ly): a(ly[i // 3])
    assert len(xs) // 3 >= len(ly)
    stamp(a, 21)
    for j in range(16):
        if j + 16 in rowp: a(f"ds_write2st64_b32 v{GWA+j}, v{PKA+32+XORD.index(rowp[j])}, v{PKA+32+XORD.index(rowp[j+16])} offset0:{j} offset1:{16+j}")
        else: a(f"ds_write_b32 v{GWA+j}, v{PKA+32+XORD.index(rowp[j])} offset:{j*256}")
    for ks in range(8): a(f"ds_read_b128 {v(GFX+4*ks,4)}, v{GRA+ks}")
    for ks in range(8):
        a(f"s_waitcnt lgkmcnt({7-ks})")
        a(m32(KACC, GFX+4*ks, PKA+4*ks, KACC if ks else None))
    stamp(a, 22)
def kgen_addr(a):
    WA, RA = 16, 32
    a(f"""v_lshlrev_b32 v{WA}, 2, v2
    v_add_u32 v{WA}, s28, v{WA}
    v_and_b32 v{RA}, 31, v2
    v_lshrrev_b32 v3, 5, v2
    v_and_b32 v4, 15, v2
    v_xor_b32 v3, v3, v4
    v_lshlrev_b32 v3, 4, v3
    v_lshl_add_u32 v{RA}, v{RA}, 8, v3
    v_add_u32 v{RA}, s28, v{RA}""")
    for i in range(1, 16): a(f"v_xor_b32 v{WA+i}, {16*i}, v{WA}")
    for i in range(1, 8): a(f"v_xor_b32 v{RA+i}, {32*i}, v{RA}")

KP = 160
def kpack(a, kdst):
    Jv, H, AD = 10, 11, 12
    R = KACC; P0 = KP
    a(f"""v_and_b32 v{Jv}, 31, v2
    v_lshrrev_b32 v{H}, 5, v2
    v_lshlrev_b32 v{AD}, 4, v{Jv}
    v_sub_u32 v{AD}, s{kdst}, v{AD}
    v_lshlrev_b32 v13, 3, v{H}
    v_sub_u32 v216, v{AD}, v13
    v_lshlrev_b32 v13, 9, v{H}
    v_sub_u32 v217, v{AD}, v13
    v_and_b32 v{H}, 1, v{Jv}
    v_cmp_eq_u32 vcc, 0, v{H}
    v_lshlrev_b32 v{Jv}, 2, v{Jv}
    v_add_u32 v218, s{kdst}, v{Jv}
    v_lshlrev_b32 v15, 16, v{VD}
    s_mov_b64 exec, 1
    v_add_f32 v{R}, v{R}, v15
    s_mov_b64 exec, -1""")
    cv = lambda d, lo, hi: a(f"v_cvt_pk_bf16_f32 v{d}, v{lo}, v{hi}")
    cv(P0, R+3, R+2); cv(P0+1, R+1, R+0)
    cv(P0+2, R+6, R+5); cv(P0+3, R+4, R+4)
    cv(P0+4, R+9, R+9); cv(P0+5, R+8, R+8); cv(P0+6, R+8, R+7); cv(P0+7, R+7, R+7)
    for sidx in range(2):
        ra, rb = R+10+2*sidx, R+11+2*sidx
        d = P0 + 8 + 4*sidx
        a(f"v_cndmask_b32 v13, v{rb}, v{ra}, vcc")
        cv(d, rb, rb); cv(d+1, rb, 13); cv(d+2, ra, ra); cv(d+3, ra, ra)
def kwrite(a, vzero):
    P0 = KP
    a(f"""ds_write_b64 v216, {v(P0,2)} offset:{4080+8}
    ds_write_b64 v216, {v(P0+2,2)} offset:{4080-512+8}
    ds_write_b128 v217, {v(P0+4,4)} offset:{4080-1024}
    ds_write_b128 v217, {v(P0+8,4)} offset:{4080-2048}
    ds_write_b128 v217, {v(P0+12,4)} offset:{4080-3072}
    ds_write_b32 v218, v{vzero} offset:4096""")

CAA, CBA, CACC = 10, 11, 148
def conv_setup(a, cbase):
    a(f"""v_and_b32 v3, 3, v2
    v_mul_u32_u24 v{CAA}, {UST}, v3
    v_bfe_u32 v3, v2, 2, 2
    v_lshl_add_u32 v{CAA}, v3, 7, v{CAA}
    v_lshrrev_b32 v4, 4, v2
    v_lshl_add_u32 v{CAA}, v4, 4, v{CAA}
    v_add_u32 v{CAA}, s{cbase}, v{CAA}
    v_and_b32 v3, 15, v2
    v_lshlrev_b32 v3, 3, v3
    v_lshlrev_b32 v{CBA}, 4, v4
    v_sub_u32 v{CBA}, v{CBA}, v3
    v_add_u32 v{CBA}, {KOFF+120}, v{CBA}
    v_add_u32 v{CBA}, s{cbase}, v{CBA}""")
    for i in range(32): a(f"v_mov_b32 v{CACC+i}, 0")
def conv(a, ydst, mid):
    FA = [16, 80]; FB = [48, 112]; ACC = CACC
    def loads(b, extra):
        out = []
        for k in range(8):
            out += [f"ds_read_b64 {v(FB[b]+4*k,2)}, v{CBA} offset:{512*(7-k)+extra}", f"ds_read_b64 {v(FB[b]+4*k+2,2)}, v{CBA} offset:{512*(7-k)+8+extra}",
                    f"ds_read_b128 {v(FA[b]+4*k,4)}, v{CAA} offset:{512*k+extra}"]
        return out
    a("s_waitcnt lgkmcnt(0)")
    a(J(loads(0, 0)))
    a(mid)
    a("s_mov_b32 s53, 0\n.p2align 3")
    lp = a.newlabel("L_cv")
    a.label(lp)
    pairs = sorted([(i, j) for i in range(8) for j in range(8) if i + j < 8], key=lambda p: (max(p), p))
    for b in range(2):
        ld = loads(b ^ 1, 64*(b+1))
        a("s_waitcnt lgkmcnt(0)")
        for n, (i, j) in enumerate(pairs):
            a(m16(ACC+4*(i+j), FA[b]+4*i, FB[b]+4*j, ACC+4*(i+j)))
            if n < 24: a(ld[n])
            if b == 1 and n == 26: a(f"v_add_u32 v{CAA}, 128, v{CAA}")
            if b == 1 and n == 27: a(f"v_add_u32 v{CBA}, 128, v{CBA}")
            if b == 1 and n == 28: a("s_add_u32 s53, s53, 1\ns_cmp_lt_u32 s53, 4")
    a(f"s_cbranch_scc1 {lp}")
    a("v_lshlrev_b32 v3, 3, v2")
    for b in range(8):
        ac = ACC + 4*b
        a(f"""v_cvt_pk_bf16_f32 v{ac}, v{ac}, v{ac+1}
        v_cvt_pk_bf16_f32 v{ac+1}, v{ac+2}, v{ac+3}
        buffer_store_dwordx2 {v(ac,2)}, v3, s[12:15], s{ydst} offen offset:{512*b} sc1""")

def helper(a):
    CB = 26
    UE = 132
    a(f"""s_mov_b32 s33, 0
    s_cmp_ge_u32 s{IDX}, 20
    s_cbranch_scc1 L_h_tr
    s_lshr_b32 s{FCOFF}, s{CHN}, 2
    s_lshl_b32 s{FCOFF}, s{FCOFF}, 7
    s_lshl_b32 s22, s{HW}, 2
    s_add_u32 s{FCOFF}, s{FCOFF}, s22
    s_add_u32 s{FCOFF}, s{FCOFF}, {WS_FC}
    s_lshr_b32 s22, s{CHN}, 6
    s_lshl_b32 s22, s22, 12
    s_add_u32 s22, s22, {WS_FA}
    v_and_b32 v4, 31, v2
    v_lshl_add_u32 v8, v4, 7, s22
    s_mul_i32 s{CB}, s{HW}, {CHA}
    s_add_u32 s{CB}, s{CB}, {CVB}
    s_mul_i32 s27, s{CHN}, {RS}
    s_add_u32 s27, s27, {WS_UT}
    s_add_u32 s29, s{CB}, {KOFF}
""")
    issue(a)
    skip(a)
    a.label("L_kgen")
    kgen(a, None)
    a(f"s_cmp_eq_u32 s{KH}, 0\ns_cbranch_scc1 L_g_kb")
    stamp(a, 3)
    a("s_waitcnt vmcnt(0)\ns_branch L_h_ld1")
    a.label("L_h_tr")
    a(f"s_cmp_ge_u32 s26, 320\ns_cbranch_scc1 L_h_ld0")
    a.label("L_utile")
    utile(a)
    a("s_branch L_tr_back")
    a.label("L_h_ld0")
    a(f"v_mov_b32 v8, {WS_FA}")
    skip(a); skip(a)
    a.label("L_h_ld1")
    a("s_mov_b32 s30, 0")
    a.label("L_h_ld")
    a("s_waitcnt vmcnt(16) lgkmcnt(0)\ns_barrier")
    if PROF: a(f"s_memtime s[92:93]\ns_add_u32 m0, s30, 32\ns_waitcnt lgkmcnt(0)\nv_writelane_b32 v{PV}, s92, m0")
    issue(a)
    a(f"""s_add_u32 s30, s30, 1
    s_cmp_lg_u32 s30, 2
    s_cbranch_scc1 L_h_l1""")
    get_nonce(a)
    arr_init(a)
    a("s_cmp_eq_u32 s33, 0\ns_cbranch_scc1 L_h_l1\ns_waitcnt vmcnt(16)")
    set_flag(a, 33, 4)
    stamp(a, 3)
    a.label("L_h_l1")
    a(f"""s_cmp_lg_u32 s30, {POLLC}
    s_cbranch_scc1 L_h_l2
    buffer_load_dword v9, v8, s[12:15], 0 offen sc1""")
    a.label("L_h_l2")
    a(f"""s_cmp_lt_u32 s30, 7
    s_cbranch_scc1 L_h_ld
    s_cmp_lt_u32 s{IDX}, 20
    s_cbranch_scc1 L_h_k7
    s_waitcnt vmcnt(16)
    s_barrier
    s_waitcnt vmcnt(0)
    s_barrier""")
    a.label("L_h_ids")
    a("s_mov_b32 s33, 2")
    attn_ids(a)
    o_maps(a)
    a("s_branch L_setup")
    a.label("L_h_k7")
    def uloads():
        for i in range(4): a(f"buffer_load_dwordx4 {v(132+4*i,4)}, v{DMV}, s[12:15], s27 offen offset:{1024*i} sc1")
    a("s_waitcnt vmcnt(16)\ns_barrier")
    stamp(a, 39)
    a(f"""s_sub_u32 s28, s28, 32768
    v_add_u32 v6, s28, v{DMV}
    v_cmp_ne_u32 vcc, s{NONCE}, v9
    s_mov_b32 s31, 0""")
    for i in range(4): a(f"ds_read_b128 {v(16+4*i,4)}, v6 offset:{1024*i}")
    a("s_cbranch_vccnz L_h_nu")
    uloads()
    a("s_mov_b32 s31, 1\ns_branch L_h_n2")
    a.label("L_h_nu")
    a("s_waitcnt vmcnt(0)")
    a.label("L_h_n2")
    a("s_waitcnt lgkmcnt(0)")
    for i in range(0, 14, 2): a(f"v_pk_add_f32 {v(KACC+i,2)}, {v(KACC+i,2)}, {v(16+i,2)}")
    kpack(a, 29)
    stamp(a, 46)
    a("s_waitcnt vmcnt(4)\ns_barrier")
    stamp(a, 4)
    a("s_cmp_eq_u32 s31, 1\ns_cbranch_scc1 L_h_hu")
    poll(a, [8], 1, 9)
    uloads()
    a.label("L_h_hu")
    a(f"""v_lshlrev_b32 v5, 3, v2
    v_min_u32 v5, 376, v5
    v_add_u32 v5, s{CB}, v5
    v_mov_b32 v6, 0
    v_mov_b32 v7, 0""")
    kwrite(a, 6)
    for r in range(4): a(f"ds_write_b64 v5, v[6:7] offset:{r*UST}")
    conv_setup(a, CB)
    a(f"""s_mul_i32 s27, s{CHN}, {RS}
    s_add_u32 s27, s27, {WS_YT}
    v_add_u32 v4, s{CB}, v{DMV}
    s_waitcnt vmcnt(0)""")
    stamp(a, 5)
    for i in range(4):
        e = 132 + 4*i
        C2, C1, C0, PP = 16 + 14*i, 20 + 14*i, 24 + 14*i, 28 + 14*i
        a(f"ds_write_b128 v4, {v(e,4)} offset:{3*UST + 384 + 1024*i}")
        if i == 0: a(f"v_mov_b32 v{PP}, 0\nv_mov_b32 v{C1}, 0\ns_nop 0")
        else: a(f"v_readlane_b32 s22, v{e-2}, 63\nv_readlane_b32 s23, v{e-1}, 63\ns_nop 0\nv_mov_b32 v{PP}, s22\nv_mov_b32 v{C1}, s23\ns_nop 0")
        a(f"v_mov_b32_dpp v{PP}, v{e+2} wave_shr:1 row_mask:0xf bank_mask:0xf")
        a(f"v_mov_b32_dpp v{C1}, v{e+3} wave_shr:1 row_mask:0xf bank_mask:0xf")
        for j in range(3): a(f"v_mov_b32 v{C1+1+j}, v{e+j}")
        a(f"ds_write_b128 v4, {v(C1,4)} offset:{UST + 384 + 1024*i}")
        a(f"v_alignbit_b32 v{C2}, v{e}, v{C1}, 16")
        for j in range(1, 4): a(f"v_alignbit_b32 v{C2+j}, v{e+j}, v{e+j-1}, 16")
        a(f"ds_write_b128 v4, {v(C2,4)} offset:{2*UST + 384 + 1024*i}")
        a(f"v_alignbit_b32 v{C0}, v{C1}, v{PP}, 16")
        for j in range(3): a(f"v_mov_b32 v{C0+1+j}, v{C2+j}")
        a(f"ds_write_b128 v4, {v(C0,4)} offset:{384 + 1024*i}")
    stamp(a, 6)
    conv(a, 27, "")
    stamp(a, 7)
    a("s_branch L_h_ids")

def window1(a):
    attn_ids(a)
    o_maps(a)
    clear_o(a)
    main_pre(a)
    zero_state(a)
    get_nonce(a)
    a(f"""s_setprio 0
    v_mov_b32 v3, {ARRW}
    v_mov_b32 v4, 1
    s_lshl_b32 s22, s2, 7
    s_add_u32 s26, s22, {WS_FB}""")
    stamp(a, 4)
    a(f"""s_waitcnt vmcnt(0)
    s_mov_b64 exec, 1
    ds_add_rtn_u32 v4, v3, v4
    s_mov_b64 exec, -1
    s_waitcnt lgkmcnt(0)
    v_readfirstlane_b32 s22, v4
    s_cmp_lg_u32 s22, 3
    s_cbranch_scc1 L_w1_r""")
    stamp(a, 5)
    stamp(a, 53, True)
    set_flag(a, 26, 6)
    a(f"""v_mov_b32 v16, 0x3f803f80
    v_mov_b32 v17, 0x00003f80
    v_mov_b32 v18, 0x3f803f80
    v_mov_b32 v19, 0x00003f80
    ds_write_b128 v{DMV}, v[16:19] offset:{CONSTP}
    ds_write_b32 v6, v6 offset:{FLAGW}""")
    poll(a, [PL1, PL2], 1, 20)
    stamp(a, 6)
    stamp(a, 54, True)
    a(f"s_add_u32 s23, s{HEAD5}, 160\ns_lshl_b32 s23, s23, 10")
    for u in range(10):
        a(f"""s_mov_b32 m0, {QLDS + 1024*u}
        s_add_u32 s24, s{OOFF}, {(u >> 1)*1024 + (u & 1)*TTS_}
        buffer_load_dwordx4 v{DMV}, s[12:15], s24 offen sc1 lds""")
    for c in range(1):
        for u in range(20):
            p = u >> 1
            off = ((p + (155 if p >= 5 else 0)) << 10) + ((u & 1)*8 + c)*TTS_
            a(f"""s_mov_b32 m0, {ARING + c*SLOT + p*PST + (u & 1)*1024}
            s_add_u32 s24, s23, {off}
            buffer_load_dwordx4 v{DMV}, s[12:15], s24 offen sc1 lds""")
    stamp(a, 7)
    a.label("L_w1_r")
    a("s_mov_b32 s33, 0")
    a.label("L_setup")
    attn_reset(a)
    tail_setup(a)
    a("""s_cmp_eq_u32 s33, 2
    s_cbranch_scc1 L_attn
    s_waitcnt vmcnt(0)
    s_branch L_at_b2""")

Q0 = [16, 22]; Q1 = [20, 26]
KF = [28, 34]; VF = [40, 48]; P = [56, 64]; S = [72, 88]; O = [104, 120]
def set_m(a, q, M):
    a(f"""v_sub_f32 v{M}, 0, v{M}
    v_and_b32 v{M+1}, 0xffff0000, v{M}
    v_sub_f32 v{M+2}, v{M}, v{M+1}
    v_and_b32 v{M+3}, 0xffff0000, v{M+2}
    v_sub_f32 v{M+2}, v{M+2}, v{M+3}
    v_lshrrev_b32 v{M+1}, 16, v{M+1}
    v_or_b32 v{M+1}, v{M+1}, v{M+3}
    v_lshrrev_b32 v{M+2}, 16, v{M+2}
    v_cndmask_b32 v{Q1[q]}, v{M+1}, v{Q1[q]}, vcc
    v_cndmask_b32 v{Q1[q]+1}, v{M+2}, v{Q1[q]+1}, vcc""")
def tilemax(a, M, s, first):
    if first: a(f"v_max3_f32 v{M}, v{s}, v{s+1}, v{s+2}")
    else: a(f"v_max3_f32 v{M}, v{M}, v{s}, v{s+1}\nv_max_f32 v{M}, v{M}, v{s+2}")
    for i in range(3, 15, 2): a(f"v_max3_f32 v{M}, v{M}, v{s+i}, v{s+i+1}")
    a(f"v_max_f32 v{M}, v{M}, v{s+15}")
def halfmax(a, M):
    a(f"v_mov_b32 v{M+1}, v{M}\ns_nop 1\nv_permlane32_swap_b32 v{M}, v{M+1}\nv_max_f32 v{M}, v{M}, v{M+1}")

def kv_units(a):
    a(f"""s_lshr_b32 s22, s{WV}, 1
    s_and_b32 s23, s{WV}, 1
    s_mul_i32 s{KL[0]}, s22, {PST}
    s_lshl_b32 s24, s23, 10
    s_add_u32 s{KL[0]}, s{KL[0]}, s24
    s_add_u32 s{KL[0]}, s{KL[0]}, {ARING}
    s_add_u32 s{KL[1]}, s{KL[0]}, {4*PST}
    s_add_u32 s{KL[2]}, s{KL[0]}, {8*PST}
    s_add_u32 s24, s22, s{HEAD5}
    s_lshl_b32 s24, s24, 10
    s_mul_i32 s23, s23, {8*TTS_}
    s_add_u32 s24, s24, s23
    s_add_u32 s{KS[0]}, s24, {160*1024 + TTS_}
    s_add_u32 s{KS[2]}, s24, {(160+8+155)*1024 + TTS_}
    s_cmp_eq_u32 s22, 0
    s_cselect_b32 s23, 0, {155*1024}
    s_add_u32 s{KS[1]}, s{KS[0]}, s23
    s_add_u32 s{KS[1]}, s{KS[1]}, 4096""")
def attn_reset(a):
    kv_units(a)
    a(f"""v_and_b32 v3, 31, v2
    v_lshlrev_b32 v3, 3, v3
    v_lshrrev_b32 v5, 5, v2
    s_lshl_b32 s{KHOFF}, s{KH}, 10
    s_lshl_b32 s22, s{HW}, 9
    s_add_u32 s22, s22, {QLDS}
    v_add_u32 v{QA4}, s22, v3
    v_lshl_add_u32 v{QA0}, v5, 12, v{QA4}
    v_mul_u32_u24 v{KA}, {2*PST}, v5
    s_add_u32 s22, s{KHOFF if M0 else MODE+53-MODE}, {ARING}""".replace(f"s{MODE+53-MODE}", "0"))
    a(f"""v_add3_u32 v{KA}, v{KA}, v3, s22
    v_xor_b32 v{MS4}, 1, v5
    s_add_u32 s22, s22, {4*PST - CONSTP}
    v_mad_u32_u24 v{K4}, v{MS4}, s22, v3
    v_add_u32 v{K4}, {CONSTP}, v{K4}
    v_bfe_u32 v3, v2, 2, 2
    v_lshl_add_u32 v5, v5, 2, v3
    v_and_b32 v4, 3, v2
    v_bfe_u32 v3, v2, 4, 1
    v_lshl_add_u32 v4, v3, 2, v4
    v_cmp_gt_u32 vcc, 5, v4
    v_mul_u32_u24 v4, {PST}, v4
    s_add_u32 s22, s{KHOFF}, {ARING + 5*PST}
    v_add_u32 v4, s22, v4
    v_cndmask_b32 v{VA}, {CONSTP}, v4, vcc
    v_cndmask_b32 v{MSK}, 0, 1, vcc
    v_lshl_add_u32 v{VA}, v5, 3, v{VA}
    s_sub_u32 s24, 106, s{WV}
    s_mul_i32 s{WOS}, s24, {6*1280}
    s_lshr_b32 s22, s{IDX}, 2
    s_mul_i32 s22, s22, 160
    s_add_u32 s{WOS}, s{WOS}, s22
    s_mul_i32 s{WOL}, s24, 960
    s_add_u32 s{WOL}, s{WOL}, {WOB}""")
YT, OSA, OST, FIW, FS0 = range(235, 240)
WAO, WAT = 248, 249
TOS, TTS, TFS = 96, 97, 98
def o_maps(a):
    a(f"""v_and_b32 v3, 15, v2
    v_bfe_u32 v4, v2, 4, 1
    v_mul_u32_u24 v4, {OG}, v4
    v_lshl_add_u32 v{OST}, v3, 3, v4
    v_lshl_add_u32 v4, v3, 4, v4
    v_lshrrev_b32 v3, 5, v2
    v_lshl_add_u32 v{OSA}, v3, 8, v4""")
def tail_setup(a):
    a(f"""v_mul_u32_u24 v6, 205, v2
    v_lshrrev_b32 v6, 11, v6
    v_mul_u32_u24 v7, 10, v6
    v_sub_u32 v7, v2, v7
    v_lshlrev_b32 v7, 4, v7
    v_mul_u32_u24 v6, 1280, v6
    v_add_u32 v{WOV}, v6, v7
    v_add_u32 v{FS0}, v6, v{WOV}
    v_bfe_u32 v3, v2, 2, 2
    v_lshrrev_b32 v4, 4, v2
    v_and_b32 v5, 3, v2
    v_lshlrev_b32 v5, 3, v5
    v_lshrrev_b32 v6, 2, v2
    v_lshl_add_u32 v6, v6, 7, v5
    s_lshl_b32 s22, s{HW}, 5
    v_add_u32 v{YT}, s22, v6
    v_lshrrev_b32 v6, 5, v2
    v_mul_u32_u24 v6, 12, v6
    v_lshl_add_u32 v6, v4, 2, v6
    v_add_u32 v6, v6, v3
    v_mad_u32_u24 v7, v4, 20, v3
    s_mul_i32 s22, s{KH}, {320*160}
    s_add_u32 s22, s22, {WOB}
    v_add_u32 v5, s22, v5
    s_movk_i32 s23, 160
    v_mad_u32_u24 v{WAO}, v6, s23, v5
    v_mad_u32_u24 v{WAT}, v7, s23, v5
    v_and_b32 v3, 15, v2
    s_mul_i32 s22, s{WV}, 2560
    v_lshl_add_u32 v4, v4, 3, s22
    v_mad_u32_u24 v{FIW}, v3, s23, v4
    s_lshl_b32 s24, s{XCD}, 2
    s_and_b32 s22, s{IDX}, 3
    s_add_u32 s24, s24, s22
    s_lshl_b32 s24, s24, 2
    s_add_u32 s24, s24, s{HW}
    s_mul_i32 s{TOS}, s24, {OG}
    s_add_u32 s{TOS}, s{TOS}, {WS_O}
    s_lshl_b32 s23, s{KH}, 11
    s_add_u32 s{TTS}, s{TOS}, s23
    s_add_u32 s{TTS}, s{TTS}, 16384
    s_lshl_b32 s23, s{KH}, 13
    s_add_u32 s{TOS}, s{TOS}, s23
    s_lshr_b32 s22, s{IDX}, 2
    s_add_u32 s22, s22, 8
    s_lshl_b32 s23, s{IDX}, 2
    s_add_u32 s23, s23, s{HW}
    s_cmp_eq_u32 s{KH}, 1
    s_cselect_b32 s24, s23, s24
    s_cselect_b32 s22, s{XCD}, s22
    s_mul_i32 s{TFS}, s24, {16*2560}
    s_mul_i32 s22, s22, 160
    s_add_u32 s{TFS}, s{TFS}, s22""")
WFR = [28, 48, 68, 88, 108, 144, 164, 184, 204]
OFR = [128, 132, 224, 228, 232, 236, 240, 244, 136, 140]
def wo_reads(a, i, slot):
    for m in range(5):
        for hf in range(2):
            if i < 8: a(f"ds_read_b64_tr_b16 {v(WFR[slot]+4*m+2*hf,2)}, v{WAO} offset:{(40*i+8*hf)*160+32*m}")
            else: a(f"ds_read_b64_tr_b16 {v(WFR[slot]+4*m+2*hf,2)}, v{WAT} offset:{(160*(i-8)+80*hf+16)*160+32*m}")
def zero_state(a):
    srd(a, 8, P_WO, 640*1280)
    a(f"""s_mov_b32 s30, 0
    s_mov_b32 s31, 0
    s_mov_b32 s32, {2*SLOT}
    s_mov_b32 s{MK}, 63
    s_cmp_lt_u32 s{WV}, 4
    s_cselect_b32 s{MK2}, 63, 0
    s_movk_i32 s{MC}, 0xe1
    s_movk_i32 s{MW[0]}, 0xfe
    s_movk_i32 s{MW[1]}, 0x7e
    s_cmp_lt_u32 s{WV}, 3
    s_cselect_b32 s{MW[1]}, s{MW[0]}, s{MW[1]}""")
    for i in range(32): a(f"v_mov_b32 v{O[0]+i}, 0")
    for i in range(8): a(f"v_mov_b32 v{P[1]+i}, 0\nv_mov_b32 v{VF[1]+i}, 0")

def attention(a):
    def kr(t, b): return [f"ds_read_b64 {v(KF[b],2)}, v{KA} offset:{t*256}", f"ds_read_b64 {v(KF[b]+2,2)}, v{KA} offset:{t*256+PST}", f"ds_read_b64 {v(KF[b]+4,2)}, v{K4} offset:{t*256}"]
    def vr(t, b): return [f"ds_read_b64_tr_b16 {v(VF[b]+2*j,2)}, v{VA} offset:{t*256+j*64}" for j in range(4)]
    def shift(sreg):
        a(f"v_add_u32 v{KA}, s{sreg}, v{KA}\nv_mad_i32_i24 v{K4}, v{MS4}, s{sreg}, v{K4}")
    def qk(q, kb): a(m32(S[q], KF[kb], Q0[q])); a(m32x8(S[q], KF[kb]+4, Q1[q], S[q]))
    a("s_waitcnt lgkmcnt(0)")
    zero_state(a)
    a.label("L_at_b2")
    stamp(a, 8)
    a("v_cmp_gt_u32 vcc, 32, v2\ns_waitcnt lgkmcnt(0)\ns_barrier")
    stamp(a, 9)
    stamp(a, 50, True)
    a(J(kr(0, 0)))
    a(f"s_cmp_lg_u32 s{MODE}, 0\ns_cbranch_scc1 L_at_havem")
    for q in range(2):
        a(f"""ds_read_b64 {v(Q0[q],2)}, v{QA0} offset:{q*256}
        ds_read_b64 {v(Q0[q]+2,2)}, v{QA0} offset:{q*256+2048}
        ds_read_b64 {v(Q1[q],2)}, v{QA4} offset:{q*256+8192}""")
    a("s_waitcnt lgkmcnt(0)")
    for q in range(2): a(f"v_cndmask_b32 v{Q1[q]}, 0, v{Q1[q]}, vcc\nv_cndmask_b32 v{Q1[q]+1}, 0, v{Q1[q]+1}, vcc")
    if not M0:
        qk(0, 0); qk(1, 0)
        a("s_nop 7\ns_nop 1")
        for q in range(2):
            tilemax(a, P[0], S[q], True); halfmax(a, P[0]); set_m(a, q, P[0])
    a.label("L_at_havem")
    if not M0:
        shift(KHOFF)
        a(J(kr(0, 0)))
    a(f"s_cmp_eq_u32 s{MODE}, 1\ns_cbranch_scc1 L_at_maxpass")
    for j in range(3):
        if j == 2: a(f"s_cmp_ge_u32 s{WV}, 4\ns_cbranch_scc1 L_at_p3")
        a(f"s_add_u32 m0, s{KL[j]}, {SLOT}\ns_nop 0\nbuffer_load_dwordx4 v{DMV}, s[12:15], s{KS[j]} offen sc1 lds\ns_add_u32 s{KS[j]}, s{KS[j]}, {TTS_}")
    a.label("L_at_p3")
    a("s_waitcnt lgkmcnt(0)")
    qk(0, 0)
    a("s_setprio 3\ns_nop 6")
    stamp(a, 10)
    a(".p2align 3")
    a.label("L_at_loop")
    for T in range(4):
        kb = T & 1
        for q in range(2):
            o = q ^ 1
            ex = [f"v_exp_f32 v{S[q]+i}, v{S[q]+i}" for i in range(16)]
            cv = [f"v_cvt_pk_bf16_f32 v{P[q]+i}, v{S[q]+2*i}, v{S[q]+2*i+1}" for i in range(8)]
            kq = kb if q == 0 else kb ^ 1
            vq = kb ^ 1 if q == 0 else kb
            rd = (kr((T+1) & 3, kb ^ 1) + vr(T, kb)) if q == 0 else []
            if '--nord' in sys.argv: rd = []
            if '--halfrd' in sys.argv and T & 1: rd = []
            if '--rdsplit' in sys.argv:
                pass
            st = (2*((T+1) & 3) + q)
            def pr(i):
                k = 4*st + i
                if k in PRIO: a(f"s_setprio {3 - PRIO.index(k)}")
            if q == 0 and T == 3:
                a(f"""s_add_u32 s33, s31, {SLOT}
                s_cmp_eq_u32 s33, {3*SLOT}
                s_cselect_b32 s33, 0, s33
                s_sub_u32 s29, s33, s31
                s_mov_b32 s31, s33""")
                shift(29)
                if PROF: a("s_memtime s[90:91]")
                a("s_waitcnt vmcnt(0)\ns_barrier")
                if PROF: a("s_memtime s[92:93]")
            if q == 1: a("s_waitcnt lgkmcnt(0)")
            if PROF and (T, q) == (3, 1): a(f"s_sub_u32 s90, s92, s90\ns_add_u32 m0, s30, 55\ns_lshl_b32 s90, s90, 20\ns_and_b32 s92, s92, 0xfffff\ns_or_b32 s92, s92, s90\nv_writelane_b32 v{PV}, s92, m0")
            def kv(j, mask):
                l = a.newlabel("L_at_s")
                a(f"""s_bitcmp0_b32 s{mask}, s30
                s_cbranch_scc1 {l}
                s_add_u32 m0, s{KL[j]}, s32
                s_nop 0
                buffer_load_dwordx4 v{DMV}, s[12:15], s{KS[j]} offen sc1 lds
                s_add_u32 s{KS[j]}, s{KS[j]}, {TTS_}""")
                a.label(l)
            def wo(e):
                l = a.newlabel("L_at_s")
                a(f"""s_bitcmp0_b32 s{MW[e]}, s30
                s_cbranch_scc1 {l}
                s_mov_b32 exec_hi, 0x0fffffff
                s_mov_b32 m0, s{WOL}
                s_sub_u32 s{WOL}, s{WOL}, {8*960}
                buffer_load_dwordx4 v{WOV}, s[8:11], s{WOS} offen lds
                s_mov_b32 exec_hi, -1
                s_sub_u32 s{WOS}, s{WOS}, {8*6*1280}""")
                a.label(l)
            a(m32(S[o], KF[kq], Q0[o])); pr(0)
            a(J(rd[0:3] + ex[0:4] + cv[0:1]))
            a(m32x8(S[o], KF[kq]+4, Q1[o], S[o])); pr(1)
            if (T, q) == (3, 1): kv(1, MK)
            if (T, q) == (0, 1): wo(1)
            a(J(rd[3:5] + ex[4:6] + cv[1:2] + ex[6:8] + cv[2:3]))
            a(m32(O[o], VF[vq], P[o], O[o])); pr(2)
            a(J(rd[5:7] + ex[8:10] + cv[3:4] + ex[10:12] + cv[4:5]))
            a(m32(O[o], VF[vq]+4, P[o]+4, O[o])); pr(3)
            if (T, q) == (3, 0): kv(0, MK)
            if (T, q) == (0, 0): wo(0)
            if (T, q) == (3, 1):
                kv(2, MK2)
                a(f"""s_add_u32 s32, s32, {SLOT}
                s_cmp_eq_u32 s32, {3*SLOT}
                s_cselect_b32 s32, 0, s32
                s_bitcmp1_b32 s{MC}, s30
                s_cbranch_scc1 L_at_late""")
                a.label("L_at_back")
            a(J(ex[12:14] + cv[5:6] + ex[14:16]))
            if q == 1 and T == 3: a(f"v_mad_i32_i24 v{VA}, v{MSK}, s29, v{VA}")
            a(J(cv[6:8]))
    a("s_add_u32 s30, s30, 1\ns_cmp_lt_u32 s30, 8\ns_cbranch_scc1 L_at_loop")
    a(m32(O[1], VF[1], P[1], O[1]))
    C = S[1]
    a(f"""s_setprio 0
    s_mul_i32 s22, s{WV}, 3072
    v_add_u32 v4, s22, v{DMV}
    s_xor_b32 s22, s{WV}, 4
    s_mul_i32 s22, s22, 3072
    v_add_u32 v5, s22, v{DMV}""")
    a(m32(O[1], VF[1]+4, P[1]+4, O[1]))
    stamp(a, 11)
    a(f"""v_mov_b32 v6, 0
    v_mov_b32 v7, 1
    v_mov_b32 v{C+2}, {f32hex(2.0**110)}
    v_pk_add_f32 {v(C,2)}, {v(O[0],2)}, {v(O[0]+2,2)}""")
    for i in range(4, 12, 2): a(f"v_pk_add_f32 {v(C,2)}, {v(C,2)}, {v(O[0]+i,2)}")
    a(f"s_cmp_eq_u32 s{KH}, 0\ns_cbranch_scc1 L_at_c0")
    for i in range(3): a(f"ds_write_b128 v4, {v(O[0]+4*i,4)} offset:{EXC + i*1024}")
    a("s_nop 0")
    for i in range(0, 12, 2): a(f"v_pk_mov_b32 {v(O[0]+i,2)}, {v(O[1]+i,2)}, {v(O[1]+i,2)} op_sel:[0,1]")
    a("s_branch L_at_c1")
    a.label("L_at_c0")
    a("s_nop 1")
    for i in range(3): a(f"ds_write_b128 v4, {v(O[1]+4*i,4)} offset:{EXC + i*1024}")
    a.label("L_at_c1")
    for i in range(0, 12, 2): a(f"v_pk_add_f32 {v(C,2)}, {v(C,2)}, {v(O[1]+i,2)}")
    a(f"""v_add_f32 v{C}, v{C}, v{C+1}
    v_mul_f32 v{C}, {f32hex(2.0**-17)}, v{C}
    v_add_f32 v{C}, abs(v{C}), v{O[0]+12}
    v_add_f32 v{C}, v{C}, v{O[1]+12}
    v_cmp_nlt_f32 vcc, v{C}, v{C+2}""")
    if M0:
        a(f"""v_min_f32 v{C+3}, v{O[0]+12}, v{O[1]+12}
        v_mov_b32 v{C+2}, {f32hex(2.0**-60)}
        v_cmp_lt_f32 s[26:27], v{C+3}, v{C+2}
        s_nop 0
        s_or_b64 vcc, vcc, s[26:27]""")
    a(f"""s_cbranch_vccz L_at_nf
    ds_write_b32 v6, v7 offset:{FLAGW}""")
    a.label("L_at_nf")
    a(f"""s_lshl_b32 s22, s{HW}, 1
    s_add_u32 s22, s22, s{KH}
    s_mul_i32 s22, s22, {2*OG}
    s_add_u32 s23, s22, s{OTAIL}
    s_add_u32 s22, s22, s{OOCT}
    s_waitcnt lgkmcnt(0)
    s_barrier
    ds_read_b32 v7, v6 offset:{FLAGW}""")
    for i in (2, 0, 1): a(f"ds_read_b128 {v(S[0]+4*i,4)}, v5 offset:{EXC + i*1024}")
    a(f"""s_waitcnt lgkmcnt(2)
    v_readfirstlane_b32 s26, v7""")
    for i in range(8, 12): a(f"v_add_f32 v{O[0]+i}, v{O[0]+i}, v{S[0]+i}")
    a(f"""v_mov_b32 v{S[1]}, v{O[0]+8}
    v_mov_b32 v{S[1]+1}, v{O[0]+8}
    s_cmp_gt_u32 s26, s{MODE}
    s_cbranch_scc1 L_at_fallback
    v_permlane32_swap_b32 v{S[1]}, v{S[1]+1}
    v_rcp_f32 v{S[1]}, v{S[1]+1}
    s_waitcnt lgkmcnt(0)""")
    for i in range(8): a(f"v_add_f32 v{O[0]+i}, v{O[0]+i}, v{S[0]+i}")
    for i in range(12): a(f"v_mul_f32 v{O[0]+i}, v{O[0]+i}, v{S[1]}")
    for i in range(6): a(f"v_cvt_pk_bf16_f32 v{P[0]+i}, v{O[0]+2*i}, v{O[0]+2*i+1}")
    a(f"""buffer_store_dwordx4 {v(P[0],4)}, v{OSA}, s[12:15], s22 offen {OSC}
    s_mov_b32 exec_hi, 0
    buffer_store_dwordx2 {v(P[0]+4,2)}, v{OST}, s[12:15], s23 offen {OSC}
    s_mov_b32 exec_hi, -1""")
    stamp(a, 12)
    stamp(a, 51, True)

    def cold():
        a.label("L_at_fc")
        a(f"s_cmp_eq_u32 s{FCOFF}, 0\ns_cbranch_scc1 L_at_back")
        set_flag(a, FCOFF, 6)
        a(f"s_mov_b32 s{FCOFF}, 0\ns_branch L_at_back")
        a.label("L_at_c5")
        a(f"""s_mul_i32 s22, s{XCD}, {20*128}
        s_add_u32 s22, s22, {WS_FC}
        v_min_u32 v6, 19, v2
        v_lshl_add_u32 v6, v6, 7, s22
        buffer_load_dwordx4 v[136:139], v6, s[12:15], 0 offen sc1
        s_branch L_at_back""")
        a.label("L_at_late")
        a(f"""s_cmp_eq_u32 s30, 0
        s_cbranch_scc1 L_at_fc
        s_cmp_eq_u32 s30, 5
        s_cbranch_scc1 L_at_c5
        s_cmp_eq_u32 s30, 7
        s_cbranch_scc1 L_at_l7""")
        poll(a, [6], 4, 136, preloaded=True)
        a(f"""v_lshrrev_b32 v4, 3, v2
        v_and_b32 v5, 7, v2
        v_lshlrev_b32 v5, 4, v5
        v_mul_u32_u24 v4, {RS}, v4
        v_add_u32 v4, v4, v5
        s_mul_i32 s22, s{XCD}, {80*RS}
        s_lshl_b32 s23, s{IDX}, 7
        s_add_u32 s22, s22, s23
        s_mul_i32 s23, s{WV}, {8*RS}
        s_add_u32 s22, s22, s23
        s_add_u32 s22, s22, {WS_YT}
        s_lshl_b32 s23, s{WV}, 10
        s_add_u32 m0, s23, {YSRC}
        s_cmp_ge_u32 s{WV}, 2
        buffer_load_dwordx4 v4, s[12:15], s22 offen sc1 lds
        s_cbranch_scc1 L_at_back
        s_add_u32 m0, m0, 8192
        s_add_u32 s22, s22, {64*RS}
        buffer_load_dwordx4 v4, s[12:15], s22 offen sc1 lds
        s_branch L_at_back""")
        a.label("L_at_l7")
        for i in range(5, 9): wo_reads(a, i, i)
        a("s_branch L_at_back")
        a.label("L_at_fallback")
        a(f"s_mov_b32 s{MODE}, 1")
        a.label("L_at_refill")
        a("s_waitcnt vmcnt(0) lgkmcnt(0)\ns_barrier")
        attn_reset(a)
        for j in range(3):
            if j == 2: a(f"s_cmp_ge_u32 s{WV}, 4\ns_cbranch_scc1 L_at_f3")
            a(f"s_mov_b32 m0, s{KL[j]}\ns_sub_u32 s22, s{KS[j]}, {TTS_}\nbuffer_load_dwordx4 v{DMV}, s[12:15], s22 offen sc1 lds")
        a.label("L_at_f3")
        a("s_waitcnt vmcnt(0)\ns_branch L_attn")
        a.label("L_at_maxpass")
        MX = [P[0], P[1]]
        for q in range(2):
            a(f"v_cndmask_b32 v{Q1[q]}, 0, v{Q1[q]}, vcc\nv_cndmask_b32 v{Q1[q]+1}, 0, v{Q1[q]+1}, vcc\nv_mov_b32 v{MX[q]}, 0xff800000")
        a.label("L_at_mloop")
        for T in range(4):
            a(J(kr(T, 0)) + "\ns_waitcnt lgkmcnt(0)")
            qk(0, 0); qk(1, 0)
            a("s_nop 7\ns_nop 3")
            for q in range(2): tilemax(a, MX[q], S[q], False)
        a("s_add_u32 s30, s30, 1\ns_cmp_eq_u32 s30, 8\ns_cbranch_scc1 L_at_mdone\ns_barrier")
        for j in range(3):
            if j == 2: a(f"s_cmp_ge_u32 s{WV}, 4\ns_cbranch_scc1 L_at_m3")
            a(f"s_mov_b32 m0, s{KL[j]}\ns_nop 0\nbuffer_load_dwordx4 v{DMV}, s[12:15], s{KS[j]} offen sc1 lds\ns_add_u32 s{KS[j]}, s{KS[j]}, {TTS_}")
        a.label("L_at_m3")
        a("s_waitcnt vmcnt(0)\ns_barrier\ns_branch L_at_mloop")
        a.label("L_at_mdone")
        a(f"""s_lshl_b32 s22, s{WV}, 10
        v_add_u32 v4, s22, v{DMV}
        v_xor_b32 v5, 4096, v4""")
        for q in range(2): halfmax(a, MX[q]); a(f"ds_write_b32 v4, v{MX[q]} offset:{ARING + 2*SLOT + 4*q}")
        a("s_waitcnt lgkmcnt(0)\ns_barrier")
        for q in range(2): a(f"ds_read_b32 v{S[0]+q}, v5 offset:{ARING + 2*SLOT + 4*q}")
        a("s_waitcnt lgkmcnt(0)")
        for q in range(2):
            a(f"v_max_f32 v{MX[q]}, v{MX[q]}, v{S[0]+q}"); set_m(a, q, MX[q])
        a(f"s_mov_b32 s{MODE}, 2\ns_branch L_at_refill")
    return cold

def tail(a):
    ACC = 8
    order = [3, 2, 1, 0]
    a(f"""v_mov_b32 v5, v{DMV}
    v_lshlrev_b32 v1, 3, v2
    s_mul_i32 s22, s{HW}, 5120
    v_add_u32 v6, s22, v5
    v_mov_b32 v3, v{FIW}
    s_mul_i32 s22, s{WV}, 2560
    v_add_u32 v7, s22, v5
    v_mov_b32 v250, v{FS0}
    v_mov_b32 v253, v{YT}
    s_mov_b32 s50, 0
    s_mov_b32 s29, 15
    s_mov_b32 s30, s{KH}
    s_add_u32 s27, s{TOS}, 4096
    s_cmp_eq_u32 s{KH}, 1
    s_cbranch_scc1 L_t_wo""")
    a.label("L_t_loop")
    for x in order:
        a(f"s_bitcmp0_b32 s29, {x}\ns_cbranch_scc1 L_t_no{x}")
        for e in range(2): a(f"buffer_load_dwordx4 {v(OFR[2*x+e],4)}, v5, s[12:15], s{TOS if x < 2 else 27} offen offset:{((2*x+e)&3)*1024} sc1")
        a(f"buffer_load_dwordx2 {v(OFR[8]+2*x,2)}, v1, s[12:15], s{TTS} offen offset:{x*512} sc1")
        a.label(f"L_t_no{x}")
    a(f"""s_add_u32 s50, s50, 1
    s_cmp_gt_u32 s50, {SPIN}
    s_cselect_b32 s31, 0, -1
    s_mov_b32 s28, s29
    s_cmp_lg_u32 s30, 0
    s_cbranch_scc1 L_t_nf""")
    a.label("L_t_wo")
    stamp(a, 13)
    for i in (4, 2, 3, 0, 1): wo_reads(a, i, i)
    srd(a, 8, P_OUT, 2048*2560)
    for i in range(20): a(f"v_mov_b32 v{ACC+i}, 0")
    a("s_cmp_eq_u32 s50, 0\ns_mov_b32 s30, 1\ns_cbranch_scc1 L_t_loop")
    a.label("L_t_nf")
    stamp(a, 14)
    for n, x in enumerate(order):
        r0, r1, rt = OFR[2*x], OFR[2*x+1], OFR[8] + 2*x
        a(f"s_bitcmp0_b32 s28, {x}\ns_cbranch_scc1 L_t_co{x}")
        if x > 0:
            a(f"s_and_b32 s22, s28, {(1 << x) - 1}\ns_bcnt1_i32_b32 s22, s22")
            for k in range(x, 0, -1):
                a(f"s_waitcnt vmcnt({3*k})\ns_cmp_eq_u32 s22, {k}\ns_cbranch_scc1 L_t_w{x}")
        a("s_waitcnt vmcnt(0)")
        a.label(f"L_t_w{x}")
        a(f"""v_max3_u32 v4, v{r0}, v{r0+1}, v{r0+2}
        v_max3_u32 v4, v4, v{r0+3}, v{r1}
        v_max3_u32 v4, v4, v{r1+1}, v{r1+2}
        v_max3_u32 v4, v4, v{r1+3}, v{rt}
        v_max_u32 v4, v4, v{rt+1}
        v_and_b32 v4, s31, v4
        v_cmp_eq_u32 vcc, -1, v4
        s_cbranch_vccnz L_t_co{x}
        s_bitset0_b32 s29, {x}""")
        if x < 3: a("s_waitcnt lgkmcnt(0)")
        for m in range(5): a(m16(ACC+4*m, WFR[2*x+1]+4*m, r1, ACC+4*m))
        if x == 3: wo_reads(a, 9, 7)
        for m in range(5): a(m16(ACC+4*m, WFR[2*x]+4*m, r0, ACC+4*m))
        a.label(f"L_t_co{x}")
    a("s_cmp_lg_u32 s29, 0\ns_cbranch_scc1 L_t_loop")
    for m in range(5): a(m16(ACC+4*m, WFR[8]+4*m, OFR[8], ACC+4*m))
    a("s_waitcnt lgkmcnt(0)")
    for m in range(5): a(m16(ACC+4*m, WFR[7]+4*m, OFR[9], ACC+4*m))
    stamp(a, 15)
    stamp(a, 52, True)
    if PROF: a(f"v_writelane_b32 v{PV}, s50, 29")
    T = 128
    a(f"""s_cmp_eq_u32 s{KH}, 0
    s_cbranch_scc1 L_t_r0""")
    for m in range(5): a(f"ds_read_b64_tr_b16 {v(T+2*m,2)}, v253 offset:{YSRC + m*2048}")
    a("s_nop 0")
    for m in range(5): a(f"ds_write_b128 v6, {v(ACC+4*m,4)} offset:{PART + m*1024}")
    a("s_waitcnt lgkmcnt(0)\ns_barrier")
    for m in range(5): a(f"ds_write_b64 v3, {v(T+2*m,2)} offset:{OIMG + 32*m}")
    a("s_branch L_t_st")
    a.label("L_t_r0")
    a("s_barrier")
    for m in range(5): a(f"ds_read_b128 {v(T+4*m,4)}, v6 offset:{PART + m*1024}")
    for m in range(5):
        a(f"s_waitcnt lgkmcnt(4)")
        for i in range(0, 4, 2): a(f"v_pk_add_f32 {v(ACC+4*m+i,2)}, {v(ACC+4*m+i,2)}, {v(T+4*m+i,2)}")
        a(f"v_cvt_pk_bf16_f32 v{ACC+4*m}, v{ACC+4*m}, v{ACC+4*m+1}\nv_cvt_pk_bf16_f32 v{ACC+4*m+1}, v{ACC+4*m+2}, v{ACC+4*m+3}")
        a(f"ds_write_b64 v3, {v(ACC+4*m,2)} offset:{OIMG + 32*m}")
    a.label("L_t_st")
    for j in range(3): a(f"ds_read_b128 {v(T+24+4*j,4)}, v7 offset:{OIMG + 960*j}")
    a(f"s_mov_b32 exec_hi, 0x0fffffff\ns_add_u32 s22, s{TFS}, {6*2560}\ns_add_u32 s23, s{TFS}, {12*2560}")
    for j in range(3):
        if j == 2: a("s_mov_b32 exec_hi, 0xff")
        a(f"s_waitcnt lgkmcnt({2-j})\nbuffer_store_dwordx4 {v(T+24+4*j,4)}, v250, s[8:11], s{[TFS, 22, 23][j]} offen {OUTSC}")
    a("s_mov_b32 exec_hi, -1")

def main(path):
    a = Asm()
    nm = NAME + "_kernel"
    a(f".globl {nm}\n.p2align 8\n.type {nm},@function")
    a.label(nm)
    a(f"""s_cmp_ge_u32 s2, 256
    s_cbranch_scc1 L_end
    s_load_dwordx16 s[64:79], s[0:1], 0
    s_load_dwordx8 s[80:87], s[0:1], 64
    s_load_dwordx2 s[88:89], s[0:1], 96
    v_lshrrev_b32 v1, 6, v0
    v_and_b32 v2, 63, v0
    v_readfirstlane_b32 s{WV}, v1
    s_and_b32 s{XCD}, s2, 7
    s_lshr_b32 s{IDX}, s2, 3
    s_cmp_lg_u32 s{WV}, 7
    s_cbranch_scc1 L_nopf
    s_cmp_ge_u32 s{IDX}, (L_code_end-{nm})/1024
    s_cbranch_scc1 L_nopf
    s_getpc_b64 s[22:23]""")
    a.label("L_pc")
    a(f"""s_lshl_b32 s24, s{IDX}, 10
    s_sub_u32 s22, s22, L_pc-{nm}
    s_subb_u32 s23, s23, 0
    v_lshl_add_u32 v4, v2, 4, s24
    v_mov_b32 v5, s23
    v_add_co_u32 v4, vcc, s22, v4
    s_nop 1
    v_addc_co_u32 v5, vcc, 0, v5, vcc
    global_load_dwordx4 v[220:223], v[4:5], off""")
    a.label("L_nopf")
    if PROF:
        a(f"v_mov_b32 v{PV}, 0\ns_memrealtime s[90:91]\ns_memtime s[92:93]")
    a(f"""s_and_b32 s{HW}, s{WV}, 3
    s_lshr_b32 s{KH}, s{WV}, 2
    s_mul_i32 s{CHN}, s{XCD}, 20
    s_add_u32 s{CHN}, s{CHN}, s{IDX}
    s_lshl_b32 s{CHN}, s{CHN}, 2
    s_add_u32 s{CHN}, s{CHN}, s{HW}
    s_lshl_b32 s22, s{CHN}, 8
    v_lshl_add_u32 v6, v2, 2, s22
    s_lshl_b32 s22, s{CHN}, 1
    v_mov_b32 v7, s22
    v_lshlrev_b32 v{DMV}, 4, v2
    s_mov_b32 s{FCOFF}, 0
    s_mov_b32 s{MODE}, 0""")
    a(f"""s_cmp_ge_u32 s{IDX}, 20
    s_cbranch_scc1 L_e_np
    s_waitcnt lgkmcnt(0)""")
    for i in range(4): a(f"global_load_dword v{PRM+i}, v6, s[{P_LA+2*i}:{P_LA+2*i+1}]")
    a(f"""global_load_ushort v{PRM+4}, v7, s[{P_DT}:{P_DT+1}]
    global_load_ushort v{VD}, v7, s[{P_D}:{P_D+1}]""")
    a.label("L_e_np")
    loader_math(a)
    a("s_waitcnt lgkmcnt(0)")
    if PROF: a(f"v_writelane_b32 v{PV}, s90, 0\nv_writelane_b32 v{PV}, s92, 1")
    srd(a, 60, P_X, 2048*1280)
    srd(a, 8, P_W, 640*3840)
    srd(a, 12, P_WS, WS_SIZE)
    if TLB:
        a(f"s_cmp_lg_u32 s{WV}, 6\ns_cbranch_scc1 L_notlb")
        srd(a, 4, P_OUT, 2048*2560)
        if TLB == 1:
            a(f"""v_lshlrev_b32 v3, 20, v2
            s_mov_b64 exec, 0x3ffff
            buffer_load_dword v220, v3, s[12:15], 0 offen
            s_mov_b64 exec, 0x1f
            buffer_load_dword v221, v3, s[4:7], 0 offen""")
        else:
            a(f"""s_mul_i32 s22, s{IDX}, {9*65536}
            v_lshlrev_b32 v3, 16, v2
            s_mov_b64 exec, 0x1ff
            buffer_load_dword v220, v3, s[12:15], s22 offen
            s_mul_i32 s22, s{IDX}, {3*65536}
            s_mov_b64 exec, 7
            buffer_load_dword v221, v3, s[4:7], s22 offen""")
        srd(a, 4, P_WO, 640*1280)
        a(f"""v_lshlrev_b32 v3, 16, v2
        s_mov_b64 exec, 0x1fff
        buffer_load_dword v222, v3, s[4:7], 0 offen
        s_mov_b64 exec, -1""")
        a.label("L_notlb")
    a(f"""s_cmp_ge_u32 s{IDX}, 30
    s_cbranch_scc1 L_e_tr
    s_cmp_eq_u32 s{KH}, 1
    s_cbranch_scc1 L_e_h
    s_cmp_lt_u32 s{IDX}, 20
    s_cbranch_scc1 L_g_pro
    s_barrier""")
    a.label("L_g_pro")
    stamp(a, 40)
    issue(a)
    stamp(a, 41)
    a(f"s_cmp_lt_u32 s{IDX}, 20\ns_cbranch_scc1 L_kgen\ns_branch L_gemm")
    a.label("L_e_tr")
    a(f"""s_lshl_b32 s26, s{XCD}, 1
    s_add_u32 s26, s26, s{IDX}
    s_sub_u32 s26, s26, 30
    s_lshl_b32 s26, s26, 3
    s_add_u32 s26, s26, s{WV}
    s_lshl_b32 s27, s{WV}, 13
    s_add_u32 s27, s27, 16384
    s_branch L_e_ut""")
    a.label("L_e_h")
    a(f"""s_or_b32 s22, s2, s{HW}
    s_cmp_lg_u32 s22, 0
    s_cbranch_scc1 L_nn
    s_memrealtime s[22:23]
    v_mov_b32 v3, 0
    s_waitcnt lgkmcnt(0)
    s_or_b32 s22, s22, 1
    v_mov_b32 v4, s22
    s_mov_b64 exec, 1
    global_store_dword v3, v4, s[{P_DBG}:{P_DBG+1}] sc1
    s_mov_b64 exec, -1""")
    a.label("L_nn")
    a(f"""s_mul_i32 s26, s{XCD}, 10
    s_add_u32 s26, s26, s{IDX}
    s_mul_i32 s22, s{HW}, 80
    s_add_u32 s26, s26, s22
    s_add_u32 s26, s26, {128 - 20}
    s_lshl_b32 s27, s{HW}, 13
    s_add_u32 s27, s27, {SCR}
    s_cmp_lt_u32 s{IDX}, 20
    s_cbranch_scc1 L_helper
    s_cmp_ge_u32 s26, 320
    s_cbranch_scc1 L_e_eb""")
    a.label("L_e_ut")
    utile_issue(a)
    a.label("L_e_eb")
    a("s_barrier")
    a(f"s_cmp_ge_u32 s{IDX}, 30\ns_cbranch_scc1 L_utile")
    a.label("L_helper")
    helper(a)
    a.label("L_g_kb")
    skip(a)
    issue(a)
    a(f"v_add_u32 v6, s28, v{DMV}")
    for i in range(4): a(f"ds_write_b128 v6, {v(KACC+4*i,4)} offset:{1024*i}")
    a.label("L_gemm")
    gemm(a)
    a.label("L_w1")
    window1(a)
    a.label("L_attn")
    cold = attention(a)
    tail(a)
    if PROF:
        a("s_waitcnt vmcnt(0)")
        stamp(a, 16); stamp(a, 17, True)
        a(f"""s_lshl_b32 s22, s2, 3
        s_add_u32 s22, s22, s{WV}
        s_lshl_b32 s22, s22, 8
        s_add_u32 s22, s22, {WS_PROF}
        v_lshlrev_b32 v3, 2, v2
        buffer_store_dword v{PV}, v3, s[12:15], s22 offen""")
    a.label("L_end")
    a("s_endpgm")
    a.label("L_tr_back")
    arr_init(a)
    a(f"s_waitcnt lgkmcnt(0)\ns_barrier\ns_cmp_lt_u32 s{WV}, 4\ns_cbranch_scc1 L_w1\ns_branch L_h_ids")
    cold()
    a(f".fill (1024 - ((. - {nm}) % 1024))/4, 4, 0xbf810000")
    a.label("L_code_end")
    hdr = open("cdna_kernels/" + NAME + ".s.ref").read().split("\n")
    head = [l for l in hdr[:15] if l.startswith(";") and "@launch" not in l and "Override" not in l and "grid=ceil" not in l]
    txt = "\n".join(head) + "\n; @launch grid=(256,1,1) block=(512,1,1) lds=163840\n"
    txt += '.amdgcn_target "amdgcn-amd-amdhsa--gfx950"\n.text\n' + a.text()
    txt += f""".section .rodata,"a"
.p2align 6
.amdhsa_kernel {nm}
  .amdhsa_next_free_vgpr 256
  .amdhsa_next_free_sgpr 102
  .amdhsa_accum_offset 256
  .amdhsa_group_segment_fixed_size 0
  .amdhsa_kernarg_size 104
  .amdhsa_user_sgpr_count 2
  .amdhsa_user_sgpr_kernarg_segment_ptr 1
  .amdhsa_system_sgpr_workgroup_id_x 1
.end_amdhsa_kernel
"""
    open(path, "w").write(txt)
    errs = check_hazards(a.text())
    for e in errs[:30]: print("HAZARD", e)
    print(f"{path}: {len(a.lines)} lines, {len(errs)} hazards")

if __name__ == "__main__":
    main([x for x in sys.argv[1:] if x.endswith(".s")][0])
```

```python
import math, sys
from asmlib import *

NAME = "concat_heads__ssm_conv_s4d__mha_block__prompt"
WS_QKV = 0
WS_O = 0x800000
WS_UT = 0xB00000
WS_YT = 0xE00000
WS_FA = 0x1100000
WS_FB = 0x1110000
WS_FC = 0x1120000
WS_PROF = 0x1300000
WS_SIZE = 0x1400000
TTS_ = 480*1024
OG = 20480
RS = 4352
LOG2E = math.log2(math.e)
QSCALE = LOG2E / math.sqrt(20.0)
PROF = "--prof" in sys.argv
M0 = "--m0" in sys.argv
SPIN = 0x40000
LATE = int(sys.argv[sys.argv.index('--late')+1]) if '--late' in sys.argv else 0
PSL = int(sys.argv[sys.argv.index('--psl')+1]) if '--psl' in sys.argv else 0
PRE = int(sys.argv[sys.argv.index('--pre')+1]) if '--pre' in sys.argv else 4
PRE2 = int(sys.argv[sys.argv.index('--pre2')+1]) if '--pre2' in sys.argv else 0
PACKA = '--nopacka' not in sys.argv
ALN = int(sys.argv[sys.argv.index('--al')+1]) if '--al' in sys.argv else 0
ALP = int(sys.argv[sys.argv.index('--alp')+1]) if '--alp' in sys.argv else 6
FILL1 = int(sys.argv[sys.argv.index('--fill')+1]) if '--fill' in sys.argv else 0
OUTSC = sys.argv[sys.argv.index('--outsc')+1].replace('_', ' ') if '--outsc' in sys.argv else ''
TLB = int(sys.argv[sys.argv.index('--tlb')+1]) if '--tlb' in sys.argv else 0
POLLC = int(sys.argv[sys.argv.index('--pollc')+1]) if '--pollc' in sys.argv else 5
UP = int(sys.argv[sys.argv.index('--up')+1]) if '--up' in sys.argv else 1
UNT = 'nt' if '--unt' in sys.argv else ''
X16 = '--x16' in sys.argv
PRIO = [int(x) for x in sys.argv[sys.argv.index('--prio')+1].split(',')] if '--prio' in sys.argv else [0, 16, 26, 30]
LOC = '--loc' in sys.argv
OSC = '' if '--plainO' in sys.argv else 'sc1'
SPEC = int(sys.argv[sys.argv.index('--spec')+1]) if '--spec' in sys.argv else 1
XNT = "nt" if "--xnt" in sys.argv else ""
WNT = "nt" if "--wnt" in sys.argv else ""
J = "\n".join

WV, XCD, IDX, NONCE = 16, 17, 18, 19
TT, CT = 20, 21
FCOFF, HEAD5, QB, OOFF = 36, 37, 38, 39
KS = [40, 41, 42]; KL = [44, 45, 46]
MODE, KH, KHOFF = 47, 48, 49
HW, CHN = 51, 52
OOCT, OTAIL = 54, 55
XS, WSO, LB = 56, 57, 99
TB = 58
P_U, P_LA, P_AI, P_CR, P_CI, P_DT, P_D, P_X, P_W, P_WO, P_OUT, P_DBG, P_WS = range(64, 90, 2)
WOS, WOL = 94, 95
MK, MK2, MC = 33+1, 35, 100
MW = [101, 25]
PV = 255
DX, DW = 240, 244
PL1, PL2 = 252, 253
DMV, KA, K4, VA, MSK, MS4, WOV, QA4, QA0 = range(224, 233)

RING = 32768
SCR = 3*RING
UST = 4640
KOFF = 4*UST
CHA = KOFF + 4224
CVB = 65536
PST = 2048 + 32
SLOT = 20992
FLAGW = 0
CONSTP = 64
ARING = 1280
QLDS = ARING + 2*SLOT
WOB = 163840 - 107*960
EXC = ARING
YSRC = WOB - 10240
PART = 25856
KSC = SCR
CNT = 129536
ARRW = CNT
OIMG = ARING
assert CVB + 4*CHA <= 163840 and ARING + 3*SLOT <= 65536 and ARING + 3*SLOT <= WOB + 11*960
assert EXC + 24576 <= PART and PART + 20480 <= YSRC and YSRC >= ARING + 2*SLOT and EXC + 24576 <= ARING + SLOT + 5*PST and OIMG + 20480 <= PART

def srd(a, d, lo, size):
    a(f"s_mov_b32 s{d}, s{lo}\ns_and_b32 s{d+1}, s{lo+1}, 0xffff\ns_mov_b32 s{d+2}, {size}\ns_mov_b32 s{d+3}, 0x20000")
def m32(d, x, y, c=None):
    return f"v_mfma_f32_32x32x16_bf16 {v(d,16)}, {v(x,4)}, {v(y,4)}, {v(c,16) if c is not None else 0}"
def m32x8(d, x, y, c):
    if X16: return f"v_mfma_f32_32x32x16_bf16 {v(d,16)}, {v(x-2,4)}, {v(y-2,4)}, {v(c,16)}"
    return f"v_mfma_f32_32x32x8_bf16 {v(d,16)}, {v(x,2)}, {v(y,2)}, {v(c,16)}"
def m16(d, x, y, c=None):
    return f"v_mfma_f32_16x16x32_bf16 {v(d,4)}, {v(x,4)}, {v(y,4)}, {v(c,4) if c is not None else 0}"
LITE = "--lite" in sys.argv
def stamp(a, i, real=False):
    if LITE and i not in (50, 51, 53, 17): return
    if PROF: a(f"s_mem{'real' if real else ''}time s[92:93]\ns_waitcnt lgkmcnt(0)\nv_writelane_b32 v{PV}, s92, {i}")

def get_nonce(a):
    l = a.newlabel("L_nonce"); e = a.newlabel("L_nonce_e")
    a(f"""s_load_dword s{NONCE}, s[{P_DBG}:{P_DBG+1}], 0
    s_mov_b32 s50, 0
    v_mov_b32 v222, 0
    s_waitcnt lgkmcnt(0)""")
    a.label(l)
    a(f"""s_cmp_lg_u32 s{NONCE}, 0
    s_cbranch_scc1 {e}
    global_load_dword v223, v222, s[{P_DBG}:{P_DBG+1}] sc1
    s_add_u32 s50, s50, 1
    s_waitcnt vmcnt(0)
    v_readfirstlane_b32 s{NONCE}, v223
    s_cmp_lt_u32 s50, {SPIN}
    s_cbranch_scc1 {l}""")
    a.label(e)

def poll(a, addrs, width, vt, preloaded=False, sleep=0):
    l = a.newlabel("L_poll"); e = a.newlabel("L_poll_e")
    sfx = {1: "dword", 4: "dwordx4"}[width]
    a("s_mov_b32 s50, 0")
    if preloaded: a(f"s_branch {l}_c")
    a.label(l)
    for k, ad in enumerate(addrs): a(f"buffer_load_{sfx} {v(vt+4*k,width)}, v{ad}, s[12:15], 0 offen sc1")
    a("s_add_u32 s50, s50, 1\ns_waitcnt vmcnt(0)")
    a.label(l + "_c")
    regs = [vt+4*k+j for k in range(len(addrs)) for j in range(width)]
    for r in regs: a(f"v_xor_b32 v{r}, s{NONCE}, v{r}")
    for r in regs[1:]: a(f"v_or_b32 v{regs[0]}, v{regs[0]}, v{r}")
    a(f"""v_cmp_ne_u32 vcc, 0, v{regs[0]}
    s_cmp_gt_u32 s50, {SPIN}
    s_cbranch_scc1 {e}""")
    if sleep: a(f"s_cbranch_vccz {e}\ns_sleep {sleep}\ns_branch {l}")
    else: a(f"s_cbranch_vccnz {l}")
    a.label(e)

def set_flag(a, soff, vt):
    a(f"""v_mov_b32 v{vt}, 0
    v_mov_b32 v{vt+1}, s{NONCE}
    s_mov_b64 exec, 1
    buffer_store_dword v{vt+1}, v{vt}, s[12:15], s{soff} offen sc1
    s_mov_b64 exec, -1""")

def attn_ids(a):
    if LOC: a(f"s_mov_b32 s{HEAD5}, s{IDX}\ns_mov_b32 s{QB}, s{XCD}")
    else: a(f"""s_lshl_b32 s{HEAD5}, s{XCD}, 2
    s_lshr_b32 s22, s{IDX}, 3
    s_add_u32 s{HEAD5}, s{HEAD5}, s22
    s_and_b32 s{QB}, s{IDX}, 7""")
    a(f"""s_mul_i32 s22, s{QB}, {16*OG}
    s_add_u32 s22, s22, {WS_O}
    s_lshl_b32 s{OOCT}, s{HEAD5}, 9
    s_add_u32 s{OOCT}, s{OOCT}, s22
    s_lshl_b32 s{OTAIL}, s{HEAD5}, 7
    s_add_u32 s{OTAIL}, s{OTAIL}, s22
    s_add_u32 s{OTAIL}, s{OTAIL}, 16384
    s_mul_i32 s{HEAD5}, s{HEAD5}, 5
    s_lshl_b32 s{OOFF}, s{HEAD5}, 10
    s_mul_i32 s22, s{QB}, {2*TTS_}
    s_add_u32 s{OOFF}, s{OOFF}, s22""")

def clear_o(a):
    a(f"""v_lshrrev_b32 v140, 5, v2
    v_mul_u32_u24 v140, {2*OG}, v140
    v_add_u32 v140, v140, v{OST}
    v_mov_b32 v136, -1
    v_mov_b32 v137, -1
    v_mov_b32 v138, -1
    v_mov_b32 v139, -1
    s_mul_i32 s24, s{HW}, {4*OG}
    s_add_u32 s22, s24, s{OOCT}
    s_add_u32 s23, s22, {2*OG}
    s_add_u32 s24, s24, s{OTAIL}
    buffer_store_dwordx4 v[136:139], v{OSA}, s[12:15], s22 offen sc1
    buffer_store_dwordx4 v[136:139], v{OSA}, s[12:15], s23 offen sc1
    buffer_store_dwordx2 v[136:137], v140, s[12:15], s24 offen sc1""")

def arr_init(a):
    a(f"v_mov_b32 v220, {CNT}\nv_mov_b32 v222, 0\nv_mov_b32 v223, 0\nds_write_b64 v220, v[222:223]")

def utile_issue(a):
    srd(a, 4, P_U, 2048*1280)
    a(f"""v_lshlrev_b32 v4, 4, v9
    v_mul_u32_u24 v3, 1280, v8
    v_add_u32 v3, v3, v4
    s_mov_b32 m0, s27
    s_lshr_b32 s23, s26, 5
    s_and_b32 s28, s26, 31
    s_mul_i32 s24, s28, {64*1280}
    s_lshl_b32 s22, s23, 7
    s_add_u32 s24, s24, s22
    s_mov_b32 s30, 0""")
    a.label("L_ut_i")
    a(f"""buffer_load_dwordx4 v3, s[4:7], s24 offen {UNT} lds
    s_add_u32 m0, m0, 1024
    s_add_u32 s24, s24, {8*1280}
    s_add_u32 s30, s30, 1
    s_cmp_lt_u32 s30, 8
    s_cbranch_scc1 L_ut_i""")
def utile(a):
    A0, A1, A2, A3, D = 8, 9, 10, 11, 12
    a(f"""s_lshr_b32 s23, s26, 5
    v_xor_b32 v{A1}, v{A1}, v{A0}
    v_lshlrev_b32 v{A1}, 4, v{A1}
    v_mul_u32_u24 v{A3}, {RS}, v{A0}
    v_add_u32 v{A3}, v{A3}, v{A1}
    v_lshlrev_b32 v{A0}, 4, v2
    v_add_u32 v{A0}, s27, v{A0}
    v_bfe_u32 v{A1}, v2, 2, 2
    v_lshlrev_b32 v{A1}, 7, v{A1}
    v_lshrrev_b32 v{A2}, 4, v2
    v_lshl_add_u32 v{A1}, v{A2}, 5, v{A1}
    v_and_b32 v{A2}, 3, v2
    v_lshl_add_u32 v{A1}, v{A2}, 3, v{A1}
    v_add_u32 v{A1}, s27, v{A1}
    v_and_b32 v{A2}, 7, v2
    v_lshlrev_b32 v{A2}, 4, v{A2}
    v_lshl_add_u32 v{A2}, v2, 7, v{A2}
    v_add_u32 v{A2}, s27, v{A2}
    s_mul_i32 s23, s23, {64*RS}
    s_lshl_b32 s24, s28, 7
    s_add_u32 s24, s24, s23
    s_add_u32 s24, s24, {WS_UT}
    s_lshl_b32 s29, s26, {2 if PACKA else 7}
    s_add_u32 s29, s29, {WS_FA}""")
    stamp(a, 27)
    a("s_waitcnt vmcnt(0)")
    stamp(a, 28)
    for i in range(16): a(f"ds_read_b64_tr_b16 {v(D+2*i,2)}, v{A1} offset:{i*512}")
    a("s_waitcnt lgkmcnt(0)")
    for i in range(8): a(f"v_xor_b32 v4, {16*i}, v{A2}\nds_write_b128 v4, {v(D+4*i,4)}")
    a("s_waitcnt lgkmcnt(0)")
    for i in range(8): a(f"ds_read_b128 {v(D+4*i,4)}, v{A0} offset:{i*1024}")
    for i in range(8):
        a(f"s_waitcnt lgkmcnt({7-i})\nbuffer_store_dwordx4 {v(D+4*i,4)}, v{A3}, s[12:15], s24 offen sc1\ns_add_u32 s24, s24, {8*RS}")
    stamp(a, 2)
    a(f"s_mov_b32 s33, 2\ns_cmp_lt_u32 s{IDX}, 30\ns_cbranch_scc1 L_h_ld0")
    get_nonce(a)
    a("s_waitcnt vmcnt(0)")
    set_flag(a, 29, 4)
    stamp(a, 3)

def next_slot(a, cur, tmp):
    a(f"""s_add_u32 s{cur}, s{cur}, {RING}
    s_lshr_b32 s{tmp}, s{cur}, 15
    s_cmp_eq_u32 s{tmp}, 3
    s_cselect_b32 s{tmp}, {RING}, 0
    s_add_u32 s{cur}, s{cur}, s{tmp}
    s_cmp_ge_u32 s{cur}, {5*RING}
    s_cselect_b32 s{tmp}, {5*RING}, 0
    s_sub_u32 s{cur}, s{cur}, s{tmp}""")

ORD = sys.argv[sys.argv.index('--ord')+1] if '--ord' in sys.argv else 'pair'
def orders():
    if ORD == 'none': return [list(range(10))]*4
    if ORD == 'pair': return [[c ^ (t & 1) for c in range(10)] for t in range(4)]
    if ORD == 'quad': return [[(c ^ t) if c < 8 else (c ^ (t & 1)) for c in range(10)] for t in range(4)]
    if ORD == 'half': return [[(c + 5*(t & 1)) % 10 for c in range(10)] for t in range(4)]
    if ORD == 'rot': return [[(c + (0, 3, 5, 8)[t]) % 10 for c in range(10)] for t in range(4)]
    if ORD == 'tri': return [[(c//3*3 + (c + t) % 3) if c < 9 else 9 for c in range(10)] for t in (0, 1, 2, 1)]
def loader_math(a):
    a(f"""s_lshr_b32 s{TT}, s{XCD}, 1
    s_lshl_b32 s{TT}, s{TT}, 2
    s_and_b32 s24, s{XCD}, 1
    s_and_b32 s22, s{IDX}, 3
    s_lshr_b32 s23, s{IDX}, 2
    s_lshl_b32 s{CT}, s24, 3
    s_add_u32 s{CT}, s{CT}, s23
    s_lshl_b32 s24, s24, 1
    s_cmp_ge_u32 s{IDX}, 28
    s_cselect_b32 s{CT}, 7, s{CT}
    s_cselect_b32 s24, s24, 0
    s_add_u32 s22, s22, s24
    s_add_u32 s{TT}, s{TT}, s22
    s_add_u32 s22, s{TT}, s{CT}
    s_and_b32 s22, s22, 3""")
    tb = [sum(c << (4*i) for i, c in enumerate(o)) for o in orders()]
    a(f"s_mov_b32 s{TB}, {tb[0] & 0xffffffff}\ns_mov_b32 s{TB+1}, {tb[0] >> 32}")
    for t in range(1, 4):
        if tb[t] != tb[0]: a(f"s_cmp_eq_u32 s22, {t}\ns_cselect_b32 s{TB}, {tb[t] & 0xffffffff}, s{TB}\ns_cselect_b32 s{TB+1}, {tb[t] >> 32}, s{TB+1}")
    a(f"""v_lshrrev_b32 v8, 3, v2
    v_and_b32 v9, 7, v2
    v_lshrrev_b32 v5, 1, v8
    s_and_b32 s22, s{HW}, 1
    s_lshl_b32 s22, s22, 2
    v_add_u32 v5, s22, v5
    v_xor_b32 v4, v9, v5
    v_lshlrev_b32 v4, 4, v4
    v_mul_u32_u24 v3, 2560, v8
    v_add_u32 v{DX}, v3, v4
    s_lshl_b32 s{XS}, s{TT}, 3
    s_add_u32 s{XS}, s{XS}, s{HW}
    s_mul_i32 s{XS}, s{XS}, {16*1280}
    v_lshrrev_b32 v3, 4, v2
    v_bfe_u32 v4, v2, 2, 2
    v_xor_b32 v4, v4, v3
    v_lshlrev_b32 v4, 6, v4
    v_and_b32 v5, 3, v2
    v_lshlrev_b32 v5, 4, v5
    v_mul_u32_u24 v3, 3840, v3
    v_add3_u32 v{DW}, v3, v4, v5
    s_lshl_b32 s{WSO}, s{CT}, 8
    s_mul_i32 s22, s{HW}, {4*3840}
    s_add_u32 s{WSO}, s{WSO}, s22
    s_lshl_b32 s{LB}, s{HW}, 10
    s_lshl_b32 s22, s{KH}, 15
    s_add_u32 s{LB}, s{LB}, s22
    s_lshl_b32 s22, s{KH}, 2
    s_lshr_b64 s[{TB}:{TB+1}], s[{TB}:{TB+1}], s22""")
    for i in range(1, 4):
        a(f"v_add_u32 v{DX+i}, {(64*(i>>1) + (i&1))*1280}, v{DX}\nv_add_u32 v{DW+i}, {i*16*3840}, v{DW}")
def dma_prep():
    return f"""s_and_b32 s43, s{TB}, 15
    s_lshr_b64 s[{TB}:{TB+1}], s[{TB}:{TB+1}], 4
    s_lshl_b32 s100, s43, 7
    s_add_u32 s100, s100, s{XS}
    s_mul_i32 s101, s43, {64*3840}
    s_add_u32 s101, s101, s{WSO}"""
def issue(a, fill=None):
    a(dma_prep())
    per = (len(fill) + 7) // 8 if fill else 0
    for k in range(8):
        i = k >> 1
        a(f"s_add_u32 m0, s{LB}, {i*4096 + (16384 if k & 1 else 0)}\ns_nop 0")
        a(f"buffer_load_dwordx4 v{(DW if k & 1 else DX)+i}, s[{'8:11' if k & 1 else '60:63'}], s{101 if k & 1 else 100} offen lds")
        if fill:
            n = min(per, len(fill))
            while n < len(fill) and (fill[n].startswith(("s_cselect", "s_addc"))): n += 1
            a(J(fill[:n])); del fill[:n]
    assert not fill
    next_slot(a, LB, 43)
def skip(a):
    a(f"s_lshr_b64 s[{TB}:{TB+1}], s[{TB}:{TB+1}], 4")
    next_slot(a, LB, 22)
def lds_wait(a, va, off, vt, sleep=True):
    l = a.newlabel("L_lw"); e = a.newlabel("L_le")
    a.label(l)
    a(f"""ds_read_b32 v{vt}, v{va} offset:{off}
    s_waitcnt lgkmcnt(0)
    v_readfirstlane_b32 s22, v{vt}
    s_cmp_ge_u32 s22, 4
    s_cbranch_scc1 {e}""")
    if sleep: a("s_sleep 2")
    a(f"s_branch {l}")
    a.label(e)

def main_pre(a):
    def wg_of(tt, ct, dst):
        a(f"""v_cmp_eq_u32 vcc, 7, v{ct}
        v_bfe_u32 v10, v{tt}, 1, 1
        v_lshrrev_b32 v11, 3, v{ct}
        v_cndmask_b32 v10, v11, v10, vcc
        v_and_b32 v11, 3, v{tt}
        v_and_b32 v12, 1, v{tt}
        v_cndmask_b32 v11, v11, v12, vcc
        v_and_b32 v12, 7, v{ct}
        v_lshl_add_u32 v11, v12, 2, v11
        v_lshl_add_u32 v10, v11, 3, v10
        v_lshrrev_b32 v11, 2, v{tt}
        v_lshl_add_u32 v{dst}, v11, 1, v10""")
    a(f"""v_and_b32 v3, 15, v2
    v_lshrrev_b32 v4, 5, v2
    v_mul_u32_u24 v4, 160, v4
    v_bfe_u32 v5, v2, 4, 1
    v_lshl_add_u32 v4, v5, 2, v4
    s_add_u32 s22, s{HEAD5}, 160
    v_add_u32 v4, s22, v4
    v_lshrrev_b32 v4, 5, v4""")
    wg_of(3, 4, 8)
    a(f"""v_lshlrev_b32 v8, 7, v8
    v_add_u32 v{PL1}, {WS_FB}, v8
    v_and_b32 v3, 1, v2
    s_lshl_b32 s22, s{QB}, 1
    v_add_u32 v3, s22, v3
    v_bfe_u32 v4, v2, 1, 1
    v_lshlrev_b32 v4, 2, v4
    v_add_u32 v4, s{HEAD5}, v4
    v_lshrrev_b32 v4, 5, v4""")
    wg_of(3, 4, 9)
    if LOC: a(f"v_lshl_add_u32 v3, v2, 3, s{XCD}")
    else: a(f"""v_bfe_u32 v3, v2, 3, 2
    v_lshlrev_b32 v3, 6, v3
    v_and_b32 v4, 7, v2
    s_lshl_b32 s22, s{XCD}, 3
    v_add3_u32 v3, v3, v4, s22""")
    a(f"""v_cmp_gt_u32 vcc, 32, v2
    s_nop 1
    v_cndmask_b32 v9, v9, v3, vcc
    v_lshlrev_b32 v9, 7, v9
    v_add_u32 v{PL2}, {WS_FB}, v9""")

def gemm(a):
    XA = [10, 11, 12, 13]; WA = [14, 15]
    FX = [[16, 20], [32, 36]]; FW = [[24, 28], [40, 44]]
    ACC = 48
    a(f"""s_and_b32 s34, s{WV}, 1
    s_lshr_b32 s35, s{WV}, 1
    v_and_b32 v3, 31, v2
    v_lshrrev_b32 v4, 5, v2
    v_bfe_u32 v5, v3, 1, 3
    v_xor_b32 v5, v5, v4
    v_lshlrev_b32 v5, 4, v5
    v_lshlrev_b32 v6, 7, v3
    s_lshl_b32 s22, s34, 13
    v_add3_u32 v{XA[0]}, v5, v6, s22
    v_xor_b32 v{XA[1]}, 32, v{XA[0]}
    v_xor_b32 v{XA[2]}, 64, v{XA[0]}
    v_xor_b32 v{XA[3]}, 96, v{XA[0]}
    v_bfe_u32 v5, v2, 2, 2
    s_lshl_b32 s22, s35, 1
    v_xor_b32 v6, s22, v5
    v_lshlrev_b32 v6, 6, v6
    v_lshlrev_b32 v7, 3, v4
    v_add_u32 v7, v7, v5
    v_lshlrev_b32 v7, 8, v7
    v_bfe_u32 v5, v2, 4, 1
    v_lshlrev_b32 v5, 5, v5
    v_add3_u32 v6, v6, v7, v5
    v_and_b32 v5, 3, v2
    v_lshl_add_u32 v6, v5, 3, v6
    v_add_u32 v{WA[0]}, 16384, v6
    v_xor_b32 v{WA[1]}, 64, v{WA[0]}
    v_lshlrev_b32 v5, 10, v4
    v_lshl_add_u32 v5, v3, 4, v5
    s_lshl_b32 s26, s{CT}, 5
    s_lshl_b32 s23, s35, 4
    s_add_u32 s26, s26, s23
    s_lshl_b32 s26, s26, 10
    s_mul_i32 s23, s{TT}, {TTS_}
    s_add_u32 s26, s26, s23
    s_lshl_b32 s23, s34, 9
    s_add_u32 s26, s26, s23""")
    for i in range(0, 64, 2): a(f"v_mov_b64 {v(ACC+i,2)}, 0")
    def rx(ks, buf, t): return f"ds_read_b128 {v(FX[buf][t],4)}, v{XA[ks]} offset:{t*4096}"
    def rw(ks, buf, m, rd): return f"ds_read_b64_tr_b16 {v(FW[buf][m]+2*rd,2)}, v{WA[m]} offset:{(16*ks+4*rd)*256}"
    def rds(ks, buf): return [rx(ks,buf,0), rw(ks,buf,0,0), rw(ks,buf,0,1), rx(ks,buf,1), rw(ks,buf,1,0), rw(ks,buf,1,1)]
    def mf(buf, m, t): return m32(ACC+(m*2+t)*16, FW[buf][m], FX[buf][t], ACC+(m*2+t)*16)
    stamp(a, 24)
    a(f"s_cmp_lt_u32 s{IDX}, 20\ns_cbranch_scc1 L_g_w")
    issue(a)
    a("s_waitcnt vmcnt(8)")
    issue(a)
    a("s_branch L_g_b0")
    a.label("L_g_w")
    a("s_waitcnt vmcnt(8) lgkmcnt(0)")
    a.label("L_g_b0")
    o_maps(a)
    clear_o(a)
    stamp(a, 25)
    a("s_mov_b32 s30, 0\ns_mov_b32 s31, 0\ns_setprio 2")
    stamp(a, 26)
    a("s_barrier")
    stamp(a, 2)
    a(J(rds(0, 0)))
    a(".p2align 3")
    a.label("L_g_mm")
    for ks in range(4):
        b = ks & 1
        r = rds((ks+1) & 3, b ^ 1)
        a("s_waitcnt lgkmcnt(3)")
        a(mf(b, 0, 0))
        if ks < 3:
            a(J(r[0:3]) + "\ns_waitcnt lgkmcnt(5)")
            a(mf(b, 0, 1))
            a(J(r[3:6]) + "\ns_waitcnt lgkmcnt(6)")
            a(mf(b, 1, 0))
            if ks == 0:
                a("s_mov_b32 s32, s31"); next_slot(a, 31, 33)
            if ks == 1: a(f"s_sub_u32 s33, s31, s32\ns_add_u32 s30, s30, 1\nv_add_u32 v{XA[0]}, s33, v{XA[0]}\nv_add_u32 v{XA[1]}, s33, v{XA[1]}\nv_add_u32 v{XA[2]}, s33, v{XA[2]}")
            if ks == 2: a(f"v_add_u32 v{XA[3]}, s33, v{XA[3]}\nv_add_u32 v{WA[0]}, s33, v{WA[0]}\nv_add_u32 v{WA[1]}, s33, v{WA[1]}\ns_cmp_eq_u32 s30, 1")
            a(mf(b, 1, 1))
        else:
            a("s_cbranch_scc1 L_g_w8\ns_waitcnt vmcnt(3)")
            a.label("L_g_w8")
            a("s_waitcnt vmcnt(11) lgkmcnt(0)\ns_cmp_gt_u32 s30, 8\ns_cbranch_scc1 L_g_nb\ns_barrier")
            a.label("L_g_nb")
            a(mf(b, 0, 1))
            a(J(r[0:3]) + "\ns_cmp_lt_u32 s30, 10")
            a(mf(b, 1, 0))
            a(J(r[3:6]))
            a(mf(b, 1, 1))
            a("s_cbranch_scc1 L_g_mm")
    stamp(a, 3)
    a("s_nop 4\ns_waitcnt lgkmcnt(0)")
    for q in range(2):
        if q == 0: a(f"s_cmp_lt_u32 s{CT}, 5\ns_cbranch_scc1 L_g_eq")
        else: a.label("L_g_eq"); a(f"s_mov_b32 s28, {f32hex(QSCALE)}")
        k = 0
        for m in range(2):
            for g in range(4):
                d = 16 + 4*k; k += 1
                for t in range(2):
                    r = ACC + (m*2+t)*16 + 4*g
                    if q:
                        for i in range(4): a(f"v_mul_f32 v{r+i}, s28, v{r+i}")
                    a(f"v_cvt_pk_bf16_f32 v{d+2*t}, v{r}, v{r+1}\nv_cvt_pk_bf16_f32 v{d+2*t+1}, v{r+2}, v{r+3}")
                if k & 1: a(f"s_add_u32 s23, s26, {WS_QKV + (m*8+2*g)*1024}")
                a(f"buffer_store_dwordx4 {v(d,4)}, v5, s[12:15], s23 offen offset:{0 if k & 1 else 2048} sc1")
        if q == 0: a("s_branch L_w1")

PRM = 152
VD = 233
def cm(d, x, z, t):
    return [f"v_pk_mul_f32 {v(t,2)}, {v(x,2)}, {v(z,2)} op_sel:[0,0] op_sel_hi:[1,0]",
            f"v_pk_fma_f32 {v(d,2)}, {v(x,2)}, {v(z,2)}, {v(t,2)} op_sel:[1,1,0] op_sel_hi:[0,1,1] neg_lo:[0,1,0]"]
def ilv(*ls):
    out = []
    for i in range(max(len(x) for x in ls)):
        for x in ls:
            if i < len(x): out.append(x[i])
    return out
GDT, GER, GTH, GT = 112, 113, 114, 116
def kg_dt(a):
    a(f"""v_lshlrev_b32 v{GDT}, 16, v{PRM+4}
    v_mul_f32 v{GDT}, {f32hex(LOG2E)}, v{GDT}
    v_exp_f32 v{GDT}, v{GDT}
    s_lshl_b32 s22, s{KH}, 4
    v_cvt_pk_bf16_f32 v{GDT}, v{GDT}, v{GDT}
    v_and_b32 v{GDT}, 0xffff0000, v{GDT}""")
def kg_setup(anchors, X0):
    o = f"""v_lshlrev_b32 v{PRM}, s22, v{PRM}
    v_lshlrev_b32 v{PRM+1}, s22, v{PRM+1}
    v_and_b32 v{GER}, 0xffff0000, v{PRM}
    v_mul_f32 v{GER}, {f32hex(LOG2E)}, v{GER}
    v_exp_f32 v{GER}, v{GER}
    v_and_b32 v{GTH}, 0xffff0000, v{PRM+1}
    v_lshlrev_b32 v{PRM+2}, s22, v{PRM+2}
    v_cvt_pk_bf16_f32 v{GER}, v{GER}, v{GER}
    v_lshlrev_b32 v{PRM+3}, s22, v{PRM+3}
    v_and_b32 v{GER}, 0xffff0000, v{GER}
    v_mul_f32 v{GER}, v{GER}, v{GDT}
    v_mul_f32 v{GTH}, v{GTH}, v{GDT}
    v_mul_f32 v{GER}, {f32hex(-LOG2E)}, v{GER}
    v_mul_f32 v{GTH}, 0.15915494, v{GTH}
    v_and_b32 v{X0}, 0xffff0000, v{PRM+2}
    v_and_b32 v{X0+1}, 0xffff0000, v{PRM+3}
    v_mul_f32 v{X0}, v{X0}, v{GDT}
    v_mul_f32 v{X0+1}, v{X0+1}, v{GDT}
    v_add_f32 v{X0}, v{X0}, v{X0}
    v_add_f32 v{X0+1}, v{X0+1}, v{X0+1}""".split("\n")
    for (z, p) in anchors:
        o += f"""v_mul_f32 v{GT}, {f32hex(p)}, v{GER}
        v_mul_f32 v{GT+1}, {f32hex(p)}, v{GTH}
        v_exp_f32 v{GT}, v{GT}
        v_fract_f32 v{GT+1}, v{GT+1}
        v_cos_f32 v{z}, v{GT+1}
        v_sin_f32 v{z+1}, v{GT+1}
        v_mul_f32 v{z}, v{z}, v{GT}
        v_mul_f32 v{z+1}, v{z+1}, v{GT}""".split("\n")
    return o

def krow():
    def row(h, reg): return 8*(reg >> 2) + 4*h + (reg & 3)
    rowp = {}
    for p in range(4): rowp[row(0, p)] = p; rowp[row(1, p)] = p + 4
    for i, (p0, p1) in enumerate(((256, 260), (258, 262), (260, 264), (512, 768), (516, 772), (520, 776), (1024, 1280), (1032, 1288), (1536, 1792), (1544, 1800))):
        rowp[row(0, 4+i)] = p0; rowp[row(1, 4+i)] = p1
    return rowp
XORD = [1, 2, 3, 4, 5, 6, 7, 258, 260, 262, 516, 772, 1544, 1800, 0, 256, 264, 512, 520, 768, 776, 1024, 1032, 1280, 1288, 1536, 1792]
PKA = 160
KACC = 192
GWA, GRA, GFX = 16, 32, 112
def kgen(a, mid):
    Z1, Z8, ZW, ZB, YA, X0 = 124, 126, 128, 130, 132, 134
    rowp = krow()
    a(f"s_lshl_b32 s28, s{WV}, 13\ns_add_u32 s28, s28, {KSC}")
    kgen_addr(a)
    a(f"v_mov_b32 v{PKA}, 0x3f80\ns_waitcnt vmcnt(8)")
    stamp(a, 20)
    kg_dt(a)
    a(J(kg_setup(((Z8, 8.0), (ZB, 128.0), (Z1, 1.0), (ZW, 256.0)), X0)))
    def pack(p):
        r = X0 + 2*(p % 256)
        return [f"v_cvt_pk_bf16_f32 v{PKA+32+XORD.index(p)}, v{r}, -v{r+1}"]
    def step(p, t):
        if p < 8: return cm(X0+2*p, X0+2*p-2, Z1, t) + pack(p)
        if p == 8: return cm(X0+16, X0, Z8, t) + pack(0)
        b = p % 256
        return cm(X0+2*b, X0+2*b, ZW, t) + pack(p)
    s1 = sum((step(p, GT) for p in (1, 2, 3, 4, 5, 6, 7, 258, 260, 262, 516, 772, 1544, 1800)), [])
    s2 = sum((step(p, GT+2) for p in (8, 256, 264, 512, 520, 768, 776, 1024, 1032, 1280, 1288, 1536, 1792)), [])
    ya = [f"v_cvt_pk_bf16_f32 v{PKA+1}, v{Z8}, v{Z8+1}"]
    for j in range(2, 16): ya += cm(YA, Z8 if j == 2 else YA, Z8, GT+4) + [f"v_cvt_pk_bf16_f32 v{PKA+j}, v{YA}, v{YA+1}"]
    yb = [f"v_cvt_pk_bf16_f32 v{PKA+16}, v{ZB}, v{ZB+1}"]
    for j in range(17, 32): yb += cm(ZB, ZB, Z8, GT+6) + [f"v_cvt_pk_bf16_f32 v{PKA+j}, v{ZB}, v{ZB+1}"]
    a(J(ilv(ya, yb)))
    ly = [f"ds_write2st64_b32 v{GWA+j}, v{PKA+j}, v{PKA+16+j} offset0:{j} offset1:{16+j}" for j in range(16)]
    ly += [f"ds_read_b128 {v(PKA+4*ks,4)}, v{GRA+ks}" for ks in range(8)]
    xs = ilv(s1, s2)
    for i, x in enumerate(xs):
        a(x)
        if i % 3 == 0 and i // 3 < len(ly): a(ly[i // 3])
    assert len(xs) // 3 >= len(ly)
    stamp(a, 21)
    for j in range(16):
        if j + 16 in rowp: a(f"ds_write2st64_b32 v{GWA+j}, v{PKA+32+XORD.index(rowp[j])}, v{PKA+32+XORD.index(rowp[j+16])} offset0:{j} offset1:{16+j}")
        else: a(f"ds_write_b32 v{GWA+j}, v{PKA+32+XORD.index(rowp[j])} offset:{j*256}")
    for ks in range(8): a(f"ds_read_b128 {v(GFX+4*ks,4)}, v{GRA+ks}")
    for ks in range(8):
        a(f"s_waitcnt lgkmcnt({7-ks})")
        a(m32(KACC, GFX+4*ks, PKA+4*ks, KACC if ks else None))
    stamp(a, 22)
def kgen_addr(a):
    WA, RA = 16, 32
    a(f"""v_lshlrev_b32 v{WA}, 2, v2
    v_add_u32 v{WA}, s28, v{WA}
    v_and_b32 v{RA}, 31, v2
    v_lshrrev_b32 v3, 5, v2
    v_and_b32 v4, 15, v2
    v_xor_b32 v3, v3, v4
    v_lshlrev_b32 v3, 4, v3
    v_lshl_add_u32 v{RA}, v{RA}, 8, v3
    v_add_u32 v{RA}, s28, v{RA}""")
    for i in range(1, 16): a(f"v_xor_b32 v{WA+i}, {16*i}, v{WA}")
    for i in range(1, 8): a(f"v_xor_b32 v{RA+i}, {32*i}, v{RA}")

KP = 208
def kpack(a, kdst):
    Jv, H, AD = 3, 4, 12
    R = KACC; P0 = KP
    a(f"""v_and_b32 v{Jv}, 31, v2
    v_lshrrev_b32 v{H}, 5, v2
    v_lshlrev_b32 v{AD}, 4, v{Jv}
    v_sub_u32 v{AD}, s{kdst}, v{AD}
    v_lshlrev_b32 v13, 3, v{H}
    v_sub_u32 v180, v{AD}, v13
    v_lshlrev_b32 v13, 9, v{H}
    v_sub_u32 v181, v{AD}, v13
    v_and_b32 v{H}, 1, v{Jv}
    v_cmp_eq_u32 vcc, 0, v{H}
    v_lshlrev_b32 v{Jv}, 2, v{Jv}
    v_add_u32 v182, s{kdst}, v{Jv}
    v_lshlrev_b32 v15, 16, v{VD}
    s_mov_b64 exec, 1
    v_add_f32 v{R}, v{R}, v15
    s_mov_b64 exec, -1""")
    cv = lambda d, lo, hi: a(f"v_cvt_pk_bf16_f32 v{d}, v{lo}, v{hi}")
    cv(P0, R+3, R+2); cv(P0+1, R+1, R+0)
    cv(P0+2, R+6, R+5); cv(P0+3, R+4, R+4)
    cv(P0+4, R+9, R+9); cv(P0+5, R+8, R+8); cv(P0+6, R+8, R+7); cv(P0+7, R+7, R+7)
    for sidx in range(2):
        ra, rb = R+10+2*sidx, R+11+2*sidx
        d = P0 + 8 + 4*sidx
        a(f"v_cndmask_b32 v13, v{rb}, v{ra}, vcc")
        cv(d, rb, rb); cv(d+1, rb, 13); cv(d+2, ra, ra); cv(d+3, ra, ra)
def kwrite(a, vzero):
    P0 = KP
    a(f"""ds_write_b64 v180, {v(P0,2)} offset:{4080+8}
    ds_write_b64 v180, {v(P0+2,2)} offset:{4080-512+8}
    ds_write_b128 v181, {v(P0+4,4)} offset:{4080-1024}
    ds_write_b128 v181, {v(P0+8,4)} offset:{4080-2048}
    ds_write_b128 v181, {v(P0+12,4)} offset:{4080-3072}
    ds_write_b32 v182, v{vzero} offset:4096""")

CAA, CBA, CACC = 10, 11, 148
def conv_setup(a, cbase):
    a(f"""v_and_b32 v3, 3, v2
    v_mul_u32_u24 v{CAA}, {UST}, v3
    v_bfe_u32 v3, v2, 2, 2
    v_lshl_add_u32 v{CAA}, v3, 7, v{CAA}
    v_lshrrev_b32 v4, 4, v2
    v_lshl_add_u32 v{CAA}, v4, 4, v{CAA}
    v_add_u32 v{CAA}, s{cbase}, v{CAA}
    v_and_b32 v3, 15, v2
    v_lshlrev_b32 v3, 3, v3
    v_lshlrev_b32 v{CBA}, 4, v4
    v_sub_u32 v{CBA}, v{CBA}, v3
    v_add_u32 v{CBA}, {KOFF+120}, v{CBA}
    v_add_u32 v{CBA}, s{cbase}, v{CBA}""")
    for i in range(0, 32, 2): a(f"v_mov_b64 {v(CACC+i,2)}, 0")
def conv(a, ydst, fill):
    FA = [16, 80]; FB = [48, 112]; ACC = CACC
    def loads(b, extra):
        out = []
        for k in range(8):
            out += [f"ds_read_b64 {v(FB[b]+4*k,2)}, v{CBA} offset:{512*(7-k)+extra}", f"ds_read_b64 {v(FB[b]+4*k+2,2)}, v{CBA} offset:{512*(7-k)+8+extra}",
                    f"ds_read_b128 {v(FA[b]+4*k,4)}, v{CAA} offset:{512*k+extra}"]
        return out
    a("s_waitcnt lgkmcnt(0)")
    a(J(loads(0, 0)))
    a("s_mov_b32 s53, 0\n.p2align 3")
    lp = a.newlabel("L_cv")
    a.label(lp)
    pairs = sorted([(i, j) for i in range(8) for j in range(8) if i + j < 8], key=lambda p: (max(p), p))
    for b in range(2):
        ld = loads(b ^ 1, 64*(b+1))
        a("s_waitcnt lgkmcnt(0)")
        for n, (i, j) in enumerate(pairs):
            a(m16(ACC+4*(i+j), FA[b]+4*i, FB[b]+4*j, ACC+4*(i+j)))
            if n < 24: a(ld[n])
            if b == 1 and n == 33: a(f"v_add_u32 v{CAA}, 128, v{CAA}\nv_add_u32 v{CBA}, 128, v{CBA}")
            elif b == 1 and n == 34: a("s_add_u32 s53, s53, 1\ns_cmp_lt_u32 s53, 4")
            elif b == 1 and n == 35: pass
            else:
                for _ in range(FILL1 if n < 24 else 2):
                    if fill: a(fill.pop(0))
    a(f"s_cbranch_scc1 {lp}")
    a("v_lshlrev_b32 v3, 3, v2")
    for b in range(8):
        ac = ACC + 4*b
        a(f"""v_cvt_pk_bf16_f32 v{ac}, v{ac}, v{ac+1}
        v_cvt_pk_bf16_f32 v{ac+1}, v{ac+2}, v{ac+3}
        buffer_store_dwordx2 {v(ac,2)}, v3, s[12:15], s{ydst} offen offset:{512*b} sc1""")

def helper(a):
    CB = 26
    UE = 132
    a(f"""s_mov_b32 s33, 0
    s_cmp_ge_u32 s{IDX}, 20
    s_cbranch_scc1 L_h_tr
    s_lshr_b32 s{FCOFF}, s{CHN}, 2
    s_lshl_b32 s{FCOFF}, s{FCOFF}, 7
    s_lshl_b32 s22, s{HW}, 2
    s_add_u32 s{FCOFF}, s{FCOFF}, s22
    s_add_u32 s{FCOFF}, s{FCOFF}, {WS_FC}
    s_lshr_b32 s22, s{CHN}, 6
    s_lshl_b32 s22, s22, {7 if PACKA else 12}
    s_add_u32 s22, s22, {WS_FA}
    v_and_b32 v4, 31, v2
    v_lshl_add_u32 v8, v4, {2 if PACKA else 7}, s22
    s_mul_i32 s{CB}, s{HW}, {CHA}
    s_add_u32 s{CB}, s{CB}, {CVB}
    s_mul_i32 s27, s{CHN}, {RS}
    s_add_u32 s27, s27, {WS_UT}
    s_add_u32 s29, s{CB}, {KOFF}
    s_mov_b32 s33, {POLLC}""")
    issue(a)
    skip(a)
    a("s_setprio 1")
    a.label("L_kgen")
    kgen(a, None)
    a(f"s_cmp_eq_u32 s{KH}, 0\ns_cbranch_scc1 L_g_kb")
    stamp(a, 3)
    a("s_setprio 0\ns_waitcnt vmcnt(0)\ns_branch L_h_ld1")
    a.label("L_h_tr")
    a(f"s_cmp_ge_u32 s26, 320\ns_cbranch_scc1 L_h_ld0")
    a.label("L_utile")
    utile(a)
    a("s_branch L_tr_back")
    a.label("L_h_ld0")
    a(f"v_mov_b32 v8, {WS_FA}")
    skip(a); skip(a)
    a.label("L_h_ld1")
    a("s_mov_b32 s30, 0")
    def bar():
        a("s_waitcnt vmcnt(16) lgkmcnt(0)\ns_barrier")
        if PROF and not LITE: a(f"s_memtime s[92:93]\ns_add_u32 m0, s30, 32\ns_waitcnt lgkmcnt(0)\nv_writelane_b32 v{PV}, s92, m0")
    def lines(*fs):
        t = Asm()
        for f in fs: f(t)
        return [l.strip() for l in t.lines]
    a.label("L_h_ld")
    bar()
    issue(a, lines(attn_ids, o_maps, kv_units))
    a(f"""s_add_u32 s30, s30, 1
    s_cmp_lg_u32 s30, s33
    s_cbranch_scc1 L_h_l1
    s_cmp_lt_u32 s{IDX}, 20
    s_cbranch_scc1 L_h_pl""")
    get_nonce(a)
    a("s_waitcnt vmcnt(16)")
    set_flag(a, 29, 10)
    stamp(a, 3)
    a("s_branch L_h_l1")
    a.label("L_h_pl")
    a("buffer_load_dword v9, v8, s[12:15], 0 offen sc1")
    a.label("L_h_l1")
    a("s_cmp_lt_u32 s30, 5\ns_cbranch_scc1 L_h_ld")
    bar()
    issue(a, [f's_load_dword s{NONCE}, s[{P_DBG}:{P_DBG+1}], 0'] + lines(tail_setup, attn_reset2))
    a("s_add_u32 s30, s30, 1")
    bar()
    issue(a, lines(lambda t: conv_setup(t, CB)))
    a("s_waitcnt vmcnt(16)\ns_barrier")
    a(f"s_cmp_lg_u32 s{NONCE}, 0\ns_cbranch_scc1 L_h_hn")
    get_nonce(a)
    a.label("L_h_hn")
    arr_init(a)
    a(f"""s_cmp_lt_u32 s{IDX}, 20
    s_cbranch_scc1 L_h_k7
    s_waitcnt vmcnt(0) lgkmcnt(0)
    s_barrier
    s_branch L_attn""")
    a.label("L_h_ids")
    a("s_mov_b32 s33, 2\ns_branch L_setup")
    a.label("L_h_k7")
    def uloads():
        for i in range(4): a(f"buffer_load_dwordx4 {v(132+4*i,4)}, v{DMV}, s[12:15], s27 offen offset:{1024*i} sc1")
    stamp(a, 39)
    a(f"s_sub_u32 s28, s28, 32768\nv_add_u32 v6, s28, v{DMV}\nv_cmp_ne_u32 vcc, s{NONCE}, v9\ns_mov_b32 s31, 0")
    for i in range(4): a(f"ds_read_b128 {v(16+4*i,4)}, v6 offset:{1024*i}")
    a("s_cbranch_vccnz L_h_nu")
    uloads()
    a("s_mov_b32 s31, 1")
    a.label("L_h_nu")
    a("s_waitcnt lgkmcnt(0)")
    for i in range(14): a(f"v_add_f32 v{KACC+i}, v{KACC+i}, v{16+i}")
    kpack(a, 29)
    a(f"""v_lshlrev_b32 v5, 3, v2
    v_min_u32 v5, 376, v5
    v_add_u32 v5, s{CB}, v5
    v_mov_b32 v6, 0
    v_mov_b32 v7, 0""")
    stamp(a, 46)
    a("s_cmp_eq_u32 s31, 1\ns_cbranch_scc1 L_h_w4\ns_waitcnt vmcnt(0)")
    a.label("L_h_w4")
    a("s_waitcnt vmcnt(4)\ns_barrier")
    stamp(a, 4)
    a("s_cmp_eq_u32 s31, 1\ns_cbranch_scc1 L_h_hu")
    poll(a, [8], 1, 9)
    uloads()
    a.label("L_h_hu")
    if PROF: a(f"v_writelane_b32 v{PV}, s31, 30")
    kwrite(a, 6)
    for r in range(4): a(f"ds_write_b64 v5, v[6:7] offset:{r*UST}")
    a(f"""s_mul_i32 s27, s{CHN}, {RS}
    s_add_u32 s27, s27, {WS_YT}
    v_add_u32 v4, s{CB}, v{DMV}
    s_waitcnt vmcnt(0)""")
    stamp(a, 5)
    for i in range(4):
        e = 132 + 4*i
        C2, C1, C0, PP = 16 + 14*i, 20 + 14*i, 24 + 14*i, 28 + 14*i
        a(f"ds_write_b128 v4, {v(e,4)} offset:{3*UST + 384 + 1024*i}")
        if i == 0: a(f"v_mov_b32 v{PP}, 0\nv_mov_b32 v{C1}, 0\ns_nop 0")
        else: a(f"v_readlane_b32 s22, v{e-2}, 63\nv_readlane_b32 s23, v{e-1}, 63\ns_nop 0\nv_mov_b32 v{PP}, s22\nv_mov_b32 v{C1}, s23\ns_nop 0")
        a(f"v_mov_b32_dpp v{PP}, v{e+2} wave_shr:1 row_mask:0xf bank_mask:0xf")
        a(f"v_mov_b32_dpp v{C1}, v{e+3} wave_shr:1 row_mask:0xf bank_mask:0xf")
        for j in range(3): a(f"v_mov_b32 v{C1+1+j}, v{e+j}")
        a(f"ds_write_b128 v4, {v(C1,4)} offset:{UST + 384 + 1024*i}")
        a(f"v_alignbit_b32 v{C2}, v{e}, v{C1}, 16")
        for j in range(1, 4): a(f"v_alignbit_b32 v{C2+j}, v{e+j}, v{e+j-1}, 16")
        a(f"ds_write_b128 v4, {v(C2,4)} offset:{2*UST + 384 + 1024*i}")
        a(f"v_alignbit_b32 v{C0}, v{C1}, v{PP}, 16")
        for j in range(3): a(f"v_mov_b32 v{C0+1+j}, v{C2+j}")
        a(f"ds_write_b128 v4, {v(C0,4)} offset:{384 + 1024*i}")
    stamp(a, 6)
    t = Asm(); zero_s(t)
    fill = [l.strip() for l in t.lines]
    conv(a, 27, fill)
    assert not fill
    stamp(a, 7)
    a("s_branch L_attn2")

def window1(a):
    get_nonce(a)
    a(f"""v_mov_b32 v3, {ARRW}
    v_mov_b32 v4, 1
    s_lshl_b32 s22, s2, 7
    s_add_u32 s26, s22, {WS_FB}""")
    zero_state(a)
    stamp(a, 4)
    a(f"""s_waitcnt vmcnt(0)
    s_mov_b64 exec, 1
    ds_add_rtn_u32 v4, v3, v4
    s_mov_b64 exec, -1
    s_waitcnt lgkmcnt(0)
    v_readfirstlane_b32 s22, v4
    s_mov_b32 s33, 0
    s_cmp_lg_u32 s22, 3
    s_cbranch_scc1 L_w1_r""")
    stamp(a, 5)
    stamp(a, 53, True)
    set_flag(a, 26, 6)
    a(f"""v_mov_b32 v16, 0x3f803f80
    v_mov_b32 v17, 0x00003f80
    v_mov_b32 v18, 0x3f803f80
    v_mov_b32 v19, 0x00003f80
    ds_write_b128 v{DMV}, v[16:19] offset:{CONSTP}
    ds_write_b32 v6, v6 offset:{FLAGW}
    s_mov_b32 s33, 1
    s_branch L_setup""")
    a.label("L_w1_r")
    a("s_setprio 0")
    a.label("L_setup")
    attn_reset(a)
    tail_setup(a)
    a("""s_cmp_eq_u32 s33, 2
    s_cbranch_scc1 L_attn
    s_cmp_eq_u32 s33, 0
    s_cbranch_scc1 L_at_b2""")
    main_pre(a)
    poll(a, [PL1, PL2], 1, 20, sleep=PSL)
    stamp(a, 6)
    stamp(a, 54, True)
    a(f"s_add_u32 s23, s{HEAD5}, 160\ns_lshl_b32 s23, s23, 10")
    def qu(u): a(f"""s_mov_b32 m0, {QLDS + 1024*u}
        s_add_u32 s24, s{OOFF}, {(u >> 1)*1024 + (u & 1)*TTS_}
        buffer_load_dwordx4 v{DMV}, s[12:15], s24 offen sc1 lds""")
    def ku(u):
        p = u >> 1
        off = ((p + (155 if p >= 5 else 0)) << 10) + ((u & 1)*8)*TTS_
        a(f"""s_mov_b32 m0, {ARING + p*PST + (u & 1)*1024}
        s_add_u32 s24, s23, {off}
        buffer_load_dwordx4 v{DMV}, s[12:15], s24 offen sc1 lds""")
    for u in range(10): qu(u)
    for u in range(20): ku(u)
    stamp(a, 7)
    a("s_waitcnt vmcnt(0)\ns_branch L_at_b2")

Q0 = [16, 22]; Q1 = [20, 26]
KF = [28, 34]; VF = [40, 48]; P = [56, 64]; S = [72, 88]; O = [104, 120]
def set_m(a, q, M):
    a(f"""v_sub_f32 v{M}, 0, v{M}
    v_and_b32 v{M+1}, 0xffff0000, v{M}
    v_sub_f32 v{M+2}, v{M}, v{M+1}
    v_and_b32 v{M+3}, 0xffff0000, v{M+2}
    v_sub_f32 v{M+2}, v{M+2}, v{M+3}
    v_lshrrev_b32 v{M+1}, 16, v{M+1}
    v_or_b32 v{M+1}, v{M+1}, v{M+3}
    v_lshrrev_b32 v{M+2}, 16, v{M+2}
    v_cndmask_b32 v{Q1[q]}, v{M+1}, v{Q1[q]}, vcc
    v_cndmask_b32 v{Q1[q]+1}, v{M+2}, v{Q1[q]+1}, vcc""")
def tilemax(a, M, s, first):
    if first: a(f"v_max3_f32 v{M}, v{s}, v{s+1}, v{s+2}")
    else: a(f"v_max3_f32 v{M}, v{M}, v{s}, v{s+1}\nv_max_f32 v{M}, v{M}, v{s+2}")
    for i in range(3, 15, 2): a(f"v_max3_f32 v{M}, v{M}, v{s+i}, v{s+i+1}")
    a(f"v_max_f32 v{M}, v{M}, v{s+15}")
def halfmax(a, M):
    a(f"v_mov_b32 v{M+1}, v{M}\ns_nop 1\nv_permlane32_swap_b32 v{M}, v{M+1}\nv_max_f32 v{M}, v{M}, v{M+1}")

def kv_units(a):
    a(f"""s_lshr_b32 s22, s{WV}, 1
    s_and_b32 s23, s{WV}, 1
    s_mul_i32 s{KL[0]}, s22, {PST}
    s_lshl_b32 s24, s23, 10
    s_add_u32 s{KL[0]}, s{KL[0]}, s24
    s_add_u32 s{KL[0]}, s{KL[0]}, {ARING}
    s_add_u32 s{KL[1]}, s{KL[0]}, {4*PST}
    s_add_u32 s{KL[2]}, s{KL[0]}, {8*PST}
    s_add_u32 s24, s22, s{HEAD5}
    s_lshl_b32 s24, s24, 10
    s_mul_i32 s23, s23, {8*TTS_}
    s_add_u32 s24, s24, s23
    s_add_u32 s{KS[0]}, s24, {160*1024 + TTS_}
    s_add_u32 s{KS[2]}, s24, {(160+8+155)*1024 + TTS_}
    s_cmp_eq_u32 s22, 0
    s_cselect_b32 s23, 0, {155*1024}
    s_add_u32 s{KS[1]}, s{KS[0]}, s23
    s_add_u32 s{KS[1]}, s{KS[1]}, 4096""")
def attn_reset(a):
    kv_units(a); attn_reset2(a)
def attn_reset2(a):
    a(f"""v_and_b32 v3, 31, v2
    v_lshlrev_b32 v3, 3, v3
    v_lshrrev_b32 v5, 5, v2
    s_lshl_b32 s{KHOFF}, s{KH}, 10
    s_lshl_b32 s22, s{HW}, 9
    s_add_u32 s22, s22, {QLDS}
    v_add_u32 v{QA4}, s22, v3
    v_lshl_add_u32 v{QA0}, v5, 12, v{QA4}
    v_mul_u32_u24 v{KA}, {2*PST}, v5
    s_add_u32 s22, s{KHOFF if M0 else MODE+53-MODE}, {ARING}""".replace(f"s{MODE+53-MODE}", "0"))
    a(f"""v_add3_u32 v{KA}, v{KA}, v3, s22
    v_xor_b32 v{MS4}, 1, v5
    s_add_u32 s22, s22, {4*PST - CONSTP}
    v_mad_u32_u24 v{K4}, v{MS4}, s22, v3
    v_add_u32 v{K4}, {CONSTP}, v{K4}
    v_bfe_u32 v3, v2, 2, 2
    v_lshl_add_u32 v5, v5, 2, v3
    v_and_b32 v4, 3, v2
    v_bfe_u32 v3, v2, 4, 1
    v_lshl_add_u32 v4, v3, 2, v4
    v_cmp_gt_u32 vcc, 5, v4
    v_mul_u32_u24 v4, {PST}, v4
    s_add_u32 s22, s{KHOFF}, {ARING + 5*PST}
    v_add_u32 v4, s22, v4
    v_cndmask_b32 v{VA}, {CONSTP}, v4, vcc
    v_cndmask_b32 v{MSK}, 0, 1, vcc
    v_lshl_add_u32 v{VA}, v5, 3, v{VA}
    s_sub_u32 s24, 106, s{WV}
    s_mul_i32 s{WOS}, s24, {6*1280}
    s_lshr_b32 s22, s{IDX}, 2
    s_mul_i32 s22, s22, 160
    s_add_u32 s{WOS}, s{WOS}, s22
    s_mul_i32 s{WOL}, s24, 960
    s_add_u32 s{WOL}, s{WOL}, {WOB}""")
YT, OSA, OST, FIW, FS0 = range(235, 240)
YT, FIW, FS0 = 253, 251, 250
WAO, WAT = 248, 249
TOS, TTS, TFS = 96, 97, 98
def o_maps(a):
    a(f"""v_and_b32 v3, 15, v2
    v_bfe_u32 v4, v2, 4, 1
    v_mul_u32_u24 v4, {OG}, v4
    v_lshl_add_u32 v{OST}, v3, 3, v4
    v_lshl_add_u32 v4, v3, 4, v4
    v_lshrrev_b32 v3, 5, v2
    v_lshl_add_u32 v{OSA}, v3, 8, v4""")
def tail_setup(a):
    a(f"""v_mul_u32_u24 v6, 205, v2
    v_lshrrev_b32 v6, 11, v6
    v_mul_u32_u24 v7, 10, v6
    v_sub_u32 v7, v2, v7
    v_lshlrev_b32 v7, 4, v7
    v_mul_u32_u24 v6, 1280, v6
    v_add_u32 v{WOV}, v6, v7
    v_add_u32 v{FS0}, v6, v{WOV}""")
def tail_setup2(a):
    a(f"""v_bfe_u32 v3, v2, 2, 2
    v_lshrrev_b32 v4, 4, v2
    v_and_b32 v5, 3, v2
    v_lshlrev_b32 v5, 3, v5
    v_lshrrev_b32 v6, 2, v2
    v_lshl_add_u32 v6, v6, 7, v5
    s_lshl_b32 s22, s{HW}, 5
    v_add_u32 v{YT}, s22, v6
    v_lshrrev_b32 v6, 5, v2
    v_mul_u32_u24 v6, 12, v6
    v_lshl_add_u32 v6, v4, 2, v6
    v_add_u32 v6, v6, v3
    v_mad_u32_u24 v7, v4, 20, v3
    s_mul_i32 s22, s{KH}, {320*160}
    s_add_u32 s22, s22, {WOB}
    v_add_u32 v5, s22, v5
    s_movk_i32 s23, 160
    v_mad_u32_u24 v{WAO}, v6, s23, v5
    v_mad_u32_u24 v{WAT}, v7, s23, v5
    v_and_b32 v3, 15, v2
    s_mul_i32 s22, s{WV}, 2560
    v_lshl_add_u32 v4, v4, 3, s22
    v_mad_u32_u24 v{FIW}, v3, s23, v4
    s_lshl_b32 s24, s{XCD}, 2
    s_and_b32 s22, s{IDX}, 3
    s_add_u32 s24, s24, s22
    s_lshl_b32 s24, s24, 2
    s_add_u32 s24, s24, s{HW}
    s_mul_i32 s{TOS}, s24, {OG}
    s_add_u32 s{TOS}, s{TOS}, {WS_O}
    s_lshl_b32 s23, s{KH}, 11
    s_add_u32 s{TTS}, s{TOS}, s23
    s_add_u32 s{TTS}, s{TTS}, 16384
    s_lshl_b32 s23, s{KH}, 13
    s_add_u32 s{TOS}, s{TOS}, s23
    s_lshr_b32 s22, s{IDX}, 2
    s_add_u32 s22, s22, 8
    s_lshl_b32 s23, s{IDX}, 2
    s_add_u32 s23, s23, s{HW}
    s_cmp_eq_u32 s{KH}, 1
    s_cselect_b32 s24, s23, s24
    s_cselect_b32 s22, s{XCD}, s22
    s_mul_i32 s{TFS}, s24, {16*2560}
    s_mul_i32 s22, s22, 160
    s_add_u32 s{TFS}, s{TFS}, s22""")
WFR = [28, 48, 68, 88, 144, 164, 184, 204, 108]
OFR = [128, 132, 224, 228, 232, 236, 240, 244, 136, 140]
def wo_reads(a, i, slot):
    for m in range(5):
        for hf in range(2):
            if i < 8: a(f"ds_read_b64_tr_b16 {v(WFR[slot]+4*m+2*hf,2)}, v{WAO} offset:{(40*i+8*hf)*160+32*m}")
            else: a(f"ds_read_b64_tr_b16 {v(WFR[slot]+4*m+2*hf,2)}, v{WAT} offset:{(160*(i-8)+80*hf+16)*160+32*m}")
def zero_state(a):
    zero_s(a); zero_v(a)
def zero_s(a):
    srd(a, 8, P_WO, 640*1280)
    a(f"""s_mov_b32 s30, 0
    s_mov_b32 s31, 0
    s_mov_b32 s32, {2*SLOT}
    s_mov_b32 s{MK}, 63
    s_cmp_lt_u32 s{WV}, 4
    s_cselect_b32 s{MK2}, 63, 0
    s_movk_i32 s{MW[0]}, 0xfe
    s_movk_i32 s{MW[1]}, 0x7e
    s_cmp_lt_u32 s{WV}, 3
    s_cselect_b32 s{MW[1]}, s{MW[0]}, s{MW[1]}""")
def zero_v(a):
    for i in range(0, 32, 2): a(f"v_mov_b64 {v(O[0]+i,2)}, 0")
    for i in range(0, 8, 2): a(f"v_mov_b64 {v(P[1]+i,2)}, 0\nv_mov_b64 {v(VF[1]+i,2)}, 0")

def attention(a):
    def kr(t, b): return [f"ds_read_b64 {v(KF[b],2)}, v{KA} offset:{t*256}", f"ds_read_b64 {v(KF[b]+2,2)}, v{KA} offset:{t*256+PST}", f"ds_read_b64 {v(KF[b]+4,2)}, v{K4} offset:{t*256}"]
    def vr(t, b): return [f"ds_read_b64_tr_b16 {v(VF[b]+2*j,2)}, v{VA} offset:{t*256+j*64}" for j in range(4)]
    def shift(sreg):
        a(f"v_add_u32 v{KA}, s{sreg}, v{KA}\nv_mad_i32_i24 v{K4}, v{MS4}, s{sreg}, v{K4}")
    def qk(q, kb): a(m32(S[q], KF[kb], Q0[q])); a(m32x8(S[q], KF[kb]+4, Q1[q], S[q]))
    zero_s(a)
    a.label("L_attn2")
    a("s_waitcnt lgkmcnt(0)")
    zero_v(a)
    a.label("L_at_b2")
    stamp(a, 8)
    a("v_cmp_gt_u32 vcc, 32, v2\ns_waitcnt lgkmcnt(0)\ns_barrier")
    stamp(a, 9)
    stamp(a, 50, True)
    a(J(kr(0, 0)))
    a(f"s_cmp_lg_u32 s{MODE}, 0\ns_cbranch_scc1 L_at_havem")
    for q in range(2):
        a(f"""ds_read_b64 {v(Q0[q],2)}, v{QA0} offset:{q*256}
        ds_read_b64 {v(Q0[q]+2,2)}, v{QA0} offset:{q*256+2048}
        ds_read_b64 {v(Q1[q],2)}, v{QA4} offset:{q*256+8192}""")
    a("s_waitcnt lgkmcnt(0)")
    for q in range(2): a(f"v_cndmask_b32 v{Q1[q]}, 0, v{Q1[q]}, vcc\nv_cndmask_b32 v{Q1[q]+1}, 0, v{Q1[q]+1}, vcc")
    if not M0:
        qk(0, 0); qk(1, 0)
        a("s_nop 7\ns_nop 1")
        for q in range(2):
            tilemax(a, P[0], S[q], True); halfmax(a, P[0]); set_m(a, q, P[0])
    a.label("L_at_havem")
    if not M0:
        shift(KHOFF)
        a(J(kr(0, 0)))
    a(f"s_cmp_eq_u32 s{MODE}, 1\ns_cbranch_scc1 L_at_maxpass")
    for j in range(3):
        if j == 2: a(f"s_cmp_ge_u32 s{WV}, 4\ns_cbranch_scc1 L_at_p3")
        a(f"s_add_u32 m0, s{KL[j]}, {SLOT}\ns_nop 0\nbuffer_load_dwordx4 v{DMV}, s[12:15], s{KS[j]} offen sc1 lds\ns_add_u32 s{KS[j]}, s{KS[j]}, {TTS_}")
    a.label("L_at_p3")
    a("s_waitcnt lgkmcnt(0)")
    qk(0, 0)
    a("s_setprio 3\ns_mov_b32 s43, 0x07060302\ns_nop 5")
    stamp(a, 10)
    a(f".p2align {ALP}")
    for _ in range(ALN): a("s_nop 0")
    a.label("L_at_loop")
    for T in range(4):
        kb = T & 1
        for q in range(2):
            o = q ^ 1
            ex = [f"v_exp_f32 v{S[q]+i}, v{S[q]+i}" for i in range(16)]
            cv = [f"v_cvt_pk_bf16_f32 v{P[q]+i}, v{S[q]+2*i}, v{S[q]+2*i+1}" for i in range(8)]
            if '--perm' in sys.argv: cv = [f"v_perm_b32 v{P[q]+i}, v{S[q]+2*i+1}, v{S[q]+2*i}, s43" for i in range(8)]
            kq = kb if q == 0 else kb ^ 1
            vq = kb ^ 1 if q == 0 else kb
            rd = (kr((T+1) & 3, kb ^ 1) + vr(T, kb)) if q == 0 else []
            if '--nord' in sys.argv: rd = []
            if '--halfrd' in sys.argv and T & 1: rd = []
            if '--rdsplit' in sys.argv:
                pass
            st = (2*((T+1) & 3) + q)
            def pr(i):
                k = 4*st + i
                if k in PRIO: a(f"s_setprio {3 - PRIO.index(k)}")
            if q == 0 and T == 3:
                a(f"""s_add_u32 s33, s31, {SLOT}
                s_cmp_eq_u32 s33, {3*SLOT}
                s_cselect_b32 s33, 0, s33
                s_sub_u32 s29, s33, s31
                s_mov_b32 s31, s33""")
                shift(29)
                if PROF and not LITE: a("s_memtime s[90:91]")
                a("s_waitcnt vmcnt(0)\ns_barrier")
                if PROF and not LITE: a("s_memtime s[92:93]")
            if q == 1: a("s_waitcnt lgkmcnt(0)")
            if PROF and not LITE and (T, q) == (3, 1): a(f"s_sub_u32 s90, s92, s90\ns_add_u32 m0, s30, 55\ns_lshl_b32 s90, s90, 20\ns_and_b32 s92, s92, 0xfffff\ns_or_b32 s92, s92, s90\nv_writelane_b32 v{PV}, s92, m0")
            def kv(j, mask):
                l = a.newlabel("L_at_s")
                a(f"""s_bitcmp0_b32 s{mask}, s30
                s_cbranch_scc1 {l}
                s_add_u32 m0, s{KL[j]}, s32
                s_nop 0
                buffer_load_dwordx4 v{DMV}, s[12:15], s{KS[j]} offen sc1 lds
                s_add_u32 s{KS[j]}, s{KS[j]}, {TTS_}""")
                a.label(l)
            def wo(e):
                l = a.newlabel("L_at_s")
                a(f"""s_bitcmp0_b32 s{MW[e]}, s30
                s_cbranch_scc1 {l}
                s_mov_b32 exec_hi, 0x0fffffff
                s_mov_b32 m0, s{WOL}
                s_sub_u32 s{WOL}, s{WOL}, {8*960}
                buffer_load_dwordx4 v{WOV}, s[8:11], s{WOS} offen lds
                s_mov_b32 exec_hi, -1
                s_sub_u32 s{WOS}, s{WOS}, {8*6*1280}""")
                a.label(l)
            a(m32(S[o], KF[kq], Q0[o])); pr(0)
            if '--sch2' in sys.argv:
                G = [ex[0:4] + [], ex[4:5] + cv[0:2] + ex[5:8], ex[8:9] + cv[2:4] + ex[9:12] + cv[4:5], ex[12:16] + cv[5:8]]
            else:
                G = [ex[0:4] + cv[0:1], ex[4:6] + cv[1:2] + ex[6:8] + cv[2:3], ex[8:10] + cv[3:4] + ex[10:12] + cv[4:5], ex[12:14] + cv[5:6] + ex[14:16] + cv[6:8]]
            if '--sch3' in sys.argv:
                G = [ex[0:5], cv[0:2] + ex[5:9], cv[2:4] + ex[9:13], cv[4:6] + ex[13:16] + cv[6:8]]
            a(J(rd[0:3] + G[0]))
            a(m32x8(S[o], KF[kq]+4, Q1[o], S[o])); pr(1)
            if (T, q) == (3, 1): kv(1, MK)
            if (T, q) == (0, 1): wo(1)
            a(J(rd[3:5] + G[1]))
            a(m32(O[o], VF[vq], P[o], O[o])); pr(2)
            a(J(rd[5:7] + G[2]))
            a(m32(O[o], VF[vq]+4, P[o]+4, O[o])); pr(3)
            if (T, q) == (3, 0): kv(0, MK)
            if (T, q) == (0, 0): wo(0)
            if (T, q) == (3, 1):
                kv(2, MK2)
                a(f"""s_add_u32 s32, s32, {SLOT}
                s_cmp_eq_u32 s32, {3*SLOT}
                s_cselect_b32 s32, 0, s32
                s_cmp_lg_u32 s{FCOFF}, 0
                s_cbranch_scc1 L_at_fc""")
                a.label("L_at_back")
            a(J(G[3][:-2]))
            if q == 1 and T == 3: a(f"v_mad_i32_i24 v{VA}, v{MSK}, s29, v{VA}")
            a(J(G[3][-2:]))
    a("s_add_u32 s30, s30, 1\ns_cmp_lt_u32 s30, 8\ns_cbranch_scc1 L_at_loop")
    a(m32(O[1], VF[1], P[1], O[1]))
    a(f"""s_mul_i32 s22, s{XCD}, {20*128}
    s_add_u32 s22, s22, {WS_FC}
    v_min_u32 v8, 19, v2
    v_lshl_add_u32 v8, v8, 7, s22
    buffer_load_dwordx4 v[136:139], v8, s[12:15], 0 offen sc1""")
    C = S[1]
    a(f"""s_setprio 0
    s_mul_i32 s22, s{WV}, 3072
    v_add_u32 v4, s22, v{DMV}
    s_xor_b32 s22, s{WV}, 4
    s_mul_i32 s22, s22, 3072
    v_add_u32 v5, s22, v{DMV}""")
    a(m32(O[1], VF[1]+4, P[1]+4, O[1]))
    stamp(a, 11)
    a(f"""v_mov_b32 v6, 0
    v_mov_b32 v7, 1
    v_mov_b32 v{C+2}, {f32hex(2.0**110)}
    v_pk_add_f32 {v(C,2)}, {v(O[0],2)}, {v(O[0]+2,2)}""")
    for i in range(4, 12, 2): a(f"v_pk_add_f32 {v(C,2)}, {v(C,2)}, {v(O[0]+i,2)}")
    a(f"s_cmp_eq_u32 s{KH}, 0\ns_cbranch_scc1 L_at_c0")
    for i in range(3): a(f"ds_write_b128 v4, {v(O[0]+4*i,4)} offset:{EXC + i*1024}")
    a("s_nop 0")
    for i in range(0, 12, 2): a(f"v_pk_mov_b32 {v(O[0]+i,2)}, {v(O[1]+i,2)}, {v(O[1]+i,2)} op_sel:[0,1]")
    a("s_branch L_at_c1")
    a.label("L_at_c0")
    a("s_nop 1")
    for i in range(3): a(f"ds_write_b128 v4, {v(O[1]+4*i,4)} offset:{EXC + i*1024}")
    a.label("L_at_c1")
    for i in range(0, 12, 2): a(f"v_pk_add_f32 {v(C,2)}, {v(C,2)}, {v(O[1]+i,2)}")
    a(f"""v_add_f32 v{C}, v{C}, v{C+1}
    v_mul_f32 v{C}, {f32hex(2.0**-17)}, v{C}
    v_add_f32 v{C}, abs(v{C}), v{O[0]+12}
    v_add_f32 v{C}, v{C}, v{O[1]+12}
    v_cmp_nlt_f32 vcc, v{C}, v{C+2}""")
    if M0:
        a(f"""v_min_f32 v{C+3}, v{O[0]+12}, v{O[1]+12}
        v_mov_b32 v{C+2}, {f32hex(2.0**-60)}
        v_cmp_lt_f32 s[26:27], v{C+3}, v{C+2}
        s_nop 0
        s_or_b64 vcc, vcc, s[26:27]""")
    a(f"""s_cbranch_vccz L_at_nf
    ds_write_b32 v6, v7 offset:{FLAGW}""")
    a.label("L_at_nf")
    a(f"""s_lshl_b32 s22, s{HW}, 1
    s_add_u32 s22, s22, s{KH}
    s_mul_i32 s22, s22, {2*OG}
    s_add_u32 s23, s22, s{OTAIL}
    s_add_u32 s22, s22, s{OOCT}
    s_waitcnt lgkmcnt(0)""")
    a(f"""s_barrier
    ds_read_b32 v7, v6 offset:{FLAGW}""")
    for i in (2, 0, 1): a(f"ds_read_b128 {v(S[0]+4*i,4)}, v5 offset:{EXC + i*1024}")
    a(f"""s_waitcnt lgkmcnt(2)
    v_readfirstlane_b32 s26, v7""")
    for i in range(8, 12): a(f"v_add_f32 v{O[0]+i}, v{O[0]+i}, v{S[0]+i}")
    a(f"""v_mov_b32 v{S[1]}, v{O[0]+8}
    v_mov_b32 v{S[1]+1}, v{O[0]+8}
    s_cmp_gt_u32 s26, s{MODE}
    s_cbranch_scc1 L_at_fallback
    v_permlane32_swap_b32 v{S[1]}, v{S[1]+1}
    v_rcp_f32 v{S[1]}, v{S[1]+1}
    s_waitcnt lgkmcnt(0)""")
    for i in range(8): a(f"v_add_f32 v{O[0]+i}, v{O[0]+i}, v{S[0]+i}")
    for i in range(12): a(f"v_mul_f32 v{O[0]+i}, v{O[0]+i}, v{S[1]}")
    for i in range(6): a(f"v_cvt_pk_bf16_f32 v{P[0]+i}, v{O[0]+2*i}, v{O[0]+2*i+1}")
    modes = [OSC]
    if '--dbl' in sys.argv: modes = ['sc1', '']
    if '--dbl2' in sys.argv: modes = ['', 'sc1', '']
    if '--osc' in sys.argv: modes = [sys.argv[sys.argv.index('--osc')+1].replace('_', ' ')]
    for md in modes:
        a(f"""buffer_store_dwordx4 {v(P[0],4)}, v{OSA}, s[12:15], s22 offen {md}
        s_mov_b32 exec_hi, 0
        buffer_store_dwordx2 {v(P[0]+4,2)}, v{OST}, s[12:15], s23 offen {md}
        s_mov_b32 exec_hi, -1""")
    stamp(a, 12)
    stamp(a, 51, True)

    def cold():
        a.label("L_at_fc")
        set_flag(a, FCOFF, 6)
        a(f"s_mov_b32 s{FCOFF}, 0\ns_branch L_at_back")
        a.label("L_at_fallback")
        a(f"s_mov_b32 s{MODE}, 1")
        a.label("L_at_refill")
        a("s_waitcnt vmcnt(0) lgkmcnt(0)\ns_barrier")
        attn_reset(a)
        for j in range(3):
            if j == 2: a(f"s_cmp_ge_u32 s{WV}, 4\ns_cbranch_scc1 L_at_f3")
            a(f"s_mov_b32 m0, s{KL[j]}\ns_sub_u32 s22, s{KS[j]}, {TTS_}\nbuffer_load_dwordx4 v{DMV}, s[12:15], s22 offen sc1 lds")
        a.label("L_at_f3")
        a("s_waitcnt vmcnt(0)\ns_branch L_attn")
        a.label("L_at_maxpass")
        MX = [P[0], P[1]]
        for q in range(2):
            a(f"v_cndmask_b32 v{Q1[q]}, 0, v{Q1[q]}, vcc\nv_cndmask_b32 v{Q1[q]+1}, 0, v{Q1[q]+1}, vcc\nv_mov_b32 v{MX[q]}, 0xff800000")
        a.label("L_at_mloop")
        for T in range(4):
            a(J(kr(T, 0)) + "\ns_waitcnt lgkmcnt(0)")
            qk(0, 0); qk(1, 0)
            a("s_nop 7\ns_nop 3")
            for q in range(2): tilemax(a, MX[q], S[q], False)
        a("s_add_u32 s30, s30, 1\ns_cmp_eq_u32 s30, 8\ns_cbranch_scc1 L_at_mdone\ns_barrier")
        for j in range(3):
            if j == 2: a(f"s_cmp_ge_u32 s{WV}, 4\ns_cbranch_scc1 L_at_m3")
            a(f"s_mov_b32 m0, s{KL[j]}\ns_nop 0\nbuffer_load_dwordx4 v{DMV}, s[12:15], s{KS[j]} offen sc1 lds\ns_add_u32 s{KS[j]}, s{KS[j]}, {TTS_}")
        a.label("L_at_m3")
        a("s_waitcnt vmcnt(0)\ns_barrier\ns_branch L_at_mloop")
        a.label("L_at_mdone")
        a(f"""s_lshl_b32 s22, s{WV}, 10
        v_add_u32 v4, s22, v{DMV}
        v_xor_b32 v5, 4096, v4""")
        for q in range(2): halfmax(a, MX[q]); a(f"ds_write_b32 v4, v{MX[q]} offset:{ARING + 2*SLOT + 4*q}")
        a("s_waitcnt lgkmcnt(0)\ns_barrier")
        for q in range(2): a(f"ds_read_b32 v{S[0]+q}, v5 offset:{ARING + 2*SLOT + 4*q}")
        a("s_waitcnt lgkmcnt(0)")
        for q in range(2):
            a(f"v_max_f32 v{MX[q]}, v{MX[q]}, v{S[0]+q}"); set_m(a, q, MX[q])
        a(f"s_mov_b32 s{MODE}, 2\ns_branch L_at_refill")
    return cold

def tail(a):
    ACC = 8
    order = [3, 2, 1, 0]
    tail_setup2(a)
    for i in (7, 6, 5, 4): wo_reads(a, i, i)
    a("s_waitcnt vmcnt(2)")
    poll(a, [8], 4, 136, preloaded=True)
    a(f"""v_lshrrev_b32 v4, 3, v2
    v_and_b32 v5, 7, v2
    v_lshlrev_b32 v5, 4, v5
    v_mul_u32_u24 v4, {RS}, v4
    v_add_u32 v4, v4, v5
    s_mul_i32 s22, s{XCD}, {80*RS}
    s_lshl_b32 s23, s{IDX}, 7
    s_add_u32 s22, s22, s23
    s_mul_i32 s23, s{WV}, {8*RS}
    s_add_u32 s22, s22, s23
    s_add_u32 s22, s22, {WS_YT}
    s_lshl_b32 s23, s{WV}, 10
    s_add_u32 m0, s23, {YSRC}
    s_cmp_ge_u32 s{WV}, 2
    buffer_load_dwordx4 v4, s[12:15], s22 offen sc1 lds
    s_cbranch_scc1 L_t_y1
    s_add_u32 m0, m0, 8192
    s_add_u32 s22, s22, {64*RS}
    buffer_load_dwordx4 v4, s[12:15], s22 offen sc1 lds""")
    a.label("L_t_y1")
    rest = [3, 2, 1, 0, 8]
    for i in rest[:5-LATE]: wo_reads(a, i, i)
    srd(a, 8, P_OUT, 2048*2560)
    for i in range(0, 20, 2): a(f"v_mov_b64 {v(ACC+i,2)}, 0")
    a(f"""v_mov_b32 v5, v{DMV}
    v_lshlrev_b32 v1, 3, v2
    s_mul_i32 s22, s{HW}, 5120
    v_add_u32 v6, s22, v5
    s_mul_i32 s22, s{WV}, 2560
    v_add_u32 v7, s22, v5
    s_mov_b32 s50, 0
    s_mov_b32 s29, 15
    s_add_u32 s27, s{TOS}, 4096""")
    if '--wl' in sys.argv: a("s_waitcnt lgkmcnt(0)")
    stamp(a, 13)
    a.label("L_t_loop")
    for x in order:
        a(f"s_bitcmp0_b32 s29, {x}\ns_cbranch_scc1 L_t_no{x}")
        for e in range(2): a(f"buffer_load_dwordx4 {v(OFR[2*x+e],4)}, v5, s[12:15], s{TOS if x < 2 else 27} offen offset:{((2*x+e)&3)*1024} sc1")
        a(f"buffer_load_dwordx2 {v(OFR[8]+2*x,2)}, v1, s[12:15], s{TTS} offen offset:{x*512} sc1")
        a.label(f"L_t_no{x}")
    a(f"""s_add_u32 s50, s50, 1
    s_cmp_gt_u32 s50, {SPIN}
    s_cselect_b32 s31, 0, -1
    s_mov_b32 s28, s29""")
    if LATE:
        a("s_cmp_lg_u32 s50, 1\ns_cbranch_scc1 L_t_nl")
        for i in rest[5-LATE:]: wo_reads(a, i, i)
        a.label("L_t_nl")
    a("s_waitcnt lgkmcnt(0)")
    for n, x in enumerate(order):
        r0, r1, rt = OFR[2*x], OFR[2*x+1], OFR[8] + 2*x
        a(f"s_bitcmp0_b32 s28, {x}\ns_cbranch_scc1 L_t_co{x}")
        if x > 0:
            a(f"s_and_b32 s22, s28, {(1 << x) - 1}\ns_bcnt1_i32_b32 s22, s22")
            for k in range(x, 0, -1):
                a(f"s_waitcnt vmcnt({3*k})\ns_cmp_eq_u32 s22, {k}\ns_cbranch_scc1 L_t_w{x}")
        a("s_waitcnt vmcnt(0)")
        a.label(f"L_t_w{x}")
        a(f"""v_max3_u32 v4, v{r0}, v{r0+1}, v{r0+2}
        v_max3_u32 v4, v4, v{r0+3}, v{r1}
        v_max3_u32 v4, v4, v{r1+1}, v{r1+2}
        v_max3_u32 v4, v4, v{r1+3}, v{rt}
        v_max_u32 v4, v4, v{rt+1}
        v_and_b32 v4, s31, v4
        v_cmp_eq_u32 vcc, -1, v4
        s_cbranch_vccnz L_t_co{x}
        s_bitset0_b32 s29, {x}""")
        for m in range(5): a(m16(ACC+4*m, WFR[2*x+1]+4*m, r1, ACC+4*m))
        if x == 3: wo_reads(a, 9, 7)
        for m in range(5): a(m16(ACC+4*m, WFR[2*x]+4*m, r0, ACC+4*m))
        a.label(f"L_t_co{x}")
    a("s_cmp_lg_u32 s29, 0\ns_cbranch_scc1 L_t_loop")
    for m in range(5): a(m16(ACC+4*m, WFR[8]+4*m, OFR[8], ACC+4*m))
    a("s_waitcnt lgkmcnt(0)")
    for m in range(5): a(m16(ACC+4*m, WFR[7]+4*m, OFR[9], ACC+4*m))
    stamp(a, 15)
    stamp(a, 52, True)
    if PROF: a(f"v_writelane_b32 v{PV}, s50, 29")
    T = 128
    a(f"""s_cmp_eq_u32 s{KH}, 0
    s_cbranch_scc1 L_t_r0""")
    a("s_nop 5")
    for m in range(5): a(f"ds_write_b128 v6, {v(ACC+4*m,4)} offset:{PART + m*1024}")
    a("s_waitcnt lgkmcnt(0)\ns_barrier")
    for m in range(5): a(f"ds_read_b64_tr_b16 {v(T+2*m,2)}, v253 offset:{YSRC + m*2048}")
    for m in range(5): a(f"s_waitcnt lgkmcnt(4)\nds_write_b64 v{FIW}, {v(T+2*m,2)} offset:{OIMG + 32*m}")
    a("s_branch L_t_st")
    a.label("L_t_r0")
    a("s_barrier")
    for m in range(5): a(f"ds_read_b128 {v(T+4*m,4)}, v6 offset:{PART + m*1024}")
    for m in range(5):
        a(f"s_waitcnt lgkmcnt(4)")
        for i in range(0, 4, 2): a(f"v_pk_add_f32 {v(ACC+4*m+i,2)}, {v(ACC+4*m+i,2)}, {v(T+4*m+i,2)}")
        a(f"v_cvt_pk_bf16_f32 v{ACC+4*m}, v{ACC+4*m}, v{ACC+4*m+1}\nv_cvt_pk_bf16_f32 v{ACC+4*m+1}, v{ACC+4*m+2}, v{ACC+4*m+3}")
        a(f"ds_write_b64 v{FIW}, {v(ACC+4*m,2)} offset:{OIMG + 32*m}")
    a.label("L_t_st")
    for j in range(3): a(f"ds_read_b128 {v(T+24+4*j,4)}, v7 offset:{OIMG + 960*j}")
    a(f"s_mov_b32 exec_hi, 0x0fffffff\ns_add_u32 s22, s{TFS}, {6*2560}\ns_add_u32 s23, s{TFS}, {12*2560}")
    for j in range(3):
        if j == 2: a("s_mov_b32 exec_hi, 0xff")
        a(f"s_waitcnt lgkmcnt({2-j})\nbuffer_store_dwordx4 {v(T+24+4*j,4)}, v250, s[8:11], s{[TFS, 22, 23][j]} offen {OUTSC}")
    a("s_mov_b32 exec_hi, -1")

def main(path):
    a = Asm()
    nm = NAME + "_kernel"
    a(f".globl {nm}\n.p2align 8\n.type {nm},@function")
    a.label(nm)
    a(f"""s_cmp_ge_u32 s2, 256
    s_cbranch_scc1 L_end
    s_load_dwordx16 s[64:79], s[0:1], 0
    s_load_dwordx8 s[80:87], s[0:1], 64
    s_load_dwordx2 s[88:89], s[0:1], 96
    v_lshrrev_b32 v1, 6, v0
    v_and_b32 v2, 63, v0
    v_readfirstlane_b32 s{WV}, v1
    s_and_b32 s{XCD}, s2, 7
    s_lshr_b32 s{IDX}, s2, 3
    s_cmp_lg_u32 s{WV}, 7
    s_cbranch_scc1 L_nopf
    s_cmp_ge_u32 s{IDX}, (L_code_end-{nm})/1024
    s_cbranch_scc1 L_nopf
    s_getpc_b64 s[22:23]""")
    a.label("L_pc")
    a(f"""s_lshl_b32 s24, s{IDX}, 10
    s_sub_u32 s22, s22, L_pc-{nm}
    s_subb_u32 s23, s23, 0
    v_lshl_add_u32 v4, v2, 4, s24
    v_mov_b32 v5, s23
    v_add_co_u32 v4, vcc, s22, v4
    s_nop 1
    v_addc_co_u32 v5, vcc, 0, v5, vcc
    global_load_dwordx4 v[220:223], v[4:5], off""")
    a.label("L_nopf")
    if PROF:
        a(f"v_mov_b32 v{PV}, 0\ns_memrealtime s[90:91]\ns_memtime s[92:93]")
    a(f"""s_and_b32 s{HW}, s{WV}, 3
    s_lshr_b32 s{KH}, s{WV}, 2
    s_mul_i32 s{CHN}, s{XCD}, 20
    s_add_u32 s{CHN}, s{CHN}, s{IDX}
    s_lshl_b32 s{CHN}, s{CHN}, 2
    s_add_u32 s{CHN}, s{CHN}, s{HW}
    s_lshl_b32 s22, s{CHN}, 8
    v_lshl_add_u32 v6, v2, 2, s22
    s_lshl_b32 s22, s{CHN}, 1
    v_mov_b32 v7, s22
    v_lshlrev_b32 v{DMV}, 4, v2
    s_mov_b32 s{FCOFF}, 0
    s_mov_b32 s{MODE}, 0""")
    a(f"""s_cmp_ge_u32 s{IDX}, 20
    s_cbranch_scc1 L_e_np
    s_waitcnt lgkmcnt(0)""")
    for i in range(4): a(f"global_load_dword v{PRM+i}, v6, s[{P_LA+2*i}:{P_LA+2*i+1}]")
    a(f"""global_load_ushort v{PRM+4}, v7, s[{P_DT}:{P_DT+1}]
    global_load_ushort v{VD}, v7, s[{P_D}:{P_D+1}]""")
    a.label("L_e_np")
    loader_math(a)
    a("s_waitcnt lgkmcnt(0)")
    if PROF: a(f"v_writelane_b32 v{PV}, s90, 0\nv_writelane_b32 v{PV}, s92, 1")
    srd(a, 60, P_X, 2048*1280)
    srd(a, 8, P_W, 640*3840)
    srd(a, 12, P_WS, WS_SIZE)
    if TLB:
        a(f"s_cmp_lg_u32 s{WV}, 6\ns_cbranch_scc1 L_notlb")
        srd(a, 4, P_OUT, 2048*2560)
        if TLB == 1:
            a(f"""v_lshlrev_b32 v3, 20, v2
            s_mov_b64 exec, 0x3ffff
            buffer_load_dword v220, v3, s[12:15], 0 offen
            s_mov_b64 exec, 0x1f
            buffer_load_dword v221, v3, s[4:7], 0 offen""")
        else:
            a(f"""s_mul_i32 s22, s{IDX}, {9*65536}
            v_lshlrev_b32 v3, 16, v2
            s_mov_b64 exec, 0x1ff
            buffer_load_dword v220, v3, s[12:15], s22 offen
            s_mul_i32 s22, s{IDX}, {3*65536}
            s_mov_b64 exec, 7
            buffer_load_dword v221, v3, s[4:7], s22 offen""")
        srd(a, 4, P_WO, 640*1280)
        a(f"""v_lshlrev_b32 v3, 16, v2
        s_mov_b64 exec, 0x1fff
        buffer_load_dword v222, v3, s[4:7], 0 offen
        s_mov_b64 exec, -1""")
        a.label("L_notlb")
    a(f"""s_cmp_ge_u32 s{IDX}, 30
    s_cbranch_scc1 L_e_tr
    s_cmp_eq_u32 s{KH}, 1
    s_cbranch_scc1 L_e_h
    s_cmp_lt_u32 s{IDX}, 20
    s_cbranch_scc1 L_g_pro
    s_barrier""")
    a.label("L_g_pro")
    stamp(a, 40)
    issue(a)
    stamp(a, 41)
    a(f"s_setprio 2\ns_cmp_lt_u32 s{IDX}, 20\ns_cbranch_scc1 L_kgen\ns_branch L_gemm")
    a.label("L_e_tr")
    a(f"""s_lshl_b32 s26, s{XCD}, 1
    s_add_u32 s26, s26, s{IDX}
    s_sub_u32 s26, s26, 30
    s_lshl_b32 s26, s26, 3
    s_add_u32 s26, s26, s{WV}
    s_lshl_b32 s27, s{WV}, 13
    s_add_u32 s27, s27, 16384
    s_branch L_e_ut""")
    a.label("L_e_h")
    a(f"""s_or_b32 s22, s2, s{HW}
    s_cmp_lg_u32 s22, 0
    s_cbranch_scc1 L_nn
    s_memrealtime s[22:23]
    v_mov_b32 v3, 0
    s_waitcnt lgkmcnt(0)
    s_or_b32 s22, s22, 1
    v_mov_b32 v4, s22
    s_mov_b64 exec, 1
    global_store_dword v3, v4, s[{P_DBG}:{P_DBG+1}] sc1
    s_mov_b64 exec, -1""")
    a.label("L_nn")
    a(f"""s_mul_i32 s26, s{XCD}, 10
    s_add_u32 s26, s26, s{IDX}
    s_mul_i32 s22, s{HW}, 80
    s_add_u32 s26, s26, s22
    s_add_u32 s26, s26, {128 - 20}
    s_lshl_b32 s27, s{HW}, 13
    s_add_u32 s27, s27, {SCR}
    s_cmp_lt_u32 s{IDX}, 20
    s_cbranch_scc1 L_helper
    s_cmp_ge_u32 s26, 320
    s_cbranch_scc1 L_e_eb""")
    a.label("L_e_ut")
    utile_issue(a)
    a.label("L_e_eb")
    a("s_barrier")
    a(f"s_cmp_ge_u32 s{IDX}, 30\ns_cbranch_scc1 L_utile")
    a.label("L_helper")
    helper(a)
    a.label("L_g_kb")
    a("s_setprio 0")
    skip(a)
    issue(a)
    a(f"v_add_u32 v6, s28, v{DMV}")
    for i in range(4): a(f"ds_write_b128 v6, {v(KACC+4*i,4)} offset:{1024*i}")
    a.label("L_gemm")
    attn_ids(a)
    gemm(a)
    a.label("L_w1")
    window1(a)
    a.label("L_attn")
    cold = attention(a)
    tail(a)
    if PROF:
        a("s_waitcnt vmcnt(0)")
        stamp(a, 16); stamp(a, 17, True)
        a(f"""s_lshl_b32 s22, s2, 3
        s_add_u32 s22, s22, s{WV}
        s_lshl_b32 s22, s22, 8
        s_add_u32 s22, s22, {WS_PROF}
        v_lshlrev_b32 v3, 2, v2
        buffer_store_dword v{PV}, v3, s[12:15], s22 offen""")
    a.label("L_end")
    a("s_endpgm")
    a.label("L_tr_back")
    arr_init(a)
    attn_ids(a)
    o_maps(a)
    a(f"s_cmp_ge_u32 s{WV}, 4\ns_cbranch_scc1 L_tr_b2")
    clear_o(a)
    a.label("L_tr_b2")
    a(f"s_waitcnt lgkmcnt(0)\ns_barrier\ns_cmp_lt_u32 s{WV}, 4\ns_cbranch_scc1 L_w1\ns_branch L_h_ids")
    cold()
    a(f".fill (1024 - ((. - {nm}) % 1024))/4, 4, 0xbf810000")
    a.label("L_code_end")
    hdr = open("cdna_kernels/" + NAME + ".s.ref").read().split("\n")
    head = [l for l in hdr[:15] if l.startswith(";") and "@launch" not in l and "Override" not in l and "grid=ceil" not in l]
    txt = "\n".join(head) + "\n; @launch grid=(256,1,1) block=(512,1,1) lds=163840\n"
    txt += '.amdgcn_target "amdgcn-amd-amdhsa--gfx950"\n.text\n' + a.text()
    txt += f""".section .rodata,"a"
.p2align 6
.amdhsa_kernel {nm}
  .amdhsa_next_free_vgpr 256
  .amdhsa_next_free_sgpr 102
  .amdhsa_accum_offset 256
  .amdhsa_group_segment_fixed_size 0
  .amdhsa_kernarg_size 104
  .amdhsa_user_sgpr_count 2
  .amdhsa_user_sgpr_kernarg_segment_ptr 1
  .amdhsa_system_sgpr_workgroup_id_x 1
.end_amdhsa_kernel
"""
    open(path, "w").write(txt)
    errs = check_hazards(a.text())
    for e in errs[:30]: print("HAZARD", e)
    print(f"{path}: {len(a.lines)} lines, {len(errs)} hazards")

if __name__ == "__main__":
    main([x for x in sys.argv[1:] if x.endswith(".s")][0])
```

```python
import math, sys
from asmlib import *

NAME = "concat_heads__ssm_conv_s4d__mha_block__prompt"
WS_QKV = 0
WS_O = 0x800000
WS_UT = 0xB00000
WS_YT = 0xE00000
WS_FA = 0x1100000
WS_FB = 0x1110000
WS_FC = 0x1120000
WS_PROF = 0x1300000
WS_SIZE = 0x1400000
TTS_ = 480*1024
OG = 20480
RS = 4352
LOG2E = math.log2(math.e)
QSCALE = LOG2E / math.sqrt(20.0)
PROF = "--prof" in sys.argv
M0 = "--m0" in sys.argv
SPIN = 0x40000
LATE = int(sys.argv[sys.argv.index('--late')+1]) if '--late' in sys.argv else 0
PSL = int(sys.argv[sys.argv.index('--psl')+1]) if '--psl' in sys.argv else 0
PRE = int(sys.argv[sys.argv.index('--pre')+1]) if '--pre' in sys.argv else 4
PRE2 = int(sys.argv[sys.argv.index('--pre2')+1]) if '--pre2' in sys.argv else 0
PACKA = '--nopacka' not in sys.argv
ALN = int(sys.argv[sys.argv.index('--al')+1]) if '--al' in sys.argv else 0
ALP = int(sys.argv[sys.argv.index('--alp')+1]) if '--alp' in sys.argv else 6
FILL1 = int(sys.argv[sys.argv.index('--fill')+1]) if '--fill' in sys.argv else 0
OUTSC = sys.argv[sys.argv.index('--outsc')+1].replace('_', ' ') if '--outsc' in sys.argv else ''
TLB = int(sys.argv[sys.argv.index('--tlb')+1]) if '--tlb' in sys.argv else 0
POLLC = int(sys.argv[sys.argv.index('--pollc')+1]) if '--pollc' in sys.argv else 5
UP = int(sys.argv[sys.argv.index('--up')+1]) if '--up' in sys.argv else 1
UNT = 'nt' if '--unt' in sys.argv else ''
X16 = '--x16' in sys.argv
PRIO = [int(x) for x in sys.argv[sys.argv.index('--prio')+1].split(',')] if '--prio' in sys.argv else [0, 16, 26, 30]
LOC = '--loc' in sys.argv
OSC = '' if '--plainO' in sys.argv else 'sc1'
SPEC = int(sys.argv[sys.argv.index('--spec')+1]) if '--spec' in sys.argv else 1
XNT = "nt" if "--xnt" in sys.argv else ""
WNT = "nt" if "--wnt" in sys.argv else ""
J = "\n".join

WV, XCD, IDX, NONCE = 16, 17, 18, 19
TT, CT = 20, 21
FCOFF, HEAD5, QB, OOFF = 36, 37, 38, 39
KS = [40, 41, 42]; KL = [44, 45, 46]
MODE, KH, KHOFF = 47, 48, 49
HW, CHN = 51, 52
OOCT, OTAIL = 54, 55
XS, WSO, LB = 56, 57, 99
TB = 58
P_U, P_LA, P_AI, P_CR, P_CI, P_DT, P_D, P_X, P_W, P_WO, P_OUT, P_DBG, P_WS = range(64, 90, 2)
WOS, WOL = 94, 95
MK, MK2, MC = 33+1, 35, 100
MW = [101, 25]
PV = 255
DX, DW = 240, 244
PL1, PL2 = 252, 253
DMV, KA, K4, VA, MSK, MS4, WOV, QA4, QA0 = range(224, 233)

RING = 32768
SCR = 3*RING
UST = 4640
KOFF = 4*UST
CHA = KOFF + 4224
CVB = 65536
PST = 2048 + 32
SLOT = 20992
FLAGW = 0
CONSTP = 64
ARING = 1280
QLDS = ARING + 2*SLOT
WOB = 163840 - 107*960
EXC = ARING
YSRC = WOB - 10240
PART = 25856
KSC = SCR
CNT = 129536
ARRW = CNT
OIMG = ARING
assert CVB + 4*CHA <= 163840 and ARING + 3*SLOT <= 65536 and ARING + 3*SLOT <= WOB + 11*960
assert EXC + 24576 <= PART and PART + 20480 <= YSRC and YSRC >= ARING + 2*SLOT and EXC + 24576 <= ARING + SLOT + 5*PST and OIMG + 20480 <= PART

def srd(a, d, lo, size):
    a(f"s_mov_b32 s{d}, s{lo}\ns_and_b32 s{d+1}, s{lo+1}, 0xffff\ns_mov_b32 s{d+2}, {size}\ns_mov_b32 s{d+3}, 0x20000")
def m32(d, x, y, c=None):
    return f"v_mfma_f32_32x32x16_bf16 {v(d,16)}, {v(x,4)}, {v(y,4)}, {v(c,16) if c is not None else 0}"
def m32x8(d, x, y, c):
    if X16: return f"v_mfma_f32_32x32x16_bf16 {v(d,16)}, {v(x-2,4)}, {v(y-2,4)}, {v(c,16)}"
    return f"v_mfma_f32_32x32x8_bf16 {v(d,16)}, {v(x,2)}, {v(y,2)}, {v(c,16)}"
def m16(d, x, y, c=None):
    return f"v_mfma_f32_16x16x32_bf16 {v(d,4)}, {v(x,4)}, {v(y,4)}, {v(c,4) if c is not None else 0}"
LITE = "--lite" in sys.argv
def stamp(a, i, real=False):
    if LITE and i not in (50, 51, 53, 17): return
    if PROF: a(f"s_mem{'real' if real else ''}time s[92:93]\ns_waitcnt lgkmcnt(0)\nv_writelane_b32 v{PV}, s92, {i}")

def diag_wait(a, key):
    if key not in sys.argv: return
    x = int(sys.argv[sys.argv.index(key)+1]) * 100
    l = a.newlabel("L_dg")
    a.label(l)
    a(f"""s_memrealtime s[90:91]
    s_waitcnt lgkmcnt(0)
    s_sub_u32 s90, s90, s{NONCE}
    s_cmp_lt_u32 s90, {x}
    s_cbranch_scc1 {l}""")

def get_nonce(a):
    l = a.newlabel("L_nonce"); e = a.newlabel("L_nonce_e")
    a(f"""s_load_dword s{NONCE}, s[{P_DBG}:{P_DBG+1}], 0
    s_mov_b32 s50, 0
    v_mov_b32 v222, 0
    s_waitcnt lgkmcnt(0)""")
    a.label(l)
    a(f"""s_cmp_lg_u32 s{NONCE}, 0
    s_cbranch_scc1 {e}
    global_load_dword v223, v222, s[{P_DBG}:{P_DBG+1}] sc1
    s_add_u32 s50, s50, 1
    s_waitcnt vmcnt(0)
    v_readfirstlane_b32 s{NONCE}, v223
    s_cmp_lt_u32 s50, {SPIN}
    s_cbranch_scc1 {l}""")
    a.label(e)

def poll(a, addrs, width, vt, preloaded=False, sleep=0):
    l = a.newlabel("L_poll"); e = a.newlabel("L_poll_e")
    sfx = {1: "dword", 4: "dwordx4"}[width]
    a("s_mov_b32 s50, 0")
    if preloaded: a(f"s_branch {l}_c")
    a.label(l)
    for k, ad in enumerate(addrs): a(f"buffer_load_{sfx} {v(vt+4*k,width)}, v{ad}, s[12:15], 0 offen sc1")
    a("s_add_u32 s50, s50, 1\ns_waitcnt vmcnt(0)")
    a.label(l + "_c")
    regs = [vt+4*k+j for k in range(len(addrs)) for j in range(width)]
    for r in regs: a(f"v_xor_b32 v{r}, s{NONCE}, v{r}")
    for r in regs[1:]: a(f"v_or_b32 v{regs[0]}, v{regs[0]}, v{r}")
    a(f"""v_cmp_ne_u32 vcc, 0, v{regs[0]}
    s_cmp_gt_u32 s50, {SPIN}
    s_cbranch_scc1 {e}""")
    if sleep: a(f"s_cbranch_vccz {e}\ns_sleep {sleep}\ns_branch {l}")
    else: a(f"s_cbranch_vccnz {l}")
    a.label(e)

def set_flag(a, soff, vt):
    a(f"""v_mov_b32 v{vt}, 0
    v_mov_b32 v{vt+1}, s{NONCE}
    s_mov_b64 exec, 1
    buffer_store_dword v{vt+1}, v{vt}, s[12:15], s{soff} offen sc1
    s_mov_b64 exec, -1""")

def attn_ids(a):
    if LOC: a(f"s_mov_b32 s{HEAD5}, s{IDX}\ns_mov_b32 s{QB}, s{XCD}")
    else: a(f"""s_lshl_b32 s{HEAD5}, s{XCD}, 2
    s_lshr_b32 s22, s{IDX}, 3
    s_add_u32 s{HEAD5}, s{HEAD5}, s22
    s_and_b32 s{QB}, s{IDX}, 7""")
    a(f"""s_mul_i32 s22, s{QB}, {16*OG}
    s_add_u32 s22, s22, {WS_O}
    s_lshl_b32 s{OOCT}, s{HEAD5}, 9
    s_add_u32 s{OOCT}, s{OOCT}, s22
    s_lshl_b32 s{OTAIL}, s{HEAD5}, 7
    s_add_u32 s{OTAIL}, s{OTAIL}, s22
    s_add_u32 s{OTAIL}, s{OTAIL}, 16384
    s_mul_i32 s{HEAD5}, s{HEAD5}, 5
    s_lshl_b32 s{OOFF}, s{HEAD5}, 10
    s_mul_i32 s22, s{QB}, {2*TTS_}
    s_add_u32 s{OOFF}, s{OOFF}, s22""")

def clear_o(a):
    a(f"""v_lshrrev_b32 v140, 5, v2
    v_mul_u32_u24 v140, {2*OG}, v140
    v_add_u32 v140, v140, v{OST}
    v_mov_b32 v136, -1
    v_mov_b32 v137, -1
    v_mov_b32 v138, -1
    v_mov_b32 v139, -1
    s_mul_i32 s24, s{HW}, {4*OG}
    s_add_u32 s22, s24, s{OOCT}
    s_add_u32 s23, s22, {2*OG}
    s_add_u32 s24, s24, s{OTAIL}
    buffer_store_dwordx4 v[136:139], v{OSA}, s[12:15], s22 offen sc1
    buffer_store_dwordx4 v[136:139], v{OSA}, s[12:15], s23 offen sc1
    buffer_store_dwordx2 v[136:137], v140, s[12:15], s24 offen sc1""")

def arr_init(a):
    a(f"v_mov_b32 v220, {CNT}\nv_mov_b32 v222, 0\nv_mov_b32 v223, 0\nds_write_b64 v220, v[222:223]")

def utile_issue(a):
    srd(a, 4, P_U, 2048*1280)
    a(f"""v_lshlrev_b32 v4, 4, v9
    v_mul_u32_u24 v3, 1280, v8
    v_add_u32 v3, v3, v4
    s_mov_b32 m0, s27
    s_lshr_b32 s23, s26, 5
    s_and_b32 s28, s26, 31
    s_mul_i32 s24, s28, {64*1280}
    s_lshl_b32 s22, s23, 7
    s_add_u32 s24, s24, s22
    s_mov_b32 s30, 0""")
    a.label("L_ut_i")
    a(f"""buffer_load_dwordx4 v3, s[4:7], s24 offen {UNT} lds
    s_add_u32 m0, m0, 1024
    s_add_u32 s24, s24, {8*1280}
    s_add_u32 s30, s30, 1
    s_cmp_lt_u32 s30, 8
    s_cbranch_scc1 L_ut_i""")
def utile(a):
    A0, A1, A2, A3, D = 8, 9, 10, 11, 12
    a(f"""s_lshr_b32 s23, s26, 5
    v_xor_b32 v{A1}, v{A1}, v{A0}
    v_lshlrev_b32 v{A1}, 4, v{A1}
    v_mul_u32_u24 v{A3}, {RS}, v{A0}
    v_add_u32 v{A3}, v{A3}, v{A1}
    v_lshlrev_b32 v{A0}, 4, v2
    v_add_u32 v{A0}, s27, v{A0}
    v_bfe_u32 v{A1}, v2, 2, 2
    v_lshlrev_b32 v{A1}, 7, v{A1}
    v_lshrrev_b32 v{A2}, 4, v2
    v_lshl_add_u32 v{A1}, v{A2}, 5, v{A1}
    v_and_b32 v{A2}, 3, v2
    v_lshl_add_u32 v{A1}, v{A2}, 3, v{A1}
    v_add_u32 v{A1}, s27, v{A1}
    v_and_b32 v{A2}, 7, v2
    v_lshlrev_b32 v{A2}, 4, v{A2}
    v_lshl_add_u32 v{A2}, v2, 7, v{A2}
    v_add_u32 v{A2}, s27, v{A2}
    s_mul_i32 s23, s23, {64*RS}
    s_lshl_b32 s24, s28, 7
    s_add_u32 s24, s24, s23
    s_add_u32 s24, s24, {WS_UT}
    s_lshl_b32 s29, s26, {2 if PACKA else 7}
    s_add_u32 s29, s29, {WS_FA}""")
    stamp(a, 27)
    a("s_waitcnt vmcnt(0)")
    stamp(a, 28)
    for i in range(16): a(f"ds_read_b64_tr_b16 {v(D+2*i,2)}, v{A1} offset:{i*512}")
    a("s_waitcnt lgkmcnt(0)")
    for i in range(8): a(f"v_xor_b32 v4, {16*i}, v{A2}\nds_write_b128 v4, {v(D+4*i,4)}")
    a("s_waitcnt lgkmcnt(0)")
    for i in range(8): a(f"ds_read_b128 {v(D+4*i,4)}, v{A0} offset:{i*1024}")
    for i in range(8):
        a(f"s_waitcnt lgkmcnt({7-i})\nbuffer_store_dwordx4 {v(D+4*i,4)}, v{A3}, s[12:15], s24 offen sc1\ns_add_u32 s24, s24, {8*RS}")
    stamp(a, 2)
    a(f"s_mov_b32 s33, 2\ns_cmp_lt_u32 s{IDX}, 30\ns_cbranch_scc1 L_h_ld0")
    get_nonce(a)
    a("s_waitcnt vmcnt(0)")
    set_flag(a, 29, 4)
    stamp(a, 3)

def next_slot(a, cur, tmp):
    a(f"""s_add_u32 s{cur}, s{cur}, {RING}
    s_lshr_b32 s{tmp}, s{cur}, 15
    s_cmp_eq_u32 s{tmp}, 3
    s_cselect_b32 s{tmp}, {RING}, 0
    s_add_u32 s{cur}, s{cur}, s{tmp}
    s_cmp_ge_u32 s{cur}, {5*RING}
    s_cselect_b32 s{tmp}, {5*RING}, 0
    s_sub_u32 s{cur}, s{cur}, s{tmp}""")

ORD = sys.argv[sys.argv.index('--ord')+1] if '--ord' in sys.argv else 'pair'
def orders():
    if ORD == 'none': return [list(range(10))]*4
    if ORD == 'pair': return [[c ^ (t & 1) for c in range(10)] for t in range(4)]
    if ORD == 'quad': return [[(c ^ t) if c < 8 else (c ^ (t & 1)) for c in range(10)] for t in range(4)]
    if ORD == 'half': return [[(c + 5*(t & 1)) % 10 for c in range(10)] for t in range(4)]
    if ORD == 'rot': return [[(c + (0, 3, 5, 8)[t]) % 10 for c in range(10)] for t in range(4)]
    if ORD == 'tri': return [[(c//3*3 + (c + t) % 3) if c < 9 else 9 for c in range(10)] for t in (0, 1, 2, 1)]
def loader_math(a):
    a(f"""s_lshr_b32 s{TT}, s{XCD}, 1
    s_lshl_b32 s{TT}, s{TT}, 2
    s_and_b32 s24, s{XCD}, 1
    s_and_b32 s22, s{IDX}, 3
    s_lshr_b32 s23, s{IDX}, 2
    s_lshl_b32 s{CT}, s24, 3
    s_add_u32 s{CT}, s{CT}, s23
    s_lshl_b32 s24, s24, 1
    s_cmp_ge_u32 s{IDX}, 28
    s_cselect_b32 s{CT}, 7, s{CT}
    s_cselect_b32 s24, s24, 0
    s_add_u32 s22, s22, s24
    s_add_u32 s{TT}, s{TT}, s22
    s_add_u32 s22, s{TT}, s{CT}
    s_and_b32 s22, s22, 3""")
    tb = [sum(c << (4*i) for i, c in enumerate(o)) for o in orders()]
    a(f"s_mov_b32 s{TB}, {tb[0] & 0xffffffff}\ns_mov_b32 s{TB+1}, {tb[0] >> 32}")
    for t in range(1, 4):
        if tb[t] != tb[0]: a(f"s_cmp_eq_u32 s22, {t}\ns_cselect_b32 s{TB}, {tb[t] & 0xffffffff}, s{TB}\ns_cselect_b32 s{TB+1}, {tb[t] >> 32}, s{TB+1}")
    a(f"""v_lshrrev_b32 v8, 3, v2
    v_and_b32 v9, 7, v2
    v_lshrrev_b32 v5, 1, v8
    s_and_b32 s22, s{HW}, 1
    s_lshl_b32 s22, s22, 2
    v_add_u32 v5, s22, v5
    v_xor_b32 v4, v9, v5
    v_lshlrev_b32 v4, 4, v4
    v_mul_u32_u24 v3, 2560, v8
    v_add_u32 v{DX}, v3, v4
    s_lshl_b32 s{XS}, s{TT}, 3
    s_add_u32 s{XS}, s{XS}, s{HW}
    s_mul_i32 s{XS}, s{XS}, {16*1280}
    v_lshrrev_b32 v3, 4, v2
    v_bfe_u32 v4, v2, 2, 2
    v_xor_b32 v4, v4, v3
    v_lshlrev_b32 v4, 6, v4
    v_and_b32 v5, 3, v2
    v_lshlrev_b32 v5, 4, v5
    v_mul_u32_u24 v3, 3840, v3
    v_add3_u32 v{DW}, v3, v4, v5
    s_lshl_b32 s{WSO}, s{CT}, 8
    s_mul_i32 s22, s{HW}, {4*3840}
    s_add_u32 s{WSO}, s{WSO}, s22
    s_lshl_b32 s{LB}, s{HW}, 10
    s_lshl_b32 s22, s{KH}, 15
    s_add_u32 s{LB}, s{LB}, s22
    s_lshl_b32 s22, s{KH}, 2
    s_lshr_b64 s[{TB}:{TB+1}], s[{TB}:{TB+1}], s22""")
    for i in range(1, 4):
        a(f"v_add_u32 v{DX+i}, {(64*(i>>1) + (i&1))*1280}, v{DX}\nv_add_u32 v{DW+i}, {i*16*3840}, v{DW}")
def dma_prep():
    return f"""s_and_b32 s43, s{TB}, 15
    s_lshr_b64 s[{TB}:{TB+1}], s[{TB}:{TB+1}], 4
    s_lshl_b32 s100, s43, 7
    s_add_u32 s100, s100, s{XS}
    s_mul_i32 s101, s43, {64*3840}
    s_add_u32 s101, s101, s{WSO}"""
def issue(a, fill=None):
    a(dma_prep())
    per = (len(fill) + 7) // 8 if fill else 0
    for k in range(8):
        i = k >> 1
        a(f"s_add_u32 m0, s{LB}, {i*4096 + (16384 if k & 1 else 0)}\ns_nop 0")
        a(f"buffer_load_dwordx4 v{(DW if k & 1 else DX)+i}, s[{'8:11' if k & 1 else '60:63'}], s{101 if k & 1 else 100} offen lds")
        if fill:
            n = min(per, len(fill))
            while n < len(fill) and (fill[n].startswith(("s_cselect", "s_addc"))): n += 1
            a(J(fill[:n])); del fill[:n]
    assert not fill
    next_slot(a, LB, 43)
def skip(a):
    a(f"s_lshr_b64 s[{TB}:{TB+1}], s[{TB}:{TB+1}], 4")
    next_slot(a, LB, 22)
def lds_wait(a, va, off, vt, sleep=True):
    l = a.newlabel("L_lw"); e = a.newlabel("L_le")
    a.label(l)
    a(f"""ds_read_b32 v{vt}, v{va} offset:{off}
    s_waitcnt lgkmcnt(0)
    v_readfirstlane_b32 s22, v{vt}
    s_cmp_ge_u32 s22, 4
    s_cbranch_scc1 {e}""")
    if sleep: a("s_sleep 2")
    a(f"s_branch {l}")
    a.label(e)

def main_pre(a):
    def wg_of(tt, ct, dst):
        a(f"""v_cmp_eq_u32 vcc, 7, v{ct}
        v_bfe_u32 v10, v{tt}, 1, 1
        v_lshrrev_b32 v11, 3, v{ct}
        v_cndmask_b32 v10, v11, v10, vcc
        v_and_b32 v11, 3, v{tt}
        v_and_b32 v12, 1, v{tt}
        v_cndmask_b32 v11, v11, v12, vcc
        v_and_b32 v12, 7, v{ct}
        v_lshl_add_u32 v11, v12, 2, v11
        v_lshl_add_u32 v10, v11, 3, v10
        v_lshrrev_b32 v11, 2, v{tt}
        v_lshl_add_u32 v{dst}, v11, 1, v10""")
    a(f"""v_and_b32 v3, 15, v2
    v_lshrrev_b32 v4, 5, v2
    v_mul_u32_u24 v4, 160, v4
    v_bfe_u32 v5, v2, 4, 1
    v_lshl_add_u32 v4, v5, 2, v4
    s_add_u32 s22, s{HEAD5}, 160
    v_add_u32 v4, s22, v4
    v_lshrrev_b32 v4, 5, v4""")
    wg_of(3, 4, 8)
    a(f"""v_lshlrev_b32 v8, 7, v8
    v_add_u32 v{PL1}, {WS_FB}, v8
    v_and_b32 v3, 1, v2
    s_lshl_b32 s22, s{QB}, 1
    v_add_u32 v3, s22, v3
    v_bfe_u32 v4, v2, 1, 1
    v_lshlrev_b32 v4, 2, v4
    v_add_u32 v4, s{HEAD5}, v4
    v_lshrrev_b32 v4, 5, v4""")
    wg_of(3, 4, 9)
    if LOC: a(f"v_lshl_add_u32 v3, v2, 3, s{XCD}")
    else: a(f"""v_bfe_u32 v3, v2, 3, 2
    v_lshlrev_b32 v3, 6, v3
    v_and_b32 v4, 7, v2
    s_lshl_b32 s22, s{XCD}, 3
    v_add3_u32 v3, v3, v4, s22""")
    a(f"""v_cmp_gt_u32 vcc, 32, v2
    s_nop 1
    v_cndmask_b32 v9, v9, v3, vcc
    v_lshlrev_b32 v9, 7, v9
    v_add_u32 v{PL2}, {WS_FB}, v9""")

def gemm(a):
    XA = [10, 11, 12, 13]; WA = [14, 15]
    FX = [[16, 20], [32, 36]]; FW = [[24, 28], [40, 44]]
    ACC = 48
    a(f"""s_and_b32 s34, s{WV}, 1
    s_lshr_b32 s35, s{WV}, 1
    v_and_b32 v3, 31, v2
    v_lshrrev_b32 v4, 5, v2
    v_bfe_u32 v5, v3, 1, 3
    v_xor_b32 v5, v5, v4
    v_lshlrev_b32 v5, 4, v5
    v_lshlrev_b32 v6, 7, v3
    s_lshl_b32 s22, s34, 13
    v_add3_u32 v{XA[0]}, v5, v6, s22
    v_xor_b32 v{XA[1]}, 32, v{XA[0]}
    v_xor_b32 v{XA[2]}, 64, v{XA[0]}
    v_xor_b32 v{XA[3]}, 96, v{XA[0]}
    v_bfe_u32 v5, v2, 2, 2
    s_lshl_b32 s22, s35, 1
    v_xor_b32 v6, s22, v5
    v_lshlrev_b32 v6, 6, v6
    v_lshlrev_b32 v7, 3, v4
    v_add_u32 v7, v7, v5
    v_lshlrev_b32 v7, 8, v7
    v_bfe_u32 v5, v2, 4, 1
    v_lshlrev_b32 v5, 5, v5
    v_add3_u32 v6, v6, v7, v5
    v_and_b32 v5, 3, v2
    v_lshl_add_u32 v6, v5, 3, v6
    v_add_u32 v{WA[0]}, 16384, v6
    v_xor_b32 v{WA[1]}, 64, v{WA[0]}
    v_lshlrev_b32 v5, 10, v4
    v_lshl_add_u32 v5, v3, 4, v5
    s_lshl_b32 s26, s{CT}, 5
    s_lshl_b32 s23, s35, 4
    s_add_u32 s26, s26, s23
    s_lshl_b32 s26, s26, 10
    s_mul_i32 s23, s{TT}, {TTS_}
    s_add_u32 s26, s26, s23
    s_lshl_b32 s23, s34, 9
    s_add_u32 s26, s26, s23""")
    for i in range(0, 64, 2): a(f"v_mov_b64 {v(ACC+i,2)}, 0")
    def rx(ks, buf, t): return f"ds_read_b128 {v(FX[buf][t],4)}, v{XA[ks]} offset:{t*4096}"
    def rw(ks, buf, m, rd): return f"ds_read_b64_tr_b16 {v(FW[buf][m]+2*rd,2)}, v{WA[m]} offset:{(16*ks+4*rd)*256}"
    def rds(ks, buf): return [rx(ks,buf,0), rw(ks,buf,0,0), rw(ks,buf,0,1), rx(ks,buf,1), rw(ks,buf,1,0), rw(ks,buf,1,1)]
    def mf(buf, m, t): return m32(ACC+(m*2+t)*16, FW[buf][m], FX[buf][t], ACC+(m*2+t)*16)
    stamp(a, 24)
    a(f"s_cmp_lt_u32 s{IDX}, 20\ns_cbranch_scc1 L_g_w")
    issue(a)
    a("s_waitcnt vmcnt(8)")
    issue(a)
    a("s_branch L_g_b0")
    a.label("L_g_w")
    a("s_waitcnt vmcnt(8) lgkmcnt(0)")
    a.label("L_g_b0")
    o_maps(a)
    clear_o(a)
    stamp(a, 25)
    a("s_mov_b32 s30, 0\ns_mov_b32 s31, 0\ns_setprio 2")
    stamp(a, 26)
    a("s_barrier")
    stamp(a, 2)
    a(J(rds(0, 0)))
    a(".p2align 3")
    a.label("L_g_mm")
    for ks in range(4):
        b = ks & 1
        r = rds((ks+1) & 3, b ^ 1)
        a("s_waitcnt lgkmcnt(3)")
        a(mf(b, 0, 0))
        if ks < 3:
            a(J(r[0:3]) + "\ns_waitcnt lgkmcnt(5)")
            a(mf(b, 0, 1))
            a(J(r[3:6]) + "\ns_waitcnt lgkmcnt(6)")
            a(mf(b, 1, 0))
            if ks == 0:
                a("s_mov_b32 s32, s31"); next_slot(a, 31, 33)
            if ks == 1: a(f"s_sub_u32 s33, s31, s32\ns_add_u32 s30, s30, 1\nv_add_u32 v{XA[0]}, s33, v{XA[0]}\nv_add_u32 v{XA[1]}, s33, v{XA[1]}\nv_add_u32 v{XA[2]}, s33, v{XA[2]}")
            if ks == 2: a(f"v_add_u32 v{XA[3]}, s33, v{XA[3]}\nv_add_u32 v{WA[0]}, s33, v{WA[0]}\nv_add_u32 v{WA[1]}, s33, v{WA[1]}\ns_cmp_eq_u32 s30, 1")
            a(mf(b, 1, 1))
        else:
            a("s_cbranch_scc1 L_g_w8\ns_waitcnt vmcnt(3)")
            a.label("L_g_w8")
            a("s_waitcnt vmcnt(11) lgkmcnt(0)\ns_cmp_gt_u32 s30, 8\ns_cbranch_scc1 L_g_nb\ns_barrier")
            a.label("L_g_nb")
            a(mf(b, 0, 1))
            a(J(r[0:3]) + "\ns_cmp_lt_u32 s30, 10")
            a(mf(b, 1, 0))
            a(J(r[3:6]))
            a(mf(b, 1, 1))
            a("s_cbranch_scc1 L_g_mm")
    stamp(a, 3)
    a("s_nop 4\ns_waitcnt lgkmcnt(0)")
    for q in range(2):
        if q == 0: a(f"s_cmp_lt_u32 s{CT}, 5\ns_cbranch_scc1 L_g_eq")
        else: a.label("L_g_eq"); a(f"s_mov_b32 s28, {f32hex(QSCALE)}")
        k = 0
        for m in range(2):
            for g in range(4):
                d = 16 + 4*k; k += 1
                for t in range(2):
                    r = ACC + (m*2+t)*16 + 4*g
                    if q:
                        for i in range(4): a(f"v_mul_f32 v{r+i}, s28, v{r+i}")
                    a(f"v_cvt_pk_bf16_f32 v{d+2*t}, v{r}, v{r+1}\nv_cvt_pk_bf16_f32 v{d+2*t+1}, v{r+2}, v{r+3}")
                if k & 1: a(f"s_add_u32 s23, s26, {WS_QKV + (m*8+2*g)*1024}")
                a(f"buffer_store_dwordx4 {v(d,4)}, v5, s[12:15], s23 offen offset:{0 if k & 1 else 2048} sc1")
        if q == 0: a("s_branch L_w1")

PRM = 152
VD = 233
def cm(d, x, z, t):
    return [f"v_pk_mul_f32 {v(t,2)}, {v(x,2)}, {v(z,2)} op_sel:[0,0] op_sel_hi:[1,0]",
            f"v_pk_fma_f32 {v(d,2)}, {v(x,2)}, {v(z,2)}, {v(t,2)} op_sel:[1,1,0] op_sel_hi:[0,1,1] neg_lo:[0,1,0]"]
def ilv(*ls):
    out = []
    for i in range(max(len(x) for x in ls)):
        for x in ls:
            if i < len(x): out.append(x[i])
    return out
GDT, GER, GTH, GT = 112, 113, 114, 116
def kg_dt(a):
    a(f"""v_lshlrev_b32 v{GDT}, 16, v{PRM+4}
    v_mul_f32 v{GDT}, {f32hex(LOG2E)}, v{GDT}
    v_exp_f32 v{GDT}, v{GDT}
    s_lshl_b32 s22, s{KH}, 4
    v_cvt_pk_bf16_f32 v{GDT}, v{GDT}, v{GDT}
    v_and_b32 v{GDT}, 0xffff0000, v{GDT}""")
def kg_setup(anchors, X0):
    o = f"""v_lshlrev_b32 v{PRM}, s22, v{PRM}
    v_lshlrev_b32 v{PRM+1}, s22, v{PRM+1}
    v_and_b32 v{GER}, 0xffff0000, v{PRM}
    v_mul_f32 v{GER}, {f32hex(LOG2E)}, v{GER}
    v_exp_f32 v{GER}, v{GER}
    v_and_b32 v{GTH}, 0xffff0000, v{PRM+1}
    v_lshlrev_b32 v{PRM+2}, s22, v{PRM+2}
    v_cvt_pk_bf16_f32 v{GER}, v{GER}, v{GER}
    v_lshlrev_b32 v{PRM+3}, s22, v{PRM+3}
    v_and_b32 v{GER}, 0xffff0000, v{GER}
    v_mul_f32 v{GER}, v{GER}, v{GDT}
    v_mul_f32 v{GTH}, v{GTH}, v{GDT}
    v_mul_f32 v{GER}, {f32hex(-LOG2E)}, v{GER}
    v_mul_f32 v{GTH}, 0.15915494, v{GTH}
    v_and_b32 v{X0}, 0xffff0000, v{PRM+2}
    v_and_b32 v{X0+1}, 0xffff0000, v{PRM+3}
    v_mul_f32 v{X0}, v{X0}, v{GDT}
    v_mul_f32 v{X0+1}, v{X0+1}, v{GDT}
    v_add_f32 v{X0}, v{X0}, v{X0}
    v_add_f32 v{X0+1}, v{X0+1}, v{X0+1}""".split("\n")
    for (z, p) in anchors:
        o += f"""v_mul_f32 v{GT}, {f32hex(p)}, v{GER}
        v_mul_f32 v{GT+1}, {f32hex(p)}, v{GTH}
        v_exp_f32 v{GT}, v{GT}
        v_fract_f32 v{GT+1}, v{GT+1}
        v_cos_f32 v{z}, v{GT+1}
        v_sin_f32 v{z+1}, v{GT+1}
        v_mul_f32 v{z}, v{z}, v{GT}
        v_mul_f32 v{z+1}, v{z+1}, v{GT}""".split("\n")
    return o

def krow():
    def row(h, reg): return 8*(reg >> 2) + 4*h + (reg & 3)
    rowp = {}
    for p in range(4): rowp[row(0, p)] = p; rowp[row(1, p)] = p + 4
    for i, (p0, p1) in enumerate(((256, 260), (258, 262), (260, 264), (512, 768), (516, 772), (520, 776), (1024, 1280), (1032, 1288), (1536, 1792), (1544, 1800))):
        rowp[row(0, 4+i)] = p0; rowp[row(1, 4+i)] = p1
    return rowp
XORD = [1, 2, 3, 4, 5, 6, 7, 258, 260, 262, 516, 772, 1544, 1800, 0, 256, 264, 512, 520, 768, 776, 1024, 1032, 1280, 1288, 1536, 1792]
PKA = 160
KACC = 192
GWA, GRA, GFX = 16, 32, 112
def kgen(a, mid):
    Z1, Z8, ZW, ZB, YA, X0 = 124, 126, 128, 130, 132, 134
    rowp = krow()
    a(f"s_lshl_b32 s28, s{WV}, 13\ns_add_u32 s28, s28, {KSC}")
    kgen_addr(a)
    a(f"v_mov_b32 v{PKA}, 0x3f80\ns_waitcnt vmcnt(8)")
    stamp(a, 20)
    kg_dt(a)
    a(J(kg_setup(((Z8, 8.0), (ZB, 128.0), (Z1, 1.0), (ZW, 256.0)), X0)))
    def pack(p):
        r = X0 + 2*(p % 256)
        return [f"v_cvt_pk_bf16_f32 v{PKA+32+XORD.index(p)}, v{r}, -v{r+1}"]
    def step(p, t):
        if p < 8: return cm(X0+2*p, X0+2*p-2, Z1, t) + pack(p)
        if p == 8: return cm(X0+16, X0, Z8, t) + pack(0)
        b = p % 256
        return cm(X0+2*b, X0+2*b, ZW, t) + pack(p)
    s1 = sum((step(p, GT) for p in (1, 2, 3, 4, 5, 6, 7, 258, 260, 262, 516, 772, 1544, 1800)), [])
    s2 = sum((step(p, GT+2) for p in (8, 256, 264, 512, 520, 768, 776, 1024, 1032, 1280, 1288, 1536, 1792)), [])
    ya = [f"v_cvt_pk_bf16_f32 v{PKA+1}, v{Z8}, v{Z8+1}"]
    for j in range(2, 16): ya += cm(YA, Z8 if j == 2 else YA, Z8, GT+4) + [f"v_cvt_pk_bf16_f32 v{PKA+j}, v{YA}, v{YA+1}"]
    yb = [f"v_cvt_pk_bf16_f32 v{PKA+16}, v{ZB}, v{ZB+1}"]
    for j in range(17, 32): yb += cm(ZB, ZB, Z8, GT+6) + [f"v_cvt_pk_bf16_f32 v{PKA+j}, v{ZB}, v{ZB+1}"]
    a(J(ilv(ya, yb)))
    ly = [f"ds_write2st64_b32 v{GWA+j}, v{PKA+j}, v{PKA+16+j} offset0:{j} offset1:{16+j}" for j in range(16)]
    ly += [f"ds_read_b128 {v(PKA+4*ks,4)}, v{GRA+ks}" for ks in range(8)]
    xs = ilv(s1, s2)
    for i, x in enumerate(xs):
        a(x)
        if i % 3 == 0 and i // 3 < len(ly): a(ly[i // 3])
    assert len(xs) // 3 >= len(ly)
    stamp(a, 21)
    for j in range(16):
        if j + 16 in rowp: a(f"ds_write2st64_b32 v{GWA+j}, v{PKA+32+XORD.index(rowp[j])}, v{PKA+32+XORD.index(rowp[j+16])} offset0:{j} offset1:{16+j}")
        else: a(f"ds_write_b32 v{GWA+j}, v{PKA+32+XORD.index(rowp[j])} offset:{j*256}")
    for ks in range(8): a(f"ds_read_b128 {v(GFX+4*ks,4)}, v{GRA+ks}")
    for ks in range(8):
        a(f"s_waitcnt lgkmcnt({7-ks})")
        a(m32(KACC, GFX+4*ks, PKA+4*ks, KACC if ks else None))
    stamp(a, 22)
def kgen_addr(a):
    WA, RA = 16, 32
    a(f"""v_lshlrev_b32 v{WA}, 2, v2
    v_add_u32 v{WA}, s28, v{WA}
    v_and_b32 v{RA}, 31, v2
    v_lshrrev_b32 v3, 5, v2
    v_and_b32 v4, 15, v2
    v_xor_b32 v3, v3, v4
    v_lshlrev_b32 v3, 4, v3
    v_lshl_add_u32 v{RA}, v{RA}, 8, v3
    v_add_u32 v{RA}, s28, v{RA}""")
    for i in range(1, 16): a(f"v_xor_b32 v{WA+i}, {16*i}, v{WA}")
    for i in range(1, 8): a(f"v_xor_b32 v{RA+i}, {32*i}, v{RA}")

KP = 208
def kpack(a, kdst):
    Jv, H, AD = 3, 4, 12
    R = KACC; P0 = KP
    a(f"""v_and_b32 v{Jv}, 31, v2
    v_lshrrev_b32 v{H}, 5, v2
    v_lshlrev_b32 v{AD}, 4, v{Jv}
    v_sub_u32 v{AD}, s{kdst}, v{AD}
    v_lshlrev_b32 v13, 3, v{H}
    v_sub_u32 v180, v{AD}, v13
    v_lshlrev_b32 v13, 9, v{H}
    v_sub_u32 v181, v{AD}, v13
    v_and_b32 v{H}, 1, v{Jv}
    v_cmp_eq_u32 vcc, 0, v{H}
    v_lshlrev_b32 v{Jv}, 2, v{Jv}
    v_add_u32 v182, s{kdst}, v{Jv}
    v_lshlrev_b32 v15, 16, v{VD}
    s_mov_b64 exec, 1
    v_add_f32 v{R}, v{R}, v15
    s_mov_b64 exec, -1""")
    cv = lambda d, lo, hi: a(f"v_cvt_pk_bf16_f32 v{d}, v{lo}, v{hi}")
    cv(P0, R+3, R+2); cv(P0+1, R+1, R+0)
    cv(P0+2, R+6, R+5); cv(P0+3, R+4, R+4)
    cv(P0+4, R+9, R+9); cv(P0+5, R+8, R+8); cv(P0+6, R+8, R+7); cv(P0+7, R+7, R+7)
    for sidx in range(2):
        ra, rb = R+10+2*sidx, R+11+2*sidx
        d = P0 + 8 + 4*sidx
        a(f"v_cndmask_b32 v13, v{rb}, v{ra}, vcc")
        cv(d, rb, rb); cv(d+1, rb, 13); cv(d+2, ra, ra); cv(d+3, ra, ra)
def kwrite(a, vzero):
    P0 = KP
    a(f"""ds_write_b64 v180, {v(P0,2)} offset:{4080+8}
    ds_write_b64 v180, {v(P0+2,2)} offset:{4080-512+8}
    ds_write_b128 v181, {v(P0+4,4)} offset:{4080-1024}
    ds_write_b128 v181, {v(P0+8,4)} offset:{4080-2048}
    ds_write_b128 v181, {v(P0+12,4)} offset:{4080-3072}
    ds_write_b32 v182, v{vzero} offset:4096""")

CAA, CBA, CACC = 10, 11, 148
def conv_setup(a, cbase):
    a(f"""v_and_b32 v3, 3, v2
    v_mul_u32_u24 v{CAA}, {UST}, v3
    v_bfe_u32 v3, v2, 2, 2
    v_lshl_add_u32 v{CAA}, v3, 7, v{CAA}
    v_lshrrev_b32 v4, 4, v2
    v_lshl_add_u32 v{CAA}, v4, 4, v{CAA}
    v_add_u32 v{CAA}, s{cbase}, v{CAA}
    v_and_b32 v3, 15, v2
    v_lshlrev_b32 v3, 3, v3
    v_lshlrev_b32 v{CBA}, 4, v4
    v_sub_u32 v{CBA}, v{CBA}, v3
    v_add_u32 v{CBA}, {KOFF+120}, v{CBA}
    v_add_u32 v{CBA}, s{cbase}, v{CBA}""")
    for i in range(0, 32, 2): a(f"v_mov_b64 {v(CACC+i,2)}, 0")
def conv(a, ydst, fill):
    FA = [16, 80]; FB = [48, 112]; ACC = CACC
    def loads(b, extra):
        out = []
        for k in range(8):
            out += [f"ds_read_b64 {v(FB[b]+4*k,2)}, v{CBA} offset:{512*(7-k)+extra}", f"ds_read_b64 {v(FB[b]+4*k+2,2)}, v{CBA} offset:{512*(7-k)+8+extra}",
                    f"ds_read_b128 {v(FA[b]+4*k,4)}, v{CAA} offset:{512*k+extra}"]
        return out
    a("s_waitcnt lgkmcnt(0)")
    a(J(loads(0, 0)))
    a("s_mov_b32 s53, 0\n.p2align 3")
    lp = a.newlabel("L_cv")
    a.label(lp)
    pairs = sorted([(i, j) for i in range(8) for j in range(8) if i + j < 8], key=lambda p: (max(p), p))
    for b in range(2):
        ld = loads(b ^ 1, 64*(b+1))
        a("s_waitcnt lgkmcnt(0)")
        for n, (i, j) in enumerate(pairs):
            a(m16(ACC+4*(i+j), FA[b]+4*i, FB[b]+4*j, ACC+4*(i+j)))
            if n < 24: a(ld[n])
            if b == 1 and n == 33: a(f"v_add_u32 v{CAA}, 128, v{CAA}\nv_add_u32 v{CBA}, 128, v{CBA}")
            elif b == 1 and n == 34: a("s_add_u32 s53, s53, 1\ns_cmp_lt_u32 s53, 4")
            elif b == 1 and n == 35: pass
            else:
                for _ in range(FILL1 if n < 24 else 2):
                    if fill: a(fill.pop(0))
    a(f"s_cbranch_scc1 {lp}")
    a("v_lshlrev_b32 v3, 3, v2")
    for b in range(8):
        ac = ACC + 4*b
        a(f"""v_cvt_pk_bf16_f32 v{ac}, v{ac}, v{ac+1}
        v_cvt_pk_bf16_f32 v{ac+1}, v{ac+2}, v{ac+3}
        buffer_store_dwordx2 {v(ac,2)}, v3, s[12:15], s{ydst} offen offset:{512*b} sc1""")

def helper(a):
    CB = 26
    UE = 132
    a(f"""s_mov_b32 s33, 0
    s_cmp_ge_u32 s{IDX}, 20
    s_cbranch_scc1 L_h_tr
    s_lshr_b32 s{FCOFF}, s{CHN}, 2
    s_lshl_b32 s{FCOFF}, s{FCOFF}, 7
    s_lshl_b32 s22, s{HW}, 2
    s_add_u32 s{FCOFF}, s{FCOFF}, s22
    s_add_u32 s{FCOFF}, s{FCOFF}, {WS_FC}
    s_lshr_b32 s22, s{CHN}, 6
    s_lshl_b32 s22, s22, {7 if PACKA else 12}
    s_add_u32 s22, s22, {WS_FA}
    v_and_b32 v4, 31, v2
    v_lshl_add_u32 v8, v4, {2 if PACKA else 7}, s22
    s_mul_i32 s{CB}, s{HW}, {CHA}
    s_add_u32 s{CB}, s{CB}, {CVB}
    s_mul_i32 s27, s{CHN}, {RS}
    s_add_u32 s27, s27, {WS_UT}
    s_add_u32 s29, s{CB}, {KOFF}
    s_mov_b32 s33, {POLLC}""")
    issue(a)
    skip(a)
    a("s_setprio 1")
    a.label("L_kgen")
    kgen(a, None)
    a(f"s_cmp_eq_u32 s{KH}, 0\ns_cbranch_scc1 L_g_kb")
    stamp(a, 3)
    a("s_setprio 0\ns_waitcnt vmcnt(0)\ns_branch L_h_ld1")
    a.label("L_h_tr")
    a(f"s_cmp_ge_u32 s26, 320\ns_cbranch_scc1 L_h_ld0")
    a.label("L_utile")
    utile(a)
    a("s_branch L_tr_back")
    a.label("L_h_ld0")
    a(f"v_mov_b32 v8, {WS_FA}")
    skip(a); skip(a)
    a.label("L_h_ld1")
    a("s_mov_b32 s30, 0")
    def bar():
        a("s_waitcnt vmcnt(16) lgkmcnt(0)\ns_barrier")
        if PROF and not LITE: a(f"s_memtime s[92:93]\ns_add_u32 m0, s30, 32\ns_waitcnt lgkmcnt(0)\nv_writelane_b32 v{PV}, s92, m0")
    def lines(*fs):
        t = Asm()
        for f in fs: f(t)
        return [l.strip() for l in t.lines]
    a.label("L_h_ld")
    bar()
    issue(a, lines(attn_ids, o_maps, kv_units))
    a(f"""s_add_u32 s30, s30, 1
    s_cmp_lg_u32 s30, s33
    s_cbranch_scc1 L_h_l1
    s_cmp_lt_u32 s{IDX}, 20
    s_cbranch_scc1 L_h_pl""")
    get_nonce(a)
    a("s_waitcnt vmcnt(16)")
    set_flag(a, 29, 10)
    stamp(a, 3)
    a("s_branch L_h_l1")
    a.label("L_h_pl")
    a("buffer_load_dword v9, v8, s[12:15], 0 offen sc1")
    a.label("L_h_l1")
    a("s_cmp_lt_u32 s30, 5\ns_cbranch_scc1 L_h_ld")
    bar()
    issue(a, [f's_load_dword s{NONCE}, s[{P_DBG}:{P_DBG+1}], 0'] + lines(tail_setup, attn_reset2))
    a("s_add_u32 s30, s30, 1")
    bar()
    issue(a, lines(lambda t: conv_setup(t, CB)))
    a("s_waitcnt vmcnt(16)\ns_barrier")
    a(f"s_cmp_lg_u32 s{NONCE}, 0\ns_cbranch_scc1 L_h_hn")
    get_nonce(a)
    a.label("L_h_hn")
    arr_init(a)
    a(f"""s_cmp_lt_u32 s{IDX}, 20
    s_cbranch_scc1 L_h_k7
    s_waitcnt vmcnt(0) lgkmcnt(0)
    s_barrier
    s_branch L_attn""")
    a.label("L_h_ids")
    a("s_mov_b32 s33, 2\ns_branch L_setup")
    a.label("L_h_k7")
    def uloads():
        for i in range(4): a(f"buffer_load_dwordx4 {v(132+4*i,4)}, v{DMV}, s[12:15], s27 offen offset:{1024*i} sc1")
    stamp(a, 39)
    a(f"s_sub_u32 s28, s28, 32768\nv_add_u32 v6, s28, v{DMV}\nv_cmp_ne_u32 vcc, s{NONCE}, v9\ns_mov_b32 s31, 0")
    for i in range(4): a(f"ds_read_b128 {v(16+4*i,4)}, v6 offset:{1024*i}")
    a("s_cbranch_vccnz L_h_nu")
    uloads()
    a("s_mov_b32 s31, 1")
    a.label("L_h_nu")
    a("s_waitcnt lgkmcnt(0)")
    for i in range(14): a(f"v_add_f32 v{KACC+i}, v{KACC+i}, v{16+i}")
    kpack(a, 29)
    a(f"""v_lshlrev_b32 v5, 3, v2
    v_min_u32 v5, 376, v5
    v_add_u32 v5, s{CB}, v5
    v_mov_b32 v6, 0
    v_mov_b32 v7, 0""")
    stamp(a, 46)
    a("s_cmp_eq_u32 s31, 1\ns_cbranch_scc1 L_h_w4\ns_waitcnt vmcnt(0)")
    a.label("L_h_w4")
    a("s_waitcnt vmcnt(4)\ns_barrier")
    stamp(a, 4)
    a("s_cmp_eq_u32 s31, 1\ns_cbranch_scc1 L_h_hu")
    poll(a, [8], 1, 9)
    uloads()
    a.label("L_h_hu")
    if PROF: a(f"v_writelane_b32 v{PV}, s31, 30")
    kwrite(a, 6)
    for r in range(4): a(f"ds_write_b64 v5, v[6:7] offset:{r*UST}")
    a(f"""s_mul_i32 s27, s{CHN}, {RS}
    s_add_u32 s27, s27, {WS_YT}
    v_add_u32 v4, s{CB}, v{DMV}
    s_waitcnt vmcnt(0)""")
    stamp(a, 5)
    for i in range(4):
        e = 132 + 4*i
        C2, C1, C0, PP = 16 + 14*i, 20 + 14*i, 24 + 14*i, 28 + 14*i
        a(f"ds_write_b128 v4, {v(e,4)} offset:{3*UST + 384 + 1024*i}")
        if i == 0: a(f"v_mov_b32 v{PP}, 0\nv_mov_b32 v{C1}, 0\ns_nop 0")
        else: a(f"v_readlane_b32 s22, v{e-2}, 63\nv_readlane_b32 s23, v{e-1}, 63\ns_nop 0\nv_mov_b32 v{PP}, s22\nv_mov_b32 v{C1}, s23\ns_nop 0")
        a(f"v_mov_b32_dpp v{PP}, v{e+2} wave_shr:1 row_mask:0xf bank_mask:0xf")
        a(f"v_mov_b32_dpp v{C1}, v{e+3} wave_shr:1 row_mask:0xf bank_mask:0xf")
        for j in range(3): a(f"v_mov_b32 v{C1+1+j}, v{e+j}")
        a(f"ds_write_b128 v4, {v(C1,4)} offset:{UST + 384 + 1024*i}")
        a(f"v_alignbit_b32 v{C2}, v{e}, v{C1}, 16")
        for j in range(1, 4): a(f"v_alignbit_b32 v{C2+j}, v{e+j}, v{e+j-1}, 16")
        a(f"ds_write_b128 v4, {v(C2,4)} offset:{2*UST + 384 + 1024*i}")
        a(f"v_alignbit_b32 v{C0}, v{C1}, v{PP}, 16")
        for j in range(3): a(f"v_mov_b32 v{C0+1+j}, v{C2+j}")
        a(f"ds_write_b128 v4, {v(C0,4)} offset:{384 + 1024*i}")
    stamp(a, 6)
    t = Asm(); zero_s(t)
    fill = [l.strip() for l in t.lines]
    conv(a, 27, fill)
    assert not fill
    stamp(a, 7)
    a("s_branch L_attn2")

def window1(a):
    get_nonce(a)
    a(f"""v_mov_b32 v3, {ARRW}
    v_mov_b32 v4, 1
    s_lshl_b32 s22, s2, 7
    s_add_u32 s26, s22, {WS_FB}""")
    zero_state(a)
    stamp(a, 4)
    a(f"""s_waitcnt vmcnt(0)
    s_mov_b64 exec, 1
    ds_add_rtn_u32 v4, v3, v4
    s_mov_b64 exec, -1
    s_waitcnt lgkmcnt(0)
    v_readfirstlane_b32 s22, v4
    s_mov_b32 s33, 0
    s_cmp_lg_u32 s22, 3
    s_cbranch_scc1 L_w1_r""")
    diag_wait(a, '--dfl')
    stamp(a, 5)
    stamp(a, 53, True)
    set_flag(a, 26, 6)
    a(f"""v_mov_b32 v16, 0x3f803f80
    v_mov_b32 v17, 0x00003f80
    v_mov_b32 v18, 0x3f803f80
    v_mov_b32 v19, 0x00003f80
    ds_write_b128 v{DMV}, v[16:19] offset:{CONSTP}
    ds_write_b32 v6, v6 offset:{FLAGW}
    s_mov_b32 s33, 1
    s_branch L_setup""")
    a.label("L_w1_r")
    a("s_setprio 0")
    a.label("L_setup")
    attn_reset(a)
    tail_setup(a)
    a("""s_cmp_eq_u32 s33, 2
    s_cbranch_scc1 L_attn
    s_cmp_eq_u32 s33, 0
    s_cbranch_scc1 L_at_b2""")
    main_pre(a)
    poll(a, [PL1, PL2], 1, 20, sleep=PSL)
    stamp(a, 6)
    stamp(a, 54, True)
    a(f"s_add_u32 s23, s{HEAD5}, 160\ns_lshl_b32 s23, s23, 10")
    def qu(u): a(f"""s_mov_b32 m0, {QLDS + 1024*u}
        s_add_u32 s24, s{OOFF}, {(u >> 1)*1024 + (u & 1)*TTS_}
        buffer_load_dwordx4 v{DMV}, s[12:15], s24 offen sc1 lds""")
    def ku(u):
        p = u >> 1
        off = ((p + (155 if p >= 5 else 0)) << 10) + ((u & 1)*8)*TTS_
        a(f"""s_mov_b32 m0, {ARING + p*PST + (u & 1)*1024}
        s_add_u32 s24, s23, {off}
        buffer_load_dwordx4 v{DMV}, s[12:15], s24 offen sc1 lds""")
    for u in range(10): qu(u)
    for u in range(20): ku(u)
    stamp(a, 7)
    a("s_waitcnt vmcnt(0)\ns_branch L_at_b2")

Q0 = [16, 22]; Q1 = [20, 26]
KF = [28, 34]; VF = [40, 48]; P = [56, 64]; S = [72, 88]; O = [104, 120]
def set_m(a, q, M):
    a(f"""v_sub_f32 v{M}, 0, v{M}
    v_and_b32 v{M+1}, 0xffff0000, v{M}
    v_sub_f32 v{M+2}, v{M}, v{M+1}
    v_and_b32 v{M+3}, 0xffff0000, v{M+2}
    v_sub_f32 v{M+2}, v{M+2}, v{M+3}
    v_lshrrev_b32 v{M+1}, 16, v{M+1}
    v_or_b32 v{M+1}, v{M+1}, v{M+3}
    v_lshrrev_b32 v{M+2}, 16, v{M+2}
    v_cndmask_b32 v{Q1[q]}, v{M+1}, v{Q1[q]}, vcc
    v_cndmask_b32 v{Q1[q]+1}, v{M+2}, v{Q1[q]+1}, vcc""")
def tilemax(a, M, s, first):
    if first: a(f"v_max3_f32 v{M}, v{s}, v{s+1}, v{s+2}")
    else: a(f"v_max3_f32 v{M}, v{M}, v{s}, v{s+1}\nv_max_f32 v{M}, v{M}, v{s+2}")
    for i in range(3, 15, 2): a(f"v_max3_f32 v{M}, v{M}, v{s+i}, v{s+i+1}")
    a(f"v_max_f32 v{M}, v{M}, v{s+15}")
def halfmax(a, M):
    a(f"v_mov_b32 v{M+1}, v{M}\ns_nop 1\nv_permlane32_swap_b32 v{M}, v{M+1}\nv_max_f32 v{M}, v{M}, v{M+1}")

def kv_units(a):
    a(f"""s_lshr_b32 s22, s{WV}, 1
    s_and_b32 s23, s{WV}, 1
    s_mul_i32 s{KL[0]}, s22, {PST}
    s_lshl_b32 s24, s23, 10
    s_add_u32 s{KL[0]}, s{KL[0]}, s24
    s_add_u32 s{KL[0]}, s{KL[0]}, {ARING}
    s_add_u32 s{KL[1]}, s{KL[0]}, {4*PST}
    s_add_u32 s{KL[2]}, s{KL[0]}, {8*PST}
    s_add_u32 s24, s22, s{HEAD5}
    s_lshl_b32 s24, s24, 10
    s_mul_i32 s23, s23, {8*TTS_}
    s_add_u32 s24, s24, s23
    s_add_u32 s{KS[0]}, s24, {160*1024 + TTS_}
    s_add_u32 s{KS[2]}, s24, {(160+8+155)*1024 + TTS_}
    s_cmp_eq_u32 s22, 0
    s_cselect_b32 s23, 0, {155*1024}
    s_add_u32 s{KS[1]}, s{KS[0]}, s23
    s_add_u32 s{KS[1]}, s{KS[1]}, 4096""")
def attn_reset(a):
    kv_units(a); attn_reset2(a)
def attn_reset2(a):
    a(f"""v_and_b32 v3, 31, v2
    v_lshlrev_b32 v3, 3, v3
    v_lshrrev_b32 v5, 5, v2
    s_lshl_b32 s{KHOFF}, s{KH}, 10
    s_lshl_b32 s22, s{HW}, 9
    s_add_u32 s22, s22, {QLDS}
    v_add_u32 v{QA4}, s22, v3
    v_lshl_add_u32 v{QA0}, v5, 12, v{QA4}
    v_mul_u32_u24 v{KA}, {2*PST}, v5
    s_add_u32 s22, s{KHOFF if M0 else MODE+53-MODE}, {ARING}""".replace(f"s{MODE+53-MODE}", "0"))
    a(f"""v_add3_u32 v{KA}, v{KA}, v3, s22
    v_xor_b32 v{MS4}, 1, v5
    s_add_u32 s22, s22, {4*PST - CONSTP}
    v_mad_u32_u24 v{K4}, v{MS4}, s22, v3
    v_add_u32 v{K4}, {CONSTP}, v{K4}
    v_bfe_u32 v3, v2, 2, 2
    v_lshl_add_u32 v5, v5, 2, v3
    v_and_b32 v4, 3, v2
    v_bfe_u32 v3, v2, 4, 1
    v_lshl_add_u32 v4, v3, 2, v4
    v_cmp_gt_u32 vcc, 5, v4
    v_mul_u32_u24 v4, {PST}, v4
    s_add_u32 s22, s{KHOFF}, {ARING + 5*PST}
    v_add_u32 v4, s22, v4
    v_cndmask_b32 v{VA}, {CONSTP}, v4, vcc
    v_cndmask_b32 v{MSK}, 0, 1, vcc
    v_lshl_add_u32 v{VA}, v5, 3, v{VA}
    s_sub_u32 s24, 106, s{WV}
    s_mul_i32 s{WOS}, s24, {6*1280}
    s_lshr_b32 s22, s{IDX}, 2
    s_mul_i32 s22, s22, 160
    s_add_u32 s{WOS}, s{WOS}, s22
    s_mul_i32 s{WOL}, s24, 960
    s_add_u32 s{WOL}, s{WOL}, {WOB}""")
YT, OSA, OST, FIW, FS0 = range(235, 240)
YT, FIW, FS0 = 253, 251, 250
WAO, WAT = 248, 249
TOS, TTS, TFS = 96, 97, 98
def o_maps(a):
    a(f"""v_and_b32 v3, 15, v2
    v_bfe_u32 v4, v2, 4, 1
    v_mul_u32_u24 v4, {OG}, v4
    v_lshl_add_u32 v{OST}, v3, 3, v4
    v_lshl_add_u32 v4, v3, 4, v4
    v_lshrrev_b32 v3, 5, v2
    v_lshl_add_u32 v{OSA}, v3, 8, v4""")
def tail_setup(a):
    a(f"""v_mul_u32_u24 v6, 205, v2
    v_lshrrev_b32 v6, 11, v6
    v_mul_u32_u24 v7, 10, v6
    v_sub_u32 v7, v2, v7
    v_lshlrev_b32 v7, 4, v7
    v_mul_u32_u24 v6, 1280, v6
    v_add_u32 v{WOV}, v6, v7
    v_add_u32 v{FS0}, v6, v{WOV}""")
def tail_setup2(a):
    a(f"""v_bfe_u32 v3, v2, 2, 2
    v_lshrrev_b32 v4, 4, v2
    v_and_b32 v5, 3, v2
    v_lshlrev_b32 v5, 3, v5
    v_lshrrev_b32 v6, 2, v2
    v_lshl_add_u32 v6, v6, 7, v5
    s_lshl_b32 s22, s{HW}, 5
    v_add_u32 v{YT}, s22, v6
    v_lshrrev_b32 v6, 5, v2
    v_mul_u32_u24 v6, 12, v6
    v_lshl_add_u32 v6, v4, 2, v6
    v_add_u32 v6, v6, v3
    v_mad_u32_u24 v7, v4, 20, v3
    s_mul_i32 s22, s{KH}, {320*160}
    s_add_u32 s22, s22, {WOB}
    v_add_u32 v5, s22, v5
    s_movk_i32 s23, 160
    v_mad_u32_u24 v{WAO}, v6, s23, v5
    v_mad_u32_u24 v{WAT}, v7, s23, v5
    v_and_b32 v3, 15, v2
    s_mul_i32 s22, s{WV}, 2560
    v_lshl_add_u32 v4, v4, 3, s22
    v_mad_u32_u24 v{FIW}, v3, s23, v4
    s_lshl_b32 s24, s{XCD}, 2
    s_and_b32 s22, s{IDX}, 3
    s_add_u32 s24, s24, s22
    s_lshl_b32 s24, s24, 2
    s_add_u32 s24, s24, s{HW}
    s_mul_i32 s{TOS}, s24, {OG}
    s_add_u32 s{TOS}, s{TOS}, {WS_O}
    s_lshl_b32 s23, s{KH}, 11
    s_add_u32 s{TTS}, s{TOS}, s23
    s_add_u32 s{TTS}, s{TTS}, 16384
    s_lshl_b32 s23, s{KH}, 13
    s_add_u32 s{TOS}, s{TOS}, s23
    s_lshr_b32 s22, s{IDX}, 2
    s_add_u32 s22, s22, 8
    s_lshl_b32 s23, s{IDX}, 2
    s_add_u32 s23, s23, s{HW}
    s_cmp_eq_u32 s{KH}, 1
    s_cselect_b32 s24, s23, s24
    s_cselect_b32 s22, s{XCD}, s22
    s_mul_i32 s{TFS}, s24, {16*2560}
    s_mul_i32 s22, s22, 160
    s_add_u32 s{TFS}, s{TFS}, s22""")
WFR = [28, 48, 68, 88, 144, 164, 184, 204, 108]
OFR = [128, 132, 224, 228, 232, 236, 240, 244, 136, 140]
def wo_reads(a, i, slot):
    for m in range(5):
        for hf in range(2):
            if i < 8: a(f"ds_read_b64_tr_b16 {v(WFR[slot]+4*m+2*hf,2)}, v{WAO} offset:{(40*i+8*hf)*160+32*m}")
            else: a(f"ds_read_b64_tr_b16 {v(WFR[slot]+4*m+2*hf,2)}, v{WAT} offset:{(160*(i-8)+80*hf+16)*160+32*m}")
def zero_state(a):
    zero_s(a); zero_v(a)
def zero_s(a):
    srd(a, 8, P_WO, 640*1280)
    a(f"""s_mov_b32 s30, 0
    s_mov_b32 s31, 0
    s_mov_b32 s32, {2*SLOT}
    s_mov_b32 s{MK}, 63
    s_cmp_lt_u32 s{WV}, 4
    s_cselect_b32 s{MK2}, 63, 0
    s_movk_i32 s{MW[0]}, 0xfe
    s_movk_i32 s{MW[1]}, 0x7e
    s_cmp_lt_u32 s{WV}, 3
    s_cselect_b32 s{MW[1]}, s{MW[0]}, s{MW[1]}""")
def zero_v(a):
    for i in range(0, 32, 2): a(f"v_mov_b64 {v(O[0]+i,2)}, 0")
    for i in range(0, 8, 2): a(f"v_mov_b64 {v(P[1]+i,2)}, 0\nv_mov_b64 {v(VF[1]+i,2)}, 0")

def attention(a):
    def kr(t, b): return [f"ds_read_b64 {v(KF[b],2)}, v{KA} offset:{t*256}", f"ds_read_b64 {v(KF[b]+2,2)}, v{KA} offset:{t*256+PST}", f"ds_read_b64 {v(KF[b]+4,2)}, v{K4} offset:{t*256}"]
    def vr(t, b): return [f"ds_read_b64_tr_b16 {v(VF[b]+2*j,2)}, v{VA} offset:{t*256+j*64}" for j in range(4)]
    def shift(sreg):
        a(f"v_add_u32 v{KA}, s{sreg}, v{KA}\nv_mad_i32_i24 v{K4}, v{MS4}, s{sreg}, v{K4}")
    def qk(q, kb): a(m32(S[q], KF[kb], Q0[q])); a(m32x8(S[q], KF[kb]+4, Q1[q], S[q]))
    zero_s(a)
    a.label("L_attn2")
    a("s_waitcnt lgkmcnt(0)")
    zero_v(a)
    a.label("L_at_b2")
    stamp(a, 8)
    a("v_cmp_gt_u32 vcc, 32, v2\ns_waitcnt lgkmcnt(0)\ns_barrier")
    diag_wait(a, '--da0')
    stamp(a, 9)
    stamp(a, 50, True)
    a(J(kr(0, 0)))
    a(f"s_cmp_lg_u32 s{MODE}, 0\ns_cbranch_scc1 L_at_havem")
    for q in range(2):
        a(f"""ds_read_b64 {v(Q0[q],2)}, v{QA0} offset:{q*256}
        ds_read_b64 {v(Q0[q]+2,2)}, v{QA0} offset:{q*256+2048}
        ds_read_b64 {v(Q1[q],2)}, v{QA4} offset:{q*256+8192}""")
    a("s_waitcnt lgkmcnt(0)")
    for q in range(2): a(f"v_cndmask_b32 v{Q1[q]}, 0, v{Q1[q]}, vcc\nv_cndmask_b32 v{Q1[q]+1}, 0, v{Q1[q]+1}, vcc")
    if not M0:
        qk(0, 0); qk(1, 0)
        a("s_nop 7\ns_nop 1")
        for q in range(2):
            tilemax(a, P[0], S[q], True); halfmax(a, P[0]); set_m(a, q, P[0])
    a.label("L_at_havem")
    if not M0:
        shift(KHOFF)
        a(J(kr(0, 0)))
    a(f"s_cmp_eq_u32 s{MODE}, 1\ns_cbranch_scc1 L_at_maxpass")
    for j in range(3):
        if j == 2: a(f"s_cmp_ge_u32 s{WV}, 4\ns_cbranch_scc1 L_at_p3")
        a(f"s_add_u32 m0, s{KL[j]}, {SLOT}\ns_nop 0\nbuffer_load_dwordx4 v{DMV}, s[12:15], s{KS[j]} offen sc1 lds\ns_add_u32 s{KS[j]}, s{KS[j]}, {TTS_}")
    a.label("L_at_p3")
    a("s_waitcnt lgkmcnt(0)")
    qk(0, 0)
    a("s_setprio 3\ns_mov_b32 s43, 0x07060302\ns_nop 5")
    stamp(a, 10)
    a(f".p2align {ALP}")
    for _ in range(ALN): a("s_nop 0")
    a.label("L_at_loop")
    for T in range(4):
        kb = T & 1
        for q in range(2):
            o = q ^ 1
            ex = [f"v_exp_f32 v{S[q]+i}, v{S[q]+i}" for i in range(16)]
            cv = [f"v_cvt_pk_bf16_f32 v{P[q]+i}, v{S[q]+2*i}, v{S[q]+2*i+1}" for i in range(8)]
            if '--perm' in sys.argv: cv = [f"v_perm_b32 v{P[q]+i}, v{S[q]+2*i+1}, v{S[q]+2*i}, s43" for i in range(8)]
            kq = kb if q == 0 else kb ^ 1
            vq = kb ^ 1 if q == 0 else kb
            rd = (kr((T+1) & 3, kb ^ 1) + vr(T, kb)) if q == 0 else []
            if '--nord' in sys.argv: rd = []
            if '--halfrd' in sys.argv and T & 1: rd = []
            if '--rdsplit' in sys.argv:
                pass
            st = (2*((T+1) & 3) + q)
            def pr(i):
                k = 4*st + i
                if k in PRIO: a(f"s_setprio {3 - PRIO.index(k)}")
            if q == 0 and T == 3:
                a(f"""s_add_u32 s33, s31, {SLOT}
                s_cmp_eq_u32 s33, {3*SLOT}
                s_cselect_b32 s33, 0, s33
                s_sub_u32 s29, s33, s31
                s_mov_b32 s31, s33""")
                shift(29)
                if PROF and not LITE: a("s_memtime s[90:91]")
                a("s_waitcnt vmcnt(0)\ns_barrier")
                if PROF and not LITE: a("s_memtime s[92:93]")
            if q == 1: a("s_waitcnt lgkmcnt(0)")
            if PROF and not LITE and (T, q) == (3, 1): a(f"s_sub_u32 s90, s92, s90\ns_add_u32 m0, s30, 55\ns_lshl_b32 s90, s90, 20\ns_and_b32 s92, s92, 0xfffff\ns_or_b32 s92, s92, s90\nv_writelane_b32 v{PV}, s92, m0")
            def kv(j, mask):
                l = a.newlabel("L_at_s")
                a(f"""s_bitcmp0_b32 s{mask}, s30
                s_cbranch_scc1 {l}
                s_add_u32 m0, s{KL[j]}, s32
                s_nop 0
                buffer_load_dwordx4 v{DMV}, s[12:15], s{KS[j]} offen sc1 lds
                s_add_u32 s{KS[j]}, s{KS[j]}, {TTS_}""")
                a.label(l)
            def wo(e):
                l = a.newlabel("L_at_s")
                a(f"""s_bitcmp0_b32 s{MW[e]}, s30
                s_cbranch_scc1 {l}
                s_mov_b32 exec_hi, 0x0fffffff
                s_mov_b32 m0, s{WOL}
                s_sub_u32 s{WOL}, s{WOL}, {8*960}
                buffer_load_dwordx4 v{WOV}, s[8:11], s{WOS} offen lds
                s_mov_b32 exec_hi, -1
                s_sub_u32 s{WOS}, s{WOS}, {8*6*1280}""")
                a.label(l)
            a(m32(S[o], KF[kq], Q0[o])); pr(0)
            if '--sch2' in sys.argv:
                G = [ex[0:4] + [], ex[4:5] + cv[0:2] + ex[5:8], ex[8:9] + cv[2:4] + ex[9:12] + cv[4:5], ex[12:16] + cv[5:8]]
            else:
                G = [ex[0:4] + cv[0:1], ex[4:6] + cv[1:2] + ex[6:8] + cv[2:3], ex[8:10] + cv[3:4] + ex[10:12] + cv[4:5], ex[12:14] + cv[5:6] + ex[14:16] + cv[6:8]]
            if '--sch3' in sys.argv:
                G = [ex[0:5], cv[0:2] + ex[5:9], cv[2:4] + ex[9:13], cv[4:6] + ex[13:16] + cv[6:8]]
            a(J(rd[0:3] + G[0]))
            a(m32x8(S[o], KF[kq]+4, Q1[o], S[o])); pr(1)
            if (T, q) == (3, 1): kv(1, MK)
            if (T, q) == (0, 1): wo(1)
            a(J(rd[3:5] + G[1]))
            a(m32(O[o], VF[vq], P[o], O[o])); pr(2)
            a(J(rd[5:7] + G[2]))
            a(m32(O[o], VF[vq]+4, P[o]+4, O[o])); pr(3)
            if (T, q) == (3, 0): kv(0, MK)
            if (T, q) == (0, 0): wo(0)
            if (T, q) == (3, 1):
                kv(2, MK2)
                a(f"""s_add_u32 s32, s32, {SLOT}
                s_cmp_eq_u32 s32, {3*SLOT}
                s_cselect_b32 s32, 0, s32
                s_cmp_lg_u32 s{FCOFF}, 0
                s_cbranch_scc1 L_at_fc""")
                a.label("L_at_back")
            a(J(G[3][:-2]))
            if q == 1 and T == 3: a(f"v_mad_i32_i24 v{VA}, v{MSK}, s29, v{VA}")
            a(J(G[3][-2:]))
    a("s_add_u32 s30, s30, 1\ns_cmp_lt_u32 s30, 8\ns_cbranch_scc1 L_at_loop")
    a(m32(O[1], VF[1], P[1], O[1]))
    a(f"""s_mul_i32 s22, s{XCD}, {20*128}
    s_add_u32 s22, s22, {WS_FC}
    v_min_u32 v8, 19, v2
    v_lshl_add_u32 v8, v8, 7, s22
    buffer_load_dwordx4 v[136:139], v8, s[12:15], 0 offen sc1""")
    C = S[1]
    a(f"""s_setprio 0
    s_mul_i32 s22, s{WV}, 3072
    v_add_u32 v4, s22, v{DMV}
    s_xor_b32 s22, s{WV}, 4
    s_mul_i32 s22, s22, 3072
    v_add_u32 v5, s22, v{DMV}""")
    a(m32(O[1], VF[1]+4, P[1]+4, O[1]))
    stamp(a, 11)
    a(f"""v_mov_b32 v6, 0
    v_mov_b32 v7, 1
    v_mov_b32 v{C+2}, {f32hex(2.0**110)}
    v_pk_add_f32 {v(C,2)}, {v(O[0],2)}, {v(O[0]+2,2)}""")
    for i in range(4, 12, 2): a(f"v_pk_add_f32 {v(C,2)}, {v(C,2)}, {v(O[0]+i,2)}")
    a(f"s_cmp_eq_u32 s{KH}, 0\ns_cbranch_scc1 L_at_c0")
    for i in range(3): a(f"ds_write_b128 v4, {v(O[0]+4*i,4)} offset:{EXC + i*1024}")
    a("s_nop 0")
    for i in range(0, 12, 2): a(f"v_pk_mov_b32 {v(O[0]+i,2)}, {v(O[1]+i,2)}, {v(O[1]+i,2)} op_sel:[0,1]")
    a("s_branch L_at_c1")
    a.label("L_at_c0")
    a("s_nop 1")
    for i in range(3): a(f"ds_write_b128 v4, {v(O[1]+4*i,4)} offset:{EXC + i*1024}")
    a.label("L_at_c1")
    for i in range(0, 12, 2): a(f"v_pk_add_f32 {v(C,2)}, {v(C,2)}, {v(O[1]+i,2)}")
    a(f"""v_add_f32 v{C}, v{C}, v{C+1}
    v_mul_f32 v{C}, {f32hex(2.0**-17)}, v{C}
    v_add_f32 v{C}, abs(v{C}), v{O[0]+12}
    v_add_f32 v{C}, v{C}, v{O[1]+12}
    v_cmp_nlt_f32 vcc, v{C}, v{C+2}""")
    if M0:
        a(f"""v_min_f32 v{C+3}, v{O[0]+12}, v{O[1]+12}
        v_mov_b32 v{C+2}, {f32hex(2.0**-60)}
        v_cmp_lt_f32 s[26:27], v{C+3}, v{C+2}
        s_nop 0
        s_or_b64 vcc, vcc, s[26:27]""")
    a(f"""s_cbranch_vccz L_at_nf
    ds_write_b32 v6, v7 offset:{FLAGW}""")
    a.label("L_at_nf")
    a(f"""s_lshl_b32 s22, s{HW}, 1
    s_add_u32 s22, s22, s{KH}
    s_mul_i32 s22, s22, {2*OG}
    s_add_u32 s23, s22, s{OTAIL}
    s_add_u32 s22, s22, s{OOCT}
    s_waitcnt lgkmcnt(0)""")
    a(f"""s_barrier
    ds_read_b32 v7, v6 offset:{FLAGW}""")
    for i in (2, 0, 1): a(f"ds_read_b128 {v(S[0]+4*i,4)}, v5 offset:{EXC + i*1024}")
    a(f"""s_waitcnt lgkmcnt(2)
    v_readfirstlane_b32 s26, v7""")
    for i in range(8, 12): a(f"v_add_f32 v{O[0]+i}, v{O[0]+i}, v{S[0]+i}")
    a(f"""v_mov_b32 v{S[1]}, v{O[0]+8}
    v_mov_b32 v{S[1]+1}, v{O[0]+8}
    s_cmp_gt_u32 s26, s{MODE}
    s_cbranch_scc1 L_at_fallback
    v_permlane32_swap_b32 v{S[1]}, v{S[1]+1}
    v_rcp_f32 v{S[1]}, v{S[1]+1}
    s_waitcnt lgkmcnt(0)""")
    for i in range(8): a(f"v_add_f32 v{O[0]+i}, v{O[0]+i}, v{S[0]+i}")
    for i in range(12): a(f"v_mul_f32 v{O[0]+i}, v{O[0]+i}, v{S[1]}")
    for i in range(6): a(f"v_cvt_pk_bf16_f32 v{P[0]+i}, v{O[0]+2*i}, v{O[0]+2*i+1}")
    modes = [OSC]
    if '--dbl' in sys.argv: modes = ['sc1', '']
    if '--dbl2' in sys.argv: modes = ['', 'sc1', '']
    if '--osc' in sys.argv: modes = [sys.argv[sys.argv.index('--osc')+1].replace('_', ' ')]
    for md in modes:
        a(f"""buffer_store_dwordx4 {v(P[0],4)}, v{OSA}, s[12:15], s22 offen {md}
        s_mov_b32 exec_hi, 0
        buffer_store_dwordx2 {v(P[0]+4,2)}, v{OST}, s[12:15], s23 offen {md}
        s_mov_b32 exec_hi, -1""")
    stamp(a, 12)
    stamp(a, 51, True)

    def cold():
        a.label("L_at_fc")
        set_flag(a, FCOFF, 6)
        a(f"s_mov_b32 s{FCOFF}, 0\ns_branch L_at_back")
        a.label("L_at_fallback")
        a(f"s_mov_b32 s{MODE}, 1")
        a.label("L_at_refill")
        a("s_waitcnt vmcnt(0) lgkmcnt(0)\ns_barrier")
        attn_reset(a)
        for j in range(3):
            if j == 2: a(f"s_cmp_ge_u32 s{WV}, 4\ns_cbranch_scc1 L_at_f3")
            a(f"s_mov_b32 m0, s{KL[j]}\ns_sub_u32 s22, s{KS[j]}, {TTS_}\nbuffer_load_dwordx4 v{DMV}, s[12:15], s22 offen sc1 lds")
        a.label("L_at_f3")
        a("s_waitcnt vmcnt(0)\ns_branch L_attn")
        a.label("L_at_maxpass")
        MX = [P[0], P[1]]
        for q in range(2):
            a(f"v_cndmask_b32 v{Q1[q]}, 0, v{Q1[q]}, vcc\nv_cndmask_b32 v{Q1[q]+1}, 0, v{Q1[q]+1}, vcc\nv_mov_b32 v{MX[q]}, 0xff800000")
        a.label("L_at_mloop")
        for T in range(4):
            a(J(kr(T, 0)) + "\ns_waitcnt lgkmcnt(0)")
            qk(0, 0); qk(1, 0)
            a("s_nop 7\ns_nop 3")
            for q in range(2): tilemax(a, MX[q], S[q], False)
        a("s_add_u32 s30, s30, 1\ns_cmp_eq_u32 s30, 8\ns_cbranch_scc1 L_at_mdone\ns_barrier")
        for j in range(3):
            if j == 2: a(f"s_cmp_ge_u32 s{WV}, 4\ns_cbranch_scc1 L_at_m3")
            a(f"s_mov_b32 m0, s{KL[j]}\ns_nop 0\nbuffer_load_dwordx4 v{DMV}, s[12:15], s{KS[j]} offen sc1 lds\ns_add_u32 s{KS[j]}, s{KS[j]}, {TTS_}")
        a.label("L_at_m3")
        a("s_waitcnt vmcnt(0)\ns_barrier\ns_branch L_at_mloop")
        a.label("L_at_mdone")
        a(f"""s_lshl_b32 s22, s{WV}, 10
        v_add_u32 v4, s22, v{DMV}
        v_xor_b32 v5, 4096, v4""")
        for q in range(2): halfmax(a, MX[q]); a(f"ds_write_b32 v4, v{MX[q]} offset:{ARING + 2*SLOT + 4*q}")
        a("s_waitcnt lgkmcnt(0)\ns_barrier")
        for q in range(2): a(f"ds_read_b32 v{S[0]+q}, v5 offset:{ARING + 2*SLOT + 4*q}")
        a("s_waitcnt lgkmcnt(0)")
        for q in range(2):
            a(f"v_max_f32 v{MX[q]}, v{MX[q]}, v{S[0]+q}"); set_m(a, q, MX[q])
        a(f"s_mov_b32 s{MODE}, 2\ns_branch L_at_refill")
    return cold

def tail(a):
    ACC = 8
    order = [3, 2, 1, 0]
    tail_setup2(a)
    for i in (7, 6, 5, 4): wo_reads(a, i, i)
    a("s_waitcnt vmcnt(2)")
    poll(a, [8], 4, 136, preloaded=True)
    a(f"""v_lshrrev_b32 v4, 3, v2
    v_and_b32 v5, 7, v2
    v_lshlrev_b32 v5, 4, v5
    v_mul_u32_u24 v4, {RS}, v4
    v_add_u32 v4, v4, v5
    s_mul_i32 s22, s{XCD}, {80*RS}
    s_lshl_b32 s23, s{IDX}, 7
    s_add_u32 s22, s22, s23
    s_mul_i32 s23, s{WV}, {8*RS}
    s_add_u32 s22, s22, s23
    s_add_u32 s22, s22, {WS_YT}
    s_lshl_b32 s23, s{WV}, 10
    s_add_u32 m0, s23, {YSRC}
    s_cmp_ge_u32 s{WV}, 2
    buffer_load_dwordx4 v4, s[12:15], s22 offen sc1 lds
    s_cbranch_scc1 L_t_y1
    s_add_u32 m0, m0, 8192
    s_add_u32 s22, s22, {64*RS}
    buffer_load_dwordx4 v4, s[12:15], s22 offen sc1 lds""")
    a.label("L_t_y1")
    rest = [3, 2, 1, 0, 8]
    for i in rest[:5-LATE]: wo_reads(a, i, i)
    srd(a, 8, P_OUT, 2048*2560)
    for i in range(0, 20, 2): a(f"v_mov_b64 {v(ACC+i,2)}, 0")
    a(f"""v_mov_b32 v5, v{DMV}
    v_lshlrev_b32 v1, 3, v2
    s_mul_i32 s22, s{HW}, 5120
    v_add_u32 v6, s22, v5
    s_mul_i32 s22, s{WV}, 2560
    v_add_u32 v7, s22, v5
    s_mov_b32 s50, 0
    s_mov_b32 s29, 15
    s_add_u32 s27, s{TOS}, 4096""")
    if '--wl' in sys.argv: a("s_waitcnt lgkmcnt(0)")
    stamp(a, 13)
    a.label("L_t_loop")
    for x in order:
        a(f"s_bitcmp0_b32 s29, {x}\ns_cbranch_scc1 L_t_no{x}")
        for e in range(2): a(f"buffer_load_dwordx4 {v(OFR[2*x+e],4)}, v5, s[12:15], s{TOS if x < 2 else 27} offen offset:{((2*x+e)&3)*1024} sc1")
        a(f"buffer_load_dwordx2 {v(OFR[8]+2*x,2)}, v1, s[12:15], s{TTS} offen offset:{x*512} sc1")
        a.label(f"L_t_no{x}")
    a(f"""s_add_u32 s50, s50, 1
    s_cmp_gt_u32 s50, {SPIN}
    s_cselect_b32 s31, 0, -1
    s_mov_b32 s28, s29""")
    if LATE:
        a("s_cmp_lg_u32 s50, 1\ns_cbranch_scc1 L_t_nl")
        for i in rest[5-LATE:]: wo_reads(a, i, i)
        a.label("L_t_nl")
    a("s_waitcnt lgkmcnt(0)")
    for n, x in enumerate(order):
        r0, r1, rt = OFR[2*x], OFR[2*x+1], OFR[8] + 2*x
        a(f"s_bitcmp0_b32 s28, {x}\ns_cbranch_scc1 L_t_co{x}")
        if x > 0:
            a(f"s_and_b32 s22, s28, {(1 << x) - 1}\ns_bcnt1_i32_b32 s22, s22")
            for k in range(x, 0, -1):
                a(f"s_waitcnt vmcnt({3*k})\ns_cmp_eq_u32 s22, {k}\ns_cbranch_scc1 L_t_w{x}")
        a("s_waitcnt vmcnt(0)")
        a.label(f"L_t_w{x}")
        a(f"""v_max3_u32 v4, v{r0}, v{r0+1}, v{r0+2}
        v_max3_u32 v4, v4, v{r0+3}, v{r1}
        v_max3_u32 v4, v4, v{r1+1}, v{r1+2}
        v_max3_u32 v4, v4, v{r1+3}, v{rt}
        v_max_u32 v4, v4, v{rt+1}
        v_and_b32 v4, s31, v4
        v_cmp_eq_u32 vcc, -1, v4
        s_cbranch_vccnz L_t_co{x}
        s_bitset0_b32 s29, {x}""")
        for m in range(5): a(m16(ACC+4*m, WFR[2*x+1]+4*m, r1, ACC+4*m))
        if x == 3: wo_reads(a, 9, 7)
        for m in range(5): a(m16(ACC+4*m, WFR[2*x]+4*m, r0, ACC+4*m))
        a.label(f"L_t_co{x}")
    a("s_cmp_lg_u32 s29, 0\ns_cbranch_scc1 L_t_loop")
    for m in range(5): a(m16(ACC+4*m, WFR[8]+4*m, OFR[8], ACC+4*m))
    a("s_waitcnt lgkmcnt(0)")
    for m in range(5): a(m16(ACC+4*m, WFR[7]+4*m, OFR[9], ACC+4*m))
    stamp(a, 15)
    stamp(a, 52, True)
    if PROF: a(f"v_writelane_b32 v{PV}, s50, 29")
    T = 128
    a(f"""s_cmp_eq_u32 s{KH}, 0
    s_cbranch_scc1 L_t_r0""")
    a("s_nop 5")
    for m in range(5): a(f"ds_write_b128 v6, {v(ACC+4*m,4)} offset:{PART + m*1024}")
    a("s_waitcnt lgkmcnt(0)\ns_barrier")
    for m in range(5): a(f"ds_read_b64_tr_b16 {v(T+2*m,2)}, v253 offset:{YSRC + m*2048}")
    for m in range(5): a(f"s_waitcnt lgkmcnt(4)\nds_write_b64 v{FIW}, {v(T+2*m,2)} offset:{OIMG + 32*m}")
    a("s_branch L_t_st")
    a.label("L_t_r0")
    a("s_barrier")
    for m in range(5): a(f"ds_read_b128 {v(T+4*m,4)}, v6 offset:{PART + m*1024}")
    for m in range(5):
        a(f"s_waitcnt lgkmcnt(4)")
        for i in range(0, 4, 2): a(f"v_pk_add_f32 {v(ACC+4*m+i,2)}, {v(ACC+4*m+i,2)}, {v(T+4*m+i,2)}")
        a(f"v_cvt_pk_bf16_f32 v{ACC+4*m}, v{ACC+4*m}, v{ACC+4*m+1}\nv_cvt_pk_bf16_f32 v{ACC+4*m+1}, v{ACC+4*m+2}, v{ACC+4*m+3}")
        a(f"ds_write_b64 v{FIW}, {v(ACC+4*m,2)} offset:{OIMG + 32*m}")
    a.label("L_t_st")
    for j in range(3): a(f"ds_read_b128 {v(T+24+4*j,4)}, v7 offset:{OIMG + 960*j}")
    a(f"s_mov_b32 exec_hi, 0x0fffffff\ns_add_u32 s22, s{TFS}, {6*2560}\ns_add_u32 s23, s{TFS}, {12*2560}")
    for j in range(3):
        if j == 2: a("s_mov_b32 exec_hi, 0xff")
        a(f"s_waitcnt lgkmcnt({2-j})\nbuffer_store_dwordx4 {v(T+24+4*j,4)}, v250, s[8:11], s{[TFS, 22, 23][j]} offen {OUTSC}")
    a("s_mov_b32 exec_hi, -1")

def main(path):
    a = Asm()
    nm = NAME + "_kernel"
    a(f".globl {nm}\n.p2align 8\n.type {nm},@function")
    a.label(nm)
    a(f"""s_cmp_ge_u32 s2, 256
    s_cbranch_scc1 L_end
    s_load_dwordx16 s[64:79], s[0:1], 0
    s_load_dwordx8 s[80:87], s[0:1], 64
    s_load_dwordx2 s[88:89], s[0:1], 96
    v_lshrrev_b32 v1, 6, v0
    v_and_b32 v2, 63, v0
    v_readfirstlane_b32 s{WV}, v1
    s_and_b32 s{XCD}, s2, 7
    s_lshr_b32 s{IDX}, s2, 3
    s_cmp_lg_u32 s{WV}, 7
    s_cbranch_scc1 L_nopf
    s_cmp_ge_u32 s{IDX}, (L_code_end-{nm})/1024
    s_cbranch_scc1 L_nopf
    s_getpc_b64 s[22:23]""")
    a.label("L_pc")
    a(f"""s_lshl_b32 s24, s{IDX}, 10
    s_sub_u32 s22, s22, L_pc-{nm}
    s_subb_u32 s23, s23, 0
    v_lshl_add_u32 v4, v2, 4, s24
    v_mov_b32 v5, s23
    v_add_co_u32 v4, vcc, s22, v4
    s_nop 1
    v_addc_co_u32 v5, vcc, 0, v5, vcc
    global_load_dwordx4 v[220:223], v[4:5], off""")
    a.label("L_nopf")
    if PROF:
        a(f"v_mov_b32 v{PV}, 0\ns_memrealtime s[90:91]\ns_memtime s[92:93]")
    a(f"""s_and_b32 s{HW}, s{WV}, 3
    s_lshr_b32 s{KH}, s{WV}, 2
    s_mul_i32 s{CHN}, s{XCD}, 20
    s_add_u32 s{CHN}, s{CHN}, s{IDX}
    s_lshl_b32 s{CHN}, s{CHN}, 2
    s_add_u32 s{CHN}, s{CHN}, s{HW}
    s_lshl_b32 s22, s{CHN}, 8
    v_lshl_add_u32 v6, v2, 2, s22
    s_lshl_b32 s22, s{CHN}, 1
    v_mov_b32 v7, s22
    v_lshlrev_b32 v{DMV}, 4, v2
    s_mov_b32 s{FCOFF}, 0
    s_mov_b32 s{MODE}, 0""")
    a(f"""s_cmp_ge_u32 s{IDX}, 20
    s_cbranch_scc1 L_e_np
    s_waitcnt lgkmcnt(0)""")
    for i in range(4): a(f"global_load_dword v{PRM+i}, v6, s[{P_LA+2*i}:{P_LA+2*i+1}]")
    a(f"""global_load_ushort v{PRM+4}, v7, s[{P_DT}:{P_DT+1}]
    global_load_ushort v{VD}, v7, s[{P_D}:{P_D+1}]""")
    a.label("L_e_np")
    loader_math(a)
    a("s_waitcnt lgkmcnt(0)")
    if PROF: a(f"v_writelane_b32 v{PV}, s90, 0\nv_writelane_b32 v{PV}, s92, 1")
    srd(a, 60, P_X, 2048*1280)
    srd(a, 8, P_W, 640*3840)
    srd(a, 12, P_WS, WS_SIZE)
    if TLB:
        a(f"s_cmp_lg_u32 s{WV}, 6\ns_cbranch_scc1 L_notlb")
        srd(a, 4, P_OUT, 2048*2560)
        if TLB == 1:
            a(f"""v_lshlrev_b32 v3, 20, v2
            s_mov_b64 exec, 0x3ffff
            buffer_load_dword v220, v3, s[12:15], 0 offen
            s_mov_b64 exec, 0x1f
            buffer_load_dword v221, v3, s[4:7], 0 offen""")
        else:
            a(f"""s_mul_i32 s22, s{IDX}, {9*65536}
            v_lshlrev_b32 v3, 16, v2
            s_mov_b64 exec, 0x1ff
            buffer_load_dword v220, v3, s[12:15], s22 offen
            s_mul_i32 s22, s{IDX}, {3*65536}
            s_mov_b64 exec, 7
            buffer_load_dword v221, v3, s[4:7], s22 offen""")
        srd(a, 4, P_WO, 640*1280)
        a(f"""v_lshlrev_b32 v3, 16, v2
        s_mov_b64 exec, 0x1fff
        buffer_load_dword v222, v3, s[4:7], 0 offen
        s_mov_b64 exec, -1""")
        a.label("L_notlb")
    a(f"""s_cmp_ge_u32 s{IDX}, 30
    s_cbranch_scc1 L_e_tr
    s_cmp_eq_u32 s{KH}, 1
    s_cbranch_scc1 L_e_h
    s_cmp_lt_u32 s{IDX}, 20
    s_cbranch_scc1 L_g_pro
    s_barrier""")
    a.label("L_g_pro")
    stamp(a, 40)
    issue(a)
    stamp(a, 41)
    a(f"s_setprio 2\ns_cmp_lt_u32 s{IDX}, 20\ns_cbranch_scc1 L_kgen\ns_branch L_gemm")
    a.label("L_e_tr")
    a(f"""s_lshl_b32 s26, s{XCD}, 1
    s_add_u32 s26, s26, s{IDX}
    s_sub_u32 s26, s26, 30
    s_lshl_b32 s26, s26, 3
    s_add_u32 s26, s26, s{WV}
    s_lshl_b32 s27, s{WV}, 13
    s_add_u32 s27, s27, 16384
    s_branch L_e_ut""")
    a.label("L_e_h")
    a(f"""s_or_b32 s22, s2, s{HW}
    s_cmp_lg_u32 s22, 0
    s_cbranch_scc1 L_nn
    s_memrealtime s[22:23]
    v_mov_b32 v3, 0
    s_waitcnt lgkmcnt(0)
    s_or_b32 s22, s22, 1
    v_mov_b32 v4, s22
    s_mov_b64 exec, 1
    global_store_dword v3, v4, s[{P_DBG}:{P_DBG+1}] sc1
    s_mov_b64 exec, -1""")
    a.label("L_nn")
    a(f"""s_mul_i32 s26, s{XCD}, 10
    s_add_u32 s26, s26, s{IDX}
    s_mul_i32 s22, s{HW}, 80
    s_add_u32 s26, s26, s22
    s_add_u32 s26, s26, {128 - 20}
    s_lshl_b32 s27, s{HW}, 13
    s_add_u32 s27, s27, {SCR}
    s_cmp_lt_u32 s{IDX}, 20
    s_cbranch_scc1 L_helper
    s_cmp_ge_u32 s26, 320
    s_cbranch_scc1 L_e_eb""")
    a.label("L_e_ut")
    utile_issue(a)
    a.label("L_e_eb")
    a("s_barrier")
    a(f"s_cmp_ge_u32 s{IDX}, 30\ns_cbranch_scc1 L_utile")
    a.label("L_helper")
    helper(a)
    a.label("L_g_kb")
    a("s_setprio 0")
    skip(a)
    issue(a)
    a(f"v_add_u32 v6, s28, v{DMV}")
    for i in range(4): a(f"ds_write_b128 v6, {v(KACC+4*i,4)} offset:{1024*i}")
    a.label("L_gemm")
    attn_ids(a)
    gemm(a)
    a.label("L_w1")
    window1(a)
    a.label("L_attn")
    cold = attention(a)
    tail(a)
    diag_wait(a, '--dend')
    if PROF:
        a("s_waitcnt vmcnt(0)")
        stamp(a, 16); stamp(a, 17, True)
        a(f"""s_lshl_b32 s22, s2, 3
        s_add_u32 s22, s22, s{WV}
        s_lshl_b32 s22, s22, 8
        s_add_u32 s22, s22, {WS_PROF}
        v_lshlrev_b32 v3, 2, v2
        buffer_store_dword v{PV}, v3, s[12:15], s22 offen""")
    a.label("L_end")
    a("s_endpgm")
    a.label("L_tr_back")
    arr_init(a)
    attn_ids(a)
    o_maps(a)
    a(f"s_cmp_ge_u32 s{WV}, 4\ns_cbranch_scc1 L_tr_b2")
    clear_o(a)
    a.label("L_tr_b2")
    a(f"s_waitcnt lgkmcnt(0)\ns_barrier\ns_cmp_lt_u32 s{WV}, 4\ns_cbranch_scc1 L_w1\ns_branch L_h_ids")
    cold()
    a(f".fill (1024 - ((. - {nm}) % 1024))/4, 4, 0xbf810000")
    a.label("L_code_end")
    hdr = open("cdna_kernels/" + NAME + ".s.ref").read().split("\n")
    head = [l for l in hdr[:15] if l.startswith(";") and "@launch" not in l and "Override" not in l and "grid=ceil" not in l]
    txt = "\n".join(head) + "\n; @launch grid=(256,1,1) block=(512,1,1) lds=163840\n"
    txt += '.amdgcn_target "amdgcn-amd-amdhsa--gfx950"\n.text\n' + a.text()
    txt += f""".section .rodata,"a"
.p2align 6
.amdhsa_kernel {nm}
  .amdhsa_next_free_vgpr 256
  .amdhsa_next_free_sgpr 102
  .amdhsa_accum_offset 256
  .amdhsa_group_segment_fixed_size 0
  .amdhsa_kernarg_size 104
  .amdhsa_user_sgpr_count 2
  .amdhsa_user_sgpr_kernarg_segment_ptr 1
  .amdhsa_system_sgpr_workgroup_id_x 1
.end_amdhsa_kernel
"""
    open(path, "w").write(txt)
    errs = check_hazards(a.text())
    for e in errs[:30]: print("HAZARD", e)
    print(f"{path}: {len(a.lines)} lines, {len(errs)} hazards")

if __name__ == "__main__":
    main([x for x in sys.argv[1:] if x.endswith(".s")][0])
```

```python
import math, sys
from asmlib import *

NAME = "concat_heads__ssm_conv_s4d__mha_block__prompt"
WS_QKV = 0
WS_O = 0x800000
WS_UT = 0xB00000
WS_YT = 0xE00000
WS_FA = 0x1100000
WS_FB = 0x1110000
WS_FC = 0x1120000
WS_PROF = 0x1300000
WS_SIZE = 0x1400000
TTS_ = 480*1024
OG = 20480
RS = 4352
LOG2E = math.log2(math.e)
QSCALE = LOG2E / math.sqrt(20.0)
PROF = "--prof" in sys.argv
M0 = "--m0" in sys.argv
SPIN = 0x40000
LATE = int(sys.argv[sys.argv.index('--late')+1]) if '--late' in sys.argv else 0
PSL = int(sys.argv[sys.argv.index('--psl')+1]) if '--psl' in sys.argv else 0
PRE = int(sys.argv[sys.argv.index('--pre')+1]) if '--pre' in sys.argv else 4
PRE2 = int(sys.argv[sys.argv.index('--pre2')+1]) if '--pre2' in sys.argv else 0
PACKA = '--nopacka' not in sys.argv
ALN = int(sys.argv[sys.argv.index('--al')+1]) if '--al' in sys.argv else 0
ALP = int(sys.argv[sys.argv.index('--alp')+1]) if '--alp' in sys.argv else 6
FILL1 = int(sys.argv[sys.argv.index('--fill')+1]) if '--fill' in sys.argv else 0
OUTSC = sys.argv[sys.argv.index('--outsc')+1].replace('_', ' ') if '--outsc' in sys.argv else ''
TLB = int(sys.argv[sys.argv.index('--tlb')+1]) if '--tlb' in sys.argv else 0
POLLC = int(sys.argv[sys.argv.index('--pollc')+1]) if '--pollc' in sys.argv else 5
UP = int(sys.argv[sys.argv.index('--up')+1]) if '--up' in sys.argv else 1
UNT = 'nt' if '--unt' in sys.argv else ''
X16 = '--x16' in sys.argv
PRIO = [int(x) for x in sys.argv[sys.argv.index('--prio')+1].split(',')] if '--prio' in sys.argv else [0, 16, 26, 30]
LOC = '--loc' in sys.argv
OSC = '' if '--plainO' in sys.argv else 'sc1'
SPEC = int(sys.argv[sys.argv.index('--spec')+1]) if '--spec' in sys.argv else 1
XNT = "nt" if "--xnt" in sys.argv else ""
WNT = "nt" if "--wnt" in sys.argv else ""
J = "\n".join

WV, XCD, IDX, NONCE = 16, 17, 18, 19
TT, CT = 20, 21
FCOFF, HEAD5, QB, OOFF = 36, 37, 38, 39
KS = [40, 41, 42]; KL = [44, 45, 46]
MODE, KH, KHOFF = 47, 48, 49
HW, CHN = 51, 52
OOCT, OTAIL = 54, 55
XS, WSO, LB = 56, 57, 99
TB = 58
P_U, P_LA, P_AI, P_CR, P_CI, P_DT, P_D, P_X, P_W, P_WO, P_OUT, P_DBG, P_WS = range(64, 90, 2)
WOS, WOL = 94, 95
MK, MK2, MC = 33+1, 35, 100
MW = [101, 25]
PV = 255
DX, DW = 240, 244
PL1, PL2 = 234, 235
DMV, KA, K4, VA, MSK, MS4, WOV, QA4, QA0 = range(224, 233)

RING = 32768
SCR = 3*RING
UST = 4640
KOFF = 4*UST
CHA = KOFF + 4224
CVB = 65536
PST = 2048 + 32
SLOT = 20992
FLAGW = 0
CONSTP = 64
ARING = 1280
QLDS = ARING + 2*SLOT
WOB = 163840 - 107*960 - 64
EXC = ARING
YSRC = WOB - 10240
PART = 25856
KSC = SCR
CNT = 129536
ARRW = CNT
OIMG = ARING
assert CVB + 4*CHA <= 163840 and ARING + 3*SLOT <= 65536 and ARING + 3*SLOT <= WOB + 11*960
assert EXC + 24576 <= PART and PART + 20480 <= YSRC and YSRC >= ARING + 2*SLOT and EXC + 24576 <= ARING + SLOT + 5*PST and OIMG + 20480 <= PART

def srd(a, d, lo, size):
    a(f"s_mov_b32 s{d}, s{lo}\ns_and_b32 s{d+1}, s{lo+1}, 0xffff\ns_mov_b32 s{d+2}, {size}\ns_mov_b32 s{d+3}, 0x20000")
def m32(d, x, y, c=None):
    return f"v_mfma_f32_32x32x16_bf16 {v(d,16)}, {v(x,4)}, {v(y,4)}, {v(c,16) if c is not None else 0}"
def m32x8(d, x, y, c):
    if X16: return f"v_mfma_f32_32x32x16_bf16 {v(d,16)}, {v(x-2,4)}, {v(y-2,4)}, {v(c,16)}"
    return f"v_mfma_f32_32x32x8_bf16 {v(d,16)}, {v(x,2)}, {v(y,2)}, {v(c,16)}"
def m16(d, x, y, c=None):
    return f"v_mfma_f32_16x16x32_bf16 {v(d,4)}, {v(x,4)}, {v(y,4)}, {v(c,4) if c is not None else 0}"
LITE = "--lite" in sys.argv
def stamp(a, i, real=False):
    if LITE and i not in (50, 51, 53, 17) + ((52, 44, 45, 46, 47) if '--tl' in sys.argv and real else ()): return
    if PROF: a(f"s_mem{'real' if real else ''}time s[92:93]\ns_waitcnt lgkmcnt(0)\nv_writelane_b32 v{PV}, s92, {i}")

def diag_wait(a, key):
    if key not in sys.argv: return
    x = int(sys.argv[sys.argv.index(key)+1]) * 100
    l = a.newlabel("L_dg")
    a.label(l)
    a(f"""s_memrealtime s[90:91]
    s_waitcnt lgkmcnt(0)
    s_sub_u32 s90, s90, s{NONCE}
    s_cmp_lt_u32 s90, {x}
    s_cbranch_scc1 {l}""")

def get_nonce(a):
    l = a.newlabel("L_nonce"); e = a.newlabel("L_nonce_e")
    a(f"""s_load_dword s{NONCE}, s[{P_DBG}:{P_DBG+1}], 0
    s_mov_b32 s50, 0
    v_mov_b32 v222, 0
    s_waitcnt lgkmcnt(0)""")
    a.label(l)
    a(f"""s_cmp_lg_u32 s{NONCE}, 0
    s_cbranch_scc1 {e}
    global_load_dword v223, v222, s[{P_DBG}:{P_DBG+1}] sc1
    s_add_u32 s50, s50, 1
    s_waitcnt vmcnt(0)
    v_readfirstlane_b32 s{NONCE}, v223
    s_cmp_lt_u32 s50, {SPIN}
    s_cbranch_scc1 {l}""")
    a.label(e)

def poll(a, addrs, width, vt, preloaded=False, sleep=0, cnt=50):
    l = a.newlabel("L_poll"); e = a.newlabel("L_poll_e")
    sfx = {1: "dword", 4: "dwordx4"}[width]
    a(f"s_mov_b32 s{cnt}, 0")
    if preloaded: a(f"s_branch {l}_c")
    a.label(l)
    for k, ad in enumerate(addrs): a(f"buffer_load_{sfx} {v(vt+4*k,width)}, v{ad}, s[12:15], 0 offen sc1")
    a(f"s_add_u32 s{cnt}, s{cnt}, 1\ns_waitcnt vmcnt(0)")
    a.label(l + "_c")
    regs = [vt+4*k+j for k in range(len(addrs)) for j in range(width)]
    for r in regs: a(f"v_xor_b32 v{r}, s{NONCE}, v{r}")
    for r in regs[1:]: a(f"v_or_b32 v{regs[0]}, v{regs[0]}, v{r}")
    a(f"""v_cmp_ne_u32 vcc, 0, v{regs[0]}
    s_cmp_gt_u32 s{cnt}, {SPIN}
    s_cbranch_scc1 {e}""")
    if sleep: a(f"s_cbranch_vccz {e}\ns_sleep {sleep}\ns_branch {l}")
    else: a(f"s_cbranch_vccnz {l}")
    a.label(e)

def set_flag(a, soff, vt):
    a(f"""v_mov_b32 v{vt}, 0
    v_mov_b32 v{vt+1}, s{NONCE}
    s_mov_b64 exec, 1
    buffer_store_dword v{vt+1}, v{vt}, s[12:15], s{soff} offen sc1
    s_mov_b64 exec, -1""")

def attn_ids(a):
    if LOC: a(f"s_mov_b32 s{HEAD5}, s{IDX}\ns_mov_b32 s{QB}, s{XCD}")
    else: a(f"""s_lshl_b32 s{HEAD5}, s{XCD}, 2
    s_lshr_b32 s22, s{IDX}, 3
    s_add_u32 s{HEAD5}, s{HEAD5}, s22
    s_and_b32 s{QB}, s{IDX}, 7""")
    a(f"""s_mul_i32 s22, s{QB}, {16*OG}
    s_add_u32 s22, s22, {WS_O}
    s_lshl_b32 s{OOCT}, s{HEAD5}, 9
    s_add_u32 s{OOCT}, s{OOCT}, s22
    s_lshl_b32 s{OTAIL}, s{HEAD5}, 7
    s_add_u32 s{OTAIL}, s{OTAIL}, s22
    s_add_u32 s{OTAIL}, s{OTAIL}, 16384
    s_mul_i32 s{HEAD5}, s{HEAD5}, 5
    s_lshl_b32 s{OOFF}, s{HEAD5}, 10
    s_mul_i32 s22, s{QB}, {2*TTS_}
    s_add_u32 s{OOFF}, s{OOFF}, s22""")

def clear_o(a):
    a(f"""v_lshrrev_b32 v140, 5, v2
    v_mul_u32_u24 v140, {2*OG}, v140
    v_add_u32 v140, v140, v{OST}
    v_mov_b32 v136, -1
    v_mov_b32 v137, -1
    v_mov_b32 v138, -1
    v_mov_b32 v139, -1
    s_mul_i32 s24, s{HW}, {4*OG}
    s_add_u32 s22, s24, s{OOCT}
    s_add_u32 s23, s22, {2*OG}
    s_add_u32 s24, s24, s{OTAIL}
    buffer_store_dwordx4 v[136:139], v{OSA}, s[12:15], s22 offen sc1
    buffer_store_dwordx4 v[136:139], v{OSA}, s[12:15], s23 offen sc1
    buffer_store_dwordx2 v[136:137], v140, s[12:15], s24 offen sc1""")

def arr_init(a):
    a(f"v_mov_b32 v220, {CNT}\nv_mov_b32 v222, 0\nv_mov_b32 v223, 0\nds_write_b64 v220, v[222:223]")

def utile_issue(a):
    srd(a, 4, P_U, 2048*1280)
    a(f"""v_lshlrev_b32 v4, 4, v9
    v_mul_u32_u24 v3, 1280, v8
    v_add_u32 v3, v3, v4
    s_mov_b32 m0, s27
    s_lshr_b32 s23, s26, 5
    s_and_b32 s28, s26, 31
    s_mul_i32 s24, s28, {64*1280}
    s_lshl_b32 s22, s23, 7
    s_add_u32 s24, s24, s22
    s_mov_b32 s30, 0""")
    a.label("L_ut_i")
    a(f"""buffer_load_dwordx4 v3, s[4:7], s24 offen {UNT} lds
    s_add_u32 m0, m0, 1024
    s_add_u32 s24, s24, {8*1280}
    s_add_u32 s30, s30, 1
    s_cmp_lt_u32 s30, 8
    s_cbranch_scc1 L_ut_i""")
def utile(a):
    A0, A1, A2, A3, D = 8, 9, 10, 11, 12
    a(f"""s_lshr_b32 s23, s26, 5
    v_xor_b32 v{A1}, v{A1}, v{A0}
    v_lshlrev_b32 v{A1}, 4, v{A1}
    v_mul_u32_u24 v{A3}, {RS}, v{A0}
    v_add_u32 v{A3}, v{A3}, v{A1}
    v_lshlrev_b32 v{A0}, 4, v2
    v_add_u32 v{A0}, s27, v{A0}
    v_bfe_u32 v{A1}, v2, 2, 2
    v_lshlrev_b32 v{A1}, 7, v{A1}
    v_lshrrev_b32 v{A2}, 4, v2
    v_lshl_add_u32 v{A1}, v{A2}, 5, v{A1}
    v_and_b32 v{A2}, 3, v2
    v_lshl_add_u32 v{A1}, v{A2}, 3, v{A1}
    v_add_u32 v{A1}, s27, v{A1}
    v_and_b32 v{A2}, 7, v2
    v_lshlrev_b32 v{A2}, 4, v{A2}
    v_lshl_add_u32 v{A2}, v2, 7, v{A2}
    v_add_u32 v{A2}, s27, v{A2}
    s_mul_i32 s23, s23, {64*RS}
    s_lshl_b32 s24, s28, 7
    s_add_u32 s24, s24, s23
    s_add_u32 s24, s24, {WS_UT}
    s_lshl_b32 s29, s26, {2 if PACKA else 7}
    s_add_u32 s29, s29, {WS_FA}""")
    stamp(a, 27)
    a("s_waitcnt vmcnt(0)")
    stamp(a, 28)
    for i in range(16): a(f"ds_read_b64_tr_b16 {v(D+2*i,2)}, v{A1} offset:{i*512}")
    a("s_waitcnt lgkmcnt(0)")
    for i in range(8): a(f"v_xor_b32 v4, {16*i}, v{A2}\nds_write_b128 v4, {v(D+4*i,4)}")
    a("s_waitcnt lgkmcnt(0)")
    for i in range(8): a(f"ds_read_b128 {v(D+4*i,4)}, v{A0} offset:{i*1024}")
    for i in range(8):
        a(f"s_waitcnt lgkmcnt({7-i})\nbuffer_store_dwordx4 {v(D+4*i,4)}, v{A3}, s[12:15], s24 offen sc1\ns_add_u32 s24, s24, {8*RS}")
    stamp(a, 2)
    a(f"s_mov_b32 s33, 2\ns_cmp_lt_u32 s{IDX}, 30\ns_cbranch_scc1 L_h_ld0")
    get_nonce(a)
    a("s_waitcnt vmcnt(0)")
    set_flag(a, 29, 4)
    stamp(a, 3)

def next_slot(a, cur, tmp):
    a(f"""s_add_u32 s{cur}, s{cur}, {RING}
    s_lshr_b32 s{tmp}, s{cur}, 15
    s_cmp_eq_u32 s{tmp}, 3
    s_cselect_b32 s{tmp}, {RING}, 0
    s_add_u32 s{cur}, s{cur}, s{tmp}
    s_cmp_ge_u32 s{cur}, {5*RING}
    s_cselect_b32 s{tmp}, {5*RING}, 0
    s_sub_u32 s{cur}, s{cur}, s{tmp}""")

ORD = sys.argv[sys.argv.index('--ord')+1] if '--ord' in sys.argv else 'quad'
def orders():
    if ORD == 'none': return [list(range(10))]*4
    if ORD == 'pair': return [[c ^ (t & 1) for c in range(10)] for t in range(4)]
    if ORD == 'quad': return [[(c ^ t) if c < 8 else (c ^ (t & 1)) for c in range(10)] for t in range(4)]
    if ORD == 'half': return [[(c + 5*(t & 1)) % 10 for c in range(10)] for t in range(4)]
    if ORD == 'rot': return [[(c + (0, 3, 5, 8)[t]) % 10 for c in range(10)] for t in range(4)]
    if ORD == 'tri': return [[(c//3*3 + (c + t) % 3) if c < 9 else 9 for c in range(10)] for t in (0, 1, 2, 1)]
def loader_math(a):
    a(f"""s_lshr_b32 s{TT}, s{XCD}, 1
    s_lshl_b32 s{TT}, s{TT}, 2
    s_and_b32 s24, s{XCD}, 1
    s_and_b32 s22, s{IDX}, 3
    s_lshr_b32 s23, s{IDX}, 2
    s_lshl_b32 s{CT}, s24, 3
    s_add_u32 s{CT}, s{CT}, s23
    s_lshl_b32 s24, s24, 1
    s_cmp_ge_u32 s{IDX}, 28
    s_cselect_b32 s{CT}, 7, s{CT}
    s_cselect_b32 s24, s24, 0
    s_add_u32 s22, s22, s24
    s_add_u32 s{TT}, s{TT}, s22
    s_add_u32 s22, s{TT}, s{CT}
    s_and_b32 s22, s22, 3""")
    tb = [sum(c << (4*i) for i, c in enumerate(o)) for o in orders()]
    a(f"s_mov_b32 s{TB}, {tb[0] & 0xffffffff}\ns_mov_b32 s{TB+1}, {tb[0] >> 32}")
    for t in range(1, 4):
        if tb[t] != tb[0]: a(f"s_cmp_eq_u32 s22, {t}\ns_cselect_b32 s{TB}, {tb[t] & 0xffffffff}, s{TB}\ns_cselect_b32 s{TB+1}, {tb[t] >> 32}, s{TB+1}")
    a(f"""v_lshrrev_b32 v8, 3, v2
    v_and_b32 v9, 7, v2
    v_lshrrev_b32 v5, 1, v8
    s_and_b32 s22, s{HW}, 1
    s_lshl_b32 s22, s22, 2
    v_add_u32 v5, s22, v5
    v_xor_b32 v4, v9, v5
    v_lshlrev_b32 v4, 4, v4
    v_mul_u32_u24 v3, 2560, v8
    v_add_u32 v{DX}, v3, v4
    s_lshl_b32 s{XS}, s{TT}, 3
    s_add_u32 s{XS}, s{XS}, s{HW}
    s_mul_i32 s{XS}, s{XS}, {16*1280}
    v_lshrrev_b32 v3, 4, v2
    v_bfe_u32 v4, v2, 2, 2
    v_xor_b32 v4, v4, v3
    v_lshlrev_b32 v4, 6, v4
    v_and_b32 v5, 3, v2
    v_lshlrev_b32 v5, 4, v5
    v_mul_u32_u24 v3, 3840, v3
    v_add3_u32 v{DW}, v3, v4, v5
    s_lshl_b32 s{WSO}, s{CT}, 8
    s_mul_i32 s22, s{HW}, {4*3840}
    s_add_u32 s{WSO}, s{WSO}, s22
    s_lshl_b32 s{LB}, s{HW}, 10
    s_lshl_b32 s22, s{KH}, 15
    s_add_u32 s{LB}, s{LB}, s22
    s_lshl_b32 s22, s{KH}, 2
    s_lshr_b64 s[{TB}:{TB+1}], s[{TB}:{TB+1}], s22""")
    for i in range(1, 4):
        a(f"v_add_u32 v{DX+i}, {(64*(i>>1) + (i&1))*1280}, v{DX}\nv_add_u32 v{DW+i}, {i*16*3840}, v{DW}")
def dma_prep():
    return f"""s_and_b32 s43, s{TB}, 15
    s_lshr_b64 s[{TB}:{TB+1}], s[{TB}:{TB+1}], 4
    s_lshl_b32 s100, s43, 7
    s_add_u32 s100, s100, s{XS}
    s_mul_i32 s101, s43, {64*3840}
    s_add_u32 s101, s101, s{WSO}"""
def issue(a, fill=None):
    a(dma_prep())
    per = (len(fill) + 7) // 8 if fill else 0
    for k in range(8):
        i = k >> 1
        a(f"s_add_u32 m0, s{LB}, {i*4096 + (16384 if k & 1 else 0)}\ns_nop 0")
        a(f"buffer_load_dwordx4 v{(DW if k & 1 else DX)+i}, s[{'8:11' if k & 1 else '60:63'}], s{101 if k & 1 else 100} offen lds")
        if fill:
            n = min(per, len(fill))
            while n < len(fill) and (fill[n].startswith(("s_cselect", "s_addc"))): n += 1
            a(J(fill[:n])); del fill[:n]
    assert not fill
    next_slot(a, LB, 43)
def skip(a):
    a(f"s_lshr_b64 s[{TB}:{TB+1}], s[{TB}:{TB+1}], 4")
    next_slot(a, LB, 22)
def lds_wait(a, va, off, vt, sleep=True):
    l = a.newlabel("L_lw"); e = a.newlabel("L_le")
    a.label(l)
    a(f"""ds_read_b32 v{vt}, v{va} offset:{off}
    s_waitcnt lgkmcnt(0)
    v_readfirstlane_b32 s22, v{vt}
    s_cmp_ge_u32 s22, 4
    s_cbranch_scc1 {e}""")
    if sleep: a("s_sleep 2")
    a(f"s_branch {l}")
    a.label(e)

def main_pre(a):
    def wg_of(tt, ct, dst):
        a(f"""v_cmp_eq_u32 vcc, 7, v{ct}
        v_bfe_u32 v10, v{tt}, 1, 1
        v_lshrrev_b32 v11, 3, v{ct}
        v_cndmask_b32 v10, v11, v10, vcc
        v_and_b32 v11, 3, v{tt}
        v_and_b32 v12, 1, v{tt}
        v_cndmask_b32 v11, v11, v12, vcc
        v_and_b32 v12, 7, v{ct}
        v_lshl_add_u32 v11, v12, 2, v11
        v_lshl_add_u32 v10, v11, 3, v10
        v_lshrrev_b32 v11, 2, v{tt}
        v_lshl_add_u32 v{dst}, v11, 1, v10""")
    a(f"""v_and_b32 v3, 15, v2
    v_lshrrev_b32 v4, 5, v2
    v_mul_u32_u24 v4, 160, v4
    v_bfe_u32 v5, v2, 4, 1
    v_lshl_add_u32 v4, v5, 2, v4
    s_add_u32 s22, s{HEAD5}, 160
    v_add_u32 v4, s22, v4
    v_lshrrev_b32 v4, 5, v4""")
    wg_of(3, 4, 8)
    a(f"""v_lshlrev_b32 v8, 7, v8
    v_add_u32 v{PL1}, {WS_FB}, v8
    v_and_b32 v3, 1, v2
    s_lshl_b32 s22, s{QB}, 1
    v_add_u32 v3, s22, v3
    v_bfe_u32 v4, v2, 1, 1
    v_lshlrev_b32 v4, 2, v4
    v_add_u32 v4, s{HEAD5}, v4
    v_lshrrev_b32 v4, 5, v4""")
    wg_of(3, 4, 9)
    if LOC: a(f"v_lshl_add_u32 v3, v2, 3, s{XCD}")
    else: a(f"""v_bfe_u32 v3, v2, 3, 2
    v_lshlrev_b32 v3, 6, v3
    v_and_b32 v4, 7, v2
    s_lshl_b32 s22, s{XCD}, 3
    v_add3_u32 v3, v3, v4, s22""")
    a(f"""v_cmp_gt_u32 vcc, 32, v2
    s_nop 1
    v_cndmask_b32 v9, v9, v3, vcc
    v_lshlrev_b32 v9, 7, v9
    v_add_u32 v{PL2}, {WS_FB}, v9""")

def gemm(a):
    XA = [10, 11, 12, 13]; WA = [14, 15]
    FX = [[16, 20], [32, 36]]; FW = [[24, 28], [40, 44]]
    ACC = 48
    a(f"""s_and_b32 s34, s{WV}, 1
    s_lshr_b32 s35, s{WV}, 1
    v_and_b32 v3, 31, v2
    v_lshrrev_b32 v4, 5, v2
    v_bfe_u32 v5, v3, 1, 3
    v_xor_b32 v5, v5, v4
    v_lshlrev_b32 v5, 4, v5
    v_lshlrev_b32 v6, 7, v3
    s_lshl_b32 s22, s34, 13
    v_add3_u32 v{XA[0]}, v5, v6, s22
    v_xor_b32 v{XA[1]}, 32, v{XA[0]}
    v_xor_b32 v{XA[2]}, 64, v{XA[0]}
    v_xor_b32 v{XA[3]}, 96, v{XA[0]}
    v_bfe_u32 v5, v2, 2, 2
    s_lshl_b32 s22, s35, 1
    v_xor_b32 v6, s22, v5
    v_lshlrev_b32 v6, 6, v6
    v_lshlrev_b32 v7, 3, v4
    v_add_u32 v7, v7, v5
    v_lshlrev_b32 v7, 8, v7
    v_bfe_u32 v5, v2, 4, 1
    v_lshlrev_b32 v5, 5, v5
    v_add3_u32 v6, v6, v7, v5
    v_and_b32 v5, 3, v2
    v_lshl_add_u32 v6, v5, 3, v6
    v_add_u32 v{WA[0]}, 16384, v6
    v_xor_b32 v{WA[1]}, 64, v{WA[0]}
    v_lshlrev_b32 v5, 10, v4
    v_lshl_add_u32 v5, v3, 4, v5
    s_lshl_b32 s26, s{CT}, 5
    s_lshl_b32 s23, s35, 4
    s_add_u32 s26, s26, s23
    s_lshl_b32 s26, s26, 10
    s_mul_i32 s23, s{TT}, {TTS_}
    s_add_u32 s26, s26, s23
    s_lshl_b32 s23, s34, 9
    s_add_u32 s26, s26, s23""")
    for i in range(0, 64, 2): a(f"v_mov_b64 {v(ACC+i,2)}, 0")
    def rx(ks, buf, t): return f"ds_read_b128 {v(FX[buf][t],4)}, v{XA[ks]} offset:{t*4096}"
    def rw(ks, buf, m, rd): return f"ds_read_b64_tr_b16 {v(FW[buf][m]+2*rd,2)}, v{WA[m]} offset:{(16*ks+4*rd)*256}"
    def rds(ks, buf): return [rx(ks,buf,0), rw(ks,buf,0,0), rw(ks,buf,0,1), rx(ks,buf,1), rw(ks,buf,1,0), rw(ks,buf,1,1)]
    def mf(buf, m, t):
        if '--g16' in sys.argv:
            d = ACC+(m*2+t)*16 + 8*buf
            return m16(d, FW[buf][m], FX[buf][t], d) + "\n" + m16(d+4, FX[buf][t], FW[buf][m], d+4)
        return m32(ACC+(m*2+t)*16, FW[buf][m], FX[buf][t], ACC+(m*2+t)*16)
    stamp(a, 24)
    a(f"s_cmp_lt_u32 s{IDX}, 20\ns_cbranch_scc1 L_g_w")
    issue(a)
    a("s_waitcnt vmcnt(8)")
    issue(a)
    a("s_branch L_g_b0")
    a.label("L_g_w")
    a("s_waitcnt vmcnt(8) lgkmcnt(0)")
    a.label("L_g_b0")
    o_maps(a)
    clear_o(a)
    stamp(a, 25)
    a("s_mov_b32 s30, 0\ns_mov_b32 s31, 0\ns_setprio 2")
    stamp(a, 26)
    a("s_barrier")
    stamp(a, 2)
    a(J(rds(0, 0)))
    a(".p2align 3")
    a.label("L_g_mm")
    for ks in range(4):
        b = ks & 1
        r = rds((ks+1) & 3, b ^ 1)
        a("s_waitcnt lgkmcnt(3)")
        a(mf(b, 0, 0))
        if ks < 3:
            a(J(r[0:3]) + "\ns_waitcnt lgkmcnt(5)")
            a(mf(b, 0, 1))
            a(J(r[3:6]) + "\ns_waitcnt lgkmcnt(6)")
            a(mf(b, 1, 0))
            if ks == 0:
                a("s_mov_b32 s32, s31"); next_slot(a, 31, 33)
            if ks == 1: a(f"s_sub_u32 s33, s31, s32\ns_add_u32 s30, s30, 1\nv_add_u32 v{XA[0]}, s33, v{XA[0]}\nv_add_u32 v{XA[1]}, s33, v{XA[1]}\nv_add_u32 v{XA[2]}, s33, v{XA[2]}")
            if ks == 2: a(f"v_add_u32 v{XA[3]}, s33, v{XA[3]}\nv_add_u32 v{WA[0]}, s33, v{WA[0]}\nv_add_u32 v{WA[1]}, s33, v{WA[1]}\ns_cmp_eq_u32 s30, 1")
            a(mf(b, 1, 1))
        else:
            a("s_cbranch_scc1 L_g_w8\ns_waitcnt vmcnt(3)")
            a.label("L_g_w8")
            a("s_waitcnt vmcnt(11) lgkmcnt(0)\ns_cmp_gt_u32 s30, 8\ns_cbranch_scc1 L_g_nb\ns_barrier")
            a.label("L_g_nb")
            a(mf(b, 0, 1))
            a(J(r[0:3]) + "\ns_cmp_lt_u32 s30, 10")
            a(mf(b, 1, 0))
            a(J(r[3:6]))
            a(mf(b, 1, 1))
            a("s_cbranch_scc1 L_g_mm")
    stamp(a, 3)
    a("s_nop 4\ns_waitcnt lgkmcnt(0)")
    for q in range(2):
        if q == 0: a(f"s_cmp_lt_u32 s{CT}, 5\ns_cbranch_scc1 L_g_eq")
        else: a.label("L_g_eq"); a(f"s_mov_b32 s28, {f32hex(QSCALE)}")
        k = 0
        for m in range(2):
            for g in range(4):
                d = 16 + 4*k; k += 1
                for t in range(2):
                    r = ACC + (m*2+t)*16 + 4*g
                    if q:
                        for i in range(4): a(f"v_mul_f32 v{r+i}, s28, v{r+i}")
                    a(f"v_cvt_pk_bf16_f32 v{d+2*t}, v{r}, v{r+1}\nv_cvt_pk_bf16_f32 v{d+2*t+1}, v{r+2}, v{r+3}")
                if k & 1: a(f"s_add_u32 s23, s26, {WS_QKV + (m*8+2*g)*1024}")
                a(f"buffer_store_dwordx4 {v(d,4)}, v5, s[12:15], s23 offen offset:{0 if k & 1 else 2048} sc1")
        if q == 0: a("s_branch L_w1")

PRM = 152
VD = 233
def cm(d, x, z, t):
    return [f"v_pk_mul_f32 {v(t,2)}, {v(x,2)}, {v(z,2)} op_sel:[0,0] op_sel_hi:[1,0]",
            f"v_pk_fma_f32 {v(d,2)}, {v(x,2)}, {v(z,2)}, {v(t,2)} op_sel:[1,1,0] op_sel_hi:[0,1,1] neg_lo:[0,1,0]"]
def ilv(*ls):
    out = []
    for i in range(max(len(x) for x in ls)):
        for x in ls:
            if i < len(x): out.append(x[i])
    return out
GDT, GER, GTH, GT = 112, 113, 114, 116
def kg_dt(a):
    a(f"""v_lshlrev_b32 v{GDT}, 16, v{PRM+4}
    v_mul_f32 v{GDT}, {f32hex(LOG2E)}, v{GDT}
    v_exp_f32 v{GDT}, v{GDT}
    s_lshl_b32 s22, s{KH}, 4
    v_cvt_pk_bf16_f32 v{GDT}, v{GDT}, v{GDT}
    v_and_b32 v{GDT}, 0xffff0000, v{GDT}""")
def kg_setup(anchors, X0):
    o = f"""v_lshlrev_b32 v{PRM}, s22, v{PRM}
    v_lshlrev_b32 v{PRM+1}, s22, v{PRM+1}
    v_and_b32 v{GER}, 0xffff0000, v{PRM}
    v_mul_f32 v{GER}, {f32hex(LOG2E)}, v{GER}
    v_exp_f32 v{GER}, v{GER}
    v_and_b32 v{GTH}, 0xffff0000, v{PRM+1}
    v_lshlrev_b32 v{PRM+2}, s22, v{PRM+2}
    v_cvt_pk_bf16_f32 v{GER}, v{GER}, v{GER}
    v_lshlrev_b32 v{PRM+3}, s22, v{PRM+3}
    v_and_b32 v{GER}, 0xffff0000, v{GER}
    v_mul_f32 v{GER}, v{GER}, v{GDT}
    v_mul_f32 v{GTH}, v{GTH}, v{GDT}
    v_mul_f32 v{GER}, {f32hex(-LOG2E)}, v{GER}
    v_mul_f32 v{GTH}, 0.15915494, v{GTH}
    v_and_b32 v{X0}, 0xffff0000, v{PRM+2}
    v_and_b32 v{X0+1}, 0xffff0000, v{PRM+3}
    v_mul_f32 v{X0}, v{X0}, v{GDT}
    v_mul_f32 v{X0+1}, v{X0+1}, v{GDT}
    v_add_f32 v{X0}, v{X0}, v{X0}
    v_add_f32 v{X0+1}, v{X0+1}, v{X0+1}""".split("\n")
    for (z, p) in anchors:
        o += f"""v_mul_f32 v{GT}, {f32hex(p)}, v{GER}
        v_mul_f32 v{GT+1}, {f32hex(p)}, v{GTH}
        v_exp_f32 v{GT}, v{GT}
        v_fract_f32 v{GT+1}, v{GT+1}
        v_cos_f32 v{z}, v{GT+1}
        v_sin_f32 v{z+1}, v{GT+1}
        v_mul_f32 v{z}, v{z}, v{GT}
        v_mul_f32 v{z+1}, v{z+1}, v{GT}""".split("\n")
    return o

def krow():
    def row(h, reg): return 8*(reg >> 2) + 4*h + (reg & 3)
    rowp = {}
    for p in range(4): rowp[row(0, p)] = p; rowp[row(1, p)] = p + 4
    for i, (p0, p1) in enumerate(((256, 260), (258, 262), (260, 264), (512, 768), (516, 772), (520, 776), (1024, 1280), (1032, 1288), (1536, 1792), (1544, 1800))):
        rowp[row(0, 4+i)] = p0; rowp[row(1, 4+i)] = p1
    return rowp
XORD = [1, 2, 3, 4, 5, 6, 7, 258, 260, 262, 516, 772, 1544, 1800, 0, 256, 264, 512, 520, 768, 776, 1024, 1032, 1280, 1288, 1536, 1792]
PKA = 160
KACC = 192
GWA, GRA, GFX = 16, 32, 112
def kgen(a, mid):
    Z1, Z8, ZW, ZB, YA, X0 = 124, 126, 128, 130, 132, 134
    rowp = krow()
    a(f"s_lshl_b32 s28, s{WV}, 13\ns_add_u32 s28, s28, {KSC}")
    kgen_addr(a)
    a(f"v_mov_b32 v{PKA}, 0x3f80\ns_waitcnt vmcnt(8)")
    stamp(a, 20)
    kg_dt(a)
    a(J(kg_setup(((Z8, 8.0), (ZB, 128.0), (Z1, 1.0), (ZW, 256.0)), X0)))
    def pack(p):
        r = X0 + 2*(p % 256)
        return [f"v_cvt_pk_bf16_f32 v{PKA+32+XORD.index(p)}, v{r}, -v{r+1}"]
    def step(p, t):
        if p < 8: return cm(X0+2*p, X0+2*p-2, Z1, t) + pack(p)
        if p == 8: return cm(X0+16, X0, Z8, t) + pack(0)
        b = p % 256
        return cm(X0+2*b, X0+2*b, ZW, t) + pack(p)
    s1 = sum((step(p, GT) for p in (1, 2, 3, 4, 5, 6, 7, 258, 260, 262, 516, 772, 1544, 1800)), [])
    s2 = sum((step(p, GT+2) for p in (8, 256, 264, 512, 520, 768, 776, 1024, 1032, 1280, 1288, 1536, 1792)), [])
    ya = [f"v_cvt_pk_bf16_f32 v{PKA+1}, v{Z8}, v{Z8+1}"]
    for j in range(2, 16): ya += cm(YA, Z8 if j == 2 else YA, Z8, GT+4) + [f"v_cvt_pk_bf16_f32 v{PKA+j}, v{YA}, v{YA+1}"]
    yb = [f"v_cvt_pk_bf16_f32 v{PKA+16}, v{ZB}, v{ZB+1}"]
    for j in range(17, 32): yb += cm(ZB, ZB, Z8, GT+6) + [f"v_cvt_pk_bf16_f32 v{PKA+j}, v{ZB}, v{ZB+1}"]
    a(J(ilv(ya, yb)))
    ly = [f"ds_write2st64_b32 v{GWA+j}, v{PKA+j}, v{PKA+16+j} offset0:{j} offset1:{16+j}" for j in range(16)]
    ly += [f"ds_read_b128 {v(PKA+4*ks,4)}, v{GRA+ks}" for ks in range(8)]
    xs = ilv(s1, s2)
    for i, x in enumerate(xs):
        a(x)
        if i % 3 == 0 and i // 3 < len(ly): a(ly[i // 3])
    assert len(xs) // 3 >= len(ly)
    stamp(a, 21)
    for j in range(16):
        if j + 16 in rowp: a(f"ds_write2st64_b32 v{GWA+j}, v{PKA+32+XORD.index(rowp[j])}, v{PKA+32+XORD.index(rowp[j+16])} offset0:{j} offset1:{16+j}")
        else: a(f"ds_write_b32 v{GWA+j}, v{PKA+32+XORD.index(rowp[j])} offset:{j*256}")
    for ks in range(8): a(f"ds_read_b128 {v(GFX+4*ks,4)}, v{GRA+ks}")
    for ks in range(8):
        a(f"s_waitcnt lgkmcnt({7-ks})")
        a(m32(KACC, GFX+4*ks, PKA+4*ks, KACC if ks else None))
    stamp(a, 22)
def kgen_addr(a):
    WA, RA = 16, 32
    a(f"""v_lshlrev_b32 v{WA}, 2, v2
    v_add_u32 v{WA}, s28, v{WA}
    v_and_b32 v{RA}, 31, v2
    v_lshrrev_b32 v3, 5, v2
    v_and_b32 v4, 15, v2
    v_xor_b32 v3, v3, v4
    v_lshlrev_b32 v3, 4, v3
    v_lshl_add_u32 v{RA}, v{RA}, 8, v3
    v_add_u32 v{RA}, s28, v{RA}""")
    for i in range(1, 16): a(f"v_xor_b32 v{WA+i}, {16*i}, v{WA}")
    for i in range(1, 8): a(f"v_xor_b32 v{RA+i}, {32*i}, v{RA}")

KP = 208
def kpack(a, kdst):
    Jv, H, AD = 3, 4, 12
    R = KACC; P0 = KP
    a(f"""v_and_b32 v{Jv}, 31, v2
    v_lshrrev_b32 v{H}, 5, v2
    v_lshlrev_b32 v{AD}, 4, v{Jv}
    v_sub_u32 v{AD}, s{kdst}, v{AD}
    v_lshlrev_b32 v13, 3, v{H}
    v_sub_u32 v180, v{AD}, v13
    v_lshlrev_b32 v13, 9, v{H}
    v_sub_u32 v181, v{AD}, v13
    v_and_b32 v{H}, 1, v{Jv}
    v_cmp_eq_u32 vcc, 0, v{H}
    v_lshlrev_b32 v{Jv}, 2, v{Jv}
    v_add_u32 v182, s{kdst}, v{Jv}
    v_lshlrev_b32 v15, 16, v{VD}
    s_mov_b64 exec, 1
    v_add_f32 v{R}, v{R}, v15
    s_mov_b64 exec, -1""")
    cv = lambda d, lo, hi: a(f"v_cvt_pk_bf16_f32 v{d}, v{lo}, v{hi}")
    cv(P0, R+3, R+2); cv(P0+1, R+1, R+0)
    cv(P0+2, R+6, R+5); cv(P0+3, R+4, R+4)
    cv(P0+4, R+9, R+9); cv(P0+5, R+8, R+8); cv(P0+6, R+8, R+7); cv(P0+7, R+7, R+7)
    for sidx in range(2):
        ra, rb = R+10+2*sidx, R+11+2*sidx
        d = P0 + 8 + 4*sidx
        a(f"v_cndmask_b32 v13, v{rb}, v{ra}, vcc")
        cv(d, rb, rb); cv(d+1, rb, 13); cv(d+2, ra, ra); cv(d+3, ra, ra)
def kwrite(a, vzero):
    P0 = KP
    a(f"""ds_write_b64 v180, {v(P0,2)} offset:{4080+8}
    ds_write_b64 v180, {v(P0+2,2)} offset:{4080-512+8}
    ds_write_b128 v181, {v(P0+4,4)} offset:{4080-1024}
    ds_write_b128 v181, {v(P0+8,4)} offset:{4080-2048}
    ds_write_b128 v181, {v(P0+12,4)} offset:{4080-3072}
    ds_write_b32 v182, v{vzero} offset:4096""")

CAA, CBA, CACC = 10, 11, 148
def conv_setup(a, cbase):
    a(f"""v_and_b32 v3, 3, v2
    v_mul_u32_u24 v{CAA}, {UST}, v3
    v_bfe_u32 v3, v2, 2, 2
    v_lshl_add_u32 v{CAA}, v3, 7, v{CAA}
    v_lshrrev_b32 v4, 4, v2
    v_lshl_add_u32 v{CAA}, v4, 4, v{CAA}
    v_add_u32 v{CAA}, s{cbase}, v{CAA}
    v_and_b32 v3, 15, v2
    v_lshlrev_b32 v3, 3, v3
    v_lshlrev_b32 v{CBA}, 4, v4
    v_sub_u32 v{CBA}, v{CBA}, v3
    v_add_u32 v{CBA}, {KOFF+120}, v{CBA}
    v_add_u32 v{CBA}, s{cbase}, v{CBA}""")
    for i in range(0, 32, 2): a(f"v_mov_b64 {v(CACC+i,2)}, 0")
def conv(a, ydst, fill):
    FA = [16, 80]; FB = [48, 112]; ACC = CACC
    def loads(b, extra):
        out = []
        for k in range(8):
            out += [f"ds_read_b64 {v(FB[b]+4*k,2)}, v{CBA} offset:{512*(7-k)+extra}", f"ds_read_b64 {v(FB[b]+4*k+2,2)}, v{CBA} offset:{512*(7-k)+8+extra}",
                    f"ds_read_b128 {v(FA[b]+4*k,4)}, v{CAA} offset:{512*k+extra}"]
        return out
    a("s_waitcnt lgkmcnt(0)")
    a(J(loads(0, 0)))
    a("s_mov_b32 s53, 0\n.p2align 3")
    lp = a.newlabel("L_cv")
    a.label(lp)
    pairs = sorted([(i, j) for i in range(8) for j in range(8) if i + j < 8], key=lambda p: (max(p), p))
    for b in range(2):
        ld = loads(b ^ 1, 64*(b+1))
        a("s_waitcnt lgkmcnt(0)")
        for n, (i, j) in enumerate(pairs):
            a(m16(ACC+4*(i+j), FA[b]+4*i, FB[b]+4*j, ACC+4*(i+j)))
            if n < 24: a(ld[n])
            if b == 1 and n == 33: a(f"v_add_u32 v{CAA}, 128, v{CAA}\nv_add_u32 v{CBA}, 128, v{CBA}")
            elif b == 1 and n == 34: a("s_add_u32 s53, s53, 1\ns_cmp_lt_u32 s53, 4")
            elif b == 1 and n == 35: pass
            else:
                for _ in range(FILL1 if n < 24 else 2):
                    if fill: a(fill.pop(0))
    a(f"s_cbranch_scc1 {lp}")
    a("v_lshlrev_b32 v3, 3, v2")
    for b in range(8):
        ac = ACC + 4*b
        a(f"""v_cvt_pk_bf16_f32 v{ac}, v{ac}, v{ac+1}
        v_cvt_pk_bf16_f32 v{ac+1}, v{ac+2}, v{ac+3}
        buffer_store_dwordx2 {v(ac,2)}, v3, s[12:15], s{ydst} offen offset:{512*b} sc1""")

def helper(a):
    CB = 26
    UE = 132
    a(f"""s_mov_b32 s33, 0
    s_cmp_ge_u32 s{IDX}, 20
    s_cbranch_scc1 L_h_tr
    s_lshr_b32 s{FCOFF}, s{CHN}, 2
    s_lshl_b32 s{FCOFF}, s{FCOFF}, 7
    s_lshl_b32 s22, s{HW}, 2
    s_add_u32 s{FCOFF}, s{FCOFF}, s22
    s_add_u32 s{FCOFF}, s{FCOFF}, {WS_FC}
    s_lshr_b32 s22, s{CHN}, 6
    s_lshl_b32 s22, s22, {7 if PACKA else 12}
    s_add_u32 s22, s22, {WS_FA}
    v_and_b32 v4, 31, v2
    v_lshl_add_u32 v8, v4, {2 if PACKA else 7}, s22
    s_mul_i32 s{CB}, s{HW}, {CHA}
    s_add_u32 s{CB}, s{CB}, {CVB}
    s_mul_i32 s27, s{CHN}, {RS}
    s_add_u32 s27, s27, {WS_UT}
    s_add_u32 s29, s{CB}, {KOFF}
    s_mov_b32 s33, {POLLC}""")
    issue(a)
    skip(a)
    a("s_setprio 1")
    a.label("L_kgen")
    kgen(a, None)
    a(f"s_cmp_eq_u32 s{KH}, 0\ns_cbranch_scc1 L_g_kb")
    stamp(a, 3)
    a("s_setprio 0\ns_waitcnt vmcnt(0)\ns_branch L_h_ld1")
    a.label("L_h_tr")
    a(f"s_cmp_ge_u32 s26, 320\ns_cbranch_scc1 L_h_ld0")
    a.label("L_utile")
    utile(a)
    a("s_branch L_tr_back")
    a.label("L_h_ld0")
    a(f"v_mov_b32 v8, {WS_FA}")
    skip(a); skip(a)
    a.label("L_h_ld1")
    a("s_mov_b32 s30, 0")
    def bar():
        a("s_waitcnt vmcnt(16) lgkmcnt(0)\ns_barrier")
        if PROF and not LITE: a(f"s_memtime s[92:93]\ns_add_u32 m0, s30, 32\ns_waitcnt lgkmcnt(0)\nv_writelane_b32 v{PV}, s92, m0")
    def lines(*fs):
        t = Asm()
        for f in fs: f(t)
        return [l.strip() for l in t.lines]
    a.label("L_h_ld")
    bar()
    issue(a, lines(attn_ids, o_maps, kv_units, y_setup))
    a(f"""s_add_u32 s30, s30, 1
    s_cmp_lg_u32 s30, s33
    s_cbranch_scc1 L_h_l1
    s_cmp_lt_u32 s{IDX}, 20
    s_cbranch_scc1 L_h_pl""")
    get_nonce(a)
    a("s_waitcnt vmcnt(16)")
    set_flag(a, 29, 10)
    stamp(a, 3)
    a("s_branch L_h_l1")
    a.label("L_h_pl")
    a("buffer_load_dword v9, v8, s[12:15], 0 offen sc1")
    a.label("L_h_l1")
    a("s_cmp_lt_u32 s30, 5\ns_cbranch_scc1 L_h_ld")
    bar()
    issue(a, [f's_load_dword s{NONCE}, s[{P_DBG}:{P_DBG+1}], 0'] + lines(tail_setup))
    a("s_add_u32 s30, s30, 1")
    bar()
    issue(a, lines(attn_reset2, lambda t: conv_setup(t, CB)))
    a("s_waitcnt vmcnt(16)\ns_barrier")
    a(f"s_cmp_lg_u32 s{NONCE}, 0\ns_cbranch_scc1 L_h_hn")
    get_nonce(a)
    a.label("L_h_hn")
    arr_init(a)
    a(f"""s_cmp_lt_u32 s{IDX}, 20
    s_cbranch_scc1 L_h_k7
    s_waitcnt vmcnt(0) lgkmcnt(0)
    s_barrier
    s_branch L_attn""")
    a.label("L_h_ids")
    a("s_mov_b32 s33, 2\ns_branch L_setup")
    a.label("L_h_k7")
    def uloads():
        for i in range(4): a(f"buffer_load_dwordx4 {v(132+4*i,4)}, v{DMV}, s[12:15], s27 offen offset:{1024*i} sc1")
    stamp(a, 39)
    a(f"s_sub_u32 s28, s28, 32768\nv_add_u32 v6, s28, v{DMV}\nv_cmp_ne_u32 vcc, s{NONCE}, v9\ns_mov_b32 s31, 0")
    for i in range(4): a(f"ds_read_b128 {v(16+4*i,4)}, v6 offset:{1024*i}")
    a("s_cbranch_vccnz L_h_nu")
    uloads()
    a("s_mov_b32 s31, 1")
    a.label("L_h_nu")
    a("s_waitcnt lgkmcnt(0)")
    for i in range(14): a(f"v_add_f32 v{KACC+i}, v{KACC+i}, v{16+i}")
    kpack(a, 29)
    a(f"""v_lshlrev_b32 v5, 3, v2
    v_min_u32 v5, 376, v5
    v_add_u32 v5, s{CB}, v5
    v_mov_b32 v6, 0
    v_mov_b32 v7, 0""")
    stamp(a, 46)
    a("s_cmp_eq_u32 s31, 1\ns_cbranch_scc1 L_h_w4\ns_waitcnt vmcnt(0)")
    a.label("L_h_w4")
    a("s_waitcnt vmcnt(4)\ns_barrier")
    stamp(a, 4)
    a("s_cmp_eq_u32 s31, 1\ns_cbranch_scc1 L_h_hu")
    poll(a, [8], 1, 9)
    uloads()
    a.label("L_h_hu")
    if PROF: a(f"v_writelane_b32 v{PV}, s31, 30")
    kwrite(a, 6)
    for r in range(4): a(f"ds_write_b64 v5, v[6:7] offset:{r*UST}")
    a(f"""s_mul_i32 s27, s{CHN}, {RS}
    s_add_u32 s27, s27, {WS_YT}
    v_add_u32 v4, s{CB}, v{DMV}
    s_waitcnt vmcnt(0)""")
    stamp(a, 5)
    for i in range(4):
        e = 132 + 4*i
        C2, C1, C0, PP = 16 + 14*i, 20 + 14*i, 24 + 14*i, 28 + 14*i
        a(f"ds_write_b128 v4, {v(e,4)} offset:{3*UST + 384 + 1024*i}")
        if i == 0: a(f"v_mov_b32 v{PP}, 0\nv_mov_b32 v{C1}, 0\ns_nop 0")
        else: a(f"v_readlane_b32 s22, v{e-2}, 63\nv_readlane_b32 s23, v{e-1}, 63\ns_nop 0\nv_mov_b32 v{PP}, s22\nv_mov_b32 v{C1}, s23\ns_nop 0")
        a(f"v_mov_b32_dpp v{PP}, v{e+2} wave_shr:1 row_mask:0xf bank_mask:0xf")
        a(f"v_mov_b32_dpp v{C1}, v{e+3} wave_shr:1 row_mask:0xf bank_mask:0xf")
        for j in range(3): a(f"v_mov_b32 v{C1+1+j}, v{e+j}")
        a(f"ds_write_b128 v4, {v(C1,4)} offset:{UST + 384 + 1024*i}")
        a(f"v_alignbit_b32 v{C2}, v{e}, v{C1}, 16")
        for j in range(1, 4): a(f"v_alignbit_b32 v{C2+j}, v{e+j}, v{e+j-1}, 16")
        a(f"ds_write_b128 v4, {v(C2,4)} offset:{2*UST + 384 + 1024*i}")
        a(f"v_alignbit_b32 v{C0}, v{C1}, v{PP}, 16")
        for j in range(3): a(f"v_mov_b32 v{C0+1+j}, v{C2+j}")
        a(f"ds_write_b128 v4, {v(C0,4)} offset:{384 + 1024*i}")
    stamp(a, 6)
    t = Asm(); zero_s(t)
    fill = [l.strip() for l in t.lines]
    conv(a, 27, fill)
    assert not fill
    stamp(a, 7)
    a("s_branch L_attn2")

def window1(a):
    get_nonce(a)
    a(f"""v_mov_b32 v3, {ARRW}
    v_mov_b32 v4, 1
    s_lshl_b32 s22, s2, 7
    s_add_u32 s26, s22, {WS_FB}""")
    zero_state(a)
    stamp(a, 4)
    a(f"""s_waitcnt vmcnt(0)
    s_mov_b64 exec, 1
    ds_add_rtn_u32 v4, v3, v4
    s_mov_b64 exec, -1
    s_waitcnt lgkmcnt(0)
    v_readfirstlane_b32 s22, v4
    s_mov_b32 s33, 0
    s_cmp_lg_u32 s22, 3
    s_cbranch_scc1 L_w1_r""")
    diag_wait(a, '--dfl')
    stamp(a, 5)
    stamp(a, 53, True)
    set_flag(a, 26, 6)
    a(f"""v_mov_b32 v16, 0x3f803f80
    v_mov_b32 v17, 0x00003f80
    v_mov_b32 v18, 0x3f803f80
    v_mov_b32 v19, 0x00003f80
    ds_write_b128 v{DMV}, v[16:19] offset:{CONSTP}
    ds_write_b32 v6, v6 offset:{FLAGW}
    s_mov_b32 s33, 1
    s_branch L_setup""")
    a.label("L_w1_r")
    a("s_setprio 0")
    a.label("L_setup")
    attn_reset(a)
    tail_setup(a)
    y_setup(a)
    a("""s_cmp_eq_u32 s33, 2
    s_cbranch_scc1 L_attn
    s_cmp_eq_u32 s33, 0
    s_cbranch_scc1 L_at_b2""")
    main_pre(a)
    poll(a, [PL1, PL2], 1, 20, sleep=PSL)
    stamp(a, 6)
    stamp(a, 54, True)
    a(f"s_add_u32 s23, s{HEAD5}, 160\ns_lshl_b32 s23, s23, 10")
    def qu(u): a(f"""s_mov_b32 m0, {QLDS + 1024*u}
        s_add_u32 s24, s{OOFF}, {(u >> 1)*1024 + (u & 1)*TTS_}
        buffer_load_dwordx4 v{DMV}, s[12:15], s24 offen sc1 lds""")
    def ku(u):
        p = u >> 1
        off = ((p + (155 if p >= 5 else 0)) << 10) + ((u & 1)*8)*TTS_
        a(f"""s_mov_b32 m0, {ARING + p*PST + (u & 1)*1024}
        s_add_u32 s24, s23, {off}
        buffer_load_dwordx4 v{DMV}, s[12:15], s24 offen sc1 lds""")
    for u in range(10): qu(u)
    for u in range(20): ku(u)
    stamp(a, 7)
    a("s_waitcnt vmcnt(0)\ns_branch L_at_b2")

Q0 = [16, 22]; Q1 = [20, 26]
KF = [28, 34]; VF = [40, 48]; P = [56, 64]; S = [72, 88]; O = [104, 120]
def set_m(a, q, M):
    a(f"""v_sub_f32 v{M}, 0, v{M}
    v_and_b32 v{M+1}, 0xffff0000, v{M}
    v_sub_f32 v{M+2}, v{M}, v{M+1}
    v_and_b32 v{M+3}, 0xffff0000, v{M+2}
    v_sub_f32 v{M+2}, v{M+2}, v{M+3}
    v_lshrrev_b32 v{M+1}, 16, v{M+1}
    v_or_b32 v{M+1}, v{M+1}, v{M+3}
    v_lshrrev_b32 v{M+2}, 16, v{M+2}
    v_cndmask_b32 v{Q1[q]}, v{M+1}, v{Q1[q]}, vcc
    v_cndmask_b32 v{Q1[q]+1}, v{M+2}, v{Q1[q]+1}, vcc""")
def tilemax(a, M, s, first):
    if first: a(f"v_max3_f32 v{M}, v{s}, v{s+1}, v{s+2}")
    else: a(f"v_max3_f32 v{M}, v{M}, v{s}, v{s+1}\nv_max_f32 v{M}, v{M}, v{s+2}")
    for i in range(3, 15, 2): a(f"v_max3_f32 v{M}, v{M}, v{s+i}, v{s+i+1}")
    a(f"v_max_f32 v{M}, v{M}, v{s+15}")
def halfmax(a, M):
    a(f"v_mov_b32 v{M+1}, v{M}\ns_nop 1\nv_permlane32_swap_b32 v{M}, v{M+1}\nv_max_f32 v{M}, v{M}, v{M+1}")

def kv_units(a):
    a(f"""s_lshr_b32 s22, s{WV}, 1
    s_and_b32 s23, s{WV}, 1
    s_mul_i32 s{KL[0]}, s22, {PST}
    s_lshl_b32 s24, s23, 10
    s_add_u32 s{KL[0]}, s{KL[0]}, s24
    s_add_u32 s{KL[0]}, s{KL[0]}, {ARING}
    s_add_u32 s{KL[1]}, s{KL[0]}, {4*PST}
    s_add_u32 s{KL[2]}, s{KL[0]}, {8*PST}
    s_add_u32 s24, s22, s{HEAD5}
    s_lshl_b32 s24, s24, 10
    s_mul_i32 s23, s23, {8*TTS_}
    s_add_u32 s24, s24, s23
    s_add_u32 s{KS[0]}, s24, {160*1024 + TTS_}
    s_add_u32 s{KS[2]}, s24, {(160+8+155)*1024 + TTS_}
    s_cmp_eq_u32 s22, 0
    s_cselect_b32 s23, 0, {155*1024}
    s_add_u32 s{KS[1]}, s{KS[0]}, s23
    s_add_u32 s{KS[1]}, s{KS[1]}, 4096""")
def attn_reset(a):
    kv_units(a); attn_reset2(a)
def attn_reset2(a):
    a(f"""v_and_b32 v3, 31, v2
    v_lshlrev_b32 v3, 3, v3
    v_lshrrev_b32 v5, 5, v2
    s_lshl_b32 s{KHOFF}, s{KH}, 10
    s_lshl_b32 s22, s{HW}, 1
    s_add_u32 s22, s22, s{KH}
    s_lshl_b32 s22, s22, 8
    v_add_u32 v{QA4}, s22, v3
    v_lshl_add_u32 v{QA0}, v5, 12, v{QA4}
    v_mul_u32_u24 v{KA}, {2*PST}, v5
    s_add_u32 s22, s{KHOFF if M0 else MODE+53-MODE}, {ARING}""".replace(f"s{MODE+53-MODE}", "0"))
    a(f"""v_add3_u32 v{KA}, v{KA}, v3, s22
    v_xor_b32 v{MS4}, 1, v5
    s_add_u32 s22, s22, {4*PST - CONSTP}
    v_mad_u32_u24 v{K4}, v{MS4}, s22, v3
    v_add_u32 v{K4}, {CONSTP}, v{K4}
    v_bfe_u32 v3, v2, 2, 2
    v_lshl_add_u32 v5, v5, 2, v3
    v_and_b32 v4, 3, v2
    v_bfe_u32 v3, v2, 4, 1
    v_lshl_add_u32 v4, v3, 2, v4
    v_cmp_gt_u32 vcc, 5, v4
    v_mul_u32_u24 v4, {PST}, v4
    s_add_u32 s22, s{KHOFF}, {ARING + 5*PST}
    v_add_u32 v4, s22, v4
    v_cndmask_b32 v{VA}, {CONSTP}, v4, vcc
    v_cndmask_b32 v{MSK}, 0, 1, vcc
    v_lshl_add_u32 v{VA}, v5, 3, v{VA}
    s_sub_u32 s24, 106, s{WV}
    s_mul_i32 s{WOS}, s24, {6*1280}
    s_lshr_b32 s22, s{IDX}, 2
    s_mul_i32 s22, s22, 160
    s_add_u32 s{WOS}, s{WOS}, s22
    s_mul_i32 s{WOL}, s24, 960
    s_add_u32 s{WOL}, s{WOL}, {WOB}""")
YT, OSA, OST, FIW, FS0 = range(235, 240)
YT, FIW, FS0 = 253, 251, 250
YV, FCA = 238, 239
YS, TYS = 21, 20
WAO, WAT = 248, 249
TOS, TTS, TFS = 96, 97, 98
def o_maps(a):
    a(f"""v_and_b32 v3, 15, v2
    v_bfe_u32 v4, v2, 4, 1
    v_mul_u32_u24 v4, {OG}, v4
    v_lshl_add_u32 v{OST}, v3, 3, v4
    v_lshl_add_u32 v4, v3, 4, v4
    v_lshrrev_b32 v3, 5, v2
    v_lshl_add_u32 v{OSA}, v3, 8, v4""")
def tail_setup(a):
    a(f"""v_mul_u32_u24 v6, 205, v2
    v_lshrrev_b32 v6, 11, v6
    v_mul_u32_u24 v7, 10, v6
    v_sub_u32 v7, v2, v7
    v_lshlrev_b32 v7, 4, v7
    v_mul_u32_u24 v6, 1280, v6
    v_add_u32 v{WOV}, v6, v7
    v_add_u32 v{FS0}, v6, v{WOV}
    v_bfe_u32 v3, v2, 2, 2
    v_lshrrev_b32 v4, 4, v2
    v_and_b32 v5, 3, v2
    v_lshlrev_b32 v5, 3, v5
    v_lshrrev_b32 v6, 2, v2
    v_lshl_add_u32 v6, v6, 7, v5
    s_lshl_b32 s22, s{HW}, 5
    v_add_u32 v{YT}, s22, v6
    v_lshrrev_b32 v6, 5, v2
    v_mul_u32_u24 v6, 12, v6
    v_lshl_add_u32 v6, v4, 2, v6
    v_add_u32 v6, v6, v3
    v_mad_u32_u24 v7, v4, 20, v3
    s_mul_i32 s22, s{KH}, {320*160}
    s_add_u32 s22, s22, {WOB}
    v_add_u32 v5, s22, v5
    s_movk_i32 s23, 160
    v_mad_u32_u24 v{WAO}, v6, s23, v5
    v_mad_u32_u24 v{WAT}, v7, s23, v5
    v_and_b32 v3, 15, v2
    s_mul_i32 s22, s{HW}, 5120
    v_lshl_add_u32 v4, v4, 3, s22
    v_mad_u32_u24 v{FIW}, v3, s23, v4
    s_lshl_b32 s24, s{XCD}, 2
    s_and_b32 s22, s{IDX}, 3
    s_add_u32 s24, s24, s22
    s_lshl_b32 s24, s24, 2
    s_add_u32 s24, s24, s{HW}
    s_mul_i32 s{TOS}, s24, {OG}
    s_add_u32 s{TOS}, s{TOS}, {WS_O}
    s_lshl_b32 s23, s{KH}, 11
    s_add_u32 s{TTS}, s{TOS}, s23
    s_add_u32 s{TTS}, s{TTS}, 16384
    s_lshl_b32 s23, s{KH}, 13
    s_add_u32 s{TOS}, s{TOS}, s23
    s_lshr_b32 s22, s{IDX}, 2
    s_add_u32 s22, s22, 8
    s_lshl_b32 s23, s{IDX}, 2
    s_add_u32 s23, s23, s{HW}
    s_cmp_eq_u32 s{KH}, 0
    s_cselect_b32 s24, s23, s24
    s_cselect_b32 s22, s{XCD}, s22
    s_mul_i32 s{TFS}, s24, {16*2560}
    s_mul_i32 s22, s22, 160
    s_add_u32 s{TFS}, s{TFS}, s22""")
def y_setup(a):
    a(f"""v_lshrrev_b32 v4, 3, v2
    v_and_b32 v3, 7, v2
    v_lshlrev_b32 v3, 4, v3
    v_mul_u32_u24 v4, {RS}, v4
    v_add_u32 v{YV}, v4, v3
    s_mul_i32 s22, s{XCD}, 10
    s_add_u32 s22, s22, s{WV}
    s_mul_i32 s22, s22, {8*RS}
    s_lshl_b32 s23, s{IDX}, 7
    s_add_u32 s22, s22, s23
    s_add_u32 s{YS}, s22, {WS_YT}
    s_mul_i32 s22, s{XCD}, {20*128}
    s_add_u32 s22, s22, {WS_FC}
    v_min_u32 v3, 19, v2
    v_lshl_add_u32 v{FCA}, v3, 7, s22""")
WFR = [28, 48, 68, 88, 144, 164, 184, 204, 108]
OFR = [128, 132, 224, 228, 232, 236, 240, 244, 136, 140]
def wo_reads(a, i, slot):
    for m in range(5):
        for hf in range(2):
            if i < 8: a(f"ds_read_b64_tr_b16 {v(WFR[slot]+4*m+2*hf,2)}, v{WAO} offset:{(40*i+8*hf)*160+32*m}")
            else: a(f"ds_read_b64_tr_b16 {v(WFR[slot]+4*m+2*hf,2)}, v{WAT} offset:{(160*(i-8)+80*hf+16)*160+32*m}")
def zero_state(a):
    zero_s(a); zero_v(a)
def zero_s(a):
    srd(a, 8, P_WO, 640*1280)
    a(f"""s_mov_b32 s30, 0
    s_mov_b32 s31, 0
    s_mov_b32 s32, {2*SLOT}
    s_mov_b32 s34, {-2*SLOT & 0xffffffff}
    s_mov_b32 s35, {SLOT}""")
def zero_v(a):
    for i in range(0, 32, 2): a(f"v_mov_b64 {v(O[0]+i,2)}, 0")
    for i in range(0, 8, 2): a(f"v_mov_b64 {v(P[1]+i,2)}, 0\nv_mov_b64 {v(VF[1]+i,2)}, 0")

OPF = int(sys.argv[sys.argv.index('--opf')+1]) if '--opf' in sys.argv else 0
def o_prefetch(a, tag):
    a(f"""s_lshl_b32 s22, s{XCD}, 2
    s_and_b32 s23, s{IDX}, 3
    s_add_u32 s22, s22, s23
    s_lshl_b32 s22, s22, 3
    s_lshr_b32 s23, s{IDX}, 2
    s_add_u32 s22, s22, s23
    s_mul_i32 s22, s22, 10
    s_add_u32 s22, s22, s{WV}
    s_lshl_b32 s22, s22, 10
    s_add_u32 s22, s22, {WS_O}
    s_cmp_ge_u32 s{WV}, 2
    buffer_load_dwordx4 v[144:147], v{DMV}, s[12:15], s22 offen sc1
    s_cbranch_scc1 L_opf{tag}
    s_add_u32 s22, s22, 8192
    buffer_load_dwordx4 v[148:151], v{DMV}, s[12:15], s22 offen sc1""")
    a.label(f"L_opf{tag}")

def attention(a):
    def kr(t, b): return [f"ds_read_b64 {v(KF[b],2)}, v{KA} offset:{t*256}", f"ds_read_b64 {v(KF[b]+2,2)}, v{KA} offset:{t*256+PST}", f"ds_read_b64 {v(KF[b]+4,2)}, v{K4} offset:{t*256}"]
    def vr(t, b): return [f"ds_read_b64_tr_b16 {v(VF[b]+2*j,2)}, v{VA} offset:{t*256+j*64}" for j in range(4)]
    def shift(sreg):
        a(f"v_add_u32 v{KA}, s{sreg}, v{KA}\nv_mad_i32_i24 v{K4}, v{MS4}, s{sreg}, v{K4}")
    def qk(q, kb): a(m32(S[q], KF[kb], Q0[q])); a(m32x8(S[q], KF[kb]+4, Q1[q], S[q]))
    zero_s(a)
    a.label("L_attn2")
    a("s_waitcnt lgkmcnt(0)")
    zero_v(a)
    a.label("L_at_b2")
    stamp(a, 8)
    a(f"v_cmp_gt_u32 vcc, 32, v2\nv_xor_b32 v3, 256, v{QA0}\nv_xor_b32 v4, 256, v{QA4}\ns_waitcnt lgkmcnt(0)\ns_barrier")
    diag_wait(a, '--da0')
    stamp(a, 9)
    stamp(a, 50, True)
    a(J(kr(0, 0)))
    a(f"s_cmp_lg_u32 s{MODE}, 0\ns_cbranch_scc1 L_at_havem")
    for q in range(2):
        r0, r4 = (3, 4) if q == 0 else (QA0, QA4)
        a(f"""ds_read_b64 {v(Q0[q],2)}, v{r0} offset:{QLDS}
        ds_read_b64 {v(Q0[q]+2,2)}, v{r0} offset:{QLDS+2048}
        ds_read_b64 {v(Q1[q],2)}, v{r4} offset:{QLDS+8192}""")
    a("s_waitcnt lgkmcnt(0)")
    for q in range(2): a(f"v_cndmask_b32 v{Q1[q]}, 0, v{Q1[q]}, vcc\nv_cndmask_b32 v{Q1[q]+1}, 0, v{Q1[q]+1}, vcc")
    if not M0:
        qk(0, 0); qk(1, 0)
        a("s_nop 7\ns_nop 1")
        for q in range(2):
            tilemax(a, P[0], S[q], True); halfmax(a, P[0]); set_m(a, q, P[0])
    a.label("L_at_havem")
    if not M0:
        shift(KHOFF)
        a(J(kr(0, 0)))
    a(f"s_cmp_eq_u32 s{MODE}, 1\ns_cbranch_scc1 L_at_maxpass")
    a("s_waitcnt lgkmcnt(0)")
    qk(0, 0)
    for j in range(3):
        if j == 2: a(f"s_cmp_ge_u32 s{WV}, 4\ns_cbranch_scc1 L_at_p3")
        a(f"s_add_u32 m0, s{KL[j]}, {SLOT}\ns_nop 0\nbuffer_load_dwordx4 v{DMV}, s[12:15], s{KS[j]} offen sc1 lds")
    a.label("L_at_p3")
    a("s_setprio 3")
    stamp(a, 10)
    a(f".p2align {ALP}")
    for _ in range(ALN): a("s_nop 0")
    def kv(j):
        return f"""s_add_u32 m0, s{KL[j]}, s32
        s_add_u32 s{KS[j]}, s{KS[j]}, {TTS_}
        buffer_load_dwordx4 v{DMV}, s[12:15], s{KS[j]} offen sc1 lds"""
    wo = f"""s_mov_b32 m0, s{WOL}
        s_sub_u32 s{WOL}, s{WOL}, {8*960}
        buffer_load_dwordx4 v{WOV}, s[8:11], s{WOS} offen lds
        s_sub_u32 s{WOS}, s{WOS}, {8*6*1280}"""
    def chunk(kind):
        last = kind == 2
        for T in range(4):
            kb = T & 1
            for q in range(2):
                o = q ^ 1
                fin = last and T == 3
                ex = [f"v_exp_f32 v{S[q]+i}, v{S[q]+i}" for i in range(16)]
                cv = [f"v_cvt_pk_bf16_f32 v{P[q]+i}, v{S[q]+2*i}, v{S[q]+2*i+1}" for i in range(8)]
                kq = kb if q == 0 else kb ^ 1
                vq = kb ^ 1 if q == 0 else kb
                rd = (kr((T+1) & 3, kb ^ 1) + vr(T, kb)) if q == 0 else []
                if fin and q == 0: rd = vr(T, kb)
                st = (2*((T+1) & 3) + q)
                def pr(i):
                    k = 4*st + i
                    P_ = [0, 4, 6, 7] if fin else PRIO
                    if k in P_: a(f"s_setprio {3 - P_.index(k)}")
                if q == 0 and T == 3: a("s_waitcnt vmcnt(0)\ns_barrier")
                if q == 1: a("s_waitcnt lgkmcnt(0)")
                G = [ex[0:4] + cv[0:1], ex[4:6] + cv[1:2] + ex[6:8] + cv[2:3], ex[8:10] + cv[3:4] + ex[10:12] + cv[4:5], ex[12:14] + cv[5:6] + ex[14:16] + cv[6:8]]
                if not (fin and q == 1): a(m32(S[o], KF[kq], Q0[o]))
                pr(0)
                if (T, q) == (1, 1) and kind == 0:
                    a(f"""s_cmp_eq_u32 s31, {2*SLOT}
                    s_cselect_b32 s29, s34, s35""")
                if (T, q) == (1, 1) and kind == 1: a("s_mov_b32 s29, s35")
                a(J(rd[0:3] + G[0]))
                if not (fin and q == 1): a(m32x8(S[o], KF[kq]+4, Q1[o], S[o]))
                pr(1)
                if (T, q) == (3, 1) and kind == 0: a(kv(1))
                if (T, q) == (0, 1) and kind == 0: a(wo)
                if (T, q) == (0, 1) and last:
                    a(f"s_cmp_ge_u32 s{WV}, 3\ns_cbranch_scc1 L_at_w3"); a(wo); a.label("L_at_w3")
                if (T, q) == (2, 1) and not last: shift(29)
                a(J(rd[3:5] + G[1]))
                a(m32(O[o], VF[vq], P[o], O[o])); pr(2)
                a(J(rd[5:7] + G[2]))
                a(m32(O[o], VF[vq]+4, P[o]+4, O[o])); pr(3)
                if (T, q) == (3, 0) and kind == 0:
                    a(kv(0))
                    a(f"s_cmp_lg_u32 s{FCOFF}, 0\ns_cbranch_scc1 L_at_fc")
                    a.label("L_at_back")
                if (T, q) == (0, 0):
                    if kind == 1: a(f"buffer_load_dwordx4 v[136:139], v{FCA}, s[12:15], 0 offen sc1")
                    else: a(wo)
                if (T, q) == (3, 0) and kind == 1:
                    poll(a, [FCA], 4, 136, preloaded=True)
                    a(f"""s_lshl_b32 s23, s{WV}, 10
                    s_add_u32 m0, s23, {YSRC}
                    s_cmp_ge_u32 s{WV}, 2
                    buffer_load_dwordx4 v{YV}, s[12:15], s{YS} offen sc1 lds
                    s_cbranch_scc1 L_at_y1
                    s_add_u32 m0, m0, 8192
                    s_add_u32 s22, s{YS}, {64*RS}
                    buffer_load_dwordx4 v{YV}, s[12:15], s22 offen sc1 lds""")
                    a.label("L_at_y1")
                if (T, q) == (3, 1) and kind == 0:
                    a(f"s_cmp_eq_u32 s{KH}, 1\ns_cbranch_scc1 L_at_n2")
                    a(kv(2))
                    a.label("L_at_n2")
                    a("s_mov_b32 s32, s31\ns_add_u32 s31, s31, s29")
                a(J(G[3][:-2]))
                if q == 1 and T == 3 and not last: a(f"v_mad_i32_i24 v{VA}, v{MSK}, s29, v{VA}")
                if q == 1 and T == 3 and kind == 0: a("s_add_u32 s30, s30, 1\ns_cmp_lt_u32 s30, 6")
                a(J(G[3][-2:]))
    a.label("L_at_loop")
    chunk(0)
    a("s_cbranch_scc1 L_at_loop")
    chunk(1)
    chunk(2)
    a("s_nop 0")
    C = S[1]; A = O[1]
    a(m32(O[1], VF[1], P[1], O[1]))
    a(f"""s_setprio 0
    s_mul_i32 s22, s{WV}, 3072
    v_add_u32 v4, s22, v{DMV}
    s_xor_b32 s22, s{WV}, 4
    s_mul_i32 s22, s22, 3072
    v_add_u32 v5, s22, v{DMV}""")
    a(m32(O[1], VF[1]+4, P[1]+4, O[1]))
    stamp(a, 11)
    if OPF == 1: o_prefetch(a, "e")
    for i in range(3): a(f"ds_write_b128 v4, {v(O[0]+4*i,4)} offset:{EXC + i*1024}")
    a(f"""v_mov_b64 v[6:7], 1
    s_mov_b32 s24, {f32hex(2.0**110)}
    v_pk_add_f32 {v(C,2)}, {v(O[0],2)}, {v(O[0]+2,2)}""")
    for i in range(4, 12, 2): a(f"v_pk_add_f32 {v(C,2)}, {v(C,2)}, {v(O[0]+i,2)}")
    a("s_nop 1")
    for i in range(0, 12, 2): a(f"v_pk_add_f32 {v(C,2)}, {v(C,2)}, {v(O[1]+i,2)}")
    a(f"""v_add_f32 v{C}, v{C}, v{C+1}
    v_add_f32 v{C+1}, v{O[0]+12}, v{O[1]+12}
    v_mul_f32 v{C}, {f32hex(2.0**-17)}, v{C}
    s_lshl_b32 s22, s{HW}, 1
    v_add_f32 v{C}, abs(v{C}), v{C+1}
    s_add_u32 s22, s22, s{KH}
    v_cmp_ngt_f32 vcc, s24, v{C}""")
    if M0:
        a(f"""v_min_f32 v{C+3}, v{O[0]+12}, v{O[1]+12}
        s_mov_b32 s24, {f32hex(2.0**-60)}
        v_cmp_gt_f32 s[26:27], s24, v{C+3}
        s_mul_i32 s22, s22, {2*OG}
        s_or_b64 vcc, vcc, s[26:27]""")
    else: a(f"s_mul_i32 s22, s22, {2*OG}")
    a(f"""s_cbranch_vccz L_at_nf
    ds_write_b32 v7, v6 offset:{FLAGW}""")
    a.label("L_at_nf")
    a(f"""s_add_u32 s23, s22, s{OTAIL}
    s_add_u32 s22, s22, s{OOCT}
    s_waitcnt lgkmcnt(0)
    s_barrier
    ds_read_b32 v6, v7 offset:{FLAGW}""")
    for i in (2, 0, 1): a(f"ds_read_b128 {v(S[0]+4*i,4)}, v5 offset:{EXC + i*1024}")
    a(f"""s_waitcnt lgkmcnt(2)
    v_readfirstlane_b32 s26, v6
    v_pk_add_f32 {v(A+8,2)}, {v(A+8,2)}, {v(S[0]+8,2)}
    v_pk_add_f32 {v(A+10,2)}, {v(A+10,2)}, {v(S[0]+10,2)}
    v_rcp_f32 v{C}, v{A+8}
    s_cmp_gt_u32 s26, s{MODE}
    v_mov_b32 v{C+1}, v{C}
    s_cbranch_scc1 L_at_fallback
    s_waitcnt lgkmcnt(0)
    v_permlane32_swap_b32 v{C}, v{C+1}""")
    for i in range(0, 8, 2): a(f"v_pk_add_f32 {v(A+i,2)}, {v(A+i,2)}, {v(S[0]+i,2)}")
    for i in range(0, 12, 2): a(f"v_pk_mul_f32 {v(A+i,2)}, {v(A+i,2)}, {v(C,2)} op_sel:[0,1] op_sel_hi:[1,1]")
    for i in range(6): a(f"v_cvt_pk_bf16_f32 v{P[0]+i}, v{A+2*i}, v{A+2*i+1}")
    modes = [OSC]
    if '--dbl' in sys.argv: modes = ['sc1', '']
    if '--dbl2' in sys.argv: modes = ['', 'sc1', '']
    if '--osc' in sys.argv: modes = [sys.argv[sys.argv.index('--osc')+1].replace('_', ' ')]
    for md in modes:
        a(f"""buffer_store_dwordx4 {v(P[0],4)}, v{OSA}, s[12:15], s22 offen {md}
        s_mov_b32 exec_hi, 0
        buffer_store_dwordx2 {v(P[0]+4,2)}, v{OST}, s[12:15], s23 offen {md}
        s_mov_b32 exec_hi, -1""")
    if '--dpf' in sys.argv:
        diag_wait(a, '--dpf'); o_prefetch(a, 'd'); a('s_waitcnt vmcnt(0)')
    diag_wait(a, '--dos')
    stamp(a, 12)
    stamp(a, 51, True)

    def cold():
        a.label("L_at_fc")
        set_flag(a, FCOFF, 6)
        a(f"s_mov_b32 s{FCOFF}, 0\ns_branch L_at_back")
        a.label("L_at_fallback")
        a(f"s_mov_b32 s{MODE}, 1")
        a.label("L_at_refill")
        a("s_waitcnt vmcnt(0) lgkmcnt(0)\ns_barrier")
        attn_reset(a)
        for j in range(3):
            if j == 2: a(f"s_cmp_ge_u32 s{WV}, 4\ns_cbranch_scc1 L_at_f3")
            a(f"s_mov_b32 m0, s{KL[j]}\ns_sub_u32 s22, s{KS[j]}, {TTS_}\nbuffer_load_dwordx4 v{DMV}, s[12:15], s22 offen sc1 lds")
        a.label("L_at_f3")
        a("s_waitcnt vmcnt(0)\ns_branch L_attn")
        a.label("L_at_maxpass")
        MX = [P[0], P[1]]
        for q in range(2):
            a(f"v_cndmask_b32 v{Q1[q]}, 0, v{Q1[q]}, vcc\nv_cndmask_b32 v{Q1[q]+1}, 0, v{Q1[q]+1}, vcc\nv_mov_b32 v{MX[q]}, 0xff800000")
        a.label("L_at_mloop")
        for T in range(4):
            a(J(kr(T, 0)) + "\ns_waitcnt lgkmcnt(0)")
            qk(0, 0); qk(1, 0)
            a("s_nop 7\ns_nop 3")
            for q in range(2): tilemax(a, MX[q], S[q], False)
        a("s_add_u32 s30, s30, 1\ns_cmp_eq_u32 s30, 8\ns_cbranch_scc1 L_at_mdone\ns_barrier")
        for j in range(3):
            if j == 2: a(f"s_cmp_ge_u32 s{WV}, 4\ns_cbranch_scc1 L_at_m3")
            a(f"s_mov_b32 m0, s{KL[j]}\ns_nop 0\nbuffer_load_dwordx4 v{DMV}, s[12:15], s{KS[j]} offen sc1 lds\ns_add_u32 s{KS[j]}, s{KS[j]}, {TTS_}")
        a.label("L_at_m3")
        a("s_waitcnt vmcnt(0)\ns_barrier\ns_branch L_at_mloop")
        a.label("L_at_mdone")
        a(f"""s_lshl_b32 s22, s{WV}, 10
        v_add_u32 v4, s22, v{DMV}
        v_xor_b32 v5, 4096, v4""")
        for q in range(2): halfmax(a, MX[q]); a(f"ds_write_b32 v4, v{MX[q]} offset:{ARING + 2*SLOT + 4*q}")
        a("s_waitcnt lgkmcnt(0)\ns_barrier")
        for q in range(2): a(f"ds_read_b32 v{S[0]+q}, v5 offset:{ARING + 2*SLOT + 4*(1-q)}")
        a("s_waitcnt lgkmcnt(0)")
        for q in range(2):
            a(f"v_max_f32 v{MX[q]}, v{MX[q]}, v{S[0]+q}"); set_m(a, q, MX[q])
        a(f"s_mov_b32 s{MODE}, 2\ns_branch L_at_refill")
    return cold

def tail(a):
    ACC = 8
    order = [3, 2, 1, 0]
    THR = int(sys.argv[sys.argv.index('--thr')+1]) if '--thr' in sys.argv else 1
    PD = int(sys.argv[sys.argv.index('--pd')+1]) if '--pd' in sys.argv else 2
    def rlist(i, slot):
        t = Asm(); wo_reads(t, i, slot); return [l.strip() for l in t.lines]
    def loads(x):
        for e in range(2): a(f"buffer_load_dwordx4 {v(OFR[2*x+e],4)}, v5, s[12:15], s{TOS if x < 2 else 27} offen offset:{((2*x+e)&3)*1024} sc1")
        a(f"buffer_load_dwordx2 {v(OFR[8]+2*x,2)}, v1, s[12:15], s{TTS} offen offset:{x*512} sc1")
    def check(x, mask):
        r0, r1, rt = OFR[2*x], OFR[2*x+1], OFR[8] + 2*x
        a(f"""v_max3_u32 v4, v{r0}, v{r0+1}, v{r0+2}
        v_max3_u32 v4, v4, v{r0+3}, v{r1}
        v_max3_u32 v4, v4, v{r1+1}, v{r1+2}
        v_max3_u32 v4, v4, v{r1+3}, v{rt}
        v_max_u32 v4, v4, v{rt+1}""")
        if mask: a("v_and_b32 v4, s31, v4")
        a("v_cmp_eq_u32 vcc, -1, v4")
    def rowstore(base, T):
        for j in range(3): a(f"ds_read_b128 {v(T+4*j,4)}, v6 offset:{base + 960*j}")
        a(f"s_mov_b32 exec_hi, 0x0fffffff\ns_add_u32 s22, s{TFS}, {6*2560}\ns_add_u32 s23, s{TFS}, {12*2560}")
        for j in range(3):
            if j == 2: a("s_mov_b32 exec_hi, 0xff")
            a(f"s_waitcnt lgkmcnt({2-j})\nbuffer_store_dwordx4 {v(T+4*j,4)}, v{FS0}, s[8:11], s{[TFS, 22, 23][j]} offen {OUTSC}")
        a("s_mov_b32 exec_hi, -1")
    srd(a, 8, P_OUT, 2048*2560)
    a(f"""v_mov_b32 v5, v{DMV}
    v_lshlrev_b32 v1, 3, v2
    s_mov_b32 s50, 0
    s_mov_b32 s29, 15
    s_add_u32 s27, s{TOS}, 4096
    s_mul_i32 s22, s{HW}, 5120
    v_add_u32 v6, s22, v5
""")
    Y = WFR[8]
    a(f"s_cmp_eq_u32 s{KH}, 1\ns_cbranch_scc1 L_t_ny")
    for m in range(5): a(f"ds_read_b64_tr_b16 {v(Y+2*m,2)}, v{YT} offset:{YSRC + m*2048}")
    for m in range(5): a(f"s_waitcnt lgkmcnt(4)\nds_write_b64 v{FIW}, {v(Y+2*m,2)} offset:{PART + 32*m}")
    rowstore(PART, WFR[3])
    a.label("L_t_ny")
    for i in (7, 6, 5, 4, 3, 2, 1, 0, 8): wo_reads(a, i, i)
    for i in range(0, 20, 2): a(f"v_mov_b64 {v(ACC+i,2)}, 0")
    stamp(a, 44, True)
    a.label("L_t_loop")
    for x in order:
        a(f"s_bitcmp0_b32 s29, {x}\ns_cbranch_scc1 L_t_no{x}")
        loads(x)
        a.label(f"L_t_no{x}")
    a(f"""s_add_u32 s50, s50, 1
    s_cmp_gt_u32 s50, {SPIN}
    s_cselect_b32 s31, 0, -1
    s_mov_b32 s28, s29
    s_waitcnt lgkmcnt(0)""")
    for n, x in enumerate(order):
        a(f"s_bitcmp0_b32 s28, {x}\ns_cbranch_scc1 L_t_co{x}")
        if x > 0:
            a(f"s_and_b32 s22, s28, {(1 << x) - 1}\ns_bcnt1_i32_b32 s22, s22")
            for k in range(x, 0, -1):
                a(f"s_waitcnt vmcnt({3*k})\ns_cmp_eq_u32 s22, {k}\ns_cbranch_scc1 L_t_w{x}")
        a("s_waitcnt vmcnt(0)")
        a.label(f"L_t_w{x}")
        check(x, True)
        a(f"s_cbranch_vccnz L_t_co{x}\ns_bitset0_b32 s29, {x}")
        for e in (1, 0):
            for m in range(5): a(m16(ACC+4*m, WFR[2*x+e]+4*m, OFR[2*x+e], ACC+4*m))
        a.label(f"L_t_co{x}")
    if '--tl' in sys.argv:
        a("s_cmp_lg_u32 s50, 1\ns_cbranch_scc1 L_t_tl")
        stamp(a, 45, True)
        a(f"v_writelane_b32 v{PV}, s29, 28")
        a.label("L_t_tl")
    a("s_cmp_lg_u32 s29, 0\ns_cbranch_scc1 L_t_loop")
    wo_reads(a, 9, 7)
    a("s_waitcnt lgkmcnt(10)")
    for m in range(5): a(m16(ACC+4*m, WFR[8]+4*m, OFR[8], ACC+4*m))
    for m in range(5):
        a(f"s_waitcnt lgkmcnt({8-2*m})")
        a(m16(ACC+4*m, WFR[7]+4*m, OFR[9], ACC+4*m))
    stamp(a, 15)
    stamp(a, 52, True)
    if PROF: a(f"v_writelane_b32 v{PV}, s50, 29")
    T = 128
    a(f"s_cmp_eq_u32 s{KH}, 1\ns_cbranch_scc1 L_t_r1\ns_nop 3")
    for m in range(5): a(f"ds_write_b128 v6, {v(ACC+4*m,4)} offset:{PART + m*1024}")
    a("s_waitcnt lgkmcnt(0)\ns_barrier\ns_branch L_t_fin")
    a.label("L_t_r1")
    a("s_barrier")
    for m in range(5): a(f"ds_read_b128 {v(T+4*m,4)}, v6 offset:{PART + m*1024}")
    for m in range(5):
        a(f"s_waitcnt lgkmcnt(4)")
        for i in range(0, 4, 2): a(f"v_pk_add_f32 {v(ACC+4*m+i,2)}, {v(ACC+4*m+i,2)}, {v(T+4*m+i,2)}")
        a(f"v_cvt_pk_bf16_f32 v{ACC+4*m}, v{ACC+4*m}, v{ACC+4*m+1}\nv_cvt_pk_bf16_f32 v{ACC+4*m+1}, v{ACC+4*m+2}, v{ACC+4*m+3}")
        a(f"ds_write_b64 v{FIW}, {v(ACC+4*m,2)} offset:{OIMG + 32*m}")
    stamp(a, 46, True)
    rowstore(OIMG, T+24)
    a.label("L_t_fin")

def main(path):
    a = Asm()
    nm = NAME + "_kernel"
    a(f".globl {nm}\n.p2align 8\n.type {nm},@function")
    a.label(nm)
    if '--early' in sys.argv: a("s_memrealtime s[96:97]")
    a(f"""s_cmp_ge_u32 s2, 256
    s_cbranch_scc1 L_end
    s_load_dwordx16 s[64:79], s[0:1], 0
    s_load_dwordx8 s[80:87], s[0:1], 64
    s_load_dwordx2 s[88:89], s[0:1], 96
    v_lshrrev_b32 v1, 6, v0
    v_and_b32 v2, 63, v0
    v_readfirstlane_b32 s{WV}, v1
    s_and_b32 s{XCD}, s2, 7
    s_lshr_b32 s{IDX}, s2, 3
    s_cmp_lg_u32 s{WV}, 7
    s_cbranch_scc1 L_nopf
    s_cmp_ge_u32 s{IDX}, (L_code_end-{nm})/1024
    s_cbranch_scc1 L_nopf
    s_getpc_b64 s[22:23]""")
    a.label("L_pc")
    a(f"""s_lshl_b32 s24, s{IDX}, 10
    s_sub_u32 s22, s22, L_pc-{nm}
    s_subb_u32 s23, s23, 0
    v_lshl_add_u32 v4, v2, 4, s24
    v_mov_b32 v5, s23
    v_add_co_u32 v4, vcc, s22, v4
    s_nop 1
    v_addc_co_u32 v5, vcc, 0, v5, vcc
    global_load_dwordx4 v[220:223], v[4:5], off""")
    a.label("L_nopf")
    if PROF:
        a(f"v_mov_b32 v{PV}, 0\ns_memrealtime s[90:91]\ns_memtime s[92:93]")
    a(f"""s_and_b32 s{HW}, s{WV}, 3
    s_lshr_b32 s{KH}, s{WV}, 2
    s_mul_i32 s{CHN}, s{XCD}, 20
    s_add_u32 s{CHN}, s{CHN}, s{IDX}
    s_lshl_b32 s{CHN}, s{CHN}, 2
    s_add_u32 s{CHN}, s{CHN}, s{HW}
    s_lshl_b32 s22, s{CHN}, 8
    v_lshl_add_u32 v6, v2, 2, s22
    s_lshl_b32 s22, s{CHN}, 1
    v_mov_b32 v7, s22
    v_lshlrev_b32 v{DMV}, 4, v2
    s_mov_b32 s{FCOFF}, 0
    s_mov_b32 s{MODE}, 0""")
    a(f"""s_cmp_ge_u32 s{IDX}, 20
    s_cbranch_scc1 L_e_np
    s_waitcnt lgkmcnt(0)""")
    for i in range(4): a(f"global_load_dword v{PRM+i}, v6, s[{P_LA+2*i}:{P_LA+2*i+1}]")
    a(f"""global_load_ushort v{PRM+4}, v7, s[{P_DT}:{P_DT+1}]
    global_load_ushort v{VD}, v7, s[{P_D}:{P_D+1}]""")
    a.label("L_e_np")
    loader_math(a)
    a("s_waitcnt lgkmcnt(0)")
    if PROF: a(f"v_writelane_b32 v{PV}, s90, 0\nv_writelane_b32 v{PV}, s92, 1")
    srd(a, 60, P_X, 2048*1280)
    srd(a, 8, P_W, 640*3840)
    srd(a, 12, P_WS, WS_SIZE)
    if TLB:
        a(f"s_cmp_lg_u32 s{WV}, 6\ns_cbranch_scc1 L_notlb")
        srd(a, 4, P_OUT, 2048*2560)
        if TLB == 1:
            a(f"""v_lshlrev_b32 v3, 20, v2
            s_mov_b64 exec, 0x3ffff
            buffer_load_dword v220, v3, s[12:15], 0 offen
            s_mov_b64 exec, 0x1f
            buffer_load_dword v221, v3, s[4:7], 0 offen""")
        else:
            a(f"""s_mul_i32 s22, s{IDX}, {9*65536}
            v_lshlrev_b32 v3, 16, v2
            s_mov_b64 exec, 0x1ff
            buffer_load_dword v220, v3, s[12:15], s22 offen
            s_mul_i32 s22, s{IDX}, {3*65536}
            s_mov_b64 exec, 7
            buffer_load_dword v221, v3, s[4:7], s22 offen""")
        srd(a, 4, P_WO, 640*1280)
        a(f"""v_lshlrev_b32 v3, 16, v2
        s_mov_b64 exec, 0x1fff
        buffer_load_dword v222, v3, s[4:7], 0 offen
        s_mov_b64 exec, -1""")
        a.label("L_notlb")
    a(f"""s_cmp_ge_u32 s{IDX}, 30
    s_cbranch_scc1 L_e_tr
    s_cmp_eq_u32 s{KH}, 1
    s_cbranch_scc1 L_e_h
    s_cmp_lt_u32 s{IDX}, 20
    s_cbranch_scc1 L_g_pro
    s_barrier""")
    a.label("L_g_pro")
    stamp(a, 40)
    issue(a)
    stamp(a, 41)
    a(f"s_setprio 2\ns_cmp_lt_u32 s{IDX}, 20\ns_cbranch_scc1 L_kgen\ns_branch L_gemm")
    a.label("L_e_tr")
    a(f"""s_lshl_b32 s26, s{XCD}, 1
    s_add_u32 s26, s26, s{IDX}
    s_sub_u32 s26, s26, 30
    s_lshl_b32 s26, s26, 3
    s_add_u32 s26, s26, s{WV}
    s_lshl_b32 s27, s{WV}, 13
    s_add_u32 s27, s27, 16384
    s_branch L_e_ut""")
    a.label("L_e_h")
    a(f"""s_or_b32 s22, s2, s{HW}
    s_cmp_lg_u32 s22, 0
    s_cbranch_scc1 L_nn
    s_memrealtime s[22:23]
    v_mov_b32 v3, 0
    s_waitcnt lgkmcnt(0)
    s_or_b32 s22, s{96 if '--early' in sys.argv else 22}, 1
    v_mov_b32 v4, s22
    s_mov_b64 exec, 1
    global_store_dword v3, v4, s[{P_DBG}:{P_DBG+1}] sc1
    s_mov_b64 exec, -1""")
    a.label("L_nn")
    a(f"""s_mul_i32 s26, s{XCD}, 10
    s_add_u32 s26, s26, s{IDX}
    s_mul_i32 s22, s{HW}, 80
    s_add_u32 s26, s26, s22
    s_add_u32 s26, s26, {128 - 20}
    s_lshl_b32 s27, s{HW}, 13
    s_add_u32 s27, s27, {SCR}
    s_cmp_lt_u32 s{IDX}, 20
    s_cbranch_scc1 L_helper
    s_cmp_ge_u32 s26, 320
    s_cbranch_scc1 L_e_eb""")
    a.label("L_e_ut")
    utile_issue(a)
    a.label("L_e_eb")
    a("s_barrier")
    a(f"s_cmp_ge_u32 s{IDX}, 30\ns_cbranch_scc1 L_utile")
    a.label("L_helper")
    helper(a)
    a.label("L_g_kb")
    a("s_setprio 0")
    skip(a)
    issue(a)
    a(f"v_add_u32 v6, s28, v{DMV}")
    for i in range(4): a(f"ds_write_b128 v6, {v(KACC+4*i,4)} offset:{1024*i}")
    a.label("L_gemm")
    attn_ids(a)
    gemm(a)
    a.label("L_w1")
    window1(a)
    a.label("L_attn")
    cold = attention(a)
    tail(a)
    diag_wait(a, '--dend')
    if PROF:
        a("s_waitcnt vmcnt(0)")
        stamp(a, 16); stamp(a, 17, True)
        a(f"""s_lshl_b32 s22, s2, 3
        s_add_u32 s22, s22, s{WV}
        s_lshl_b32 s22, s22, 8
        s_add_u32 s22, s22, {WS_PROF}
        v_lshlrev_b32 v3, 2, v2
        buffer_store_dword v{PV}, v3, s[12:15], s22 offen""")
    a.label("L_end")
    a("s_endpgm")
    a.label("L_tr_back")
    arr_init(a)
    attn_ids(a)
    o_maps(a)
    a(f"s_cmp_ge_u32 s{WV}, 4\ns_cbranch_scc1 L_tr_b2")
    clear_o(a)
    a.label("L_tr_b2")
    a(f"s_waitcnt lgkmcnt(0)\ns_barrier\ns_cmp_lt_u32 s{WV}, 4\ns_cbranch_scc1 L_w1\ns_branch L_h_ids")
    cold()
    a(f".fill (1024 - ((. - {nm}) % 1024))/4, 4, 0xbf810000")
    a.label("L_code_end")
    hdr = open("cdna_kernels/" + NAME + ".s.ref").read().split("\n")
    head = [l for l in hdr[:15] if l.startswith(";") and "@launch" not in l and "Override" not in l and "grid=ceil" not in l]
    txt = "\n".join(head) + "\n; @launch grid=(256,1,1) block=(512,1,1) lds=163840\n"
    txt += '.amdgcn_target "amdgcn-amd-amdhsa--gfx950"\n.text\n' + a.text()
    txt += f""".section .rodata,"a"
.p2align 6
.amdhsa_kernel {nm}
  .amdhsa_next_free_vgpr 256
  .amdhsa_next_free_sgpr 102
  .amdhsa_accum_offset 256
  .amdhsa_group_segment_fixed_size 0
  .amdhsa_kernarg_size 104
  .amdhsa_user_sgpr_count 2
  .amdhsa_user_sgpr_kernarg_segment_ptr 1
  .amdhsa_system_sgpr_workgroup_id_x 1
.end_amdhsa_kernel
"""
    open(path, "w").write(txt)
    errs = check_hazards(a.text())
    for e in errs[:30]: print("HAZARD", e)
    print(f"{path}: {len(a.lines)} lines, {len(errs)} hazards")

if __name__ == "__main__":
    main([x for x in sys.argv[1:] if x.endswith(".s")][0])
```

```python
import math, sys
from asmlib import *

NAME = "concat_heads__ssm_conv_s4d__mha_block__prompt"
WS_QKV = 0
WS_O = 0x800000
WS_UT = 0xB00000
WS_YT = 0xE00000
WS_FA = 0x1100000
WS_FB = 0x1110000
WS_FC = 0x1120000
WS_PROF = 0x1300000
WS_SIZE = 0x1400000
TTS_ = 480*1024
OG = 20480
RS = 4352
LOG2E = math.log2(math.e)
QSCALE = LOG2E / math.sqrt(20.0)
PROF = "--prof" in sys.argv
M0 = "--m0" in sys.argv
SPIN = 0x40000
NH = int(sys.argv[sys.argv.index('--nh')+1]) if '--nh' in sys.argv else 2
MP = int(sys.argv[sys.argv.index('--mp')+1]) if '--mp' in sys.argv else 0
XROT = int(sys.argv[sys.argv.index('--xrot')+1]) if '--xrot' in sys.argv else 0
LATE = int(sys.argv[sys.argv.index('--late')+1]) if '--late' in sys.argv else 0
PSL = int(sys.argv[sys.argv.index('--psl')+1]) if '--psl' in sys.argv else 0
PRE = int(sys.argv[sys.argv.index('--pre')+1]) if '--pre' in sys.argv else 4
PRE2 = int(sys.argv[sys.argv.index('--pre2')+1]) if '--pre2' in sys.argv else 0
PACKA = '--nopacka' not in sys.argv
ALN = int(sys.argv[sys.argv.index('--al')+1]) if '--al' in sys.argv else 0
ALP = int(sys.argv[sys.argv.index('--alp')+1]) if '--alp' in sys.argv else 6
FILL1 = int(sys.argv[sys.argv.index('--fill')+1]) if '--fill' in sys.argv else 0
OUTSC = sys.argv[sys.argv.index('--outsc')+1].replace('_', ' ') if '--outsc' in sys.argv else ''
TLB = int(sys.argv[sys.argv.index('--tlb')+1]) if '--tlb' in sys.argv else 0
POLLC = int(sys.argv[sys.argv.index('--pollc')+1]) if '--pollc' in sys.argv else 5
UP = int(sys.argv[sys.argv.index('--up')+1]) if '--up' in sys.argv else 1
UNT = 'nt' if '--unt' in sys.argv else ''
X16 = '--x16' in sys.argv
PRIO = [int(x) for x in sys.argv[sys.argv.index('--prio')+1].split(',')] if '--prio' in sys.argv else [0, 16, 26, 30]
LOC = '--loc' in sys.argv
OSC = '' if '--plainO' in sys.argv else 'sc1'
SPEC = int(sys.argv[sys.argv.index('--spec')+1]) if '--spec' in sys.argv else 1
XNT = "nt" if "--xnt" in sys.argv else ""
WNT = "nt" if "--wnt" in sys.argv else ""
J = "\n".join

WV, XCD, IDX, NONCE = 16, 17, 18, 19
TT, CT = 20, 21
FCOFF, HEAD5, QB, OOFF = 36, 37, 38, 39
KS = [40, 41, 42]; KL = [44, 45, 46]
MODE, KH, KHOFF = 47, 48, 49
HW, CHN = 51, 52
OOCT, OTAIL = 54, 55
XS, WSO, LB = 56, 57, 99
TB = 58
P_U, P_LA, P_AI, P_CR, P_CI, P_DT, P_D, P_X, P_W, P_WO, P_OUT, P_DBG, P_WS = range(64, 90, 2)
WOS, WOL = 94, 95
MK, MK2, MC = 33+1, 35, 100
MW = [101, 25]
PV = 255
DX, DW = 240, 244
PL1, PL2 = 234, 235
DMV, KA, K4, VA, MSK, MS4, WOV, QA4, QA0 = range(224, 233)

RING = 32768
SCR = 3*RING
UST = 4640
KOFF = 4*UST
CHA = KOFF + 4224
CVB = 65536
PST = 2048 + 32
SLOT = 20992
FLAGW = 0
CONSTP = 64
ARING = 1280
QLDS = ARING + 2*SLOT
WOB = 163840 - 107*960 - 64
EXC = ARING
YSRC = WOB - 10240
PART = 25856
KSC = SCR
CNT = 129536
ARRW = CNT
OIMG = ARING
assert CVB + 4*CHA <= 163840 and ARING + 3*SLOT <= 65536 and ARING + 3*SLOT <= WOB + 11*960
assert EXC + 24576 <= PART and PART + 20480 <= YSRC and YSRC >= ARING + 2*SLOT and EXC + 24576 <= ARING + SLOT + 5*PST and OIMG + 20480 <= PART

def srd(a, d, lo, size):
    a(f"s_mov_b32 s{d}, s{lo}\ns_and_b32 s{d+1}, s{lo+1}, 0xffff\ns_mov_b32 s{d+2}, {size}\ns_mov_b32 s{d+3}, 0x20000")
def m32(d, x, y, c=None):
    return f"v_mfma_f32_32x32x16_bf16 {v(d,16)}, {v(x,4)}, {v(y,4)}, {v(c,16) if c is not None else 0}"
def m32x8(d, x, y, c):
    if X16: return f"v_mfma_f32_32x32x16_bf16 {v(d,16)}, {v(x-2,4)}, {v(y-2,4)}, {v(c,16)}"
    return f"v_mfma_f32_32x32x8_bf16 {v(d,16)}, {v(x,2)}, {v(y,2)}, {v(c,16)}"
def m16(d, x, y, c=None):
    return f"v_mfma_f32_16x16x32_bf16 {v(d,4)}, {v(x,4)}, {v(y,4)}, {v(c,4) if c is not None else 0}"
LITE = "--lite" in sys.argv
def stamp(a, i, real=False):
    if LITE and i not in (50, 51, 53, 17) + ((52, 44, 45, 46, 47) if '--tl' in sys.argv and real else ()): return
    if PROF: a(f"s_mem{'real' if real else ''}time s[92:93]\ns_waitcnt lgkmcnt(0)\nv_writelane_b32 v{PV}, s92, {i}")

def diag_wait(a, key):
    if key not in sys.argv: return
    x = int(sys.argv[sys.argv.index(key)+1]) * 100
    l = a.newlabel("L_dg")
    a.label(l)
    a(f"""s_memrealtime s[90:91]
    s_waitcnt lgkmcnt(0)
    s_sub_u32 s90, s90, s{NONCE}
    s_cmp_lt_u32 s90, {x}
    s_cbranch_scc1 {l}""")

def get_nonce(a):
    l = a.newlabel("L_nonce"); e = a.newlabel("L_nonce_e")
    a(f"""s_load_dword s{NONCE}, s[{P_DBG}:{P_DBG+1}], 0
    s_mov_b32 s50, 0
    v_mov_b32 v222, 0
    s_waitcnt lgkmcnt(0)""")
    a.label(l)
    a(f"""s_cmp_lg_u32 s{NONCE}, 0
    s_cbranch_scc1 {e}
    global_load_dword v223, v222, s[{P_DBG}:{P_DBG+1}] sc1
    s_add_u32 s50, s50, 1
    s_waitcnt vmcnt(0)
    v_readfirstlane_b32 s{NONCE}, v223
    s_cmp_lt_u32 s50, {SPIN}
    s_cbranch_scc1 {l}""")
    a.label(e)

def poll(a, addrs, width, vt, preloaded=False, sleep=0, cnt=50):
    l = a.newlabel("L_poll"); e = a.newlabel("L_poll_e")
    sfx = {1: "dword", 4: "dwordx4"}[width]
    a(f"s_mov_b32 s{cnt}, 0")
    if preloaded: a(f"s_branch {l}_c")
    a.label(l)
    for k, ad in enumerate(addrs): a(f"buffer_load_{sfx} {v(vt+4*k,width)}, v{ad}, s[12:15], 0 offen sc1")
    a(f"s_add_u32 s{cnt}, s{cnt}, 1\ns_waitcnt vmcnt(0)")
    a.label(l + "_c")
    regs = [vt+4*k+j for k in range(len(addrs)) for j in range(width)]
    for r in regs: a(f"v_xor_b32 v{r}, s{NONCE}, v{r}")
    for r in regs[1:]: a(f"v_or_b32 v{regs[0]}, v{regs[0]}, v{r}")
    a(f"""v_cmp_ne_u32 vcc, 0, v{regs[0]}
    s_cmp_gt_u32 s{cnt}, {SPIN}
    s_cbranch_scc1 {e}""")
    if sleep: a(f"s_cbranch_vccz {e}\ns_sleep {sleep}\ns_branch {l}")
    else: a(f"s_cbranch_vccnz {l}")
    a.label(e)

def set_flag(a, soff, vt):
    a(f"""v_mov_b32 v{vt}, 0
    v_mov_b32 v{vt+1}, s{NONCE}
    s_mov_b64 exec, 1
    buffer_store_dword v{vt+1}, v{vt}, s[12:15], s{soff} offen sc1
    s_mov_b64 exec, -1""")

def attn_ids(a):
    if LOC: a(f"s_mov_b32 s{HEAD5}, s{IDX}\ns_mov_b32 s{QB}, s{XCD}")
    else: a(f"""s_lshl_b32 s{HEAD5}, s{XCD}, 2
    s_lshr_b32 s22, s{IDX}, 3
    s_add_u32 s{HEAD5}, s{HEAD5}, s22
    s_and_b32 s{QB}, s{IDX}, 7""")
    a(f"""s_mul_i32 s22, s{QB}, {16*OG}
    s_add_u32 s22, s22, {WS_O}
    s_lshl_b32 s{OOCT}, s{HEAD5}, 9
    s_add_u32 s{OOCT}, s{OOCT}, s22
    s_lshl_b32 s{OTAIL}, s{HEAD5}, 7
    s_add_u32 s{OTAIL}, s{OTAIL}, s22
    s_add_u32 s{OTAIL}, s{OTAIL}, 16384
    s_mul_i32 s{HEAD5}, s{HEAD5}, 5
    s_lshl_b32 s{OOFF}, s{HEAD5}, 10
    s_mul_i32 s22, s{QB}, {2*TTS_}
    s_add_u32 s{OOFF}, s{OOFF}, s22""")

def clear_o(a):
    a(f"""v_lshrrev_b32 v140, 5, v2
    v_mul_u32_u24 v140, {2*OG}, v140
    v_add_u32 v140, v140, v{OST}
    v_mov_b32 v136, -1
    v_mov_b32 v137, -1
    v_mov_b32 v138, -1
    v_mov_b32 v139, -1
    s_mul_i32 s24, s{HW}, {4*OG}
    s_add_u32 s22, s24, s{OOCT}
    s_add_u32 s23, s22, {2*OG}
    s_add_u32 s24, s24, s{OTAIL}
    buffer_store_dwordx4 v[136:139], v{OSA}, s[12:15], s22 offen sc1
    buffer_store_dwordx4 v[136:139], v{OSA}, s[12:15], s23 offen sc1
    buffer_store_dwordx2 v[136:137], v140, s[12:15], s24 offen sc1""")

def arr_init(a):
    a(f"v_mov_b32 v220, {CNT}\nv_mov_b32 v222, 0\nv_mov_b32 v223, 0\nds_write_b64 v220, v[222:223]")

def utile_issue(a):
    srd(a, 4, P_U, 2048*1280)
    a(f"""v_lshlrev_b32 v4, 4, v9
    v_mul_u32_u24 v3, 1280, v8
    v_add_u32 v3, v3, v4
    s_mov_b32 m0, s27
    s_lshr_b32 s23, s26, 5
    s_and_b32 s28, s26, 31
    s_mul_i32 s24, s28, {64*1280}
    s_lshl_b32 s22, s23, 7
    s_add_u32 s24, s24, s22
    s_mov_b32 s30, 0""")
    a.label("L_ut_i")
    a(f"""buffer_load_dwordx4 v3, s[4:7], s24 offen {UNT} lds
    s_add_u32 m0, m0, 1024
    s_add_u32 s24, s24, {8*1280}
    s_add_u32 s30, s30, 1
    s_cmp_lt_u32 s30, 8
    s_cbranch_scc1 L_ut_i""")
def utile(a):
    A0, A1, A2, A3, D = 8, 9, 10, 11, 12
    a(f"""s_lshr_b32 s23, s26, 5
    v_xor_b32 v{A1}, v{A1}, v{A0}
    v_lshlrev_b32 v{A1}, 4, v{A1}
    v_mul_u32_u24 v{A3}, {RS}, v{A0}
    v_add_u32 v{A3}, v{A3}, v{A1}
    v_lshlrev_b32 v{A0}, 4, v2
    v_add_u32 v{A0}, s27, v{A0}
    v_bfe_u32 v{A1}, v2, 2, 2
    v_lshlrev_b32 v{A1}, 7, v{A1}
    v_lshrrev_b32 v{A2}, 4, v2
    v_lshl_add_u32 v{A1}, v{A2}, 5, v{A1}
    v_and_b32 v{A2}, 3, v2
    v_lshl_add_u32 v{A1}, v{A2}, 3, v{A1}
    v_add_u32 v{A1}, s27, v{A1}
    v_and_b32 v{A2}, 7, v2
    v_lshlrev_b32 v{A2}, 4, v{A2}
    v_lshl_add_u32 v{A2}, v2, 7, v{A2}
    v_add_u32 v{A2}, s27, v{A2}
    s_mul_i32 s23, s23, {64*RS}
    s_lshl_b32 s24, s28, 7
    s_add_u32 s24, s24, s23
    s_add_u32 s24, s24, {WS_UT}
    s_lshl_b32 s29, s26, {2 if PACKA else 7}
    s_add_u32 s29, s29, {WS_FA}""")
    stamp(a, 27)
    a("s_waitcnt vmcnt(0)")
    stamp(a, 28)
    for i in range(16): a(f"ds_read_b64_tr_b16 {v(D+2*i,2)}, v{A1} offset:{i*512}")
    a("s_waitcnt lgkmcnt(0)")
    for i in range(8): a(f"v_xor_b32 v4, {16*i}, v{A2}\nds_write_b128 v4, {v(D+4*i,4)}")
    a("s_waitcnt lgkmcnt(0)")
    for i in range(8): a(f"ds_read_b128 {v(D+4*i,4)}, v{A0} offset:{i*1024}")
    for i in range(8):
        a(f"s_waitcnt lgkmcnt({7-i})\nbuffer_store_dwordx4 {v(D+4*i,4)}, v{A3}, s[12:15], s24 offen sc1\ns_add_u32 s24, s24, {8*RS}")
    stamp(a, 2)
    a(f"s_mov_b32 s33, 1\ns_cmp_lt_u32 s{IDX}, 30\ns_cbranch_scc1 L_h_ld0")
    get_nonce(a)
    a("s_waitcnt vmcnt(0)")
    set_flag(a, 29, 4)
    stamp(a, 3)

def next_slot(a, cur, tmp):
    a(f"""s_add_u32 s{cur}, s{cur}, {RING}
    s_lshr_b32 s{tmp}, s{cur}, 15
    s_cmp_eq_u32 s{tmp}, 3
    s_cselect_b32 s{tmp}, {RING}, 0
    s_add_u32 s{cur}, s{cur}, s{tmp}
    s_cmp_ge_u32 s{cur}, {5*RING}
    s_cselect_b32 s{tmp}, {5*RING}, 0
    s_sub_u32 s{cur}, s{cur}, s{tmp}""")

ORD = sys.argv[sys.argv.index('--ord')+1] if '--ord' in sys.argv else 'mix'
def orders():
    if ORD == 'none': return [list(range(10))]*4
    if ORD == 'pair': return [[c ^ (t & 1) for c in range(10)] for t in range(4)]
    if ORD == 'quad': return [[(c ^ t) if c < 8 else (c ^ (t & 1)) for c in range(10)] for t in range(4)]
    if ORD == 'quad2': return [[(c ^ (t & 1)) if c < 2 else 2 + ((c - 2) ^ t) for c in range(10)] for t in range(4)]
    if ORD == 'quad3': return [[(c ^ t) if c < 4 else ((c ^ (t & 1)) if c < 6 else 6 + ((c - 6) ^ t)) for c in range(10)] for t in range(4)]
    if ORD == 'five': return [[(c // 5) * 5 + (c + (0, 1, 3, 4)[t]) % 5 for c in range(10)] for t in range(4)]
    if ORD == 'mix': return [[(0,4,1,2,8,3,5,6,7,9), (1,5,0,3,9,2,4,7,6,8), (2,6,3,0,8,1,7,4,5,9), (3,7,2,1,9,0,6,5,4,8)][t] for t in range(4)]
    if ORD == 'half': return [[(c + 5*(t & 1)) % 10 for c in range(10)] for t in range(4)]
    if ORD == 'rot': return [[(c + (0, 3, 5, 8)[t]) % 10 for c in range(10)] for t in range(4)]
    if ORD == 'tri': return [[(c//3*3 + (c + t) % 3) if c < 9 else 9 for c in range(10)] for t in (0, 1, 2, 1)]
def loader_math(a):
    a(f"""s_lshr_b32 s{TT}, s{XCD}, 1
    s_lshl_b32 s{TT}, s{TT}, 2
    s_and_b32 s24, s{XCD}, 1
    s_and_b32 s22, s{IDX}, 3
    s_lshr_b32 s23, s{IDX}, 2
    s_lshl_b32 s{CT}, s24, 3
    s_add_u32 s{CT}, s{CT}, s23
    s_lshl_b32 s24, s24, 1
    s_cmp_ge_u32 s{IDX}, 28
    s_cselect_b32 s{CT}, 7, s{CT}
    s_cselect_b32 s24, s24, 0
    s_add_u32 s22, s22, s24
    s_add_u32 s{TT}, s{TT}, s22
    s_add_u32 s22, s{TT}, s{CT}
    s_and_b32 s22, s22, 3""")
    if XROT == 1: a(f"s_mul_i32 s25, s{XCD}, 5\ns_lshr_b32 s25, s25, 2")
    if XROT == 2: a(f"s_and_b32 s25, s{XCD}, 1\ns_mul_i32 s25, s25, 5")
    if XROT == 3: a(f"s_lshr_b32 s25, s{XCD}, 1\ns_mul_i32 s25, s25, 5\ns_lshr_b32 s25, s25, 1")
    tb = [sum(c << (4*i) for i, c in enumerate(o)) for o in orders()]
    a(f"s_mov_b32 s{TB}, {tb[0] & 0xffffffff}\ns_mov_b32 s{TB+1}, {tb[0] >> 32}")
    for t in range(1, 4):
        if tb[t] != tb[0]: a(f"s_cmp_eq_u32 s22, {t}\ns_cselect_b32 s{TB}, {tb[t] & 0xffffffff}, s{TB}\ns_cselect_b32 s{TB+1}, {tb[t] >> 32}, s{TB+1}")
    a(f"""v_lshrrev_b32 v8, 3, v2
    v_and_b32 v9, 7, v2
    v_lshrrev_b32 v5, 1, v8
    s_and_b32 s22, s{HW}, 1
    s_lshl_b32 s22, s22, 2
    v_add_u32 v5, s22, v5
    v_xor_b32 v4, v9, v5
    v_lshlrev_b32 v4, 4, v4
    v_mul_u32_u24 v3, 2560, v8
    v_add_u32 v{DX}, v3, v4
    s_lshl_b32 s{XS}, s{TT}, 3
    s_add_u32 s{XS}, s{XS}, s{HW}
    s_mul_i32 s{XS}, s{XS}, {16*1280}
    v_lshrrev_b32 v3, 4, v2
    v_bfe_u32 v4, v2, 2, 2
    v_xor_b32 v4, v4, v3
    v_lshlrev_b32 v4, 6, v4
    v_and_b32 v5, 3, v2
    v_lshlrev_b32 v5, 4, v5
    v_mul_u32_u24 v3, 3840, v3
    v_add3_u32 v{DW}, v3, v4, v5
    s_lshl_b32 s{WSO}, s{CT}, 8
    s_mul_i32 s22, s{HW}, {4*3840}
    s_add_u32 s{WSO}, s{WSO}, s22
    s_lshl_b32 s{LB}, s{HW}, 10
""")
    for i in range(1, 4):
        a(f"v_add_u32 v{DX+i}, {(64*(i>>1) + (i&1))*1280}, v{DX}\nv_add_u32 v{DW+i}, {i*16*3840}, v{DW}")
def dma_prep():
    xr = f"""
    s_add_u32 s43, s43, s25
    s_cmp_ge_u32 s43, 10
    s_cselect_b32 s100, 10, 0
    s_sub_u32 s43, s43, s100""" if XROT else ""
    return f"""s_and_b32 s43, s{TB}, 15{xr}
    s_lshr_b64 s[{TB}:{TB+1}], s[{TB}:{TB+1}], 4
    s_lshl_b32 s100, s43, 7
    s_add_u32 s100, s100, s{XS}
    s_mul_i32 s101, s43, {64*3840}
    s_add_u32 s101, s101, s{WSO}"""
def issue(a, fill=None):
    a(dma_prep())
    per = (len(fill) + 7) // 8 if fill else 0
    for k in range(8):
        i = k >> 1
        a(f"s_add_u32 m0, s{LB}, {i*4096 + (16384 if k & 1 else 0)}\ns_nop 0")
        a(f"buffer_load_dwordx4 v{(DW if k & 1 else DX)+i}, s[{'8:11' if k & 1 else '60:63'}], s{101 if k & 1 else 100} offen lds")
        if fill:
            n = min(per, len(fill))
            while n < len(fill) and (fill[n].startswith(("s_cselect", "s_addc"))): n += 1
            a(J(fill[:n])); del fill[:n]
    assert not fill
    next_slot(a, LB, 43)
def skip(a):
    a(f"s_lshr_b64 s[{TB}:{TB+1}], s[{TB}:{TB+1}], 4")
    next_slot(a, LB, 22)
def lds_wait(a, va, off, vt, sleep=True):
    l = a.newlabel("L_lw"); e = a.newlabel("L_le")
    a.label(l)
    a(f"""ds_read_b32 v{vt}, v{va} offset:{off}
    s_waitcnt lgkmcnt(0)
    v_readfirstlane_b32 s22, v{vt}
    s_cmp_ge_u32 s22, 4
    s_cbranch_scc1 {e}""")
    if sleep: a("s_sleep 2")
    a(f"s_branch {l}")
    a.label(e)

def main_pre(a):
    def wg_of(tt, ct, dst):
        a(f"""v_cmp_eq_u32 vcc, 7, v{ct}
        v_bfe_u32 v10, v{tt}, 1, 1
        v_lshrrev_b32 v11, 3, v{ct}
        v_cndmask_b32 v10, v11, v10, vcc
        v_and_b32 v11, 3, v{tt}
        v_and_b32 v12, 1, v{tt}
        v_cndmask_b32 v11, v11, v12, vcc
        v_and_b32 v12, 7, v{ct}
        v_lshl_add_u32 v11, v12, 2, v11
        v_lshl_add_u32 v10, v11, 3, v10
        v_lshrrev_b32 v11, 2, v{tt}
        v_lshl_add_u32 v{dst}, v11, 1, v10""")
    a(f"""v_and_b32 v3, 15, v2
    v_lshrrev_b32 v4, 5, v2
    v_mul_u32_u24 v4, 160, v4
    v_bfe_u32 v5, v2, 4, 1
    v_lshl_add_u32 v4, v5, 2, v4
    s_add_u32 s22, s{HEAD5}, 160
    v_add_u32 v4, s22, v4
    v_lshrrev_b32 v4, 5, v4""")
    wg_of(3, 4, 8)
    a(f"""v_lshlrev_b32 v8, 7, v8
    v_add_u32 v{PL1}, {WS_FB}, v8
    v_and_b32 v3, 1, v2
    s_lshl_b32 s22, s{QB}, 1
    v_add_u32 v3, s22, v3
    v_bfe_u32 v4, v2, 1, 1
    v_lshlrev_b32 v4, 2, v4
    v_add_u32 v4, s{HEAD5}, v4
    v_lshrrev_b32 v4, 5, v4""")
    wg_of(3, 4, 9)
    if LOC: a(f"v_lshl_add_u32 v3, v2, 3, s{XCD}")
    else: a(f"""v_bfe_u32 v3, v2, 3, 2
    v_lshlrev_b32 v3, 6, v3
    v_and_b32 v4, 7, v2
    s_lshl_b32 s22, s{XCD}, 3
    v_add3_u32 v3, v3, v4, s22""")
    a(f"""v_cmp_gt_u32 vcc, 32, v2
    s_nop 1
    v_cndmask_b32 v9, v9, v3, vcc
    v_lshlrev_b32 v9, 7, v9
    v_add_u32 v{PL2}, {WS_FB}, v9""")

def gemm(a):
    XA = [10, 11, 12, 13]; WA = [14, 15]
    FX = [[16, 20], [32, 36]]; FW = [[24, 28], [40, 44]]
    ACC = 48
    a(f"""s_and_b32 s34, s{WV}, 1
    s_lshr_b32 s35, s{WV}, 1
    v_and_b32 v3, 31, v2
    v_lshrrev_b32 v4, 5, v2
    v_bfe_u32 v5, v3, 1, 3
    v_xor_b32 v5, v5, v4
    v_lshlrev_b32 v5, 4, v5
    v_lshlrev_b32 v6, 7, v3
    s_lshl_b32 s22, s34, 13
    v_add3_u32 v{XA[0]}, v5, v6, s22
    v_xor_b32 v{XA[1]}, 32, v{XA[0]}
    v_xor_b32 v{XA[2]}, 64, v{XA[0]}
    v_xor_b32 v{XA[3]}, 96, v{XA[0]}
    v_bfe_u32 v5, v2, 2, 2
    s_lshl_b32 s22, s35, 1
    v_xor_b32 v6, s22, v5
    v_lshlrev_b32 v6, 6, v6
    v_lshlrev_b32 v7, 3, v4
    v_add_u32 v7, v7, v5
    v_lshlrev_b32 v7, 8, v7
    v_bfe_u32 v5, v2, 4, 1
    v_lshlrev_b32 v5, 5, v5
    v_add3_u32 v6, v6, v7, v5
    v_and_b32 v5, 3, v2
    v_lshl_add_u32 v6, v5, 3, v6
    v_add_u32 v{WA[0]}, 16384, v6
    v_xor_b32 v{WA[1]}, 64, v{WA[0]}
    v_lshlrev_b32 v5, 10, v4
    v_lshl_add_u32 v5, v3, 4, v5
    s_lshl_b32 s26, s{CT}, 5
    s_lshl_b32 s23, s35, 4
    s_add_u32 s26, s26, s23
    s_lshl_b32 s26, s26, 10
    s_mul_i32 s23, s{TT}, {TTS_}
    s_add_u32 s26, s26, s23
    s_lshl_b32 s23, s34, 9
    s_add_u32 s26, s26, s23""")
    a("v_mov_b64 v[16:17], 0\nv_mov_b64 v[18:19], 0\ns_nop 1")
    for i in range(4): a(m32(ACC+16*i, 16, 16))
    def rx(ks, buf, t): return f"ds_read_b128 {v(FX[buf][t],4)}, v{XA[ks]} offset:{t*4096}"
    def rw(ks, buf, m, rd): return f"ds_read_b64_tr_b16 {v(FW[buf][m]+2*rd,2)}, v{WA[m]} offset:{(16*ks+4*rd)*256}"
    def rds(ks, buf): return [rx(ks,buf,0), rw(ks,buf,0,0), rw(ks,buf,0,1), rx(ks,buf,1), rw(ks,buf,1,0), rw(ks,buf,1,1)]
    def mf(buf, m, t):
        if '--g16' in sys.argv:
            d = ACC+(m*2+t)*16 + 8*buf
            return m16(d, FW[buf][m], FX[buf][t], d) + "\n" + m16(d+4, FX[buf][t], FW[buf][m], d+4)
        return m32(ACC+(m*2+t)*16, FW[buf][m], FX[buf][t], ACC+(m*2+t)*16)
    stamp(a, 24)
    o_maps(a)
    a(f"s_cmp_lt_u32 s{IDX}, 20\ns_cbranch_scc1 L_g_w")
    issue(a)
    a("s_waitcnt vmcnt(8)")
    issue(a)
    a.label("L_g_w")
    clear_o(a)
    a("s_waitcnt lgkmcnt(0)")
    stamp(a, 25)
    a("s_mov_b32 s30, 0\ns_mov_b32 s31, 0\ns_setprio 2")
    stamp(a, 26)
    a("s_barrier")
    stamp(a, 2)
    a(J(rds(0, 0)))
    a(".p2align 3")
    a.label("L_g_mm")
    for ks in range(4):
        b = ks & 1
        r = rds((ks+1) & 3, b ^ 1)
        a("s_waitcnt lgkmcnt(3)")
        a(mf(b, 0, 0))
        if ks < 3:
            a(J(r[0:3]) + "\ns_waitcnt lgkmcnt(5)")
            a(mf(b, 0, 1))
            a(J(r[3:6]) + "\ns_waitcnt lgkmcnt(6)")
            a(mf(b, 1, 0))
            if ks == 0:
                a("s_mov_b32 s32, s31"); next_slot(a, 31, 33)
            if ks == 1: a(f"s_sub_u32 s33, s31, s32\ns_add_u32 s30, s30, 1\nv_add_u32 v{XA[0]}, s33, v{XA[0]}\nv_add_u32 v{XA[1]}, s33, v{XA[1]}\nv_add_u32 v{XA[2]}, s33, v{XA[2]}")
            if ks == 2: a(f"v_add_u32 v{XA[3]}, s33, v{XA[3]}\nv_add_u32 v{WA[0]}, s33, v{WA[0]}\nv_add_u32 v{WA[1]}, s33, v{WA[1]}\ns_cmp_eq_u32 s30, 1")
            a(mf(b, 1, 1))
        else:
            a("s_cbranch_scc1 L_g_w8\ns_waitcnt vmcnt(3)")
            a.label("L_g_w8")
            a("s_waitcnt vmcnt(11) lgkmcnt(0)\ns_cmp_gt_u32 s30, 8\ns_cbranch_scc1 L_g_nb\ns_barrier")
            a.label("L_g_nb")
            a(mf(b, 0, 1))
            a(J(r[0:3]) + "\ns_cmp_lt_u32 s30, 10")
            a(mf(b, 1, 0))
            a(J(r[3:6]))
            a(mf(b, 1, 1))
            a("s_cbranch_scc1 L_g_mm")
    stamp(a, 3)
    a("s_nop 4\ns_waitcnt lgkmcnt(0)")
    for q in range(2):
        if q == 0: a(f"s_cmp_lt_u32 s{CT}, 5\ns_cbranch_scc1 L_g_eq")
        else: a.label("L_g_eq"); a(f"s_mov_b32 s28, {f32hex(QSCALE)}")
        k = 0
        for m in range(2):
            for g in range(4):
                d = 16 + 4*k; k += 1
                for t in range(2):
                    r = ACC + (m*2+t)*16 + 4*g
                    if q:
                        for i in range(4): a(f"v_mul_f32 v{r+i}, s28, v{r+i}")
                    a(f"v_cvt_pk_bf16_f32 v{d+2*t}, v{r}, v{r+1}\nv_cvt_pk_bf16_f32 v{d+2*t+1}, v{r+2}, v{r+3}")
                if k & 1: a(f"s_add_u32 s23, s26, {WS_QKV + (m*8+2*g)*1024}")
                a(f"buffer_store_dwordx4 {v(d,4)}, v5, s[12:15], s23 offen offset:{0 if k & 1 else 2048} sc1")
        if q == 0: a("s_branch L_w1")

PRM = 152
VD = 233
def cm(d, x, z, t):
    return [f"v_pk_mul_f32 {v(t,2)}, {v(x,2)}, {v(z,2)} op_sel:[0,0] op_sel_hi:[1,0]",
            f"v_pk_fma_f32 {v(d,2)}, {v(x,2)}, {v(z,2)}, {v(t,2)} op_sel:[1,1,0] op_sel_hi:[0,1,1] neg_lo:[0,1,0]"]
def ilv(*ls):
    out = []
    for i in range(max(len(x) for x in ls)):
        for x in ls:
            if i < len(x): out.append(x[i])
    return out
GDT, GER, GTH, GT = 112, 113, 114, 116
def kg_dt(a):
    a(f"""v_lshlrev_b32 v{GDT}, 16, v{PRM+4}
    v_mul_f32 v{GDT}, {f32hex(LOG2E)}, v{GDT}
    v_exp_f32 v{GDT}, v{GDT}
    s_lshl_b32 s22, s{KH}, 4
    v_cvt_pk_bf16_f32 v{GDT}, v{GDT}, v{GDT}
    v_and_b32 v{GDT}, 0xffff0000, v{GDT}""")
def kg_setup(anchors, X0):
    o = f"""v_lshlrev_b32 v{PRM}, s22, v{PRM}
    v_lshlrev_b32 v{PRM+1}, s22, v{PRM+1}
    v_and_b32 v{GER}, 0xffff0000, v{PRM}
    v_mul_f32 v{GER}, {f32hex(LOG2E)}, v{GER}
    v_exp_f32 v{GER}, v{GER}
    v_and_b32 v{GTH}, 0xffff0000, v{PRM+1}
    v_lshlrev_b32 v{PRM+2}, s22, v{PRM+2}
    v_cvt_pk_bf16_f32 v{GER}, v{GER}, v{GER}
    v_lshlrev_b32 v{PRM+3}, s22, v{PRM+3}
    v_and_b32 v{GER}, 0xffff0000, v{GER}
    v_mul_f32 v{GER}, v{GER}, v{GDT}
    v_mul_f32 v{GTH}, v{GTH}, v{GDT}
    v_mul_f32 v{GER}, {f32hex(-LOG2E)}, v{GER}
    v_mul_f32 v{GTH}, 0.15915494, v{GTH}
    v_and_b32 v{X0}, 0xffff0000, v{PRM+2}
    v_and_b32 v{X0+1}, 0xffff0000, v{PRM+3}
    v_mul_f32 v{X0}, v{X0}, v{GDT}
    v_mul_f32 v{X0+1}, v{X0+1}, v{GDT}
    v_add_f32 v{X0}, v{X0}, v{X0}
    v_add_f32 v{X0+1}, v{X0+1}, v{X0+1}""".split("\n")
    for (z, p) in anchors:
        o += f"""v_mul_f32 v{GT}, {f32hex(p)}, v{GER}
        v_mul_f32 v{GT+1}, {f32hex(p)}, v{GTH}
        v_exp_f32 v{GT}, v{GT}
        v_fract_f32 v{GT+1}, v{GT+1}
        v_cos_f32 v{z}, v{GT+1}
        v_sin_f32 v{z+1}, v{GT+1}
        v_mul_f32 v{z}, v{z}, v{GT}
        v_mul_f32 v{z+1}, v{z+1}, v{GT}""".split("\n")
    return o

def krow():
    def row(h, reg): return 8*(reg >> 2) + 4*h + (reg & 3)
    rowp = {}
    for p in range(4): rowp[row(0, p)] = p; rowp[row(1, p)] = p + 4
    for i, (p0, p1) in enumerate(((256, 260), (258, 262), (260, 264), (512, 768), (516, 772), (520, 776), (1024, 1280), (1032, 1288), (1536, 1792), (1544, 1800))):
        rowp[row(0, 4+i)] = p0; rowp[row(1, 4+i)] = p1
    return rowp
XORD = [1, 2, 3, 4, 5, 6, 7, 258, 260, 262, 516, 772, 1544, 1800, 0, 256, 264, 512, 520, 768, 776, 1024, 1032, 1280, 1288, 1536, 1792]
PKA = 160
KACC = 192
GWA, GRA, GFX = 16, 32, 112
def kgen(a, mid):
    Z1, Z8, ZW, ZB, YA = 124, 126, 128, 130, 132
    XF, DT_, SEL, PX, PY = 16, 72, 104, 112, 160
    rowp = krow()
    ps = [0, 8] + XORD[:14] + XORD[15:]
    xr = {p: XF + 2*i for i, p in enumerate(ps)}
    a(f"""s_lshl_b32 s28, s{WV}, 13
    s_add_u32 s28, s28, {KSC}
    v_bfe_u32 v3, v2, 4, 1
    v_lshlrev_b32 v3, 4, v3
    v_mov_b32 v4, 0x3f80
    v_lshlrev_b32 v3, v3, v4
    v_and_b32 v4, 15, v2
    v_lshrrev_b32 v5, 5, v2
    v_lshlrev_b32 v5, 2, v5
    v_sub_u32 v4, v4, v5""")
    for sidx in range(2):
        for u in range(4): a(f"v_cmp_eq_u32 vcc, {8*sidx+u}, v4\ns_nop 1\nv_cndmask_b32 v{SEL+4*sidx+u}, 0, v3, vcc")
    a(f"s_cmp_eq_u32 s{KH}, 1\ns_cbranch_scc1 L_kg_w\ns_waitcnt vmcnt(0)")
    a.label("L_kg_w")
    a(f"s_waitcnt vmcnt({8*NH})")
    stamp(a, 20)
    kg_dt(a)
    a(J(kg_setup(((Z8, 8.0), (ZB, 128.0), (Z1, 1.0), (ZW, 256.0)), xr[0])))
    for j in range(16):
        ya = cm(YA, Z8 if j == 2 else YA, Z8, GT+4) if j >= 2 else []
        yb = cm(ZB, ZB, Z8, GT+6) if j else []
        a(J(ilv(ya, yb)))
        lo = ("1.0", "0") if j == 0 else ((f"v{Z8}", f"v{Z8+1}") if j == 1 else (f"v{YA}", f"v{YA+1}"))
        a(f"v_cvt_pk_bf16_f32 v{PY+j}, {lo[0]}, v{ZB}\nv_cvt_pk_bf16_f32 v{PY+16+j}, {lo[1]}, v{ZB+1}")
    def swaps(R): return [f"v_permlane32_swap_b32 v{R+8*sx+u}, v{R+8*sx+4+u}" for sx in range(2) for u in range(4)]
    def tmm(R, b, D): return [m32(D, R+4*b, SEL), m32(D, R+8+4*b, SEL+4, D)]
    def tcv(R, b, D): return [f"v_cvt_pk_bf16_f32 v{R+8*(u>>2)+4*b+(u&3)}, v{D+2*u}, v{D+2*u+1}" for u in range(8)]
    def step(p, t):
        if p < 8: return cm(xr[p], xr[p-1], Z1, t)
        if p == 8: return cm(xr[8], xr[0], Z8, t)
        return cm(xr[p], xr[p-256], ZW, t)
    s1 = sum((step(p, GT) for p in (1, 2, 3, 4, 5, 6, 7, 258, 260, 262, 516, 772, 1544, 1800)), [])
    s2 = sum((step(p, GT+2) for p in (8, 256, 264, 512, 520, 768, 776, 1024, 1032, 1280, 1288, 1536, 1792)), [])
    a(J(ilv(s1, s2)))
    stamp(a, 21)
    def px(part):
        o = []
        for r in range(16):
            lo = xr[rowp[r]] + part
            hi = f"{'-' if part else ''}v{xr[rowp[r+16]] + part}" if r + 16 in rowp else "0"
            o.append(f"v_cvt_pk_bf16_f32 v{PX+16*part+r}, {'-' if part else ''}v{lo}, {hi}")
        return o
    D0, D1 = DT_, DT_ + 16
    def mix(mm, va):
        n = (len(va) + len(mm) - 1) // len(mm)
        for i, m in enumerate(mm):
            a(m); a(J(va[i*n:(i+1)*n]))
    a(J(swaps(PY)))
    E0_, E1_ = XF, XF + 16
    mix(tmm(PY, 0, D0) + tmm(PY, 1, D1), swaps(PY+16) + px(0) + px(1))
    mix(tmm(PY+16, 0, E0_) + tmm(PY+16, 1, E1_), tcv(PY, 0, D0) + tcv(PY, 1, D1) + swaps(PX))
    mix(tmm(PX, 0, D0) + tmm(PX, 1, D1), swaps(PX+16) + tcv(PY+16, 0, E0_) + tcv(PY+16, 1, E1_))
    mix(tmm(PX+16, 0, E0_) + tmm(PX+16, 1, E1_), tcv(PX, 0, D0) + ["s_nop 3"] + tcv(PX, 1, D1))
    a("s_nop 1")
    mix([m32(KACC, PX+4*q, PY+4*q, KACC if q else None) for q in (0, 2, 1, 3)], tcv(PX+16, 0, E0_) + ["s_nop 3"] + tcv(PX+16, 1, E1_))
    a("s_nop 1")
    for q in (0, 2, 1, 3): a(m32(KACC, PX+16+4*q, PY+16+4*q, KACC))
    stamp(a, 22)

KP = 208
def kpack(a, kdst):
    Jv, H, AD = 3, 4, 12
    R = KACC; P0 = KP
    a(f"""v_and_b32 v{Jv}, 31, v2
    v_lshrrev_b32 v{H}, 5, v2
    v_lshlrev_b32 v{AD}, 4, v{Jv}
    v_sub_u32 v{AD}, s{kdst}, v{AD}
    v_lshlrev_b32 v13, 3, v{H}
    v_sub_u32 v180, v{AD}, v13
    v_lshlrev_b32 v13, 9, v{H}
    v_sub_u32 v181, v{AD}, v13
    v_and_b32 v{H}, 1, v{Jv}
    v_cmp_eq_u32 vcc, 0, v{H}
    v_lshlrev_b32 v{Jv}, 2, v{Jv}
    v_add_u32 v182, s{kdst}, v{Jv}
    v_lshlrev_b32 v15, 16, v{VD}
    s_mov_b64 exec, 1
    v_add_f32 v{R}, v{R}, v15
    s_mov_b64 exec, -1""")
    cv = lambda d, lo, hi: a(f"v_cvt_pk_bf16_f32 v{d}, v{lo}, v{hi}")
    cv(P0, R+3, R+2); cv(P0+1, R+1, R+0)
    cv(P0+2, R+6, R+5); cv(P0+3, R+4, R+4)
    cv(P0+4, R+9, R+9); cv(P0+5, R+8, R+8); cv(P0+6, R+8, R+7); cv(P0+7, R+7, R+7)
    for sidx in range(2):
        ra, rb = R+10+2*sidx, R+11+2*sidx
        d = P0 + 8 + 4*sidx
        a(f"v_cndmask_b32 v13, v{rb}, v{ra}, vcc")
        cv(d, rb, rb); cv(d+1, rb, 13); cv(d+2, ra, ra); cv(d+3, ra, ra)
def kwrite(a, vzero):
    P0 = KP
    a(f"""ds_write_b64 v180, {v(P0,2)} offset:{4080+8}
    ds_write_b64 v180, {v(P0+2,2)} offset:{4080-512+8}
    ds_write_b128 v181, {v(P0+4,4)} offset:{4080-1024}
    ds_write_b128 v181, {v(P0+8,4)} offset:{4080-2048}
    ds_write_b128 v181, {v(P0+12,4)} offset:{4080-3072}
    ds_write_b32 v182, v{vzero} offset:4096""")

CAA, CBA, CACC = 10, 11, 148
def conv_setup(a, cbase):
    a(f"""v_and_b32 v3, 3, v2
    v_mul_u32_u24 v{CAA}, {UST}, v3
    v_bfe_u32 v3, v2, 2, 2
    v_lshl_add_u32 v{CAA}, v3, 7, v{CAA}
    v_lshrrev_b32 v4, 4, v2
    v_lshl_add_u32 v{CAA}, v4, 4, v{CAA}
    v_add_u32 v{CAA}, s{cbase}, v{CAA}
    v_and_b32 v3, 15, v2
    v_lshlrev_b32 v3, 3, v3
    v_lshlrev_b32 v{CBA}, 4, v4
    v_sub_u32 v{CBA}, v{CBA}, v3
    v_add_u32 v{CBA}, {KOFF+120}, v{CBA}
    v_add_u32 v{CBA}, s{cbase}, v{CBA}""")
def conv(a, ydst, fill):
    FA = [16, 80]; FB = [48, 112]; ACC = CACC
    def loads(b, extra):
        out = []
        for k in range(8):
            out += [f"ds_read_b64 {v(FB[b]+4*k,2)}, v{CBA} offset:{512*(7-k)+extra}", f"ds_read_b64 {v(FB[b]+4*k+2,2)}, v{CBA} offset:{512*(7-k)+8+extra}",
                    f"ds_read_b128 {v(FA[b]+4*k,4)}, v{CAA} offset:{512*k+extra}"]
        return out
    pairs = sorted([(i, j) for i in range(8) for j in range(8) if i + j < 8], key=lambda p: (max(p), p))
    def mm(b, i, j, first=False): return m16(ACC+4*(i+j), FA[b]+4*i, FB[b]+4*j, None if first else ACC+4*(i+j))
    a("s_waitcnt lgkmcnt(0)")
    l0 = loads(0, 0); l1 = loads(1, 64)
    seq = l0 + l1
    a(J(seq[:12])); pos = 12
    seen = set(); lvl = -1
    for n, (i, j) in enumerate(pairs):
        if max(i, j) > lvl:
            lvl = max(i, j)
            a(f"s_waitcnt lgkmcnt({min(14, pos - 3*(lvl+1))})")
        a(mm(0, i, j, i+j not in seen)); seen.add(i+j)
        if pos < 48: a(seq[pos]); pos += 1
    assert pos == 48
    a("s_mov_b32 s53, 0\n.p2align 3")
    lp = a.newlabel("L_cv")
    a.label(lp)
    for b in (1, 0):
        ld = loads(b ^ 1, 128 if b == 1 else 192)
        a("s_waitcnt lgkmcnt(0)")
        for n, (i, j) in enumerate(pairs):
            a(mm(b, i, j))
            if n < 24: a(ld[n])
            if b == 0 and n == 33: a(f"v_add_u32 v{CAA}, 128, v{CAA}\nv_add_u32 v{CBA}, 128, v{CBA}")
            elif b == 0 and n == 34: a("s_add_u32 s53, s53, 1\ns_cmp_lt_u32 s53, 3")
    a(f"s_cbranch_scc1 {lp}")
    a("v_lshlrev_b32 v12, 3, v2\ns_waitcnt lgkmcnt(0)")
    out = []
    for beta in (7, 6, 5, 4, 3, 2, 1, 0):
        for i in range(beta + 1):
            a(mm(1, i, beta - i))
            last = len(a.lines)
            for _ in range(2):
                if out and out[0][0] <= len(a.lines): a(out.pop(0)[1])
                elif fill: a(fill.pop(0))
        ac = ACC + 4*beta
        out += [(last + 8, t) for t in (f"v_cvt_pk_bf16_f32 v{ac}, v{ac}, v{ac+1}", f"v_cvt_pk_bf16_f32 v{ac+1}, v{ac+2}, v{ac+3}",
                f"buffer_store_dwordx2 {v(ac,2)}, v12, s[12:15], s{ydst} offen offset:{512*beta} sc1")]
    a(J(fill)); fill.clear()
    for d, t in out:
        if d > len(a.lines): a(f"s_nop {d - len(a.lines)}")
        a(t)

def helper(a):
    CB = 26
    UE = 132
    a(f"""s_mov_b32 s33, 0
    s_cmp_ge_u32 s{IDX}, 20
    s_cbranch_scc1 L_h_tr
    s_lshr_b32 s{FCOFF}, s{CHN}, 2
    s_lshl_b32 s{FCOFF}, s{FCOFF}, 7
    s_lshl_b32 s22, s{HW}, 2
    s_add_u32 s{FCOFF}, s{FCOFF}, s22
    s_add_u32 s{FCOFF}, s{FCOFF}, {WS_FC}
    s_lshr_b32 s22, s{CHN}, 6
    s_lshl_b32 s22, s22, {7 if PACKA else 12}
    s_add_u32 s22, s22, {WS_FA}
    v_and_b32 v4, 31, v2
    v_lshl_add_u32 v8, v4, {2 if PACKA else 7}, s22
    s_mul_i32 s{CB}, s{HW}, {CHA}
    s_add_u32 s{CB}, s{CB}, {CVB}
    s_mul_i32 s27, s{CHN}, {RS}
    s_add_u32 s27, s27, {WS_UT}
    s_add_u32 s29, s{CB}, {KOFF}
    s_mov_b32 s33, {POLLC}""")
    skip(a)
    a("s_setprio 1")
    a.label("L_kgen")
    kgen(a, None)
    a(f"s_cmp_eq_u32 s{KH}, 0\ns_cbranch_scc1 L_g_kb")
    stamp(a, 3)
    a("s_setprio 0\ns_waitcnt vmcnt(0)\ns_branch L_h_ld1")
    a.label("L_h_tr")
    a(f"s_cmp_ge_u32 s26, 320\ns_cbranch_scc1 L_h_ld0")
    a.label("L_utile")
    utile(a)
    a("s_branch L_tr_back")
    a.label("L_h_ld0")
    a(f"v_mov_b32 v8, {WS_FA}")
    skip(a); skip(a); skip(a)
    a.label("L_h_ld1")
    a("s_mov_b32 s30, 0")
    def bar():
        a("s_waitcnt vmcnt(16) lgkmcnt(0)\ns_barrier")
        if PROF and not LITE: a(f"s_memtime s[92:93]\ns_add_u32 m0, s30, 32\ns_waitcnt lgkmcnt(0)\nv_writelane_b32 v{PV}, s92, m0")
    def lines(*fs):
        t = Asm()
        for f in fs: f(t)
        return [l.strip() for l in t.lines]
    a.label("L_h_ld")
    bar()
    issue(a, lines(attn_ids, o_maps, kv_units))
    a(f"""s_add_u32 s30, s30, 1
    s_cmp_lg_u32 s30, s33
    s_cbranch_scc1 L_h_l1
    s_cmp_lt_u32 s{IDX}, 20
    s_cbranch_scc1 L_h_pl""")
    get_nonce(a)
    a("s_waitcnt vmcnt(8)")
    set_flag(a, 29, 10)
    stamp(a, 3)
    a("s_branch L_h_l1")
    a.label("L_h_pl")
    a("buffer_load_dword v9, v8, s[12:15], 0 offen sc1")
    a.label("L_h_l1")
    a("s_cmp_lt_u32 s30, 5\ns_cbranch_scc1 L_h_ld")
    bar()
    issue(a, [f's_load_dword s{NONCE}, s[{P_DBG}:{P_DBG+1}], 0'] + lines(tail_setup))
    a("s_add_u32 s30, s30, 1")
    bar()
    issue(a, lines(attn_reset2, lambda t: conv_setup(t, CB)))
    a("s_waitcnt vmcnt(16)\ns_barrier")
    a(f"s_cmp_lg_u32 s{NONCE}, 0\ns_cbranch_scc1 L_h_hn")
    get_nonce(a)
    a.label("L_h_hn")
    arr_init(a)
    a(f"""s_cmp_lt_u32 s{IDX}, 20
    s_cbranch_scc1 L_h_k7
    s_waitcnt vmcnt(0) lgkmcnt(0)
    s_barrier""")
    y_setup(a)
    a("s_branch L_attn")
    a.label("L_h_ids")
    a("s_mov_b32 s33, 2\ns_branch L_setup")
    a.label("L_h_k7")
    def uloads():
        for i in range(4): a(f"buffer_load_dwordx4 {v(132+4*i,4)}, v{DMV}, s[12:15], s27 offen offset:{1024*i} sc1")
    stamp(a, 39)
    a(f"s_sub_u32 s28, s28, 32768\nv_add_u32 v6, s28, v{DMV}\nv_cmp_ne_u32 vcc, s{NONCE}, v9\ns_mov_b32 s31, 0")
    for i in range(4): a(f"ds_read_b128 {v(16+4*i,4)}, v6 offset:{1024*i}")
    a("s_cbranch_vccnz L_h_nu")
    uloads()
    a("s_mov_b32 s31, 1\ns_branch L_h_n2")
    a.label("L_h_nu")
    a("buffer_load_dword v9, v8, s[12:15], 0 offen sc1")
    a.label("L_h_n2")
    a("s_waitcnt lgkmcnt(0)")
    for i in range(14): a(f"v_add_f32 v{KACC+i}, v{KACC+i}, v{16+i}")
    kpack(a, 29)
    a(f"""v_lshlrev_b32 v5, 3, v2
    v_min_u32 v5, 376, v5
    v_add_u32 v5, s{CB}, v5
    v_mov_b32 v6, 0
    v_mov_b32 v7, 0""")
    stamp(a, 46)
    a("s_cmp_eq_u32 s31, 1\ns_cbranch_scc1 L_h_w4\ns_waitcnt vmcnt(1)")
    a.label("L_h_w4")
    a("s_waitcnt vmcnt(4)\ns_barrier")
    stamp(a, 4)
    a("s_cmp_eq_u32 s31, 1\ns_cbranch_scc1 L_h_hu")
    a("s_waitcnt vmcnt(0)")
    poll(a, [8], 1, 9, preloaded=True)
    uloads()
    a.label("L_h_hu")
    if PROF: a(f"v_writelane_b32 v{PV}, s31, 30")
    kwrite(a, 6)
    for r in range(4): a(f"ds_write_b64 v5, v[6:7] offset:{r*UST}")
    a(f"""s_mul_i32 s27, s{CHN}, {RS}
    s_add_u32 s27, s27, {WS_YT}
    v_add_u32 v4, s{CB}, v{DMV}
    s_waitcnt vmcnt(0)""")
    stamp(a, 5)
    for i in range(4):
        e = 132 + 4*i
        C2, C1, C0, PP = 16 + 14*i, 20 + 14*i, 24 + 14*i, 28 + 14*i
        a(f"ds_write_b128 v4, {v(e,4)} offset:{3*UST + 384 + 1024*i}")
        if i == 0: a(f"v_mov_b32 v{PP}, 0\nv_mov_b32 v{C1}, 0\ns_nop 0")
        else: a(f"v_readlane_b32 s22, v{e-2}, 63\nv_readlane_b32 s23, v{e-1}, 63\ns_nop 0\nv_mov_b32 v{PP}, s22\nv_mov_b32 v{C1}, s23\ns_nop 0")
        a(f"v_mov_b32_dpp v{PP}, v{e+2} wave_shr:1 row_mask:0xf bank_mask:0xf")
        a(f"v_mov_b32_dpp v{C1}, v{e+3} wave_shr:1 row_mask:0xf bank_mask:0xf")
        for j in range(3): a(f"v_mov_b32 v{C1+1+j}, v{e+j}")
        a(f"ds_write_b128 v4, {v(C1,4)} offset:{UST + 384 + 1024*i}")
        a(f"v_alignbit_b32 v{C2}, v{e}, v{C1}, 16")
        for j in range(1, 4): a(f"v_alignbit_b32 v{C2+j}, v{e+j}, v{e+j-1}, 16")
        a(f"ds_write_b128 v4, {v(C2,4)} offset:{2*UST + 384 + 1024*i}")
        a(f"v_alignbit_b32 v{C0}, v{C1}, v{PP}, 16")
        for j in range(3): a(f"v_mov_b32 v{C0+1+j}, v{C2+j}")
        a(f"ds_write_b128 v4, {v(C0,4)} offset:{384 + 1024*i}")
    stamp(a, 6)
    t = Asm(); zero_s(t); y_setup(t)
    fill = [l.strip() for l in t.lines]
    conv(a, 27, fill)
    assert not fill
    stamp(a, 7)
    a("s_branch L_attn2")

def window1(a):
    get_nonce(a)
    a(f"""v_mov_b32 v3, {ARRW}
    v_mov_b32 v4, 1
    s_lshl_b32 s22, s2, 7
    s_add_u32 s26, s22, {WS_FB}""")
    zero_state(a)
    stamp(a, 4)
    a(f"""s_waitcnt vmcnt(0)
    s_mov_b64 exec, 1
    ds_add_rtn_u32 v4, v3, v4
    s_mov_b64 exec, -1
    s_waitcnt lgkmcnt(0)
    v_readfirstlane_b32 s22, v4
    s_mov_b32 s33, 0
    s_cmp_lg_u32 s22, 3
    s_cbranch_scc1 L_w1_r""")
    diag_wait(a, '--dfl')
    stamp(a, 5)
    stamp(a, 53, True)
    set_flag(a, 26, 6)
    a(f"""v_mov_b32 v16, 0x3f803f80
    v_mov_b32 v17, 0x00003f80
    v_mov_b32 v18, 0x3f803f80
    v_mov_b32 v19, 0x00003f80
    ds_write_b128 v{DMV}, v[16:19] offset:{CONSTP}
    ds_write_b32 v6, v6 offset:{FLAGW}
    s_mov_b32 s33, 1
    s_branch L_setup""")
    a.label("L_w1_r")
    a("s_setprio 0")
    a.label("L_setup")
    attn_reset(a)
    tail_setup(a)
    y_setup(a)
    a("""s_cmp_eq_u32 s33, 2
    s_cbranch_scc1 L_attn
    s_cmp_eq_u32 s33, 0
    s_cbranch_scc1 L_at_b2""")
    main_pre(a)
    a("s_mov_b32 s50, 0")
    a.label("L_w1_p")
    a(f"""buffer_load_dword v20, v{PL1}, s[12:15], 0 offen sc1
    buffer_load_dword v24, v{PL2}, s[12:15], 0 offen sc1
    s_add_u32 s50, s50, 1
    s_waitcnt vmcnt(0)
    v_cmp_ne_u32 vcc, s{NONCE}, v20
    v_cmp_ne_u32 s[26:27], s{NONCE}, v24
    s_cmp_gt_u32 s50, {SPIN}
    s_cbranch_scc1 L_w1_q
    s_or_b32 s28, vcc_lo, vcc_hi
    s_and_b32 s22, s28, 0x01010101
    s_or_b32 s22, s22, s27
    s_cbranch_scc1 L_w1_p""")
    a.label("L_w1_q")
    stamp(a, 6)
    stamp(a, 54, True)
    a(f"s_add_u32 s23, s{HEAD5}, 160\ns_lshl_b32 s23, s23, 10")
    def qu(u): a(f"""s_mov_b32 m0, {QLDS + 1024*u}
        s_add_u32 s24, s{OOFF}, {(u >> 1)*1024 + (u & 1)*TTS_}
        buffer_load_dwordx4 v{DMV}, s[12:15], s24 offen sc1 lds""")
    def ku(u):
        p = u >> 1
        off = ((p + (155 if p >= 5 else 0)) << 10) + ((u & 1)*8)*TTS_
        a(f"""s_mov_b32 m0, {ARING + p*PST + (u & 1)*1024}
        s_add_u32 s24, s23, {off}
        buffer_load_dwordx4 v{DMV}, s[12:15], s24 offen sc1 lds""")
    for u in range(10): qu(u)
    for u in range(20): ku(u)
    stamp(a, 7)
    poll(a, [PL1, PL2], 1, 20, preloaded=True)
    a("s_waitcnt vmcnt(0)\ns_branch L_at_b2")

Q0 = [16, 22]; Q1 = [20, 26]
KF = [28, 34]; VF = [40, 48]; P = [56, 64]; S = [72, 88]; O = [104, 120]
def set_m(a, q, M):
    a(f"""v_sub_f32 v{M}, 0, v{M}
    v_and_b32 v{M+1}, 0xffff0000, v{M}
    v_sub_f32 v{M+2}, v{M}, v{M+1}
    v_and_b32 v{M+3}, 0xffff0000, v{M+2}
    v_sub_f32 v{M+2}, v{M+2}, v{M+3}
    v_lshrrev_b32 v{M+1}, 16, v{M+1}
    v_or_b32 v{M+1}, v{M+1}, v{M+3}
    v_lshrrev_b32 v{M+2}, 16, v{M+2}
    v_cndmask_b32 v{Q1[q]}, v{M+1}, v{Q1[q]}, vcc
    v_cndmask_b32 v{Q1[q]+1}, v{M+2}, v{Q1[q]+1}, vcc""")
def tilemax(a, M, s, first):
    if first: a(f"v_max3_f32 v{M}, v{s}, v{s+1}, v{s+2}")
    else: a(f"v_max3_f32 v{M}, v{M}, v{s}, v{s+1}\nv_max_f32 v{M}, v{M}, v{s+2}")
    for i in range(3, 15, 2): a(f"v_max3_f32 v{M}, v{M}, v{s+i}, v{s+i+1}")
    a(f"v_max_f32 v{M}, v{M}, v{s+15}")
def halfmax(a, M):
    a(f"v_mov_b32 v{M+1}, v{M}\ns_nop 1\nv_permlane32_swap_b32 v{M}, v{M+1}\nv_max_f32 v{M}, v{M}, v{M+1}")

def kv_units(a):
    a(f"""s_lshr_b32 s22, s{WV}, 1
    s_and_b32 s23, s{WV}, 1
    s_mul_i32 s{KL[0]}, s22, {PST}
    s_lshl_b32 s24, s23, 10
    s_add_u32 s{KL[0]}, s{KL[0]}, s24
    s_add_u32 s{KL[0]}, s{KL[0]}, {ARING}
    s_add_u32 s{KL[1]}, s{KL[0]}, {4*PST}
    s_add_u32 s{KL[2]}, s{KL[0]}, {8*PST}
    s_add_u32 s24, s22, s{HEAD5}
    s_lshl_b32 s24, s24, 10
    s_mul_i32 s23, s23, {8*TTS_}
    s_add_u32 s24, s24, s23
    s_add_u32 s{KS[0]}, s24, {160*1024 + TTS_}
    s_add_u32 s{KS[2]}, s24, {(160+8+155)*1024 + TTS_}
    s_cmp_eq_u32 s22, 0
    s_cselect_b32 s23, 0, {155*1024}
    s_add_u32 s{KS[1]}, s{KS[0]}, s23
    s_add_u32 s{KS[1]}, s{KS[1]}, 4096""")
def attn_reset(a):
    kv_units(a); attn_reset2(a)
def attn_reset2(a):
    a(f"""v_and_b32 v3, 31, v2
    v_lshlrev_b32 v3, 3, v3
    v_lshrrev_b32 v5, 5, v2
    s_lshl_b32 s{KHOFF}, s{KH}, 10
    s_lshl_b32 s22, s{HW}, 1
    s_add_u32 s22, s22, s{KH}
    s_lshl_b32 s22, s22, 8
    v_add_u32 v{QA4}, s22, v3
    v_lshl_add_u32 v{QA0}, v5, 12, v{QA4}
    v_mul_u32_u24 v{KA}, {2*PST}, v5
    s_add_u32 s22, s{KHOFF if M0 else MODE+53-MODE}, {ARING}""".replace(f"s{MODE+53-MODE}", "0"))
    a(f"""v_add3_u32 v{KA}, v{KA}, v3, s22
    v_xor_b32 v{MS4}, 1, v5
    s_add_u32 s22, s22, {4*PST - CONSTP}
    v_mad_u32_u24 v{K4}, v{MS4}, s22, v3
    v_add_u32 v{K4}, {CONSTP}, v{K4}
    v_bfe_u32 v3, v2, 2, 2
    v_lshl_add_u32 v5, v5, 2, v3
    v_and_b32 v4, 3, v2
    v_bfe_u32 v3, v2, 4, 1
    v_lshl_add_u32 v4, v3, 2, v4
    v_cmp_gt_u32 vcc, 5, v4
    v_mul_u32_u24 v4, {PST}, v4
    s_add_u32 s22, s{KHOFF}, {ARING + 5*PST}
    v_add_u32 v4, s22, v4
    v_cndmask_b32 v{VA}, {CONSTP}, v4, vcc
    v_cndmask_b32 v{MSK}, 0, 1, vcc
    v_lshl_add_u32 v{VA}, v5, 3, v{VA}
    s_sub_u32 s24, 106, s{WV}
    s_mul_i32 s{WOS}, s24, {6*1280}
    s_lshr_b32 s22, s{IDX}, 2
    s_mul_i32 s22, s22, 160
    s_add_u32 s{WOS}, s{WOS}, s22
    s_mul_i32 s{WOL}, s24, 960
    s_add_u32 s{WOL}, s{WOL}, {WOB}""")
YT, OSA, OST, FIW, FS0 = range(235, 240)
YT, FIW, FS0 = 253, 251, 250
YV, FCA = 238, 239
YS, TYS = 21, 20
WAO, WAT = 248, 249
TOS, TTS, TFS = 96, 97, 98
def o_maps(a):
    a(f"""v_and_b32 v3, 15, v2
    v_bfe_u32 v4, v2, 4, 1
    v_mul_u32_u24 v4, {OG}, v4
    v_lshl_add_u32 v{OST}, v3, 3, v4
    v_lshl_add_u32 v4, v3, 4, v4
    v_lshrrev_b32 v3, 5, v2
    v_lshl_add_u32 v{OSA}, v3, 8, v4""")
def tail_setup(a):
    a(f"""v_mul_u32_u24 v6, 205, v2
    v_lshrrev_b32 v6, 11, v6
    v_mul_u32_u24 v7, 10, v6
    v_sub_u32 v7, v2, v7
    v_lshlrev_b32 v7, 4, v7
    v_mul_u32_u24 v6, 1280, v6
    v_add_u32 v{WOV}, v6, v7
    v_add_u32 v{FS0}, v6, v{WOV}
    v_bfe_u32 v3, v2, 2, 2
    v_lshrrev_b32 v4, 4, v2
    v_and_b32 v5, 3, v2
    v_lshlrev_b32 v5, 3, v5
    v_lshrrev_b32 v6, 2, v2
    v_lshl_add_u32 v6, v6, 7, v5
    s_lshl_b32 s22, s{HW}, 5
    v_add_u32 v{YT}, s22, v6
    v_lshrrev_b32 v6, 5, v2
    v_mul_u32_u24 v6, 12, v6
    v_lshl_add_u32 v6, v4, 2, v6
    v_add_u32 v6, v6, v3
    v_mad_u32_u24 v7, v4, 20, v3
    s_mul_i32 s22, s{KH}, {320*160}
    s_add_u32 s22, s22, {WOB}
    v_add_u32 v5, s22, v5
    s_movk_i32 s23, 160
    v_mad_u32_u24 v{WAO}, v6, s23, v5
    v_mad_u32_u24 v{WAT}, v7, s23, v5
    v_and_b32 v3, 15, v2
    s_mul_i32 s22, s{HW}, 5120
    v_lshl_add_u32 v4, v4, 3, s22
    v_mad_u32_u24 v{FIW}, v3, s23, v4
    s_lshl_b32 s24, s{XCD}, 2
    s_and_b32 s22, s{IDX}, 3
    s_add_u32 s24, s24, s22
    s_lshl_b32 s24, s24, 2
    s_add_u32 s24, s24, s{HW}
    s_mul_i32 s{TOS}, s24, {OG}
    s_add_u32 s{TOS}, s{TOS}, {WS_O}
    s_lshl_b32 s23, s{KH}, 11
    s_add_u32 s{TTS}, s{TOS}, s23
    s_add_u32 s{TTS}, s{TTS}, 16384
    s_lshl_b32 s23, s{KH}, 13
    s_add_u32 s{TOS}, s{TOS}, s23
    s_lshr_b32 s22, s{IDX}, 2
    s_add_u32 s22, s22, 8
    s_lshl_b32 s23, s{IDX}, 2
    s_add_u32 s23, s23, s{HW}
    s_cmp_eq_u32 s{KH}, 0
    s_cselect_b32 s24, s23, s24
    s_cselect_b32 s22, s{XCD}, s22
    s_mul_i32 s{TFS}, s24, {16*2560}
    s_mul_i32 s22, s22, 160
    s_add_u32 s{TFS}, s{TFS}, s22""")
def y_setup(a):
    a(f"""v_lshrrev_b32 v4, 3, v2
    v_and_b32 v3, 7, v2
    v_lshlrev_b32 v3, 4, v3
    v_mul_u32_u24 v4, {RS}, v4
    v_add_u32 v{YV}, v4, v3
    s_mul_i32 s22, s{XCD}, 10
    s_add_u32 s22, s22, s{WV}
    s_mul_i32 s22, s22, {8*RS}
    s_lshl_b32 s23, s{IDX}, 7
    s_add_u32 s22, s22, s23
    s_add_u32 s{YS}, s22, {WS_YT}
    s_mul_i32 s22, s{XCD}, {20*128}
    s_add_u32 s22, s22, {WS_FC}
    v_min_u32 v3, 19, v2
    v_lshl_add_u32 v{FCA}, v3, 7, s22""")
WFR = [28, 48, 68, 88, 144, 164, 184, 204, 108]
OFR = [128, 132, 224, 228, 232, 236, 240, 244, 136, 140]
def wo_reads(a, i, slot):
    for m in range(5):
        for hf in range(2):
            if i < 8: a(f"ds_read_b64_tr_b16 {v(WFR[slot]+4*m+2*hf,2)}, v{WAO} offset:{(40*i+8*hf)*160+32*m}")
            else: a(f"ds_read_b64_tr_b16 {v(WFR[slot]+4*m+2*hf,2)}, v{WAT} offset:{(160*(i-8)+80*hf+16)*160+32*m}")
def zero_state(a):
    zero_s(a); zero_v(a)
def zero_s(a):
    srd(a, 8, P_WO, 640*1280)
    a(f"""s_mov_b32 s30, 0
    s_mov_b32 s31, 0
    s_mov_b32 s32, {2*SLOT}
    s_mov_b32 s34, {-2*SLOT & 0xffffffff}
    s_mov_b32 s35, {SLOT}""")
def zero_v(a):
    for i in range(0, 32, 2): a(f"v_mov_b64 {v(O[0]+i,2)}, 0")
    for i in range(0, 8, 2): a(f"v_mov_b64 {v(P[1]+i,2)}, 0\nv_mov_b64 {v(VF[1]+i,2)}, 0")

OPF = int(sys.argv[sys.argv.index('--opf')+1]) if '--opf' in sys.argv else 0
def o_prefetch(a, tag):
    a(f"""s_lshl_b32 s22, s{XCD}, 2
    s_and_b32 s23, s{IDX}, 3
    s_add_u32 s22, s22, s23
    s_lshl_b32 s22, s22, 3
    s_lshr_b32 s23, s{IDX}, 2
    s_add_u32 s22, s22, s23
    s_mul_i32 s22, s22, 10
    s_add_u32 s22, s22, s{WV}
    s_lshl_b32 s22, s22, 10
    s_add_u32 s22, s22, {WS_O}
    s_cmp_ge_u32 s{WV}, 2
    buffer_load_dwordx4 v[144:147], v{DMV}, s[12:15], s22 offen sc1
    s_cbranch_scc1 L_opf{tag}
    s_add_u32 s22, s22, 8192
    buffer_load_dwordx4 v[148:151], v{DMV}, s[12:15], s22 offen sc1""")
    a.label(f"L_opf{tag}")

def attention(a):
    def kr(t, b): return [f"ds_read_b64 {v(KF[b],2)}, v{KA} offset:{t*256}", f"ds_read_b64 {v(KF[b]+2,2)}, v{KA} offset:{t*256+PST}", f"ds_read_b64 {v(KF[b]+4,2)}, v{K4} offset:{t*256}"]
    def vr(t, b): return [f"ds_read_b64_tr_b16 {v(VF[b]+2*j,2)}, v{VA} offset:{t*256+j*64}" for j in range(4)]
    def shift(sreg):
        a(f"v_add_u32 v{KA}, s{sreg}, v{KA}\nv_mad_i32_i24 v{K4}, v{MS4}, s{sreg}, v{K4}")
    def qk(q, kb): a(m32(S[q], KF[kb], Q0[q])); a(m32x8(S[q], KF[kb]+4, Q1[q], S[q]))
    zero_s(a)
    a.label("L_attn2")
    a("s_waitcnt lgkmcnt(0)")
    zero_v(a)
    a.label("L_at_b2")
    stamp(a, 8)
    a(f"v_cmp_gt_u32 vcc, 32, v2\nv_xor_b32 v3, 256, v{QA0}\nv_xor_b32 v4, 256, v{QA4}\ns_waitcnt lgkmcnt(0)\ns_barrier")
    diag_wait(a, '--da0')
    stamp(a, 9)
    stamp(a, 50, True)
    a(J(kr(0, 0)))
    a(f"s_cmp_lg_u32 s{MODE}, 0\ns_cbranch_scc1 L_at_havem")
    for q in range(2):
        r0, r4 = (3, 4) if q == 0 else (QA0, QA4)
        a(f"""ds_read_b64 {v(Q0[q],2)}, v{r0} offset:{QLDS}
        ds_read_b64 {v(Q0[q]+2,2)}, v{r0} offset:{QLDS+2048}
        ds_read_b64 {v(Q1[q],2)}, v{r4} offset:{QLDS+8192}""")
    a("s_waitcnt lgkmcnt(0)")
    for q in range(2): a(f"v_cndmask_b32 v{Q1[q]}, 0, v{Q1[q]}, vcc\nv_cndmask_b32 v{Q1[q]+1}, 0, v{Q1[q]+1}, vcc")
    if not M0:
        qk(0, 0); qk(1, 0)
        a("s_nop 7\ns_nop 1")
        for q in range(2):
            tilemax(a, P[0], S[q], True); halfmax(a, P[0]); set_m(a, q, P[0])
    a.label("L_at_havem")
    if not M0:
        shift(KHOFF)
        a(J(kr(0, 0)))
    a(f"s_cmp_eq_u32 s{MODE}, 1\ns_cbranch_scc1 L_at_maxpass")
    a("s_waitcnt lgkmcnt(0)")
    qk(0, 0)
    for j in range(3):
        if j == 2: a(f"s_cmp_ge_u32 s{WV}, 4\ns_cbranch_scc1 L_at_p3")
        a(f"s_add_u32 m0, s{KL[j]}, {SLOT}\ns_nop 0\nbuffer_load_dwordx4 v{DMV}, s[12:15], s{KS[j]} offen sc1 lds")
    a.label("L_at_p3")
    a("s_setprio 3")
    stamp(a, 10)
    a(f".p2align {ALP}")
    for _ in range(ALN): a("s_nop 0")
    def kv(j):
        return f"""s_add_u32 m0, s{KL[j]}, s32
        s_add_u32 s{KS[j]}, s{KS[j]}, {TTS_}
        buffer_load_dwordx4 v{DMV}, s[12:15], s{KS[j]} offen sc1 lds"""
    wo = f"""s_mov_b32 m0, s{WOL}
        s_sub_u32 s{WOL}, s{WOL}, {8*960}
        buffer_load_dwordx4 v{WOV}, s[8:11], s{WOS} offen lds
        s_sub_u32 s{WOS}, s{WOS}, {8*6*1280}"""
    def chunk(kind):
        last = kind == 2
        for T in range(4):
            kb = T & 1
            for q in range(2):
                o = q ^ 1
                fin = last and T == 3
                ex = [f"v_exp_f32 v{S[q]+i}, v{S[q]+i}" for i in range(16)]
                cv = [f"v_cvt_pk_bf16_f32 v{P[q]+i}, v{S[q]+2*i}, v{S[q]+2*i+1}" for i in range(8)]
                kq = kb if q == 0 else kb ^ 1
                vq = kb ^ 1 if q == 0 else kb
                rd = (kr((T+1) & 3, kb ^ 1) + vr(T, kb)) if q == 0 else []
                if fin and q == 0: rd = vr(T, kb)
                st = (2*((T+1) & 3) + q)
                def pr(i):
                    k = 4*st + i
                    P_ = [0, 4, 6, 7] if fin else PRIO
                    if k in P_: a(f"s_setprio {3 - P_.index(k)}")
                if q == 0 and T == 3: a("s_waitcnt vmcnt(0)\ns_barrier")
                if q == 1: a("s_waitcnt lgkmcnt(0)")
                G = [ex[0:4] + cv[0:1], ex[4:6] + cv[1:2] + ex[6:8] + cv[2:3], ex[8:10] + cv[3:4] + ex[10:12] + cv[4:5], ex[12:14] + cv[5:6] + ex[14:16] + cv[6:8]]
                if not (fin and q == 1): a(m32(S[o], KF[kq], Q0[o]))
                pr(0)
                if (T, q) == (1, 1) and kind == 0:
                    a(f"""s_cmp_eq_u32 s31, {2*SLOT}
                    s_cselect_b32 s29, s34, s35""")
                if (T, q) == (1, 1) and kind == 1: a("s_mov_b32 s29, s35")
                a(J(rd[0:3] + G[0]))
                if not (fin and q == 1): a(m32x8(S[o], KF[kq]+4, Q1[o], S[o]))
                pr(1)
                if (T, q) == (3, 1) and kind == 0: a(kv(1))
                if (T, q) == (0, 1) and kind == 0: a(wo)
                if (T, q) == (0, 1) and last:
                    a(f"s_cmp_ge_u32 s{WV}, 3\ns_cbranch_scc1 L_at_w3"); a(wo); a.label("L_at_w3")
                if (T, q) == (2, 1) and not last: shift(29)
                a(J(rd[3:5] + G[1]))
                a(m32(O[o], VF[vq], P[o], O[o])); pr(2)
                a(J(rd[5:7] + G[2]))
                a(m32(O[o], VF[vq]+4, P[o]+4, O[o])); pr(3)
                if (T, q) == (3, 0) and kind == 0:
                    a(kv(0))
                    a(f"s_cmp_lg_u32 s{FCOFF}, 0\ns_cbranch_scc1 L_at_fc")
                    a.label("L_at_back")
                if (T, q) == (0, 0):
                    if kind == 1: a(f"buffer_load_dwordx4 v[136:139], v{FCA}, s[12:15], 0 offen sc1")
                    else: a(wo)
                if (T, q) == (3, 0) and kind == 1:
                    poll(a, [FCA], 4, 136, preloaded=True)
                    a(f"""s_lshl_b32 s23, s{WV}, 10
                    s_add_u32 m0, s23, {YSRC}
                    s_cmp_ge_u32 s{WV}, 2
                    buffer_load_dwordx4 v{YV}, s[12:15], s{YS} offen sc1 lds
                    s_cbranch_scc1 L_at_y1
                    s_add_u32 m0, m0, 8192
                    s_add_u32 s22, s{YS}, {64*RS}
                    buffer_load_dwordx4 v{YV}, s[12:15], s22 offen sc1 lds""")
                    a.label("L_at_y1")
                if (T, q) == (3, 1) and kind == 0:
                    a(f"s_cmp_eq_u32 s{KH}, 1\ns_cbranch_scc1 L_at_n2")
                    a(kv(2))
                    a.label("L_at_n2")
                    a("s_mov_b32 s32, s31\ns_add_u32 s31, s31, s29")
                a(J(G[3][:-2]))
                if q == 1 and T == 3 and not last: a(f"v_mad_i32_i24 v{VA}, v{MSK}, s29, v{VA}")
                if q == 1 and T == 3 and kind == 0: a("s_add_u32 s30, s30, 1\ns_cmp_lt_u32 s30, 6")
                a(J(G[3][-2:]))
    a.label("L_at_loop")
    chunk(0)
    a("s_cbranch_scc1 L_at_loop")
    chunk(1)
    chunk(2)
    a("s_nop 0")
    C = S[1]; A = O[1]
    a(m32(O[1], VF[1], P[1], O[1]))
    a(f"""s_setprio 0
    s_mul_i32 s22, s{WV}, 3072
    v_add_u32 v4, s22, v{DMV}
    s_xor_b32 s22, s{WV}, 4
    s_mul_i32 s22, s22, 3072
    v_add_u32 v5, s22, v{DMV}""")
    a(m32(O[1], VF[1]+4, P[1]+4, O[1]))
    stamp(a, 11)
    if OPF == 1: o_prefetch(a, "e")
    for i in range(3): a(f"ds_write_b128 v4, {v(O[0]+4*i,4)} offset:{EXC + i*1024}")
    a(f"""v_mov_b64 v[6:7], 1
    s_mov_b32 s24, {f32hex(2.0**110)}
    v_pk_add_f32 {v(C,2)}, {v(O[0],2)}, {v(O[0]+2,2)}""")
    for i in range(4, 12, 2): a(f"v_pk_add_f32 {v(C,2)}, {v(C,2)}, {v(O[0]+i,2)}")
    a("s_nop 1")
    for i in range(0, 12, 2): a(f"v_pk_add_f32 {v(C,2)}, {v(C,2)}, {v(O[1]+i,2)}")
    a(f"""v_add_f32 v{C}, v{C}, v{C+1}
    v_add_f32 v{C+1}, v{O[0]+12}, v{O[1]+12}
    v_mul_f32 v{C}, {f32hex(2.0**-17)}, v{C}
    s_lshl_b32 s22, s{HW}, 1
    v_add_f32 v{C}, abs(v{C}), v{C+1}
    s_add_u32 s22, s22, s{KH}
    v_cmp_ngt_f32 vcc, s24, v{C}""")
    if M0:
        a(f"""v_min_f32 v{C+3}, v{O[0]+12}, v{O[1]+12}
        s_mov_b32 s24, {f32hex(2.0**-60)}
        v_cmp_gt_f32 s[26:27], s24, v{C+3}
        s_mul_i32 s22, s22, {2*OG}
        s_or_b64 vcc, vcc, s[26:27]""")
    else: a(f"s_mul_i32 s22, s22, {2*OG}")
    a(f"""s_cbranch_vccz L_at_nf
    ds_write_b32 v7, v6 offset:{FLAGW}""")
    a.label("L_at_nf")
    a(f"""s_add_u32 s23, s22, s{OTAIL}
    s_add_u32 s22, s22, s{OOCT}
    s_waitcnt lgkmcnt(0)
    s_barrier
    ds_read_b32 v6, v7 offset:{FLAGW}""")
    for i in (2, 0, 1): a(f"ds_read_b128 {v(S[0]+4*i,4)}, v5 offset:{EXC + i*1024}")
    a(f"""s_waitcnt lgkmcnt(2)
    v_readfirstlane_b32 s26, v6
    v_pk_add_f32 {v(A+8,2)}, {v(A+8,2)}, {v(S[0]+8,2)}
    v_pk_add_f32 {v(A+10,2)}, {v(A+10,2)}, {v(S[0]+10,2)}
    v_rcp_f32 v{C}, v{A+8}
    s_cmp_gt_u32 s26, s{MODE}
    v_mov_b32 v{C+1}, v{C}
    s_cbranch_scc1 L_at_fallback
    s_waitcnt lgkmcnt(0)
    v_permlane32_swap_b32 v{C}, v{C+1}""")
    for i in range(0, 8, 2): a(f"v_pk_add_f32 {v(A+i,2)}, {v(A+i,2)}, {v(S[0]+i,2)}")
    for i in range(0, 12, 2): a(f"v_pk_mul_f32 {v(A+i,2)}, {v(A+i,2)}, {v(C,2)} op_sel:[0,1] op_sel_hi:[1,1]")
    for i in range(6): a(f"v_cvt_pk_bf16_f32 v{P[0]+i}, v{A+2*i}, v{A+2*i+1}")
    modes = [OSC]
    if '--dbl' in sys.argv: modes = ['sc1', '']
    if '--dbl2' in sys.argv: modes = ['', 'sc1', '']
    if '--osc' in sys.argv: modes = [sys.argv[sys.argv.index('--osc')+1].replace('_', ' ')]
    for md in modes:
        a(f"""buffer_store_dwordx4 {v(P[0],4)}, v{OSA}, s[12:15], s22 offen {md}
        s_mov_b32 exec_hi, 0
        buffer_store_dwordx2 {v(P[0]+4,2)}, v{OST}, s[12:15], s23 offen {md}
        s_mov_b32 exec_hi, -1""")
    if '--dpf' in sys.argv:
        diag_wait(a, '--dpf'); o_prefetch(a, 'd'); a('s_waitcnt vmcnt(0)')
    diag_wait(a, '--dos')
    stamp(a, 12)
    stamp(a, 51, True)

    def cold():
        a.label("L_at_fc")
        set_flag(a, FCOFF, 6)
        a(f"s_mov_b32 s{FCOFF}, 0\ns_branch L_at_back")
        a.label("L_at_fallback")
        a(f"s_mov_b32 s{MODE}, 1")
        a.label("L_at_refill")
        a("s_waitcnt vmcnt(0) lgkmcnt(0)\ns_barrier")
        attn_reset(a)
        for j in range(3):
            if j == 2: a(f"s_cmp_ge_u32 s{WV}, 4\ns_cbranch_scc1 L_at_f3")
            a(f"s_mov_b32 m0, s{KL[j]}\ns_sub_u32 s22, s{KS[j]}, {TTS_}\nbuffer_load_dwordx4 v{DMV}, s[12:15], s22 offen sc1 lds")
        a.label("L_at_f3")
        a("s_waitcnt vmcnt(0)\ns_branch L_attn")
        a.label("L_at_maxpass")
        MX = [P[0], P[1]]
        for q in range(2):
            a(f"v_cndmask_b32 v{Q1[q]}, 0, v{Q1[q]}, vcc\nv_cndmask_b32 v{Q1[q]+1}, 0, v{Q1[q]+1}, vcc\nv_mov_b32 v{MX[q]}, 0xff800000")
        a.label("L_at_mloop")
        for T in range(4):
            a(J(kr(T, 0)) + "\ns_waitcnt lgkmcnt(0)")
            qk(0, 0); qk(1, 0)
            a("s_nop 7\ns_nop 3")
            for q in range(2): tilemax(a, MX[q], S[q], False)
        a("s_add_u32 s30, s30, 1\ns_cmp_eq_u32 s30, 8\ns_cbranch_scc1 L_at_mdone\ns_barrier")
        for j in range(3):
            if j == 2: a(f"s_cmp_ge_u32 s{WV}, 4\ns_cbranch_scc1 L_at_m3")
            a(f"s_mov_b32 m0, s{KL[j]}\ns_nop 0\nbuffer_load_dwordx4 v{DMV}, s[12:15], s{KS[j]} offen sc1 lds\ns_add_u32 s{KS[j]}, s{KS[j]}, {TTS_}")
        a.label("L_at_m3")
        a("s_waitcnt vmcnt(0)\ns_barrier\ns_branch L_at_mloop")
        a.label("L_at_mdone")
        a(f"""s_lshl_b32 s22, s{WV}, 10
        v_add_u32 v4, s22, v{DMV}
        v_xor_b32 v5, 4096, v4""")
        for q in range(2): halfmax(a, MX[q]); a(f"ds_write_b32 v4, v{MX[q]} offset:{ARING + 2*SLOT + 4*q}")
        a("s_waitcnt lgkmcnt(0)\ns_barrier")
        for q in range(2): a(f"ds_read_b32 v{S[0]+q}, v5 offset:{ARING + 2*SLOT + 4*(1-q)}")
        a("s_waitcnt lgkmcnt(0)")
        for q in range(2):
            a(f"v_max_f32 v{MX[q]}, v{MX[q]}, v{S[0]+q}"); set_m(a, q, MX[q])
        a(f"s_mov_b32 s{MODE}, 2\ns_branch L_at_refill")
    return cold

def tail(a):
    ACC = 8
    order = [3, 2, 1, 0]
    THR = int(sys.argv[sys.argv.index('--thr')+1]) if '--thr' in sys.argv else 1
    PD = int(sys.argv[sys.argv.index('--pd')+1]) if '--pd' in sys.argv else 2
    def rlist(i, slot):
        t = Asm(); wo_reads(t, i, slot); return [l.strip() for l in t.lines]
    def loads(x):
        for e in range(2): a(f"buffer_load_dwordx4 {v(OFR[2*x+e],4)}, v5, s[12:15], s{TOS if x < 2 else 27} offen offset:{((2*x+e)&3)*1024} sc1")
        a(f"buffer_load_dwordx2 {v(OFR[8]+2*x,2)}, v1, s[12:15], s{TTS} offen offset:{x*512} sc1")
    def check(x, mask):
        r0, r1, rt = OFR[2*x], OFR[2*x+1], OFR[8] + 2*x
        a(f"""v_max3_u32 v4, v{r0}, v{r0+1}, v{r0+2}
        v_max3_u32 v4, v4, v{r0+3}, v{r1}
        v_max3_u32 v4, v4, v{r1+1}, v{r1+2}
        v_max3_u32 v4, v4, v{r1+3}, v{rt}
        v_max_u32 v4, v4, v{rt+1}""")
        if mask: a("v_and_b32 v4, s31, v4")
        a("v_cmp_eq_u32 vcc, -1, v4")
    def rowstore(base, T):
        for j in range(3): a(f"ds_read_b128 {v(T+4*j,4)}, v6 offset:{base + 960*j}")
        a(f"s_mov_b32 exec_hi, 0x0fffffff\ns_add_u32 s22, s{TFS}, {6*2560}\ns_add_u32 s23, s{TFS}, {12*2560}")
        for j in range(3):
            if j == 2: a("s_mov_b32 exec_hi, 0xff")
            a(f"s_waitcnt lgkmcnt({2-j})\nbuffer_store_dwordx4 {v(T+4*j,4)}, v{FS0}, s[8:11], s{[TFS, 22, 23][j]} offen {OUTSC}")
        a("s_mov_b32 exec_hi, -1")
    srd(a, 8, P_OUT, 2048*2560)
    a(f"""v_mov_b32 v5, v{DMV}
    v_lshlrev_b32 v1, 3, v2
    s_mov_b32 s50, 0
    s_mov_b32 s29, 15
    s_add_u32 s27, s{TOS}, 4096
    s_mul_i32 s22, s{HW}, 5120
    v_add_u32 v6, s22, v5
""")
    Y = WFR[8]
    a(f"s_cmp_eq_u32 s{KH}, 1\ns_cbranch_scc1 L_t_ny")
    for m in range(5): a(f"ds_read_b64_tr_b16 {v(Y+2*m,2)}, v{YT} offset:{YSRC + m*2048}")
    for m in range(5): a(f"s_waitcnt lgkmcnt(4)\nds_write_b64 v{FIW}, {v(Y+2*m,2)} offset:{PART + 32*m}")
    rowstore(PART, WFR[3])
    a.label("L_t_ny")
    for i in (7, 6, 5, 4, 3, 2, 1, 0, 8): wo_reads(a, i, i)
    for i in range(0, 20, 2): a(f"v_mov_b64 {v(ACC+i,2)}, 0")
    stamp(a, 44, True)
    a.label("L_t_loop")
    for x in order:
        a(f"s_bitcmp0_b32 s29, {x}\ns_cbranch_scc1 L_t_no{x}")
        loads(x)
        a.label(f"L_t_no{x}")
    a(f"""s_add_u32 s50, s50, 1
    s_cmp_gt_u32 s50, {SPIN}
    s_cselect_b32 s31, 0, -1
    s_mov_b32 s28, s29
    s_waitcnt lgkmcnt(0)""")
    for n, x in enumerate(order):
        a(f"s_bitcmp0_b32 s28, {x}\ns_cbranch_scc1 L_t_co{x}")
        if x > 0:
            a(f"s_and_b32 s22, s28, {(1 << x) - 1}\ns_bcnt1_i32_b32 s22, s22")
            for k in range(x, 0, -1):
                a(f"s_waitcnt vmcnt({3*k})\ns_cmp_eq_u32 s22, {k}\ns_cbranch_scc1 L_t_w{x}")
        a("s_waitcnt vmcnt(0)")
        a.label(f"L_t_w{x}")
        check(x, True)
        a(f"s_cbranch_vccnz L_t_co{x}\ns_bitset0_b32 s29, {x}")
        for e in (1, 0):
            for m in range(5): a(m16(ACC+4*m, WFR[2*x+e]+4*m, OFR[2*x+e], ACC+4*m))
        a.label(f"L_t_co{x}")
    if '--tl' in sys.argv:
        a("s_cmp_lg_u32 s50, 1\ns_cbranch_scc1 L_t_tl")
        stamp(a, 45, True)
        a(f"v_writelane_b32 v{PV}, s29, 28")
        a.label("L_t_tl")
    a("s_cmp_lg_u32 s29, 0\ns_cbranch_scc1 L_t_loop")
    wo_reads(a, 9, 7)
    a("s_waitcnt lgkmcnt(10)")
    for m in range(5): a(m16(ACC+4*m, WFR[8]+4*m, OFR[8], ACC+4*m))
    for m in range(5):
        a(f"s_waitcnt lgkmcnt({8-2*m})")
        a(m16(ACC+4*m, WFR[7]+4*m, OFR[9], ACC+4*m))
    stamp(a, 15)
    stamp(a, 52, True)
    if PROF: a(f"v_writelane_b32 v{PV}, s50, 29")
    T = 128
    a(f"s_cmp_eq_u32 s{KH}, 1\ns_cbranch_scc1 L_t_r1\ns_nop 3")
    for m in range(5): a(f"ds_write_b128 v6, {v(ACC+4*m,4)} offset:{PART + m*1024}")
    a("s_waitcnt lgkmcnt(0)\ns_barrier\ns_branch L_t_fin")
    a.label("L_t_r1")
    a("s_barrier")
    for m in range(5): a(f"ds_read_b128 {v(T+4*m,4)}, v6 offset:{PART + m*1024}")
    for m in range(5):
        a(f"s_waitcnt lgkmcnt(4)")
        for i in range(0, 4, 2): a(f"v_pk_add_f32 {v(ACC+4*m+i,2)}, {v(ACC+4*m+i,2)}, {v(T+4*m+i,2)}")
        a(f"v_cvt_pk_bf16_f32 v{ACC+4*m}, v{ACC+4*m}, v{ACC+4*m+1}\nv_cvt_pk_bf16_f32 v{ACC+4*m+1}, v{ACC+4*m+2}, v{ACC+4*m+3}")
        a(f"ds_write_b64 v{FIW}, {v(ACC+4*m,2)} offset:{OIMG + 32*m}")
    stamp(a, 46, True)
    rowstore(OIMG, T+24)
    a.label("L_t_fin")

def main(path):
    a = Asm()
    nm = NAME + "_kernel"
    a(f".globl {nm}\n.p2align 8\n.type {nm},@function")
    a.label(nm)
    if '--early' in sys.argv: a("s_memrealtime s[96:97]")
    a(f"""s_cmp_ge_u32 s2, 256
    s_cbranch_scc1 L_end
    s_load_dwordx16 s[64:79], s[0:1], 0
    s_load_dwordx8 s[80:87], s[0:1], 64
    s_load_dwordx2 s[88:89], s[0:1], 96
    v_lshrrev_b32 v1, 6, v0
    v_and_b32 v2, 63, v0
    v_readfirstlane_b32 s{WV}, v1
    s_and_b32 s{XCD}, s2, 7
    s_lshr_b32 s{IDX}, s2, 3
    s_cmp_lg_u32 s{WV}, 7
    s_cbranch_scc1 L_nopf
    s_cmp_ge_u32 s{IDX}, (L_code_end-{nm})/1024
    s_cbranch_scc1 L_nopf
    s_getpc_b64 s[22:23]""")
    a.label("L_pc")
    a(f"""s_lshl_b32 s24, s{IDX}, 10
    s_sub_u32 s22, s22, L_pc-{nm}
    s_subb_u32 s23, s23, 0
    v_lshl_add_u32 v4, v2, 4, s24
    v_mov_b32 v5, s23
    v_add_co_u32 v4, vcc, s22, v4
    s_nop 1
    v_addc_co_u32 v5, vcc, 0, v5, vcc
    global_load_dwordx4 v[220:223], v[4:5], off""")
    a.label("L_nopf")
    if PROF:
        a(f"v_mov_b32 v{PV}, 0\ns_memrealtime s[90:91]\ns_memtime s[92:93]")
    a(f"""s_and_b32 s{HW}, s{WV}, 3
    s_lshr_b32 s{KH}, s{WV}, 2
    s_mul_i32 s{CHN}, s{XCD}, 20
    s_add_u32 s{CHN}, s{CHN}, s{IDX}
    s_lshl_b32 s{CHN}, s{CHN}, 2
    s_add_u32 s{CHN}, s{CHN}, s{HW}
    s_lshl_b32 s22, s{CHN}, 8
    v_lshl_add_u32 v6, v2, 2, s22
    s_lshl_b32 s22, s{CHN}, 1
    v_mov_b32 v7, s22
    v_lshlrev_b32 v{DMV}, 4, v2
    s_mov_b32 s{FCOFF}, 0
    s_mov_b32 s{MODE}, 0""")
    a(f"""s_cmp_ge_u32 s{IDX}, 20
    s_cbranch_scc1 L_e_np
    s_waitcnt lgkmcnt(0)""")
    for i in range(4): a(f"global_load_dword v{PRM+i}, v6, s[{P_LA+2*i}:{P_LA+2*i+1}]")
    a(f"""global_load_ushort v{PRM+4}, v7, s[{P_DT}:{P_DT+1}]
    global_load_ushort v{VD}, v7, s[{P_D}:{P_D+1}]""")
    a.label("L_e_np")
    loader_math(a)
    a("s_waitcnt lgkmcnt(0)")
    if PROF: a(f"v_writelane_b32 v{PV}, s90, 0\nv_writelane_b32 v{PV}, s92, 1")
    srd(a, 60, P_X, 2048*1280)
    srd(a, 8, P_W, 640*3840)
    srd(a, 12, P_WS, WS_SIZE)
    if TLB:
        a(f"s_cmp_lg_u32 s{WV}, 6\ns_cbranch_scc1 L_notlb")
        srd(a, 4, P_OUT, 2048*2560)
        if TLB == 1:
            a(f"""v_lshlrev_b32 v3, 20, v2
            s_mov_b64 exec, 0x3ffff
            buffer_load_dword v220, v3, s[12:15], 0 offen
            s_mov_b64 exec, 0x1f
            buffer_load_dword v221, v3, s[4:7], 0 offen""")
        else:
            a(f"""s_mul_i32 s22, s{IDX}, {9*65536}
            v_lshlrev_b32 v3, 16, v2
            s_mov_b64 exec, 0x1ff
            buffer_load_dword v220, v3, s[12:15], s22 offen
            s_mul_i32 s22, s{IDX}, {3*65536}
            s_mov_b64 exec, 7
            buffer_load_dword v221, v3, s[4:7], s22 offen""")
        srd(a, 4, P_WO, 640*1280)
        a(f"""v_lshlrev_b32 v3, 16, v2
        s_mov_b64 exec, 0x1fff
        buffer_load_dword v222, v3, s[4:7], 0 offen
        s_mov_b64 exec, -1""")
        a.label("L_notlb")
    a(f"""s_cmp_ge_u32 s{IDX}, 30
    s_cbranch_scc1 L_e_tr
    s_cmp_lt_u32 s{IDX}, 20
    s_cselect_b32 s22, 1, 0
    s_cmp_lg_u32 s22, s{KH}
    s_cbranch_scc1 L_e_x
    s_cmp_eq_u32 s{KH}, 1
    s_cbranch_scc1 L_g_pro
    s_barrier""")
    a.label("L_g_pro")
    issue(a)
    stamp(a, 41)
    a(f"s_cmp_eq_u32 s{KH}, 0\ns_cbranch_scc1 L_gemm")
    if NH == 2: issue(a)
    else: skip(a)
    a("s_branch L_helper")
    a.label("L_e_x")
    a(f"""s_cmp_eq_u32 s{KH}, 1
    s_cbranch_scc1 L_nn
    s_setprio 2
    s_branch L_kgen""")
    a.label("L_e_tr")
    a(f"""s_lshl_b32 s26, s{XCD}, 1
    s_add_u32 s26, s26, s{IDX}
    s_sub_u32 s26, s26, 30
    s_lshl_b32 s26, s26, 3
    s_add_u32 s26, s26, s{WV}
    s_lshl_b32 s27, s{WV}, 13
    s_add_u32 s27, s27, 16384
    s_branch L_e_ut""")
    a.label("L_nn")
    a(f"""s_mul_i32 s26, s{XCD}, 10
    s_add_u32 s26, s26, s{IDX}
    s_mul_i32 s22, s{HW}, 80
    s_add_u32 s26, s26, s22
    s_add_u32 s26, s26, {128 - 20}
    s_lshl_b32 s27, s{HW}, 13
    s_add_u32 s27, s27, {SCR}
    s_cmp_lt_u32 s26, 320
    s_cbranch_scc1 L_e_ut
    s_cmp_lg_u32 s26, {128 + 240}
    s_cbranch_scc1 L_e_eb
    s_memrealtime s[22:23]
    v_mov_b32 v3, 0
    s_waitcnt lgkmcnt(0)
    s_or_b32 s22, s22, 1
    v_mov_b32 v4, s22
    s_mov_b64 exec, 1
    global_store_dword v3, v4, s[{P_DBG}:{P_DBG+1}] sc1
    s_mov_b64 exec, -1
    s_branch L_e_eb""")
    a.label("L_e_ut")
    utile_issue(a)
    a.label("L_e_eb")
    a("s_barrier")
    a(f"s_cmp_ge_u32 s{IDX}, 30\ns_cbranch_scc1 L_utile")
    a.label("L_helper")
    helper(a)
    a.label("L_g_kb")
    skip(a)
    if NH == 2: skip(a)
    else: issue(a)
    issue(a)
    a(f"s_setprio {MP}\nv_add_u32 v6, s28, v{DMV}")
    for i in range(4): a(f"ds_write_b128 v6, {v(KACC+4*i,4)} offset:{1024*i}")
    a.label("L_gemm")
    attn_ids(a)
    gemm(a)
    a.label("L_w1")
    window1(a)
    a.label("L_attn")
    cold = attention(a)
    tail(a)
    diag_wait(a, '--dend')
    if PROF:
        a("s_waitcnt vmcnt(0)")
        stamp(a, 16); stamp(a, 17, True)
        a(f"""s_lshl_b32 s22, s2, 3
        s_add_u32 s22, s22, s{WV}
        s_lshl_b32 s22, s22, 8
        s_add_u32 s22, s22, {WS_PROF}
        v_lshlrev_b32 v3, 2, v2
        buffer_store_dword v{PV}, v3, s[12:15], s22 offen""")
    a.label("L_end")
    a("s_endpgm")
    a.label("L_tr_back")
    arr_init(a)
    attn_ids(a)
    o_maps(a)
    a(f"s_cmp_ge_u32 s{WV}, 4\ns_cbranch_scc1 L_tr_b2")
    clear_o(a)
    a.label("L_tr_b2")
    a(f"s_waitcnt lgkmcnt(0)\ns_barrier\ns_cmp_lt_u32 s{WV}, 4\ns_cbranch_scc1 L_w1\ns_branch L_h_ids")
    cold()
    a(f".fill (1024 - ((. - {nm}) % 1024))/4, 4, 0xbf810000")
    a.label("L_code_end")
    hdr = open("cdna_kernels/" + NAME + ".s.ref").read().split("\n")
    head = [l for l in hdr[:15] if l.startswith(";") and "@launch" not in l and "Override" not in l and "grid=ceil" not in l]
    txt = "\n".join(head) + "\n; @launch grid=(256,1,1) block=(512,1,1) lds=163840\n"
    txt += '.amdgcn_target "amdgcn-amd-amdhsa--gfx950"\n.text\n' + a.text()
    txt += f""".section .rodata,"a"
.p2align 6
.amdhsa_kernel {nm}
  .amdhsa_next_free_vgpr 256
  .amdhsa_next_free_sgpr 102
  .amdhsa_accum_offset 256
  .amdhsa_group_segment_fixed_size 0
  .amdhsa_kernarg_size 104
  .amdhsa_user_sgpr_count 2
  .amdhsa_user_sgpr_kernarg_segment_ptr 1
  .amdhsa_system_sgpr_workgroup_id_x 1
.end_amdhsa_kernel
"""
    open(path, "w").write(txt)
    errs = check_hazards(a.text())
    for e in errs[:30]: print("HAZARD", e)
    print(f"{path}: {len(a.lines)} lines, {len(errs)} hazards")

if __name__ == "__main__":
    main([x for x in sys.argv[1:] if x.endswith(".s")][0])
```

```python
import math, sys
from asmlib import *

NAME = "concat_heads__ssm_conv_s4d__mha_block__prompt"
WS_QKV = 0
WS_O = 0x800000
WS_UT = 0xB00000
WS_YT = 0xE00000
WS_FA = 0x1100000
WS_FB = 0x1110000
WS_FC = 0x1120000
WS_PROF = 0x1300000
WS_SIZE = 0x1400000
TTS_ = 480*1024
OG = 20480
RS = 4352
LOG2E = math.log2(math.e)
QSCALE = LOG2E / math.sqrt(20.0)
PROF = "--prof" in sys.argv
M0 = "--m0" in sys.argv
SPIN = 0x40000
NH = int(sys.argv[sys.argv.index('--nh')+1]) if '--nh' in sys.argv else 2
MP = int(sys.argv[sys.argv.index('--mp')+1]) if '--mp' in sys.argv else 2
XROT = int(sys.argv[sys.argv.index('--xrot')+1]) if '--xrot' in sys.argv else 0
LATE = int(sys.argv[sys.argv.index('--late')+1]) if '--late' in sys.argv else 0
PSL = int(sys.argv[sys.argv.index('--psl')+1]) if '--psl' in sys.argv else 0
PRE = int(sys.argv[sys.argv.index('--pre')+1]) if '--pre' in sys.argv else 4
PRE2 = int(sys.argv[sys.argv.index('--pre2')+1]) if '--pre2' in sys.argv else 0
PACKA = '--nopacka' not in sys.argv
ALN = int(sys.argv[sys.argv.index('--al')+1]) if '--al' in sys.argv else 0
ALP = int(sys.argv[sys.argv.index('--alp')+1]) if '--alp' in sys.argv else 6
FILL1 = int(sys.argv[sys.argv.index('--fill')+1]) if '--fill' in sys.argv else 0
OUTSC = sys.argv[sys.argv.index('--outsc')+1].replace('_', ' ') if '--outsc' in sys.argv else ''
TLB = int(sys.argv[sys.argv.index('--tlb')+1]) if '--tlb' in sys.argv else 0
POLLC = int(sys.argv[sys.argv.index('--pollc')+1]) if '--pollc' in sys.argv else 5
UP = int(sys.argv[sys.argv.index('--up')+1]) if '--up' in sys.argv else 1
UNT = '' if '--nount' in sys.argv else 'nt'
PF = '--pf' in sys.argv
PNT = 'nt'
FB_ = '--fb' in sys.argv
P4 = '--p4' in sys.argv
X16 = '--x16' in sys.argv
PRIO = [int(x) for x in sys.argv[sys.argv.index('--prio')+1].split(',')] if '--prio' in sys.argv else [0, 16, 26, 30]
LOC = '--loc' in sys.argv
OSC = '' if '--plainO' in sys.argv else 'sc1'
SPEC = int(sys.argv[sys.argv.index('--spec')+1]) if '--spec' in sys.argv else 1
XNT = "nt" if "--xnt" in sys.argv else ""
WNT = "nt" if "--wnt" in sys.argv else ""
J = "\n".join

WV, XCD, IDX, NONCE = 16, 17, 18, 19
TT, CT = 20, 21
FCOFF, HEAD5, QB, OOFF = 36, 37, 38, 39
KS = [40, 41, 42]; KL = [44, 45, 46]
MODE, KH, KHOFF = 47, 48, 49
HW, CHN = 51, 52
OOCT, OTAIL = 54, 55
XS, WSO, LB = 56, 57, 99
TB = 58
P_U, P_LA, P_AI, P_CR, P_CI, P_DT, P_D, P_X, P_W, P_WO, P_OUT, P_DBG, P_WS = range(64, 90, 2)
WOS, WOL = 94, 95
MK, MK2, MC = 33+1, 35, 100
MW = [101, 25]
PV = 255
DX, DW = 240, 244
PL1, PL2 = 234, 235
DMV, KA, K4, VA, MSK, MS4, WOV, QA4, QA0 = range(224, 233)

RING = 32768
SCR = 3*RING
UST = 4640
KOFF = 4*UST
CHA = KOFF + 4224
CVB = 65536
PST = 2048 + 32
SLOT = 20992
FLAGW = 0
CONSTP = 64
ARING = 1280
QLDS = ARING + 2*SLOT
WOB = 163840 - 107*960 - 64
EXC = ARING
YSRC = WOB - 10240
PART = 25856
KSC = SCR
CNT = 129536
ARRW = CNT
OIMG = ARING
assert CVB + 4*CHA <= 163840 and ARING + 3*SLOT <= 65536 and ARING + 3*SLOT <= WOB + 11*960
assert EXC + 24576 <= PART and PART + 20480 <= YSRC and YSRC >= ARING + 2*SLOT and EXC + 24576 <= ARING + SLOT + 5*PST and OIMG + 20480 <= PART

def srd(a, d, lo, size):
    a(f"s_mov_b32 s{d}, s{lo}\ns_and_b32 s{d+1}, s{lo+1}, 0xffff\ns_mov_b32 s{d+2}, {size}\ns_mov_b32 s{d+3}, 0x20000")
def m32(d, x, y, c=None):
    return f"v_mfma_f32_32x32x16_bf16 {v(d,16)}, {v(x,4)}, {v(y,4)}, {v(c,16) if c is not None else 0}"
def m32x8(d, x, y, c):
    if X16: return f"v_mfma_f32_32x32x16_bf16 {v(d,16)}, {v(x-2,4)}, {v(y-2,4)}, {v(c,16)}"
    return f"v_mfma_f32_32x32x8_bf16 {v(d,16)}, {v(x,2)}, {v(y,2)}, {v(c,16)}"
def m16(d, x, y, c=None):
    return f"v_mfma_f32_16x16x32_bf16 {v(d,4)}, {v(x,4)}, {v(y,4)}, {v(c,4) if c is not None else 0}"
LITE = "--lite" in sys.argv
def stamp(a, i, real=False):
    if LITE and i not in (50, 51, 53, 17) + ((52, 44, 45, 46, 47) if '--tl' in sys.argv and real else ()): return
    if PROF: a(f"s_mem{'real' if real else ''}time s[92:93]\ns_waitcnt lgkmcnt(0)\nv_writelane_b32 v{PV}, s92, {i}")

def diag_wait(a, key):
    if key not in sys.argv: return
    x = int(sys.argv[sys.argv.index(key)+1]) * 100
    l = a.newlabel("L_dg")
    a.label(l)
    a(f"""s_memrealtime s[90:91]
    s_waitcnt lgkmcnt(0)
    s_sub_u32 s90, s90, s{NONCE}
    s_cmp_lt_u32 s90, {x}
    s_cbranch_scc1 {l}""")

def get_nonce(a):
    l = a.newlabel("L_nonce"); e = a.newlabel("L_nonce_e")
    a(f"""s_load_dword s{NONCE}, s[{P_DBG}:{P_DBG+1}], 0
    s_mov_b32 s50, 0
    v_mov_b32 v222, 0
    s_waitcnt lgkmcnt(0)""")
    a.label(l)
    a(f"""s_cmp_lg_u32 s{NONCE}, 0
    s_cbranch_scc1 {e}
    global_load_dword v223, v222, s[{P_DBG}:{P_DBG+1}] sc1
    s_add_u32 s50, s50, 1
    s_waitcnt vmcnt(0)
    v_readfirstlane_b32 s{NONCE}, v223
    s_cmp_lt_u32 s50, {SPIN}
    s_cbranch_scc1 {l}""")
    a.label(e)

def poll(a, addrs, width, vt, preloaded=False, sleep=0, cnt=50):
    l = a.newlabel("L_poll"); e = a.newlabel("L_poll_e")
    sfx = {1: "dword", 4: "dwordx4"}[width]
    a(f"s_mov_b32 s{cnt}, 0")
    if preloaded: a(f"s_branch {l}_c")
    a.label(l)
    for k, ad in enumerate(addrs): a(f"buffer_load_{sfx} {v(vt+4*k,width)}, v{ad}, s[12:15], 0 offen sc1")
    a(f"s_add_u32 s{cnt}, s{cnt}, 1\ns_waitcnt vmcnt(0)")
    a.label(l + "_c")
    regs = [vt+4*k+j for k in range(len(addrs)) for j in range(width)]
    for r in regs: a(f"v_xor_b32 v{r}, s{NONCE}, v{r}")
    for r in regs[1:]: a(f"v_or_b32 v{regs[0]}, v{regs[0]}, v{r}")
    a(f"""v_cmp_ne_u32 vcc, 0, v{regs[0]}
    s_cmp_gt_u32 s{cnt}, {SPIN}
    s_cbranch_scc1 {e}""")
    if sleep: a(f"s_cbranch_vccz {e}\ns_sleep {sleep}\ns_branch {l}")
    else: a(f"s_cbranch_vccnz {l}")
    a.label(e)

def set_flag(a, soff, vt):
    a(f"""v_mov_b32 v{vt}, 0
    v_mov_b32 v{vt+1}, s{NONCE}
    s_mov_b64 exec, 1
    buffer_store_dword v{vt+1}, v{vt}, s[12:15], s{soff} offen sc1
    s_mov_b64 exec, -1""")

def attn_ids(a):
    if LOC: a(f"s_mov_b32 s{HEAD5}, s{IDX}\ns_mov_b32 s{QB}, s{XCD}")
    else: a(f"""s_lshl_b32 s{HEAD5}, s{XCD}, 2
    s_lshr_b32 s22, s{IDX}, 3
    s_add_u32 s{HEAD5}, s{HEAD5}, s22
    s_and_b32 s{QB}, s{IDX}, 7""")
    a(f"""s_mul_i32 s22, s{QB}, {16*OG}
    s_add_u32 s22, s22, {WS_O}
    s_lshl_b32 s{OOCT}, s{HEAD5}, 9
    s_add_u32 s{OOCT}, s{OOCT}, s22
    s_lshl_b32 s{OTAIL}, s{HEAD5}, 7
    s_add_u32 s{OTAIL}, s{OTAIL}, s22
    s_add_u32 s{OTAIL}, s{OTAIL}, 16384
    s_mul_i32 s{HEAD5}, s{HEAD5}, 5
    s_lshl_b32 s{OOFF}, s{HEAD5}, 10
    s_mul_i32 s22, s{QB}, {2*TTS_}
    s_add_u32 s{OOFF}, s{OOFF}, s22""")

def clear_o(a):
    a(f"""v_lshrrev_b32 v140, 5, v2
    v_mul_u32_u24 v140, {2*OG}, v140
    v_add_u32 v140, v140, v{OST}
    v_mov_b32 v136, -1
    v_mov_b32 v137, -1
    v_mov_b32 v138, -1
    v_mov_b32 v139, -1
    s_mul_i32 s24, s{HW}, {4*OG}
    s_add_u32 s22, s24, s{OOCT}
    s_add_u32 s23, s22, {2*OG}
    s_add_u32 s24, s24, s{OTAIL}
    buffer_store_dwordx4 v[136:139], v{OSA}, s[12:15], s22 offen sc1
    buffer_store_dwordx4 v[136:139], v{OSA}, s[12:15], s23 offen sc1
    buffer_store_dwordx2 v[136:137], v140, s[12:15], s24 offen sc1""")

def arr_init(a):
    a(f"v_mov_b32 v220, {CNT}\nv_mov_b32 v222, 0\nv_mov_b32 v223, 0\nds_write_b64 v220, v[222:223]")

def utile_issue(a):
    srd(a, 4, P_U, 2048*1280)
    a(f"""v_lshlrev_b32 v4, 4, v9
    v_mul_u32_u24 v3, 1280, v8
    v_add_u32 v3, v3, v4
    s_mov_b32 m0, s27
    s_lshr_b32 s23, s26, 5
    s_and_b32 s28, s26, 31
    s_mul_i32 s24, s28, {64*1280}
    s_lshl_b32 s22, s23, 7
    s_add_u32 s24, s24, s22
    s_mov_b32 s30, 0""")
    a.label("L_ut_i")
    a(f"""buffer_load_dwordx4 v3, s[4:7], s24 offen {UNT} lds
    s_add_u32 m0, m0, 1024
    s_add_u32 s24, s24, {8*1280}
    s_add_u32 s30, s30, 1
    s_cmp_lt_u32 s30, 8
    s_cbranch_scc1 L_ut_i""")
def utile(a):
    A0, A1, A2, A3, D = 8, 9, 10, 11, 12
    a(f"""s_lshr_b32 s23, s26, 5
    v_xor_b32 v{A1}, v{A1}, v{A0}
    v_lshlrev_b32 v{A1}, 4, v{A1}
    v_mul_u32_u24 v{A3}, {RS}, v{A0}
    v_add_u32 v{A3}, v{A3}, v{A1}
    v_lshlrev_b32 v{A0}, 4, v2
    v_add_u32 v{A0}, s27, v{A0}
    v_bfe_u32 v{A1}, v2, 2, 2
    v_lshlrev_b32 v{A1}, 7, v{A1}
    v_lshrrev_b32 v{A2}, 4, v2
    v_lshl_add_u32 v{A1}, v{A2}, 5, v{A1}
    v_and_b32 v{A2}, 3, v2
    v_lshl_add_u32 v{A1}, v{A2}, 3, v{A1}
    v_add_u32 v{A1}, s27, v{A1}
    v_and_b32 v{A2}, 7, v2
    v_lshlrev_b32 v{A2}, 4, v{A2}
    v_lshl_add_u32 v{A2}, v2, 7, v{A2}
    v_add_u32 v{A2}, s27, v{A2}
    s_mul_i32 s23, s23, {64*RS}
    s_lshl_b32 s24, s28, 7
    s_add_u32 s24, s24, s23
    s_add_u32 s24, s24, {WS_UT}
    s_lshl_b32 s29, s26, {2 if PACKA else 7}
    s_add_u32 s29, s29, {WS_FA}""")
    stamp(a, 27)
    a("s_waitcnt vmcnt(0)")
    stamp(a, 28)
    for i in range(16): a(f"ds_read_b64_tr_b16 {v(D+2*i,2)}, v{A1} offset:{i*512}")
    a("s_waitcnt lgkmcnt(0)")
    for i in range(8): a(f"v_xor_b32 v4, {16*i}, v{A2}\nds_write_b128 v4, {v(D+4*i,4)}")
    a("s_waitcnt lgkmcnt(0)")
    for i in range(8): a(f"ds_read_b128 {v(D+4*i,4)}, v{A0} offset:{i*1024}")
    for i in range(8):
        a(f"s_waitcnt lgkmcnt({7-i})\nbuffer_store_dwordx4 {v(D+4*i,4)}, v{A3}, s[12:15], s24 offen sc1\ns_add_u32 s24, s24, {8*RS}")
    stamp(a, 2)
    a(f"s_mov_b32 s33, 1\ns_cmp_lt_u32 s{IDX}, 30\ns_cbranch_scc1 L_h_ld0")
    get_nonce(a)
    a("s_waitcnt vmcnt(0)")
    set_flag(a, 29, 4)
    stamp(a, 3)

def next_slot(a, cur, tmp):
    a(f"""s_add_u32 s{cur}, s{cur}, {RING}
    s_lshr_b32 s{tmp}, s{cur}, 15
    s_cmp_eq_u32 s{tmp}, 3
    s_cselect_b32 s{tmp}, {RING}, 0
    s_add_u32 s{cur}, s{cur}, s{tmp}
    s_cmp_ge_u32 s{cur}, {5*RING}
    s_cselect_b32 s{tmp}, {5*RING}, 0
    s_sub_u32 s{cur}, s{cur}, s{tmp}""")

ORD = sys.argv[sys.argv.index('--ord')+1] if '--ord' in sys.argv else 'quad2'
def orders():
    if ORD == 'none': return [list(range(10))]*4
    if ORD == 'pair': return [[c ^ (t & 1) for c in range(10)] for t in range(4)]
    if ORD == 'quad': return [[(c ^ t) if c < 8 else (c ^ (t & 1)) for c in range(10)] for t in range(4)]
    if ORD == 'quad2': return [[(c ^ (t & 1)) if c < 2 else 2 + ((c - 2) ^ t) for c in range(10)] for t in range(4)]
    if ORD == 'quad3': return [[(c ^ t) if c < 4 else ((c ^ (t & 1)) if c < 6 else 6 + ((c - 6) ^ t)) for c in range(10)] for t in range(4)]
    if ORD == 'five': return [[(c // 5) * 5 + (c + (0, 1, 3, 4)[t]) % 5 for c in range(10)] for t in range(4)]
    if ORD == 'mix': return [[(0,4,1,2,8,3,5,6,7,9), (1,5,0,3,9,2,4,7,6,8), (2,6,3,0,8,1,7,4,5,9), (3,7,2,1,9,0,6,5,4,8)][t] for t in range(4)]
    if ORD == 'q3': return [[t & 1, 1 - (t & 1), 2 + t, 6 + t] + [2 + (i ^ t) for i in (1, 2, 3)] + [6 + (i ^ t) for i in (1, 2, 3)] for t in range(4)]
    if ORD == 'q4': return [[t, 4 + t, 8 + (t & 1), t ^ 1, t ^ 2, t ^ 3, 4 + (t ^ 1), 4 + (t ^ 2), 4 + (t ^ 3), 9 - (t & 1)] for t in range(4)]
    if ORD == 'q5': return [[t, t ^ 1, 4 + t, 8 + (t & 1), t ^ 2, t ^ 3, 4 + (t ^ 1), 4 + (t ^ 2), 4 + (t ^ 3), 9 - (t & 1)] for t in range(4)]
    if ORD == 'half': return [[(c + 5*(t & 1)) % 10 for c in range(10)] for t in range(4)]
    if ORD == 'rot': return [[(c + (0, 3, 5, 8)[t]) % 10 for c in range(10)] for t in range(4)]
    if ORD == 'tri': return [[(c//3*3 + (c + t) % 3) if c < 9 else 9 for c in range(10)] for t in (0, 1, 2, 1)]
def loader_math(a):
    a(f"""s_lshr_b32 s{TT}, s{XCD}, 1
    s_lshl_b32 s{TT}, s{TT}, 2
    s_and_b32 s24, s{XCD}, 1
    s_and_b32 s22, s{IDX}, 3
    s_lshr_b32 s23, s{IDX}, 2
    s_lshl_b32 s{CT}, s24, 3
    s_add_u32 s{CT}, s{CT}, s23
    s_lshl_b32 s24, s24, 1
    s_cmp_ge_u32 s{IDX}, 28
    s_cselect_b32 s{CT}, 7, s{CT}
    s_cselect_b32 s24, s24, 0
    s_add_u32 s22, s22, s24
    s_add_u32 s{TT}, s{TT}, s22
    s_add_u32 s22, s{TT}, s{CT}
    s_and_b32 s22, s22, 3""")
    if XROT == 1: a(f"s_mul_i32 s25, s{XCD}, 5\ns_lshr_b32 s25, s25, 2")
    if XROT == 2: a(f"s_and_b32 s25, s{XCD}, 1\ns_mul_i32 s25, s25, 5")
    if XROT == 3: a(f"s_lshr_b32 s25, s{XCD}, 1\ns_mul_i32 s25, s25, 5\ns_lshr_b32 s25, s25, 1")
    tb = [sum(c << (4*i) for i, c in enumerate(o)) for o in orders()]
    a(f"s_mov_b32 s{TB}, {tb[0] & 0xffffffff}\ns_mov_b32 s{TB+1}, {tb[0] >> 32}")
    for t in range(1, 4):
        if tb[t] != tb[0]: a(f"s_cmp_eq_u32 s22, {t}\ns_cselect_b32 s{TB}, {tb[t] & 0xffffffff}, s{TB}\ns_cselect_b32 s{TB+1}, {tb[t] >> 32}, s{TB+1}")
    a(f"""v_lshrrev_b32 v8, 3, v2
    v_and_b32 v9, 7, v2
    v_lshrrev_b32 v5, 1, v8
    s_and_b32 s22, s{HW}, 1
    s_lshl_b32 s22, s22, 2
    v_add_u32 v5, s22, v5
    v_xor_b32 v4, v9, v5
    v_lshlrev_b32 v4, 4, v4
    v_mul_u32_u24 v3, 2560, v8
    v_add_u32 v{DX}, v3, v4
    s_lshl_b32 s{XS}, s{TT}, 3
    s_add_u32 s{XS}, s{XS}, s{HW}
    s_mul_i32 s{XS}, s{XS}, {16*1280}
    v_lshrrev_b32 v3, 4, v2
    v_bfe_u32 v4, v2, 2, 2
    v_xor_b32 v4, v4, v3
    v_lshlrev_b32 v4, 6, v4
    v_and_b32 v5, 3, v2
    v_lshlrev_b32 v5, 4, v5
    v_mul_u32_u24 v3, 3840, v3
    v_add3_u32 v{DW}, v3, v4, v5
    s_lshl_b32 s{WSO}, s{CT}, 8
    s_mul_i32 s22, s{HW}, {4*3840}
    s_add_u32 s{WSO}, s{WSO}, s22
    s_lshl_b32 s{LB}, s{HW}, 10
""")
    for i in range(1, 4):
        a(f"v_add_u32 v{DX+i}, {(64*(i>>1) + (i&1))*1280}, v{DX}\nv_add_u32 v{DW+i}, {i*16*3840}, v{DW}")
def dma_prep():
    xr = f"""
    s_add_u32 s43, s43, s25
    s_cmp_ge_u32 s43, 10
    s_cselect_b32 s100, 10, 0
    s_sub_u32 s43, s43, s100""" if XROT else ""
    return f"""s_and_b32 s43, s{TB}, 15{xr}
    s_lshr_b64 s[{TB}:{TB+1}], s[{TB}:{TB+1}], 4
    s_lshl_b32 s100, s43, 7
    s_add_u32 s100, s100, s{XS}
    s_mul_i32 s101, s43, {64*3840}
    s_add_u32 s101, s101, s{WSO}"""
def issue(a, fill=None):
    a(dma_prep())
    per = (len(fill) + 7) // 8 if fill else 0
    for k in range(8):
        i = k >> 1
        a(f"s_add_u32 m0, s{LB}, {i*4096 + (16384 if k & 1 else 0)}\ns_nop 0")
        a(f"buffer_load_dwordx4 v{(DW if k & 1 else DX)+i}, s[{'8:11' if k & 1 else '60:63'}], s{101 if k & 1 else 100} offen {WNT if k & 1 else XNT} lds")
        if fill:
            n = min(per, len(fill))
            while n < len(fill) and (fill[n].startswith(("s_cselect", "s_addc"))): n += 1
            a(J(fill[:n])); del fill[:n]
    assert not fill
    next_slot(a, LB, 43)
def skip(a):
    a(f"s_lshr_b64 s[{TB}:{TB+1}], s[{TB}:{TB+1}], 4")
    next_slot(a, LB, 22)
def lds_wait(a, va, off, vt, sleep=True):
    l = a.newlabel("L_lw"); e = a.newlabel("L_le")
    a.label(l)
    a(f"""ds_read_b32 v{vt}, v{va} offset:{off}
    s_waitcnt lgkmcnt(0)
    v_readfirstlane_b32 s22, v{vt}
    s_cmp_ge_u32 s22, 4
    s_cbranch_scc1 {e}""")
    if sleep: a("s_sleep 2")
    a(f"s_branch {l}")
    a.label(e)

def main_pre(a):
    def wg_of(tt, ct, dst):
        a(f"""v_cmp_eq_u32 vcc, 7, v{ct}
        v_bfe_u32 v10, v{tt}, 1, 1
        v_lshrrev_b32 v11, 3, v{ct}
        v_cndmask_b32 v10, v11, v10, vcc
        v_and_b32 v11, 3, v{tt}
        v_and_b32 v12, 1, v{tt}
        v_cndmask_b32 v11, v11, v12, vcc
        v_and_b32 v12, 7, v{ct}
        v_lshl_add_u32 v11, v12, 2, v11
        v_lshl_add_u32 v10, v11, 3, v10
        v_lshrrev_b32 v11, 2, v{tt}
        v_lshl_add_u32 v{dst}, v11, 1, v10""")
    a(f"""v_and_b32 v3, 15, v2
    v_lshrrev_b32 v4, 5, v2
    v_mul_u32_u24 v4, 160, v4
    v_bfe_u32 v5, v2, 4, 1
    v_lshl_add_u32 v4, v5, 2, v4
    s_add_u32 s22, s{HEAD5}, 160
    v_add_u32 v4, s22, v4
    v_lshrrev_b32 v4, 5, v4""")
    wg_of(3, 4, 8)
    a(f"""v_lshlrev_b32 v8, 7, v8
    v_add_u32 v{PL1}, {WS_FB}, v8
    v_and_b32 v3, 1, v2
    s_lshl_b32 s22, s{QB}, 1
    v_add_u32 v3, s22, v3
    v_bfe_u32 v4, v2, 1, 1
    v_lshlrev_b32 v4, 2, v4
    v_add_u32 v4, s{HEAD5}, v4
    v_lshrrev_b32 v4, 5, v4""")
    wg_of(3, 4, 9)
    if LOC: a(f"v_lshl_add_u32 v3, v2, 3, s{XCD}")
    else: a(f"""v_bfe_u32 v3, v2, 3, 2
    v_lshlrev_b32 v3, 6, v3
    v_and_b32 v4, 7, v2
    s_lshl_b32 s22, s{XCD}, 3
    v_add3_u32 v3, v3, v4, s22""")
    a(f"""v_cmp_gt_u32 vcc, 32, v2
    s_nop 1
    v_cndmask_b32 v9, v9, v3, vcc
    v_lshlrev_b32 v9, 7, v9
    v_add_u32 v{PL2}, {WS_FB}, v9""")

def gemm(a):
    XA = [10, 11, 12, 13]; WA = [14, 15]
    FX = [[16, 20], [32, 36]]; FW = [[24, 28], [40, 44]]
    ACC = 48
    a(f"""s_and_b32 s34, s{WV}, 1
    s_lshr_b32 s35, s{WV}, 1
    v_and_b32 v3, 31, v2
    v_lshrrev_b32 v4, 5, v2
    v_bfe_u32 v5, v3, 1, 3
    v_xor_b32 v5, v5, v4
    v_lshlrev_b32 v5, 4, v5
    v_lshlrev_b32 v6, 7, v3
    s_lshl_b32 s22, s34, 13
    v_add3_u32 v{XA[0]}, v5, v6, s22
    v_xor_b32 v{XA[1]}, 32, v{XA[0]}
    v_xor_b32 v{XA[2]}, 64, v{XA[0]}
    v_xor_b32 v{XA[3]}, 96, v{XA[0]}
    v_bfe_u32 v5, v2, 2, 2
    s_lshl_b32 s22, s35, 1
    v_xor_b32 v6, s22, v5
    v_lshlrev_b32 v6, 6, v6
    v_lshlrev_b32 v7, 3, v4
    v_add_u32 v7, v7, v5
    v_lshlrev_b32 v7, 8, v7
    v_bfe_u32 v5, v2, 4, 1
    v_lshlrev_b32 v5, 5, v5
    v_add3_u32 v6, v6, v7, v5
    v_and_b32 v5, 3, v2
    v_lshl_add_u32 v6, v5, 3, v6
    v_add_u32 v{WA[0]}, 16384, v6
    v_xor_b32 v{WA[1]}, 64, v{WA[0]}
    v_lshlrev_b32 v5, 10, v4
    v_lshl_add_u32 v5, v3, 4, v5
    s_lshl_b32 s26, s{CT}, 5
    s_lshl_b32 s23, s35, 4
    s_add_u32 s26, s26, s23
    s_lshl_b32 s26, s26, 10
    s_mul_i32 s23, s{TT}, {TTS_}
    s_add_u32 s26, s26, s23
    s_lshl_b32 s23, s34, 9
    s_add_u32 s26, s26, s23""")
    a("v_mov_b64 v[16:17], 0\nv_mov_b64 v[18:19], 0\ns_nop 1")
    for i in range(4): a(m32(ACC+16*i, 16, 16))
    def rx(ks, buf, t): return f"ds_read_b128 {v(FX[buf][t],4)}, v{XA[ks]} offset:{t*4096}"
    def rw(ks, buf, m, rd): return f"ds_read_b64_tr_b16 {v(FW[buf][m]+2*rd,2)}, v{WA[m]} offset:{(16*ks+4*rd)*256}"
    def rds(ks, buf): return [rx(ks,buf,0), rw(ks,buf,0,0), rw(ks,buf,0,1), rx(ks,buf,1), rw(ks,buf,1,0), rw(ks,buf,1,1)]
    def mf(buf, m, t):
        if '--g16' in sys.argv:
            d = ACC+(m*2+t)*16 + 8*buf
            return m16(d, FW[buf][m], FX[buf][t], d) + "\n" + m16(d+4, FX[buf][t], FW[buf][m], d+4)
        return m32(ACC+(m*2+t)*16, FW[buf][m], FX[buf][t], ACC+(m*2+t)*16)
    stamp(a, 24)
    o_maps(a)
    a(f"s_cmp_lt_u32 s{IDX}, 20\ns_cbranch_scc1 L_g_w")
    if FB_:
        a("s_barrier")
        issue(a); issue(a)
        a("s_waitcnt vmcnt(16)")
    else:
        issue(a)
        a("s_waitcnt vmcnt(8)")
        issue(a)
    a.label("L_g_w")
    clear_o(a)
    a("s_waitcnt lgkmcnt(0)")
    stamp(a, 25)
    a(f"s_cmp_lt_u32 s{IDX}, 20\ns_cselect_b32 s27, {2 if P4 else 1}, 1")
    a("s_mov_b32 s30, 0\ns_mov_b32 s31, 0\ns_setprio 2")
    stamp(a, 26)
    a("s_barrier")
    stamp(a, 2)
    a(J(rds(0, 0)))
    a(".p2align 3")
    a.label("L_g_mm")
    for ks in range(4):
        b = ks & 1
        r = rds((ks+1) & 3, b ^ 1)
        a("s_waitcnt lgkmcnt(3)")
        a(mf(b, 0, 0))
        if ks < 3:
            a(J(r[0:3]) + "\ns_waitcnt lgkmcnt(5)")
            a(mf(b, 0, 1))
            a(J(r[3:6]) + "\ns_waitcnt lgkmcnt(6)")
            a(mf(b, 1, 0))
            if ks == 0:
                a("s_mov_b32 s32, s31"); next_slot(a, 31, 33)
            if ks == 1: a(f"s_sub_u32 s33, s31, s32\ns_add_u32 s30, s30, 1\nv_add_u32 v{XA[0]}, s33, v{XA[0]}\nv_add_u32 v{XA[1]}, s33, v{XA[1]}\nv_add_u32 v{XA[2]}, s33, v{XA[2]}")
            if ks == 2: a(f"v_add_u32 v{XA[3]}, s33, v{XA[3]}\nv_add_u32 v{WA[0]}, s33, v{WA[0]}\nv_add_u32 v{WA[1]}, s33, v{WA[1]}\ns_cmp_le_u32 s30, s27")
            a(mf(b, 1, 1))
        else:
            a("s_cbranch_scc1 L_g_w8\ns_waitcnt vmcnt(3)")
            a.label("L_g_w8")
            a("s_waitcnt vmcnt(11) lgkmcnt(0)\ns_cmp_gt_u32 s30, 8\ns_cbranch_scc1 L_g_nb\ns_barrier")
            a.label("L_g_nb")
            a(mf(b, 0, 1))
            a(J(r[0:3]) + "\ns_cmp_lt_u32 s30, 10")
            a(mf(b, 1, 0))
            a(J(r[3:6]))
            a(mf(b, 1, 1))
            a("s_cbranch_scc1 L_g_mm")
    stamp(a, 3)
    a("s_nop 4\ns_waitcnt lgkmcnt(0)")
    for q in range(2):
        if q == 0: a(f"s_cmp_lt_u32 s{CT}, 5\ns_cbranch_scc1 L_g_eq")
        else: a.label("L_g_eq"); a(f"s_mov_b32 s28, {f32hex(QSCALE)}")
        k = 0
        for m in range(2):
            for g in range(4):
                d = 16 + 4*k; k += 1
                for t in range(2):
                    r = ACC + (m*2+t)*16 + 4*g
                    if q:
                        for i in range(4): a(f"v_mul_f32 v{r+i}, s28, v{r+i}")
                    a(f"v_cvt_pk_bf16_f32 v{d+2*t}, v{r}, v{r+1}\nv_cvt_pk_bf16_f32 v{d+2*t+1}, v{r+2}, v{r+3}")
                if k & 1: a(f"s_add_u32 s23, s26, {WS_QKV + (m*8+2*g)*1024}")
                a(f"buffer_store_dwordx4 {v(d,4)}, v5, s[12:15], s23 offen offset:{0 if k & 1 else 2048} sc1")
        if q == 0: a("s_branch L_w1")

PRM = 152
VD = 233
def cm(d, x, z, t):
    return [f"v_pk_mul_f32 {v(t,2)}, {v(x,2)}, {v(z,2)} op_sel:[0,0] op_sel_hi:[1,0]",
            f"v_pk_fma_f32 {v(d,2)}, {v(x,2)}, {v(z,2)}, {v(t,2)} op_sel:[1,1,0] op_sel_hi:[0,1,1] neg_lo:[0,1,0]"]
def ilv(*ls):
    out = []
    for i in range(max(len(x) for x in ls)):
        for x in ls:
            if i < len(x): out.append(x[i])
    return out
GDT, GER, GTH, GT = 112, 113, 114, 116
def kg_dt(a):
    a(f"""v_lshlrev_b32 v{GDT}, 16, v{PRM+4}
    v_mul_f32 v{GDT}, {f32hex(LOG2E)}, v{GDT}
    v_exp_f32 v{GDT}, v{GDT}
    s_lshl_b32 s22, s{KH}, 4
    v_cvt_pk_bf16_f32 v{GDT}, v{GDT}, v{GDT}
    v_and_b32 v{GDT}, 0xffff0000, v{GDT}""")
def kg_setup(anchors, X0):
    o = f"""v_lshlrev_b32 v{PRM}, s22, v{PRM}
    v_lshlrev_b32 v{PRM+1}, s22, v{PRM+1}
    v_and_b32 v{GER}, 0xffff0000, v{PRM}
    v_mul_f32 v{GER}, {f32hex(LOG2E)}, v{GER}
    v_exp_f32 v{GER}, v{GER}
    v_and_b32 v{GTH}, 0xffff0000, v{PRM+1}
    v_lshlrev_b32 v{PRM+2}, s22, v{PRM+2}
    v_cvt_pk_bf16_f32 v{GER}, v{GER}, v{GER}
    v_lshlrev_b32 v{PRM+3}, s22, v{PRM+3}
    v_and_b32 v{GER}, 0xffff0000, v{GER}
    v_mul_f32 v{GER}, v{GER}, v{GDT}
    v_mul_f32 v{GTH}, v{GTH}, v{GDT}
    v_mul_f32 v{GER}, {f32hex(-LOG2E)}, v{GER}
    v_mul_f32 v{GTH}, 0.15915494, v{GTH}
    v_and_b32 v{X0}, 0xffff0000, v{PRM+2}
    v_and_b32 v{X0+1}, 0xffff0000, v{PRM+3}
    v_mul_f32 v{X0}, v{X0}, v{GDT}
    v_mul_f32 v{X0+1}, v{X0+1}, v{GDT}
    v_add_f32 v{X0}, v{X0}, v{X0}
    v_add_f32 v{X0+1}, v{X0+1}, v{X0+1}""".split("\n")
    for (z, p) in anchors:
        o += f"""v_mul_f32 v{GT}, {f32hex(p)}, v{GER}
        v_mul_f32 v{GT+1}, {f32hex(p)}, v{GTH}
        v_exp_f32 v{GT}, v{GT}
        v_fract_f32 v{GT+1}, v{GT+1}
        v_cos_f32 v{z}, v{GT+1}
        v_sin_f32 v{z+1}, v{GT+1}
        v_mul_f32 v{z}, v{z}, v{GT}
        v_mul_f32 v{z+1}, v{z+1}, v{GT}""".split("\n")
    return o

def krow():
    def row(h, reg): return 8*(reg >> 2) + 4*h + (reg & 3)
    rowp = {}
    for p in range(4): rowp[row(0, p)] = p; rowp[row(1, p)] = p + 4
    for i, (p0, p1) in enumerate(((256, 260), (258, 262), (260, 264), (512, 768), (516, 772), (520, 776), (1024, 1280), (1032, 1288), (1536, 1792), (1544, 1800))):
        rowp[row(0, 4+i)] = p0; rowp[row(1, 4+i)] = p1
    return rowp
XORD = [1, 2, 3, 4, 5, 6, 7, 258, 260, 262, 516, 772, 1544, 1800, 0, 256, 264, 512, 520, 768, 776, 1024, 1032, 1280, 1288, 1536, 1792]
PKA = 160
KACC = 192
GWA, GRA, GFX = 16, 32, 112
def kgen(a, mid):
    Z1, Z8, ZW, ZB, YA = 124, 126, 128, 130, 132
    XF, DT_, SEL, PX, PY = 16, 72, 104, 112, 160
    rowp = krow()
    ps = [0, 8] + XORD[:14] + XORD[15:]
    xr = {p: XF + 2*i for i, p in enumerate(ps)}
    a(f"""s_lshl_b32 s28, s{WV}, 13
    s_add_u32 s28, s28, {KSC}
    v_bfe_u32 v3, v2, 4, 1
    v_lshlrev_b32 v3, 4, v3
    v_mov_b32 v4, 0x3f80
    v_lshlrev_b32 v3, v3, v4
    v_and_b32 v4, 15, v2
    v_lshrrev_b32 v5, 5, v2
    v_lshlrev_b32 v5, 2, v5
    v_sub_u32 v4, v4, v5""")
    for sidx in range(2):
        for u in range(4): a(f"v_cmp_eq_u32 vcc, {8*sidx+u}, v4\ns_nop 1\nv_cndmask_b32 v{SEL+4*sidx+u}, 0, v3, vcc")
    a(f"s_cmp_eq_u32 s{KH}, 1\ns_cbranch_scc1 L_kg_w\ns_waitcnt vmcnt({6 if PF else 0})")
    a.label("L_kg_w")
    a(f"s_waitcnt vmcnt({8*NH})")
    stamp(a, 20)
    kg_dt(a)
    a(J(kg_setup(((Z8, 8.0), (ZB, 128.0), (Z1, 1.0), (ZW, 256.0)), xr[0])))
    for j in range(16):
        ya = cm(YA, Z8 if j == 2 else YA, Z8, GT+4) if j >= 2 else []
        yb = cm(ZB, ZB, Z8, GT+6) if j else []
        a(J(ilv(ya, yb)))
        lo = ("1.0", "0") if j == 0 else ((f"v{Z8}", f"v{Z8+1}") if j == 1 else (f"v{YA}", f"v{YA+1}"))
        a(f"v_cvt_pk_bf16_f32 v{PY+j}, {lo[0]}, v{ZB}\nv_cvt_pk_bf16_f32 v{PY+16+j}, {lo[1]}, v{ZB+1}")
    def swaps(R): return [f"v_permlane32_swap_b32 v{R+8*sx+u}, v{R+8*sx+4+u}" for sx in range(2) for u in range(4)]
    def tmm(R, b, D): return [m32(D, R+4*b, SEL), m32(D, R+8+4*b, SEL+4, D)]
    def tcv(R, b, D): return [f"v_cvt_pk_bf16_f32 v{R+8*(u>>2)+4*b+(u&3)}, v{D+2*u}, v{D+2*u+1}" for u in range(8)]
    def step(p, t):
        if p < 8: return cm(xr[p], xr[p-1], Z1, t)
        if p == 8: return cm(xr[8], xr[0], Z8, t)
        return cm(xr[p], xr[p-256], ZW, t)
    s1 = sum((step(p, GT) for p in (1, 2, 3, 4, 5, 6, 7, 258, 260, 262, 516, 772, 1544, 1800)), [])
    s2 = sum((step(p, GT+2) for p in (8, 256, 264, 512, 520, 768, 776, 1024, 1032, 1280, 1288, 1536, 1792)), [])
    a(J(ilv(s1, s2)))
    stamp(a, 21)
    def px(part):
        o = []
        for r in range(16):
            lo = xr[rowp[r]] + part
            hi = f"{'-' if part else ''}v{xr[rowp[r+16]] + part}" if r + 16 in rowp else "0"
            o.append(f"v_cvt_pk_bf16_f32 v{PX+16*part+r}, {'-' if part else ''}v{lo}, {hi}")
        return o
    D0, D1 = DT_, DT_ + 16
    def mix(mm, va):
        n = (len(va) + len(mm) - 1) // len(mm)
        for i, m in enumerate(mm):
            a(m); a(J(va[i*n:(i+1)*n]))
    a(J(swaps(PY)))
    E0_, E1_ = XF, XF + 16
    mix(tmm(PY, 0, D0) + tmm(PY, 1, D1), swaps(PY+16) + px(0) + px(1))
    mix(tmm(PY+16, 0, E0_) + tmm(PY+16, 1, E1_), tcv(PY, 0, D0) + tcv(PY, 1, D1) + swaps(PX))
    mix(tmm(PX, 0, D0) + tmm(PX, 1, D1), swaps(PX+16) + tcv(PY+16, 0, E0_) + tcv(PY+16, 1, E1_))
    mix(tmm(PX+16, 0, E0_) + tmm(PX+16, 1, E1_), tcv(PX, 0, D0) + ["s_nop 3"] + tcv(PX, 1, D1))
    a("s_nop 1")
    mix([m32(KACC, PX+4*q, PY+4*q, KACC if q else None) for q in (0, 2, 1, 3)], tcv(PX+16, 0, E0_) + ["s_nop 3"] + tcv(PX+16, 1, E1_))
    a("s_nop 1")
    for q in (0, 2, 1, 3): a(m32(KACC, PX+16+4*q, PY+16+4*q, KACC))
    stamp(a, 22)

KP = 208
def kpack(a, kdst):
    Jv, H, AD = 3, 4, 12
    R = KACC; P0 = KP
    a(f"""v_and_b32 v{Jv}, 31, v2
    v_lshrrev_b32 v{H}, 5, v2
    v_lshlrev_b32 v{AD}, 4, v{Jv}
    v_sub_u32 v{AD}, s{kdst}, v{AD}
    v_lshlrev_b32 v13, 3, v{H}
    v_sub_u32 v180, v{AD}, v13
    v_lshlrev_b32 v13, 9, v{H}
    v_sub_u32 v181, v{AD}, v13
    v_and_b32 v{H}, 1, v{Jv}
    v_cmp_eq_u32 vcc, 0, v{H}
    v_lshlrev_b32 v{Jv}, 2, v{Jv}
    v_add_u32 v182, s{kdst}, v{Jv}
    v_lshlrev_b32 v15, 16, v{VD}
    s_mov_b64 exec, 1
    v_add_f32 v{R}, v{R}, v15
    s_mov_b64 exec, -1""")
    cv = lambda d, lo, hi: a(f"v_cvt_pk_bf16_f32 v{d}, v{lo}, v{hi}")
    cv(P0, R+3, R+2); cv(P0+1, R+1, R+0)
    cv(P0+2, R+6, R+5); cv(P0+3, R+4, R+4)
    cv(P0+4, R+9, R+9); cv(P0+5, R+8, R+8); cv(P0+6, R+8, R+7); cv(P0+7, R+7, R+7)
    for sidx in range(2):
        ra, rb = R+10+2*sidx, R+11+2*sidx
        d = P0 + 8 + 4*sidx
        a(f"v_cndmask_b32 v13, v{rb}, v{ra}, vcc")
        cv(d, rb, rb); cv(d+1, rb, 13); cv(d+2, ra, ra); cv(d+3, ra, ra)
def kwrite(a, vzero):
    P0 = KP
    a(f"""ds_write_b64 v180, {v(P0,2)} offset:{4080+8}
    ds_write_b64 v180, {v(P0+2,2)} offset:{4080-512+8}
    ds_write_b128 v181, {v(P0+4,4)} offset:{4080-1024}
    ds_write_b128 v181, {v(P0+8,4)} offset:{4080-2048}
    ds_write_b128 v181, {v(P0+12,4)} offset:{4080-3072}
    ds_write_b32 v182, v{vzero} offset:4096""")

CAA, CBA, CACC = 10, 11, 148
def conv_setup(a, cbase):
    a(f"""v_and_b32 v3, 3, v2
    v_mul_u32_u24 v{CAA}, {UST}, v3
    v_bfe_u32 v3, v2, 2, 2
    v_lshl_add_u32 v{CAA}, v3, 7, v{CAA}
    v_lshrrev_b32 v4, 4, v2
    v_lshl_add_u32 v{CAA}, v4, 4, v{CAA}
    v_add_u32 v{CAA}, s{cbase}, v{CAA}
    v_and_b32 v3, 15, v2
    v_lshlrev_b32 v3, 3, v3
    v_lshlrev_b32 v{CBA}, 4, v4
    v_sub_u32 v{CBA}, v{CBA}, v3
    v_add_u32 v{CBA}, {KOFF+120}, v{CBA}
    v_add_u32 v{CBA}, s{cbase}, v{CBA}""")
def conv(a, ydst, fill):
    FA = [16, 80]; FB = [48, 112]; ACC = CACC
    def loads(b, extra):
        out = []
        for k in range(8):
            out += [f"ds_read_b64 {v(FB[b]+4*k,2)}, v{CBA} offset:{512*(7-k)+extra}", f"ds_read_b64 {v(FB[b]+4*k+2,2)}, v{CBA} offset:{512*(7-k)+8+extra}",
                    f"ds_read_b128 {v(FA[b]+4*k,4)}, v{CAA} offset:{512*k+extra}"]
        return out
    pairs = sorted([(i, j) for i in range(8) for j in range(8) if i + j < 8], key=lambda p: (max(p), p))
    def mm(b, i, j, first=False): return m16(ACC+4*(i+j), FA[b]+4*i, FB[b]+4*j, None if first else ACC+4*(i+j))
    a("s_waitcnt lgkmcnt(0)")
    l0 = loads(0, 0); l1 = loads(1, 64)
    seq = l0 + l1
    a(J(seq[:12])); pos = 12
    seen = set(); lvl = -1
    for n, (i, j) in enumerate(pairs):
        if max(i, j) > lvl:
            lvl = max(i, j)
            a(f"s_waitcnt lgkmcnt({min(14, pos - 3*(lvl+1))})")
        a(mm(0, i, j, i+j not in seen)); seen.add(i+j)
        if pos < 48: a(seq[pos]); pos += 1
    assert pos == 48
    a("s_mov_b32 s53, 0\n.p2align 3")
    lp = a.newlabel("L_cv")
    a.label(lp)
    for b in (1, 0):
        ld = loads(b ^ 1, 128 if b == 1 else 192)
        a("s_waitcnt lgkmcnt(0)")
        for n, (i, j) in enumerate(pairs):
            a(mm(b, i, j))
            if n < 24: a(ld[n])
            if b == 0 and n == 33: a(f"v_add_u32 v{CAA}, 128, v{CAA}\nv_add_u32 v{CBA}, 128, v{CBA}")
            elif b == 0 and n == 34: a("s_add_u32 s53, s53, 1\ns_cmp_lt_u32 s53, 3")
    a(f"s_cbranch_scc1 {lp}")
    a("v_lshlrev_b32 v12, 3, v2\ns_waitcnt lgkmcnt(0)")
    out = []
    for beta in (7, 6, 5, 4, 3, 2, 1, 0):
        for i in range(beta + 1):
            a(mm(1, i, beta - i))
            last = len(a.lines)
            for _ in range(2):
                if out and out[0][0] <= len(a.lines): a(out.pop(0)[1])
                elif fill: a(fill.pop(0))
        ac = ACC + 4*beta
        out += [(last + 8, t) for t in (f"v_cvt_pk_bf16_f32 v{ac}, v{ac}, v{ac+1}", f"v_cvt_pk_bf16_f32 v{ac+1}, v{ac+2}, v{ac+3}",
                f"buffer_store_dwordx2 {v(ac,2)}, v12, s[12:15], s{ydst} offen offset:{512*beta} sc1")]
    a(J(fill)); fill.clear()
    for d, t in out:
        if d > len(a.lines): a(f"s_nop {d - len(a.lines)}")
        a(t)

def helper(a):
    CB = 26
    UE = 132
    a(f"""s_mov_b32 s33, 0
    s_cmp_ge_u32 s{IDX}, 20
    s_cbranch_scc1 L_h_tr
    s_lshr_b32 s{FCOFF}, s{CHN}, 2
    s_lshl_b32 s{FCOFF}, s{FCOFF}, 7
    s_lshl_b32 s22, s{HW}, 2
    s_add_u32 s{FCOFF}, s{FCOFF}, s22
    s_add_u32 s{FCOFF}, s{FCOFF}, {WS_FC}
    s_lshr_b32 s22, s{CHN}, 6
    s_lshl_b32 s22, s22, {7 if PACKA else 12}
    s_add_u32 s22, s22, {WS_FA}
    v_and_b32 v4, 31, v2
    v_lshl_add_u32 v8, v4, {2 if PACKA else 7}, s22
    s_mul_i32 s{CB}, s{HW}, {CHA}
    s_add_u32 s{CB}, s{CB}, {CVB}
    s_mul_i32 s27, s{CHN}, {RS}
    s_add_u32 s27, s27, {WS_UT}
    s_add_u32 s29, s{CB}, {KOFF}
    s_mov_b32 s33, {POLLC}""")
    skip(a)
    a("s_setprio 1")
    a.label("L_kgen")
    kgen(a, None)
    a(f"s_cmp_eq_u32 s{KH}, 0\ns_cbranch_scc1 L_g_kb")
    stamp(a, 3)
    if P4:
        skip(a)
        a("s_setprio 0\ns_mov_b32 s30, 1\ns_waitcnt vmcnt(0)\ns_barrier")
        if PROF and not LITE: stamp(a, 32)
        a("s_branch L_h_ld")
    else: a("s_setprio 0\ns_waitcnt vmcnt(0)\ns_branch L_h_ld1")
    a.label("L_h_tr")
    a(f"s_cmp_ge_u32 s26, 320\ns_cbranch_scc1 L_h_ld0")
    a.label("L_utile")
    utile(a)
    a("s_branch L_tr_back")
    a.label("L_h_ld0")
    if FB_: a("s_barrier")
    a(f"v_mov_b32 v8, {WS_FA}")
    skip(a); skip(a); skip(a)
    a.label("L_h_ld1")
    a("s_mov_b32 s30, 0")
    def bar():
        a("s_waitcnt vmcnt(16) lgkmcnt(0)\ns_barrier")
        if PROF and not LITE: a(f"s_memtime s[92:93]\ns_add_u32 m0, s30, 32\ns_waitcnt lgkmcnt(0)\nv_writelane_b32 v{PV}, s92, m0")
    def lines(*fs):
        t = Asm()
        for f in fs: f(t)
        return [l.strip() for l in t.lines]
    a.label("L_h_ld")
    bar()
    issue(a, lines(attn_ids, o_maps, kv_units))
    a(f"""s_add_u32 s30, s30, 1
    s_cmp_lg_u32 s30, s33
    s_cbranch_scc1 L_h_l1
    s_cmp_lt_u32 s{IDX}, 20
    s_cbranch_scc1 L_h_pl""")
    get_nonce(a)
    a("s_waitcnt vmcnt(8)")
    set_flag(a, 29, 10)
    stamp(a, 3)
    a("s_branch L_h_l1")
    a.label("L_h_pl")
    a("buffer_load_dword v9, v8, s[12:15], 0 offen sc1")
    a.label("L_h_l1")
    a("s_cmp_lt_u32 s30, 5\ns_cbranch_scc1 L_h_ld")
    bar()
    issue(a, [f's_load_dword s{NONCE}, s[{P_DBG}:{P_DBG+1}], 0'] + lines(tail_setup))
    a("s_add_u32 s30, s30, 1")
    bar()
    issue(a, lines(attn_reset2, lambda t: conv_setup(t, CB)))
    a("s_waitcnt vmcnt(16)\ns_barrier")
    a(f"s_cmp_lg_u32 s{NONCE}, 0\ns_cbranch_scc1 L_h_hn")
    get_nonce(a)
    a.label("L_h_hn")
    arr_init(a)
    a(f"""s_cmp_lt_u32 s{IDX}, 20
    s_cbranch_scc1 L_h_k7
    s_waitcnt vmcnt(0) lgkmcnt(0)
    s_barrier""")
    y_setup(a)
    a("s_branch L_attn")
    a.label("L_h_ids")
    a("s_mov_b32 s33, 2\ns_branch L_setup")
    a.label("L_h_k7")
    def uloads():
        for i in range(4): a(f"buffer_load_dwordx4 {v(132+4*i,4)}, v{DMV}, s[12:15], s27 offen offset:{1024*i} sc1")
    stamp(a, 39)
    a(f"s_sub_u32 s28, s28, 32768\nv_add_u32 v6, s28, v{DMV}\nv_cmp_ne_u32 vcc, s{NONCE}, v9\ns_mov_b32 s31, 0")
    for i in range(4): a(f"ds_read_b128 {v(16+4*i,4)}, v6 offset:{1024*i}")
    a("s_cbranch_vccnz L_h_nu")
    uloads()
    a("s_mov_b32 s31, 1\ns_branch L_h_n2")
    a.label("L_h_nu")
    a("buffer_load_dword v9, v8, s[12:15], 0 offen sc1")
    a.label("L_h_n2")
    a("s_waitcnt lgkmcnt(0)")
    for i in range(14): a(f"v_add_f32 v{KACC+i}, v{KACC+i}, v{16+i}")
    kpack(a, 29)
    a(f"""v_lshlrev_b32 v5, 3, v2
    v_min_u32 v5, 376, v5
    v_add_u32 v5, s{CB}, v5
    v_mov_b32 v6, 0
    v_mov_b32 v7, 0""")
    stamp(a, 46)
    a("s_cmp_eq_u32 s31, 1\ns_cbranch_scc1 L_h_w4\ns_waitcnt vmcnt(1)")
    a.label("L_h_w4")
    a("s_waitcnt vmcnt(4)\ns_barrier")
    stamp(a, 4)
    a("s_cmp_eq_u32 s31, 1\ns_cbranch_scc1 L_h_hu")
    a("s_waitcnt vmcnt(0)")
    poll(a, [8], 1, 9, preloaded=True)
    uloads()
    a.label("L_h_hu")
    if PROF: a(f"v_writelane_b32 v{PV}, s31, 30")
    kwrite(a, 6)
    for r in range(4): a(f"ds_write_b64 v5, v[6:7] offset:{r*UST}")
    a(f"""s_mul_i32 s27, s{CHN}, {RS}
    s_add_u32 s27, s27, {WS_YT}
    v_add_u32 v4, s{CB}, v{DMV}
    s_waitcnt vmcnt(0)""")
    stamp(a, 5)
    for i in range(4):
        e = 132 + 4*i
        C2, C1, C0, PP = 16 + 14*i, 20 + 14*i, 24 + 14*i, 28 + 14*i
        a(f"ds_write_b128 v4, {v(e,4)} offset:{3*UST + 384 + 1024*i}")
        if i == 0: a(f"v_mov_b32 v{PP}, 0\nv_mov_b32 v{C1}, 0\ns_nop 0")
        else: a(f"v_readlane_b32 s22, v{e-2}, 63\nv_readlane_b32 s23, v{e-1}, 63\ns_nop 0\nv_mov_b32 v{PP}, s22\nv_mov_b32 v{C1}, s23\ns_nop 0")
        a(f"v_mov_b32_dpp v{PP}, v{e+2} wave_shr:1 row_mask:0xf bank_mask:0xf")
        a(f"v_mov_b32_dpp v{C1}, v{e+3} wave_shr:1 row_mask:0xf bank_mask:0xf")
        for j in range(3): a(f"v_mov_b32 v{C1+1+j}, v{e+j}")
        a(f"ds_write_b128 v4, {v(C1,4)} offset:{UST + 384 + 1024*i}")
        a(f"v_alignbit_b32 v{C2}, v{e}, v{C1}, 16")
        for j in range(1, 4): a(f"v_alignbit_b32 v{C2+j}, v{e+j}, v{e+j-1}, 16")
        a(f"ds_write_b128 v4, {v(C2,4)} offset:{2*UST + 384 + 1024*i}")
        a(f"v_alignbit_b32 v{C0}, v{C1}, v{PP}, 16")
        for j in range(3): a(f"v_mov_b32 v{C0+1+j}, v{C2+j}")
        a(f"ds_write_b128 v4, {v(C0,4)} offset:{384 + 1024*i}")
    stamp(a, 6)
    t = Asm(); zero_s(t); y_setup(t)
    fill = [l.strip() for l in t.lines]
    conv(a, 27, fill)
    assert not fill
    stamp(a, 7)
    a("s_branch L_attn2")

def window1(a):
    get_nonce(a)
    a(f"""v_mov_b32 v3, {ARRW}
    v_mov_b32 v4, 1
    s_lshl_b32 s22, s2, 7
    s_add_u32 s26, s22, {WS_FB}""")
    zero_state(a)
    stamp(a, 4)
    a(f"""s_waitcnt vmcnt(0)
    s_mov_b64 exec, 1
    ds_add_rtn_u32 v4, v3, v4
    s_mov_b64 exec, -1
    s_waitcnt lgkmcnt(0)
    v_readfirstlane_b32 s22, v4
    s_mov_b32 s33, 0
    s_cmp_lg_u32 s22, 3
    s_cbranch_scc1 L_w1_r""")
    diag_wait(a, '--dfl')
    stamp(a, 5)
    stamp(a, 53, True)
    set_flag(a, 26, 6)
    a(f"""v_mov_b32 v16, 0x3f803f80
    v_mov_b32 v17, 0x00003f80
    v_mov_b32 v18, 0x3f803f80
    v_mov_b32 v19, 0x00003f80
    ds_write_b128 v{DMV}, v[16:19] offset:{CONSTP}
    ds_write_b32 v6, v6 offset:{FLAGW}
    s_mov_b32 s33, 1
    s_branch L_setup""")
    a.label("L_w1_r")
    a("s_setprio 0")
    a.label("L_setup")
    attn_reset(a)
    tail_setup(a)
    y_setup(a)
    a("""s_cmp_eq_u32 s33, 2
    s_cbranch_scc1 L_attn
    s_cmp_eq_u32 s33, 0
    s_cbranch_scc1 L_at_b2""")
    main_pre(a)
    a("s_mov_b32 s50, 0")
    a.label("L_w1_p")
    a(f"""buffer_load_dword v20, v{PL1}, s[12:15], 0 offen sc1
    buffer_load_dword v24, v{PL2}, s[12:15], 0 offen sc1
    s_add_u32 s50, s50, 1
    s_waitcnt vmcnt(0)
    v_cmp_ne_u32 vcc, s{NONCE}, v20
    v_cmp_ne_u32 s[26:27], s{NONCE}, v24
    s_cmp_gt_u32 s50, {SPIN}
    s_cbranch_scc1 L_w1_q
    s_or_b32 s28, vcc_lo, vcc_hi
    s_and_b32 s22, s28, 0x01010101
    s_or_b32 s22, s22, s27
    s_cbranch_scc1 L_w1_p""")
    a.label("L_w1_q")
    stamp(a, 6)
    stamp(a, 54, True)
    a(f"s_add_u32 s23, s{HEAD5}, 160\ns_lshl_b32 s23, s23, 10")
    def qu(u): a(f"""s_mov_b32 m0, {QLDS + 1024*u}
        s_add_u32 s24, s{OOFF}, {(u >> 1)*1024 + (u & 1)*TTS_}
        buffer_load_dwordx4 v{DMV}, s[12:15], s24 offen sc1 lds""")
    def ku(u):
        p = u >> 1
        off = ((p + (155 if p >= 5 else 0)) << 10) + ((u & 1)*8)*TTS_
        a(f"""s_mov_b32 m0, {ARING + p*PST + (u & 1)*1024}
        s_add_u32 s24, s23, {off}
        buffer_load_dwordx4 v{DMV}, s[12:15], s24 offen sc1 lds""")
    for u in range(10): qu(u)
    for u in range(20): ku(u)
    stamp(a, 7)
    poll(a, [PL1, PL2], 1, 20, preloaded=True)
    a("s_waitcnt vmcnt(0)\ns_branch L_at_b2")

Q0 = [16, 22]; Q1 = [20, 26]
KF = [28, 34]; VF = [40, 48]; P = [56, 64]; S = [72, 88]; O = [104, 120]
def set_m(a, q, M):
    a(f"""v_sub_f32 v{M}, 0, v{M}
    v_and_b32 v{M+1}, 0xffff0000, v{M}
    v_sub_f32 v{M+2}, v{M}, v{M+1}
    v_and_b32 v{M+3}, 0xffff0000, v{M+2}
    v_sub_f32 v{M+2}, v{M+2}, v{M+3}
    v_lshrrev_b32 v{M+1}, 16, v{M+1}
    v_or_b32 v{M+1}, v{M+1}, v{M+3}
    v_lshrrev_b32 v{M+2}, 16, v{M+2}
    v_cndmask_b32 v{Q1[q]}, v{M+1}, v{Q1[q]}, vcc
    v_cndmask_b32 v{Q1[q]+1}, v{M+2}, v{Q1[q]+1}, vcc""")
def tilemax(a, M, s, first):
    if first: a(f"v_max3_f32 v{M}, v{s}, v{s+1}, v{s+2}")
    else: a(f"v_max3_f32 v{M}, v{M}, v{s}, v{s+1}\nv_max_f32 v{M}, v{M}, v{s+2}")
    for i in range(3, 15, 2): a(f"v_max3_f32 v{M}, v{M}, v{s+i}, v{s+i+1}")
    a(f"v_max_f32 v{M}, v{M}, v{s+15}")
def halfmax(a, M):
    a(f"v_mov_b32 v{M+1}, v{M}\ns_nop 1\nv_permlane32_swap_b32 v{M}, v{M+1}\nv_max_f32 v{M}, v{M}, v{M+1}")

def kv_units(a):
    a(f"""s_lshr_b32 s22, s{WV}, 1
    s_and_b32 s23, s{WV}, 1
    s_mul_i32 s{KL[0]}, s22, {PST}
    s_lshl_b32 s24, s23, 10
    s_add_u32 s{KL[0]}, s{KL[0]}, s24
    s_add_u32 s{KL[0]}, s{KL[0]}, {ARING}
    s_add_u32 s{KL[1]}, s{KL[0]}, {4*PST}
    s_add_u32 s{KL[2]}, s{KL[0]}, {8*PST}
    s_add_u32 s24, s22, s{HEAD5}
    s_lshl_b32 s24, s24, 10
    s_mul_i32 s23, s23, {8*TTS_}
    s_add_u32 s24, s24, s23
    s_add_u32 s{KS[0]}, s24, {160*1024 + TTS_}
    s_add_u32 s{KS[2]}, s24, {(160+8+155)*1024 + TTS_}
    s_cmp_eq_u32 s22, 0
    s_cselect_b32 s23, 0, {155*1024}
    s_add_u32 s{KS[1]}, s{KS[0]}, s23
    s_add_u32 s{KS[1]}, s{KS[1]}, 4096""")
def attn_reset(a):
    kv_units(a); attn_reset2(a)
def attn_reset2(a):
    a(f"""v_and_b32 v3, 31, v2
    v_lshlrev_b32 v3, 3, v3
    v_lshrrev_b32 v5, 5, v2
    s_lshl_b32 s{KHOFF}, s{KH}, 10
    s_lshl_b32 s22, s{HW}, 1
    s_add_u32 s22, s22, s{KH}
    s_lshl_b32 s22, s22, 8
    v_add_u32 v{QA4}, s22, v3
    v_lshl_add_u32 v{QA0}, v5, 12, v{QA4}
    v_mul_u32_u24 v{KA}, {2*PST}, v5
    s_add_u32 s22, s{KHOFF if M0 else MODE+53-MODE}, {ARING}""".replace(f"s{MODE+53-MODE}", "0"))
    a(f"""v_add3_u32 v{KA}, v{KA}, v3, s22
    v_xor_b32 v{MS4}, 1, v5
    s_add_u32 s22, s22, {4*PST - CONSTP}
    v_mad_u32_u24 v{K4}, v{MS4}, s22, v3
    v_add_u32 v{K4}, {CONSTP}, v{K4}
    v_bfe_u32 v3, v2, 2, 2
    v_lshl_add_u32 v5, v5, 2, v3
    v_and_b32 v4, 3, v2
    v_bfe_u32 v3, v2, 4, 1
    v_lshl_add_u32 v4, v3, 2, v4
    v_cmp_gt_u32 vcc, 5, v4
    v_mul_u32_u24 v4, {PST}, v4
    s_add_u32 s22, s{KHOFF}, {ARING + 5*PST}
    v_add_u32 v4, s22, v4
    v_cndmask_b32 v{VA}, {CONSTP}, v4, vcc
    v_cndmask_b32 v{MSK}, 0, 1, vcc
    v_lshl_add_u32 v{VA}, v5, 3, v{VA}
    s_sub_u32 s24, 106, s{WV}
    s_mul_i32 s{WOS}, s24, {6*1280}
    s_lshr_b32 s22, s{IDX}, 2
    s_mul_i32 s22, s22, 160
    s_add_u32 s{WOS}, s{WOS}, s22
    s_mul_i32 s{WOL}, s24, 960
    s_add_u32 s{WOL}, s{WOL}, {WOB}""")
YT, OSA, OST, FIW, FS0 = range(235, 240)
YT, FIW, FS0 = 253, 251, 250
YV, FCA = 238, 239
YS, TYS = 21, 20
WAO, WAT = 248, 249
TOS, TTS, TFS = 96, 97, 98
def o_maps(a):
    a(f"""v_and_b32 v3, 15, v2
    v_bfe_u32 v4, v2, 4, 1
    v_mul_u32_u24 v4, {OG}, v4
    v_lshl_add_u32 v{OST}, v3, 3, v4
    v_lshl_add_u32 v4, v3, 4, v4
    v_lshrrev_b32 v3, 5, v2
    v_lshl_add_u32 v{OSA}, v3, 8, v4""")
def tail_setup(a):
    a(f"""v_mul_u32_u24 v6, 205, v2
    v_lshrrev_b32 v6, 11, v6
    v_mul_u32_u24 v7, 10, v6
    v_sub_u32 v7, v2, v7
    v_lshlrev_b32 v7, 4, v7
    v_mul_u32_u24 v6, 1280, v6
    v_add_u32 v{WOV}, v6, v7
    v_add_u32 v{FS0}, v6, v{WOV}
    v_bfe_u32 v3, v2, 2, 2
    v_lshrrev_b32 v4, 4, v2
    v_and_b32 v5, 3, v2
    v_lshlrev_b32 v5, 3, v5
    v_lshrrev_b32 v6, 2, v2
    v_lshl_add_u32 v6, v6, 7, v5
    s_lshl_b32 s22, s{HW}, 5
    v_add_u32 v{YT}, s22, v6
    v_lshrrev_b32 v6, 5, v2
    v_mul_u32_u24 v6, 12, v6
    v_lshl_add_u32 v6, v4, 2, v6
    v_add_u32 v6, v6, v3
    v_mad_u32_u24 v7, v4, 20, v3
    s_mul_i32 s22, s{KH}, {320*160}
    s_add_u32 s22, s22, {WOB}
    v_add_u32 v5, s22, v5
    s_movk_i32 s23, 160
    v_mad_u32_u24 v{WAO}, v6, s23, v5
    v_mad_u32_u24 v{WAT}, v7, s23, v5
    v_and_b32 v3, 15, v2
    s_mul_i32 s22, s{HW}, 5120
    v_lshl_add_u32 v4, v4, 3, s22
    v_mad_u32_u24 v{FIW}, v3, s23, v4
    s_lshl_b32 s24, s{XCD}, 2
    s_and_b32 s22, s{IDX}, 3
    s_add_u32 s24, s24, s22
    s_lshl_b32 s24, s24, 2
    s_add_u32 s24, s24, s{HW}
    s_mul_i32 s{TOS}, s24, {OG}
    s_add_u32 s{TOS}, s{TOS}, {WS_O}
    s_lshl_b32 s23, s{KH}, 11
    s_add_u32 s{TTS}, s{TOS}, s23
    s_add_u32 s{TTS}, s{TTS}, 16384
    s_lshl_b32 s23, s{KH}, 13
    s_add_u32 s{TOS}, s{TOS}, s23
    s_lshr_b32 s22, s{IDX}, 2
    s_add_u32 s22, s22, 8
    s_lshl_b32 s23, s{IDX}, 2
    s_add_u32 s23, s23, s{HW}
    s_cmp_eq_u32 s{KH}, 0
    s_cselect_b32 s24, s23, s24
    s_cselect_b32 s22, s{XCD}, s22
    s_mul_i32 s{TFS}, s24, {16*2560}
    s_mul_i32 s22, s22, 160
    s_add_u32 s{TFS}, s{TFS}, s22""")
def y_setup(a):
    a(f"""v_lshrrev_b32 v4, 3, v2
    v_and_b32 v3, 7, v2
    v_lshlrev_b32 v3, 4, v3
    v_mul_u32_u24 v4, {RS}, v4
    v_add_u32 v{YV}, v4, v3
    s_mul_i32 s22, s{XCD}, 10
    s_add_u32 s22, s22, s{WV}
    s_mul_i32 s22, s22, {8*RS}
    s_lshl_b32 s23, s{IDX}, 7
    s_add_u32 s22, s22, s23
    s_add_u32 s{YS}, s22, {WS_YT}
    s_mul_i32 s22, s{XCD}, {20*128}
    s_add_u32 s22, s22, {WS_FC}
    v_min_u32 v3, 19, v2
    v_lshl_add_u32 v{FCA}, v3, 7, s22""")
WFR = [28, 48, 68, 88, 144, 164, 184, 204, 108]
OFR = [128, 132, 224, 228, 232, 236, 240, 244, 136, 140]
def wo_reads(a, i, slot):
    for m in range(5):
        for hf in range(2):
            if i < 8: a(f"ds_read_b64_tr_b16 {v(WFR[slot]+4*m+2*hf,2)}, v{WAO} offset:{(40*i+8*hf)*160+32*m}")
            else: a(f"ds_read_b64_tr_b16 {v(WFR[slot]+4*m+2*hf,2)}, v{WAT} offset:{(160*(i-8)+80*hf+16)*160+32*m}")
def zero_state(a):
    zero_s(a); zero_v(a)
def zero_s(a):
    srd(a, 8, P_WO, 640*1280)
    a(f"""s_mov_b32 s30, 0
    s_mov_b32 s31, 0
    s_mov_b32 s32, {2*SLOT}
    s_mov_b32 s34, {-2*SLOT & 0xffffffff}
    s_mov_b32 s35, {SLOT}""")
def zero_v(a):
    for i in range(0, 32, 2): a(f"v_mov_b64 {v(O[0]+i,2)}, 0")
    for i in range(0, 8, 2): a(f"v_mov_b64 {v(P[1]+i,2)}, 0\nv_mov_b64 {v(VF[1]+i,2)}, 0")

OPF = int(sys.argv[sys.argv.index('--opf')+1]) if '--opf' in sys.argv else 0
def o_prefetch(a, tag):
    a(f"""s_lshl_b32 s22, s{XCD}, 2
    s_and_b32 s23, s{IDX}, 3
    s_add_u32 s22, s22, s23
    s_lshl_b32 s22, s22, 3
    s_lshr_b32 s23, s{IDX}, 2
    s_add_u32 s22, s22, s23
    s_mul_i32 s22, s22, 10
    s_add_u32 s22, s22, s{WV}
    s_lshl_b32 s22, s22, 10
    s_add_u32 s22, s22, {WS_O}
    s_cmp_ge_u32 s{WV}, 2
    buffer_load_dwordx4 v[144:147], v{DMV}, s[12:15], s22 offen sc1
    s_cbranch_scc1 L_opf{tag}
    s_add_u32 s22, s22, 8192
    buffer_load_dwordx4 v[148:151], v{DMV}, s[12:15], s22 offen sc1""")
    a.label(f"L_opf{tag}")

def attention(a):
    def kr(t, b): return [f"ds_read_b64 {v(KF[b],2)}, v{KA} offset:{t*256}", f"ds_read_b64 {v(KF[b]+2,2)}, v{KA} offset:{t*256+PST}", f"ds_read_b64 {v(KF[b]+4,2)}, v{K4} offset:{t*256}"]
    def vr(t, b): return [f"ds_read_b64_tr_b16 {v(VF[b]+2*j,2)}, v{VA} offset:{t*256+j*64}" for j in range(4)]
    def shift(sreg):
        a(f"v_add_u32 v{KA}, s{sreg}, v{KA}\nv_mad_i32_i24 v{K4}, v{MS4}, s{sreg}, v{K4}")
    def qk(q, kb): a(m32(S[q], KF[kb], Q0[q])); a(m32x8(S[q], KF[kb]+4, Q1[q], S[q]))
    zero_s(a)
    a.label("L_attn2")
    a("s_waitcnt lgkmcnt(0)")
    zero_v(a)
    a.label("L_at_b2")
    stamp(a, 8)
    a(f"v_cmp_gt_u32 vcc, 32, v2\nv_xor_b32 v3, 256, v{QA0}\nv_xor_b32 v4, 256, v{QA4}\ns_waitcnt lgkmcnt(0)\ns_barrier")
    diag_wait(a, '--da0')
    stamp(a, 9)
    stamp(a, 50, True)
    a(J(kr(0, 0)))
    a(f"s_cmp_lg_u32 s{MODE}, 0\ns_cbranch_scc1 L_at_havem")
    for q in range(2):
        r0, r4 = (3, 4) if q == 0 else (QA0, QA4)
        a(f"""ds_read_b64 {v(Q0[q],2)}, v{r0} offset:{QLDS}
        ds_read_b64 {v(Q0[q]+2,2)}, v{r0} offset:{QLDS+2048}
        ds_read_b64 {v(Q1[q],2)}, v{r4} offset:{QLDS+8192}""")
    a("s_waitcnt lgkmcnt(0)")
    for q in range(2): a(f"v_cndmask_b32 v{Q1[q]}, 0, v{Q1[q]}, vcc\nv_cndmask_b32 v{Q1[q]+1}, 0, v{Q1[q]+1}, vcc")
    if not M0:
        qk(0, 0); qk(1, 0)
        a("s_nop 7\ns_nop 1")
        for q in range(2):
            tilemax(a, P[0], S[q], True); halfmax(a, P[0]); set_m(a, q, P[0])
    a.label("L_at_havem")
    if not M0:
        shift(KHOFF)
        a(J(kr(0, 0)))
    a(f"s_cmp_eq_u32 s{MODE}, 1\ns_cbranch_scc1 L_at_maxpass")
    a("s_waitcnt lgkmcnt(0)")
    qk(0, 0)
    for j in range(3):
        if j == 2: a(f"s_cmp_ge_u32 s{WV}, 4\ns_cbranch_scc1 L_at_p3")
        a(f"s_add_u32 m0, s{KL[j]}, {SLOT}\ns_nop 0\nbuffer_load_dwordx4 v{DMV}, s[12:15], s{KS[j]} offen sc1 lds")
    a.label("L_at_p3")
    a("s_setprio 3")
    stamp(a, 10)
    a(f".p2align {ALP}")
    for _ in range(ALN): a("s_nop 0")
    def kv(j):
        return f"""s_add_u32 m0, s{KL[j]}, s32
        s_add_u32 s{KS[j]}, s{KS[j]}, {TTS_}
        buffer_load_dwordx4 v{DMV}, s[12:15], s{KS[j]} offen sc1 lds"""
    wo = f"""s_mov_b32 m0, s{WOL}
        s_sub_u32 s{WOL}, s{WOL}, {8*960}
        buffer_load_dwordx4 v{WOV}, s[8:11], s{WOS} offen lds
        s_sub_u32 s{WOS}, s{WOS}, {8*6*1280}"""
    def chunk(kind):
        last = kind == 2
        for T in range(4):
            kb = T & 1
            for q in range(2):
                o = q ^ 1
                fin = last and T == 3
                ex = [f"v_exp_f32 v{S[q]+i}, v{S[q]+i}" for i in range(16)]
                cv = [f"v_cvt_pk_bf16_f32 v{P[q]+i}, v{S[q]+2*i}, v{S[q]+2*i+1}" for i in range(8)]
                kq = kb if q == 0 else kb ^ 1
                vq = kb ^ 1 if q == 0 else kb
                rd = (kr((T+1) & 3, kb ^ 1) + vr(T, kb)) if q == 0 else []
                if fin and q == 0: rd = vr(T, kb)
                st = (2*((T+1) & 3) + q)
                def pr(i):
                    k = 4*st + i
                    P_ = [0, 4, 6, 7] if fin else PRIO
                    if k in P_: a(f"s_setprio {3 - P_.index(k)}")
                if q == 0 and T == 3: a("s_waitcnt vmcnt(0)\ns_barrier")
                if q == 1: a("s_waitcnt lgkmcnt(0)")
                G = [ex[0:4] + cv[0:1], ex[4:6] + cv[1:2] + ex[6:8] + cv[2:3], ex[8:10] + cv[3:4] + ex[10:12] + cv[4:5], ex[12:14] + cv[5:6] + ex[14:16] + cv[6:8]]
                if not (fin and q == 1): a(m32(S[o], KF[kq], Q0[o]))
                pr(0)
                if (T, q) == (1, 1) and kind == 0:
                    a(f"""s_cmp_eq_u32 s31, {2*SLOT}
                    s_cselect_b32 s29, s34, s35""")
                if (T, q) == (1, 1) and kind == 1: a("s_mov_b32 s29, s35")
                a(J(rd[0:3] + G[0]))
                if not (fin and q == 1): a(m32x8(S[o], KF[kq]+4, Q1[o], S[o]))
                pr(1)
                if (T, q) == (3, 1) and kind == 0: a(kv(1))
                if (T, q) == (0, 1) and kind == 0: a(wo)
                if (T, q) == (0, 1) and last:
                    a(f"s_cmp_ge_u32 s{WV}, 3\ns_cbranch_scc1 L_at_w3"); a(wo); a.label("L_at_w3")
                if (T, q) == (2, 1) and not last: shift(29)
                a(J(rd[3:5] + G[1]))
                a(m32(O[o], VF[vq], P[o], O[o])); pr(2)
                a(J(rd[5:7] + G[2]))
                a(m32(O[o], VF[vq]+4, P[o]+4, O[o])); pr(3)
                if (T, q) == (3, 0) and kind == 0:
                    a(kv(0))
                    a(f"s_cmp_lg_u32 s{FCOFF}, 0\ns_cbranch_scc1 L_at_fc")
                    a.label("L_at_back")
                if (T, q) == (0, 0):
                    if kind == 1: a(f"buffer_load_dwordx4 v[136:139], v{FCA}, s[12:15], 0 offen sc1")
                    else: a(wo)
                if (T, q) == (3, 0) and kind == 1:
                    poll(a, [FCA], 4, 136, preloaded=True)
                    a(f"""s_lshl_b32 s23, s{WV}, 10
                    s_add_u32 m0, s23, {YSRC}
                    s_cmp_ge_u32 s{WV}, 2
                    buffer_load_dwordx4 v{YV}, s[12:15], s{YS} offen sc1 lds
                    s_cbranch_scc1 L_at_y1
                    s_add_u32 m0, m0, 8192
                    s_add_u32 s22, s{YS}, {64*RS}
                    buffer_load_dwordx4 v{YV}, s[12:15], s22 offen sc1 lds""")
                    a.label("L_at_y1")
                if (T, q) == (3, 1) and kind == 0:
                    a(f"s_cmp_eq_u32 s{KH}, 1\ns_cbranch_scc1 L_at_n2")
                    a(kv(2))
                    a.label("L_at_n2")
                    a("s_mov_b32 s32, s31\ns_add_u32 s31, s31, s29")
                a(J(G[3][:-2]))
                if q == 1 and T == 3 and not last: a(f"v_mad_i32_i24 v{VA}, v{MSK}, s29, v{VA}")
                if q == 1 and T == 3 and kind == 0: a("s_add_u32 s30, s30, 1\ns_cmp_lt_u32 s30, 6")
                a(J(G[3][-2:]))
    a.label("L_at_loop")
    chunk(0)
    a("s_cbranch_scc1 L_at_loop")
    chunk(1)
    chunk(2)
    a("s_nop 0")
    C = S[1]; A = O[1]
    a(m32(O[1], VF[1], P[1], O[1]))
    a(f"""s_setprio 0
    s_mul_i32 s22, s{WV}, 3072
    v_add_u32 v4, s22, v{DMV}
    s_xor_b32 s22, s{WV}, 4
    s_mul_i32 s22, s22, 3072
    v_add_u32 v5, s22, v{DMV}""")
    a(m32(O[1], VF[1]+4, P[1]+4, O[1]))
    stamp(a, 11)
    if OPF == 1: o_prefetch(a, "e")
    for i in range(3): a(f"ds_write_b128 v4, {v(O[0]+4*i,4)} offset:{EXC + i*1024}")
    a(f"""v_mov_b64 v[6:7], 1
    s_mov_b32 s24, {f32hex(2.0**110)}
    v_pk_add_f32 {v(C,2)}, {v(O[0],2)}, {v(O[0]+2,2)}""")
    for i in range(4, 12, 2): a(f"v_pk_add_f32 {v(C,2)}, {v(C,2)}, {v(O[0]+i,2)}")
    a("s_nop 1")
    for i in range(0, 12, 2): a(f"v_pk_add_f32 {v(C,2)}, {v(C,2)}, {v(O[1]+i,2)}")
    a(f"""v_add_f32 v{C}, v{C}, v{C+1}
    v_add_f32 v{C+1}, v{O[0]+12}, v{O[1]+12}
    v_mul_f32 v{C}, {f32hex(2.0**-17)}, v{C}
    s_lshl_b32 s22, s{HW}, 1
    v_add_f32 v{C}, abs(v{C}), v{C+1}
    s_add_u32 s22, s22, s{KH}
    v_cmp_ngt_f32 vcc, s24, v{C}""")
    if M0:
        a(f"""v_min_f32 v{C+3}, v{O[0]+12}, v{O[1]+12}
        s_mov_b32 s24, {f32hex(2.0**-60)}
        v_cmp_gt_f32 s[26:27], s24, v{C+3}
        s_mul_i32 s22, s22, {2*OG}
        s_or_b64 vcc, vcc, s[26:27]""")
    else: a(f"s_mul_i32 s22, s22, {2*OG}")
    a(f"""s_cbranch_vccz L_at_nf
    ds_write_b32 v7, v6 offset:{FLAGW}""")
    a.label("L_at_nf")
    a(f"""s_add_u32 s23, s22, s{OTAIL}
    s_add_u32 s22, s22, s{OOCT}
    s_waitcnt lgkmcnt(0)
    s_barrier
    ds_read_b32 v6, v7 offset:{FLAGW}""")
    for i in (2, 0, 1): a(f"ds_read_b128 {v(S[0]+4*i,4)}, v5 offset:{EXC + i*1024}")
    a(f"""s_waitcnt lgkmcnt(2)
    v_readfirstlane_b32 s26, v6
    v_pk_add_f32 {v(A+8,2)}, {v(A+8,2)}, {v(S[0]+8,2)}
    v_pk_add_f32 {v(A+10,2)}, {v(A+10,2)}, {v(S[0]+10,2)}
    v_rcp_f32 v{C}, v{A+8}
    s_cmp_gt_u32 s26, s{MODE}
    v_mov_b32 v{C+1}, v{C}
    s_cbranch_scc1 L_at_fallback
    s_waitcnt lgkmcnt(0)
    v_permlane32_swap_b32 v{C}, v{C+1}""")
    for i in range(0, 8, 2): a(f"v_pk_add_f32 {v(A+i,2)}, {v(A+i,2)}, {v(S[0]+i,2)}")
    for i in range(0, 12, 2): a(f"v_pk_mul_f32 {v(A+i,2)}, {v(A+i,2)}, {v(C,2)} op_sel:[0,1] op_sel_hi:[1,1]")
    for i in range(6): a(f"v_cvt_pk_bf16_f32 v{P[0]+i}, v{A+2*i}, v{A+2*i+1}")
    modes = [OSC]
    if '--dbl' in sys.argv: modes = ['sc1', '']
    if '--dbl2' in sys.argv: modes = ['', 'sc1', '']
    if '--osc' in sys.argv: modes = [sys.argv[sys.argv.index('--osc')+1].replace('_', ' ')]
    for md in modes:
        a(f"""buffer_store_dwordx4 {v(P[0],4)}, v{OSA}, s[12:15], s22 offen {md}
        s_mov_b32 exec_hi, 0
        buffer_store_dwordx2 {v(P[0]+4,2)}, v{OST}, s[12:15], s23 offen {md}
        s_mov_b32 exec_hi, -1""")
    if '--dpf' in sys.argv:
        diag_wait(a, '--dpf'); o_prefetch(a, 'd'); a('s_waitcnt vmcnt(0)')
    diag_wait(a, '--dos')
    stamp(a, 12)
    stamp(a, 51, True)

    def cold():
        a.label("L_at_fc")
        set_flag(a, FCOFF, 6)
        a(f"s_mov_b32 s{FCOFF}, 0\ns_branch L_at_back")
        a.label("L_at_fallback")
        a(f"s_mov_b32 s{MODE}, 1")
        a.label("L_at_refill")
        a("s_waitcnt vmcnt(0) lgkmcnt(0)\ns_barrier")
        attn_reset(a)
        for j in range(3):
            if j == 2: a(f"s_cmp_ge_u32 s{WV}, 4\ns_cbranch_scc1 L_at_f3")
            a(f"s_mov_b32 m0, s{KL[j]}\ns_sub_u32 s22, s{KS[j]}, {TTS_}\nbuffer_load_dwordx4 v{DMV}, s[12:15], s22 offen sc1 lds")
        a.label("L_at_f3")
        a("s_waitcnt vmcnt(0)\ns_branch L_attn")
        a.label("L_at_maxpass")
        MX = [P[0], P[1]]
        for q in range(2):
            a(f"v_cndmask_b32 v{Q1[q]}, 0, v{Q1[q]}, vcc\nv_cndmask_b32 v{Q1[q]+1}, 0, v{Q1[q]+1}, vcc\nv_mov_b32 v{MX[q]}, 0xff800000")
        a.label("L_at_mloop")
        for T in range(4):
            a(J(kr(T, 0)) + "\ns_waitcnt lgkmcnt(0)")
            qk(0, 0); qk(1, 0)
            a("s_nop 7\ns_nop 3")
            for q in range(2): tilemax(a, MX[q], S[q], False)
        a("s_add_u32 s30, s30, 1\ns_cmp_eq_u32 s30, 8\ns_cbranch_scc1 L_at_mdone\ns_barrier")
        for j in range(3):
            if j == 2: a(f"s_cmp_ge_u32 s{WV}, 4\ns_cbranch_scc1 L_at_m3")
            a(f"s_mov_b32 m0, s{KL[j]}\ns_nop 0\nbuffer_load_dwordx4 v{DMV}, s[12:15], s{KS[j]} offen sc1 lds\ns_add_u32 s{KS[j]}, s{KS[j]}, {TTS_}")
        a.label("L_at_m3")
        a("s_waitcnt vmcnt(0)\ns_barrier\ns_branch L_at_mloop")
        a.label("L_at_mdone")
        a(f"""s_lshl_b32 s22, s{WV}, 10
        v_add_u32 v4, s22, v{DMV}
        v_xor_b32 v5, 4096, v4""")
        for q in range(2): halfmax(a, MX[q]); a(f"ds_write_b32 v4, v{MX[q]} offset:{ARING + 2*SLOT + 4*q}")
        a("s_waitcnt lgkmcnt(0)\ns_barrier")
        for q in range(2): a(f"ds_read_b32 v{S[0]+q}, v5 offset:{ARING + 2*SLOT + 4*(1-q)}")
        a("s_waitcnt lgkmcnt(0)")
        for q in range(2):
            a(f"v_max_f32 v{MX[q]}, v{MX[q]}, v{S[0]+q}"); set_m(a, q, MX[q])
        a(f"s_mov_b32 s{MODE}, 2\ns_branch L_at_refill")
    return cold

def tail(a):
    ACC = 8
    order = [3, 2, 1, 0]
    THR = int(sys.argv[sys.argv.index('--thr')+1]) if '--thr' in sys.argv else 1
    PD = int(sys.argv[sys.argv.index('--pd')+1]) if '--pd' in sys.argv else 2
    def rlist(i, slot):
        t = Asm(); wo_reads(t, i, slot); return [l.strip() for l in t.lines]
    def loads(x):
        for e in range(2): a(f"buffer_load_dwordx4 {v(OFR[2*x+e],4)}, v5, s[12:15], s{TOS if x < 2 else 27} offen offset:{((2*x+e)&3)*1024} sc1")
        a(f"buffer_load_dwordx2 {v(OFR[8]+2*x,2)}, v1, s[12:15], s{TTS} offen offset:{x*512} sc1")
    def check(x, mask):
        r0, r1, rt = OFR[2*x], OFR[2*x+1], OFR[8] + 2*x
        a(f"""v_max3_u32 v4, v{r0}, v{r0+1}, v{r0+2}
        v_max3_u32 v4, v4, v{r0+3}, v{r1}
        v_max3_u32 v4, v4, v{r1+1}, v{r1+2}
        v_max3_u32 v4, v4, v{r1+3}, v{rt}
        v_max_u32 v4, v4, v{rt+1}""")
        if mask: a("v_and_b32 v4, s31, v4")
        a("v_cmp_eq_u32 vcc, -1, v4")
    def rowstore(base, T):
        for j in range(3): a(f"ds_read_b128 {v(T+4*j,4)}, v6 offset:{base + 960*j}")
        a(f"s_mov_b32 exec_hi, 0x0fffffff\ns_add_u32 s22, s{TFS}, {6*2560}\ns_add_u32 s23, s{TFS}, {12*2560}")
        for j in range(3):
            if j == 2: a("s_mov_b32 exec_hi, 0xff")
            a(f"s_waitcnt lgkmcnt({2-j})\nbuffer_store_dwordx4 {v(T+4*j,4)}, v{FS0}, s[8:11], s{[TFS, 22, 23][j]} offen {OUTSC}")
        a("s_mov_b32 exec_hi, -1")
    srd(a, 8, P_OUT, 2048*2560)
    a(f"""v_mov_b32 v5, v{DMV}
    v_lshlrev_b32 v1, 3, v2
    s_mov_b32 s50, 0
    s_mov_b32 s29, 15
    s_add_u32 s27, s{TOS}, 4096
    s_mul_i32 s22, s{HW}, 5120
    v_add_u32 v6, s22, v5
""")
    Y = WFR[8]
    a(f"s_cmp_eq_u32 s{KH}, 1\ns_cbranch_scc1 L_t_ny")
    for m in range(5): a(f"ds_read_b64_tr_b16 {v(Y+2*m,2)}, v{YT} offset:{YSRC + m*2048}")
    for m in range(5): a(f"s_waitcnt lgkmcnt(4)\nds_write_b64 v{FIW}, {v(Y+2*m,2)} offset:{PART + 32*m}")
    rowstore(PART, WFR[3])
    a.label("L_t_ny")
    for i in (7, 6, 5, 4, 3, 2, 1, 0, 8): wo_reads(a, i, i)
    for i in range(0, 20, 2): a(f"v_mov_b64 {v(ACC+i,2)}, 0")
    stamp(a, 44, True)
    a.label("L_t_loop")
    for x in order:
        a(f"s_bitcmp0_b32 s29, {x}\ns_cbranch_scc1 L_t_no{x}")
        loads(x)
        a.label(f"L_t_no{x}")
    a(f"""s_add_u32 s50, s50, 1
    s_cmp_gt_u32 s50, {SPIN}
    s_cselect_b32 s31, 0, -1
    s_mov_b32 s28, s29
    s_waitcnt lgkmcnt(0)""")
    for n, x in enumerate(order):
        a(f"s_bitcmp0_b32 s28, {x}\ns_cbranch_scc1 L_t_co{x}")
        if x > 0:
            a(f"s_and_b32 s22, s28, {(1 << x) - 1}\ns_bcnt1_i32_b32 s22, s22")
            for k in range(x, 0, -1):
                a(f"s_waitcnt vmcnt({3*k})\ns_cmp_eq_u32 s22, {k}\ns_cbranch_scc1 L_t_w{x}")
        a("s_waitcnt vmcnt(0)")
        a.label(f"L_t_w{x}")
        check(x, True)
        a(f"s_cbranch_vccnz L_t_co{x}\ns_bitset0_b32 s29, {x}")
        for e in (1, 0):
            for m in range(5): a(m16(ACC+4*m, WFR[2*x+e]+4*m, OFR[2*x+e], ACC+4*m))
        a.label(f"L_t_co{x}")
    if '--tl' in sys.argv:
        a("s_cmp_lg_u32 s50, 1\ns_cbranch_scc1 L_t_tl")
        stamp(a, 45, True)
        a(f"v_writelane_b32 v{PV}, s29, 28")
        a.label("L_t_tl")
    a("s_cmp_lg_u32 s29, 0\ns_cbranch_scc1 L_t_loop")
    wo_reads(a, 9, 7)
    a("s_waitcnt lgkmcnt(10)")
    for m in range(5): a(m16(ACC+4*m, WFR[8]+4*m, OFR[8], ACC+4*m))
    for m in range(5):
        a(f"s_waitcnt lgkmcnt({8-2*m})")
        a(m16(ACC+4*m, WFR[7]+4*m, OFR[9], ACC+4*m))
    stamp(a, 15)
    stamp(a, 52, True)
    if PROF: a(f"v_writelane_b32 v{PV}, s50, 29")
    T = 128
    a(f"s_cmp_eq_u32 s{KH}, 1\ns_cbranch_scc1 L_t_r1\ns_nop 3")
    for m in range(5): a(f"ds_write_b128 v6, {v(ACC+4*m,4)} offset:{PART + m*1024}")
    a("s_waitcnt lgkmcnt(0)\ns_barrier\ns_branch L_t_fin")
    a.label("L_t_r1")
    a("s_barrier")
    for m in range(5): a(f"ds_read_b128 {v(T+4*m,4)}, v6 offset:{PART + m*1024}")
    for m in range(5):
        a(f"s_waitcnt lgkmcnt(4)")
        for i in range(0, 4, 2): a(f"v_pk_add_f32 {v(ACC+4*m+i,2)}, {v(ACC+4*m+i,2)}, {v(T+4*m+i,2)}")
        a(f"v_cvt_pk_bf16_f32 v{ACC+4*m}, v{ACC+4*m}, v{ACC+4*m+1}\nv_cvt_pk_bf16_f32 v{ACC+4*m+1}, v{ACC+4*m+2}, v{ACC+4*m+3}")
        a(f"ds_write_b64 v{FIW}, {v(ACC+4*m,2)} offset:{OIMG + 32*m}")
    stamp(a, 46, True)
    rowstore(OIMG, T+24)
    a.label("L_t_fin")

def main(path):
    a = Asm()
    nm = NAME + "_kernel"
    a(f".globl {nm}\n.p2align 8\n.type {nm},@function")
    a.label(nm)
    if '--early' in sys.argv: a("s_memrealtime s[96:97]")
    a(f"""s_cmp_ge_u32 s2, 256
    s_cbranch_scc1 L_end
    s_load_dwordx16 s[64:79], s[0:1], 0
    s_load_dwordx8 s[80:87], s[0:1], 64
    s_load_dwordx2 s[88:89], s[0:1], 96
    v_lshrrev_b32 v1, 6, v0
    v_and_b32 v2, 63, v0
    v_readfirstlane_b32 s{WV}, v1
    s_and_b32 s{XCD}, s2, 7
    s_lshr_b32 s{IDX}, s2, 3
    s_cmp_lg_u32 s{WV}, 7
    s_cbranch_scc1 L_nopf
    s_cmp_ge_u32 s{IDX}, (L_code_end-{nm})/1024
    s_cbranch_scc1 L_nopf
    s_getpc_b64 s[22:23]""")
    a.label("L_pc")
    a(f"""s_lshl_b32 s24, s{IDX}, 10
    s_sub_u32 s22, s22, L_pc-{nm}
    s_subb_u32 s23, s23, 0
    v_lshl_add_u32 v4, v2, 4, s24
    v_mov_b32 v5, s23
    v_add_co_u32 v4, vcc, s22, v4
    s_nop 1
    v_addc_co_u32 v5, vcc, 0, v5, vcc
    global_load_dwordx4 v[220:223], v[4:5], off""")
    a.label("L_nopf")
    if PROF:
        a(f"v_mov_b32 v{PV}, 0\ns_memrealtime s[90:91]\ns_memtime s[92:93]")
    a(f"""s_and_b32 s{HW}, s{WV}, 3
    s_lshr_b32 s{KH}, s{WV}, 2
    s_mul_i32 s{CHN}, s{XCD}, 20
    s_add_u32 s{CHN}, s{CHN}, s{IDX}
    s_lshl_b32 s{CHN}, s{CHN}, 2
    s_add_u32 s{CHN}, s{CHN}, s{HW}
    s_lshl_b32 s22, s{CHN}, 8
    v_lshl_add_u32 v6, v2, 2, s22
    s_lshl_b32 s22, s{CHN}, 1
    v_mov_b32 v7, s22
    v_lshlrev_b32 v{DMV}, 4, v2
    s_mov_b32 s{FCOFF}, 0
    s_mov_b32 s{MODE}, 0""")
    a(f"""s_cmp_ge_u32 s{IDX}, 20
    s_cbranch_scc1 L_e_np
    s_waitcnt lgkmcnt(0)""")
    for i in range(4): a(f"global_load_dword v{PRM+i}, v6, s[{P_LA+2*i}:{P_LA+2*i+1}] {PNT}")
    a(f"""global_load_ushort v{PRM+4}, v7, s[{P_DT}:{P_DT+1}]
    global_load_ushort v{VD}, v7, s[{P_D}:{P_D+1}]""")
    a.label("L_e_np")
    loader_math(a)
    a("s_waitcnt lgkmcnt(0)")
    if PROF: a(f"v_writelane_b32 v{PV}, s90, 0\nv_writelane_b32 v{PV}, s92, 1")
    srd(a, 60, P_X, 2048*1280)
    srd(a, 8, P_W, 640*3840)
    srd(a, 12, P_WS, WS_SIZE)
    if PF:
        a(f"""s_cmp_eq_u32 s{KH}, 1
        s_cbranch_scc1 L_nopx
        s_lshl_b32 s22, s{IDX}, 2
        s_add_u32 s22, s22, s{HW}
        s_lshl_b32 s23, s{XCD}, 7
        s_add_u32 s23, s23, s22
        s_mul_i32 s23, s23, 2560
        buffer_load_dwordx4 v[208:211], v{DMV}, s[60:63], s23 offen
        buffer_load_dwordx4 v[208:211], v{DMV}, s[60:63], s23 offen offset:1024
        buffer_load_dwordx4 v[208:211], v{DMV}, s[60:63], s23 offen offset:1536
        s_mul_i32 s22, s22, 3
        s_lshr_b32 s23, s{XCD}, 1
        s_mul_i32 s23, s23, {160*3840}
        s_and_b32 s24, s{XCD}, 1
        s_mul_i32 s24, s24, 1792
        s_add_u32 s23, s23, s24""")
        for j in range(3):
            a(f"""s_lshr_b32 s24, s22, 1
            s_mul_i32 s24, s24, 3840
            s_and_b32 s26, s22, 1
            s_lshl_b32 s26, s26, 10
            s_add_u32 s24, s24, s26
            s_add_u32 s24, s24, s23
            s_cmp_ge_u32 s22, 320
            s_cselect_b32 s24, 0x7000000, s24
            s_add_u32 s22, s22, 1
            buffer_load_dwordx4 v[208:211], v{DMV}, s[8:11], s24 offen""")
        a.label("L_nopx")
    if TLB:
        a(f"s_cmp_lg_u32 s{WV}, 6\ns_cbranch_scc1 L_notlb")
        srd(a, 4, P_OUT, 2048*2560)
        if TLB == 1:
            a(f"""v_lshlrev_b32 v3, 20, v2
            s_mov_b64 exec, 0x3ffff
            buffer_load_dword v220, v3, s[12:15], 0 offen
            s_mov_b64 exec, 0x1f
            buffer_load_dword v221, v3, s[4:7], 0 offen""")
        else:
            a(f"""s_mul_i32 s22, s{IDX}, {9*65536}
            v_lshlrev_b32 v3, 16, v2
            s_mov_b64 exec, 0x1ff
            buffer_load_dword v220, v3, s[12:15], s22 offen
            s_mul_i32 s22, s{IDX}, {3*65536}
            s_mov_b64 exec, 7
            buffer_load_dword v221, v3, s[4:7], s22 offen""")
        srd(a, 4, P_WO, 640*1280)
        a(f"""v_lshlrev_b32 v3, 16, v2
        s_mov_b64 exec, 0x1fff
        buffer_load_dword v222, v3, s[4:7], 0 offen
        s_mov_b64 exec, -1""")
        a.label("L_notlb")
    a(f"""s_cmp_ge_u32 s{IDX}, 30
    s_cbranch_scc1 L_e_tr
    s_cmp_lt_u32 s{IDX}, 20
    s_cselect_b32 s22, 1, 0
    s_cmp_lg_u32 s22, s{KH}
    s_cbranch_scc1 L_e_x
    s_cmp_eq_u32 s{KH}, 1
    s_cbranch_scc1 L_g_pro
    s_barrier""")
    a.label("L_g_pro")
    issue(a)
    stamp(a, 41)
    a(f"s_cmp_eq_u32 s{KH}, 0\ns_cbranch_scc1 L_gemm")
    if NH == 2: issue(a)
    else: skip(a)
    a("s_branch L_helper")
    a.label("L_e_x")
    a(f"""s_cmp_eq_u32 s{KH}, 1
    s_cbranch_scc1 L_nn
    s_setprio 2
    s_branch L_kgen""")
    a.label("L_e_tr")
    a(f"""s_lshl_b32 s26, s{XCD}, 1
    s_add_u32 s26, s26, s{IDX}
    s_sub_u32 s26, s26, 30
    s_lshl_b32 s26, s26, 3
    s_add_u32 s26, s26, s{WV}
    s_lshl_b32 s27, s{WV}, 13
    s_add_u32 s27, s27, 16384
    s_branch L_e_ut""")
    a.label("L_nn")
    a(f"""s_mul_i32 s26, s{XCD}, 10
    s_add_u32 s26, s26, s{IDX}
    s_mul_i32 s22, s{HW}, 80
    s_add_u32 s26, s26, s22
    s_add_u32 s26, s26, {128 - 20}
    s_lshl_b32 s27, s{HW}, 13
    s_add_u32 s27, s27, {SCR}
    s_cmp_lt_u32 s26, 320
    s_cbranch_scc1 L_e_ut
    s_cmp_lg_u32 s26, {128 + 240}
    s_cbranch_scc1 L_e_eb
    s_memrealtime s[22:23]
    v_mov_b32 v3, 0
    s_waitcnt lgkmcnt(0)
    s_or_b32 s22, s22, 1
    v_mov_b32 v4, s22
    s_mov_b64 exec, 1
    global_store_dword v3, v4, s[{P_DBG}:{P_DBG+1}] sc1
    s_mov_b64 exec, -1
    s_branch L_e_eb""")
    a.label("L_e_ut")
    utile_issue(a)
    a.label("L_e_eb")
    a("s_barrier")
    a(f"s_cmp_ge_u32 s{IDX}, 30\ns_cbranch_scc1 L_utile")
    a.label("L_helper")
    helper(a)
    a.label("L_g_kb")
    skip(a)
    if NH == 2: skip(a)
    else: issue(a)
    issue(a)
    if P4: issue(a)
    a(f"s_setprio {MP}\nv_add_u32 v6, s28, v{DMV}")
    for i in range(4): a(f"ds_write_b128 v6, {v(KACC+4*i,4)} offset:{1024*i}")
    a.label("L_gemm")
    attn_ids(a)
    gemm(a)
    a.label("L_w1")
    window1(a)
    a.label("L_attn")
    cold = attention(a)
    tail(a)
    diag_wait(a, '--dend')
    if PROF:
        a("s_waitcnt vmcnt(0)")
        stamp(a, 16); stamp(a, 17, True)
        a(f"""s_lshl_b32 s22, s2, 3
        s_add_u32 s22, s22, s{WV}
        s_lshl_b32 s22, s22, 8
        s_add_u32 s22, s22, {WS_PROF}
        v_lshlrev_b32 v3, 2, v2
        buffer_store_dword v{PV}, v3, s[12:15], s22 offen""")
    a.label("L_end")
    a("s_endpgm")
    a.label("L_tr_back")
    arr_init(a)
    attn_ids(a)
    o_maps(a)
    a(f"s_cmp_ge_u32 s{WV}, 4\ns_cbranch_scc1 L_tr_b2")
    clear_o(a)
    a.label("L_tr_b2")
    a(f"s_waitcnt lgkmcnt(0)\ns_barrier\ns_cmp_lt_u32 s{WV}, 4\ns_cbranch_scc1 L_w1\ns_branch L_h_ids")
    cold()
    a(f".fill (1024 - ((. - {nm}) % 1024))/4, 4, 0xbf810000")
    a.label("L_code_end")
    hdr = open("cdna_kernels/" + NAME + ".s.ref").read().split("\n")
    head = [l for l in hdr[:15] if l.startswith(";") and "@launch" not in l and "Override" not in l and "grid=ceil" not in l]
    txt = "\n".join(head) + "\n; @launch grid=(256,1,1) block=(512,1,1) lds=163840\n"
    txt += '.amdgcn_target "amdgcn-amd-amdhsa--gfx950"\n.text\n' + a.text()
    txt += f""".section .rodata,"a"
.p2align 6
.amdhsa_kernel {nm}
  .amdhsa_next_free_vgpr 256
  .amdhsa_next_free_sgpr 102
  .amdhsa_accum_offset 256
  .amdhsa_group_segment_fixed_size 0
  .amdhsa_kernarg_size 104
  .amdhsa_user_sgpr_count 2
  .amdhsa_user_sgpr_kernarg_segment_ptr 1
  .amdhsa_system_sgpr_workgroup_id_x 1
.end_amdhsa_kernel
"""
    open(path, "w").write(txt)
    errs = check_hazards(a.text())
    for e in errs[:30]: print("HAZARD", e)
    print(f"{path}: {len(a.lines)} lines, {len(errs)} hazards")

if __name__ == "__main__":
    main([x for x in sys.argv[1:] if x.endswith(".s")][0])
```

```python
import math, sys
from asmlib import *

NAME = "concat_heads__ssm_conv_s4d__mha_block__prompt"
WS_QKV = 0
WS_O = 0x800000
WS_UT = 0xB00000
WS_YT = 0xE00000 if '--sepy' in sys.argv else 0xB00000
WS_FA = 0x1100000
WS_FB = 0x1110000
WS_FC = 0x1120000
WS_FE = 0x1130000
WS_PROF = 0x1300000
WS_SIZE = 0x1400000
TTS_ = 480*1024
OG = 20480
RS = 4352
LOG2E = math.log2(math.e)
QSCALE = LOG2E / math.sqrt(20.0)
PROF = "--prof" in sys.argv
M0 = "--m0" in sys.argv
SPIN = 0x40000
PT = sys.argv[sys.argv.index('--pt')+1] if '--pt' in sys.argv else ''
PTC = int(sys.argv[sys.argv.index('--ptc')+1]) if '--ptc' in sys.argv else 3
CW = '--cw' in sys.argv
NH = int(sys.argv[sys.argv.index('--nh')+1]) if '--nh' in sys.argv else 2
MP = int(sys.argv[sys.argv.index('--mp')+1]) if '--mp' in sys.argv else 2
XROT = int(sys.argv[sys.argv.index('--xrot')+1]) if '--xrot' in sys.argv else 0
LATE = int(sys.argv[sys.argv.index('--late')+1]) if '--late' in sys.argv else 0
PSL = int(sys.argv[sys.argv.index('--psl')+1]) if '--psl' in sys.argv else 0
PRE = int(sys.argv[sys.argv.index('--pre')+1]) if '--pre' in sys.argv else 4
PRE2 = int(sys.argv[sys.argv.index('--pre2')+1]) if '--pre2' in sys.argv else 0
PACKA = '--nopacka' not in sys.argv
ALN = int(sys.argv[sys.argv.index('--al')+1]) if '--al' in sys.argv else 0
ALP = int(sys.argv[sys.argv.index('--alp')+1]) if '--alp' in sys.argv else 6
FILL1 = int(sys.argv[sys.argv.index('--fill')+1]) if '--fill' in sys.argv else 0
OUTSC = sys.argv[sys.argv.index('--outsc')+1].replace('_', ' ') if '--outsc' in sys.argv else ''
TLB = int(sys.argv[sys.argv.index('--tlb')+1]) if '--tlb' in sys.argv else 0
POLLC = int(sys.argv[sys.argv.index('--pollc')+1]) if '--pollc' in sys.argv else 5
UP = int(sys.argv[sys.argv.index('--up')+1]) if '--up' in sys.argv else 1
UNT = '' if '--nount' in sys.argv else 'nt'
PF = '--pf' in sys.argv
PNT = 'nt'
FB_ = True
P4 = '--p4' in sys.argv
X16 = '--x16' in sys.argv
PRIO = [int(x) for x in sys.argv[sys.argv.index('--prio')+1].split(',')] if '--prio' in sys.argv else [0, 16, 26, 30]
LOC = '--loc' in sys.argv
OSC = '' if '--plainO' in sys.argv else 'sc1'
SPEC = int(sys.argv[sys.argv.index('--spec')+1]) if '--spec' in sys.argv else 1
XNT = "nt" if "--xnt" in sys.argv else ""
WNT = "nt" if "--wnt" in sys.argv else ""
J = "\n".join

WV, XCD, IDX, NONCE = 16, 17, 18, 19
TT, CT = 20, 21
FCOFF, HEAD5, QB, OOFF = 36, 37, 38, 39
KS = [40, 41, 42]; KL = [44, 45, 46]
MODE, KH, KHOFF = 47, 48, 49
HW, CHN = 51, 52
OOCT, OTAIL = 54, 55
XS, WSO, LB = 56, 57, 99
TB = 58
P_U, P_LA, P_AI, P_CR, P_CI, P_DT, P_D, P_X, P_W, P_WO, P_OUT, P_DBG, P_WS = range(64, 90, 2)
WOS, WOL = 94, 95
MK, MK2, MC = 33+1, 35, 100
MW = [101, 25]
PV = 255
DX, DW = 240, 244
PL1, PL2 = 234, 235
DMV, KA, K4, VA, MSK, MS4, WOV, QA4, QA0 = range(224, 233)

RING = 32768
SCR = 3*RING
UST = 4640
KOFF = 4*UST
CHA = KOFF + 4224
CVB = 65536
PST = 2048 + 32
SLOT = 20992
FLAGW = 0
CONSTP = 64
ARING = 1280
QLDS = ARING + 2*SLOT
WOB = 163840 - 107*960 - 64
EXC = ARING
YSRC = WOB - 10240
PART = 25856
KSC = SCR
CNT = 129536
ARRW = CNT
OIMG = ARING
assert CVB + 4*CHA <= 163840 and ARING + 3*SLOT <= 65536 and ARING + 3*SLOT <= WOB + 11*960
assert EXC + 24576 <= PART and PART + 20480 <= YSRC and YSRC >= ARING + 2*SLOT and EXC + 24576 <= ARING + SLOT + 5*PST and OIMG + 20480 <= PART

def srd(a, d, lo, size):
    a(f"s_mov_b32 s{d}, s{lo}\ns_and_b32 s{d+1}, s{lo+1}, 0xffff\ns_mov_b32 s{d+2}, {size}\ns_mov_b32 s{d+3}, 0x20000")
def m32(d, x, y, c=None):
    return f"v_mfma_f32_32x32x16_bf16 {v(d,16)}, {v(x,4)}, {v(y,4)}, {v(c,16) if c is not None else 0}"
def m32x8(d, x, y, c):
    if X16: return f"v_mfma_f32_32x32x16_bf16 {v(d,16)}, {v(x-2,4)}, {v(y-2,4)}, {v(c,16)}"
    return f"v_mfma_f32_32x32x8_bf16 {v(d,16)}, {v(x,2)}, {v(y,2)}, {v(c,16)}"
def m16(d, x, y, c=None):
    return f"v_mfma_f32_16x16x32_bf16 {v(d,4)}, {v(x,4)}, {v(y,4)}, {v(c,4) if c is not None else 0}"
LITE = "--lite" in sys.argv
def stamp(a, i, real=False):
    if LITE and i not in (50, 51, 53, 17) + ((52, 44, 45, 46, 47) if '--tl' in sys.argv and real else ()): return
    if PROF: a(f"s_mem{'real' if real else ''}time s[92:93]\ns_waitcnt lgkmcnt(0)\nv_writelane_b32 v{PV}, s92, {i}")

def diag_wait(a, key):
    if key not in sys.argv: return
    x = int(sys.argv[sys.argv.index(key)+1]) * 100
    l = a.newlabel("L_dg")
    a.label(l)
    a(f"""s_memrealtime s[90:91]
    s_waitcnt lgkmcnt(0)
    s_sub_u32 s90, s90, s{NONCE}
    s_cmp_lt_u32 s90, {x}
    s_cbranch_scc1 {l}""")

def get_nonce(a):
    l = a.newlabel("L_nonce"); e = a.newlabel("L_nonce_e")
    a(f"""s_load_dword s{NONCE}, s[{P_DBG}:{P_DBG+1}], 0
    s_mov_b32 s50, 0
    v_mov_b32 v222, 0
    s_waitcnt lgkmcnt(0)""")
    a.label(l)
    a(f"""s_cmp_lg_u32 s{NONCE}, 0
    s_cbranch_scc1 {e}
    global_load_dword v223, v222, s[{P_DBG}:{P_DBG+1}] sc1
    s_add_u32 s50, s50, 1
    s_waitcnt vmcnt(0)
    v_readfirstlane_b32 s{NONCE}, v223
    s_cmp_lt_u32 s50, {SPIN}
    s_cbranch_scc1 {l}""")
    a.label(e)

def poll(a, addrs, width, vt, preloaded=False, sleep=0, cnt=50):
    l = a.newlabel("L_poll"); e = a.newlabel("L_poll_e")
    sfx = {1: "dword", 4: "dwordx4"}[width]
    a(f"s_mov_b32 s{cnt}, 0")
    if preloaded: a(f"s_branch {l}_c")
    a.label(l)
    for k, ad in enumerate(addrs): a(f"buffer_load_{sfx} {v(vt+4*k,width)}, v{ad}, s[12:15], 0 offen sc1")
    a(f"s_add_u32 s{cnt}, s{cnt}, 1\ns_waitcnt vmcnt(0)")
    a.label(l + "_c")
    regs = [vt+4*k+j for k in range(len(addrs)) for j in range(width)]
    for r in regs: a(f"v_xor_b32 v{r}, s{NONCE}, v{r}")
    for r in regs[1:]: a(f"v_or_b32 v{regs[0]}, v{regs[0]}, v{r}")
    a(f"""v_cmp_ne_u32 vcc, 0, v{regs[0]}
    s_cmp_gt_u32 s{cnt}, {SPIN}
    s_cbranch_scc1 {e}""")
    if sleep: a(f"s_cbranch_vccz {e}\ns_sleep {sleep}\ns_branch {l}")
    else: a(f"s_cbranch_vccnz {l}")
    a.label(e)

def set_flag(a, soff, vt):
    a(f"""v_mov_b32 v{vt}, 0
    v_mov_b32 v{vt+1}, s{NONCE}
    s_mov_b64 exec, 1
    buffer_store_dword v{vt+1}, v{vt}, s[12:15], s{soff} offen sc1
    s_mov_b64 exec, -1""")

def attn_ids(a):
    if LOC: a(f"s_mov_b32 s{HEAD5}, s{IDX}\ns_mov_b32 s{QB}, s{XCD}")
    else: a(f"""s_lshl_b32 s{HEAD5}, s{XCD}, 2
    s_lshr_b32 s22, s{IDX}, 3
    s_add_u32 s{HEAD5}, s{HEAD5}, s22
    s_and_b32 s{QB}, s{IDX}, 7""")
    a(f"""s_mul_i32 s22, s{QB}, {16*OG}
    s_add_u32 s22, s22, {WS_O}
    s_lshl_b32 s{OOCT}, s{HEAD5}, 9
    s_add_u32 s{OOCT}, s{OOCT}, s22
    s_lshl_b32 s{OTAIL}, s{HEAD5}, 7
    s_add_u32 s{OTAIL}, s{OTAIL}, s22
    s_add_u32 s{OTAIL}, s{OTAIL}, 16384
    s_mul_i32 s{HEAD5}, s{HEAD5}, 5
    s_lshl_b32 s{OOFF}, s{HEAD5}, 10
    s_mul_i32 s22, s{QB}, {2*TTS_}
    s_add_u32 s{OOFF}, s{OOFF}, s22""")

def clear_o(a, q=HW):
    a(f"""v_lshrrev_b32 v140, 5, v2
    v_mul_u32_u24 v140, {2*OG}, v140
    v_add_u32 v140, v140, v{OST}
    v_mov_b32 v136, -1
    v_mov_b32 v137, -1
    v_mov_b32 v138, -1
    v_mov_b32 v139, -1
    s_mul_i32 s24, s{q}, {4*OG}
    s_add_u32 s22, s24, s{OOCT}
    s_add_u32 s23, s22, {2*OG}
    s_add_u32 s24, s24, s{OTAIL}
    buffer_store_dwordx4 v[136:139], v{OSA}, s[12:15], s22 offen sc1
    buffer_store_dwordx4 v[136:139], v{OSA}, s[12:15], s23 offen sc1
    buffer_store_dwordx2 v[136:137], v140, s[12:15], s24 offen sc1""")

def arr_init(a):
    a(f"v_mov_b32 v220, {CNT}\nv_mov_b32 v222, 0\nv_mov_b32 v223, 0\nds_write_b64 v220, v[222:223]")

def utile_issue(a):
    srd(a, 4, P_U, 2048*1280)
    a(f"""v_lshlrev_b32 v4, 4, v9
    v_mul_u32_u24 v3, 1280, v8
    v_add_u32 v3, v3, v4
    s_mov_b32 m0, s27
    s_lshr_b32 s23, s26, 5
    s_and_b32 s28, s26, 31
    s_mul_i32 s24, s28, {64*1280}
    s_lshl_b32 s22, s23, 7
    s_add_u32 s24, s24, s22
    s_mov_b32 s30, 0""")
    a.label("L_ut_i")
    a(f"""buffer_load_dwordx4 v3, s[4:7], s24 offen {UNT} lds
    s_add_u32 m0, m0, 1024
    s_add_u32 s24, s24, {8*1280}
    s_add_u32 s30, s30, 1
    s_cmp_lt_u32 s30, 8
    s_cbranch_scc1 L_ut_i""")
def utile(a):
    A0, A1, A2, A3, D = 8, 9, 10, 11, 12
    a(f"""s_lshr_b32 s23, s26, 5
    v_xor_b32 v{A1}, v{A1}, v{A0}
    v_lshlrev_b32 v{A1}, 4, v{A1}
    v_mul_u32_u24 v{A3}, {RS}, v{A0}
    v_add_u32 v{A3}, v{A3}, v{A1}
    v_lshlrev_b32 v{A0}, 4, v2
    v_add_u32 v{A0}, s27, v{A0}
    v_bfe_u32 v{A1}, v2, 2, 2
    v_lshlrev_b32 v{A1}, 7, v{A1}
    v_lshrrev_b32 v{A2}, 4, v2
    v_lshl_add_u32 v{A1}, v{A2}, 5, v{A1}
    v_and_b32 v{A2}, 3, v2
    v_lshl_add_u32 v{A1}, v{A2}, 3, v{A1}
    v_add_u32 v{A1}, s27, v{A1}
    v_and_b32 v{A2}, 7, v2
    v_lshlrev_b32 v{A2}, 4, v{A2}
    v_lshl_add_u32 v{A2}, v2, 7, v{A2}
    v_add_u32 v{A2}, s27, v{A2}
    s_mul_i32 s23, s23, {64*RS}
    s_lshl_b32 s24, s28, 7
    s_add_u32 s24, s24, s23
    s_add_u32 s24, s24, {WS_UT}
    s_lshl_b32 s29, s26, {2 if PACKA else 7}
    s_add_u32 s29, s29, {WS_FA}""")
    stamp(a, 27)
    a("s_waitcnt vmcnt(0)")
    stamp(a, 28)
    for i in range(16): a(f"ds_read_b64_tr_b16 {v(D+2*i,2)}, v{A1} offset:{i*512}")
    a("s_waitcnt lgkmcnt(0)")
    for i in range(8): a(f"v_xor_b32 v4, {16*i}, v{A2}\nds_write_b128 v4, {v(D+4*i,4)}")
    a("s_waitcnt lgkmcnt(0)")
    for i in range(8): a(f"ds_read_b128 {v(D+4*i,4)}, v{A0} offset:{i*1024}")
    for i in range(8):
        a(f"s_waitcnt lgkmcnt({7-i})\nbuffer_store_dwordx4 {v(D+4*i,4)}, v{A3}, s[12:15], s24 offen sc1\ns_add_u32 s24, s24, {8*RS}")
    stamp(a, 2)
    a(f"s_mov_b32 s33, 1\ns_cmp_lt_u32 s{IDX}, 30\ns_cbranch_scc1 L_h_ld0")
    get_nonce(a)
    a("s_waitcnt vmcnt(0)")
    set_flag(a, 29, 4)
    stamp(a, 3)

def next_slot(a, cur, tmp):
    a(f"""s_add_u32 s{cur}, s{cur}, {RING}
    s_lshr_b32 s{tmp}, s{cur}, 15
    s_cmp_eq_u32 s{tmp}, 3
    s_cselect_b32 s{tmp}, {RING}, 0
    s_add_u32 s{cur}, s{cur}, s{tmp}
    s_cmp_ge_u32 s{cur}, {5*RING}
    s_cselect_b32 s{tmp}, {5*RING}, 0
    s_sub_u32 s{cur}, s{cur}, s{tmp}""")

ORD = sys.argv[sys.argv.index('--ord')+1] if '--ord' in sys.argv else 'quad2'
def orders():
    if ORD == 'none': return [list(range(10))]*4
    if ORD == 'pair': return [[c ^ (t & 1) for c in range(10)] for t in range(4)]
    if ORD == 'quad': return [[(c ^ t) if c < 8 else (c ^ (t & 1)) for c in range(10)] for t in range(4)]
    if ORD == 'quad2': return [[(c ^ (t & 1)) if c < 2 else 2 + ((c - 2) ^ t) for c in range(10)] for t in range(4)]
    if ORD == 'quad3': return [[(c ^ t) if c < 4 else ((c ^ (t & 1)) if c < 6 else 6 + ((c - 6) ^ t)) for c in range(10)] for t in range(4)]
    if ORD == 'five': return [[(c // 5) * 5 + (c + (0, 1, 3, 4)[t]) % 5 for c in range(10)] for t in range(4)]
    if ORD == 'mix': return [[(0,4,1,2,8,3,5,6,7,9), (1,5,0,3,9,2,4,7,6,8), (2,6,3,0,8,1,7,4,5,9), (3,7,2,1,9,0,6,5,4,8)][t] for t in range(4)]
    if ORD == 'q3': return [[t & 1, 1 - (t & 1), 2 + t, 6 + t] + [2 + (i ^ t) for i in (1, 2, 3)] + [6 + (i ^ t) for i in (1, 2, 3)] for t in range(4)]
    if ORD == 'q4': return [[t, 4 + t, 8 + (t & 1), t ^ 1, t ^ 2, t ^ 3, 4 + (t ^ 1), 4 + (t ^ 2), 4 + (t ^ 3), 9 - (t & 1)] for t in range(4)]
    if ORD == 'q5': return [[t, t ^ 1, 4 + t, 8 + (t & 1), t ^ 2, t ^ 3, 4 + (t ^ 1), 4 + (t ^ 2), 4 + (t ^ 3), 9 - (t & 1)] for t in range(4)]
    if ORD == 'half': return [[(c + 5*(t & 1)) % 10 for c in range(10)] for t in range(4)]
    if ORD == 'rot': return [[(c + (0, 3, 5, 8)[t]) % 10 for c in range(10)] for t in range(4)]
    if ORD == 'tri': return [[(c//3*3 + (c + t) % 3) if c < 9 else 9 for c in range(10)] for t in (0, 1, 2, 1)]
def loader_math(a):
    a(f"""s_lshr_b32 s{TT}, s{XCD}, 1
    s_lshl_b32 s{TT}, s{TT}, 2
    s_and_b32 s24, s{XCD}, 1
    s_and_b32 s22, s{IDX}, 3
    s_lshr_b32 s23, s{IDX}, 2
    s_lshl_b32 s{CT}, s24, 3
    s_add_u32 s{CT}, s{CT}, s23
    s_lshl_b32 s24, s24, 1
    s_cmp_ge_u32 s{IDX}, 28
    s_cselect_b32 s{CT}, 7, s{CT}
    s_cselect_b32 s24, s24, 0
    s_add_u32 s22, s22, s24
    s_add_u32 s{TT}, s{TT}, s22
    s_add_u32 s22, s{TT}, s{CT}
    s_and_b32 s22, s22, 3""")
    if XROT == 1: a(f"s_mul_i32 s25, s{XCD}, 5\ns_lshr_b32 s25, s25, 2")
    if XROT == 2: a(f"s_and_b32 s25, s{XCD}, 1\ns_mul_i32 s25, s25, 5")
    if XROT == 3: a(f"s_lshr_b32 s25, s{XCD}, 1\ns_mul_i32 s25, s25, 5\ns_lshr_b32 s25, s25, 1")
    tb = [sum(c << (4*i) for i, c in enumerate(o)) for o in orders()]
    a(f"s_mov_b32 s{TB}, {tb[0] & 0xffffffff}\ns_mov_b32 s{TB+1}, {tb[0] >> 32}")
    for t in range(1, 4):
        if tb[t] != tb[0]: a(f"s_cmp_eq_u32 s22, {t}\ns_cselect_b32 s{TB}, {tb[t] & 0xffffffff}, s{TB}\ns_cselect_b32 s{TB+1}, {tb[t] >> 32}, s{TB+1}")
    a(f"""v_lshrrev_b32 v8, 3, v2
    v_and_b32 v9, 7, v2
    v_lshrrev_b32 v5, 1, v8
    s_and_b32 s22, s{HW}, 1
    s_lshl_b32 s22, s22, 2
    v_add_u32 v5, s22, v5
    v_xor_b32 v4, v9, v5
    v_lshlrev_b32 v4, 4, v4
    v_mul_u32_u24 v3, 2560, v8
    v_add_u32 v{DX}, v3, v4
    s_lshl_b32 s{XS}, s{TT}, 3
    s_add_u32 s{XS}, s{XS}, s{HW}
    s_mul_i32 s{XS}, s{XS}, {16*1280}
    v_lshrrev_b32 v3, 4, v2
    v_bfe_u32 v4, v2, 2, 2
    v_xor_b32 v4, v4, v3
    v_lshlrev_b32 v4, 6, v4
    v_and_b32 v5, 3, v2
    v_lshlrev_b32 v5, 4, v5
    v_mul_u32_u24 v3, 3840, v3
    v_add3_u32 v{DW}, v3, v4, v5
    s_lshl_b32 s{WSO}, s{CT}, 8
    s_mul_i32 s22, s{HW}, {4*3840}
    s_add_u32 s{WSO}, s{WSO}, s22
    s_lshl_b32 s{LB}, s{HW}, 10
""")
    for i in range(1, 4):
        a(f"v_add_u32 v{DX+i}, {(64*(i>>1) + (i&1))*1280}, v{DX}\nv_add_u32 v{DW+i}, {i*16*3840}, v{DW}")
def dma_prep():
    xr = f"""
    s_add_u32 s43, s43, s25
    s_cmp_ge_u32 s43, 10
    s_cselect_b32 s100, 10, 0
    s_sub_u32 s43, s43, s100""" if XROT else ""
    return f"""s_and_b32 s43, s{TB}, 15{xr}
    s_lshr_b64 s[{TB}:{TB+1}], s[{TB}:{TB+1}], 4
    s_lshl_b32 s100, s43, 7
    s_add_u32 s100, s100, s{XS}
    s_mul_i32 s101, s43, {64*3840}
    s_add_u32 s101, s101, s{WSO}"""
def issue(a, fill=None):
    a(dma_prep())
    per = (len(fill) + 7) // 8 if fill else 0
    for k in range(8):
        i = k >> 1
        a(f"s_add_u32 m0, s{LB}, {i*4096 + (16384 if k & 1 else 0)}\ns_nop 0")
        a(f"buffer_load_dwordx4 v{(DW if k & 1 else DX)+i}, s[{'8:11' if k & 1 else '60:63'}], s{101 if k & 1 else 100} offen {WNT if k & 1 else XNT} lds")
        if fill:
            n = min(per, len(fill))
            while n < len(fill) and (fill[n].startswith(("s_cselect", "s_addc"))): n += 1
            a(J(fill[:n])); del fill[:n]
    assert not fill
    next_slot(a, LB, 43)
def skip(a):
    a(f"s_lshr_b64 s[{TB}:{TB+1}], s[{TB}:{TB+1}], 4")
    next_slot(a, LB, 22)
def lds_wait(a, va, off, vt, sleep=True):
    l = a.newlabel("L_lw"); e = a.newlabel("L_le")
    a.label(l)
    a(f"""ds_read_b32 v{vt}, v{va} offset:{off}
    s_waitcnt lgkmcnt(0)
    v_readfirstlane_b32 s22, v{vt}
    s_cmp_ge_u32 s22, 4
    s_cbranch_scc1 {e}""")
    if sleep: a("s_sleep 2")
    a(f"s_branch {l}")
    a.label(e)

def main_pre(a):
    def wg_of(tt, ct, dst):
        a(f"""v_cmp_eq_u32 vcc, 7, v{ct}
        v_bfe_u32 v10, v{tt}, 1, 1
        v_lshrrev_b32 v11, 3, v{ct}
        v_cndmask_b32 v10, v11, v10, vcc
        v_and_b32 v11, 3, v{tt}
        v_and_b32 v12, 1, v{tt}
        v_cndmask_b32 v11, v11, v12, vcc
        v_and_b32 v12, 7, v{ct}
        v_lshl_add_u32 v11, v12, 2, v11
        v_lshl_add_u32 v10, v11, 3, v10
        v_lshrrev_b32 v11, 2, v{tt}
        v_lshl_add_u32 v{dst}, v11, 1, v10""")
    a(f"""v_and_b32 v3, 15, v2
    v_lshrrev_b32 v4, 5, v2
    v_mul_u32_u24 v4, 160, v4
    v_bfe_u32 v5, v2, 4, 1
    v_lshl_add_u32 v4, v5, 2, v4
    s_add_u32 s22, s{HEAD5}, 160
    v_add_u32 v4, s22, v4
    v_lshrrev_b32 v4, 5, v4""")
    wg_of(3, 4, 8)
    a(f"""v_lshlrev_b32 v8, 7, v8
    v_add_u32 v{PL1}, {WS_FB}, v8
    v_and_b32 v3, 1, v2
    s_lshl_b32 s22, s{QB}, 1
    v_add_u32 v3, s22, v3
    v_bfe_u32 v4, v2, 1, 1
    v_lshlrev_b32 v4, 2, v4
    v_add_u32 v4, s{HEAD5}, v4
    v_lshrrev_b32 v4, 5, v4""")
    wg_of(3, 4, 9)
    a(f"""    v_lshlrev_b32 v9, 7, v9
    v_add_u32 v{PL2}, {WS_FB}, v9""")

def gemm(a):
    XA = [10, 11, 12, 13]; WA = [14, 15]
    FX = [[16, 20], [32, 36]]; FW = [[24, 28], [40, 44]]
    ACC = 48
    a(f"""s_and_b32 s34, s{WV}, 1
    s_lshr_b32 s35, s{WV}, 1
    v_and_b32 v3, 31, v2
    v_lshrrev_b32 v4, 5, v2
    v_bfe_u32 v5, v3, 1, 3
    v_xor_b32 v5, v5, v4
    v_lshlrev_b32 v5, 4, v5
    v_lshlrev_b32 v6, 7, v3
    s_lshl_b32 s22, s34, 13
    v_add3_u32 v{XA[0]}, v5, v6, s22
    v_xor_b32 v{XA[1]}, 32, v{XA[0]}
    v_xor_b32 v{XA[2]}, 64, v{XA[0]}
    v_xor_b32 v{XA[3]}, 96, v{XA[0]}
    v_bfe_u32 v5, v2, 2, 2
    s_lshl_b32 s22, s35, 1
    v_xor_b32 v6, s22, v5
    v_lshlrev_b32 v6, 6, v6
    v_lshlrev_b32 v7, 3, v4
    v_add_u32 v7, v7, v5
    v_lshlrev_b32 v7, 8, v7
    v_bfe_u32 v5, v2, 4, 1
    v_lshlrev_b32 v5, 5, v5
    v_add3_u32 v6, v6, v7, v5
    v_and_b32 v5, 3, v2
    v_lshl_add_u32 v6, v5, 3, v6
    v_add_u32 v{WA[0]}, 16384, v6
    v_xor_b32 v{WA[1]}, 64, v{WA[0]}
    v_lshlrev_b32 v5, 10, v4
    v_lshl_add_u32 v5, v3, 4, v5
    s_lshl_b32 s26, s{CT}, 5
    s_lshl_b32 s23, s35, 4
    s_add_u32 s26, s26, s23
    s_lshl_b32 s26, s26, 10
    s_mul_i32 s23, s{TT}, {TTS_}
    s_add_u32 s26, s26, s23
    s_lshl_b32 s23, s34, 9
    s_add_u32 s26, s26, s23""")
    a("v_mov_b64 v[16:17], 0\nv_mov_b64 v[18:19], 0\ns_nop 1")
    for i in range(4): a(m32(ACC+16*i, 16, 16))
    def rx(ks, buf, t): return f"ds_read_b128 {v(FX[buf][t],4)}, v{XA[ks]} offset:{t*4096}"
    def rw(ks, buf, m, rd): return f"ds_read_b64_tr_b16 {v(FW[buf][m]+2*rd,2)}, v{WA[m]} offset:{(16*ks+4*rd)*256}"
    def rds(ks, buf): return [rx(ks,buf,0), rw(ks,buf,0,0), rw(ks,buf,0,1), rx(ks,buf,1), rw(ks,buf,1,0), rw(ks,buf,1,1)]
    def mf(buf, m, t):
        if '--g16' in sys.argv:
            d = ACC+(m*2+t)*16 + 8*buf
            return m16(d, FW[buf][m], FX[buf][t], d) + "\n" + m16(d+4, FX[buf][t], FW[buf][m], d+4)
        return m32(ACC+(m*2+t)*16, FW[buf][m], FX[buf][t], ACC+(m*2+t)*16)
    stamp(a, 24)
    a(f"s_cmp_lt_u32 s{IDX}, 20\ns_cbranch_scc1 L_g_w")
    if FB_:
        a("s_barrier")
        issue(a); issue(a)
        a("s_waitcnt vmcnt(16)")
    else:
        issue(a)
        a("s_waitcnt vmcnt(8)")
        issue(a)
    a.label("L_g_w")
    a("s_waitcnt lgkmcnt(0)")
    stamp(a, 25)
    a(f"s_cmp_lt_u32 s{IDX}, 20\ns_cselect_b32 s27, {2 if P4 else 1}, 1")
    a("s_mov_b32 s30, 0\ns_mov_b32 s31, 0\ns_setprio 2")
    stamp(a, 26)
    a("s_barrier")
    stamp(a, 2)
    a(J(rds(0, 0)))
    a(".p2align 3")
    a.label("L_g_mm")
    for ks in range(4):
        b = ks & 1
        r = rds((ks+1) & 3, b ^ 1)
        a("s_waitcnt lgkmcnt(3)")
        a(mf(b, 0, 0))
        if ks < 3:
            a(J(r[0:3]) + "\ns_waitcnt lgkmcnt(5)")
            a(mf(b, 0, 1))
            a(J(r[3:6]) + "\ns_waitcnt lgkmcnt(6)")
            a(mf(b, 1, 0))
            if ks == 0:
                a("s_mov_b32 s32, s31"); next_slot(a, 31, 33)
            if ks == 1: a(f"s_sub_u32 s33, s31, s32\ns_add_u32 s30, s30, 1\nv_add_u32 v{XA[0]}, s33, v{XA[0]}\nv_add_u32 v{XA[1]}, s33, v{XA[1]}\nv_add_u32 v{XA[2]}, s33, v{XA[2]}")
            if ks == 2: a(f"v_add_u32 v{XA[3]}, s33, v{XA[3]}\nv_add_u32 v{WA[0]}, s33, v{WA[0]}\nv_add_u32 v{WA[1]}, s33, v{WA[1]}\ns_cmp_le_u32 s30, s27")
            a(mf(b, 1, 1))
        else:
            a("s_cbranch_scc1 L_g_w8\ns_waitcnt vmcnt(0)")
            a.label("L_g_w8")
            a("s_waitcnt vmcnt(8) lgkmcnt(0)\ns_cmp_gt_u32 s30, 8\ns_cbranch_scc1 L_g_nb\ns_barrier")
            a.label("L_g_nb")
            a(mf(b, 0, 1))
            a(J(r[0:3]) + "\ns_cmp_lt_u32 s30, 10")
            a(mf(b, 1, 0))
            a(J(r[3:6]))
            a(mf(b, 1, 1))
            a("s_cbranch_scc1 L_g_mm")
    stamp(a, 3)
    a("s_nop 4\ns_waitcnt lgkmcnt(0)")
    for q in range(2):
        if q == 0: a(f"s_cmp_lt_u32 s{CT}, 5\ns_cbranch_scc1 L_g_eq")
        else: a.label("L_g_eq"); a(f"s_mov_b32 s28, {f32hex(QSCALE)}")
        k = 0
        for m in range(2):
            for g in range(4):
                d = 16 + 4*k; k += 1
                for t in range(2):
                    r = ACC + (m*2+t)*16 + 4*g
                    if q:
                        for i in range(4): a(f"v_mul_f32 v{r+i}, s28, v{r+i}")
                    a(f"v_cvt_pk_bf16_f32 v{d+2*t}, v{r}, v{r+1}\nv_cvt_pk_bf16_f32 v{d+2*t+1}, v{r+2}, v{r+3}")
                if k & 1: a(f"s_add_u32 s23, s26, {WS_QKV + (m*8+2*g)*1024}")
                a(f"buffer_store_dwordx4 {v(d,4)}, v5, s[12:15], s23 offen offset:{0 if k & 1 else 2048} sc1")
        if q == 0: a("s_branch L_w1")

PRM = 152
VD = 233
def cm(d, x, z, t):
    return [f"v_pk_mul_f32 {v(t,2)}, {v(x,2)}, {v(z,2)} op_sel:[0,0] op_sel_hi:[1,0]",
            f"v_pk_fma_f32 {v(d,2)}, {v(x,2)}, {v(z,2)}, {v(t,2)} op_sel:[1,1,0] op_sel_hi:[0,1,1] neg_lo:[0,1,0]"]
def ilv(*ls):
    out = []
    for i in range(max(len(x) for x in ls)):
        for x in ls:
            if i < len(x): out.append(x[i])
    return out
GDT, GER, GTH, GT = 112, 113, 114, 116
def kg_dt(a):
    a(f"""v_lshlrev_b32 v{GDT}, 16, v{PRM+4}
    v_mul_f32 v{GDT}, {f32hex(LOG2E)}, v{GDT}
    v_exp_f32 v{GDT}, v{GDT}
    s_lshl_b32 s22, s{KH}, 4
    v_cvt_pk_bf16_f32 v{GDT}, v{GDT}, v{GDT}
    v_and_b32 v{GDT}, 0xffff0000, v{GDT}""")
def kg_setup(anchors, X0):
    o = f"""v_lshlrev_b32 v{PRM}, s22, v{PRM}
    v_lshlrev_b32 v{PRM+1}, s22, v{PRM+1}
    v_and_b32 v{GER}, 0xffff0000, v{PRM}
    v_mul_f32 v{GER}, {f32hex(LOG2E)}, v{GER}
    v_exp_f32 v{GER}, v{GER}
    v_and_b32 v{GTH}, 0xffff0000, v{PRM+1}
    v_lshlrev_b32 v{PRM+2}, s22, v{PRM+2}
    v_cvt_pk_bf16_f32 v{GER}, v{GER}, v{GER}
    v_lshlrev_b32 v{PRM+3}, s22, v{PRM+3}
    v_and_b32 v{GER}, 0xffff0000, v{GER}
    v_mul_f32 v{GER}, v{GER}, v{GDT}
    v_mul_f32 v{GTH}, v{GTH}, v{GDT}
    v_mul_f32 v{GER}, {f32hex(-LOG2E)}, v{GER}
    v_mul_f32 v{GTH}, 0.15915494, v{GTH}
    v_and_b32 v{X0}, 0xffff0000, v{PRM+2}
    v_and_b32 v{X0+1}, 0xffff0000, v{PRM+3}
    v_mul_f32 v{X0}, v{X0}, v{GDT}
    v_mul_f32 v{X0+1}, v{X0+1}, v{GDT}
    v_add_f32 v{X0}, v{X0}, v{X0}
    v_add_f32 v{X0+1}, v{X0+1}, v{X0+1}""".split("\n")
    for (z, p) in anchors:
        o += f"""v_mul_f32 v{GT}, {f32hex(p)}, v{GER}
        v_mul_f32 v{GT+1}, {f32hex(p)}, v{GTH}
        v_exp_f32 v{GT}, v{GT}
        v_fract_f32 v{GT+1}, v{GT+1}
        v_cos_f32 v{z}, v{GT+1}
        v_sin_f32 v{z+1}, v{GT+1}
        v_mul_f32 v{z}, v{z}, v{GT}
        v_mul_f32 v{z+1}, v{z+1}, v{GT}""".split("\n")
    return o

def krow():
    def row(h, reg): return 8*(reg >> 2) + 4*h + (reg & 3)
    rowp = {}
    for p in range(4): rowp[row(0, p)] = p; rowp[row(1, p)] = p + 4
    for i, (p0, p1) in enumerate(((256, 260), (258, 262), (260, 264), (512, 768), (516, 772), (520, 776), (1024, 1280), (1032, 1288), (1536, 1792), (1544, 1800))):
        rowp[row(0, 4+i)] = p0; rowp[row(1, 4+i)] = p1
    return rowp
XORD = [1, 2, 3, 4, 5, 6, 7, 258, 260, 262, 516, 772, 1544, 1800, 0, 256, 264, 512, 520, 768, 776, 1024, 1032, 1280, 1288, 1536, 1792]
PKA = 160
KACC = 192
GWA, GRA, GFX = 16, 32, 112
def kgen(a, mid):
    Z1, Z8, ZW, ZB, YA = 124, 126, 128, 130, 132
    XF, DT_, SEL, PX, PY = 16, 72, 104, 112, 160
    rowp = krow()
    ps = [0, 8] + XORD[:14] + XORD[15:]
    xr = {p: XF + 2*i for i, p in enumerate(ps)}
    a(f"""s_lshl_b32 s28, s{WV}, 13
    s_add_u32 s28, s28, {KSC}
    v_bfe_u32 v3, v2, 4, 1
    v_lshlrev_b32 v3, 4, v3
    v_mov_b32 v4, 0x3f80
    v_lshlrev_b32 v3, v3, v4
    v_and_b32 v4, 15, v2
    v_lshrrev_b32 v5, 5, v2
    v_lshlrev_b32 v5, 2, v5
    v_sub_u32 v4, v4, v5""")
    for sidx in range(2):
        for u in range(4): a(f"v_cmp_eq_u32 vcc, {8*sidx+u}, v4\ns_nop 1\nv_cndmask_b32 v{SEL+4*sidx+u}, 0, v3, vcc")
    a(f"s_cmp_eq_u32 s{KH}, 1\ns_cbranch_scc1 L_kg_w\ns_waitcnt vmcnt({6 if PF else 0})")
    a.label("L_kg_w")
    a(f"s_waitcnt vmcnt({8*NH})")
    stamp(a, 20)
    kg_dt(a)
    a(J(kg_setup(((Z8, 8.0), (ZB, 128.0), (Z1, 1.0), (ZW, 256.0)), xr[0])))
    for j in range(16):
        ya = cm(YA, Z8 if j == 2 else YA, Z8, GT+4) if j >= 2 else []
        yb = cm(ZB, ZB, Z8, GT+6) if j else []
        a(J(ilv(ya, yb)))
        lo = ("1.0", "0") if j == 0 else ((f"v{Z8}", f"v{Z8+1}") if j == 1 else (f"v{YA}", f"v{YA+1}"))
        a(f"v_cvt_pk_bf16_f32 v{PY+j}, {lo[0]}, v{ZB}\nv_cvt_pk_bf16_f32 v{PY+16+j}, {lo[1]}, v{ZB+1}")
    def swaps(R): return [f"v_permlane32_swap_b32 v{R+8*sx+u}, v{R+8*sx+4+u}" for sx in range(2) for u in range(4)]
    def tmm(R, b, D): return [m32(D, R+4*b, SEL), m32(D, R+8+4*b, SEL+4, D)]
    def tcv(R, b, D): return [f"v_cvt_pk_bf16_f32 v{R+8*(u>>2)+4*b+(u&3)}, v{D+2*u}, v{D+2*u+1}" for u in range(8)]
    def step(p, t):
        if p < 8: return cm(xr[p], xr[p-1], Z1, t)
        if p == 8: return cm(xr[8], xr[0], Z8, t)
        return cm(xr[p], xr[p-256], ZW, t)
    s1 = sum((step(p, GT) for p in (1, 2, 3, 4, 5, 6, 7, 258, 260, 262, 516, 772, 1544, 1800)), [])
    s2 = sum((step(p, GT+2) for p in (8, 256, 264, 512, 520, 768, 776, 1024, 1032, 1280, 1288, 1536, 1792)), [])
    a(J(ilv(s1, s2)))
    stamp(a, 21)
    def px(part):
        o = []
        for r in range(16):
            lo = xr[rowp[r]] + part
            hi = f"{'-' if part else ''}v{xr[rowp[r+16]] + part}" if r + 16 in rowp else "0"
            o.append(f"v_cvt_pk_bf16_f32 v{PX+16*part+r}, {'-' if part else ''}v{lo}, {hi}")
        return o
    D0, D1 = DT_, DT_ + 16
    def mix(mm, va):
        n = (len(va) + len(mm) - 1) // len(mm)
        for i, m in enumerate(mm):
            a(m); a(J(va[i*n:(i+1)*n]))
    a(J(swaps(PY)))
    E0_, E1_ = XF, XF + 16
    mix(tmm(PY, 0, D0) + tmm(PY, 1, D1), swaps(PY+16) + px(0) + px(1))
    mix(tmm(PY+16, 0, E0_) + tmm(PY+16, 1, E1_), tcv(PY, 0, D0) + tcv(PY, 1, D1) + swaps(PX))
    mix(tmm(PX, 0, D0) + tmm(PX, 1, D1), swaps(PX+16) + tcv(PY+16, 0, E0_) + tcv(PY+16, 1, E1_))
    mix(tmm(PX+16, 0, E0_) + tmm(PX+16, 1, E1_), tcv(PX, 0, D0) + ["s_nop 3"] + tcv(PX, 1, D1))
    a("s_nop 1")
    mix([m32(KACC, PX+4*q, PY+4*q, KACC if q else None) for q in (0, 2, 1, 3)], tcv(PX+16, 0, E0_) + ["s_nop 3"] + tcv(PX+16, 1, E1_))
    a("s_nop 1")
    for q in (0, 2, 1, 3): a(m32(KACC, PX+16+4*q, PY+16+4*q, KACC))
    stamp(a, 22)

KP = 208
def kpack(a, kdst):
    Jv, H, AD = 3, 4, 12
    R = KACC; P0 = KP
    a(f"""v_and_b32 v{Jv}, 31, v2
    v_lshrrev_b32 v{H}, 5, v2
    v_lshlrev_b32 v{AD}, 4, v{Jv}
    v_sub_u32 v{AD}, s{kdst}, v{AD}
    v_lshlrev_b32 v13, 3, v{H}
    v_sub_u32 v180, v{AD}, v13
    v_lshlrev_b32 v13, 9, v{H}
    v_sub_u32 v181, v{AD}, v13
    v_and_b32 v{H}, 1, v{Jv}
    v_cmp_eq_u32 vcc, 0, v{H}
    v_lshlrev_b32 v{Jv}, 2, v{Jv}
    v_add_u32 v182, s{kdst}, v{Jv}
    v_lshlrev_b32 v15, 16, v{VD}
    s_mov_b64 exec, 1
    v_add_f32 v{R}, v{R}, v15
    s_mov_b64 exec, -1""")
    cv = lambda d, lo, hi: a(f"v_cvt_pk_bf16_f32 v{d}, v{lo}, v{hi}")
    cv(P0, R+3, R+2); cv(P0+1, R+1, R+0)
    cv(P0+2, R+6, R+5); cv(P0+3, R+4, R+4)
    cv(P0+4, R+9, R+9); cv(P0+5, R+8, R+8); cv(P0+6, R+8, R+7); cv(P0+7, R+7, R+7)
    for sidx in range(2):
        ra, rb = R+10+2*sidx, R+11+2*sidx
        d = P0 + 8 + 4*sidx
        a(f"v_cndmask_b32 v13, v{rb}, v{ra}, vcc")
        cv(d, rb, rb); cv(d+1, rb, 13); cv(d+2, ra, ra); cv(d+3, ra, ra)
def kwrite(a, vzero):
    P0 = KP
    a(f"""ds_write_b64 v180, {v(P0,2)} offset:{4080+8}
    ds_write_b64 v180, {v(P0+2,2)} offset:{4080-512+8}
    ds_write_b128 v181, {v(P0+4,4)} offset:{4080-1024}
    ds_write_b128 v181, {v(P0+8,4)} offset:{4080-2048}
    ds_write_b128 v181, {v(P0+12,4)} offset:{4080-3072}
    ds_write_b32 v182, v{vzero} offset:4096""")

CAA, CBA, CACC = 10, 11, 148
def conv_setup(a, cbase):
    a(f"""v_and_b32 v3, 3, v2
    v_mul_u32_u24 v{CAA}, {UST}, v3
    v_bfe_u32 v3, v2, 2, 2
    v_lshl_add_u32 v{CAA}, v3, 7, v{CAA}
    v_lshrrev_b32 v4, 4, v2
    v_lshl_add_u32 v{CAA}, v4, 4, v{CAA}
    v_add_u32 v{CAA}, s{cbase}, v{CAA}
    v_and_b32 v3, 15, v2
    v_lshlrev_b32 v3, 3, v3
    v_lshlrev_b32 v{CBA}, 4, v4
    v_sub_u32 v{CBA}, v{CBA}, v3
    v_add_u32 v{CBA}, {KOFF+120}, v{CBA}
    v_add_u32 v{CBA}, s{cbase}, v{CBA}""")
def conv(a, ydst, fill):
    FA = [16, 80]; FB = [48, 112]; ACC = CACC
    def loads(b, extra):
        out = []
        for k in range(8):
            out += [f"ds_read_b64 {v(FB[b]+4*k,2)}, v{CBA} offset:{512*(7-k)+extra}", f"ds_read_b64 {v(FB[b]+4*k+2,2)}, v{CBA} offset:{512*(7-k)+8+extra}",
                    f"ds_read_b128 {v(FA[b]+4*k,4)}, v{CAA} offset:{512*k+extra}"]
        return out
    pairs = sorted([(i, j) for i in range(8) for j in range(8) if i + j < 8], key=lambda p: (max(p), p))
    def mm(b, i, j, first=False): return m16(ACC+4*(i+j), FA[b]+4*i, FB[b]+4*j, None if first else ACC+4*(i+j))
    a("s_waitcnt lgkmcnt(0)")
    l0 = loads(0, 0); l1 = loads(1, 64)
    seq = l0 + l1
    a(J(seq[:12])); pos = 12
    seen = set(); lvl = -1
    for n, (i, j) in enumerate(pairs):
        if max(i, j) > lvl:
            lvl = max(i, j)
            a(f"s_waitcnt lgkmcnt({min(14, pos - 3*(lvl+1))})")
        a(mm(0, i, j, i+j not in seen)); seen.add(i+j)
        if pos < 48: a(seq[pos]); pos += 1
    assert pos == 48
    a("s_mov_b32 s53, 0\n.p2align 3")
    lp = a.newlabel("L_cv")
    a.label(lp)
    for b in (1, 0):
        ld = loads(b ^ 1, 128 if b == 1 else 192)
        a("s_waitcnt lgkmcnt(0)")
        for n, (i, j) in enumerate(pairs):
            a(mm(b, i, j))
            if n < 24: a(ld[n])
            if b == 0 and n == 33: a(f"v_add_u32 v{CAA}, 128, v{CAA}\nv_add_u32 v{CBA}, 128, v{CBA}")
            elif b == 0 and n == 34: a("s_add_u32 s53, s53, 1\ns_cmp_lt_u32 s53, 3")
    a(f"s_cbranch_scc1 {lp}")
    a("v_lshlrev_b32 v12, 3, v2\ns_waitcnt lgkmcnt(0)")
    out = []
    for beta in (7, 6, 5, 4, 3, 2, 1, 0):
        for i in range(beta + 1):
            a(mm(1, i, beta - i))
            last = len(a.lines)
            for _ in range(2):
                if out and out[0][0] <= len(a.lines): a(out.pop(0)[1])
                elif fill: a(fill.pop(0))
        ac = ACC + 4*beta
        out += [(last + 8, t) for t in (f"v_cvt_pk_bf16_f32 v{ac}, v{ac}, v{ac+1}", f"v_cvt_pk_bf16_f32 v{ac+1}, v{ac+2}, v{ac+3}",
                f"buffer_store_dwordx2 {v(ac,2)}, v12, s[12:15], s{ydst} offen offset:{512*beta} sc1")]
    a(J(fill)); fill.clear()
    for d, t in out:
        if d > len(a.lines): a(f"s_nop {d - len(a.lines)}")
        a(t)

def helper(a):
    CB = 26
    UE = 132
    a(f"""s_mov_b32 s33, 0
    s_cmp_ge_u32 s{IDX}, 20
    s_cbranch_scc1 L_h_tr
    s_lshr_b32 s{FCOFF}, s{CHN}, 2
    s_lshl_b32 s{FCOFF}, s{FCOFF}, 7
    s_lshl_b32 s22, s{HW}, 2
    s_add_u32 s{FCOFF}, s{FCOFF}, s22
    s_add_u32 s{FCOFF}, s{FCOFF}, {WS_FC}
    s_lshr_b32 s22, s{CHN}, 6
    s_lshl_b32 s22, s22, {7 if PACKA else 12}
    s_add_u32 s22, s22, {WS_FA}
    v_and_b32 v4, 31, v2
    v_lshl_add_u32 v8, v4, {2 if PACKA else 7}, s22
    s_mul_i32 s{CB}, s{HW}, {CHA}
    s_add_u32 s{CB}, s{CB}, {CVB}
    s_mul_i32 s27, s{CHN}, {RS}
    s_add_u32 s27, s27, {WS_UT}
    s_add_u32 s29, s{CB}, {KOFF}
    s_mov_b32 s33, {POLLC}""")
    skip(a)
    a("s_setprio 1")
    a.label("L_kgen")
    kgen(a, None)
    a(f"s_cmp_eq_u32 s{KH}, 0\ns_cbranch_scc1 L_g_kb")
    stamp(a, 3)
    if P4:
        skip(a)
        a("s_setprio 0\ns_mov_b32 s30, 1\ns_waitcnt vmcnt(0)\ns_barrier")
        if PROF and not LITE: stamp(a, 32)
        a("s_branch L_h_ld")
    else: a("s_setprio 0\ns_waitcnt vmcnt(0)\ns_branch L_h_ld1")
    a.label("L_h_tr")
    a(f"s_cmp_ge_u32 s26, 320\ns_cbranch_scc1 L_h_ld0")
    a.label("L_utile")
    utile(a)
    a("s_branch L_tr_back")
    a.label("L_h_ld0")
    if FB_: a("s_barrier")
    a(f"v_mov_b32 v8, {WS_FA}")
    skip(a); skip(a); skip(a)
    a.label("L_h_ld1")
    a("s_mov_b32 s30, 0")
    def bar():
        a("s_waitcnt vmcnt(16) lgkmcnt(0)\ns_barrier")
        if PROF and not LITE: a(f"s_memtime s[92:93]\ns_add_u32 m0, s30, 32\ns_waitcnt lgkmcnt(0)\nv_writelane_b32 v{PV}, s92, m0")
    def lines(*fs):
        t = Asm()
        for f in fs: f(t)
        return [l.strip() for l in t.lines]
    a.label("L_h_ld")
    bar()
    issue(a, lines(attn_ids, o_maps, kv_units))
    a(f"""s_add_u32 s30, s30, 1
    s_cmp_lg_u32 s30, s33
    s_cbranch_scc1 L_h_l1
    s_cmp_lt_u32 s{IDX}, 20
    s_cbranch_scc1 L_h_pl""")
    get_nonce(a)
    a("s_waitcnt vmcnt(8)")
    set_flag(a, 29, 10)
    stamp(a, 3)
    a("s_branch L_h_l1")
    a.label("L_h_pl")
    a("buffer_load_dword v9, v8, s[12:15], 0 offen sc1")
    a.label("L_h_l1")
    if PT:
        a(f"""s_cmp_lg_u32 s30, {PTC}
        s_cbranch_scc1 L_h_pt
        s_mul_i32 s22, s{TT}, {TTS_}
        s_lshl_b32 s23, s{CT}, 15
        s_add_u32 s22, s22, s23
        s_lshl_b32 s23, s{HW}, 13
        s_add_u32 s22, s22, s23
        v_lshlrev_b32 v3, 7, v2""")
        a("buffer_store_dword v3, v3, s[12:15], s22 offen sc1" if PT == 'w' else "buffer_load_dword v14, v3, s[12:15], s22 offen sc1")
        a.label("L_h_pt")
    a("s_cmp_lt_u32 s30, 5\ns_cbranch_scc1 L_h_ld")
    bar()
    issue(a, [f's_load_dword s{NONCE}, s[{P_DBG}:{P_DBG+1}], 0'] + lines(tail_setup))
    a("s_add_u32 s30, s30, 1")
    bar()
    issue(a, lines(attn_reset2, lambda t: conv_setup(t, CB)))
    a("s_waitcnt vmcnt(16)\ns_barrier")
    a(f"s_cmp_lg_u32 s{NONCE}, 0\ns_cbranch_scc1 L_h_hn")
    get_nonce(a)
    a.label("L_h_hn")
    arr_init(a)
    a(f"""s_cmp_lt_u32 s{IDX}, 20
    s_cbranch_scc1 L_h_k7
    s_waitcnt vmcnt(0) lgkmcnt(0)
    s_barrier""")
    y_setup(a)
    a("s_branch L_attn")
    a.label("L_h_ids")
    a("s_mov_b32 s33, 2\ns_branch L_setup")
    a.label("L_h_k7")
    def uloads():
        for i in range(4): a(f"buffer_load_dwordx4 {v(132+4*i,4)}, v{DMV}, s[12:15], s27 offen offset:{1024*i} sc1")
    stamp(a, 39)
    a(f"s_sub_u32 s28, s28, 32768\nv_add_u32 v6, s28, v{DMV}\nv_cmp_ne_u32 vcc, s{NONCE}, v9\ns_mov_b32 s31, 0")
    for i in range(4): a(f"ds_read_b128 {v(16+4*i,4)}, v6 offset:{1024*i}")
    a("s_cbranch_vccnz L_h_nu")
    uloads()
    a("s_mov_b32 s31, 1\ns_branch L_h_n2")
    a.label("L_h_nu")
    a("buffer_load_dword v9, v8, s[12:15], 0 offen sc1")
    a.label("L_h_n2")
    a("s_waitcnt lgkmcnt(0)")
    for i in range(14): a(f"v_add_f32 v{KACC+i}, v{KACC+i}, v{16+i}")
    kpack(a, 29)
    a(f"""v_lshlrev_b32 v5, 3, v2
    v_min_u32 v5, 376, v5
    v_add_u32 v5, s{CB}, v5
    v_mov_b32 v6, 0
    v_mov_b32 v7, 0""")
    stamp(a, 46)
    a("s_cmp_eq_u32 s31, 1\ns_cbranch_scc1 L_h_w4\ns_waitcnt vmcnt(1)")
    a.label("L_h_w4")
    a("s_waitcnt vmcnt(4)\ns_barrier")
    stamp(a, 4)
    a("s_cmp_eq_u32 s31, 1\ns_cbranch_scc1 L_h_hu")
    a("s_waitcnt vmcnt(0)")
    poll(a, [8], 1, 9, preloaded=True)
    uloads()
    a.label("L_h_hu")
    if PROF: a(f"v_writelane_b32 v{PV}, s31, 30")
    kwrite(a, 6)
    for r in range(4): a(f"ds_write_b64 v5, v[6:7] offset:{r*UST}")
    a(f"""s_mul_i32 s27, s{CHN}, {RS}
    s_add_u32 s27, s27, {WS_YT}
    v_add_u32 v4, s{CB}, v{DMV}
    s_waitcnt vmcnt(0)""")
    stamp(a, 5)
    for i in range(4):
        e = 132 + 4*i
        C2, C1, C0, PP = 16 + 14*i, 20 + 14*i, 24 + 14*i, 28 + 14*i
        a(f"ds_write_b128 v4, {v(e,4)} offset:{3*UST + 384 + 1024*i}")
        if i == 0: a(f"v_mov_b32 v{PP}, 0\nv_mov_b32 v{C1}, 0\ns_nop 0")
        else: a(f"v_readlane_b32 s22, v{e-2}, 63\nv_readlane_b32 s23, v{e-1}, 63\ns_nop 0\nv_mov_b32 v{PP}, s22\nv_mov_b32 v{C1}, s23\ns_nop 0")
        a(f"v_mov_b32_dpp v{PP}, v{e+2} wave_shr:1 row_mask:0xf bank_mask:0xf")
        a(f"v_mov_b32_dpp v{C1}, v{e+3} wave_shr:1 row_mask:0xf bank_mask:0xf")
        for j in range(3): a(f"v_mov_b32 v{C1+1+j}, v{e+j}")
        a(f"ds_write_b128 v4, {v(C1,4)} offset:{UST + 384 + 1024*i}")
        a(f"v_alignbit_b32 v{C2}, v{e}, v{C1}, 16")
        for j in range(1, 4): a(f"v_alignbit_b32 v{C2+j}, v{e+j}, v{e+j-1}, 16")
        a(f"ds_write_b128 v4, {v(C2,4)} offset:{2*UST + 384 + 1024*i}")
        a(f"v_alignbit_b32 v{C0}, v{C1}, v{PP}, 16")
        for j in range(3): a(f"v_mov_b32 v{C0+1+j}, v{C2+j}")
        a(f"ds_write_b128 v4, {v(C0,4)} offset:{384 + 1024*i}")
    stamp(a, 6)
    t = Asm(); zero_s(t); y_setup(t)
    fill = [l.strip() for l in t.lines]
    conv(a, 27, fill)
    assert not fill
    stamp(a, 7)
    a("s_branch L_attn2")

def window1(a):
    get_nonce(a)
    a(f"""v_mov_b32 v3, {ARRW}
    v_mov_b32 v4, 1
    s_lshl_b32 s22, s2, 7
    s_add_u32 s26, s22, {WS_FB}""")
    zero_state(a)
    stamp(a, 4)
    a(f"""s_waitcnt vmcnt(0)
    s_mov_b64 exec, 1
    ds_add_rtn_u32 v4, v3, v4
    s_mov_b64 exec, -1
    s_waitcnt lgkmcnt(0)
    v_readfirstlane_b32 s22, v4
    s_mov_b32 s28, s22
    s_mov_b32 s33, 0
    s_cmp_lg_u32 s22, 3
    s_cbranch_scc1 L_w1_r""")
    diag_wait(a, '--dfl')
    stamp(a, 5)
    stamp(a, 53, True)
    set_flag(a, 26, 6)
    a(f"""v_mov_b32 v16, 0x3f803f80
    v_mov_b32 v17, 0x00003f80
    v_mov_b32 v18, 0x3f803f80
    v_mov_b32 v19, 0x00003f80
    ds_write_b128 v{DMV}, v[16:19] offset:{CONSTP}
    ds_write_b32 v6, v6 offset:{FLAGW}
    s_mov_b32 s33, 1
    s_branch L_setup""")
    a.label("L_w1_r")
    a("s_setprio 0")
    a.label("L_setup")
    attn_ids(a)
    o_maps(a)
    attn_reset(a)
    tail_setup(a)
    y_setup(a)
    a("""s_cmp_eq_u32 s33, 2
    s_cbranch_scc1 L_attn
""")
    if CW:
        a(f"""s_lshl_b32 s22, s2, 7
        s_lshl_b32 s23, s28, 2
        s_add_u32 s22, s22, s23
        s_add_u32 s{FCOFF}, s22, {WS_FE}
        s_cmp_eq_u32 s33, 1
        s_cbranch_scc1 L_w1_po""")
        a.label("L_w1_c")
        clear_o(a, 28)
        a("s_cmp_lg_u32 s28, 0\ns_cbranch_scc1 L_at_b2\ns_mov_b32 s28, 3\ns_branch L_w1_c")
        a.label("L_w1_po")
    else: a("s_cmp_eq_u32 s33, 0\ns_cbranch_scc1 L_at_b2")
    main_pre(a)
    a("s_mov_b32 s50, 0")
    a.label("L_w1_p")
    a(f"""buffer_load_dword v20, v{PL1}, s[12:15], 0 offen sc1
    buffer_load_dword v24, v{PL2}, s[12:15], 0 offen sc1
    s_add_u32 s50, s50, 1
    s_waitcnt vmcnt(0)
    v_cmp_ne_u32 vcc, s{NONCE}, v20
    v_cmp_ne_u32 s[26:27], s{NONCE}, v24
    s_cmp_gt_u32 s50, {SPIN}
    s_cbranch_scc1 L_w1_q
    s_or_b32 s28, vcc_lo, vcc_hi
    s_and_b32 s22, s28, 0x01010101
    s_or_b32 s22, s22, s27
    s_cbranch_scc1 L_w1_p""")
    a.label("L_w1_q")
    stamp(a, 6)
    stamp(a, 54, True)
    a(f"s_add_u32 s23, s{HEAD5}, 160\ns_lshl_b32 s23, s23, 10")
    def qu(u): a(f"""s_mov_b32 m0, {QLDS + 1024*u}
        s_add_u32 s24, s{OOFF}, {(u >> 1)*1024 + (u & 1)*TTS_}
        buffer_load_dwordx4 v{DMV}, s[12:15], s24 offen sc1 lds""")
    def ku(u):
        p = u >> 1
        off = ((p + (155 if p >= 5 else 0)) << 10) + ((u & 1)*8)*TTS_
        a(f"""s_mov_b32 m0, {ARING + p*PST + (u & 1)*1024}
        s_add_u32 s24, s23, {off}
        buffer_load_dwordx4 v{DMV}, s[12:15], s24 offen sc1 lds""")
    for u in range(10): qu(u)
    for u in range(20): ku(u)
    stamp(a, 7)
    poll(a, [PL1, PL2], 1, 20, preloaded=True)
    a("s_waitcnt vmcnt(0)\ns_branch L_at_b2")

Q0 = [16, 22]; Q1 = [20, 26]
KF = [28, 34]; VF = [40, 48]; P = [56, 64]; S = [72, 88]; O = [104, 120]
def set_m(a, q, M):
    a(f"""v_sub_f32 v{M}, 0, v{M}
    v_and_b32 v{M+1}, 0xffff0000, v{M}
    v_sub_f32 v{M+2}, v{M}, v{M+1}
    v_and_b32 v{M+3}, 0xffff0000, v{M+2}
    v_sub_f32 v{M+2}, v{M+2}, v{M+3}
    v_lshrrev_b32 v{M+1}, 16, v{M+1}
    v_or_b32 v{M+1}, v{M+1}, v{M+3}
    v_lshrrev_b32 v{M+2}, 16, v{M+2}
    v_cndmask_b32 v{Q1[q]}, v{M+1}, v{Q1[q]}, vcc
    v_cndmask_b32 v{Q1[q]+1}, v{M+2}, v{Q1[q]+1}, vcc""")
def tilemax(a, M, s, first):
    if first: a(f"v_max3_f32 v{M}, v{s}, v{s+1}, v{s+2}")
    else: a(f"v_max3_f32 v{M}, v{M}, v{s}, v{s+1}\nv_max_f32 v{M}, v{M}, v{s+2}")
    for i in range(3, 15, 2): a(f"v_max3_f32 v{M}, v{M}, v{s+i}, v{s+i+1}")
    a(f"v_max_f32 v{M}, v{M}, v{s+15}")
def halfmax(a, M):
    a(f"v_mov_b32 v{M+1}, v{M}\ns_nop 1\nv_permlane32_swap_b32 v{M}, v{M+1}\nv_max_f32 v{M}, v{M}, v{M+1}")

def kv_units(a):
    a(f"""s_lshr_b32 s22, s{WV}, 1
    s_and_b32 s23, s{WV}, 1
    s_mul_i32 s{KL[0]}, s22, {PST}
    s_lshl_b32 s24, s23, 10
    s_add_u32 s{KL[0]}, s{KL[0]}, s24
    s_add_u32 s{KL[0]}, s{KL[0]}, {ARING}
    s_add_u32 s{KL[1]}, s{KL[0]}, {4*PST}
    s_add_u32 s{KL[2]}, s{KL[0]}, {8*PST}
    s_add_u32 s24, s22, s{HEAD5}
    s_lshl_b32 s24, s24, 10
    s_mul_i32 s23, s23, {8*TTS_}
    s_add_u32 s24, s24, s23
    s_add_u32 s{KS[0]}, s24, {160*1024 + TTS_}
    s_add_u32 s{KS[2]}, s24, {(160+8+155)*1024 + TTS_}
    s_cmp_eq_u32 s22, 0
    s_cselect_b32 s23, 0, {155*1024}
    s_add_u32 s{KS[1]}, s{KS[0]}, s23
    s_add_u32 s{KS[1]}, s{KS[1]}, 4096""")
def attn_reset(a):
    kv_units(a); attn_reset2(a)
def attn_reset2(a):
    a(f"""v_and_b32 v3, 31, v2
    v_lshlrev_b32 v3, 3, v3
    v_lshrrev_b32 v5, 5, v2
    s_lshl_b32 s{KHOFF}, s{KH}, 10
    s_lshl_b32 s22, s{HW}, 1
    s_add_u32 s22, s22, s{KH}
    s_lshl_b32 s22, s22, 8
    v_add_u32 v{QA4}, s22, v3
    v_lshl_add_u32 v{QA0}, v5, 12, v{QA4}
    v_mul_u32_u24 v{KA}, {2*PST}, v5
    s_add_u32 s22, s{KHOFF if M0 else MODE+53-MODE}, {ARING}""".replace(f"s{MODE+53-MODE}", "0"))
    a(f"""v_add3_u32 v{KA}, v{KA}, v3, s22
    v_xor_b32 v{MS4}, 1, v5
    s_add_u32 s22, s22, {4*PST - CONSTP}
    v_mad_u32_u24 v{K4}, v{MS4}, s22, v3
    v_add_u32 v{K4}, {CONSTP}, v{K4}
    v_bfe_u32 v3, v2, 2, 2
    v_lshl_add_u32 v5, v5, 2, v3
    v_and_b32 v4, 3, v2
    v_bfe_u32 v3, v2, 4, 1
    v_lshl_add_u32 v4, v3, 2, v4
    v_cmp_gt_u32 vcc, 5, v4
    v_mul_u32_u24 v4, {PST}, v4
    s_add_u32 s22, s{KHOFF}, {ARING + 5*PST}
    v_add_u32 v4, s22, v4
    v_cndmask_b32 v{VA}, {CONSTP}, v4, vcc
    v_cndmask_b32 v{MSK}, 0, 1, vcc
    v_lshl_add_u32 v{VA}, v5, 3, v{VA}
    s_sub_u32 s24, 106, s{WV}
    s_mul_i32 s{WOS}, s24, {6*1280}
    s_lshr_b32 s22, s{IDX}, 2
    s_mul_i32 s22, s22, 160
    s_add_u32 s{WOS}, s{WOS}, s22
    s_mul_i32 s{WOL}, s24, 960
    s_add_u32 s{WOL}, s{WOL}, {WOB}""")
YT, OSA, OST, FIW, FS0 = range(235, 240)
YT, FIW, FS0 = 253, 251, 250
YV, FCA = 238, 239
YS, TYS = 21, 20
WAO, WAT = 248, 249
TOS, TTS, TFS = 96, 97, 98
def o_maps(a):
    a(f"""v_and_b32 v3, 15, v2
    v_bfe_u32 v4, v2, 4, 1
    v_mul_u32_u24 v4, {OG}, v4
    v_lshl_add_u32 v{OST}, v3, 3, v4
    v_lshl_add_u32 v4, v3, 4, v4
    v_lshrrev_b32 v3, 5, v2
    v_lshl_add_u32 v{OSA}, v3, 8, v4""")
def tail_setup(a):
    a(f"""v_mul_u32_u24 v6, 205, v2
    v_lshrrev_b32 v6, 11, v6
    v_mul_u32_u24 v7, 10, v6
    v_sub_u32 v7, v2, v7
    v_lshlrev_b32 v7, 4, v7
    v_mul_u32_u24 v6, 1280, v6
    v_add_u32 v{WOV}, v6, v7
    v_add_u32 v{FS0}, v6, v{WOV}
    v_bfe_u32 v3, v2, 2, 2
    v_lshrrev_b32 v4, 4, v2
    v_and_b32 v5, 3, v2
    v_lshlrev_b32 v5, 3, v5
    v_lshrrev_b32 v6, 2, v2
    v_lshl_add_u32 v6, v6, 7, v5
    s_lshl_b32 s22, s{HW}, 5
    v_add_u32 v{YT}, s22, v6
    v_lshrrev_b32 v6, 5, v2
    v_mul_u32_u24 v6, 12, v6
    v_lshl_add_u32 v6, v4, 2, v6
    v_add_u32 v6, v6, v3
    v_mad_u32_u24 v7, v4, 20, v3
    s_mul_i32 s22, s{KH}, {320*160}
    s_add_u32 s22, s22, {WOB}
    v_add_u32 v5, s22, v5
    s_movk_i32 s23, 160
    v_mad_u32_u24 v{WAO}, v6, s23, v5
    v_mad_u32_u24 v{WAT}, v7, s23, v5
    v_and_b32 v3, 15, v2
    s_mul_i32 s22, s{HW}, 5120
    v_lshl_add_u32 v4, v4, 3, s22
    v_mad_u32_u24 v{FIW}, v3, s23, v4
    s_lshl_b32 s24, s{XCD}, 2
    s_and_b32 s22, s{IDX}, 3
    s_add_u32 s24, s24, s22
    s_lshl_b32 s24, s24, 2
    s_add_u32 s24, s24, s{HW}
    s_mul_i32 s{TOS}, s24, {OG}
    s_add_u32 s{TOS}, s{TOS}, {WS_O}
    s_lshl_b32 s23, s{KH}, 11
    s_add_u32 s{TTS}, s{TOS}, s23
    s_add_u32 s{TTS}, s{TTS}, 16384
    s_lshl_b32 s23, s{KH}, 13
    s_add_u32 s{TOS}, s{TOS}, s23
    s_lshr_b32 s22, s{IDX}, 2
    s_add_u32 s22, s22, 8
    s_lshl_b32 s23, s{IDX}, 2
    s_add_u32 s23, s23, s{HW}
    s_cmp_eq_u32 s{KH}, 0
    s_cselect_b32 s24, s23, s24
    s_cselect_b32 s22, s{XCD}, s22
    s_mul_i32 s{TFS}, s24, {16*2560}
    s_mul_i32 s22, s22, 160
    s_add_u32 s{TFS}, s{TFS}, s22""")
def y_setup(a):
    a(f"""v_lshrrev_b32 v4, 3, v2
    v_and_b32 v3, 7, v2
    v_lshlrev_b32 v3, 4, v3
    v_mul_u32_u24 v4, {RS}, v4
    v_add_u32 v{YV}, v4, v3
    s_mul_i32 s22, s{XCD}, 10
    s_add_u32 s22, s22, s{WV}
    s_mul_i32 s22, s22, {8*RS}
    s_lshl_b32 s23, s{IDX}, 7
    s_add_u32 s22, s22, s23
    s_add_u32 s{YS}, s22, {WS_YT}
    s_mul_i32 s22, s{XCD}, {20*128}
    s_add_u32 s22, s22, {WS_FC}
    v_min_u32 v3, 19, v2
    v_lshl_add_u32 v{FCA}, v3, 7, s22
    v_bfe_u32 v3, v2, 3, 2
    v_lshlrev_b32 v3, 6, v3
    v_and_b32 v4, 7, v2
    s_lshl_b32 s22, s{XCD}, 3
    v_add3_u32 v3, v3, v4, s22
    v_cmp_gt_u32 vcc, 32, v2
    v_lshlrev_b32 v3, 7, v3
    v_add_u32 v3, {WS_FE}, v3
    v_cndmask_b32 v{FCA}, v3, v{FCA}, vcc""")
WFR = [28, 48, 68, 88, 144, 164, 184, 204, 108]
OFR = [128, 132, 224, 228, 232, 236, 240, 244, 136, 140]
def wo_reads(a, i, slot):
    for m in range(5):
        for hf in range(2):
            if i < 8: a(f"ds_read_b64_tr_b16 {v(WFR[slot]+4*m+2*hf,2)}, v{WAO} offset:{(40*i+8*hf)*160+32*m}")
            else: a(f"ds_read_b64_tr_b16 {v(WFR[slot]+4*m+2*hf,2)}, v{WAT} offset:{(160*(i-8)+80*hf+16)*160+32*m}")
def zero_state(a):
    zero_s(a); zero_v(a)
def zero_s(a):
    srd(a, 8, P_WO, 640*1280)
    a(f"""s_mov_b32 s30, 0
    s_mov_b32 s31, 0
    s_mov_b32 s32, {2*SLOT}
    s_mov_b32 s34, {-2*SLOT & 0xffffffff}
    s_mov_b32 s35, {SLOT}""")
def zero_v(a):
    for i in range(0, 32, 2): a(f"v_mov_b64 {v(O[0]+i,2)}, 0")
    for i in range(0, 8, 2): a(f"v_mov_b64 {v(P[1]+i,2)}, 0\nv_mov_b64 {v(VF[1]+i,2)}, 0")

OPF = int(sys.argv[sys.argv.index('--opf')+1]) if '--opf' in sys.argv else 0
def o_prefetch(a, tag):
    a(f"""s_lshl_b32 s22, s{XCD}, 2
    s_and_b32 s23, s{IDX}, 3
    s_add_u32 s22, s22, s23
    s_lshl_b32 s22, s22, 3
    s_lshr_b32 s23, s{IDX}, 2
    s_add_u32 s22, s22, s23
    s_mul_i32 s22, s22, 10
    s_add_u32 s22, s22, s{WV}
    s_lshl_b32 s22, s22, 10
    s_add_u32 s22, s22, {WS_O}
    s_cmp_ge_u32 s{WV}, 2
    buffer_load_dwordx4 v[144:147], v{DMV}, s[12:15], s22 offen sc1
    s_cbranch_scc1 L_opf{tag}
    s_add_u32 s22, s22, 8192
    buffer_load_dwordx4 v[148:151], v{DMV}, s[12:15], s22 offen sc1""")
    a.label(f"L_opf{tag}")

def attention(a):
    def kr(t, b): return [f"ds_read_b64 {v(KF[b],2)}, v{KA} offset:{t*256}", f"ds_read_b64 {v(KF[b]+2,2)}, v{KA} offset:{t*256+PST}", f"ds_read_b64 {v(KF[b]+4,2)}, v{K4} offset:{t*256}"]
    def vr(t, b): return [f"ds_read_b64_tr_b16 {v(VF[b]+2*j,2)}, v{VA} offset:{t*256+j*64}" for j in range(4)]
    def shift(sreg):
        a(f"v_add_u32 v{KA}, s{sreg}, v{KA}\nv_mad_i32_i24 v{K4}, v{MS4}, s{sreg}, v{K4}")
    def qk(q, kb): a(m32(S[q], KF[kb], Q0[q])); a(m32x8(S[q], KF[kb]+4, Q1[q], S[q]))
    zero_s(a)
    a.label("L_attn2")
    a("s_waitcnt lgkmcnt(0)")
    zero_v(a)
    a.label("L_at_b2")
    stamp(a, 8)
    a(f"v_cmp_gt_u32 vcc, 32, v2\nv_xor_b32 v3, 256, v{QA0}\nv_xor_b32 v4, 256, v{QA4}\ns_waitcnt lgkmcnt(0)\ns_barrier")
    diag_wait(a, '--da0')
    stamp(a, 9)
    stamp(a, 50, True)
    a(J(kr(0, 0)))
    a(f"s_cmp_lg_u32 s{MODE}, 0\ns_cbranch_scc1 L_at_havem")
    for q in range(2):
        r0, r4 = (3, 4) if q == 0 else (QA0, QA4)
        a(f"""ds_read_b64 {v(Q0[q],2)}, v{r0} offset:{QLDS}
        ds_read_b64 {v(Q0[q]+2,2)}, v{r0} offset:{QLDS+2048}
        ds_read_b64 {v(Q1[q],2)}, v{r4} offset:{QLDS+8192}""")
    a("s_waitcnt lgkmcnt(0)")
    for q in range(2): a(f"v_cndmask_b32 v{Q1[q]}, 0, v{Q1[q]}, vcc\nv_cndmask_b32 v{Q1[q]+1}, 0, v{Q1[q]+1}, vcc")
    if not M0:
        qk(0, 0); qk(1, 0)
        a("s_nop 7\ns_nop 1")
        for q in range(2):
            tilemax(a, P[0], S[q], True); halfmax(a, P[0]); set_m(a, q, P[0])
    a.label("L_at_havem")
    if not M0:
        shift(KHOFF)
        a(J(kr(0, 0)))
    a(f"s_cmp_eq_u32 s{MODE}, 1\ns_cbranch_scc1 L_at_maxpass")
    a("s_waitcnt lgkmcnt(0)")
    qk(0, 0)
    for j in range(3):
        if j == 2: a(f"s_cmp_ge_u32 s{WV}, 4\ns_cbranch_scc1 L_at_p3")
        a(f"s_add_u32 m0, s{KL[j]}, {SLOT}\ns_nop 0\nbuffer_load_dwordx4 v{DMV}, s[12:15], s{KS[j]} offen sc1 lds")
    if not CW:
        a(f"s_cmp_lg_u32 s{MODE}, 0\ns_cbranch_scc1 L_at_p3")
        clear_o(a)
        a(f"""s_lshl_b32 s22, s2, 7
    s_lshl_b32 s23, s{HW}, 2
    s_add_u32 s22, s22, s23
    s_add_u32 s{FCOFF}, s22, {WS_FE}""")
    a.label("L_at_p3")
    a("s_setprio 3")
    stamp(a, 10)
    a(f".p2align {ALP}")
    for _ in range(ALN): a("s_nop 0")
    def kv(j):
        return f"""s_add_u32 m0, s{KL[j]}, s32
        s_add_u32 s{KS[j]}, s{KS[j]}, {TTS_}
        buffer_load_dwordx4 v{DMV}, s[12:15], s{KS[j]} offen sc1 lds"""
    wo = f"""s_mov_b32 m0, s{WOL}
        s_sub_u32 s{WOL}, s{WOL}, {8*960}
        buffer_load_dwordx4 v{WOV}, s[8:11], s{WOS} offen lds
        s_sub_u32 s{WOS}, s{WOS}, {8*6*1280}"""
    def chunk(kind):
        last = kind == 2
        for T in range(4):
            kb = T & 1
            for q in range(2):
                o = q ^ 1
                fin = last and T == 3
                ex = [f"v_exp_f32 v{S[q]+i}, v{S[q]+i}" for i in range(16)]
                cv = [f"v_cvt_pk_bf16_f32 v{P[q]+i}, v{S[q]+2*i}, v{S[q]+2*i+1}" for i in range(8)]
                kq = kb if q == 0 else kb ^ 1
                vq = kb ^ 1 if q == 0 else kb
                rd = (kr((T+1) & 3, kb ^ 1) + vr(T, kb)) if q == 0 else []
                if fin and q == 0: rd = vr(T, kb)
                st = (2*((T+1) & 3) + q)
                def pr(i):
                    k = 4*st + i
                    P_ = [0, 4, 6, 7] if fin else PRIO
                    if k in P_: a(f"s_setprio {3 - P_.index(k)}")
                if q == 0 and T == 3: a("s_waitcnt vmcnt(0)\ns_barrier")
                if q == 1: a("s_waitcnt lgkmcnt(0)")
                G = [ex[0:4] + cv[0:1], ex[4:6] + cv[1:2] + ex[6:8] + cv[2:3], ex[8:10] + cv[3:4] + ex[10:12] + cv[4:5], ex[12:14] + cv[5:6] + ex[14:16] + cv[6:8]]
                if not (fin and q == 1): a(m32(S[o], KF[kq], Q0[o]))
                pr(0)
                if (T, q) == (1, 1) and kind == 0:
                    a(f"""s_cmp_eq_u32 s31, {2*SLOT}
                    s_cselect_b32 s29, s34, s35""")
                if (T, q) == (1, 1) and kind == 1: a("s_mov_b32 s29, s35")
                a(J(rd[0:3] + G[0]))
                if not (fin and q == 1): a(m32x8(S[o], KF[kq]+4, Q1[o], S[o]))
                pr(1)
                if (T, q) == (3, 1) and kind == 0: a(kv(1))
                if (T, q) == (0, 1) and kind == 0: a(wo)
                if (T, q) == (0, 1) and last:
                    a(f"s_cmp_ge_u32 s{WV}, 3\ns_cbranch_scc1 L_at_w3"); a(wo); a.label("L_at_w3")
                if (T, q) == (2, 1) and not last: shift(29)
                a(J(rd[3:5] + G[1]))
                a(m32(O[o], VF[vq], P[o], O[o])); pr(2)
                a(J(rd[5:7] + G[2]))
                a(m32(O[o], VF[vq]+4, P[o]+4, O[o])); pr(3)
                if (T, q) == (3, 0) and kind == 0:
                    a(kv(0))
                    a(f"s_cmp_lg_u32 s{FCOFF}, 0\ns_cbranch_scc1 L_at_fc")
                    a.label("L_at_back")
                if (T, q) == (0, 0):
                    if kind == 1: a(f"buffer_load_dwordx4 v[136:139], v{FCA}, s[12:15], 0 offen sc1")
                    else: a(wo)
                if (T, q) == (3, 0) and kind == 1:
                    poll(a, [FCA], 4, 136, preloaded=True)
                    a(f"""s_lshl_b32 s23, s{WV}, 10
                    s_add_u32 m0, s23, {YSRC}
                    s_cmp_ge_u32 s{WV}, 2
                    buffer_load_dwordx4 v{YV}, s[12:15], s{YS} offen sc1 lds
                    s_cbranch_scc1 L_at_y1
                    s_add_u32 m0, m0, 8192
                    s_add_u32 s22, s{YS}, {64*RS}
                    buffer_load_dwordx4 v{YV}, s[12:15], s22 offen sc1 lds""")
                    a.label("L_at_y1")
                if (T, q) == (3, 1) and kind == 0:
                    a(f"s_cmp_eq_u32 s{KH}, 1\ns_cbranch_scc1 L_at_n2")
                    a(kv(2))
                    a.label("L_at_n2")
                    a("s_mov_b32 s32, s31\ns_add_u32 s31, s31, s29")
                a(J(G[3][:-2]))
                if q == 1 and T == 3 and not last: a(f"v_mad_i32_i24 v{VA}, v{MSK}, s29, v{VA}")
                if q == 1 and T == 3 and kind == 0: a("s_add_u32 s30, s30, 1\ns_cmp_lt_u32 s30, 6")
                a(J(G[3][-2:]))
    a.label("L_at_loop")
    chunk(0)
    a("s_cbranch_scc1 L_at_loop")
    chunk(1)
    chunk(2)
    a("s_nop 0")
    C = S[1]; A = O[1]
    a(m32(O[1], VF[1], P[1], O[1]))
    a(f"""s_setprio 0
    s_mul_i32 s22, s{WV}, 3072
    v_add_u32 v4, s22, v{DMV}
    s_xor_b32 s22, s{WV}, 4
    s_mul_i32 s22, s22, 3072
    v_add_u32 v5, s22, v{DMV}""")
    a(m32(O[1], VF[1]+4, P[1]+4, O[1]))
    stamp(a, 11)
    if OPF == 1: o_prefetch(a, "e")
    for i in range(3): a(f"ds_write_b128 v4, {v(O[0]+4*i,4)} offset:{EXC + i*1024}")
    a(f"""v_mov_b64 v[6:7], 1
    s_mov_b32 s24, {f32hex(2.0**110)}
    v_pk_add_f32 {v(C,2)}, {v(O[0],2)}, {v(O[0]+2,2)}""")
    for i in range(4, 12, 2): a(f"v_pk_add_f32 {v(C,2)}, {v(C,2)}, {v(O[0]+i,2)}")
    a("s_nop 1")
    for i in range(0, 12, 2): a(f"v_pk_add_f32 {v(C,2)}, {v(C,2)}, {v(O[1]+i,2)}")
    a(f"""v_add_f32 v{C}, v{C}, v{C+1}
    v_add_f32 v{C+1}, v{O[0]+12}, v{O[1]+12}
    v_mul_f32 v{C}, {f32hex(2.0**-17)}, v{C}
    s_lshl_b32 s22, s{HW}, 1
    v_add_f32 v{C}, abs(v{C}), v{C+1}
    s_add_u32 s22, s22, s{KH}
    v_cmp_ngt_f32 vcc, s24, v{C}""")
    if M0:
        a(f"""v_min_f32 v{C+3}, v{O[0]+12}, v{O[1]+12}
        s_mov_b32 s24, {f32hex(2.0**-60)}
        v_cmp_gt_f32 s[26:27], s24, v{C+3}
        s_mul_i32 s22, s22, {2*OG}
        s_or_b64 vcc, vcc, s[26:27]""")
    else: a(f"s_mul_i32 s22, s22, {2*OG}")
    a(f"""s_cbranch_vccz L_at_nf
    ds_write_b32 v7, v6 offset:{FLAGW}""")
    a.label("L_at_nf")
    a(f"""s_add_u32 s23, s22, s{OTAIL}
    s_add_u32 s22, s22, s{OOCT}
    s_waitcnt lgkmcnt(0)
    s_barrier
    ds_read_b32 v6, v7 offset:{FLAGW}""")
    for i in (2, 0, 1): a(f"ds_read_b128 {v(S[0]+4*i,4)}, v5 offset:{EXC + i*1024}")
    a(f"""s_waitcnt lgkmcnt(2)
    v_readfirstlane_b32 s26, v6
    v_pk_add_f32 {v(A+8,2)}, {v(A+8,2)}, {v(S[0]+8,2)}
    v_pk_add_f32 {v(A+10,2)}, {v(A+10,2)}, {v(S[0]+10,2)}
    v_rcp_f32 v{C}, v{A+8}
    s_cmp_gt_u32 s26, s{MODE}
    v_mov_b32 v{C+1}, v{C}
    s_cbranch_scc1 L_at_fallback
    s_waitcnt lgkmcnt(0)
    v_permlane32_swap_b32 v{C}, v{C+1}""")
    for i in range(0, 8, 2): a(f"v_pk_add_f32 {v(A+i,2)}, {v(A+i,2)}, {v(S[0]+i,2)}")
    for i in range(0, 12, 2): a(f"v_pk_mul_f32 {v(A+i,2)}, {v(A+i,2)}, {v(C,2)} op_sel:[0,1] op_sel_hi:[1,1]")
    for i in range(6): a(f"v_cvt_pk_bf16_f32 v{P[0]+i}, v{A+2*i}, v{A+2*i+1}")
    modes = [OSC]
    if '--dbl' in sys.argv: modes = ['sc1', '']
    if '--dbl2' in sys.argv: modes = ['', 'sc1', '']
    if '--osc' in sys.argv: modes = [sys.argv[sys.argv.index('--osc')+1].replace('_', ' ')]
    for md in modes:
        a(f"""buffer_store_dwordx4 {v(P[0],4)}, v{OSA}, s[12:15], s22 offen {md}
        s_mov_b32 exec_hi, 0
        buffer_store_dwordx2 {v(P[0]+4,2)}, v{OST}, s[12:15], s23 offen {md}
        s_mov_b32 exec_hi, -1""")
    if '--dpf' in sys.argv:
        diag_wait(a, '--dpf'); o_prefetch(a, 'd'); a('s_waitcnt vmcnt(0)')
    diag_wait(a, '--dos')
    stamp(a, 12)
    stamp(a, 51, True)

    def cold():
        a.label("L_at_fc")
        set_flag(a, FCOFF, 6)
        a(f"s_mov_b32 s{FCOFF}, 0\ns_branch L_at_back")
        a.label("L_at_fallback")
        a(f"s_mov_b32 s{MODE}, 1")
        a.label("L_at_refill")
        a("s_waitcnt vmcnt(0) lgkmcnt(0)\ns_barrier")
        attn_reset(a)
        for j in range(3):
            if j == 2: a(f"s_cmp_ge_u32 s{WV}, 4\ns_cbranch_scc1 L_at_f3")
            a(f"s_mov_b32 m0, s{KL[j]}\ns_sub_u32 s22, s{KS[j]}, {TTS_}\nbuffer_load_dwordx4 v{DMV}, s[12:15], s22 offen sc1 lds")
        a.label("L_at_f3")
        a("s_waitcnt vmcnt(0)\ns_branch L_attn")
        a.label("L_at_maxpass")
        MX = [P[0], P[1]]
        for q in range(2):
            a(f"v_cndmask_b32 v{Q1[q]}, 0, v{Q1[q]}, vcc\nv_cndmask_b32 v{Q1[q]+1}, 0, v{Q1[q]+1}, vcc\nv_mov_b32 v{MX[q]}, 0xff800000")
        a.label("L_at_mloop")
        for T in range(4):
            a(J(kr(T, 0)) + "\ns_waitcnt lgkmcnt(0)")
            qk(0, 0); qk(1, 0)
            a("s_nop 7\ns_nop 3")
            for q in range(2): tilemax(a, MX[q], S[q], False)
        a("s_add_u32 s30, s30, 1\ns_cmp_eq_u32 s30, 8\ns_cbranch_scc1 L_at_mdone\ns_barrier")
        for j in range(3):
            if j == 2: a(f"s_cmp_ge_u32 s{WV}, 4\ns_cbranch_scc1 L_at_m3")
            a(f"s_mov_b32 m0, s{KL[j]}\ns_nop 0\nbuffer_load_dwordx4 v{DMV}, s[12:15], s{KS[j]} offen sc1 lds\ns_add_u32 s{KS[j]}, s{KS[j]}, {TTS_}")
        a.label("L_at_m3")
        a("s_waitcnt vmcnt(0)\ns_barrier\ns_branch L_at_mloop")
        a.label("L_at_mdone")
        a(f"""s_lshl_b32 s22, s{WV}, 10
        v_add_u32 v4, s22, v{DMV}
        v_xor_b32 v5, 4096, v4""")
        for q in range(2): halfmax(a, MX[q]); a(f"ds_write_b32 v4, v{MX[q]} offset:{ARING + 2*SLOT + 4*q}")
        a("s_waitcnt lgkmcnt(0)\ns_barrier")
        for q in range(2): a(f"ds_read_b32 v{S[0]+q}, v5 offset:{ARING + 2*SLOT + 4*(1-q)}")
        a("s_waitcnt lgkmcnt(0)")
        for q in range(2):
            a(f"v_max_f32 v{MX[q]}, v{MX[q]}, v{S[0]+q}"); set_m(a, q, MX[q])
        a(f"s_mov_b32 s{MODE}, 2\ns_branch L_at_refill")
    return cold

def tail(a):
    ACC = 8
    order = [3, 2, 1, 0]
    THR = int(sys.argv[sys.argv.index('--thr')+1]) if '--thr' in sys.argv else 1
    PD = int(sys.argv[sys.argv.index('--pd')+1]) if '--pd' in sys.argv else 2
    def rlist(i, slot):
        t = Asm(); wo_reads(t, i, slot); return [l.strip() for l in t.lines]
    def loads(x):
        for e in range(2): a(f"buffer_load_dwordx4 {v(OFR[2*x+e],4)}, v5, s[12:15], s{TOS if x < 2 else 27} offen offset:{((2*x+e)&3)*1024} sc1")
        a(f"buffer_load_dwordx2 {v(OFR[8]+2*x,2)}, v1, s[12:15], s{TTS} offen offset:{x*512} sc1")
    def check(x, mask):
        r0, r1, rt = OFR[2*x], OFR[2*x+1], OFR[8] + 2*x
        a(f"""v_max3_u32 v4, v{r0}, v{r0+1}, v{r0+2}
        v_max3_u32 v4, v4, v{r0+3}, v{r1}
        v_max3_u32 v4, v4, v{r1+1}, v{r1+2}
        v_max3_u32 v4, v4, v{r1+3}, v{rt}
        v_max_u32 v4, v4, v{rt+1}""")
        if mask: a("v_and_b32 v4, s31, v4")
        a("v_cmp_eq_u32 vcc, -1, v4")
    def rowstore(base, T):
        for j in range(3): a(f"ds_read_b128 {v(T+4*j,4)}, v6 offset:{base + 960*j}")
        a(f"s_mov_b32 exec_hi, 0x0fffffff\ns_add_u32 s22, s{TFS}, {6*2560}\ns_add_u32 s23, s{TFS}, {12*2560}")
        for j in range(3):
            if j == 2: a("s_mov_b32 exec_hi, 0xff")
            a(f"s_waitcnt lgkmcnt({2-j})\nbuffer_store_dwordx4 {v(T+4*j,4)}, v{FS0}, s[8:11], s{[TFS, 22, 23][j]} offen {OUTSC}")
        a("s_mov_b32 exec_hi, -1")
    srd(a, 8, P_OUT, 2048*2560)
    a(f"""v_mov_b32 v5, v{DMV}
    v_lshlrev_b32 v1, 3, v2
    s_mov_b32 s50, 0
    s_mov_b32 s29, 15
    s_add_u32 s27, s{TOS}, 4096
    s_mul_i32 s22, s{HW}, 5120
    v_add_u32 v6, s22, v5
""")
    Y = WFR[8]
    a(f"s_cmp_eq_u32 s{KH}, 1\ns_cbranch_scc1 L_t_ny")
    for m in range(5): a(f"ds_read_b64_tr_b16 {v(Y+2*m,2)}, v{YT} offset:{YSRC + m*2048}")
    for m in range(5): a(f"s_waitcnt lgkmcnt(4)\nds_write_b64 v{FIW}, {v(Y+2*m,2)} offset:{PART + 32*m}")
    rowstore(PART, WFR[3])
    a.label("L_t_ny")
    for i in (7, 6, 5, 4, 3, 2, 1, 0, 8): wo_reads(a, i, i)
    for i in range(0, 20, 2): a(f"v_mov_b64 {v(ACC+i,2)}, 0")
    stamp(a, 44, True)
    a.label("L_t_loop")
    for x in order:
        a(f"s_bitcmp0_b32 s29, {x}\ns_cbranch_scc1 L_t_no{x}")
        loads(x)
        a.label(f"L_t_no{x}")
    a(f"""s_add_u32 s50, s50, 1
    s_cmp_gt_u32 s50, {SPIN}
    s_cselect_b32 s31, 0, -1
    s_mov_b32 s28, s29
    s_waitcnt lgkmcnt(0)""")
    for n, x in enumerate(order):
        a(f"s_bitcmp0_b32 s28, {x}\ns_cbranch_scc1 L_t_co{x}")
        if x > 0:
            a(f"s_and_b32 s22, s28, {(1 << x) - 1}\ns_bcnt1_i32_b32 s22, s22")
            for k in range(x, 0, -1):
                a(f"s_waitcnt vmcnt({3*k})\ns_cmp_eq_u32 s22, {k}\ns_cbranch_scc1 L_t_w{x}")
        a("s_waitcnt vmcnt(0)")
        a.label(f"L_t_w{x}")
        check(x, True)
        a(f"s_cbranch_vccnz L_t_co{x}\ns_bitset0_b32 s29, {x}")
        for e in (1, 0):
            for m in range(5): a(m16(ACC+4*m, WFR[2*x+e]+4*m, OFR[2*x+e], ACC+4*m))
        a.label(f"L_t_co{x}")
    if '--tl' in sys.argv:
        a("s_cmp_lg_u32 s50, 1\ns_cbranch_scc1 L_t_tl")
        stamp(a, 45, True)
        a(f"v_writelane_b32 v{PV}, s29, 28")
        a.label("L_t_tl")
    a("s_cmp_lg_u32 s29, 0\ns_cbranch_scc1 L_t_loop")
    wo_reads(a, 9, 7)
    a("s_waitcnt lgkmcnt(10)")
    for m in range(5): a(m16(ACC+4*m, WFR[8]+4*m, OFR[8], ACC+4*m))
    for m in range(5):
        a(f"s_waitcnt lgkmcnt({8-2*m})")
        a(m16(ACC+4*m, WFR[7]+4*m, OFR[9], ACC+4*m))
    stamp(a, 15)
    stamp(a, 52, True)
    if PROF: a(f"v_writelane_b32 v{PV}, s50, 29")
    T = 128
    a(f"s_cmp_eq_u32 s{KH}, 1\ns_cbranch_scc1 L_t_r1\ns_nop 3")
    for m in range(5): a(f"ds_write_b128 v6, {v(ACC+4*m,4)} offset:{PART + m*1024}")
    a("s_waitcnt lgkmcnt(0)\ns_barrier\ns_branch L_t_fin")
    a.label("L_t_r1")
    a("s_barrier")
    for m in range(5): a(f"ds_read_b128 {v(T+4*m,4)}, v6 offset:{PART + m*1024}")
    for m in range(5):
        a(f"s_waitcnt lgkmcnt(4)")
        for i in range(0, 4, 2): a(f"v_pk_add_f32 {v(ACC+4*m+i,2)}, {v(ACC+4*m+i,2)}, {v(T+4*m+i,2)}")
        a(f"v_cvt_pk_bf16_f32 v{ACC+4*m}, v{ACC+4*m}, v{ACC+4*m+1}\nv_cvt_pk_bf16_f32 v{ACC+4*m+1}, v{ACC+4*m+2}, v{ACC+4*m+3}")
        a(f"ds_write_b64 v{FIW}, {v(ACC+4*m,2)} offset:{OIMG + 32*m}")
    stamp(a, 46, True)
    rowstore(OIMG, T+24)
    a.label("L_t_fin")

def main(path):
    a = Asm()
    nm = NAME + "_kernel"
    a(f".globl {nm}\n.p2align 8\n.type {nm},@function")
    a.label(nm)
    if '--early' in sys.argv: a("s_memrealtime s[96:97]")
    a(f"""s_cmp_ge_u32 s2, 256
    s_cbranch_scc1 L_end
    s_load_dwordx16 s[64:79], s[0:1], 0
    s_load_dwordx8 s[80:87], s[0:1], 64
    s_load_dwordx2 s[88:89], s[0:1], 96
    v_lshrrev_b32 v1, 6, v0
    v_and_b32 v2, 63, v0
    v_readfirstlane_b32 s{WV}, v1
    s_and_b32 s{XCD}, s2, 7
    s_lshr_b32 s{IDX}, s2, 3
    s_cmp_lg_u32 s{WV}, 7
    s_cbranch_scc1 L_nopf
    s_cmp_ge_u32 s{IDX}, (L_code_end-{nm})/1024
    s_cbranch_scc1 L_nopf
    s_getpc_b64 s[22:23]""")
    a.label("L_pc")
    a(f"""s_lshl_b32 s24, s{IDX}, 10
    s_sub_u32 s22, s22, L_pc-{nm}
    s_subb_u32 s23, s23, 0
    v_lshl_add_u32 v4, v2, 4, s24
    v_mov_b32 v5, s23
    v_add_co_u32 v4, vcc, s22, v4
    s_nop 1
    v_addc_co_u32 v5, vcc, 0, v5, vcc
    global_load_dwordx4 v[220:223], v[4:5], off""")
    a.label("L_nopf")
    if PROF:
        a(f"v_mov_b32 v{PV}, 0\ns_memrealtime s[90:91]\ns_memtime s[92:93]")
    a(f"""s_and_b32 s{HW}, s{WV}, 3
    s_lshr_b32 s{KH}, s{WV}, 2
    s_mul_i32 s{CHN}, s{XCD}, 20
    s_add_u32 s{CHN}, s{CHN}, s{IDX}
    s_lshl_b32 s{CHN}, s{CHN}, 2
    s_add_u32 s{CHN}, s{CHN}, s{HW}
    s_lshl_b32 s22, s{CHN}, 8
    v_lshl_add_u32 v6, v2, 2, s22
    s_lshl_b32 s22, s{CHN}, 1
    v_mov_b32 v7, s22
    v_lshlrev_b32 v{DMV}, 4, v2
    s_mov_b32 s{FCOFF}, 0
    s_mov_b32 s{MODE}, 0""")
    a(f"""s_cmp_ge_u32 s{IDX}, 20
    s_cbranch_scc1 L_e_np
    s_waitcnt lgkmcnt(0)""")
    for i in range(4): a(f"global_load_dword v{PRM+i}, v6, s[{P_LA+2*i}:{P_LA+2*i+1}] {PNT}")
    a(f"""global_load_ushort v{PRM+4}, v7, s[{P_DT}:{P_DT+1}]
    global_load_ushort v{VD}, v7, s[{P_D}:{P_D+1}]""")
    a.label("L_e_np")
    loader_math(a)
    a("s_waitcnt lgkmcnt(0)")
    if PROF: a(f"v_writelane_b32 v{PV}, s90, 0\nv_writelane_b32 v{PV}, s92, 1")
    srd(a, 60, P_X, 2048*1280)
    srd(a, 8, P_W, 640*3840)
    srd(a, 12, P_WS, WS_SIZE)
    if PF:
        a(f"""s_cmp_eq_u32 s{KH}, 1
        s_cbranch_scc1 L_nopx
        s_lshl_b32 s22, s{IDX}, 2
        s_add_u32 s22, s22, s{HW}
        s_lshl_b32 s23, s{XCD}, 7
        s_add_u32 s23, s23, s22
        s_mul_i32 s23, s23, 2560
        buffer_load_dwordx4 v[208:211], v{DMV}, s[60:63], s23 offen
        buffer_load_dwordx4 v[208:211], v{DMV}, s[60:63], s23 offen offset:1024
        buffer_load_dwordx4 v[208:211], v{DMV}, s[60:63], s23 offen offset:1536
        s_mul_i32 s22, s22, 3
        s_lshr_b32 s23, s{XCD}, 1
        s_mul_i32 s23, s23, {160*3840}
        s_and_b32 s24, s{XCD}, 1
        s_mul_i32 s24, s24, 1792
        s_add_u32 s23, s23, s24""")
        for j in range(3):
            a(f"""s_lshr_b32 s24, s22, 1
            s_mul_i32 s24, s24, 3840
            s_and_b32 s26, s22, 1
            s_lshl_b32 s26, s26, 10
            s_add_u32 s24, s24, s26
            s_add_u32 s24, s24, s23
            s_cmp_ge_u32 s22, 320
            s_cselect_b32 s24, 0x7000000, s24
            s_add_u32 s22, s22, 1
            buffer_load_dwordx4 v[208:211], v{DMV}, s[8:11], s24 offen""")
        a.label("L_nopx")
    if TLB:
        a(f"s_cmp_lg_u32 s{WV}, 6\ns_cbranch_scc1 L_notlb")
        srd(a, 4, P_OUT, 2048*2560)
        if TLB == 1:
            a(f"""v_lshlrev_b32 v3, 20, v2
            s_mov_b64 exec, 0x3ffff
            buffer_load_dword v220, v3, s[12:15], 0 offen
            s_mov_b64 exec, 0x1f
            buffer_load_dword v221, v3, s[4:7], 0 offen""")
        else:
            a(f"""s_mul_i32 s22, s{IDX}, {9*65536}
            v_lshlrev_b32 v3, 16, v2
            s_mov_b64 exec, 0x1ff
            buffer_load_dword v220, v3, s[12:15], s22 offen
            s_mul_i32 s22, s{IDX}, {3*65536}
            s_mov_b64 exec, 7
            buffer_load_dword v221, v3, s[4:7], s22 offen""")
        srd(a, 4, P_WO, 640*1280)
        a(f"""v_lshlrev_b32 v3, 16, v2
        s_mov_b64 exec, 0x1fff
        buffer_load_dword v222, v3, s[4:7], 0 offen
        s_mov_b64 exec, -1""")
        a.label("L_notlb")
    a(f"""s_cmp_ge_u32 s{IDX}, 30
    s_cbranch_scc1 L_e_tr
    s_cmp_lt_u32 s{IDX}, 20
    s_cselect_b32 s22, 1, 0
    s_cmp_lg_u32 s22, s{KH}
    s_cbranch_scc1 L_e_x
    s_cmp_eq_u32 s{KH}, 1
    s_cbranch_scc1 L_g_pro
    s_barrier""")
    a.label("L_g_pro")
    issue(a)
    stamp(a, 41)
    a(f"s_cmp_eq_u32 s{KH}, 0\ns_cbranch_scc1 L_gemm")
    if NH == 2: issue(a)
    else: skip(a)
    a("s_branch L_helper")
    a.label("L_e_x")
    a(f"""s_cmp_eq_u32 s{KH}, 1
    s_cbranch_scc1 L_nn
    s_setprio 2
    s_branch L_kgen""")
    a.label("L_e_tr")
    a(f"""s_lshl_b32 s26, s{XCD}, 1
    s_add_u32 s26, s26, s{IDX}
    s_sub_u32 s26, s26, 30
    s_lshl_b32 s26, s26, 3
    s_add_u32 s26, s26, s{WV}
    s_lshl_b32 s27, s{WV}, 13
    s_add_u32 s27, s27, 16384
    s_branch L_e_ut""")
    a.label("L_nn")
    a(f"""s_mul_i32 s26, s{XCD}, 10
    s_add_u32 s26, s26, s{IDX}
    s_mul_i32 s22, s{HW}, 80
    s_add_u32 s26, s26, s22
    s_add_u32 s26, s26, {128 - 20}
    s_lshl_b32 s27, s{HW}, 13
    s_add_u32 s27, s27, {SCR}
    s_cmp_lt_u32 s26, 320
    s_cbranch_scc1 L_e_ut
    s_cmp_lg_u32 s26, {128 + 240}
    s_cbranch_scc1 L_e_eb
    s_memrealtime s[22:23]
    v_mov_b32 v3, 0
    s_waitcnt lgkmcnt(0)
    s_or_b32 s22, s22, 1
    v_mov_b32 v4, s22
    s_mov_b64 exec, 1
    global_store_dword v3, v4, s[{P_DBG}:{P_DBG+1}] sc1
    s_mov_b64 exec, -1
    s_branch L_e_eb""")
    a.label("L_e_ut")
    utile_issue(a)
    a.label("L_e_eb")
    a("s_barrier")
    a(f"s_cmp_ge_u32 s{IDX}, 30\ns_cbranch_scc1 L_utile")
    a.label("L_helper")
    helper(a)
    a.label("L_g_kb")
    skip(a)
    if NH == 2: skip(a)
    else: issue(a)
    issue(a)
    if P4: issue(a)
    a(f"s_setprio {MP}\nv_add_u32 v6, s28, v{DMV}")
    for i in range(4): a(f"ds_write_b128 v6, {v(KACC+4*i,4)} offset:{1024*i}")
    a.label("L_gemm")
    gemm(a)
    a.label("L_w1")
    window1(a)
    a.label("L_attn")
    cold = attention(a)
    tail(a)
    diag_wait(a, '--dend')
    if PROF:
        a("s_waitcnt vmcnt(0)")
        stamp(a, 16); stamp(a, 17, True)
        a(f"""s_lshl_b32 s22, s2, 3
        s_add_u32 s22, s22, s{WV}
        s_lshl_b32 s22, s22, 8
        s_add_u32 s22, s22, {WS_PROF}
        v_lshlrev_b32 v3, 2, v2
        buffer_store_dword v{PV}, v3, s[12:15], s22 offen""")
    a.label("L_end")
    a("s_endpgm")
    a.label("L_tr_back")
    arr_init(a)
    a(f"s_waitcnt lgkmcnt(0)\ns_barrier\ns_cmp_lt_u32 s{WV}, 4\ns_cbranch_scc1 L_w1\ns_branch L_h_ids")
    cold()
    a(f".fill (1024 - ((. - {nm}) % 1024))/4, 4, 0xbf810000")
    a.label("L_code_end")
    hdr = open("cdna_kernels/" + NAME + ".s.ref").read().split("\n")
    head = [l for l in hdr[:15] if l.startswith(";") and "@launch" not in l and "Override" not in l and "grid=ceil" not in l]
    txt = "\n".join(head) + "\n; @launch grid=(256,1,1) block=(512,1,1) lds=163840\n"
    txt += '.amdgcn_target "amdgcn-amd-amdhsa--gfx950"\n.text\n' + a.text()
    txt += f""".section .rodata,"a"
.p2align 6
.amdhsa_kernel {nm}
  .amdhsa_next_free_vgpr 256
  .amdhsa_next_free_sgpr 102
  .amdhsa_accum_offset 256
  .amdhsa_group_segment_fixed_size 0
  .amdhsa_kernarg_size 104
  .amdhsa_user_sgpr_count 2
  .amdhsa_user_sgpr_kernarg_segment_ptr 1
  .amdhsa_system_sgpr_workgroup_id_x 1
.end_amdhsa_kernel
"""
    open(path, "w").write(txt)
    errs = check_hazards(a.text())
    for e in errs[:30]: print("HAZARD", e)
    print(f"{path}: {len(a.lines)} lines, {len(errs)} hazards")

if __name__ == "__main__":
    main([x for x in sys.argv[1:] if x.endswith(".s")][0])
```

```python
import math, sys
from asmlib import *

NAME = "concat_heads__ssm_conv_s4d__mha_block__prompt"
WS_QKV = 0
WS_O = 0x800000
WS_UT = 0xB00000
WS_YT = 0xE00000 if '--sepy' in sys.argv else 0xB00000
WS_FA = 0x1100000
WS_FB = 0x1110000
WS_FC = 0x1120000
WS_FE = 0x1130000
WS_PROF = 0x1300000
WS_SIZE = 0x1400000
TTS_ = 480*1024
OG = 20480
RS = 4352
LOG2E = math.log2(math.e)
QSCALE = LOG2E / math.sqrt(20.0)
PROF = "--prof" in sys.argv
M0 = "--nom0" not in sys.argv
SPIN = 0x40000
NT = int(sys.argv[sys.argv.index('--nt')+1]) if '--nt' in sys.argv else 128
PT = sys.argv[sys.argv.index('--pt')+1] if '--pt' in sys.argv else ''
PTC = int(sys.argv[sys.argv.index('--ptc')+1]) if '--ptc' in sys.argv else 3
CW = True
NH = int(sys.argv[sys.argv.index('--nh')+1]) if '--nh' in sys.argv else 2
MP = int(sys.argv[sys.argv.index('--mp')+1]) if '--mp' in sys.argv else 2
XROT = int(sys.argv[sys.argv.index('--xrot')+1]) if '--xrot' in sys.argv else 0
LATE = int(sys.argv[sys.argv.index('--late')+1]) if '--late' in sys.argv else 0
PSL = int(sys.argv[sys.argv.index('--psl')+1]) if '--psl' in sys.argv else 0
PRE = int(sys.argv[sys.argv.index('--pre')+1]) if '--pre' in sys.argv else 4
PRE2 = int(sys.argv[sys.argv.index('--pre2')+1]) if '--pre2' in sys.argv else 0
PACKA = '--nopacka' not in sys.argv
ALN = int(sys.argv[sys.argv.index('--al')+1]) if '--al' in sys.argv else 0
ALP = int(sys.argv[sys.argv.index('--alp')+1]) if '--alp' in sys.argv else 6
FILL1 = int(sys.argv[sys.argv.index('--fill')+1]) if '--fill' in sys.argv else 0
OUTSC = sys.argv[sys.argv.index('--outsc')+1].replace('_', ' ') if '--outsc' in sys.argv else ''
TLB = int(sys.argv[sys.argv.index('--tlb')+1]) if '--tlb' in sys.argv else 0
POLLC = int(sys.argv[sys.argv.index('--pollc')+1]) if '--pollc' in sys.argv else 5
UP = int(sys.argv[sys.argv.index('--up')+1]) if '--up' in sys.argv else 1
UNT = '' if '--nount' in sys.argv else 'nt'
PF = '--pf' in sys.argv
PNT = 'nt'
FB_ = True
P4 = True
X16 = '--x16' in sys.argv
PRIO = [int(x) for x in sys.argv[sys.argv.index('--prio')+1].split(',')] if '--prio' in sys.argv else [0, 16, 26, 30]
LOC = '--loc' in sys.argv
OSC = '' if '--plainO' in sys.argv else 'sc1'
SPEC = int(sys.argv[sys.argv.index('--spec')+1]) if '--spec' in sys.argv else 1
XNT = "nt" if "--xnt" in sys.argv else ""
WNT = "nt" if "--wnt" in sys.argv else ""
J = "\n".join

WV, XCD, IDX, NONCE = 16, 17, 18, 19
TT, CT = 20, 21
FCOFF, HEAD5, QB, OOFF = 36, 37, 38, 39
KS = [40, 41, 42]; KL = [44, 45, 46]
MODE, KH, KHOFF = 47, 48, 49
HW, CHN = 51, 52
OOCT, OTAIL = 54, 55
XS, WSO, LB = 56, 57, 99
TB = 58
P_U, P_LA, P_AI, P_CR, P_CI, P_DT, P_D, P_X, P_W, P_WO, P_OUT, P_DBG, P_WS = range(64, 90, 2)
WOS, WOL = 94, 95
MK, MK2, MC = 33+1, 35, 100
MW = [101, 25]
PV = 255
DX, DW = 240, 244
PL1, PL2 = 234, 235
DMV, KA, K4, VA, MSK, MS4, WOV, QA4, QA0 = range(224, 233)

RING = 32768
SCR = 3*RING
UST = 4640
KOFF = 4*UST
CHA = KOFF + 4224
CVB = 65536
PST = 2048 + 32
SLOT = 20992
FLAGW = 0
CONSTP = 64
ARING = 1280
QLDS = ARING + 2*SLOT
WOB = 163840 - 107*960 - 64
EXC = ARING
YSRC = WOB - 10240
PART = 25856
KSC = SCR
CNT = 129536
ARRW = CNT
OIMG = ARING
assert CVB + 4*CHA <= 163840 and ARING + 3*SLOT <= 65536 and ARING + 3*SLOT <= WOB + 11*960
assert EXC + 24576 <= PART and PART + 20480 <= YSRC and YSRC >= ARING + 2*SLOT and EXC + 24576 <= ARING + SLOT + 5*PST and OIMG + 20480 <= PART

def srd(a, d, lo, size):
    a(f"s_mov_b32 s{d}, s{lo}\ns_and_b32 s{d+1}, s{lo+1}, 0xffff\ns_mov_b32 s{d+2}, {size}\ns_mov_b32 s{d+3}, 0x20000")
def m32(d, x, y, c=None):
    return f"v_mfma_f32_32x32x16_bf16 {v(d,16)}, {v(x,4)}, {v(y,4)}, {v(c,16) if c is not None else 0}"
def m32x8(d, x, y, c):
    if X16: return f"v_mfma_f32_32x32x16_bf16 {v(d,16)}, {v(x-2,4)}, {v(y-2,4)}, {v(c,16)}"
    return f"v_mfma_f32_32x32x8_bf16 {v(d,16)}, {v(x,2)}, {v(y,2)}, {v(c,16)}"
def m16(d, x, y, c=None):
    return f"v_mfma_f32_16x16x32_bf16 {v(d,4)}, {v(x,4)}, {v(y,4)}, {v(c,4) if c is not None else 0}"
LITE = "--lite" in sys.argv
def stamp(a, i, real=False):
    if LITE and i not in (50, 51, 53, 17) + ((52, 44, 45, 46, 47) if '--tl' in sys.argv and real else ()): return
    if PROF: a(f"s_mem{'real' if real else ''}time s[92:93]\ns_waitcnt lgkmcnt(0)\nv_writelane_b32 v{PV}, s92, {i}")

def diag_wait(a, key):
    if key not in sys.argv: return
    x = int(sys.argv[sys.argv.index(key)+1]) * 100
    l = a.newlabel("L_dg")
    a.label(l)
    a(f"""s_memrealtime s[90:91]
    s_waitcnt lgkmcnt(0)
    s_sub_u32 s90, s90, s{NONCE}
    s_cmp_lt_u32 s90, {x}
    s_cbranch_scc1 {l}""")

def get_nonce(a):
    l = a.newlabel("L_nonce"); e = a.newlabel("L_nonce_e")
    a(f"""s_load_dword s{NONCE}, s[{P_DBG}:{P_DBG+1}], 0
    s_mov_b32 s50, 0
    v_mov_b32 v222, 0
    s_waitcnt lgkmcnt(0)""")
    a.label(l)
    a(f"""s_cmp_lg_u32 s{NONCE}, 0
    s_cbranch_scc1 {e}
    global_load_dword v223, v222, s[{P_DBG}:{P_DBG+1}] sc1
    s_add_u32 s50, s50, 1
    s_waitcnt vmcnt(0)
    v_readfirstlane_b32 s{NONCE}, v223
    s_cmp_lt_u32 s50, {SPIN}
    s_cbranch_scc1 {l}""")
    a.label(e)

def poll(a, addrs, width, vt, preloaded=False, sleep=0, cnt=50):
    l = a.newlabel("L_poll"); e = a.newlabel("L_poll_e")
    sfx = {1: "dword", 4: "dwordx4"}[width]
    a(f"s_mov_b32 s{cnt}, 0")
    if preloaded: a(f"s_branch {l}_c")
    a.label(l)
    for k, ad in enumerate(addrs): a(f"buffer_load_{sfx} {v(vt+4*k,width)}, v{ad}, s[12:15], 0 offen sc1")
    a(f"s_add_u32 s{cnt}, s{cnt}, 1\ns_waitcnt vmcnt(0)")
    a.label(l + "_c")
    regs = [vt+4*k+j for k in range(len(addrs)) for j in range(width)]
    for r in regs: a(f"v_xor_b32 v{r}, s{NONCE}, v{r}")
    for r in regs[1:]: a(f"v_or_b32 v{regs[0]}, v{regs[0]}, v{r}")
    a(f"""v_cmp_ne_u32 vcc, 0, v{regs[0]}
    s_cmp_gt_u32 s{cnt}, {SPIN}
    s_cbranch_scc1 {e}""")
    if sleep: a(f"s_cbranch_vccz {e}\ns_sleep {sleep}\ns_branch {l}")
    else: a(f"s_cbranch_vccnz {l}")
    a.label(e)

def set_flag(a, soff, vt):
    a(f"""v_mov_b32 v{vt}, 0
    v_mov_b32 v{vt+1}, s{NONCE}
    s_mov_b64 exec, 1
    buffer_store_dword v{vt+1}, v{vt}, s[12:15], s{soff} offen sc1
    s_mov_b64 exec, -1""")

def attn_ids(a):
    if LOC: a(f"s_mov_b32 s{HEAD5}, s{IDX}\ns_mov_b32 s{QB}, s{XCD}")
    else: a(f"""s_lshl_b32 s{HEAD5}, s{XCD}, 2
    s_lshr_b32 s22, s{IDX}, 3
    s_add_u32 s{HEAD5}, s{HEAD5}, s22
    s_and_b32 s{QB}, s{IDX}, 7""")
    a(f"""s_mul_i32 s22, s{QB}, {16*OG}
    s_add_u32 s22, s22, {WS_O}
    s_lshl_b32 s{OOCT}, s{HEAD5}, 9
    s_add_u32 s{OOCT}, s{OOCT}, s22
    s_lshl_b32 s{OTAIL}, s{HEAD5}, 7
    s_add_u32 s{OTAIL}, s{OTAIL}, s22
    s_add_u32 s{OTAIL}, s{OTAIL}, 16384
    s_mul_i32 s{HEAD5}, s{HEAD5}, 5
    s_lshl_b32 s{OOFF}, s{HEAD5}, 10
    s_mul_i32 s22, s{QB}, {2*TTS_}
    s_add_u32 s{OOFF}, s{OOFF}, s22""")

def clear_o(a, q=HW):
    a(f"""v_lshrrev_b32 v140, 5, v2
    v_mul_u32_u24 v140, {2*OG}, v140
    v_add_u32 v140, v140, v{OST}
    v_mov_b32 v136, -1
    v_mov_b32 v137, -1
    v_mov_b32 v138, -1
    v_mov_b32 v139, -1
    s_mul_i32 s24, s{q}, {4*OG}
    s_add_u32 s22, s24, s{OOCT}
    s_add_u32 s23, s22, {2*OG}
    s_add_u32 s24, s24, s{OTAIL}
    buffer_store_dwordx4 v[136:139], v{OSA}, s[12:15], s22 offen sc1
    buffer_store_dwordx4 v[136:139], v{OSA}, s[12:15], s23 offen sc1
    buffer_store_dwordx2 v[136:137], v140, s[12:15], s24 offen sc1""")

def arr_init(a):
    a(f"v_mov_b32 v220, {CNT}\nv_mov_b32 v222, 0\nv_mov_b32 v223, 0\nds_write_b64 v220, v[222:223]")

def utile_issue(a):
    srd(a, 4, P_U, 2048*1280)
    a(f"""v_lshlrev_b32 v4, 4, v9
    v_mul_u32_u24 v3, 1280, v8
    v_add_u32 v3, v3, v4
    s_mov_b32 m0, s27
    s_lshr_b32 s23, s26, 5
    s_and_b32 s28, s26, 31
    s_mul_i32 s24, s28, {64*1280}
    s_lshl_b32 s22, s23, 7
    s_add_u32 s24, s24, s22
    s_mov_b32 s30, 0""")
    a.label("L_ut_i")
    a(f"""buffer_load_dwordx4 v3, s[4:7], s24 offen {UNT} lds
    s_add_u32 m0, m0, 1024
    s_add_u32 s24, s24, {8*1280}
    s_add_u32 s30, s30, 1
    s_cmp_lt_u32 s30, 8
    s_cbranch_scc1 L_ut_i""")
def utile(a):
    A0, A1, A2, A3, D = 8, 9, 10, 11, 12
    a(f"""s_lshr_b32 s23, s26, 5
    v_xor_b32 v{A1}, v{A1}, v{A0}
    v_lshlrev_b32 v{A1}, 4, v{A1}
    v_mul_u32_u24 v{A3}, {RS}, v{A0}
    v_add_u32 v{A3}, v{A3}, v{A1}
    v_lshlrev_b32 v{A0}, 4, v2
    v_add_u32 v{A0}, s27, v{A0}
    v_bfe_u32 v{A1}, v2, 2, 2
    v_lshlrev_b32 v{A1}, 7, v{A1}
    v_lshrrev_b32 v{A2}, 4, v2
    v_lshl_add_u32 v{A1}, v{A2}, 5, v{A1}
    v_and_b32 v{A2}, 3, v2
    v_lshl_add_u32 v{A1}, v{A2}, 3, v{A1}
    v_add_u32 v{A1}, s27, v{A1}
    v_and_b32 v{A2}, 7, v2
    v_lshlrev_b32 v{A2}, 4, v{A2}
    v_lshl_add_u32 v{A2}, v2, 7, v{A2}
    v_add_u32 v{A2}, s27, v{A2}
    s_mul_i32 s23, s23, {64*RS}
    s_lshl_b32 s24, s28, 7
    s_add_u32 s24, s24, s23
    s_add_u32 s24, s24, {WS_UT}
    s_lshl_b32 s29, s26, {2 if PACKA else 7}
    s_add_u32 s29, s29, {WS_FA}""")
    stamp(a, 27)
    a("s_waitcnt vmcnt(0)")
    stamp(a, 28)
    for i in range(16): a(f"ds_read_b64_tr_b16 {v(D+2*i,2)}, v{A1} offset:{i*512}")
    a("s_waitcnt lgkmcnt(0)")
    for i in range(8): a(f"v_xor_b32 v4, {16*i}, v{A2}\nds_write_b128 v4, {v(D+4*i,4)}")
    a("s_waitcnt lgkmcnt(0)")
    for i in range(8): a(f"ds_read_b128 {v(D+4*i,4)}, v{A0} offset:{i*1024}")
    for i in range(8):
        a(f"s_waitcnt lgkmcnt({7-i})\nbuffer_store_dwordx4 {v(D+4*i,4)}, v{A3}, s[12:15], s24 offen sc1\ns_add_u32 s24, s24, {8*RS}")
    stamp(a, 2)
    a(f"s_mov_b32 s33, 1\ns_cmp_lt_u32 s{IDX}, 30\ns_cbranch_scc1 L_h_ld0")
    get_nonce(a)
    a("s_waitcnt vmcnt(0)")
    set_flag(a, 29, 4)
    stamp(a, 3)

def next_slot(a, cur, tmp):
    a(f"""s_add_u32 s{cur}, s{cur}, {RING}
    s_lshr_b32 s{tmp}, s{cur}, 15
    s_cmp_eq_u32 s{tmp}, 3
    s_cselect_b32 s{tmp}, {RING}, 0
    s_add_u32 s{cur}, s{cur}, s{tmp}
    s_cmp_ge_u32 s{cur}, {5*RING}
    s_cselect_b32 s{tmp}, {5*RING}, 0
    s_sub_u32 s{cur}, s{cur}, s{tmp}""")

ORD = sys.argv[sys.argv.index('--ord')+1] if '--ord' in sys.argv else 'q3'
def orders():
    if ORD == 'none': return [list(range(10))]*4
    if ORD == 'pair': return [[c ^ (t & 1) for c in range(10)] for t in range(4)]
    if ORD == 'quad': return [[(c ^ t) if c < 8 else (c ^ (t & 1)) for c in range(10)] for t in range(4)]
    if ORD == 'quad2': return [[(c ^ (t & 1)) if c < 2 else 2 + ((c - 2) ^ t) for c in range(10)] for t in range(4)]
    if ORD == 'quad3': return [[(c ^ t) if c < 4 else ((c ^ (t & 1)) if c < 6 else 6 + ((c - 6) ^ t)) for c in range(10)] for t in range(4)]
    if ORD == 'five': return [[(c // 5) * 5 + (c + (0, 1, 3, 4)[t]) % 5 for c in range(10)] for t in range(4)]
    if ORD == 'mix': return [[(0,4,1,2,8,3,5,6,7,9), (1,5,0,3,9,2,4,7,6,8), (2,6,3,0,8,1,7,4,5,9), (3,7,2,1,9,0,6,5,4,8)][t] for t in range(4)]
    if ORD == 'q3': return [[t & 1, 1 - (t & 1), 2 + t, 6 + t] + [2 + (i ^ t) for i in (1, 2, 3)] + [6 + (i ^ t) for i in (1, 2, 3)] for t in range(4)]
    if ORD == 'q4': return [[t, 4 + t, 8 + (t & 1), t ^ 1, t ^ 2, t ^ 3, 4 + (t ^ 1), 4 + (t ^ 2), 4 + (t ^ 3), 9 - (t & 1)] for t in range(4)]
    if ORD == 'q5': return [[t, t ^ 1, 4 + t, 8 + (t & 1), t ^ 2, t ^ 3, 4 + (t ^ 1), 4 + (t ^ 2), 4 + (t ^ 3), 9 - (t & 1)] for t in range(4)]
    if ORD == 'half': return [[(c + 5*(t & 1)) % 10 for c in range(10)] for t in range(4)]
    if ORD == 'rot': return [[(c + (0, 3, 5, 8)[t]) % 10 for c in range(10)] for t in range(4)]
    if ORD == 'tri': return [[(c//3*3 + (c + t) % 3) if c < 9 else 9 for c in range(10)] for t in (0, 1, 2, 1)]
def loader_math(a):
    a(f"""s_lshr_b32 s{TT}, s{XCD}, 1
    s_lshl_b32 s{TT}, s{TT}, 2
    s_and_b32 s24, s{XCD}, 1
    s_and_b32 s22, s{IDX}, 3
    s_lshr_b32 s23, s{IDX}, 2
    s_lshl_b32 s{CT}, s24, 3
    s_add_u32 s{CT}, s{CT}, s23
    s_lshl_b32 s24, s24, 1
    s_cmp_ge_u32 s{IDX}, 28
    s_cselect_b32 s{CT}, 7, s{CT}
    s_cselect_b32 s24, s24, 0
    s_add_u32 s22, s22, s24
    s_add_u32 s{TT}, s{TT}, s22
    s_add_u32 s22, s{TT}, s{CT}
    s_and_b32 s22, s22, 3""")
    if XROT == 1: a(f"s_mul_i32 s25, s{XCD}, 5\ns_lshr_b32 s25, s25, 2")
    if XROT == 2: a(f"s_and_b32 s25, s{XCD}, 1\ns_mul_i32 s25, s25, 5")
    if XROT == 3: a(f"s_lshr_b32 s25, s{XCD}, 1\ns_mul_i32 s25, s25, 5\ns_lshr_b32 s25, s25, 1")
    tb = [sum(c << (4*i) for i, c in enumerate(o)) for o in orders()]
    a(f"s_mov_b32 s{TB}, {tb[0] & 0xffffffff}\ns_mov_b32 s{TB+1}, {tb[0] >> 32}")
    for t in range(1, 4):
        if tb[t] != tb[0]: a(f"s_cmp_eq_u32 s22, {t}\ns_cselect_b32 s{TB}, {tb[t] & 0xffffffff}, s{TB}\ns_cselect_b32 s{TB+1}, {tb[t] >> 32}, s{TB+1}")
    a(f"""v_lshrrev_b32 v8, 3, v2
    v_and_b32 v9, 7, v2
    v_lshrrev_b32 v5, 1, v8
    s_and_b32 s22, s{HW}, 1
    s_lshl_b32 s22, s22, 2
    v_add_u32 v5, s22, v5
    v_xor_b32 v4, v9, v5
    v_lshlrev_b32 v4, 4, v4
    v_mul_u32_u24 v3, 2560, v8
    v_add_u32 v{DX}, v3, v4
    s_lshl_b32 s{XS}, s{TT}, 3
    s_add_u32 s{XS}, s{XS}, s{HW}
    s_mul_i32 s{XS}, s{XS}, {16*1280}
    v_lshrrev_b32 v3, 4, v2
    v_bfe_u32 v4, v2, 2, 2
    v_xor_b32 v4, v4, v3
    v_lshlrev_b32 v4, 6, v4
    v_and_b32 v5, 3, v2
    v_lshlrev_b32 v5, 4, v5
    v_mul_u32_u24 v3, 3840, v3
    v_add3_u32 v{DW}, v3, v4, v5
    s_lshl_b32 s{WSO}, s{CT}, 8
    s_mul_i32 s22, s{HW}, {4*3840}
    s_add_u32 s{WSO}, s{WSO}, s22
    s_lshl_b32 s{LB}, s{HW}, 10
""")
    for i in range(1, 4):
        a(f"v_add_u32 v{DX+i}, {(64*(i>>1) + (i&1))*1280}, v{DX}\nv_add_u32 v{DW+i}, {i*16*3840}, v{DW}")
def dma_prep():
    xr = f"""
    s_add_u32 s43, s43, s25
    s_cmp_ge_u32 s43, 10
    s_cselect_b32 s100, 10, 0
    s_sub_u32 s43, s43, s100""" if XROT else ""
    return f"""s_and_b32 s43, s{TB}, 15{xr}
    s_lshr_b64 s[{TB}:{TB+1}], s[{TB}:{TB+1}], 4
    s_lshl_b32 s100, s43, 7
    s_add_u32 s100, s100, s{XS}
    s_mul_i32 s101, s43, {64*3840}
    s_add_u32 s101, s101, s{WSO}"""
def issue(a, fill=None):
    a(dma_prep())
    per = (len(fill) + 7) // 8 if fill else 0
    for k in range(8):
        i = k >> 1
        a(f"s_add_u32 m0, s{LB}, {i*4096 + (16384 if k & 1 else 0)}\ns_nop 0")
        a(f"buffer_load_dwordx4 v{(DW if k & 1 else DX)+i}, s[{'8:11' if k & 1 else '60:63'}], s{101 if k & 1 else 100} offen {WNT if k & 1 else XNT} lds")
        if fill:
            n = min(per, len(fill))
            while n < len(fill) and (fill[n].startswith(("s_cselect", "s_addc"))): n += 1
            a(J(fill[:n])); del fill[:n]
    assert not fill
    next_slot(a, LB, 43)
def skip(a):
    a(f"s_lshr_b64 s[{TB}:{TB+1}], s[{TB}:{TB+1}], 4")
    next_slot(a, LB, 22)
def lds_wait(a, va, off, vt, sleep=True):
    l = a.newlabel("L_lw"); e = a.newlabel("L_le")
    a.label(l)
    a(f"""ds_read_b32 v{vt}, v{va} offset:{off}
    s_waitcnt lgkmcnt(0)
    v_readfirstlane_b32 s22, v{vt}
    s_cmp_ge_u32 s22, 4
    s_cbranch_scc1 {e}""")
    if sleep: a("s_sleep 2")
    a(f"s_branch {l}")
    a.label(e)

def main_pre(a):
    def wg_of(tt, ct, dst):
        a(f"""v_cmp_eq_u32 vcc, 7, v{ct}
        v_bfe_u32 v10, v{tt}, 1, 1
        v_lshrrev_b32 v11, 3, v{ct}
        v_cndmask_b32 v10, v11, v10, vcc
        v_and_b32 v11, 3, v{tt}
        v_and_b32 v12, 1, v{tt}
        v_cndmask_b32 v11, v11, v12, vcc
        v_and_b32 v12, 7, v{ct}
        v_lshl_add_u32 v11, v12, 2, v11
        v_lshl_add_u32 v10, v11, 3, v10
        v_lshrrev_b32 v11, 2, v{tt}
        v_lshl_add_u32 v{dst}, v11, 1, v10""")
    a(f"""v_and_b32 v3, 15, v2
    v_lshrrev_b32 v4, 5, v2
    v_mul_u32_u24 v4, 160, v4
    v_bfe_u32 v5, v2, 4, 1
    v_lshl_add_u32 v4, v5, 2, v4
    s_add_u32 s22, s{HEAD5}, 160
    v_add_u32 v4, s22, v4
    v_lshrrev_b32 v4, 5, v4""")
    wg_of(3, 4, 8)
    a(f"""v_lshlrev_b32 v8, 7, v8
    v_add_u32 v{PL1}, {WS_FB}, v8
    v_and_b32 v3, 1, v2
    s_lshl_b32 s22, s{QB}, 1
    v_add_u32 v3, s22, v3
    v_bfe_u32 v4, v2, 1, 1
    v_lshlrev_b32 v4, 2, v4
    v_add_u32 v4, s{HEAD5}, v4
    v_lshrrev_b32 v4, 5, v4""")
    wg_of(3, 4, 9)
    a(f"""    v_lshlrev_b32 v9, 7, v9
    v_add_u32 v{PL2}, {WS_FB}, v9""")

def gemm(a):
    XA = [10, 11, 12, 13]; WA = [14, 15]
    FX = [[16, 20], [32, 36]]; FW = [[24, 28], [40, 44]]
    ACC = 48
    a(f"""s_and_b32 s34, s{WV}, 1
    s_lshr_b32 s35, s{WV}, 1
    v_and_b32 v3, 31, v2
    v_lshrrev_b32 v4, 5, v2
    v_bfe_u32 v5, v3, 1, 3
    v_xor_b32 v5, v5, v4
    v_lshlrev_b32 v5, 4, v5
    v_lshlrev_b32 v6, 7, v3
    s_lshl_b32 s22, s34, 13
    v_add3_u32 v{XA[0]}, v5, v6, s22
    v_xor_b32 v{XA[1]}, 32, v{XA[0]}
    v_xor_b32 v{XA[2]}, 64, v{XA[0]}
    v_xor_b32 v{XA[3]}, 96, v{XA[0]}
    v_bfe_u32 v5, v2, 2, 2
    s_lshl_b32 s22, s35, 1
    v_xor_b32 v6, s22, v5
    v_lshlrev_b32 v6, 6, v6
    v_lshlrev_b32 v7, 3, v4
    v_add_u32 v7, v7, v5
    v_lshlrev_b32 v7, 8, v7
    v_bfe_u32 v5, v2, 4, 1
    v_lshlrev_b32 v5, 5, v5
    v_add3_u32 v6, v6, v7, v5
    v_and_b32 v5, 3, v2
    v_lshl_add_u32 v6, v5, 3, v6
    v_add_u32 v{WA[0]}, 16384, v6
    v_xor_b32 v{WA[1]}, 64, v{WA[0]}
    v_lshlrev_b32 v5, 10, v4
    v_lshl_add_u32 v5, v3, 4, v5
    s_lshl_b32 s26, s{CT}, 5
    s_lshl_b32 s23, s35, 4
    s_add_u32 s26, s26, s23
    s_lshl_b32 s26, s26, 10
    s_mul_i32 s23, s{TT}, {TTS_}
    s_add_u32 s26, s26, s23
    s_lshl_b32 s23, s34, 9
    s_add_u32 s26, s26, s23""")
    a("v_mov_b64 v[16:17], 0\nv_mov_b64 v[18:19], 0\ns_nop 1")
    for i in range(4): a(m32(ACC+16*i, 16, 16))
    def rx(ks, buf, t): return f"ds_read_b128 {v(FX[buf][t],4)}, v{XA[ks]} offset:{t*4096}"
    def rw(ks, buf, m, rd): return f"ds_read_b64_tr_b16 {v(FW[buf][m]+2*rd,2)}, v{WA[m]} offset:{(16*ks+4*rd)*256}"
    def rds(ks, buf): return [rx(ks,buf,0), rw(ks,buf,0,0), rw(ks,buf,0,1), rx(ks,buf,1), rw(ks,buf,1,0), rw(ks,buf,1,1)]
    def mf(buf, m, t):
        if '--g16' in sys.argv:
            d = ACC+(m*2+t)*16 + 8*buf
            return m16(d, FW[buf][m], FX[buf][t], d) + "\n" + m16(d+4, FX[buf][t], FW[buf][m], d+4)
        return m32(ACC+(m*2+t)*16, FW[buf][m], FX[buf][t], ACC+(m*2+t)*16)
    stamp(a, 24)
    a(f"s_cmp_lt_u32 s{IDX}, 20\ns_cbranch_scc1 L_g_w")
    a("s_barrier")
    issue(a)
    a.label("L_g_w")
    issue(a)
    a("s_waitcnt vmcnt(16) lgkmcnt(0)")
    stamp(a, 25)
    a(f"s_cmp_lt_u32 s{IDX}, 20\ns_cselect_b32 s27, {2 if P4 else 1}, 1")
    a("s_mov_b32 s30, 0\ns_mov_b32 s31, 0\ns_setprio 2")
    stamp(a, 26)
    a("s_barrier")
    stamp(a, 2)
    a(J(rds(0, 0)))
    a(".p2align 3")
    a.label("L_g_mm")
    for ks in range(4):
        b = ks & 1
        r = rds((ks+1) & 3, b ^ 1)
        a("s_waitcnt lgkmcnt(3)")
        a(mf(b, 0, 0))
        if ks < 3:
            a(J(r[0:3]) + "\ns_waitcnt lgkmcnt(5)")
            a(mf(b, 0, 1))
            a(J(r[3:6]) + "\ns_waitcnt lgkmcnt(6)")
            a(mf(b, 1, 0))
            if ks == 0:
                a("s_mov_b32 s32, s31"); next_slot(a, 31, 33)
            if ks == 1: a(f"s_sub_u32 s33, s31, s32\ns_add_u32 s30, s30, 1\nv_add_u32 v{XA[0]}, s33, v{XA[0]}\nv_add_u32 v{XA[1]}, s33, v{XA[1]}\nv_add_u32 v{XA[2]}, s33, v{XA[2]}")
            if ks == 2: a(f"v_add_u32 v{XA[3]}, s33, v{XA[3]}\nv_add_u32 v{WA[0]}, s33, v{WA[0]}\nv_add_u32 v{WA[1]}, s33, v{WA[1]}\ns_cmp_le_u32 s30, s27")
            a(mf(b, 1, 1))
        else:
            a("s_cbranch_scc1 L_g_w8\ns_waitcnt vmcnt(0)")
            a.label("L_g_w8")
            a("s_waitcnt vmcnt(8) lgkmcnt(0)\ns_cmp_gt_u32 s30, 8\ns_cbranch_scc1 L_g_nb\ns_barrier")
            a.label("L_g_nb")
            a(mf(b, 0, 1))
            a(J(r[0:3]) + "\ns_cmp_lt_u32 s30, 10")
            a(mf(b, 1, 0))
            a(J(r[3:6]))
            a(mf(b, 1, 1))
            a("s_cbranch_scc1 L_g_mm")
    stamp(a, 3)
    a("s_nop 4\ns_waitcnt lgkmcnt(0)")
    for q in range(2):
        if q == 0: a(f"s_cmp_lt_u32 s{CT}, 5\ns_cbranch_scc1 L_g_eq")
        else: a.label("L_g_eq"); a(f"s_mov_b32 s28, {f32hex(QSCALE)}")
        k = 0
        for m in range(2):
            for g in range(4):
                d = 16 + 4*k; k += 1
                for t in range(2):
                    r = ACC + (m*2+t)*16 + 4*g
                    if q:
                        for i in range(4): a(f"v_mul_f32 v{r+i}, s28, v{r+i}")
                    a(f"v_cvt_pk_bf16_f32 v{d+2*t}, v{r}, v{r+1}\nv_cvt_pk_bf16_f32 v{d+2*t+1}, v{r+2}, v{r+3}")
                if k & 1: a(f"s_add_u32 s23, s26, {WS_QKV + (m*8+2*g)*1024}")
                a(f"buffer_store_dwordx4 {v(d,4)}, v5, s[12:15], s23 offen offset:{0 if k & 1 else 2048} sc1")
        if q == 0: a("s_branch L_w1")

PRM = 152
VD = 233
def cm(d, x, z, t):
    return [f"v_pk_mul_f32 {v(t,2)}, {v(x,2)}, {v(z,2)} op_sel:[0,0] op_sel_hi:[1,0]",
            f"v_pk_fma_f32 {v(d,2)}, {v(x,2)}, {v(z,2)}, {v(t,2)} op_sel:[1,1,0] op_sel_hi:[0,1,1] neg_lo:[0,1,0]"]
def ilv(*ls):
    out = []
    for i in range(max(len(x) for x in ls)):
        for x in ls:
            if i < len(x): out.append(x[i])
    return out
GDT, GER, GTH, GT = 112, 113, 114, 116
def kg_dt(a):
    a(f"""v_lshlrev_b32 v{GDT}, 16, v{PRM+4}
    v_mul_f32 v{GDT}, {f32hex(LOG2E)}, v{GDT}
    v_exp_f32 v{GDT}, v{GDT}
    s_lshl_b32 s22, s{KH}, 4
    v_cvt_pk_bf16_f32 v{GDT}, v{GDT}, v{GDT}
    v_and_b32 v{GDT}, 0xffff0000, v{GDT}""")
def kg_setup(anchors, X0):
    o = f"""v_lshlrev_b32 v{PRM}, s22, v{PRM}
    v_lshlrev_b32 v{PRM+1}, s22, v{PRM+1}
    v_and_b32 v{GER}, 0xffff0000, v{PRM}
    v_mul_f32 v{GER}, {f32hex(LOG2E)}, v{GER}
    v_exp_f32 v{GER}, v{GER}
    v_and_b32 v{GTH}, 0xffff0000, v{PRM+1}
    v_lshlrev_b32 v{PRM+2}, s22, v{PRM+2}
    v_cvt_pk_bf16_f32 v{GER}, v{GER}, v{GER}
    v_lshlrev_b32 v{PRM+3}, s22, v{PRM+3}
    v_and_b32 v{GER}, 0xffff0000, v{GER}
    v_mul_f32 v{GER}, v{GER}, v{GDT}
    v_mul_f32 v{GTH}, v{GTH}, v{GDT}
    v_mul_f32 v{GER}, {f32hex(-LOG2E)}, v{GER}
    v_mul_f32 v{GTH}, 0.15915494, v{GTH}
    v_and_b32 v{X0}, 0xffff0000, v{PRM+2}
    v_and_b32 v{X0+1}, 0xffff0000, v{PRM+3}
    v_mul_f32 v{X0}, v{X0}, v{GDT}
    v_mul_f32 v{X0+1}, v{X0+1}, v{GDT}
    v_add_f32 v{X0}, v{X0}, v{X0}
    v_add_f32 v{X0+1}, v{X0+1}, v{X0+1}""".split("\n")
    for (z, p) in anchors:
        o += f"""v_mul_f32 v{GT}, {f32hex(p)}, v{GER}
        v_mul_f32 v{GT+1}, {f32hex(p)}, v{GTH}
        v_exp_f32 v{GT}, v{GT}
        v_fract_f32 v{GT+1}, v{GT+1}
        v_cos_f32 v{z}, v{GT+1}
        v_sin_f32 v{z+1}, v{GT+1}
        v_mul_f32 v{z}, v{z}, v{GT}
        v_mul_f32 v{z+1}, v{z+1}, v{GT}""".split("\n")
    return o

def krow():
    def row(h, reg): return 8*(reg >> 2) + 4*h + (reg & 3)
    rowp = {}
    for p in range(4): rowp[row(0, p)] = p; rowp[row(1, p)] = p + 4
    for i, (p0, p1) in enumerate(((256, 260), (258, 262), (260, 264), (512, 768), (516, 772), (520, 776), (1024, 1280), (1032, 1288), (1536, 1792), (1544, 1800))):
        rowp[row(0, 4+i)] = p0; rowp[row(1, 4+i)] = p1
    return rowp
XORD = [1, 2, 3, 4, 5, 6, 7, 258, 260, 262, 516, 772, 1544, 1800, 0, 256, 264, 512, 520, 768, 776, 1024, 1032, 1280, 1288, 1536, 1792]
PKA = 160
KACC = 192
GWA, GRA, GFX = 16, 32, 112
def kgen(a, mid):
    Z1, Z8, ZW, ZB, YA = 124, 126, 128, 130, 132
    XF, DT_, SEL, PX, PY = 16, 72, 104, 112, 160
    rowp = krow()
    ps = [0, 8] + XORD[:14] + XORD[15:]
    xr = {p: XF + 2*i for i, p in enumerate(ps)}
    a(f"""s_lshl_b32 s28, s{WV}, 13
    s_add_u32 s28, s28, {KSC}
    v_bfe_u32 v3, v2, 4, 1
    v_lshlrev_b32 v3, 4, v3
    v_mov_b32 v4, 0x3f80
    v_lshlrev_b32 v3, v3, v4
    v_and_b32 v4, 15, v2
    v_lshrrev_b32 v5, 5, v2
    v_lshlrev_b32 v5, 2, v5
    v_sub_u32 v4, v4, v5""")
    for sidx in range(2):
        for u in range(4): a(f"v_cmp_eq_u32 vcc, {8*sidx+u}, v4\ns_nop 1\nv_cndmask_b32 v{SEL+4*sidx+u}, 0, v3, vcc")
    a(f"s_cmp_eq_u32 s{KH}, 1\ns_cbranch_scc1 L_kg_w\ns_waitcnt vmcnt({6 if PF else 0})")
    a.label("L_kg_w")
    a(f"s_waitcnt vmcnt({8*NH})")
    stamp(a, 20)
    kg_dt(a)
    a(J(kg_setup(((Z8, 8.0), (ZB, 128.0), (Z1, 1.0), (ZW, 256.0)), xr[0])))
    for j in range(16):
        ya = cm(YA, Z8 if j == 2 else YA, Z8, GT+4) if j >= 2 else []
        yb = cm(ZB, ZB, Z8, GT+6) if j else []
        a(J(ilv(ya, yb)))
        lo = ("1.0", "0") if j == 0 else ((f"v{Z8}", f"v{Z8+1}") if j == 1 else (f"v{YA}", f"v{YA+1}"))
        a(f"v_cvt_pk_bf16_f32 v{PY+j}, {lo[0]}, v{ZB}\nv_cvt_pk_bf16_f32 v{PY+16+j}, {lo[1]}, v{ZB+1}")
    def swaps(R): return [f"v_permlane32_swap_b32 v{R+8*sx+u}, v{R+8*sx+4+u}" for sx in range(2) for u in range(4)]
    def tmm(R, b, D): return [m32(D, R+4*b, SEL), m32(D, R+8+4*b, SEL+4, D)]
    def tcv(R, b, D): return [f"v_cvt_pk_bf16_f32 v{R+8*(u>>2)+4*b+(u&3)}, v{D+2*u}, v{D+2*u+1}" for u in range(8)]
    def step(p, t):
        if p < 8: return cm(xr[p], xr[p-1], Z1, t)
        if p == 8: return cm(xr[8], xr[0], Z8, t)
        return cm(xr[p], xr[p-256], ZW, t)
    s1 = sum((step(p, GT) for p in (1, 2, 3, 4, 5, 6, 7, 258, 260, 262, 516, 772, 1544, 1800)), [])
    s2 = sum((step(p, GT+2) for p in (8, 256, 264, 512, 520, 768, 776, 1024, 1032, 1280, 1288, 1536, 1792)), [])
    a(J(ilv(s1, s2)))
    stamp(a, 21)
    def px(part):
        o = []
        for r in range(16):
            lo = xr[rowp[r]] + part
            hi = f"{'-' if part else ''}v{xr[rowp[r+16]] + part}" if r + 16 in rowp else "0"
            o.append(f"v_cvt_pk_bf16_f32 v{PX+16*part+r}, {'-' if part else ''}v{lo}, {hi}")
        return o
    D0, D1 = DT_, DT_ + 16
    def mix(mm, va):
        n = (len(va) + len(mm) - 1) // len(mm)
        for i, m in enumerate(mm):
            a(m); a(J(va[i*n:(i+1)*n]))
    a(J(swaps(PY)))
    E0_, E1_ = XF, XF + 16
    mix(tmm(PY, 0, D0) + tmm(PY, 1, D1), swaps(PY+16) + px(0) + px(1))
    mix(tmm(PY+16, 0, E0_) + tmm(PY+16, 1, E1_), tcv(PY, 0, D0) + tcv(PY, 1, D1) + swaps(PX))
    mix(tmm(PX, 0, D0) + tmm(PX, 1, D1), swaps(PX+16) + tcv(PY+16, 0, E0_) + tcv(PY+16, 1, E1_))
    mix(tmm(PX+16, 0, E0_) + tmm(PX+16, 1, E1_), tcv(PX, 0, D0) + ["s_nop 3"] + tcv(PX, 1, D1))
    a("s_nop 1")
    mix([m32(KACC, PX+4*q, PY+4*q, KACC if q else None) for q in (0, 2, 1, 3)], tcv(PX+16, 0, E0_) + ["s_nop 3"] + tcv(PX+16, 1, E1_))
    a("s_nop 1")
    for q in (0, 2, 1, 3): a(m32(KACC, PX+16+4*q, PY+16+4*q, KACC))
    stamp(a, 22)

KP = 208
def kpack(a, kdst):
    Jv, H, AD = 3, 4, 12
    R = KACC; P0 = KP
    a(f"""v_and_b32 v{Jv}, 31, v2
    v_lshrrev_b32 v{H}, 5, v2
    v_lshlrev_b32 v{AD}, 4, v{Jv}
    v_sub_u32 v{AD}, s{kdst}, v{AD}
    v_lshlrev_b32 v13, 3, v{H}
    v_sub_u32 v180, v{AD}, v13
    v_lshlrev_b32 v13, 9, v{H}
    v_sub_u32 v181, v{AD}, v13
    v_and_b32 v{H}, 1, v{Jv}
    v_cmp_eq_u32 vcc, 0, v{H}
    v_lshlrev_b32 v{Jv}, 2, v{Jv}
    v_add_u32 v182, s{kdst}, v{Jv}
    v_lshlrev_b32 v15, 16, v{VD}
    s_mov_b64 exec, 1
    v_add_f32 v{R}, v{R}, v15
    s_mov_b64 exec, -1""")
    cv = lambda d, lo, hi: a(f"v_cvt_pk_bf16_f32 v{d}, v{lo}, v{hi}")
    cv(P0, R+3, R+2); cv(P0+1, R+1, R+0)
    cv(P0+2, R+6, R+5); cv(P0+3, R+4, R+4)
    cv(P0+4, R+9, R+9); cv(P0+5, R+8, R+8); cv(P0+6, R+8, R+7); cv(P0+7, R+7, R+7)
    for sidx in range(2):
        ra, rb = R+10+2*sidx, R+11+2*sidx
        d = P0 + 8 + 4*sidx
        a(f"v_cndmask_b32 v13, v{rb}, v{ra}, vcc")
        cv(d, rb, rb); cv(d+1, rb, 13); cv(d+2, ra, ra); cv(d+3, ra, ra)
def kwrite(a, vzero):
    P0 = KP
    a(f"""ds_write_b64 v180, {v(P0,2)} offset:{4080+8}
    ds_write_b64 v180, {v(P0+2,2)} offset:{4080-512+8}
    ds_write_b128 v181, {v(P0+4,4)} offset:{4080-1024}
    ds_write_b128 v181, {v(P0+8,4)} offset:{4080-2048}
    ds_write_b128 v181, {v(P0+12,4)} offset:{4080-3072}
    ds_write_b32 v182, v{vzero} offset:4096""")

CAA, CBA, CACC = 10, 11, 148
def conv_setup(a, cbase):
    a(f"""v_and_b32 v3, 3, v2
    v_mul_u32_u24 v{CAA}, {UST}, v3
    v_bfe_u32 v3, v2, 2, 2
    v_lshl_add_u32 v{CAA}, v3, 7, v{CAA}
    v_lshrrev_b32 v4, 4, v2
    v_lshl_add_u32 v{CAA}, v4, 4, v{CAA}
    v_add_u32 v{CAA}, s{cbase}, v{CAA}
    v_and_b32 v3, 15, v2
    v_lshlrev_b32 v3, 3, v3
    v_lshlrev_b32 v{CBA}, 4, v4
    v_sub_u32 v{CBA}, v{CBA}, v3
    v_add_u32 v{CBA}, {KOFF+120}, v{CBA}
    v_add_u32 v{CBA}, s{cbase}, v{CBA}""")
def conv(a, ydst, fill):
    FA = [16, 80]; FB = [48, 112]; ACC = CACC
    def loads(b, extra):
        out = []
        for k in range(8):
            out += [f"ds_read_b64 {v(FB[b]+4*k,2)}, v{CBA} offset:{512*(7-k)+extra}", f"ds_read_b64 {v(FB[b]+4*k+2,2)}, v{CBA} offset:{512*(7-k)+8+extra}",
                    f"ds_read_b128 {v(FA[b]+4*k,4)}, v{CAA} offset:{512*k+extra}"]
        return out
    pairs = sorted([(i, j) for i in range(8) for j in range(8) if i + j < 8], key=lambda p: (max(p), p))
    def mm(b, i, j, first=False): return m16(ACC+4*(i+j), FA[b]+4*i, FB[b]+4*j, None if first else ACC+4*(i+j))
    a("s_waitcnt lgkmcnt(0)")
    l0 = loads(0, 0); l1 = loads(1, 64)
    seq = l0 + l1
    a(J(seq[:12])); pos = 12
    seen = set(); lvl = -1
    for n, (i, j) in enumerate(pairs):
        if max(i, j) > lvl:
            lvl = max(i, j)
            a(f"s_waitcnt lgkmcnt({min(14, pos - 3*(lvl+1))})")
        a(mm(0, i, j, i+j not in seen)); seen.add(i+j)
        if pos < 48: a(seq[pos]); pos += 1
    assert pos == 48
    a("s_mov_b32 s53, 0\n.p2align 3")
    lp = a.newlabel("L_cv")
    a.label(lp)
    for b in (1, 0):
        ld = loads(b ^ 1, 128 if b == 1 else 192)
        a("s_waitcnt lgkmcnt(0)")
        for n, (i, j) in enumerate(pairs):
            a(mm(b, i, j))
            if n < 24: a(ld[n])
            if b == 0 and n == 33: a(f"v_add_u32 v{CAA}, 128, v{CAA}\nv_add_u32 v{CBA}, 128, v{CBA}")
            elif b == 0 and n == 34: a("s_add_u32 s53, s53, 1\ns_cmp_lt_u32 s53, 3")
    a(f"s_cbranch_scc1 {lp}")
    a("v_lshlrev_b32 v12, 3, v2\ns_waitcnt lgkmcnt(0)")
    out = []
    for beta in (7, 6, 5, 4, 3, 2, 1, 0):
        for i in range(beta + 1):
            a(mm(1, i, beta - i))
            last = len(a.lines)
            for _ in range(2):
                if out and out[0][0] <= len(a.lines): a(out.pop(0)[1])
                elif fill: a(fill.pop(0))
        ac = ACC + 4*beta
        out += [(last + 8, t) for t in (f"v_cvt_pk_bf16_f32 v{ac}, v{ac}, v{ac+1}", f"v_cvt_pk_bf16_f32 v{ac+1}, v{ac+2}, v{ac+3}",
                f"buffer_store_dwordx2 {v(ac,2)}, v12, s[12:15], s{ydst} offen offset:{512*beta} sc1")]
    a(J(fill)); fill.clear()
    for d, t in out:
        if d > len(a.lines): a(f"s_nop {d - len(a.lines)}")
        a(t)

def helper(a):
    CB = 26
    UE = 132
    a(f"""s_mov_b32 s33, 0
    s_cmp_ge_u32 s{IDX}, 20
    s_cbranch_scc1 L_h_tr
    s_lshr_b32 s{FCOFF}, s{CHN}, 2
    s_lshl_b32 s{FCOFF}, s{FCOFF}, 7
    s_lshl_b32 s22, s{HW}, 2
    s_add_u32 s{FCOFF}, s{FCOFF}, s22
    s_add_u32 s{FCOFF}, s{FCOFF}, {WS_FC}
    s_lshr_b32 s22, s{CHN}, 6
    s_lshl_b32 s22, s22, {7 if PACKA else 12}
    s_add_u32 s22, s22, {WS_FA}
    v_and_b32 v4, 31, v2
    v_lshl_add_u32 v8, v4, {2 if PACKA else 7}, s22
    s_mul_i32 s{CB}, s{HW}, {CHA}
    s_add_u32 s{CB}, s{CB}, {CVB}
    s_mul_i32 s27, s{CHN}, {RS}
    s_add_u32 s27, s27, {WS_UT}
    s_add_u32 s29, s{CB}, {KOFF}
    s_mov_b32 s33, {POLLC}""")
    skip(a)
    a("s_setprio 1")
    a.label("L_kgen")
    kgen(a, None)
    a(f"s_cmp_eq_u32 s{KH}, 0\ns_cbranch_scc1 L_g_kb")
    stamp(a, 3)
    if P4:
        skip(a)
        a("s_setprio 0\ns_mov_b32 s30, 1\ns_waitcnt vmcnt(0)\ns_barrier")
        if PROF and not LITE: stamp(a, 32)
        a("s_branch L_h_ld")
    else: a("s_setprio 0\ns_waitcnt vmcnt(0)\ns_branch L_h_ld1")
    a.label("L_h_tr")
    a(f"s_cmp_ge_u32 s26, 320\ns_cbranch_scc1 L_h_ld0")
    a.label("L_utile")
    utile(a)
    if NT > 128:
        a(f"""s_add_u32 s26, s26, 128
        s_cmp_ge_u32 s26, {NT}
        s_cbranch_scc1 L_tr_back
        v_lshrrev_b32 v8, 3, v2
        v_and_b32 v9, 7, v2
        s_branch L_e_ut""")
    else: a("s_branch L_tr_back")
    a.label("L_h_ld0")
    if FB_: a("s_barrier")
    a(f"v_mov_b32 v8, {WS_FA}")
    skip(a); skip(a); skip(a)
    a.label("L_h_ld1")
    a("s_mov_b32 s30, 0")
    def bar():
        a("s_waitcnt vmcnt(16) lgkmcnt(0)\ns_barrier")
        if PROF and not LITE: a(f"s_memtime s[92:93]\ns_add_u32 m0, s30, 32\ns_waitcnt lgkmcnt(0)\nv_writelane_b32 v{PV}, s92, m0")
    def lines(*fs):
        t = Asm()
        for f in fs: f(t)
        return [l.strip() for l in t.lines]
    a.label("L_h_ld")
    bar()
    issue(a, lines(attn_ids, o_maps, kv_units))
    a(f"""s_add_u32 s30, s30, 1
    s_cmp_lg_u32 s30, s33
    s_cbranch_scc1 L_h_l1
    s_cmp_lt_u32 s{IDX}, 20
    s_cbranch_scc1 L_h_pl""")
    get_nonce(a)
    a("s_waitcnt vmcnt(8)")
    set_flag(a, 29, 10)
    stamp(a, 3)
    a("s_branch L_h_l1")
    a.label("L_h_pl")
    a("buffer_load_dword v9, v8, s[12:15], 0 offen sc1")
    a.label("L_h_l1")
    if PT:
        a(f"""s_cmp_lg_u32 s30, {PTC}
        s_cbranch_scc1 L_h_pt
        s_mul_i32 s22, s{TT}, {TTS_}
        s_lshl_b32 s23, s{CT}, 15
        s_add_u32 s22, s22, s23
        s_lshl_b32 s23, s{HW}, 13
        s_add_u32 s22, s22, s23
        v_lshlrev_b32 v3, 7, v2""")
        a("buffer_store_dword v3, v3, s[12:15], s22 offen sc1" if PT == 'w' else "buffer_load_dword v14, v3, s[12:15], s22 offen sc1")
        a.label("L_h_pt")
    a("s_cmp_lt_u32 s30, 5\ns_cbranch_scc1 L_h_ld")
    bar()
    issue(a, [f's_load_dword s{NONCE}, s[{P_DBG}:{P_DBG+1}], 0'] + lines(tail_setup))
    a("s_add_u32 s30, s30, 1")
    bar()
    issue(a, lines(attn_reset2, lambda t: conv_setup(t, CB)))
    a("s_waitcnt vmcnt(16)\ns_barrier")
    a(f"s_cmp_lg_u32 s{NONCE}, 0\ns_cbranch_scc1 L_h_hn")
    get_nonce(a)
    a.label("L_h_hn")
    arr_init(a)
    a(f"""s_cmp_lt_u32 s{IDX}, 20
    s_cbranch_scc1 L_h_k7
    s_waitcnt vmcnt(0) lgkmcnt(0)
    s_barrier""")
    y_setup(a)
    a("s_branch L_attn")
    a.label("L_h_ids")
    a("s_mov_b32 s33, 2\ns_branch L_setup")
    a.label("L_h_k7")
    def uloads():
        for i in range(4): a(f"buffer_load_dwordx4 {v(132+4*i,4)}, v{DMV}, s[12:15], s27 offen offset:{1024*i} sc1")
    stamp(a, 39)
    a(f"s_sub_u32 s28, s28, 32768\nv_add_u32 v6, s28, v{DMV}\nv_cmp_ne_u32 vcc, s{NONCE}, v9\ns_mov_b32 s31, 0")
    for i in range(4): a(f"ds_read_b128 {v(16+4*i,4)}, v6 offset:{1024*i}")
    a("s_cbranch_vccnz L_h_nu")
    uloads()
    a("s_mov_b32 s31, 1\ns_branch L_h_n2")
    a.label("L_h_nu")
    a("buffer_load_dword v9, v8, s[12:15], 0 offen sc1")
    a.label("L_h_n2")
    a("s_waitcnt lgkmcnt(0)")
    for i in range(14): a(f"v_add_f32 v{KACC+i}, v{KACC+i}, v{16+i}")
    kpack(a, 29)
    a(f"""v_lshlrev_b32 v5, 3, v2
    v_min_u32 v5, 376, v5
    v_add_u32 v5, s{CB}, v5
    v_mov_b32 v6, 0
    v_mov_b32 v7, 0""")
    stamp(a, 46)
    a("s_cmp_eq_u32 s31, 1\ns_cbranch_scc1 L_h_w4\ns_waitcnt vmcnt(1)")
    a.label("L_h_w4")
    a("s_waitcnt vmcnt(4)\ns_barrier")
    stamp(a, 4)
    a("s_cmp_eq_u32 s31, 1\ns_cbranch_scc1 L_h_hu")
    a("s_waitcnt vmcnt(0)")
    poll(a, [8], 1, 9, preloaded=True)
    uloads()
    a.label("L_h_hu")
    if PROF: a(f"v_writelane_b32 v{PV}, s31, 30")
    kwrite(a, 6)
    for r in range(4): a(f"ds_write_b64 v5, v[6:7] offset:{r*UST}")
    a(f"""s_mul_i32 s27, s{CHN}, {RS}
    s_add_u32 s27, s27, {WS_YT}
    v_add_u32 v4, s{CB}, v{DMV}
    s_waitcnt vmcnt(0)""")
    stamp(a, 5)
    for i in range(4):
        e = 132 + 4*i
        C2, C1, C0, PP = 16 + 14*i, 20 + 14*i, 24 + 14*i, 28 + 14*i
        a(f"ds_write_b128 v4, {v(e,4)} offset:{3*UST + 384 + 1024*i}")
        if i == 0: a(f"v_mov_b32 v{PP}, 0\nv_mov_b32 v{C1}, 0\ns_nop 0")
        else: a(f"v_readlane_b32 s22, v{e-2}, 63\nv_readlane_b32 s23, v{e-1}, 63\ns_nop 0\nv_mov_b32 v{PP}, s22\nv_mov_b32 v{C1}, s23\ns_nop 0")
        a(f"v_mov_b32_dpp v{PP}, v{e+2} wave_shr:1 row_mask:0xf bank_mask:0xf")
        a(f"v_mov_b32_dpp v{C1}, v{e+3} wave_shr:1 row_mask:0xf bank_mask:0xf")
        for j in range(3): a(f"v_mov_b32 v{C1+1+j}, v{e+j}")
        a(f"ds_write_b128 v4, {v(C1,4)} offset:{UST + 384 + 1024*i}")
        a(f"v_alignbit_b32 v{C2}, v{e}, v{C1}, 16")
        for j in range(1, 4): a(f"v_alignbit_b32 v{C2+j}, v{e+j}, v{e+j-1}, 16")
        a(f"ds_write_b128 v4, {v(C2,4)} offset:{2*UST + 384 + 1024*i}")
        a(f"v_alignbit_b32 v{C0}, v{C1}, v{PP}, 16")
        for j in range(3): a(f"v_mov_b32 v{C0+1+j}, v{C2+j}")
        a(f"ds_write_b128 v4, {v(C0,4)} offset:{384 + 1024*i}")
    stamp(a, 6)
    t = Asm(); zero_s(t); y_setup(t)
    fill = [l.strip() for l in t.lines]
    conv(a, 27, fill)
    assert not fill
    stamp(a, 7)
    a("s_branch L_attn2")

def window1(a):
    get_nonce(a)
    a(f"""v_mov_b32 v3, {ARRW}
    v_mov_b32 v4, 1
    s_lshl_b32 s22, s2, 7
    s_add_u32 s26, s22, {WS_FB}""")
    zero_state(a)
    stamp(a, 4)
    a(f"""s_waitcnt vmcnt(0)
    s_mov_b64 exec, 1
    ds_add_rtn_u32 v4, v3, v4
    s_mov_b64 exec, -1
    s_waitcnt lgkmcnt(0)
    v_readfirstlane_b32 s22, v4
    s_mov_b32 s28, s22
    s_mov_b32 s33, 0
    s_cmp_lg_u32 s22, 3
    s_cbranch_scc1 L_w1_r""")
    diag_wait(a, '--dfl')
    stamp(a, 5)
    stamp(a, 53, True)
    set_flag(a, 26, 6)
    a(f"""v_mov_b32 v16, 0x3f803f80
    v_mov_b32 v17, 0x00003f80
    v_mov_b32 v18, 0x3f803f80
    v_mov_b32 v19, 0x00003f80
    ds_write_b128 v{DMV}, v[16:19] offset:{CONSTP}
    ds_write_b32 v6, v6 offset:{FLAGW}
    s_mov_b32 s33, 1
    s_branch L_setup""")
    a.label("L_w1_r")
    a("s_setprio 0")
    a.label("L_setup")
    attn_ids(a)
    o_maps(a)
    attn_reset(a)
    tail_setup(a)
    y_setup(a)
    a("""s_cmp_eq_u32 s33, 2
    s_cbranch_scc1 L_attn
""")
    if CW:
        a(f"""s_lshl_b32 s22, s2, 7
        s_lshl_b32 s23, s28, 2
        s_add_u32 s22, s22, s23
        s_add_u32 s{FCOFF}, s22, {WS_FE}
        s_cmp_eq_u32 s33, 1
        s_cbranch_scc1 L_w1_po""")
        a.label("L_w1_c")
        clear_o(a, 28)
        a("s_cmp_lg_u32 s28, 0\ns_cbranch_scc1 L_at_b2\ns_mov_b32 s28, 3\ns_branch L_w1_c")
        a.label("L_w1_po")
    else: a("s_cmp_eq_u32 s33, 0\ns_cbranch_scc1 L_at_b2")
    main_pre(a)
    a("s_mov_b32 s50, 0")
    a.label("L_w1_p")
    a(f"""buffer_load_dword v20, v{PL1}, s[12:15], 0 offen sc1
    buffer_load_dword v24, v{PL2}, s[12:15], 0 offen sc1
    s_add_u32 s50, s50, 1
    s_waitcnt vmcnt(0)
    v_cmp_ne_u32 vcc, s{NONCE}, v20
    v_cmp_ne_u32 s[26:27], s{NONCE}, v24
    s_cmp_gt_u32 s50, {SPIN}
    s_cbranch_scc1 L_w1_q
    s_or_b32 s28, vcc_lo, vcc_hi
    s_and_b32 s22, s28, 0x01010101
    s_or_b32 s22, s22, s27
    s_cbranch_scc1 L_w1_p""")
    a.label("L_w1_q")
    stamp(a, 6)
    stamp(a, 54, True)
    a(f"s_add_u32 s23, s{HEAD5}, 160\ns_lshl_b32 s23, s23, 10")
    def qu(u): a(f"""s_mov_b32 m0, {QLDS + 1024*u}
        s_add_u32 s24, s{OOFF}, {(u >> 1)*1024 + (u & 1)*TTS_}
        buffer_load_dwordx4 v{DMV}, s[12:15], s24 offen sc1 lds""")
    def ku(u):
        p = u >> 1
        off = ((p + (155 if p >= 5 else 0)) << 10) + ((u & 1)*8)*TTS_
        a(f"""s_mov_b32 m0, {ARING + p*PST + (u & 1)*1024}
        s_add_u32 s24, s23, {off}
        buffer_load_dwordx4 v{DMV}, s[12:15], s24 offen sc1 lds""")
    for u in range(10): qu(u)
    for u in range(20): ku(u)
    stamp(a, 7)
    poll(a, [PL1, PL2], 1, 20, preloaded=True)
    a("s_waitcnt vmcnt(0)\ns_branch L_at_b2")

Q0 = [16, 22]; Q1 = [20, 26]
KF = [28, 34]; VF = [40, 48]; P = [56, 64]; S = [72, 88]; O = [104, 120]
def set_m(a, q, M):
    a(f"""v_sub_f32 v{M}, 0, v{M}
    v_and_b32 v{M+1}, 0xffff0000, v{M}
    v_sub_f32 v{M+2}, v{M}, v{M+1}
    v_and_b32 v{M+3}, 0xffff0000, v{M+2}
    v_sub_f32 v{M+2}, v{M+2}, v{M+3}
    v_lshrrev_b32 v{M+1}, 16, v{M+1}
    v_or_b32 v{M+1}, v{M+1}, v{M+3}
    v_lshrrev_b32 v{M+2}, 16, v{M+2}
    v_cndmask_b32 v{Q1[q]}, v{M+1}, v{Q1[q]}, vcc
    v_cndmask_b32 v{Q1[q]+1}, v{M+2}, v{Q1[q]+1}, vcc""")
def tilemax(a, M, s, first):
    if first: a(f"v_max3_f32 v{M}, v{s}, v{s+1}, v{s+2}")
    else: a(f"v_max3_f32 v{M}, v{M}, v{s}, v{s+1}\nv_max_f32 v{M}, v{M}, v{s+2}")
    for i in range(3, 15, 2): a(f"v_max3_f32 v{M}, v{M}, v{s+i}, v{s+i+1}")
    a(f"v_max_f32 v{M}, v{M}, v{s+15}")
def halfmax(a, M):
    a(f"v_mov_b32 v{M+1}, v{M}\ns_nop 1\nv_permlane32_swap_b32 v{M}, v{M+1}\nv_max_f32 v{M}, v{M}, v{M+1}")

def kv_units(a):
    a(f"""s_lshr_b32 s22, s{WV}, 1
    s_and_b32 s23, s{WV}, 1
    s_mul_i32 s{KL[0]}, s22, {PST}
    s_lshl_b32 s24, s23, 10
    s_add_u32 s{KL[0]}, s{KL[0]}, s24
    s_add_u32 s{KL[0]}, s{KL[0]}, {ARING}
    s_add_u32 s{KL[1]}, s{KL[0]}, {4*PST}
    s_add_u32 s{KL[2]}, s{KL[0]}, {8*PST}
    s_add_u32 s24, s22, s{HEAD5}
    s_lshl_b32 s24, s24, 10
    s_mul_i32 s23, s23, {8*TTS_}
    s_add_u32 s24, s24, s23
    s_add_u32 s{KS[0]}, s24, {160*1024 + TTS_}
    s_add_u32 s{KS[2]}, s24, {(160+8+155)*1024 + TTS_}
    s_cmp_eq_u32 s22, 0
    s_cselect_b32 s23, 0, {155*1024}
    s_add_u32 s{KS[1]}, s{KS[0]}, s23
    s_add_u32 s{KS[1]}, s{KS[1]}, 4096""")
def attn_reset(a):
    kv_units(a); attn_reset2(a)
def attn_reset2(a):
    a(f"""v_and_b32 v3, 31, v2
    v_lshlrev_b32 v3, 3, v3
    v_lshrrev_b32 v5, 5, v2
    s_lshl_b32 s{KHOFF}, s{KH}, 10
    s_lshl_b32 s22, s{HW}, 1
    s_add_u32 s22, s22, s{KH}
    s_lshl_b32 s22, s22, 8
    v_add_u32 v{QA4}, s22, v3
    v_lshl_add_u32 v{QA0}, v5, 12, v{QA4}
    v_mul_u32_u24 v{KA}, {2*PST}, v5
    s_add_u32 s22, s{KHOFF if M0 else MODE+53-MODE}, {ARING}""".replace(f"s{MODE+53-MODE}", "0"))
    a(f"""v_add3_u32 v{KA}, v{KA}, v3, s22
    v_xor_b32 v{MS4}, 1, v5
    s_add_u32 s22, s22, {4*PST - CONSTP}
    v_mad_u32_u24 v{K4}, v{MS4}, s22, v3
    v_add_u32 v{K4}, {CONSTP}, v{K4}
    v_bfe_u32 v3, v2, 2, 2
    v_lshl_add_u32 v5, v5, 2, v3
    v_and_b32 v4, 3, v2
    v_bfe_u32 v3, v2, 4, 1
    v_lshl_add_u32 v4, v3, 2, v4
    v_cmp_gt_u32 vcc, 5, v4
    v_mul_u32_u24 v4, {PST}, v4
    s_add_u32 s22, s{KHOFF}, {ARING + 5*PST}
    v_add_u32 v4, s22, v4
    v_cndmask_b32 v{VA}, {CONSTP}, v4, vcc
    v_cndmask_b32 v{MSK}, 0, 1, vcc
    v_lshl_add_u32 v{VA}, v5, 3, v{VA}
    s_sub_u32 s24, 106, s{WV}
    s_mul_i32 s{WOS}, s24, {6*1280}
    s_lshr_b32 s22, s{IDX}, 2
    s_mul_i32 s22, s22, 160
    s_add_u32 s{WOS}, s{WOS}, s22
    s_mul_i32 s{WOL}, s24, 960
    s_add_u32 s{WOL}, s{WOL}, {WOB}""")
YT, OSA, OST, FIW, FS0 = range(235, 240)
YT, FIW, FS0 = 253, 251, 250
YV, FCA = 238, 239
YS, TYS = 21, 20
WAO, WAT = 248, 249
TOS, TTS, TFS = 96, 97, 98
def o_maps(a):
    a(f"""v_and_b32 v3, 15, v2
    v_bfe_u32 v4, v2, 4, 1
    v_mul_u32_u24 v4, {OG}, v4
    v_lshl_add_u32 v{OST}, v3, 3, v4
    v_lshl_add_u32 v4, v3, 4, v4
    v_lshrrev_b32 v3, 5, v2
    v_lshl_add_u32 v{OSA}, v3, 8, v4""")
def tail_setup(a):
    a(f"""v_mul_u32_u24 v6, 205, v2
    v_lshrrev_b32 v6, 11, v6
    v_mul_u32_u24 v7, 10, v6
    v_sub_u32 v7, v2, v7
    v_lshlrev_b32 v7, 4, v7
    v_mul_u32_u24 v6, 1280, v6
    v_add_u32 v{WOV}, v6, v7
    v_add_u32 v{FS0}, v6, v{WOV}
    v_bfe_u32 v3, v2, 2, 2
    v_lshrrev_b32 v4, 4, v2
    v_and_b32 v5, 3, v2
    v_lshlrev_b32 v5, 3, v5
    v_lshrrev_b32 v6, 2, v2
    v_lshl_add_u32 v6, v6, 7, v5
    s_lshl_b32 s22, s{HW}, 5
    v_add_u32 v{YT}, s22, v6
    v_lshrrev_b32 v6, 5, v2
    v_mul_u32_u24 v6, 12, v6
    v_lshl_add_u32 v6, v4, 2, v6
    v_add_u32 v6, v6, v3
    v_mad_u32_u24 v7, v4, 20, v3
    s_mul_i32 s22, s{KH}, {320*160}
    s_add_u32 s22, s22, {WOB}
    v_add_u32 v5, s22, v5
    s_movk_i32 s23, 160
    v_mad_u32_u24 v{WAO}, v6, s23, v5
    v_mad_u32_u24 v{WAT}, v7, s23, v5
    v_and_b32 v3, 15, v2
    s_mul_i32 s22, s{HW}, 5120
    v_lshl_add_u32 v4, v4, 3, s22
    v_mad_u32_u24 v{FIW}, v3, s23, v4
    s_lshl_b32 s24, s{XCD}, 2
    s_and_b32 s22, s{IDX}, 3
    s_add_u32 s24, s24, s22
    s_lshl_b32 s24, s24, 2
    s_add_u32 s24, s24, s{HW}
    s_mul_i32 s{TOS}, s24, {OG}
    s_add_u32 s{TOS}, s{TOS}, {WS_O}
    s_lshl_b32 s23, s{KH}, 11
    s_add_u32 s{TTS}, s{TOS}, s23
    s_add_u32 s{TTS}, s{TTS}, 16384
    s_lshl_b32 s23, s{KH}, 13
    s_add_u32 s{TOS}, s{TOS}, s23
    s_lshr_b32 s22, s{IDX}, 2
    s_add_u32 s22, s22, 8
    s_lshl_b32 s23, s{IDX}, 2
    s_add_u32 s23, s23, s{HW}
    s_cmp_eq_u32 s{KH}, 0
    s_cselect_b32 s24, s23, s24
    s_cselect_b32 s22, s{XCD}, s22
    s_mul_i32 s{TFS}, s24, {16*2560}
    s_mul_i32 s22, s22, 160
    s_add_u32 s{TFS}, s{TFS}, s22""")
def y_setup(a):
    a(f"""v_lshrrev_b32 v4, 3, v2
    v_and_b32 v3, 7, v2
    v_lshlrev_b32 v3, 4, v3
    v_mul_u32_u24 v4, {RS}, v4
    v_add_u32 v{YV}, v4, v3
    s_mul_i32 s22, s{XCD}, 10
    s_add_u32 s22, s22, s{WV}
    s_mul_i32 s22, s22, {8*RS}
    s_lshl_b32 s23, s{IDX}, 7
    s_add_u32 s22, s22, s23
    s_add_u32 s{YS}, s22, {WS_YT}
    s_mul_i32 s22, s{XCD}, {20*128}
    s_add_u32 s22, s22, {WS_FC}
    v_min_u32 v3, 19, v2
    v_lshl_add_u32 v{FCA}, v3, 7, s22
    v_bfe_u32 v3, v2, 3, 2
    v_lshlrev_b32 v3, 6, v3
    v_and_b32 v4, 7, v2
    s_lshl_b32 s22, s{XCD}, 3
    v_add3_u32 v3, v3, v4, s22
    v_cmp_gt_u32 vcc, 32, v2
    v_lshlrev_b32 v3, 7, v3
    v_add_u32 v3, {WS_FE}, v3
    v_cndmask_b32 v{FCA}, v3, v{FCA}, vcc""")
WFR = [28, 48, 68, 88, 144, 164, 184, 204, 108]
OFR = [128, 132, 224, 228, 232, 236, 240, 244, 136, 140]
def wo_reads(a, i, slot):
    for m in range(5):
        for hf in range(2):
            if i < 8: a(f"ds_read_b64_tr_b16 {v(WFR[slot]+4*m+2*hf,2)}, v{WAO} offset:{(40*i+8*hf)*160+32*m}")
            else: a(f"ds_read_b64_tr_b16 {v(WFR[slot]+4*m+2*hf,2)}, v{WAT} offset:{(160*(i-8)+80*hf+16)*160+32*m}")
def zero_state(a):
    zero_s(a); zero_v(a)
def zero_s(a):
    srd(a, 8, P_WO, 640*1280)
    a(f"""s_mov_b32 s30, 0
    s_mov_b32 s31, 0
    s_mov_b32 s32, {2*SLOT}
    s_mov_b32 s34, {-2*SLOT & 0xffffffff}
    s_mov_b32 s35, {SLOT}""")
def zero_v(a):
    for i in range(0, 32, 2): a(f"v_mov_b64 {v(O[0]+i,2)}, 0")
    for i in range(0, 8, 2): a(f"v_mov_b64 {v(P[1]+i,2)}, 0\nv_mov_b64 {v(VF[1]+i,2)}, 0")

OPF = int(sys.argv[sys.argv.index('--opf')+1]) if '--opf' in sys.argv else 0
def o_prefetch(a, tag):
    a(f"""s_lshl_b32 s22, s{XCD}, 2
    s_and_b32 s23, s{IDX}, 3
    s_add_u32 s22, s22, s23
    s_lshl_b32 s22, s22, 3
    s_lshr_b32 s23, s{IDX}, 2
    s_add_u32 s22, s22, s23
    s_mul_i32 s22, s22, 10
    s_add_u32 s22, s22, s{WV}
    s_lshl_b32 s22, s22, 10
    s_add_u32 s22, s22, {WS_O}
    s_cmp_ge_u32 s{WV}, 2
    buffer_load_dwordx4 v[144:147], v{DMV}, s[12:15], s22 offen sc1
    s_cbranch_scc1 L_opf{tag}
    s_add_u32 s22, s22, 8192
    buffer_load_dwordx4 v[148:151], v{DMV}, s[12:15], s22 offen sc1""")
    a.label(f"L_opf{tag}")

def attention(a):
    def kr(t, b): return [f"ds_read_b64 {v(KF[b],2)}, v{KA} offset:{t*256}", f"ds_read_b64 {v(KF[b]+2,2)}, v{KA} offset:{t*256+PST}", f"ds_read_b64 {v(KF[b]+4,2)}, v{K4} offset:{t*256}"]
    def vr(t, b): return [f"ds_read_b64_tr_b16 {v(VF[b]+2*j,2)}, v{VA} offset:{t*256+j*64}" for j in range(4)]
    def shift(sreg):
        a(f"v_add_u32 v{KA}, s{sreg}, v{KA}\nv_mad_i32_i24 v{K4}, v{MS4}, s{sreg}, v{K4}")
    def qk(q, kb): a(m32(S[q], KF[kb], Q0[q])); a(m32x8(S[q], KF[kb]+4, Q1[q], S[q]))
    zero_s(a)
    a.label("L_attn2")
    a("s_waitcnt lgkmcnt(0)")
    zero_v(a)
    a.label("L_at_b2")
    stamp(a, 8)
    a(f"v_cmp_gt_u32 vcc, 32, v2\nv_xor_b32 v3, 256, v{QA0}\nv_xor_b32 v4, 256, v{QA4}\ns_waitcnt lgkmcnt(0)\ns_barrier")
    diag_wait(a, '--da0')
    stamp(a, 9)
    stamp(a, 50, True)
    a(J(kr(0, 0)))
    a(f"s_cmp_lg_u32 s{MODE}, 0\ns_cbranch_scc1 L_at_havem")
    for q in range(2):
        r0, r4 = (3, 4) if q == 0 else (QA0, QA4)
        a(f"""ds_read_b64 {v(Q0[q],2)}, v{r0} offset:{QLDS}
        ds_read_b64 {v(Q0[q]+2,2)}, v{r0} offset:{QLDS+2048}
        ds_read_b64 {v(Q1[q],2)}, v{r4} offset:{QLDS+8192}""")
    a("s_waitcnt lgkmcnt(0)")
    for q in range(2): a(f"v_cndmask_b32 v{Q1[q]}, 0, v{Q1[q]}, vcc\nv_cndmask_b32 v{Q1[q]+1}, 0, v{Q1[q]+1}, vcc")
    if not M0:
        qk(0, 0); qk(1, 0)
        a("s_nop 7\ns_nop 1")
        for q in range(2):
            tilemax(a, P[0], S[q], True); halfmax(a, P[0]); set_m(a, q, P[0])
    a.label("L_at_havem")
    if not M0:
        shift(KHOFF)
        a(J(kr(0, 0)))
    a(f"s_cmp_eq_u32 s{MODE}, 1\ns_cbranch_scc1 L_at_maxpass")
    a("s_waitcnt lgkmcnt(0)")
    qk(0, 0)
    for j in range(3):
        if j == 2: a(f"s_cmp_ge_u32 s{WV}, 4\ns_cbranch_scc1 L_at_p3")
        a(f"s_add_u32 m0, s{KL[j]}, {SLOT}\ns_nop 0\nbuffer_load_dwordx4 v{DMV}, s[12:15], s{KS[j]} offen sc1 lds")
    if not CW:
        a(f"s_cmp_lg_u32 s{MODE}, 0\ns_cbranch_scc1 L_at_p3")
        clear_o(a)
        a(f"""s_lshl_b32 s22, s2, 7
    s_lshl_b32 s23, s{HW}, 2
    s_add_u32 s22, s22, s23
    s_add_u32 s{FCOFF}, s22, {WS_FE}""")
    a.label("L_at_p3")
    a("s_setprio 3")
    stamp(a, 10)
    a(f".p2align {ALP}")
    for _ in range(ALN): a("s_nop 0")
    def kv(j):
        return f"""s_add_u32 m0, s{KL[j]}, s32
        s_add_u32 s{KS[j]}, s{KS[j]}, {TTS_}
        buffer_load_dwordx4 v{DMV}, s[12:15], s{KS[j]} offen sc1 lds"""
    wo = f"""s_mov_b32 m0, s{WOL}
        s_sub_u32 s{WOL}, s{WOL}, {8*960}
        buffer_load_dwordx4 v{WOV}, s[8:11], s{WOS} offen lds
        s_sub_u32 s{WOS}, s{WOS}, {8*6*1280}"""
    def chunk(kind):
        last = kind == 2
        for T in range(4):
            kb = T & 1
            for q in range(2):
                o = q ^ 1
                fin = last and T == 3
                ex = [f"v_exp_f32 v{S[q]+i}, v{S[q]+i}" for i in range(16)]
                cv = [f"v_cvt_pk_bf16_f32 v{P[q]+i}, v{S[q]+2*i}, v{S[q]+2*i+1}" for i in range(8)]
                kq = kb if q == 0 else kb ^ 1
                vq = kb ^ 1 if q == 0 else kb
                rd = (kr((T+1) & 3, kb ^ 1) + vr(T, kb)) if q == 0 else []
                if fin and q == 0: rd = vr(T, kb)
                st = (2*((T+1) & 3) + q)
                def pr(i):
                    k = 4*st + i
                    P_ = [0, 4, 6, 7] if fin else PRIO
                    if k in P_: a(f"s_setprio {3 - P_.index(k)}")
                if q == 0 and T == 3: a("s_waitcnt vmcnt(0)\ns_barrier")
                if q == 1: a("s_waitcnt lgkmcnt(0)")
                G = [ex[0:4] + cv[0:1], ex[4:6] + cv[1:2] + ex[6:8] + cv[2:3], ex[8:10] + cv[3:4] + ex[10:12] + cv[4:5], ex[12:14] + cv[5:6] + ex[14:16] + cv[6:8]]
                if not (fin and q == 1): a(m32(S[o], KF[kq], Q0[o]))
                pr(0)
                if (T, q) == (1, 1) and kind == 0:
                    a(f"""s_cmp_eq_u32 s31, {2*SLOT}
                    s_cselect_b32 s29, s34, s35""")
                if (T, q) == (1, 1) and kind == 1: a("s_mov_b32 s29, s35")
                a(J(rd[0:3] + G[0]))
                if not (fin and q == 1): a(m32x8(S[o], KF[kq]+4, Q1[o], S[o]))
                pr(1)
                if (T, q) == (3, 1) and kind == 0: a(kv(1))
                if (T, q) == (0, 1) and kind == 0: a(wo)
                if (T, q) == (0, 1) and last:
                    a(f"s_cmp_ge_u32 s{WV}, 3\ns_cbranch_scc1 L_at_w3"); a(wo); a.label("L_at_w3")
                if (T, q) == (2, 1) and not last: shift(29)
                a(J(rd[3:5] + G[1]))
                a(m32(O[o], VF[vq], P[o], O[o])); pr(2)
                a(J(rd[5:7] + G[2]))
                a(m32(O[o], VF[vq]+4, P[o]+4, O[o])); pr(3)
                if (T, q) == (3, 0) and kind == 0:
                    a(kv(0))
                    a(f"s_cmp_lg_u32 s{FCOFF}, 0\ns_cbranch_scc1 L_at_fc")
                    a.label("L_at_back")
                if (T, q) == (0, 0):
                    if kind == 1: a(f"buffer_load_dwordx4 v[136:139], v{FCA}, s[12:15], 0 offen sc1")
                    else: a(wo)
                if (T, q) == (3, 0) and kind == 1:
                    poll(a, [FCA], 4, 136, preloaded=True)
                    a(f"""s_lshl_b32 s23, s{WV}, 10
                    s_add_u32 m0, s23, {YSRC}
                    s_cmp_ge_u32 s{WV}, 2
                    buffer_load_dwordx4 v{YV}, s[12:15], s{YS} offen sc1 lds
                    s_cbranch_scc1 L_at_y1
                    s_add_u32 m0, m0, 8192
                    s_add_u32 s22, s{YS}, {64*RS}
                    buffer_load_dwordx4 v{YV}, s[12:15], s22 offen sc1 lds""")
                    a.label("L_at_y1")
                if (T, q) == (3, 1) and kind == 0:
                    a(f"s_cmp_eq_u32 s{KH}, 1\ns_cbranch_scc1 L_at_n2")
                    a(kv(2))
                    a.label("L_at_n2")
                    a("s_mov_b32 s32, s31\ns_add_u32 s31, s31, s29")
                a(J(G[3][:-2]))
                if q == 1 and T == 3 and not last: a(f"v_mad_i32_i24 v{VA}, v{MSK}, s29, v{VA}")
                if q == 1 and T == 3 and kind == 0: a("s_add_u32 s30, s30, 1\ns_cmp_lt_u32 s30, 6")
                a(J(G[3][-2:]))
    a.label("L_at_loop")
    chunk(0)
    a("s_cbranch_scc1 L_at_loop")
    chunk(1)
    chunk(2)
    a("s_nop 0")
    C = S[1]; A = O[1]
    a(m32(O[1], VF[1], P[1], O[1]))
    a(f"""s_setprio 0
    s_mul_i32 s22, s{WV}, 3072
    v_add_u32 v4, s22, v{DMV}
    s_xor_b32 s22, s{WV}, 4
    s_mul_i32 s22, s22, 3072
    v_add_u32 v5, s22, v{DMV}""")
    a(m32(O[1], VF[1]+4, P[1]+4, O[1]))
    stamp(a, 11)
    if OPF == 1: o_prefetch(a, "e")
    for i in range(3): a(f"ds_write_b128 v4, {v(O[0]+4*i,4)} offset:{EXC + i*1024}")
    a(f"""v_mov_b64 v[6:7], 1
    s_mov_b32 s24, {f32hex(2.0**110)}
    v_pk_add_f32 {v(C,2)}, {v(O[0],2)}, {v(O[0]+2,2)}""")
    for i in range(4, 12, 2): a(f"v_pk_add_f32 {v(C,2)}, {v(C,2)}, {v(O[0]+i,2)}")
    a("s_nop 1")
    for i in range(0, 12, 2): a(f"v_pk_add_f32 {v(C,2)}, {v(C,2)}, {v(O[1]+i,2)}")
    a(f"""v_add_f32 v{C}, v{C}, v{C+1}
    v_add_f32 v{C+1}, v{O[0]+12}, v{O[1]+12}
    v_mul_f32 v{C}, {f32hex(2.0**-17)}, v{C}
    s_lshl_b32 s22, s{HW}, 1
    v_add_f32 v{C}, abs(v{C}), v{C+1}
    s_add_u32 s22, s22, s{KH}
    v_cmp_ngt_f32 vcc, s24, v{C}""")
    if M0:
        a(f"""v_min_f32 v{C+3}, v{O[0]+12}, v{O[1]+12}
        s_mov_b32 s24, {f32hex(2.0**-60)}
        v_cmp_gt_f32 s[26:27], s24, v{C+3}
        s_mul_i32 s22, s22, {2*OG}
        s_or_b64 vcc, vcc, s[26:27]""")
    else: a(f"s_mul_i32 s22, s22, {2*OG}")
    a(f"""s_cbranch_vccz L_at_nf
    ds_write_b32 v7, v6 offset:{FLAGW}""")
    a.label("L_at_nf")
    a(f"""s_add_u32 s23, s22, s{OTAIL}
    s_add_u32 s22, s22, s{OOCT}
    s_waitcnt lgkmcnt(0)
    s_barrier
    ds_read_b32 v6, v7 offset:{FLAGW}""")
    for i in (2, 0, 1): a(f"ds_read_b128 {v(S[0]+4*i,4)}, v5 offset:{EXC + i*1024}")
    a(f"""s_waitcnt lgkmcnt(2)
    v_readfirstlane_b32 s26, v6
    v_pk_add_f32 {v(A+8,2)}, {v(A+8,2)}, {v(S[0]+8,2)}
    v_pk_add_f32 {v(A+10,2)}, {v(A+10,2)}, {v(S[0]+10,2)}
    v_rcp_f32 v{C}, v{A+8}
    s_cmp_gt_u32 s26, s{MODE}
    v_mov_b32 v{C+1}, v{C}
    s_cbranch_scc1 L_at_fallback
    s_waitcnt lgkmcnt(0)
    v_permlane32_swap_b32 v{C}, v{C+1}""")
    for i in range(0, 8, 2): a(f"v_pk_add_f32 {v(A+i,2)}, {v(A+i,2)}, {v(S[0]+i,2)}")
    for i in range(0, 12, 2): a(f"v_pk_mul_f32 {v(A+i,2)}, {v(A+i,2)}, {v(C,2)} op_sel:[0,1] op_sel_hi:[1,1]")
    for i in range(6): a(f"v_cvt_pk_bf16_f32 v{P[0]+i}, v{A+2*i}, v{A+2*i+1}")
    modes = [OSC]
    if '--dbl' in sys.argv: modes = ['sc1', '']
    if '--dbl2' in sys.argv: modes = ['', 'sc1', '']
    if '--osc' in sys.argv: modes = [sys.argv[sys.argv.index('--osc')+1].replace('_', ' ')]
    for md in modes:
        a(f"""buffer_store_dwordx4 {v(P[0],4)}, v{OSA}, s[12:15], s22 offen {md}
        s_mov_b32 exec_hi, 0
        buffer_store_dwordx2 {v(P[0]+4,2)}, v{OST}, s[12:15], s23 offen {md}
        s_mov_b32 exec_hi, -1""")
    if '--dpf' in sys.argv:
        diag_wait(a, '--dpf'); o_prefetch(a, 'd'); a('s_waitcnt vmcnt(0)')
    diag_wait(a, '--dos')
    stamp(a, 12)
    stamp(a, 51, True)

    def cold():
        a.label("L_at_fc")
        set_flag(a, FCOFF, 6)
        a(f"s_mov_b32 s{FCOFF}, 0\ns_branch L_at_back")
        a.label("L_at_fallback")
        a(f"s_mov_b32 s{MODE}, 1")
        a.label("L_at_refill")
        a("s_waitcnt vmcnt(0) lgkmcnt(0)\ns_barrier")
        attn_reset(a)
        for j in range(3):
            if j == 2: a(f"s_cmp_ge_u32 s{WV}, 4\ns_cbranch_scc1 L_at_f3")
            a(f"s_mov_b32 m0, s{KL[j]}\ns_sub_u32 s22, s{KS[j]}, {TTS_}\nbuffer_load_dwordx4 v{DMV}, s[12:15], s22 offen sc1 lds")
        a.label("L_at_f3")
        a("s_waitcnt vmcnt(0)\ns_branch L_attn")
        a.label("L_at_maxpass")
        MX = [P[0], P[1]]
        for q in range(2):
            a(f"v_cndmask_b32 v{Q1[q]}, 0, v{Q1[q]}, vcc\nv_cndmask_b32 v{Q1[q]+1}, 0, v{Q1[q]+1}, vcc\nv_mov_b32 v{MX[q]}, 0xff800000")
        a.label("L_at_mloop")
        for T in range(4):
            a(J(kr(T, 0)) + "\ns_waitcnt lgkmcnt(0)")
            qk(0, 0); qk(1, 0)
            a("s_nop 7\ns_nop 3")
            for q in range(2): tilemax(a, MX[q], S[q], False)
        a("s_add_u32 s30, s30, 1\ns_cmp_eq_u32 s30, 8\ns_cbranch_scc1 L_at_mdone\ns_barrier")
        for j in range(3):
            if j == 2: a(f"s_cmp_ge_u32 s{WV}, 4\ns_cbranch_scc1 L_at_m3")
            a(f"s_mov_b32 m0, s{KL[j]}\ns_nop 0\nbuffer_load_dwordx4 v{DMV}, s[12:15], s{KS[j]} offen sc1 lds\ns_add_u32 s{KS[j]}, s{KS[j]}, {TTS_}")
        a.label("L_at_m3")
        a("s_waitcnt vmcnt(0)\ns_barrier\ns_branch L_at_mloop")
        a.label("L_at_mdone")
        a(f"""s_lshl_b32 s22, s{WV}, 10
        v_add_u32 v4, s22, v{DMV}
        v_xor_b32 v5, 4096, v4""")
        for q in range(2): halfmax(a, MX[q]); a(f"ds_write_b32 v4, v{MX[q]} offset:{ARING + 2*SLOT + 4*q}")
        a("s_waitcnt lgkmcnt(0)\ns_barrier")
        for q in range(2): a(f"ds_read_b32 v{S[0]+q}, v5 offset:{ARING + 2*SLOT + 4*(1-q)}")
        a("s_waitcnt lgkmcnt(0)")
        for q in range(2):
            a(f"v_max_f32 v{MX[q]}, v{MX[q]}, v{S[0]+q}"); set_m(a, q, MX[q])
        a(f"s_mov_b32 s{MODE}, 2\ns_branch L_at_refill")
    return cold

def tail(a):
    ACC = 8
    order = [3, 2, 1, 0]
    THR = int(sys.argv[sys.argv.index('--thr')+1]) if '--thr' in sys.argv else 1
    PD = int(sys.argv[sys.argv.index('--pd')+1]) if '--pd' in sys.argv else 2
    def rlist(i, slot):
        t = Asm(); wo_reads(t, i, slot); return [l.strip() for l in t.lines]
    def loads(x):
        for e in range(2): a(f"buffer_load_dwordx4 {v(OFR[2*x+e],4)}, v5, s[12:15], s{TOS if x < 2 else 27} offen offset:{((2*x+e)&3)*1024} sc1")
        a(f"buffer_load_dwordx2 {v(OFR[8]+2*x,2)}, v1, s[12:15], s{TTS} offen offset:{x*512} sc1")
    def check(x, mask):
        r0, r1, rt = OFR[2*x], OFR[2*x+1], OFR[8] + 2*x
        a(f"""v_max3_u32 v4, v{r0}, v{r0+1}, v{r0+2}
        v_max3_u32 v4, v4, v{r0+3}, v{r1}
        v_max3_u32 v4, v4, v{r1+1}, v{r1+2}
        v_max3_u32 v4, v4, v{r1+3}, v{rt}
        v_max_u32 v4, v4, v{rt+1}""")
        if mask: a("v_and_b32 v4, s31, v4")
        a("v_cmp_eq_u32 vcc, -1, v4")
    def rowstore(base, T):
        for j in range(3): a(f"ds_read_b128 {v(T+4*j,4)}, v6 offset:{base + 960*j}")
        a(f"s_mov_b32 exec_hi, 0x0fffffff\ns_add_u32 s22, s{TFS}, {6*2560}\ns_add_u32 s23, s{TFS}, {12*2560}")
        for j in range(3):
            if j == 2: a("s_mov_b32 exec_hi, 0xff")
            a(f"s_waitcnt lgkmcnt({2-j})\nbuffer_store_dwordx4 {v(T+4*j,4)}, v{FS0}, s[8:11], s{[TFS, 22, 23][j]} offen {OUTSC}")
        a("s_mov_b32 exec_hi, -1")
    srd(a, 8, P_OUT, 2048*2560)
    a(f"""v_mov_b32 v5, v{DMV}
    v_lshlrev_b32 v1, 3, v2
    s_mov_b32 s50, 0
    s_mov_b32 s29, 15
    s_add_u32 s27, s{TOS}, 4096
    s_mul_i32 s22, s{HW}, 5120
    v_add_u32 v6, s22, v5
""")
    Y = WFR[8]
    a(f"s_cmp_eq_u32 s{KH}, 1\ns_cbranch_scc1 L_t_ny")
    for m in range(5): a(f"ds_read_b64_tr_b16 {v(Y+2*m,2)}, v{YT} offset:{YSRC + m*2048}")
    for m in range(5): a(f"s_waitcnt lgkmcnt(4)\nds_write_b64 v{FIW}, {v(Y+2*m,2)} offset:{PART + 32*m}")
    rowstore(PART, WFR[3])
    a.label("L_t_ny")
    for i in (7, 6, 5, 4, 3, 2, 1, 0, 8): wo_reads(a, i, i)
    for i in range(0, 20, 2): a(f"v_mov_b64 {v(ACC+i,2)}, 0")
    stamp(a, 44, True)
    a.label("L_t_loop")
    for x in order:
        a(f"s_bitcmp0_b32 s29, {x}\ns_cbranch_scc1 L_t_no{x}")
        loads(x)
        a.label(f"L_t_no{x}")
    a(f"""s_add_u32 s50, s50, 1
    s_cmp_gt_u32 s50, {SPIN}
    s_cselect_b32 s31, 0, -1
    s_mov_b32 s28, s29
    s_waitcnt lgkmcnt(0)""")
    for n, x in enumerate(order):
        a(f"s_bitcmp0_b32 s28, {x}\ns_cbranch_scc1 L_t_co{x}")
        if x > 0:
            a(f"s_and_b32 s22, s28, {(1 << x) - 1}\ns_bcnt1_i32_b32 s22, s22")
            for k in range(x, 0, -1):
                a(f"s_waitcnt vmcnt({3*k})\ns_cmp_eq_u32 s22, {k}\ns_cbranch_scc1 L_t_w{x}")
        a("s_waitcnt vmcnt(0)")
        a.label(f"L_t_w{x}")
        check(x, True)
        a(f"s_cbranch_vccnz L_t_co{x}\ns_bitset0_b32 s29, {x}")
        for e in (1, 0):
            for m in range(5): a(m16(ACC+4*m, WFR[2*x+e]+4*m, OFR[2*x+e], ACC+4*m))
        a.label(f"L_t_co{x}")
    if '--tl' in sys.argv:
        a("s_cmp_lg_u32 s50, 1\ns_cbranch_scc1 L_t_tl")
        stamp(a, 45, True)
        a(f"v_writelane_b32 v{PV}, s29, 28")
        a.label("L_t_tl")
    a("s_cmp_lg_u32 s29, 0\ns_cbranch_scc1 L_t_loop")
    wo_reads(a, 9, 7)
    a("s_waitcnt lgkmcnt(10)")
    for m in range(5): a(m16(ACC+4*m, WFR[8]+4*m, OFR[8], ACC+4*m))
    for m in range(5):
        a(f"s_waitcnt lgkmcnt({8-2*m})")
        a(m16(ACC+4*m, WFR[7]+4*m, OFR[9], ACC+4*m))
    stamp(a, 15)
    stamp(a, 52, True)
    if PROF: a(f"v_writelane_b32 v{PV}, s50, 29")
    T = 128
    a(f"s_cmp_eq_u32 s{KH}, 1\ns_cbranch_scc1 L_t_r1\ns_nop 3")
    for m in range(5): a(f"ds_write_b128 v6, {v(ACC+4*m,4)} offset:{PART + m*1024}")
    a("s_waitcnt lgkmcnt(0)\ns_barrier\ns_branch L_t_fin")
    a.label("L_t_r1")
    a("s_barrier")
    for m in range(5): a(f"ds_read_b128 {v(T+4*m,4)}, v6 offset:{PART + m*1024}")
    for m in range(5):
        a(f"s_waitcnt lgkmcnt(4)")
        for i in range(0, 4, 2): a(f"v_pk_add_f32 {v(ACC+4*m+i,2)}, {v(ACC+4*m+i,2)}, {v(T+4*m+i,2)}")
        a(f"v_cvt_pk_bf16_f32 v{ACC+4*m}, v{ACC+4*m}, v{ACC+4*m+1}\nv_cvt_pk_bf16_f32 v{ACC+4*m+1}, v{ACC+4*m+2}, v{ACC+4*m+3}")
        a(f"ds_write_b64 v{FIW}, {v(ACC+4*m,2)} offset:{OIMG + 32*m}")
    stamp(a, 46, True)
    rowstore(OIMG, T+24)
    a.label("L_t_fin")


DOC = """; ---------------------------------------------------------------------------------------------
;
; ---------------------------------------------------------------------------------------------
"""

def main(path):
    a = Asm()
    nm = NAME + "_kernel"
    a(f".globl {nm}\n.p2align 8\n.type {nm},@function")
    a.label(nm)
    if '--early' in sys.argv: a("s_memrealtime s[96:97]")
    a(f"""s_cmp_ge_u32 s2, 256
    s_cbranch_scc1 L_end
    s_load_dwordx16 s[64:79], s[0:1], 0
    s_load_dwordx8 s[80:87], s[0:1], 64
    s_load_dwordx2 s[88:89], s[0:1], 96
    v_lshrrev_b32 v1, 6, v0
    v_and_b32 v2, 63, v0
    v_readfirstlane_b32 s{WV}, v1
    s_and_b32 s{XCD}, s2, 7
    s_lshr_b32 s{IDX}, s2, 3
    s_cmp_lg_u32 s{WV}, 7
    s_cbranch_scc1 L_nopf
    s_cmp_ge_u32 s{IDX}, (L_code_end-{nm})/1024
    s_cbranch_scc1 L_nopf
    s_getpc_b64 s[22:23]""")
    a.label("L_pc")
    a(f"""s_lshl_b32 s24, s{IDX}, 10
    s_sub_u32 s22, s22, L_pc-{nm}
    s_subb_u32 s23, s23, 0
    v_lshl_add_u32 v4, v2, 4, s24
    v_mov_b32 v5, s23
    v_add_co_u32 v4, vcc, s22, v4
    s_nop 1
    v_addc_co_u32 v5, vcc, 0, v5, vcc
    global_load_dwordx4 v[220:223], v[4:5], off""")
    a.label("L_nopf")
    if PROF:
        a(f"v_mov_b32 v{PV}, 0\ns_memrealtime s[90:91]\ns_memtime s[92:93]")
    a(f"""s_and_b32 s{HW}, s{WV}, 3
    s_lshr_b32 s{KH}, s{WV}, 2
    s_mul_i32 s{CHN}, s{XCD}, 20
    s_add_u32 s{CHN}, s{CHN}, s{IDX}
    s_lshl_b32 s{CHN}, s{CHN}, 2
    s_add_u32 s{CHN}, s{CHN}, s{HW}
    s_lshl_b32 s22, s{CHN}, 8
    v_lshl_add_u32 v6, v2, 2, s22
    s_lshl_b32 s22, s{CHN}, 1
    v_mov_b32 v7, s22
    v_lshlrev_b32 v{DMV}, 4, v2
    s_mov_b32 s{FCOFF}, 0
    s_mov_b32 s{MODE}, 0""")
    a(f"""s_cmp_ge_u32 s{IDX}, 20
    s_cbranch_scc1 L_e_np
    s_waitcnt lgkmcnt(0)""")
    for i in range(4): a(f"global_load_dword v{PRM+i}, v6, s[{P_LA+2*i}:{P_LA+2*i+1}] {PNT}")
    a(f"""global_load_ushort v{PRM+4}, v7, s[{P_DT}:{P_DT+1}]
    global_load_ushort v{VD}, v7, s[{P_D}:{P_D+1}]""")
    a.label("L_e_np")
    loader_math(a)
    a("s_waitcnt lgkmcnt(0)")
    if PROF: a(f"v_writelane_b32 v{PV}, s90, 0\nv_writelane_b32 v{PV}, s92, 1")
    srd(a, 60, P_X, 2048*1280)
    srd(a, 8, P_W, 640*3840)
    srd(a, 12, P_WS, WS_SIZE)
    if PF:
        a(f"""s_cmp_eq_u32 s{KH}, 1
        s_cbranch_scc1 L_nopx
        s_lshl_b32 s22, s{IDX}, 2
        s_add_u32 s22, s22, s{HW}
        s_lshl_b32 s23, s{XCD}, 7
        s_add_u32 s23, s23, s22
        s_mul_i32 s23, s23, 2560
        buffer_load_dwordx4 v[208:211], v{DMV}, s[60:63], s23 offen
        buffer_load_dwordx4 v[208:211], v{DMV}, s[60:63], s23 offen offset:1024
        buffer_load_dwordx4 v[208:211], v{DMV}, s[60:63], s23 offen offset:1536
        s_mul_i32 s22, s22, 3
        s_lshr_b32 s23, s{XCD}, 1
        s_mul_i32 s23, s23, {160*3840}
        s_and_b32 s24, s{XCD}, 1
        s_mul_i32 s24, s24, 1792
        s_add_u32 s23, s23, s24""")
        for j in range(3):
            a(f"""s_lshr_b32 s24, s22, 1
            s_mul_i32 s24, s24, 3840
            s_and_b32 s26, s22, 1
            s_lshl_b32 s26, s26, 10
            s_add_u32 s24, s24, s26
            s_add_u32 s24, s24, s23
            s_cmp_ge_u32 s22, 320
            s_cselect_b32 s24, 0x7000000, s24
            s_add_u32 s22, s22, 1
            buffer_load_dwordx4 v[208:211], v{DMV}, s[8:11], s24 offen""")
        a.label("L_nopx")
    if TLB:
        a(f"s_cmp_lg_u32 s{WV}, 6\ns_cbranch_scc1 L_notlb")
        srd(a, 4, P_OUT, 2048*2560)
        if TLB == 1:
            a(f"""v_lshlrev_b32 v3, 20, v2
            s_mov_b64 exec, 0x3ffff
            buffer_load_dword v220, v3, s[12:15], 0 offen
            s_mov_b64 exec, 0x1f
            buffer_load_dword v221, v3, s[4:7], 0 offen""")
        else:
            a(f"""s_mul_i32 s22, s{IDX}, {9*65536}
            v_lshlrev_b32 v3, 16, v2
            s_mov_b64 exec, 0x1ff
            buffer_load_dword v220, v3, s[12:15], s22 offen
            s_mul_i32 s22, s{IDX}, {3*65536}
            s_mov_b64 exec, 7
            buffer_load_dword v221, v3, s[4:7], s22 offen""")
        srd(a, 4, P_WO, 640*1280)
        a(f"""v_lshlrev_b32 v3, 16, v2
        s_mov_b64 exec, 0x1fff
        buffer_load_dword v222, v3, s[4:7], 0 offen
        s_mov_b64 exec, -1""")
        a.label("L_notlb")
    a(f"""s_cmp_ge_u32 s{IDX}, 30
    s_cbranch_scc1 L_e_tr
    s_cmp_lt_u32 s{IDX}, 20
    s_cselect_b32 s22, 1, 0
    s_cmp_lg_u32 s22, s{KH}
    s_cbranch_scc1 L_e_x
    s_cmp_eq_u32 s{KH}, 1
    s_cbranch_scc1 L_g_pro
    s_barrier""")
    a.label("L_g_pro")
    issue(a)
    stamp(a, 41)
    a(f"s_cmp_eq_u32 s{KH}, 0\ns_cbranch_scc1 L_gemm")
    if NH == 2: issue(a)
    else: skip(a)
    a("s_branch L_helper")
    a.label("L_e_x")
    a(f"""s_cmp_eq_u32 s{KH}, 1
    s_cbranch_scc1 L_nn
    s_setprio 2
    s_branch L_kgen""")
    a.label("L_e_tr")
    a(f"""s_lshl_b32 s26, s{XCD}, 1
    s_add_u32 s26, s26, s{IDX}
    s_sub_u32 s26, s26, 30
    s_lshl_b32 s26, s26, 3
    s_add_u32 s26, s26, s{WV}
    s_lshl_b32 s27, s{WV}, 13
    s_add_u32 s27, s27, 16384
    s_branch L_e_ut""")
    a.label("L_nn")
    a(f"""s_mul_i32 s26, s{XCD}, 10
    s_add_u32 s26, s26, s{IDX}
    s_mul_i32 s22, s{HW}, 80
    s_add_u32 s26, s26, s22
    s_add_u32 s26, s26, {NT - 20}
    s_lshl_b32 s27, s{HW}, 13
    s_add_u32 s27, s27, {SCR}
    s_cmp_lt_u32 s26, 320
    s_cbranch_scc1 L_e_ut
    s_cmp_lg_u32 s26, {NT + 240}
    s_cbranch_scc1 L_e_eb
    s_memrealtime s[22:23]
    v_mov_b32 v3, 0
    s_waitcnt lgkmcnt(0)
    s_or_b32 s22, s22, 1
    v_mov_b32 v4, s22
    s_mov_b64 exec, 1
    global_store_dword v3, v4, s[{P_DBG}:{P_DBG+1}] sc1
    s_mov_b64 exec, -1
    s_branch L_e_eb""")
    a.label("L_e_ut")
    utile_issue(a)
    a(f"s_cmp_ge_u32 s{IDX}, 30\ns_cbranch_scc1 L_utile")
    a.label("L_e_eb")
    a("s_barrier")
    a.label("L_helper")
    helper(a)
    a.label("L_g_kb")
    skip(a)
    if NH == 2: skip(a)
    else: issue(a)
    issue(a)
    a(f"s_setprio {MP}\nv_add_u32 v6, s28, v{DMV}")
    for i in range(4): a(f"ds_write_b128 v6, {v(KACC+4*i,4)} offset:{1024*i}")
    a.label("L_gemm")
    gemm(a)
    a.label("L_w1")
    window1(a)
    a.label("L_attn")
    cold = attention(a)
    tail(a)
    diag_wait(a, '--dend')
    if PROF:
        a("s_waitcnt vmcnt(0)")
        stamp(a, 16); stamp(a, 17, True)
        a(f"""s_lshl_b32 s22, s2, 3
        s_add_u32 s22, s22, s{WV}
        s_lshl_b32 s22, s22, 8
        s_add_u32 s22, s22, {WS_PROF}
        v_lshlrev_b32 v3, 2, v2
        buffer_store_dword v{PV}, v3, s[12:15], s22 offen""")
    a.label("L_end")
    a("s_endpgm")
    a.label("L_tr_back")
    arr_init(a)
    a(f"s_waitcnt lgkmcnt(0)\ns_barrier\ns_cmp_lt_u32 s{WV}, 4\ns_cbranch_scc1 L_w1\ns_branch L_h_ids")
    cold()
    a(f".fill (1024 - ((. - {nm}) % 1024))/4, 4, 0xbf810000")
    a.label("L_code_end")
    hdr = open("cdna_kernels/" + NAME + ".s.ref").read().split("\n")
    head = [l for l in hdr[:15] if l.startswith(";") and "@launch" not in l and "Override" not in l and "grid=ceil" not in l]
    txt = "\n".join(head) + "\n; @launch grid=(256,1,1) block=(512,1,1) lds=163840\n"
    txt += DOC + '.amdgcn_target "amdgcn-amd-amdhsa--gfx950"\n.text\n' + a.text()
    txt += f""".section .rodata,"a"
.p2align 6
.amdhsa_kernel {nm}
  .amdhsa_next_free_vgpr 256
  .amdhsa_next_free_sgpr 102
  .amdhsa_accum_offset 256
  .amdhsa_group_segment_fixed_size 0
  .amdhsa_kernarg_size 104
  .amdhsa_user_sgpr_count 2
  .amdhsa_user_sgpr_kernarg_segment_ptr 1
  .amdhsa_system_sgpr_workgroup_id_x 1
.end_amdhsa_kernel
"""
    open(path, "w").write(txt)
    errs = check_hazards(a.text())
    for e in errs[:30]: print("HAZARD", e)
    print(f"{path}: {len(a.lines)} lines, {len(errs)} hazards")

if __name__ == "__main__":
    main([x for x in sys.argv[1:] if x.endswith(".s")][0])
```

```python
import math, sys
from asmlib import *

NAME = "concat_heads__ssm_conv_s4d__mha_block__prompt"
WS_QKV = 0
WS_O = 0x800000
WS_UT = 0xB00000
WS_YT = 0xE00000 if '--sepy' in sys.argv else 0xB00000
WS_FA = 0x1100000
WS_FB = 0x1110000
WS_FC = 0x1120000
WS_FE = 0x1130000
WS_PROF = 0x1300000
WS_SIZE = 0x1400000
TTS_ = 480*1024
OG = 20480
RS = 4352
LOG2E = math.log2(math.e)
QSCALE = LOG2E / math.sqrt(20.0)
PROF = "--prof" in sys.argv
M0 = "--nom0" not in sys.argv
SPIN = 0x40000
NT = int(sys.argv[sys.argv.index('--nt')+1]) if '--nt' in sys.argv else 128
PT = sys.argv[sys.argv.index('--pt')+1] if '--pt' in sys.argv else ''
PTC = int(sys.argv[sys.argv.index('--ptc')+1]) if '--ptc' in sys.argv else 3
CW = True
NH = int(sys.argv[sys.argv.index('--nh')+1]) if '--nh' in sys.argv else 2
MP = int(sys.argv[sys.argv.index('--mp')+1]) if '--mp' in sys.argv else 2
XROT = int(sys.argv[sys.argv.index('--xrot')+1]) if '--xrot' in sys.argv else 0
LATE = int(sys.argv[sys.argv.index('--late')+1]) if '--late' in sys.argv else 0
PSL = int(sys.argv[sys.argv.index('--psl')+1]) if '--psl' in sys.argv else 0
PRE = int(sys.argv[sys.argv.index('--pre')+1]) if '--pre' in sys.argv else 4
PRE2 = int(sys.argv[sys.argv.index('--pre2')+1]) if '--pre2' in sys.argv else 0
PACKA = '--nopacka' not in sys.argv
ALN = int(sys.argv[sys.argv.index('--al')+1]) if '--al' in sys.argv else 0
ALP = int(sys.argv[sys.argv.index('--alp')+1]) if '--alp' in sys.argv else 6
FILL1 = int(sys.argv[sys.argv.index('--fill')+1]) if '--fill' in sys.argv else 0
OUTSC = sys.argv[sys.argv.index('--outsc')+1].replace('_', ' ') if '--outsc' in sys.argv else ''
TLB = int(sys.argv[sys.argv.index('--tlb')+1]) if '--tlb' in sys.argv else 0
POLLC = int(sys.argv[sys.argv.index('--pollc')+1]) if '--pollc' in sys.argv else 5
UP = int(sys.argv[sys.argv.index('--up')+1]) if '--up' in sys.argv else 1
UNT = '' if '--nount' in sys.argv else 'nt'
PF = '--pf' in sys.argv
PNT = 'nt'
FB_ = True
P4 = True
X16 = '--x16' in sys.argv
PRIO = [int(x) for x in sys.argv[sys.argv.index('--prio')+1].split(',')] if '--prio' in sys.argv else [0, 16, 26, 30]
LOC = '--loc' in sys.argv
OSC = '' if '--plainO' in sys.argv else 'sc1'
SPEC = int(sys.argv[sys.argv.index('--spec')+1]) if '--spec' in sys.argv else 1
XNT = "nt" if "--xnt" in sys.argv else ""
WNT = "nt" if "--wnt" in sys.argv else ""
J = "\n".join

WV, XCD, IDX, NONCE = 16, 17, 18, 19
TT, CT = 20, 21
FCOFF, HEAD5, QB, OOFF = 36, 37, 38, 39
KS = [40, 41, 42]; KL = [44, 45, 46]
MODE, KH, KHOFF = 47, 48, 49
HW, CHN = 51, 52
OOCT, OTAIL = 54, 55
XS, WSO, LB = 56, 57, 99
TB = 58
P_U, P_LA, P_AI, P_CR, P_CI, P_DT, P_D, P_X, P_W, P_WO, P_OUT, P_DBG, P_WS = range(64, 90, 2)
WOS, WOL = 94, 95
MK, MK2, MC = 33+1, 35, 100
MW = [101, 25]
PV = 255
DX, DW = 240, 244
PL1, PL2 = 234, 235
DMV, KA, K4, VA, MSK, MS4, WOV, QA4, QA0 = range(224, 233)

RING = 32768
SCR = 3*RING
UST = 4640
KOFF = 4*UST
CHA = KOFF + 4224
CVB = 65536
PST = 2048 + 32
SLOT = 20992
FLAGW = 0
CONSTP = 64
ARING = 1280
QLDS = ARING + 2*SLOT
WOB = 163840 - 107*960 - 64
EXC = ARING
YSRC = WOB - 10240
PART = 25856
KSC = SCR
CNT = 129536
ARRW = CNT
OIMG = ARING
assert CVB + 4*CHA <= 163840 and ARING + 3*SLOT <= 65536 and ARING + 3*SLOT <= WOB + 11*960
assert EXC + 24576 <= PART and PART + 20480 <= YSRC and YSRC >= ARING + 2*SLOT and EXC + 24576 <= ARING + SLOT + 5*PST and OIMG + 20480 <= PART

def srd(a, d, lo, size):
    a(f"s_mov_b32 s{d}, s{lo}\ns_and_b32 s{d+1}, s{lo+1}, 0xffff\ns_mov_b32 s{d+2}, {size}\ns_mov_b32 s{d+3}, 0x20000")
def m32(d, x, y, c=None):
    return f"v_mfma_f32_32x32x16_bf16 {v(d,16)}, {v(x,4)}, {v(y,4)}, {v(c,16) if c is not None else 0}"
def m32x8(d, x, y, c):
    if X16: return f"v_mfma_f32_32x32x16_bf16 {v(d,16)}, {v(x-2,4)}, {v(y-2,4)}, {v(c,16)}"
    return f"v_mfma_f32_32x32x8_bf16 {v(d,16)}, {v(x,2)}, {v(y,2)}, {v(c,16)}"
def m16(d, x, y, c=None):
    return f"v_mfma_f32_16x16x32_bf16 {v(d,4)}, {v(x,4)}, {v(y,4)}, {v(c,4) if c is not None else 0}"
LITE = "--lite" in sys.argv
def stamp(a, i, real=False):
    if LITE and i not in (50, 51, 53, 17) + ((52, 44, 45, 46, 47) if '--tl' in sys.argv and real else ()): return
    if PROF: a(f"s_mem{'real' if real else ''}time s[92:93]\ns_waitcnt lgkmcnt(0)\nv_writelane_b32 v{PV}, s92, {i}")

def diag_wait(a, key):
    if key not in sys.argv: return
    x = int(sys.argv[sys.argv.index(key)+1]) * 100
    l = a.newlabel("L_dg")
    a.label(l)
    a(f"""s_memrealtime s[90:91]
    s_waitcnt lgkmcnt(0)
    s_sub_u32 s90, s90, s{NONCE}
    s_cmp_lt_u32 s90, {x}
    s_cbranch_scc1 {l}""")

def get_nonce(a):
    l = a.newlabel("L_nonce"); e = a.newlabel("L_nonce_e")
    a(f"""s_load_dword s{NONCE}, s[{P_DBG}:{P_DBG+1}], 0
    s_mov_b32 s50, 0
    v_mov_b32 v222, 0
    s_waitcnt lgkmcnt(0)""")
    a.label(l)
    a(f"""s_cmp_lg_u32 s{NONCE}, 0
    s_cbranch_scc1 {e}
    global_load_dword v223, v222, s[{P_DBG}:{P_DBG+1}] sc1
    s_add_u32 s50, s50, 1
    s_waitcnt vmcnt(0)
    v_readfirstlane_b32 s{NONCE}, v223
    s_cmp_lt_u32 s50, {SPIN}
    s_cbranch_scc1 {l}""")
    a.label(e)

def poll(a, addrs, width, vt, preloaded=False, sleep=0, cnt=50):
    l = a.newlabel("L_poll"); e = a.newlabel("L_poll_e")
    sfx = {1: "dword", 4: "dwordx4"}[width]
    a(f"s_mov_b32 s{cnt}, 0")
    if preloaded: a(f"s_branch {l}_c")
    a.label(l)
    for k, ad in enumerate(addrs): a(f"buffer_load_{sfx} {v(vt+4*k,width)}, v{ad}, s[12:15], 0 offen sc1")
    a(f"s_add_u32 s{cnt}, s{cnt}, 1\ns_waitcnt vmcnt(0)")
    a.label(l + "_c")
    regs = [vt+4*k+j for k in range(len(addrs)) for j in range(width)]
    for r in regs: a(f"v_xor_b32 v{r}, s{NONCE}, v{r}")
    for r in regs[1:]: a(f"v_or_b32 v{regs[0]}, v{regs[0]}, v{r}")
    a(f"""v_cmp_ne_u32 vcc, 0, v{regs[0]}
    s_cmp_gt_u32 s{cnt}, {SPIN}
    s_cbranch_scc1 {e}""")
    if sleep: a(f"s_cbranch_vccz {e}\ns_sleep {sleep}\ns_branch {l}")
    else: a(f"s_cbranch_vccnz {l}")
    a.label(e)

def set_flag(a, soff, vt):
    a(f"""v_mov_b32 v{vt}, 0
    v_mov_b32 v{vt+1}, s{NONCE}
    s_mov_b64 exec, 1
    buffer_store_dword v{vt+1}, v{vt}, s[12:15], s{soff} offen sc1
    s_mov_b64 exec, -1""")

def attn_ids(a):
    if LOC: a(f"s_mov_b32 s{HEAD5}, s{IDX}\ns_mov_b32 s{QB}, s{XCD}")
    else: a(f"""s_lshl_b32 s{HEAD5}, s{XCD}, 2
    s_lshr_b32 s22, s{IDX}, 3
    s_add_u32 s{HEAD5}, s{HEAD5}, s22
    s_and_b32 s{QB}, s{IDX}, 7""")
    a(f"""s_mul_i32 s22, s{QB}, {16*OG}
    s_add_u32 s22, s22, {WS_O}
    s_lshl_b32 s{OOCT}, s{HEAD5}, 9
    s_add_u32 s{OOCT}, s{OOCT}, s22
    s_lshl_b32 s{OTAIL}, s{HEAD5}, 7
    s_add_u32 s{OTAIL}, s{OTAIL}, s22
    s_add_u32 s{OTAIL}, s{OTAIL}, 16384
    s_mul_i32 s{HEAD5}, s{HEAD5}, 5
    s_lshl_b32 s{OOFF}, s{HEAD5}, 10
    s_mul_i32 s22, s{QB}, {2*TTS_}
    s_add_u32 s{OOFF}, s{OOFF}, s22""")

def clear_o(a, q=HW):
    a(f"""v_lshrrev_b32 v140, 5, v2
    v_mul_u32_u24 v140, {2*OG}, v140
    v_add_u32 v140, v140, v{OST}
    v_mov_b32 v136, -1
    v_mov_b32 v137, -1
    v_mov_b32 v138, -1
    v_mov_b32 v139, -1
    s_mul_i32 s24, s{q}, {4*OG}
    s_add_u32 s22, s24, s{OOCT}
    s_add_u32 s23, s22, {2*OG}
    s_add_u32 s24, s24, s{OTAIL}
    buffer_store_dwordx4 v[136:139], v{OSA}, s[12:15], s22 offen sc1
    buffer_store_dwordx4 v[136:139], v{OSA}, s[12:15], s23 offen sc1
    buffer_store_dwordx2 v[136:137], v140, s[12:15], s24 offen sc1""")

def arr_init(a):
    a(f"v_mov_b32 v220, {CNT}\nv_mov_b32 v222, 0\nv_mov_b32 v223, 0\nds_write_b64 v220, v[222:223]")

def utile_issue(a):
    srd(a, 4, P_U, 2048*1280)
    a(f"""v_lshlrev_b32 v4, 4, v9
    v_mul_u32_u24 v3, 1280, v8
    v_add_u32 v3, v3, v4
    s_mov_b32 m0, s27
    s_lshr_b32 s23, s26, 5
    s_and_b32 s28, s26, 31
    s_mul_i32 s24, s28, {64*1280}
    s_lshl_b32 s22, s23, 7
    s_add_u32 s24, s24, s22
    s_mov_b32 s30, 0""")
    a.label("L_ut_i")
    a(f"""buffer_load_dwordx4 v3, s[4:7], s24 offen {UNT} lds
    s_add_u32 m0, m0, 1024
    s_add_u32 s24, s24, {8*1280}
    s_add_u32 s30, s30, 1
    s_cmp_lt_u32 s30, 8
    s_cbranch_scc1 L_ut_i""")
def utile(a):
    A0, A1, A2, A3, D = 8, 9, 10, 11, 12
    a(f"""s_lshr_b32 s23, s26, 5
    v_xor_b32 v{A1}, v{A1}, v{A0}
    v_lshlrev_b32 v{A1}, 4, v{A1}
    v_mul_u32_u24 v{A3}, {RS}, v{A0}
    v_add_u32 v{A3}, v{A3}, v{A1}
    v_lshlrev_b32 v{A0}, 4, v2
    v_add_u32 v{A0}, s27, v{A0}
    v_bfe_u32 v{A1}, v2, 2, 2
    v_lshlrev_b32 v{A1}, 7, v{A1}
    v_lshrrev_b32 v{A2}, 4, v2
    v_lshl_add_u32 v{A1}, v{A2}, 5, v{A1}
    v_and_b32 v{A2}, 3, v2
    v_lshl_add_u32 v{A1}, v{A2}, 3, v{A1}
    v_add_u32 v{A1}, s27, v{A1}
    v_and_b32 v{A2}, 7, v2
    v_lshlrev_b32 v{A2}, 4, v{A2}
    v_lshl_add_u32 v{A2}, v2, 7, v{A2}
    v_add_u32 v{A2}, s27, v{A2}
    s_mul_i32 s23, s23, {64*RS}
    s_lshl_b32 s24, s28, 7
    s_add_u32 s24, s24, s23
    s_add_u32 s24, s24, {WS_UT}
    s_lshl_b32 s29, s26, {2 if PACKA else 7}
    s_add_u32 s29, s29, {WS_FA}""")
    stamp(a, 27)
    a("s_waitcnt vmcnt(0)")
    stamp(a, 28)
    for i in range(16): a(f"ds_read_b64_tr_b16 {v(D+2*i,2)}, v{A1} offset:{i*512}")
    a("s_waitcnt lgkmcnt(0)")
    for i in range(8): a(f"v_xor_b32 v4, {16*i}, v{A2}\nds_write_b128 v4, {v(D+4*i,4)}")
    a("s_waitcnt lgkmcnt(0)")
    for i in range(8): a(f"ds_read_b128 {v(D+4*i,4)}, v{A0} offset:{i*1024}")
    for i in range(8):
        a(f"s_waitcnt lgkmcnt({7-i})\nbuffer_store_dwordx4 {v(D+4*i,4)}, v{A3}, s[12:15], s24 offen sc1\ns_add_u32 s24, s24, {8*RS}")
    stamp(a, 2)
    a(f"s_mov_b32 s33, 1\ns_cmp_lt_u32 s{IDX}, 30\ns_cbranch_scc1 L_h_ld0")
    get_nonce(a)
    a("s_waitcnt vmcnt(0)")
    set_flag(a, 29, 4)
    stamp(a, 3)

def next_slot(a, cur, tmp):
    a(f"""s_add_u32 s{cur}, s{cur}, {RING}
    s_lshr_b32 s{tmp}, s{cur}, 15
    s_cmp_eq_u32 s{tmp}, 3
    s_cselect_b32 s{tmp}, {RING}, 0
    s_add_u32 s{cur}, s{cur}, s{tmp}
    s_cmp_ge_u32 s{cur}, {5*RING}
    s_cselect_b32 s{tmp}, {5*RING}, 0
    s_sub_u32 s{cur}, s{cur}, s{tmp}""")

ORD = sys.argv[sys.argv.index('--ord')+1] if '--ord' in sys.argv else 'q3'
ORDL = sys.argv[sys.argv.index('--ordl')+1] if '--ordl' in sys.argv else None
def orders(ORD=ORD):
    if ORD == 'q6': return [[2 + t, 6 + t, t & 1, 1 - (t & 1)] + [2 + (i ^ t) for i in (1, 2, 3)] + [6 + (i ^ t) for i in (1, 2, 3)] for t in range(4)]
    if ORD == 'q7': return [[2 + t, 6 + t, t & 1] + [2 + (i ^ t) for i in (1, 2, 3)] + [1 - (t & 1)] + [6 + (i ^ t) for i in (1, 2, 3)] for t in range(4)]
    if ORD == 'q8': return [[t & 1, 2 + t, 6 + t, 1 - (t & 1)] + [2 + (i ^ t) for i in (1, 2, 3)] + [6 + (i ^ t) for i in (1, 2, 3)] for t in range(4)]
    if ORD == 'none': return [list(range(10))]*4
    if ORD == 'pair': return [[c ^ (t & 1) for c in range(10)] for t in range(4)]
    if ORD == 'quad': return [[(c ^ t) if c < 8 else (c ^ (t & 1)) for c in range(10)] for t in range(4)]
    if ORD == 'quad2': return [[(c ^ (t & 1)) if c < 2 else 2 + ((c - 2) ^ t) for c in range(10)] for t in range(4)]
    if ORD == 'quad3': return [[(c ^ t) if c < 4 else ((c ^ (t & 1)) if c < 6 else 6 + ((c - 6) ^ t)) for c in range(10)] for t in range(4)]
    if ORD == 'five': return [[(c // 5) * 5 + (c + (0, 1, 3, 4)[t]) % 5 for c in range(10)] for t in range(4)]
    if ORD == 'mix': return [[(0,4,1,2,8,3,5,6,7,9), (1,5,0,3,9,2,4,7,6,8), (2,6,3,0,8,1,7,4,5,9), (3,7,2,1,9,0,6,5,4,8)][t] for t in range(4)]
    if ORD == 'q3': return [[t & 1, 1 - (t & 1), 2 + t, 6 + t] + [2 + (i ^ t) for i in (1, 2, 3)] + [6 + (i ^ t) for i in (1, 2, 3)] for t in range(4)]
    if ORD == 'q4': return [[t, 4 + t, 8 + (t & 1), t ^ 1, t ^ 2, t ^ 3, 4 + (t ^ 1), 4 + (t ^ 2), 4 + (t ^ 3), 9 - (t & 1)] for t in range(4)]
    if ORD == 'q5': return [[t, t ^ 1, 4 + t, 8 + (t & 1), t ^ 2, t ^ 3, 4 + (t ^ 1), 4 + (t ^ 2), 4 + (t ^ 3), 9 - (t & 1)] for t in range(4)]
    if ORD == 'half': return [[(c + 5*(t & 1)) % 10 for c in range(10)] for t in range(4)]
    if ORD == 'rot': return [[(c + (0, 3, 5, 8)[t]) % 10 for c in range(10)] for t in range(4)]
    if ORD == 'tri': return [[(c//3*3 + (c + t) % 3) if c < 9 else 9 for c in range(10)] for t in (0, 1, 2, 1)]
def loader_math(a):
    a(f"""s_lshr_b32 s{TT}, s{XCD}, 1
    s_lshl_b32 s{TT}, s{TT}, 2
    s_and_b32 s24, s{XCD}, 1
    s_and_b32 s22, s{IDX}, 3
    s_lshr_b32 s23, s{IDX}, 2
    s_lshl_b32 s{CT}, s24, 3
    s_add_u32 s{CT}, s{CT}, s23
    s_lshl_b32 s24, s24, 1
    s_cmp_ge_u32 s{IDX}, 28
    s_cselect_b32 s{CT}, 7, s{CT}
    s_cselect_b32 s24, s24, 0
    s_add_u32 s22, s22, s24
    s_add_u32 s{TT}, s{TT}, s22
    s_add_u32 s22, s{TT}, s{CT}
    s_and_b32 s22, s22, 3""")
    if XROT == 1: a(f"s_mul_i32 s25, s{XCD}, 5\ns_lshr_b32 s25, s25, 2")
    if XROT == 2: a(f"s_and_b32 s25, s{XCD}, 1\ns_mul_i32 s25, s25, 5")
    if XROT == 3: a(f"s_lshr_b32 s25, s{XCD}, 1\ns_mul_i32 s25, s25, 5\ns_lshr_b32 s25, s25, 1")
    def table(o):
        tb = [sum(c << (4*i) for i, c in enumerate(x)) for x in o]
        a(f"s_mov_b32 s{TB}, {tb[0] & 0xffffffff}\ns_mov_b32 s{TB+1}, {tb[0] >> 32}")
        for t in range(1, 4):
            if tb[t] != tb[0]: a(f"s_cmp_eq_u32 s22, {t}\ns_cselect_b32 s{TB}, {tb[t] & 0xffffffff}, s{TB}\ns_cselect_b32 s{TB+1}, {tb[t] >> 32}, s{TB+1}")
    table(orders())
    if ORDL:
        a(f"s_cmp_lt_u32 s{IDX}, 20\ns_cbranch_scc1 L_tbl")
        table(orders(ORDL))
        a.label("L_tbl")
    a(f"""v_lshrrev_b32 v8, 3, v2
    v_and_b32 v9, 7, v2
    v_lshrrev_b32 v5, 1, v8
    s_and_b32 s22, s{HW}, 1
    s_lshl_b32 s22, s22, 2
    v_add_u32 v5, s22, v5
    v_xor_b32 v4, v9, v5
    v_lshlrev_b32 v4, 4, v4
    v_mul_u32_u24 v3, 2560, v8
    v_add_u32 v{DX}, v3, v4
    s_lshl_b32 s{XS}, s{TT}, 3
    s_add_u32 s{XS}, s{XS}, s{HW}
    s_mul_i32 s{XS}, s{XS}, {16*1280}
    v_lshrrev_b32 v3, 4, v2
    v_bfe_u32 v4, v2, 2, 2
    v_xor_b32 v4, v4, v3
    v_lshlrev_b32 v4, 6, v4
    v_and_b32 v5, 3, v2
    v_lshlrev_b32 v5, 4, v5
    v_mul_u32_u24 v3, 3840, v3
    v_add3_u32 v{DW}, v3, v4, v5
    s_lshl_b32 s{WSO}, s{CT}, 8
    s_mul_i32 s22, s{HW}, {4*3840}
    s_add_u32 s{WSO}, s{WSO}, s22
    s_lshl_b32 s{LB}, s{HW}, 10
""")
    for i in range(1, 4):
        a(f"v_add_u32 v{DX+i}, {(64*(i>>1) + (i&1))*1280}, v{DX}\nv_add_u32 v{DW+i}, {i*16*3840}, v{DW}")
def dma_prep():
    xr = f"""
    s_add_u32 s43, s43, s25
    s_cmp_ge_u32 s43, 10
    s_cselect_b32 s100, 10, 0
    s_sub_u32 s43, s43, s100""" if XROT else ""
    return f"""s_and_b32 s43, s{TB}, 15{xr}
    s_lshr_b64 s[{TB}:{TB+1}], s[{TB}:{TB+1}], 4
    s_lshl_b32 s100, s43, 7
    s_add_u32 s100, s100, s{XS}
    s_mul_i32 s101, s43, {64*3840}
    s_add_u32 s101, s101, s{WSO}"""
def issue(a, fill=None):
    a(dma_prep())
    per = (len(fill) + 7) // 8 if fill else 0
    for k in range(8):
        i = k >> 1
        a(f"s_add_u32 m0, s{LB}, {i*4096 + (16384 if k & 1 else 0)}\ns_nop 0")
        a(f"buffer_load_dwordx4 v{(DW if k & 1 else DX)+i}, s[{'8:11' if k & 1 else '60:63'}], s{101 if k & 1 else 100} offen {WNT if k & 1 else XNT} lds")
        if fill:
            n = min(per, len(fill))
            while n < len(fill) and (fill[n].startswith(("s_cselect", "s_addc"))): n += 1
            a(J(fill[:n])); del fill[:n]
    assert not fill
    next_slot(a, LB, 43)
def skip(a):
    a(f"s_lshr_b64 s[{TB}:{TB+1}], s[{TB}:{TB+1}], 4")
    next_slot(a, LB, 22)
def lds_wait(a, va, off, vt, sleep=True):
    l = a.newlabel("L_lw"); e = a.newlabel("L_le")
    a.label(l)
    a(f"""ds_read_b32 v{vt}, v{va} offset:{off}
    s_waitcnt lgkmcnt(0)
    v_readfirstlane_b32 s22, v{vt}
    s_cmp_ge_u32 s22, 4
    s_cbranch_scc1 {e}""")
    if sleep: a("s_sleep 2")
    a(f"s_branch {l}")
    a.label(e)

def main_pre(a):
    def wg_of(tt, ct, dst):
        a(f"""v_cmp_eq_u32 vcc, 7, v{ct}
        v_bfe_u32 v10, v{tt}, 1, 1
        v_lshrrev_b32 v11, 3, v{ct}
        v_cndmask_b32 v10, v11, v10, vcc
        v_and_b32 v11, 3, v{tt}
        v_and_b32 v12, 1, v{tt}
        v_cndmask_b32 v11, v11, v12, vcc
        v_and_b32 v12, 7, v{ct}
        v_lshl_add_u32 v11, v12, 2, v11
        v_lshl_add_u32 v10, v11, 3, v10
        v_lshrrev_b32 v11, 2, v{tt}
        v_lshl_add_u32 v{dst}, v11, 1, v10""")
    a(f"""v_and_b32 v3, 15, v2
    v_lshrrev_b32 v4, 5, v2
    v_mul_u32_u24 v4, 160, v4
    v_bfe_u32 v5, v2, 4, 1
    v_lshl_add_u32 v4, v5, 2, v4
    s_add_u32 s22, s{HEAD5}, 160
    v_add_u32 v4, s22, v4
    v_lshrrev_b32 v4, 5, v4""")
    wg_of(3, 4, 8)
    a(f"""v_lshlrev_b32 v8, 7, v8
    v_add_u32 v{PL1}, {WS_FB}, v8
    v_and_b32 v3, 1, v2
    s_lshl_b32 s22, s{QB}, 1
    v_add_u32 v3, s22, v3
    v_bfe_u32 v4, v2, 1, 1
    v_lshlrev_b32 v4, 2, v4
    v_add_u32 v4, s{HEAD5}, v4
    v_lshrrev_b32 v4, 5, v4""")
    wg_of(3, 4, 9)
    a(f"""    v_lshlrev_b32 v9, 7, v9
    v_add_u32 v{PL2}, {WS_FB}, v9""")

def gemm(a):
    XA = [10, 11, 12, 13]; WA = [14, 15]
    FX = [[16, 20], [32, 36]]; FW = [[24, 28], [40, 44]]
    ACC = 48
    a(f"""s_and_b32 s34, s{WV}, 1
    s_lshr_b32 s35, s{WV}, 1
    v_and_b32 v3, 31, v2
    v_lshrrev_b32 v4, 5, v2
    v_bfe_u32 v5, v3, 1, 3
    v_xor_b32 v5, v5, v4
    v_lshlrev_b32 v5, 4, v5
    v_lshlrev_b32 v6, 7, v3
    s_lshl_b32 s22, s34, 13
    v_add3_u32 v{XA[0]}, v5, v6, s22
    v_xor_b32 v{XA[1]}, 32, v{XA[0]}
    v_xor_b32 v{XA[2]}, 64, v{XA[0]}
    v_xor_b32 v{XA[3]}, 96, v{XA[0]}
    v_bfe_u32 v5, v2, 2, 2
    s_lshl_b32 s22, s35, 1
    v_xor_b32 v6, s22, v5
    v_lshlrev_b32 v6, 6, v6
    v_lshlrev_b32 v7, 3, v4
    v_add_u32 v7, v7, v5
    v_lshlrev_b32 v7, 8, v7
    v_bfe_u32 v5, v2, 4, 1
    v_lshlrev_b32 v5, 5, v5
    v_add3_u32 v6, v6, v7, v5
    v_and_b32 v5, 3, v2
    v_lshl_add_u32 v6, v5, 3, v6
    v_add_u32 v{WA[0]}, 16384, v6
    v_xor_b32 v{WA[1]}, 64, v{WA[0]}
    v_lshlrev_b32 v5, 10, v4
    v_lshl_add_u32 v5, v3, 4, v5
    s_lshl_b32 s26, s{CT}, 5
    s_lshl_b32 s23, s35, 4
    s_add_u32 s26, s26, s23
    s_lshl_b32 s26, s26, 10
    s_mul_i32 s23, s{TT}, {TTS_}
    s_add_u32 s26, s26, s23
    s_lshl_b32 s23, s34, 9
    s_add_u32 s26, s26, s23""")
    a("v_mov_b64 v[16:17], 0\nv_mov_b64 v[18:19], 0\ns_nop 1")
    for i in range(4): a(m32(ACC+16*i, 16, 16))
    def rx(ks, buf, t): return f"ds_read_b128 {v(FX[buf][t],4)}, v{XA[ks]} offset:{t*4096}"
    def rw(ks, buf, m, rd): return f"ds_read_b64_tr_b16 {v(FW[buf][m]+2*rd,2)}, v{WA[m]} offset:{(16*ks+4*rd)*256}"
    def rds(ks, buf): return [rx(ks,buf,0), rw(ks,buf,0,0), rw(ks,buf,0,1), rx(ks,buf,1), rw(ks,buf,1,0), rw(ks,buf,1,1)]
    def mf(buf, m, t):
        if '--g16' in sys.argv:
            d = ACC+(m*2+t)*16 + 8*buf
            return m16(d, FW[buf][m], FX[buf][t], d) + "\n" + m16(d+4, FX[buf][t], FW[buf][m], d+4)
        return m32(ACC+(m*2+t)*16, FW[buf][m], FX[buf][t], ACC+(m*2+t)*16)
    stamp(a, 24)
    a(f"s_cmp_lt_u32 s{IDX}, 20\ns_cbranch_scc1 L_g_w")
    a("s_barrier")
    issue(a)
    a.label("L_g_w")
    issue(a)
    a("s_waitcnt vmcnt(16) lgkmcnt(0)")
    stamp(a, 25)
    a(f"s_cmp_lt_u32 s{IDX}, 20\ns_cselect_b32 s27, {2 if P4 else 1}, 1")
    a("s_mov_b32 s30, 0\ns_mov_b32 s31, 0\ns_setprio 2")
    stamp(a, 26)
    a("s_barrier")
    stamp(a, 2)
    a(J(rds(0, 0)))
    a(".p2align 3")
    a.label("L_g_mm")
    for ks in range(4):
        b = ks & 1
        r = rds((ks+1) & 3, b ^ 1)
        a("s_waitcnt lgkmcnt(3)")
        a(mf(b, 0, 0))
        if ks < 3:
            a(J(r[0:3]) + "\ns_waitcnt lgkmcnt(5)")
            a(mf(b, 0, 1))
            a(J(r[3:6]) + "\ns_waitcnt lgkmcnt(6)")
            a(mf(b, 1, 0))
            if ks == 0:
                a("s_mov_b32 s32, s31"); next_slot(a, 31, 33)
            if ks == 1: a(f"s_sub_u32 s33, s31, s32\ns_add_u32 s30, s30, 1\nv_add_u32 v{XA[0]}, s33, v{XA[0]}\nv_add_u32 v{XA[1]}, s33, v{XA[1]}\nv_add_u32 v{XA[2]}, s33, v{XA[2]}")
            if ks == 2: a(f"v_add_u32 v{XA[3]}, s33, v{XA[3]}\nv_add_u32 v{WA[0]}, s33, v{WA[0]}\nv_add_u32 v{WA[1]}, s33, v{WA[1]}\ns_cmp_le_u32 s30, s27")
            a(mf(b, 1, 1))
        else:
            a("s_cbranch_scc1 L_g_w8\ns_waitcnt vmcnt(0)")
            a.label("L_g_w8")
            a("s_waitcnt vmcnt(8) lgkmcnt(0)\ns_cmp_gt_u32 s30, 8\ns_cbranch_scc1 L_g_nb\ns_barrier")
            a.label("L_g_nb")
            a(mf(b, 0, 1))
            a(J(r[0:3]) + "\ns_cmp_lt_u32 s30, 10")
            a(mf(b, 1, 0))
            a(J(r[3:6]))
            a(mf(b, 1, 1))
            a("s_cbranch_scc1 L_g_mm")
    stamp(a, 3)
    a("s_nop 4\ns_waitcnt lgkmcnt(0)")
    for q in range(2):
        if q == 0: a(f"s_cmp_lt_u32 s{CT}, 5\ns_cbranch_scc1 L_g_eq")
        else: a.label("L_g_eq"); a(f"s_mov_b32 s28, {f32hex(QSCALE)}")
        k = 0
        for m in range(2):
            for g in range(4):
                d = 16 + 4*k; k += 1
                for t in range(2):
                    r = ACC + (m*2+t)*16 + 4*g
                    if q:
                        for i in range(4): a(f"v_mul_f32 v{r+i}, s28, v{r+i}")
                    a(f"v_cvt_pk_bf16_f32 v{d+2*t}, v{r}, v{r+1}\nv_cvt_pk_bf16_f32 v{d+2*t+1}, v{r+2}, v{r+3}")
                if k & 1: a(f"s_add_u32 s23, s26, {WS_QKV + (m*8+2*g)*1024}")
                a(f"buffer_store_dwordx4 {v(d,4)}, v5, s[12:15], s23 offen offset:{0 if k & 1 else 2048} sc1")
        if q == 0: a("s_branch L_w1")

PRM = 152
VD = 233
def cm(d, x, z, t):
    return [f"v_pk_mul_f32 {v(t,2)}, {v(x,2)}, {v(z,2)} op_sel:[0,0] op_sel_hi:[1,0]",
            f"v_pk_fma_f32 {v(d,2)}, {v(x,2)}, {v(z,2)}, {v(t,2)} op_sel:[1,1,0] op_sel_hi:[0,1,1] neg_lo:[0,1,0]"]
def ilv(*ls):
    out = []
    for i in range(max(len(x) for x in ls)):
        for x in ls:
            if i < len(x): out.append(x[i])
    return out
GDT, GER, GTH, GT = 112, 113, 114, 116
def kg_dt(a):
    a(f"""v_lshlrev_b32 v{GDT}, 16, v{PRM+4}
    v_mul_f32 v{GDT}, {f32hex(LOG2E)}, v{GDT}
    v_exp_f32 v{GDT}, v{GDT}
    s_lshl_b32 s22, s{KH}, 4
    v_cvt_pk_bf16_f32 v{GDT}, v{GDT}, v{GDT}
    v_and_b32 v{GDT}, 0xffff0000, v{GDT}""")
def kg_setup(anchors, X0):
    o = f"""v_lshlrev_b32 v{PRM}, s22, v{PRM}
    v_lshlrev_b32 v{PRM+1}, s22, v{PRM+1}
    v_and_b32 v{GER}, 0xffff0000, v{PRM}
    v_mul_f32 v{GER}, {f32hex(LOG2E)}, v{GER}
    v_exp_f32 v{GER}, v{GER}
    v_and_b32 v{GTH}, 0xffff0000, v{PRM+1}
    v_lshlrev_b32 v{PRM+2}, s22, v{PRM+2}
    v_cvt_pk_bf16_f32 v{GER}, v{GER}, v{GER}
    v_lshlrev_b32 v{PRM+3}, s22, v{PRM+3}
    v_and_b32 v{GER}, 0xffff0000, v{GER}
    v_mul_f32 v{GER}, v{GER}, v{GDT}
    v_mul_f32 v{GTH}, v{GTH}, v{GDT}
    v_mul_f32 v{GER}, {f32hex(-LOG2E)}, v{GER}
    v_mul_f32 v{GTH}, 0.15915494, v{GTH}
    v_and_b32 v{X0}, 0xffff0000, v{PRM+2}
    v_and_b32 v{X0+1}, 0xffff0000, v{PRM+3}
    v_mul_f32 v{X0}, v{X0}, v{GDT}
    v_mul_f32 v{X0+1}, v{X0+1}, v{GDT}
    v_add_f32 v{X0}, v{X0}, v{X0}
    v_add_f32 v{X0+1}, v{X0+1}, v{X0+1}""".split("\n")
    for (z, p) in anchors:
        o += f"""v_mul_f32 v{GT}, {f32hex(p)}, v{GER}
        v_mul_f32 v{GT+1}, {f32hex(p)}, v{GTH}
        v_exp_f32 v{GT}, v{GT}
        v_fract_f32 v{GT+1}, v{GT+1}
        v_cos_f32 v{z}, v{GT+1}
        v_sin_f32 v{z+1}, v{GT+1}
        v_mul_f32 v{z}, v{z}, v{GT}
        v_mul_f32 v{z+1}, v{z+1}, v{GT}""".split("\n")
    return o

def krow():
    def row(h, reg): return 8*(reg >> 2) + 4*h + (reg & 3)
    rowp = {}
    for p in range(4): rowp[row(0, p)] = p; rowp[row(1, p)] = p + 4
    for i, (p0, p1) in enumerate(((256, 260), (258, 262), (260, 264), (512, 768), (516, 772), (520, 776), (1024, 1280), (1032, 1288), (1536, 1792), (1544, 1800))):
        rowp[row(0, 4+i)] = p0; rowp[row(1, 4+i)] = p1
    return rowp
XORD = [1, 2, 3, 4, 5, 6, 7, 258, 260, 262, 516, 772, 1544, 1800, 0, 256, 264, 512, 520, 768, 776, 1024, 1032, 1280, 1288, 1536, 1792]
PKA = 160
KACC = 192
GWA, GRA, GFX = 16, 32, 112
def kgen(a, mid):
    Z1, Z8, ZW, ZB, YA = 124, 126, 128, 130, 132
    XF, DT_, SEL, PX, PY = 16, 72, 104, 112, 160
    rowp = krow()
    ps = [0, 8] + XORD[:14] + XORD[15:]
    xr = {p: XF + 2*i for i, p in enumerate(ps)}
    a(f"""s_lshl_b32 s28, s{WV}, 13
    s_add_u32 s28, s28, {KSC}
    v_bfe_u32 v3, v2, 4, 1
    v_lshlrev_b32 v3, 4, v3
    v_mov_b32 v4, 0x3f80
    v_lshlrev_b32 v3, v3, v4
    v_and_b32 v4, 15, v2
    v_lshrrev_b32 v5, 5, v2
    v_lshlrev_b32 v5, 2, v5
    v_sub_u32 v4, v4, v5""")
    for sidx in range(2):
        for u in range(4): a(f"v_cmp_eq_u32 vcc, {8*sidx+u}, v4\ns_nop 1\nv_cndmask_b32 v{SEL+4*sidx+u}, 0, v3, vcc")
    a(f"s_cmp_eq_u32 s{KH}, 1\ns_cbranch_scc1 L_kg_w\ns_waitcnt vmcnt({6 if PF else 0})")
    a.label("L_kg_w")
    a(f"s_waitcnt vmcnt({8*NH})")
    stamp(a, 20)
    kg_dt(a)
    a(J(kg_setup(((Z8, 8.0), (ZB, 128.0), (Z1, 1.0), (ZW, 256.0)), xr[0])))
    for j in range(16):
        ya = cm(YA, Z8 if j == 2 else YA, Z8, GT+4) if j >= 2 else []
        yb = cm(ZB, ZB, Z8, GT+6) if j else []
        a(J(ilv(ya, yb)))
        lo = ("1.0", "0") if j == 0 else ((f"v{Z8}", f"v{Z8+1}") if j == 1 else (f"v{YA}", f"v{YA+1}"))
        a(f"v_cvt_pk_bf16_f32 v{PY+j}, {lo[0]}, v{ZB}\nv_cvt_pk_bf16_f32 v{PY+16+j}, {lo[1]}, v{ZB+1}")
    def swaps(R): return [f"v_permlane32_swap_b32 v{R+8*sx+u}, v{R+8*sx+4+u}" for sx in range(2) for u in range(4)]
    def tmm(R, b, D): return [m32(D, R+4*b, SEL), m32(D, R+8+4*b, SEL+4, D)]
    def tcv(R, b, D): return [f"v_cvt_pk_bf16_f32 v{R+8*(u>>2)+4*b+(u&3)}, v{D+2*u}, v{D+2*u+1}" for u in range(8)]
    def step(p, t):
        if p < 8: return cm(xr[p], xr[p-1], Z1, t)
        if p == 8: return cm(xr[8], xr[0], Z8, t)
        return cm(xr[p], xr[p-256], ZW, t)
    s1 = sum((step(p, GT) for p in (1, 2, 3, 4, 5, 6, 7, 258, 260, 262, 516, 772, 1544, 1800)), [])
    s2 = sum((step(p, GT+2) for p in (8, 256, 264, 512, 520, 768, 776, 1024, 1032, 1280, 1288, 1536, 1792)), [])
    a(J(ilv(s1, s2)))
    stamp(a, 21)
    def px(part):
        o = []
        for r in range(16):
            lo = xr[rowp[r]] + part
            hi = f"{'-' if part else ''}v{xr[rowp[r+16]] + part}" if r + 16 in rowp else "0"
            o.append(f"v_cvt_pk_bf16_f32 v{PX+16*part+r}, {'-' if part else ''}v{lo}, {hi}")
        return o
    D0, D1 = DT_, DT_ + 16
    def mix(mm, va):
        n = (len(va) + len(mm) - 1) // len(mm)
        for i, m in enumerate(mm):
            a(m); a(J(va[i*n:(i+1)*n]))
    a(J(swaps(PY)))
    E0_, E1_ = XF, XF + 16
    mix(tmm(PY, 0, D0) + tmm(PY, 1, D1), swaps(PY+16) + px(0) + px(1))
    mix(tmm(PY+16, 0, E0_) + tmm(PY+16, 1, E1_), tcv(PY, 0, D0) + tcv(PY, 1, D1) + swaps(PX))
    mix(tmm(PX, 0, D0) + tmm(PX, 1, D1), swaps(PX+16) + tcv(PY+16, 0, E0_) + tcv(PY+16, 1, E1_))
    mix(tmm(PX+16, 0, E0_) + tmm(PX+16, 1, E1_), tcv(PX, 0, D0) + ["s_nop 3"] + tcv(PX, 1, D1))
    a("s_nop 1")
    mix([m32(KACC, PX+4*q, PY+4*q, KACC if q else None) for q in (0, 2, 1, 3)], tcv(PX+16, 0, E0_) + ["s_nop 3"] + tcv(PX+16, 1, E1_))
    a("s_nop 1")
    for q in (0, 2, 1, 3): a(m32(KACC, PX+16+4*q, PY+16+4*q, KACC))
    stamp(a, 22)

KP = 208
def kpack(a, kdst):
    Jv, H, AD = 3, 4, 12
    R = KACC; P0 = KP
    a(f"""v_and_b32 v{Jv}, 31, v2
    v_lshrrev_b32 v{H}, 5, v2
    v_lshlrev_b32 v{AD}, 4, v{Jv}
    v_sub_u32 v{AD}, s{kdst}, v{AD}
    v_lshlrev_b32 v13, 3, v{H}
    v_sub_u32 v180, v{AD}, v13
    v_lshlrev_b32 v13, 9, v{H}
    v_sub_u32 v181, v{AD}, v13
    v_and_b32 v{H}, 1, v{Jv}
    v_cmp_eq_u32 vcc, 0, v{H}
    v_lshlrev_b32 v{Jv}, 2, v{Jv}
    v_add_u32 v182, s{kdst}, v{Jv}
    v_lshlrev_b32 v15, 16, v{VD}
    s_mov_b64 exec, 1
    v_add_f32 v{R}, v{R}, v15
    s_mov_b64 exec, -1""")
    cv = lambda d, lo, hi: a(f"v_cvt_pk_bf16_f32 v{d}, v{lo}, v{hi}")
    cv(P0, R+3, R+2); cv(P0+1, R+1, R+0)
    cv(P0+2, R+6, R+5); cv(P0+3, R+4, R+4)
    cv(P0+4, R+9, R+9); cv(P0+5, R+8, R+8); cv(P0+6, R+8, R+7); cv(P0+7, R+7, R+7)
    for sidx in range(2):
        ra, rb = R+10+2*sidx, R+11+2*sidx
        d = P0 + 8 + 4*sidx
        a(f"v_cndmask_b32 v13, v{rb}, v{ra}, vcc")
        cv(d, rb, rb); cv(d+1, rb, 13); cv(d+2, ra, ra); cv(d+3, ra, ra)
def kwrite(a, vzero):
    P0 = KP
    a(f"""ds_write_b64 v180, {v(P0,2)} offset:{4080+8}
    ds_write_b64 v180, {v(P0+2,2)} offset:{4080-512+8}
    ds_write_b128 v181, {v(P0+4,4)} offset:{4080-1024}
    ds_write_b128 v181, {v(P0+8,4)} offset:{4080-2048}
    ds_write_b128 v181, {v(P0+12,4)} offset:{4080-3072}
    ds_write_b32 v182, v{vzero} offset:4096""")

CAA, CBA, CACC = 10, 11, 148
def conv_setup(a, cbase):
    a(f"""v_and_b32 v3, 3, v2
    v_mul_u32_u24 v{CAA}, {UST}, v3
    v_bfe_u32 v3, v2, 2, 2
    v_lshl_add_u32 v{CAA}, v3, 7, v{CAA}
    v_lshrrev_b32 v4, 4, v2
    v_lshl_add_u32 v{CAA}, v4, 4, v{CAA}
    v_add_u32 v{CAA}, s{cbase}, v{CAA}
    v_and_b32 v3, 15, v2
    v_lshlrev_b32 v3, 3, v3
    v_lshlrev_b32 v{CBA}, 4, v4
    v_sub_u32 v{CBA}, v{CBA}, v3
    v_add_u32 v{CBA}, {KOFF+120}, v{CBA}
    v_add_u32 v{CBA}, s{cbase}, v{CBA}""")
def conv(a, ydst, fill):
    FA = [16, 80]; FB = [48, 112]; ACC = CACC
    def loads(b, extra):
        out = []
        for k in range(8):
            out += [f"ds_read_b64 {v(FB[b]+4*k,2)}, v{CBA} offset:{512*(7-k)+extra}", f"ds_read_b64 {v(FB[b]+4*k+2,2)}, v{CBA} offset:{512*(7-k)+8+extra}",
                    f"ds_read_b128 {v(FA[b]+4*k,4)}, v{CAA} offset:{512*k+extra}"]
        return out
    pairs = sorted([(i, j) for i in range(8) for j in range(8) if i + j < 8], key=lambda p: (max(p), p))
    def mm(b, i, j, first=False): return m16(ACC+4*(i+j), FA[b]+4*i, FB[b]+4*j, None if first else ACC+4*(i+j))
    a("s_waitcnt lgkmcnt(0)")
    l0 = loads(0, 0); l1 = loads(1, 64)
    seq = l0 + l1
    a(J(seq[:12])); pos = 12
    seen = set(); lvl = -1
    for n, (i, j) in enumerate(pairs):
        if max(i, j) > lvl:
            lvl = max(i, j)
            a(f"s_waitcnt lgkmcnt({min(14, pos - 3*(lvl+1))})")
        a(mm(0, i, j, i+j not in seen)); seen.add(i+j)
        if pos < 48: a(seq[pos]); pos += 1
    assert pos == 48
    a("s_mov_b32 s53, 0\n.p2align 3")
    lp = a.newlabel("L_cv")
    a.label(lp)
    for b in (1, 0):
        ld = loads(b ^ 1, 128 if b == 1 else 192)
        a("s_waitcnt lgkmcnt(0)")
        for n, (i, j) in enumerate(pairs):
            a(mm(b, i, j))
            if n < 24: a(ld[n])
            if b == 0 and n == 33: a(f"v_add_u32 v{CAA}, 128, v{CAA}\nv_add_u32 v{CBA}, 128, v{CBA}")
            elif b == 0 and n == 34: a("s_add_u32 s53, s53, 1\ns_cmp_lt_u32 s53, 3")
    a(f"s_cbranch_scc1 {lp}")
    a("v_lshlrev_b32 v12, 3, v2\ns_waitcnt lgkmcnt(0)")
    out = []
    for beta in (7, 6, 5, 4, 3, 2, 1, 0):
        for i in range(beta + 1):
            a(mm(1, i, beta - i))
            last = len(a.lines)
            for _ in range(2):
                if out and out[0][0] <= len(a.lines): a(out.pop(0)[1])
                elif fill: a(fill.pop(0))
        ac = ACC + 4*beta
        out += [(last + 8, t) for t in (f"v_cvt_pk_bf16_f32 v{ac}, v{ac}, v{ac+1}", f"v_cvt_pk_bf16_f32 v{ac+1}, v{ac+2}, v{ac+3}",
                f"buffer_store_dwordx2 {v(ac,2)}, v12, s[12:15], s{ydst} offen offset:{512*beta} sc1")]
    a(J(fill)); fill.clear()
    for d, t in out:
        if d > len(a.lines): a(f"s_nop {d - len(a.lines)}")
        a(t)

def helper(a):
    CB = 26
    UE = 132
    a(f"""s_mov_b32 s33, 0
    s_cmp_ge_u32 s{IDX}, 20
    s_cbranch_scc1 L_h_tr
    s_lshr_b32 s{FCOFF}, s{CHN}, 2
    s_lshl_b32 s{FCOFF}, s{FCOFF}, 7
    s_lshl_b32 s22, s{HW}, 2
    s_add_u32 s{FCOFF}, s{FCOFF}, s22
    s_add_u32 s{FCOFF}, s{FCOFF}, {WS_FC}
    s_lshr_b32 s22, s{CHN}, 6
    s_lshl_b32 s22, s22, {7 if PACKA else 12}
    s_add_u32 s22, s22, {WS_FA}
    v_and_b32 v4, 31, v2
    v_lshl_add_u32 v8, v4, {2 if PACKA else 7}, s22
    s_mul_i32 s{CB}, s{HW}, {CHA}
    s_add_u32 s{CB}, s{CB}, {CVB}
    s_mul_i32 s27, s{CHN}, {RS}
    s_add_u32 s27, s27, {WS_UT}
    s_add_u32 s29, s{CB}, {KOFF}
    s_mov_b32 s33, {POLLC}""")
    skip(a)
    a("s_setprio 1")
    a.label("L_kgen")
    kgen(a, None)
    a(f"s_cmp_eq_u32 s{KH}, 0\ns_cbranch_scc1 L_g_kb")
    stamp(a, 3)
    if P4:
        skip(a)
        a("s_setprio 0\ns_mov_b32 s30, 1\ns_waitcnt vmcnt(0)\ns_barrier")
        if PROF and not LITE: stamp(a, 32)
        a("s_branch L_h_ld")
    else: a("s_setprio 0\ns_waitcnt vmcnt(0)\ns_branch L_h_ld1")
    a.label("L_h_tr")
    a(f"s_cmp_ge_u32 s26, 320\ns_cbranch_scc1 L_h_ld0")
    a.label("L_utile")
    utile(a)
    if NT > 128:
        a(f"""s_add_u32 s26, s26, 128
        s_cmp_ge_u32 s26, {NT}
        s_cbranch_scc1 L_tr_back
        v_lshrrev_b32 v8, 3, v2
        v_and_b32 v9, 7, v2
        s_branch L_e_ut""")
    else: a("s_branch L_tr_back")
    a.label("L_h_ld0")
    if FB_: a("s_barrier")
    a(f"v_mov_b32 v8, {WS_FA}")
    skip(a); skip(a); skip(a)
    a.label("L_h_ld1")
    a("s_mov_b32 s30, 0")
    def bar():
        a("s_waitcnt vmcnt(16) lgkmcnt(0)\ns_barrier")
        if PROF and not LITE: a(f"s_memtime s[92:93]\ns_add_u32 m0, s30, 32\ns_waitcnt lgkmcnt(0)\nv_writelane_b32 v{PV}, s92, m0")
    def lines(*fs):
        t = Asm()
        for f in fs: f(t)
        return [l.strip() for l in t.lines]
    a.label("L_h_ld")
    bar()
    issue(a, lines(attn_ids, o_maps, kv_units))
    a(f"""s_add_u32 s30, s30, 1
    s_cmp_lg_u32 s30, s33
    s_cbranch_scc1 L_h_l1
    s_cmp_lt_u32 s{IDX}, 20
    s_cbranch_scc1 L_h_pl""")
    get_nonce(a)
    a("s_waitcnt vmcnt(8)")
    set_flag(a, 29, 10)
    stamp(a, 3)
    a("s_branch L_h_l1")
    a.label("L_h_pl")
    a("buffer_load_dword v9, v8, s[12:15], 0 offen sc1")
    a.label("L_h_l1")
    if PT:
        a(f"""s_cmp_lg_u32 s30, {PTC}
        s_cbranch_scc1 L_h_pt
        s_mul_i32 s22, s{TT}, {TTS_}
        s_lshl_b32 s23, s{CT}, 15
        s_add_u32 s22, s22, s23
        s_lshl_b32 s23, s{HW}, 13
        s_add_u32 s22, s22, s23
        v_lshlrev_b32 v3, 7, v2""")
        a("buffer_store_dword v3, v3, s[12:15], s22 offen sc1" if PT == 'w' else "buffer_load_dword v14, v3, s[12:15], s22 offen sc1")
        a.label("L_h_pt")
    a("s_cmp_lt_u32 s30, 5\ns_cbranch_scc1 L_h_ld")
    bar()
    issue(a, [f's_load_dword s{NONCE}, s[{P_DBG}:{P_DBG+1}], 0'] + lines(tail_setup))
    a("s_add_u32 s30, s30, 1")
    bar()
    issue(a, lines(attn_reset2, lambda t: conv_setup(t, CB)))
    a("s_waitcnt vmcnt(16)\ns_barrier")
    a(f"s_cmp_lg_u32 s{NONCE}, 0\ns_cbranch_scc1 L_h_hn")
    get_nonce(a)
    a.label("L_h_hn")
    arr_init(a)
    a(f"""s_cmp_lt_u32 s{IDX}, 20
    s_cbranch_scc1 L_h_k7
    s_waitcnt vmcnt(0) lgkmcnt(0)
    s_barrier""")
    y_setup(a)
    a("s_branch L_attn")
    a.label("L_h_ids")
    a("s_mov_b32 s33, 2\ns_branch L_setup")
    a.label("L_h_k7")
    def uloads():
        for i in range(4): a(f"buffer_load_dwordx4 {v(132+4*i,4)}, v{DMV}, s[12:15], s27 offen offset:{1024*i} sc1")
    stamp(a, 39)
    a(f"s_sub_u32 s28, s28, 32768\nv_add_u32 v6, s28, v{DMV}\nv_cmp_ne_u32 vcc, s{NONCE}, v9\ns_mov_b32 s31, 0")
    for i in range(4): a(f"ds_read_b128 {v(16+4*i,4)}, v6 offset:{1024*i}")
    a("s_cbranch_vccnz L_h_nu")
    uloads()
    a("s_mov_b32 s31, 1\ns_branch L_h_n2")
    a.label("L_h_nu")
    a("buffer_load_dword v9, v8, s[12:15], 0 offen sc1")
    a.label("L_h_n2")
    a("s_waitcnt lgkmcnt(0)")
    for i in range(14): a(f"v_add_f32 v{KACC+i}, v{KACC+i}, v{16+i}")
    kpack(a, 29)
    a(f"""v_lshlrev_b32 v5, 3, v2
    v_min_u32 v5, 376, v5
    v_add_u32 v5, s{CB}, v5
    v_mov_b32 v6, 0
    v_mov_b32 v7, 0""")
    stamp(a, 46)
    a("s_cmp_eq_u32 s31, 1\ns_cbranch_scc1 L_h_w4\ns_waitcnt vmcnt(1)")
    a.label("L_h_w4")
    a("s_waitcnt vmcnt(4)\ns_barrier")
    stamp(a, 4)
    a("s_cmp_eq_u32 s31, 1\ns_cbranch_scc1 L_h_hu")
    a("s_waitcnt vmcnt(0)")
    poll(a, [8], 1, 9, preloaded=True)
    uloads()
    a.label("L_h_hu")
    if PROF: a(f"v_writelane_b32 v{PV}, s31, 30")
    kwrite(a, 6)
    for r in range(4): a(f"ds_write_b64 v5, v[6:7] offset:{r*UST}")
    a(f"""s_mul_i32 s27, s{CHN}, {RS}
    s_add_u32 s27, s27, {WS_YT}
    v_add_u32 v4, s{CB}, v{DMV}
    s_waitcnt vmcnt(0)""")
    stamp(a, 5)
    for i in range(4):
        e = 132 + 4*i
        C2, C1, C0, PP = 16 + 14*i, 20 + 14*i, 24 + 14*i, 28 + 14*i
        a(f"ds_write_b128 v4, {v(e,4)} offset:{3*UST + 384 + 1024*i}")
        if i == 0: a(f"v_mov_b32 v{PP}, 0\nv_mov_b32 v{C1}, 0\ns_nop 0")
        else: a(f"v_readlane_b32 s22, v{e-2}, 63\nv_readlane_b32 s23, v{e-1}, 63\ns_nop 0\nv_mov_b32 v{PP}, s22\nv_mov_b32 v{C1}, s23\ns_nop 0")
        a(f"v_mov_b32_dpp v{PP}, v{e+2} wave_shr:1 row_mask:0xf bank_mask:0xf")
        a(f"v_mov_b32_dpp v{C1}, v{e+3} wave_shr:1 row_mask:0xf bank_mask:0xf")
        for j in range(3): a(f"v_mov_b32 v{C1+1+j}, v{e+j}")
        a(f"ds_write_b128 v4, {v(C1,4)} offset:{UST + 384 + 1024*i}")
        a(f"v_alignbit_b32 v{C2}, v{e}, v{C1}, 16")
        for j in range(1, 4): a(f"v_alignbit_b32 v{C2+j}, v{e+j}, v{e+j-1}, 16")
        a(f"ds_write_b128 v4, {v(C2,4)} offset:{2*UST + 384 + 1024*i}")
        a(f"v_alignbit_b32 v{C0}, v{C1}, v{PP}, 16")
        for j in range(3): a(f"v_mov_b32 v{C0+1+j}, v{C2+j}")
        a(f"ds_write_b128 v4, {v(C0,4)} offset:{384 + 1024*i}")
    stamp(a, 6)
    t = Asm(); zero_s(t); y_setup(t)
    fill = [l.strip() for l in t.lines]
    conv(a, 27, fill)
    assert not fill
    stamp(a, 7)
    a("s_branch L_attn2")

def window1(a):
    get_nonce(a)
    a(f"""v_mov_b32 v3, {ARRW}
    v_mov_b32 v4, 1
    s_lshl_b32 s22, s2, 7
    s_add_u32 s26, s22, {WS_FB}""")
    zero_state(a)
    stamp(a, 4)
    a(f"""s_waitcnt vmcnt(0)
    s_mov_b64 exec, 1
    ds_add_rtn_u32 v4, v3, v4
    s_mov_b64 exec, -1
    s_waitcnt lgkmcnt(0)
    v_readfirstlane_b32 s22, v4
    s_mov_b32 s28, s22
    s_mov_b32 s33, 0
    s_cmp_lg_u32 s22, 3
    s_cbranch_scc1 L_w1_r""")
    diag_wait(a, '--dfl')
    stamp(a, 5)
    stamp(a, 53, True)
    set_flag(a, 26, 6)
    a(f"""v_mov_b32 v16, 0x3f803f80
    v_mov_b32 v17, 0x00003f80
    v_mov_b32 v18, 0x3f803f80
    v_mov_b32 v19, 0x00003f80
    ds_write_b128 v{DMV}, v[16:19] offset:{CONSTP}
    ds_write_b32 v6, v6 offset:{FLAGW}
    s_mov_b32 s33, 1
    s_branch L_setup""")
    a.label("L_w1_r")
    a("s_setprio 0")
    a.label("L_setup")
    attn_ids(a)
    o_maps(a)
    attn_reset(a)
    tail_setup(a)
    y_setup(a)
    a("""s_cmp_eq_u32 s33, 2
    s_cbranch_scc1 L_attn
""")
    if CW:
        a(f"""s_lshl_b32 s22, s2, 7
        s_lshl_b32 s23, s28, 2
        s_add_u32 s22, s22, s23
        s_add_u32 s{FCOFF}, s22, {WS_FE}
        s_cmp_eq_u32 s33, 1
        s_cbranch_scc1 L_w1_po""")
        a.label("L_w1_c")
        clear_o(a, 28)
        a("s_cmp_lg_u32 s28, 0\ns_cbranch_scc1 L_at_b2\ns_mov_b32 s28, 3\ns_branch L_w1_c")
        a.label("L_w1_po")
    else: a("s_cmp_eq_u32 s33, 0\ns_cbranch_scc1 L_at_b2")
    main_pre(a)
    a("s_mov_b32 s50, 0")
    a.label("L_w1_p")
    a(f"""buffer_load_dword v20, v{PL1}, s[12:15], 0 offen sc1
    buffer_load_dword v24, v{PL2}, s[12:15], 0 offen sc1
    s_add_u32 s50, s50, 1
    s_waitcnt vmcnt(0)
    v_cmp_ne_u32 vcc, s{NONCE}, v20
    v_cmp_ne_u32 s[26:27], s{NONCE}, v24
    s_cmp_gt_u32 s50, {SPIN}
    s_cbranch_scc1 L_w1_q
    s_or_b32 s28, vcc_lo, vcc_hi
    s_and_b32 s22, s28, 0x01010101
    s_or_b32 s22, s22, s27
    s_cbranch_scc1 L_w1_p""")
    a.label("L_w1_q")
    stamp(a, 6)
    stamp(a, 54, True)
    a(f"s_add_u32 s23, s{HEAD5}, 160\ns_lshl_b32 s23, s23, 10")
    def qu(u): a(f"""s_mov_b32 m0, {QLDS + 1024*u}
        s_add_u32 s24, s{OOFF}, {(u >> 1)*1024 + (u & 1)*TTS_}
        buffer_load_dwordx4 v{DMV}, s[12:15], s24 offen sc1 lds""")
    def ku(u):
        p = u >> 1
        off = ((p + (155 if p >= 5 else 0)) << 10) + ((u & 1)*8)*TTS_
        a(f"""s_mov_b32 m0, {ARING + p*PST + (u & 1)*1024}
        s_add_u32 s24, s23, {off}
        buffer_load_dwordx4 v{DMV}, s[12:15], s24 offen sc1 lds""")
    for u in range(10): qu(u)
    for u in range(20): ku(u)
    stamp(a, 7)
    poll(a, [PL1, PL2], 1, 20, preloaded=True)
    a("s_waitcnt vmcnt(0)\ns_branch L_at_b2")

Q0 = [16, 22]; Q1 = [20, 26]
KF = [28, 34]; VF = [40, 48]; P = [56, 64]; S = [72, 88]; O = [104, 120]
def set_m(a, q, M):
    a(f"""v_sub_f32 v{M}, 0, v{M}
    v_and_b32 v{M+1}, 0xffff0000, v{M}
    v_sub_f32 v{M+2}, v{M}, v{M+1}
    v_and_b32 v{M+3}, 0xffff0000, v{M+2}
    v_sub_f32 v{M+2}, v{M+2}, v{M+3}
    v_lshrrev_b32 v{M+1}, 16, v{M+1}
    v_or_b32 v{M+1}, v{M+1}, v{M+3}
    v_lshrrev_b32 v{M+2}, 16, v{M+2}
    v_cndmask_b32 v{Q1[q]}, v{M+1}, v{Q1[q]}, vcc
    v_cndmask_b32 v{Q1[q]+1}, v{M+2}, v{Q1[q]+1}, vcc""")
def tilemax(a, M, s, first):
    if first: a(f"v_max3_f32 v{M}, v{s}, v{s+1}, v{s+2}")
    else: a(f"v_max3_f32 v{M}, v{M}, v{s}, v{s+1}\nv_max_f32 v{M}, v{M}, v{s+2}")
    for i in range(3, 15, 2): a(f"v_max3_f32 v{M}, v{M}, v{s+i}, v{s+i+1}")
    a(f"v_max_f32 v{M}, v{M}, v{s+15}")
def halfmax(a, M):
    a(f"v_mov_b32 v{M+1}, v{M}\ns_nop 1\nv_permlane32_swap_b32 v{M}, v{M+1}\nv_max_f32 v{M}, v{M}, v{M+1}")

def kv_units(a):
    a(f"""s_lshr_b32 s22, s{WV}, 1
    s_and_b32 s23, s{WV}, 1
    s_mul_i32 s{KL[0]}, s22, {PST}
    s_lshl_b32 s24, s23, 10
    s_add_u32 s{KL[0]}, s{KL[0]}, s24
    s_add_u32 s{KL[0]}, s{KL[0]}, {ARING}
    s_add_u32 s{KL[1]}, s{KL[0]}, {4*PST}
    s_add_u32 s{KL[2]}, s{KL[0]}, {8*PST}
    s_add_u32 s24, s22, s{HEAD5}
    s_lshl_b32 s24, s24, 10
    s_mul_i32 s23, s23, {8*TTS_}
    s_add_u32 s24, s24, s23
    s_add_u32 s{KS[0]}, s24, {160*1024 + TTS_}
    s_add_u32 s{KS[2]}, s24, {(160+8+155)*1024 + TTS_}
    s_cmp_eq_u32 s22, 0
    s_cselect_b32 s23, 0, {155*1024}
    s_add_u32 s{KS[1]}, s{KS[0]}, s23
    s_add_u32 s{KS[1]}, s{KS[1]}, 4096""")
def attn_reset(a):
    kv_units(a); attn_reset2(a)
def attn_reset2(a):
    a(f"""v_and_b32 v3, 31, v2
    v_lshlrev_b32 v3, 3, v3
    v_lshrrev_b32 v5, 5, v2
    s_lshl_b32 s{KHOFF}, s{KH}, 10
    s_lshl_b32 s22, s{HW}, 1
    s_add_u32 s22, s22, s{KH}
    s_lshl_b32 s22, s22, 8
    v_add_u32 v{QA4}, s22, v3
    v_lshl_add_u32 v{QA0}, v5, 12, v{QA4}
    v_mul_u32_u24 v{KA}, {2*PST}, v5
    s_add_u32 s22, s{KHOFF if M0 else MODE+53-MODE}, {ARING}""".replace(f"s{MODE+53-MODE}", "0"))
    a(f"""v_add3_u32 v{KA}, v{KA}, v3, s22
    v_xor_b32 v{MS4}, 1, v5
    s_add_u32 s22, s22, {4*PST - CONSTP}
    v_mad_u32_u24 v{K4}, v{MS4}, s22, v3
    v_add_u32 v{K4}, {CONSTP}, v{K4}
    v_bfe_u32 v3, v2, 2, 2
    v_lshl_add_u32 v5, v5, 2, v3
    v_and_b32 v4, 3, v2
    v_bfe_u32 v3, v2, 4, 1
    v_lshl_add_u32 v4, v3, 2, v4
    v_cmp_gt_u32 vcc, 5, v4
    v_mul_u32_u24 v4, {PST}, v4
    s_add_u32 s22, s{KHOFF}, {ARING + 5*PST}
    v_add_u32 v4, s22, v4
    v_cndmask_b32 v{VA}, {CONSTP}, v4, vcc
    v_cndmask_b32 v{MSK}, 0, 1, vcc
    v_lshl_add_u32 v{VA}, v5, 3, v{VA}
    s_sub_u32 s24, 106, s{WV}
    s_mul_i32 s{WOS}, s24, {6*1280}
    s_lshr_b32 s22, s{IDX}, 2
    s_mul_i32 s22, s22, 160
    s_add_u32 s{WOS}, s{WOS}, s22
    s_mul_i32 s{WOL}, s24, 960
    s_add_u32 s{WOL}, s{WOL}, {WOB}""")
YT, OSA, OST, FIW, FS0 = range(235, 240)
YT, FIW, FS0 = 253, 251, 250
YV, FCA = 238, 239
YS, TYS = 21, 20
WAO, WAT = 248, 249
TOS, TTS, TFS = 96, 97, 98
def o_maps(a):
    a(f"""v_and_b32 v3, 15, v2
    v_bfe_u32 v4, v2, 4, 1
    v_mul_u32_u24 v4, {OG}, v4
    v_lshl_add_u32 v{OST}, v3, 3, v4
    v_lshl_add_u32 v4, v3, 4, v4
    v_lshrrev_b32 v3, 5, v2
    v_lshl_add_u32 v{OSA}, v3, 8, v4""")
def tail_setup(a):
    a(f"""v_mul_u32_u24 v6, 205, v2
    v_lshrrev_b32 v6, 11, v6
    v_mul_u32_u24 v7, 10, v6
    v_sub_u32 v7, v2, v7
    v_lshlrev_b32 v7, 4, v7
    v_mul_u32_u24 v6, 1280, v6
    v_add_u32 v{WOV}, v6, v7
    v_add_u32 v{FS0}, v6, v{WOV}
    v_bfe_u32 v3, v2, 2, 2
    v_lshrrev_b32 v4, 4, v2
    v_and_b32 v5, 3, v2
    v_lshlrev_b32 v5, 3, v5
    v_lshrrev_b32 v6, 2, v2
    v_lshl_add_u32 v6, v6, 7, v5
    s_lshl_b32 s22, s{HW}, 5
    v_add_u32 v{YT}, s22, v6
    v_lshrrev_b32 v6, 5, v2
    v_mul_u32_u24 v6, 12, v6
    v_lshl_add_u32 v6, v4, 2, v6
    v_add_u32 v6, v6, v3
    v_mad_u32_u24 v7, v4, 20, v3
    s_mul_i32 s22, s{KH}, {320*160}
    s_add_u32 s22, s22, {WOB}
    v_add_u32 v5, s22, v5
    s_movk_i32 s23, 160
    v_mad_u32_u24 v{WAO}, v6, s23, v5
    v_mad_u32_u24 v{WAT}, v7, s23, v5
    v_and_b32 v3, 15, v2
    s_mul_i32 s22, s{HW}, 5120
    v_lshl_add_u32 v4, v4, 3, s22
    v_mad_u32_u24 v{FIW}, v3, s23, v4
    s_lshl_b32 s24, s{XCD}, 2
    s_and_b32 s22, s{IDX}, 3
    s_add_u32 s24, s24, s22
    s_lshl_b32 s24, s24, 2
    s_add_u32 s24, s24, s{HW}
    s_mul_i32 s{TOS}, s24, {OG}
    s_add_u32 s{TOS}, s{TOS}, {WS_O}
    s_lshl_b32 s23, s{KH}, 11
    s_add_u32 s{TTS}, s{TOS}, s23
    s_add_u32 s{TTS}, s{TTS}, 16384
    s_lshl_b32 s23, s{KH}, 13
    s_add_u32 s{TOS}, s{TOS}, s23
    s_lshr_b32 s22, s{IDX}, 2
    s_add_u32 s22, s22, 8
    s_lshl_b32 s23, s{IDX}, 2
    s_add_u32 s23, s23, s{HW}
    s_cmp_eq_u32 s{KH}, 0
    s_cselect_b32 s24, s23, s24
    s_cselect_b32 s22, s{XCD}, s22
    s_mul_i32 s{TFS}, s24, {16*2560}
    s_mul_i32 s22, s22, 160
    s_add_u32 s{TFS}, s{TFS}, s22""")
def y_setup(a):
    a(f"""v_lshrrev_b32 v4, 3, v2
    v_and_b32 v3, 7, v2
    v_lshlrev_b32 v3, 4, v3
    v_mul_u32_u24 v4, {RS}, v4
    v_add_u32 v{YV}, v4, v3
    s_mul_i32 s22, s{XCD}, 10
    s_add_u32 s22, s22, s{WV}
    s_mul_i32 s22, s22, {8*RS}
    s_lshl_b32 s23, s{IDX}, 7
    s_add_u32 s22, s22, s23
    s_add_u32 s{YS}, s22, {WS_YT}
    s_mul_i32 s22, s{XCD}, {20*128}
    s_add_u32 s22, s22, {WS_FC}
    v_min_u32 v3, 19, v2
    v_lshl_add_u32 v{FCA}, v3, 7, s22
    v_bfe_u32 v3, v2, 3, 2
    v_lshlrev_b32 v3, 6, v3
    v_and_b32 v4, 7, v2
    s_lshl_b32 s22, s{XCD}, 3
    v_add3_u32 v3, v3, v4, s22
    v_cmp_gt_u32 vcc, 32, v2
    v_lshlrev_b32 v3, 7, v3
    v_add_u32 v3, {WS_FE}, v3
    v_cndmask_b32 v{FCA}, v3, v{FCA}, vcc""")
WFR = [28, 48, 68, 88, 144, 164, 184, 204, 108]
OFR = [128, 132, 224, 228, 232, 236, 240, 244, 136, 140]
def wo_reads(a, i, slot):
    for m in range(5):
        for hf in range(2):
            if i < 8: a(f"ds_read_b64_tr_b16 {v(WFR[slot]+4*m+2*hf,2)}, v{WAO} offset:{(40*i+8*hf)*160+32*m}")
            else: a(f"ds_read_b64_tr_b16 {v(WFR[slot]+4*m+2*hf,2)}, v{WAT} offset:{(160*(i-8)+80*hf+16)*160+32*m}")
def zero_state(a):
    zero_s(a); zero_v(a)
def zero_s(a):
    srd(a, 8, P_WO, 640*1280)
    a(f"""s_mov_b32 s30, 0
    s_mov_b32 s31, 0
    s_mov_b32 s32, {2*SLOT}
    s_mov_b32 s34, {-2*SLOT & 0xffffffff}
    s_mov_b32 s35, {SLOT}""")
def zero_v(a):
    for i in range(0, 32, 2): a(f"v_mov_b64 {v(O[0]+i,2)}, 0")
    for i in range(0, 8, 2): a(f"v_mov_b64 {v(P[1]+i,2)}, 0\nv_mov_b64 {v(VF[1]+i,2)}, 0")

OPF = int(sys.argv[sys.argv.index('--opf')+1]) if '--opf' in sys.argv else 0
def o_prefetch(a, tag):
    a(f"""s_lshl_b32 s22, s{XCD}, 2
    s_and_b32 s23, s{IDX}, 3
    s_add_u32 s22, s22, s23
    s_lshl_b32 s22, s22, 3
    s_lshr_b32 s23, s{IDX}, 2
    s_add_u32 s22, s22, s23
    s_mul_i32 s22, s22, 10
    s_add_u32 s22, s22, s{WV}
    s_lshl_b32 s22, s22, 10
    s_add_u32 s22, s22, {WS_O}
    s_cmp_ge_u32 s{WV}, 2
    buffer_load_dwordx4 v[144:147], v{DMV}, s[12:15], s22 offen sc1
    s_cbranch_scc1 L_opf{tag}
    s_add_u32 s22, s22, 8192
    buffer_load_dwordx4 v[148:151], v{DMV}, s[12:15], s22 offen sc1""")
    a.label(f"L_opf{tag}")

def attention(a):
    def kr(t, b): return [f"ds_read_b64 {v(KF[b],2)}, v{KA} offset:{t*256}", f"ds_read_b64 {v(KF[b]+2,2)}, v{KA} offset:{t*256+PST}", f"ds_read_b64 {v(KF[b]+4,2)}, v{K4} offset:{t*256}"]
    def vr(t, b): return [f"ds_read_b64_tr_b16 {v(VF[b]+2*j,2)}, v{VA} offset:{t*256+j*64}" for j in range(4)]
    def shift(sreg):
        a(f"v_add_u32 v{KA}, s{sreg}, v{KA}\nv_mad_i32_i24 v{K4}, v{MS4}, s{sreg}, v{K4}")
    def qk(q, kb): a(m32(S[q], KF[kb], Q0[q])); a(m32x8(S[q], KF[kb]+4, Q1[q], S[q]))
    zero_s(a)
    a.label("L_attn2")
    a("s_waitcnt lgkmcnt(0)")
    zero_v(a)
    a.label("L_at_b2")
    stamp(a, 8)
    a(f"v_cmp_gt_u32 vcc, 32, v2\nv_xor_b32 v3, 256, v{QA0}\nv_xor_b32 v4, 256, v{QA4}\ns_waitcnt lgkmcnt(0)\ns_barrier")
    diag_wait(a, '--da0')
    stamp(a, 9)
    stamp(a, 50, True)
    a(J(kr(0, 0)))
    a(f"s_cmp_lg_u32 s{MODE}, 0\ns_cbranch_scc1 L_at_havem")
    for q in range(2):
        r0, r4 = (3, 4) if q == 0 else (QA0, QA4)
        a(f"""ds_read_b64 {v(Q0[q],2)}, v{r0} offset:{QLDS}
        ds_read_b64 {v(Q0[q]+2,2)}, v{r0} offset:{QLDS+2048}
        ds_read_b64 {v(Q1[q],2)}, v{r4} offset:{QLDS+8192}""")
    a("s_waitcnt lgkmcnt(0)")
    for q in range(2): a(f"v_cndmask_b32 v{Q1[q]}, 0, v{Q1[q]}, vcc\nv_cndmask_b32 v{Q1[q]+1}, 0, v{Q1[q]+1}, vcc")
    if not M0:
        qk(0, 0); qk(1, 0)
        a("s_nop 7\ns_nop 1")
        for q in range(2):
            tilemax(a, P[0], S[q], True); halfmax(a, P[0]); set_m(a, q, P[0])
    a.label("L_at_havem")
    if not M0:
        shift(KHOFF)
        a(J(kr(0, 0)))
    a(f"s_cmp_eq_u32 s{MODE}, 1\ns_cbranch_scc1 L_at_maxpass")
    a("s_waitcnt lgkmcnt(0)")
    qk(0, 0)
    for j in range(3):
        if j == 2: a(f"s_cmp_ge_u32 s{WV}, 4\ns_cbranch_scc1 L_at_p3")
        a(f"s_add_u32 m0, s{KL[j]}, {SLOT}\ns_nop 0\nbuffer_load_dwordx4 v{DMV}, s[12:15], s{KS[j]} offen sc1 lds")
    if not CW:
        a(f"s_cmp_lg_u32 s{MODE}, 0\ns_cbranch_scc1 L_at_p3")
        clear_o(a)
        a(f"""s_lshl_b32 s22, s2, 7
    s_lshl_b32 s23, s{HW}, 2
    s_add_u32 s22, s22, s23
    s_add_u32 s{FCOFF}, s22, {WS_FE}""")
    a.label("L_at_p3")
    a("s_setprio 3")
    stamp(a, 10)
    a(f".p2align {ALP}")
    for _ in range(ALN): a("s_nop 0")
    def kv(j):
        return f"""s_add_u32 m0, s{KL[j]}, s32
        s_add_u32 s{KS[j]}, s{KS[j]}, {TTS_}
        buffer_load_dwordx4 v{DMV}, s[12:15], s{KS[j]} offen sc1 lds"""
    wo = f"""s_mov_b32 m0, s{WOL}
        s_sub_u32 s{WOL}, s{WOL}, {8*960}
        buffer_load_dwordx4 v{WOV}, s[8:11], s{WOS} offen lds
        s_sub_u32 s{WOS}, s{WOS}, {8*6*1280}"""
    def chunk(kind):
        last = kind == 2
        for T in range(4):
            kb = T & 1
            for q in range(2):
                o = q ^ 1
                fin = last and T == 3
                ex = [f"v_exp_f32 v{S[q]+i}, v{S[q]+i}" for i in range(16)]
                cv = [f"v_cvt_pk_bf16_f32 v{P[q]+i}, v{S[q]+2*i}, v{S[q]+2*i+1}" for i in range(8)]
                kq = kb if q == 0 else kb ^ 1
                vq = kb ^ 1 if q == 0 else kb
                rd = (kr((T+1) & 3, kb ^ 1) + vr(T, kb)) if q == 0 else []
                if fin and q == 0: rd = vr(T, kb)
                if '--halfrd' in sys.argv and T & 1: rd = []
                st = (2*((T+1) & 3) + q)
                def pr(i):
                    k = 4*st + i
                    P_ = [0, 4, 6, 7] if fin else PRIO
                    if k in P_: a(f"s_setprio {3 - P_.index(k)}")
                if q == 0 and T == 3: a("s_waitcnt vmcnt(0)" + ("" if '--nobar' in sys.argv and kind == 0 else "\ns_barrier"))
                if q == 1: a("s_waitcnt lgkmcnt(0)")
                G = [ex[0:4] + cv[0:1], ex[4:6] + cv[1:2] + ex[6:8] + cv[2:3], ex[8:10] + cv[3:4] + ex[10:12] + cv[4:5], ex[12:14] + cv[5:6] + ex[14:16] + cv[6:8]]
                if not (fin and q == 1): a(m32(S[o], KF[kq], Q0[o]))
                pr(0)
                if (T, q) == (1, 1) and kind == 0:
                    a(f"""s_cmp_eq_u32 s31, {2*SLOT}
                    s_cselect_b32 s29, s34, s35""")
                if (T, q) == (1, 1) and kind == 1: a("s_mov_b32 s29, s35")
                a(J(rd[0:3] + G[0]))
                if not (fin and q == 1): a(m32x8(S[o], KF[kq]+4, Q1[o], S[o]))
                pr(1)
                if (T, q) == (3, 1) and kind == 0: a(kv(1))
                if (T, q) == (0, 1) and kind == 0 and '--nowo' not in sys.argv: a(wo)
                if (T, q) == (0, 1) and last:
                    a(f"s_cmp_ge_u32 s{WV}, 3\ns_cbranch_scc1 L_at_w3"); a(wo); a.label("L_at_w3")
                if (T, q) == (2, 1) and not last: shift(29)
                a(J(rd[3:5] + G[1]))
                a(m32(O[o], VF[vq], P[o], O[o])); pr(2)
                a(J(rd[5:7] + G[2]))
                a(m32(O[o], VF[vq]+4, P[o]+4, O[o])); pr(3)
                if (T, q) == (3, 0) and kind == 0:
                    a(kv(0))
                    a(f"s_cmp_lg_u32 s{FCOFF}, 0\ns_cbranch_scc1 L_at_fc")
                    a.label("L_at_back")
                if (T, q) == (0, 0):
                    if kind == 1: a(f"buffer_load_dwordx4 v[136:139], v{FCA}, s[12:15], 0 offen sc1")
                    elif '--nowo' not in sys.argv: a(wo)
                if (T, q) == (3, 0) and kind == 1:
                    poll(a, [FCA], 4, 136, preloaded=True)
                    a(f"""s_lshl_b32 s23, s{WV}, 10
                    s_add_u32 m0, s23, {YSRC}
                    s_cmp_ge_u32 s{WV}, 2
                    buffer_load_dwordx4 v{YV}, s[12:15], s{YS} offen sc1 lds
                    s_cbranch_scc1 L_at_y1
                    s_add_u32 m0, m0, 8192
                    s_add_u32 s22, s{YS}, {64*RS}
                    buffer_load_dwordx4 v{YV}, s[12:15], s22 offen sc1 lds""")
                    a.label("L_at_y1")
                if (T, q) == (3, 1) and kind == 0:
                    a(f"s_cmp_eq_u32 s{KH}, 1\ns_cbranch_scc1 L_at_n2")
                    a(kv(2))
                    a.label("L_at_n2")
                    a("s_mov_b32 s32, s31\ns_add_u32 s31, s31, s29")
                a(J(G[3][:-2]))
                if q == 1 and T == 3 and not last: a(f"v_mad_i32_i24 v{VA}, v{MSK}, s29, v{VA}")
                if q == 1 and T == 3 and kind == 0: a("s_add_u32 s30, s30, 1\ns_cmp_lt_u32 s30, 6")
                a(J(G[3][-2:]))
    a.label("L_at_loop")
    chunk(0)
    a("s_cbranch_scc1 L_at_loop")
    chunk(1)
    chunk(2)
    a("s_nop 0")
    C = S[1]; A = O[1]
    a(m32(O[1], VF[1], P[1], O[1]))
    a(f"""s_setprio 0
    s_mul_i32 s22, s{WV}, 3072
    v_add_u32 v4, s22, v{DMV}
    s_xor_b32 s22, s{WV}, 4
    s_mul_i32 s22, s22, 3072
    v_add_u32 v5, s22, v{DMV}""")
    a(m32(O[1], VF[1]+4, P[1]+4, O[1]))
    stamp(a, 11)
    if OPF == 1: o_prefetch(a, "e")
    for i in range(3): a(f"ds_write_b128 v4, {v(O[0]+4*i,4)} offset:{EXC + i*1024}")
    a(f"""v_mov_b64 v[6:7], 1
    s_mov_b32 s24, {f32hex(2.0**110)}
    v_pk_add_f32 {v(C,2)}, {v(O[0],2)}, {v(O[0]+2,2)}""")
    for i in range(4, 12, 2): a(f"v_pk_add_f32 {v(C,2)}, {v(C,2)}, {v(O[0]+i,2)}")
    a("s_nop 1")
    for i in range(0, 12, 2): a(f"v_pk_add_f32 {v(C,2)}, {v(C,2)}, {v(O[1]+i,2)}")
    a(f"""v_add_f32 v{C}, v{C}, v{C+1}
    v_add_f32 v{C+1}, v{O[0]+12}, v{O[1]+12}
    v_mul_f32 v{C}, {f32hex(2.0**-17)}, v{C}
    s_lshl_b32 s22, s{HW}, 1
    v_add_f32 v{C}, abs(v{C}), v{C+1}
    s_add_u32 s22, s22, s{KH}
    v_cmp_ngt_f32 vcc, s24, v{C}""")
    if M0:
        a(f"""v_min_f32 v{C+3}, v{O[0]+12}, v{O[1]+12}
        s_mov_b32 s24, {f32hex(2.0**-60)}
        v_cmp_gt_f32 s[26:27], s24, v{C+3}
        s_mul_i32 s22, s22, {2*OG}
        s_or_b64 vcc, vcc, s[26:27]""")
    else: a(f"s_mul_i32 s22, s22, {2*OG}")
    a(f"""s_cbranch_vccz L_at_nf
    ds_write_b32 v7, v6 offset:{FLAGW}""")
    a.label("L_at_nf")
    a(f"""s_add_u32 s23, s22, s{OTAIL}
    s_add_u32 s22, s22, s{OOCT}
    s_waitcnt lgkmcnt(0)
    s_barrier
    ds_read_b32 v6, v7 offset:{FLAGW}""")
    for i in (2, 0, 1): a(f"ds_read_b128 {v(S[0]+4*i,4)}, v5 offset:{EXC + i*1024}")
    a(f"""s_waitcnt lgkmcnt(2)
    v_readfirstlane_b32 s26, v6
    v_pk_add_f32 {v(A+8,2)}, {v(A+8,2)}, {v(S[0]+8,2)}
    v_pk_add_f32 {v(A+10,2)}, {v(A+10,2)}, {v(S[0]+10,2)}
    v_rcp_f32 v{C}, v{A+8}
    s_cmp_gt_u32 s26, s{MODE}
    v_mov_b32 v{C+1}, v{C}
    s_cbranch_scc1 L_at_fallback
    s_waitcnt lgkmcnt(0)
    v_permlane32_swap_b32 v{C}, v{C+1}""")
    for i in range(0, 8, 2): a(f"v_pk_add_f32 {v(A+i,2)}, {v(A+i,2)}, {v(S[0]+i,2)}")
    for i in range(0, 12, 2): a(f"v_pk_mul_f32 {v(A+i,2)}, {v(A+i,2)}, {v(C,2)} op_sel:[0,1] op_sel_hi:[1,1]")
    for i in range(6): a(f"v_cvt_pk_bf16_f32 v{P[0]+i}, v{A+2*i}, v{A+2*i+1}")
    modes = [OSC]
    if '--dbl' in sys.argv: modes = ['sc1', '']
    if '--dbl2' in sys.argv: modes = ['', 'sc1', '']
    if '--osc' in sys.argv: modes = [sys.argv[sys.argv.index('--osc')+1].replace('_', ' ')]
    for md in modes:
        a(f"""buffer_store_dwordx4 {v(P[0],4)}, v{OSA}, s[12:15], s22 offen {md}
        s_mov_b32 exec_hi, 0
        buffer_store_dwordx2 {v(P[0]+4,2)}, v{OST}, s[12:15], s23 offen {md}
        s_mov_b32 exec_hi, -1""")
    if '--dpf' in sys.argv:
        diag_wait(a, '--dpf'); o_prefetch(a, 'd'); a('s_waitcnt vmcnt(0)')
    diag_wait(a, '--dos')
    stamp(a, 12)
    stamp(a, 51, True)

    def cold():
        a.label("L_at_fc")
        set_flag(a, FCOFF, 6)
        a(f"s_mov_b32 s{FCOFF}, 0\ns_branch L_at_back")
        a.label("L_at_fallback")
        a(f"s_mov_b32 s{MODE}, 1")
        a.label("L_at_refill")
        a("s_waitcnt vmcnt(0) lgkmcnt(0)\ns_barrier")
        attn_reset(a)
        for j in range(3):
            if j == 2: a(f"s_cmp_ge_u32 s{WV}, 4\ns_cbranch_scc1 L_at_f3")
            a(f"s_mov_b32 m0, s{KL[j]}\ns_sub_u32 s22, s{KS[j]}, {TTS_}\nbuffer_load_dwordx4 v{DMV}, s[12:15], s22 offen sc1 lds")
        a.label("L_at_f3")
        a("s_waitcnt vmcnt(0)\ns_branch L_attn")
        a.label("L_at_maxpass")
        MX = [P[0], P[1]]
        for q in range(2):
            a(f"v_cndmask_b32 v{Q1[q]}, 0, v{Q1[q]}, vcc\nv_cndmask_b32 v{Q1[q]+1}, 0, v{Q1[q]+1}, vcc\nv_mov_b32 v{MX[q]}, 0xff800000")
        a.label("L_at_mloop")
        for T in range(4):
            a(J(kr(T, 0)) + "\ns_waitcnt lgkmcnt(0)")
            qk(0, 0); qk(1, 0)
            a("s_nop 7\ns_nop 3")
            for q in range(2): tilemax(a, MX[q], S[q], False)
        a("s_add_u32 s30, s30, 1\ns_cmp_eq_u32 s30, 8\ns_cbranch_scc1 L_at_mdone\ns_barrier")
        for j in range(3):
            if j == 2: a(f"s_cmp_ge_u32 s{WV}, 4\ns_cbranch_scc1 L_at_m3")
            a(f"s_mov_b32 m0, s{KL[j]}\ns_nop 0\nbuffer_load_dwordx4 v{DMV}, s[12:15], s{KS[j]} offen sc1 lds\ns_add_u32 s{KS[j]}, s{KS[j]}, {TTS_}")
        a.label("L_at_m3")
        a("s_waitcnt vmcnt(0)\ns_barrier\ns_branch L_at_mloop")
        a.label("L_at_mdone")
        a(f"""s_lshl_b32 s22, s{WV}, 10
        v_add_u32 v4, s22, v{DMV}
        v_xor_b32 v5, 4096, v4""")
        for q in range(2): halfmax(a, MX[q]); a(f"ds_write_b32 v4, v{MX[q]} offset:{ARING + 2*SLOT + 4*q}")
        a("s_waitcnt lgkmcnt(0)\ns_barrier")
        for q in range(2): a(f"ds_read_b32 v{S[0]+q}, v5 offset:{ARING + 2*SLOT + 4*(1-q)}")
        a("s_waitcnt lgkmcnt(0)")
        for q in range(2):
            a(f"v_max_f32 v{MX[q]}, v{MX[q]}, v{S[0]+q}"); set_m(a, q, MX[q])
        a(f"s_mov_b32 s{MODE}, 2\ns_branch L_at_refill")
    return cold

def tail(a):
    ACC = 8
    order = [3, 2, 1, 0]
    THR = int(sys.argv[sys.argv.index('--thr')+1]) if '--thr' in sys.argv else 1
    PD = int(sys.argv[sys.argv.index('--pd')+1]) if '--pd' in sys.argv else 2
    def rlist(i, slot):
        t = Asm(); wo_reads(t, i, slot); return [l.strip() for l in t.lines]
    def loads(x):
        for e in range(2): a(f"buffer_load_dwordx4 {v(OFR[2*x+e],4)}, v5, s[12:15], s{TOS if x < 2 else 27} offen offset:{((2*x+e)&3)*1024} sc1")
        a(f"buffer_load_dwordx2 {v(OFR[8]+2*x,2)}, v1, s[12:15], s{TTS} offen offset:{x*512} sc1")
    def check(x, mask):
        r0, r1, rt = OFR[2*x], OFR[2*x+1], OFR[8] + 2*x
        a(f"""v_max3_u32 v4, v{r0}, v{r0+1}, v{r0+2}
        v_max3_u32 v4, v4, v{r0+3}, v{r1}
        v_max3_u32 v4, v4, v{r1+1}, v{r1+2}
        v_max3_u32 v4, v4, v{r1+3}, v{rt}
        v_max_u32 v4, v4, v{rt+1}""")
        if mask: a("v_and_b32 v4, s31, v4")
        a("v_cmp_eq_u32 vcc, -1, v4")
    def rowstore(base, T):
        for j in range(3): a(f"ds_read_b128 {v(T+4*j,4)}, v6 offset:{base + 960*j}")
        a(f"s_mov_b32 exec_hi, 0x0fffffff\ns_add_u32 s22, s{TFS}, {6*2560}\ns_add_u32 s23, s{TFS}, {12*2560}")
        for j in range(3):
            if j == 2: a("s_mov_b32 exec_hi, 0xff")
            a(f"s_waitcnt lgkmcnt({2-j})\nbuffer_store_dwordx4 {v(T+4*j,4)}, v{FS0}, s[8:11], s{[TFS, 22, 23][j]} offen {OUTSC}")
        a("s_mov_b32 exec_hi, -1")
    srd(a, 8, P_OUT, 2048*2560)
    a(f"""v_mov_b32 v5, v{DMV}
    v_lshlrev_b32 v1, 3, v2
    s_mov_b32 s50, 0
    s_mov_b32 s29, 15
    s_add_u32 s27, s{TOS}, 4096
    s_mul_i32 s22, s{HW}, 5120
    v_add_u32 v6, s22, v5
""")
    Y = WFR[8]
    a(f"s_cmp_eq_u32 s{KH}, 1\ns_cbranch_scc1 L_t_ny")
    for m in range(5): a(f"ds_read_b64_tr_b16 {v(Y+2*m,2)}, v{YT} offset:{YSRC + m*2048}")
    for m in range(5): a(f"s_waitcnt lgkmcnt(4)\nds_write_b64 v{FIW}, {v(Y+2*m,2)} offset:{PART + 32*m}")
    rowstore(PART, WFR[3])
    a.label("L_t_ny")
    for i in (7, 6, 5, 4, 3, 2, 1, 0, 8): wo_reads(a, i, i)
    for i in range(0, 20, 2): a(f"v_mov_b64 {v(ACC+i,2)}, 0")
    stamp(a, 44, True)
    a.label("L_t_loop")
    for x in order:
        a(f"s_bitcmp0_b32 s29, {x}\ns_cbranch_scc1 L_t_no{x}")
        loads(x)
        a.label(f"L_t_no{x}")
    a(f"""s_add_u32 s50, s50, 1
    s_cmp_gt_u32 s50, {SPIN}
    s_cselect_b32 s31, 0, -1
    s_mov_b32 s28, s29
    s_waitcnt lgkmcnt(0)""")
    for n, x in enumerate(order):
        a(f"s_bitcmp0_b32 s28, {x}\ns_cbranch_scc1 L_t_co{x}")
        if x > 0:
            a(f"s_and_b32 s22, s28, {(1 << x) - 1}\ns_bcnt1_i32_b32 s22, s22")
            for k in range(x, 0, -1):
                a(f"s_waitcnt vmcnt({3*k})\ns_cmp_eq_u32 s22, {k}\ns_cbranch_scc1 L_t_w{x}")
        a("s_waitcnt vmcnt(0)")
        a.label(f"L_t_w{x}")
        check(x, True)
        a(f"s_cbranch_vccnz L_t_co{x}\ns_bitset0_b32 s29, {x}")
        for e in (1, 0):
            for m in range(5): a(m16(ACC+4*m, WFR[2*x+e]+4*m, OFR[2*x+e], ACC+4*m))
        a.label(f"L_t_co{x}")
    if '--tl' in sys.argv:
        a("s_cmp_lg_u32 s50, 1\ns_cbranch_scc1 L_t_tl")
        stamp(a, 45, True)
        a(f"v_writelane_b32 v{PV}, s29, 28")
        a.label("L_t_tl")
    a("s_cmp_lg_u32 s29, 0\ns_cbranch_scc1 L_t_loop")
    wo_reads(a, 9, 7)
    a("s_waitcnt lgkmcnt(10)")
    for m in range(5): a(m16(ACC+4*m, WFR[8]+4*m, OFR[8], ACC+4*m))
    for m in range(5):
        a(f"s_waitcnt lgkmcnt({8-2*m})")
        a(m16(ACC+4*m, WFR[7]+4*m, OFR[9], ACC+4*m))
    stamp(a, 15)
    stamp(a, 52, True)
    if PROF: a(f"v_writelane_b32 v{PV}, s50, 29")
    T = 128
    a(f"s_cmp_eq_u32 s{KH}, 1\ns_cbranch_scc1 L_t_r1\ns_nop 3")
    for m in range(5): a(f"ds_write_b128 v6, {v(ACC+4*m,4)} offset:{PART + m*1024}")
    a("s_waitcnt lgkmcnt(0)\ns_barrier\ns_branch L_t_fin")
    a.label("L_t_r1")
    a("s_barrier")
    for m in range(5): a(f"ds_read_b128 {v(T+4*m,4)}, v6 offset:{PART + m*1024}")
    for m in range(5):
        a(f"s_waitcnt lgkmcnt(4)")
        for i in range(0, 4, 2): a(f"v_pk_add_f32 {v(ACC+4*m+i,2)}, {v(ACC+4*m+i,2)}, {v(T+4*m+i,2)}")
        a(f"v_cvt_pk_bf16_f32 v{ACC+4*m}, v{ACC+4*m}, v{ACC+4*m+1}\nv_cvt_pk_bf16_f32 v{ACC+4*m+1}, v{ACC+4*m+2}, v{ACC+4*m+3}")
        a(f"ds_write_b64 v{FIW}, {v(ACC+4*m,2)} offset:{OIMG + 32*m}")
    stamp(a, 46, True)
    rowstore(OIMG, T+24)
    a.label("L_t_fin")


DOC = """; ---------------------------------------------------------------------------------------------
;
; ---------------------------------------------------------------------------------------------
"""

def main(path):
    a = Asm()
    nm = NAME + "_kernel"
    a(f".globl {nm}\n.p2align 8\n.type {nm},@function")
    a.label(nm)
    if '--early' in sys.argv: a("s_memrealtime s[96:97]")
    a(f"""s_cmp_ge_u32 s2, 256
    s_cbranch_scc1 L_end
    s_load_dwordx16 s[64:79], s[0:1], 0
    s_load_dwordx8 s[80:87], s[0:1], 64
    s_load_dwordx2 s[88:89], s[0:1], 96
    v_lshrrev_b32 v1, 6, v0
    v_and_b32 v2, 63, v0
    v_readfirstlane_b32 s{WV}, v1
    s_and_b32 s{XCD}, s2, 7
    s_lshr_b32 s{IDX}, s2, 3
    s_cmp_lg_u32 s{WV}, 7
    s_cbranch_scc1 L_nopf
    s_cmp_ge_u32 s{IDX}, (L_code_end-{nm})/1024
    s_cbranch_scc1 L_nopf
    s_getpc_b64 s[22:23]""")
    a.label("L_pc")
    a(f"""s_lshl_b32 s24, s{IDX}, 10
    s_sub_u32 s22, s22, L_pc-{nm}
    s_subb_u32 s23, s23, 0
    v_lshl_add_u32 v4, v2, 4, s24
    v_mov_b32 v5, s23
    v_add_co_u32 v4, vcc, s22, v4
    s_nop 1
    v_addc_co_u32 v5, vcc, 0, v5, vcc
    global_load_dwordx4 v[220:223], v[4:5], off""")
    a.label("L_nopf")
    if PROF:
        a(f"v_mov_b32 v{PV}, 0\ns_memrealtime s[90:91]\ns_memtime s[92:93]")
    a(f"""s_and_b32 s{HW}, s{WV}, 3
    s_lshr_b32 s{KH}, s{WV}, 2
    s_mul_i32 s{CHN}, s{XCD}, 20
    s_add_u32 s{CHN}, s{CHN}, s{IDX}
    s_lshl_b32 s{CHN}, s{CHN}, 2
    s_add_u32 s{CHN}, s{CHN}, s{HW}
    s_lshl_b32 s22, s{CHN}, 8
    v_lshl_add_u32 v6, v2, 2, s22
    s_lshl_b32 s22, s{CHN}, 1
    v_mov_b32 v7, s22
    v_lshlrev_b32 v{DMV}, 4, v2
    s_mov_b32 s{FCOFF}, 0
    s_mov_b32 s{MODE}, 0""")
    a(f"""s_cmp_ge_u32 s{IDX}, 20
    s_cbranch_scc1 L_e_np
    s_waitcnt lgkmcnt(0)""")
    for i in range(4): a(f"global_load_dword v{PRM+i}, v6, s[{P_LA+2*i}:{P_LA+2*i+1}] {PNT}")
    a(f"""global_load_ushort v{PRM+4}, v7, s[{P_DT}:{P_DT+1}]
    global_load_ushort v{VD}, v7, s[{P_D}:{P_D+1}]""")
    a.label("L_e_np")
    loader_math(a)
    a("s_waitcnt lgkmcnt(0)")
    if PROF: a(f"v_writelane_b32 v{PV}, s90, 0\nv_writelane_b32 v{PV}, s92, 1")
    srd(a, 60, P_X, 2048*1280)
    srd(a, 8, P_W, 640*3840)
    srd(a, 12, P_WS, WS_SIZE)
    if PF:
        a(f"""s_cmp_eq_u32 s{KH}, 1
        s_cbranch_scc1 L_nopx
        s_lshl_b32 s22, s{IDX}, 2
        s_add_u32 s22, s22, s{HW}
        s_lshl_b32 s23, s{XCD}, 7
        s_add_u32 s23, s23, s22
        s_mul_i32 s23, s23, 2560
        buffer_load_dwordx4 v[208:211], v{DMV}, s[60:63], s23 offen
        buffer_load_dwordx4 v[208:211], v{DMV}, s[60:63], s23 offen offset:1024
        buffer_load_dwordx4 v[208:211], v{DMV}, s[60:63], s23 offen offset:1536
        s_mul_i32 s22, s22, 3
        s_lshr_b32 s23, s{XCD}, 1
        s_mul_i32 s23, s23, {160*3840}
        s_and_b32 s24, s{XCD}, 1
        s_mul_i32 s24, s24, 1792
        s_add_u32 s23, s23, s24""")
        for j in range(3):
            a(f"""s_lshr_b32 s24, s22, 1
            s_mul_i32 s24, s24, 3840
            s_and_b32 s26, s22, 1
            s_lshl_b32 s26, s26, 10
            s_add_u32 s24, s24, s26
            s_add_u32 s24, s24, s23
            s_cmp_ge_u32 s22, 320
            s_cselect_b32 s24, 0x7000000, s24
            s_add_u32 s22, s22, 1
            buffer_load_dwordx4 v[208:211], v{DMV}, s[8:11], s24 offen""")
        a.label("L_nopx")
    if TLB:
        a(f"s_cmp_lg_u32 s{WV}, 6\ns_cbranch_scc1 L_notlb")
        srd(a, 4, P_OUT, 2048*2560)
        if TLB == 1:
            a(f"""v_lshlrev_b32 v3, 20, v2
            s_mov_b64 exec, 0x3ffff
            buffer_load_dword v220, v3, s[12:15], 0 offen
            s_mov_b64 exec, 0x1f
            buffer_load_dword v221, v3, s[4:7], 0 offen""")
        else:
            a(f"""s_mul_i32 s22, s{IDX}, {9*65536}
            v_lshlrev_b32 v3, 16, v2
            s_mov_b64 exec, 0x1ff
            buffer_load_dword v220, v3, s[12:15], s22 offen
            s_mul_i32 s22, s{IDX}, {3*65536}
            s_mov_b64 exec, 7
            buffer_load_dword v221, v3, s[4:7], s22 offen""")
        srd(a, 4, P_WO, 640*1280)
        a(f"""v_lshlrev_b32 v3, 16, v2
        s_mov_b64 exec, 0x1fff
        buffer_load_dword v222, v3, s[4:7], 0 offen
        s_mov_b64 exec, -1""")
        a.label("L_notlb")
    a(f"""s_cmp_ge_u32 s{IDX}, 30
    s_cbranch_scc1 L_e_tr
    s_cmp_lt_u32 s{IDX}, 20
    s_cselect_b32 s22, 1, 0
    s_cmp_lg_u32 s22, s{KH}
    s_cbranch_scc1 L_e_x
    s_cmp_eq_u32 s{KH}, 1
    s_cbranch_scc1 L_g_pro
    s_barrier""")
    a.label("L_g_pro")
    issue(a)
    stamp(a, 41)
    a(f"s_cmp_eq_u32 s{KH}, 0\ns_cbranch_scc1 L_gemm")
    if NH == 2: issue(a)
    else: skip(a)
    a("s_branch L_helper")
    a.label("L_e_x")
    a(f"""s_cmp_eq_u32 s{KH}, 1
    s_cbranch_scc1 L_nn
    s_setprio 2
    s_branch L_kgen""")
    a.label("L_e_tr")
    a(f"""s_lshl_b32 s26, s{XCD}, 1
    s_add_u32 s26, s26, s{IDX}
    s_sub_u32 s26, s26, 30
    s_lshl_b32 s26, s26, 3
    s_add_u32 s26, s26, s{WV}
    s_lshl_b32 s27, s{WV}, 13
    s_add_u32 s27, s27, 16384
    s_branch L_e_ut""")
    a.label("L_nn")
    a(f"""s_mul_i32 s26, s{XCD}, 10
    s_add_u32 s26, s26, s{IDX}
    s_mul_i32 s22, s{HW}, 80
    s_add_u32 s26, s26, s22
    s_add_u32 s26, s26, {NT - 20}
    s_lshl_b32 s27, s{HW}, 13
    s_add_u32 s27, s27, {SCR}
    s_cmp_lt_u32 s26, 320
    s_cbranch_scc1 L_e_ut
    s_cmp_lg_u32 s26, {NT + 240}
    s_cbranch_scc1 L_e_eb
    s_memrealtime s[22:23]
    v_mov_b32 v3, 0
    s_waitcnt lgkmcnt(0)
    s_or_b32 s22, s22, 1
    v_mov_b32 v4, s22
    s_mov_b64 exec, 1
    global_store_dword v3, v4, s[{P_DBG}:{P_DBG+1}] sc1
    s_mov_b64 exec, -1
    s_branch L_e_eb""")
    a.label("L_e_ut")
    utile_issue(a)
    a(f"s_cmp_ge_u32 s{IDX}, 30\ns_cbranch_scc1 L_utile")
    a.label("L_e_eb")
    a("s_barrier")
    a.label("L_helper")
    helper(a)
    a.label("L_g_kb")
    skip(a)
    if NH == 2: skip(a)
    else: issue(a)
    issue(a)
    a(f"s_setprio {MP}\nv_add_u32 v6, s28, v{DMV}")
    for i in range(4): a(f"ds_write_b128 v6, {v(KACC+4*i,4)} offset:{1024*i}")
    a.label("L_gemm")
    gemm(a)
    a.label("L_w1")
    window1(a)
    a.label("L_attn")
    cold = attention(a)
    tail(a)
    diag_wait(a, '--dend')
    if PROF:
        a("s_waitcnt vmcnt(0)")
        stamp(a, 16); stamp(a, 17, True)
        a(f"""s_lshl_b32 s22, s2, 3
        s_add_u32 s22, s22, s{WV}
        s_lshl_b32 s22, s22, 8
        s_add_u32 s22, s22, {WS_PROF}
        v_lshlrev_b32 v3, 2, v2
        buffer_store_dword v{PV}, v3, s[12:15], s22 offen""")
    a.label("L_end")
    a("s_endpgm")
    a.label("L_tr_back")
    arr_init(a)
    a(f"s_waitcnt lgkmcnt(0)\ns_barrier\ns_cmp_lt_u32 s{WV}, 4\ns_cbranch_scc1 L_w1\ns_branch L_h_ids")
    cold()
    a(f".fill (1024 - ((. - {nm}) % 1024))/4, 4, 0xbf810000")
    a.label("L_code_end")
    hdr = open("cdna_kernels/" + NAME + ".s.ref").read().split("\n")
    head = [l for l in hdr[:15] if l.startswith(";") and "@launch" not in l and "Override" not in l and "grid=ceil" not in l]
    txt = "\n".join(head) + "\n; @launch grid=(256,1,1) block=(512,1,1) lds=163840\n"
    txt += DOC + '.amdgcn_target "amdgcn-amd-amdhsa--gfx950"\n.text\n' + a.text()
    txt += f""".section .rodata,"a"
.p2align 6
.amdhsa_kernel {nm}
  .amdhsa_next_free_vgpr 256
  .amdhsa_next_free_sgpr 102
  .amdhsa_accum_offset 256
  .amdhsa_group_segment_fixed_size 0
  .amdhsa_kernarg_size 104
  .amdhsa_user_sgpr_count 2
  .amdhsa_user_sgpr_kernarg_segment_ptr 1
  .amdhsa_system_sgpr_workgroup_id_x 1
.end_amdhsa_kernel
"""
    open(path, "w").write(txt)
    errs = check_hazards(a.text())
    for e in errs[:30]: print("HAZARD", e)
    print(f"{path}: {len(a.lines)} lines, {len(errs)} hazards")

if __name__ == "__main__":
    main([x for x in sys.argv[1:] if x.endswith(".s")][0])
```
